```python
import torch

def _softmax(x, axis=-1):
    return torch.softmax(x, dim=axis)
def _gelu(x):
    return torch.nn.functional.gelu(x, approximate="tanh")
def _silu(x):
    return torch.nn.functional.silu(x)
def _sigmoid(x):
    return torch.sigmoid(x)
def _layernorm(x, axis=-1, eps=1e-5):
    m = x.mean(dim=axis, keepdim=True)
    v = x.var(dim=axis, keepdim=True, unbiased=False)
    return (x - m) / torch.sqrt(v + eps)
def _scatter_add(tgt, idx, src, axis=0):
    return tgt.clone().index_add_(axis, idx, src)
def _segment_sum(src, seg, n):
    out = torch.zeros((n,) + src.shape[1:], dtype=src.dtype)
    return out.index_add_(0, seg, src)
def _pad(x, pw):
    flat = tuple(v for pair in reversed(pw) for v in pair)
    return torch.nn.functional.pad(x, flat)

kernel_name = 'standalone__mha_block_cached__near_ridge'

def setup_inputs():

    _w = (lambda a: (lambda t: t.to(torch.bfloat16) if t.is_floating_point() else t)(torch.as_tensor(a)))
    B, Sq, D = 16, 144, 512
    H, Sk, Dh = 32, 512, 128
    return {
        "x": _w((lambda *s: torch.randn(*s, dtype=torch.bfloat16) * 0.8)(B, Sq, D)),
        "k_cache": _w((lambda *s: torch.randn(*s, dtype=torch.bfloat16) * 0.8)(B, H, Sk, Dh)),
        "v_cache": _w((lambda *s: torch.randn(*s, dtype=torch.bfloat16) * 0.05)(B, H, Sk, Dh)),
        "wq": _w((lambda *s: torch.randn(*s, dtype=torch.bfloat16) * 0.8)(D, H * Dh) * (D ** -0.5)),
        "wo": _w((lambda *s: torch.randn(*s, dtype=torch.bfloat16) * 0.05)(H * Dh, D) * ((H * Dh) ** -0.5)),
    }

def reference(x, k_cache, v_cache, wq, wo):
    B, Sq, D = x.shape
    H, Dh = 32, 128
    q = (lambda x, *d: x.permute(*d))((x @ wq).reshape(B, Sq, H, Dh), 0, 2, 1, 3)
    scores = torch.einsum("bhqd,bhkd->bhqk", q, k_cache) * (Dh ** -0.5)
    p = _softmax(scores, axis=-1)
    o = torch.einsum("bhqk,bhkd->bhqd", p, v_cache)
    return (lambda x, *d: x.permute(*d))(o, 0, 2, 1, 3).reshape(B, Sq, H * Dh) @ wo
```

```python
import re

def R(kind, n, cnt=1):
    return [f"{kind}{n+i}" for i in range(cnt)]
def rs(kind, n, cnt=1):
    return f"{kind}{n}" if cnt == 1 else f"{kind}[{n}:{n+cnt-1}]"

class Reg:
    def __init__(s, kind, n, cnt=1): s.k, s.n, s.c = kind, n, cnt
    def __str__(s): return rs(s.k, s.n, s.c)
    def regs(s): return R(s.k, s.n, s.c)
    def sub(s, off, cnt=1):
        assert off + cnt <= s.c, (s, off, cnt)
        return Reg(s.k, s.n + off, cnt)
    def __getitem__(s, i): return s.sub(i, 1)
def V(n, c=1): return Reg('v', n, c)
def A(n, c=1): return Reg('a', n, c)
def S(n, c=1): return Reg('s', n, c)

class I:
    __slots__ = ("text", "kind", "rd", "wr", "cost", "lo", "hi", "q", "after", "tag", "placed", "hie", "srcc", "ab", "gap", "succ", "idx")
    def __init__(s, text, kind, rd=(), wr=(), cost=1, tag=None):
        s.text, s.kind, s.cost, s.tag = text, kind, cost, tag
        s.rd = dict(); s.wr = dict()
        for x in rd:
            r, t = x if isinstance(x, tuple) else (x, None)
            for n in r.regs(): s.rd[n] = t
        for x in wr:
            r, t = x if isinstance(x, tuple) else (x, None)
            for n in r.regs(): s.wr[n] = t
        s.lo = s.hi = None; s.q = None; s.after = []; s.placed = False
        s.srcc = set(); s.ab = set(); s.gap = None; s.succ = []

def _r(x): return x[0] if isinstance(x, tuple) else x

def mfma(d, a, b, c):
    ctext = "0" if c == 0 else str(_r(c))
    i = I(f"v_mfma_f32_16x16x32_bf16 {_r(d)}, {_r(a)}, {_r(b)}, {ctext}", "mfma",
          rd=[a, b] + ([] if c == 0 else [c]), wr=[d], cost=0)
    i.ab = set(_r(a).regs()) | set(_r(b).regs())
    i.srcc = set() if c == 0 else set(_r(c).regs())
    return i
def valu(op, d, *src, extra="", kind="valu", cost=1, rmw=False):
    rd = [x for x in src if isinstance(_r(x), Reg)]
    txt = ", ".join(str(_r(x)) for x in (d,) + src)
    return I(f"{op} {txt}{(' ' + extra) if extra else ''}", kind, rd=rd, wr=[d], cost=cost)
def trans(op, d, s_): return valu(op, d, s_, kind="trans", cost=2)
def swap(op, a, b, ta=None, tb=None):
    return I(f"{op} {_r(a)}, {_r(b)}", "perm", rd=[a, b], wr=[(_r(a), ta), (_r(b), tb)])
def salu(op, d, *src):
    rd = [x for x in src if isinstance(_r(x), Reg)]
    wr = [d] if isinstance(_r(d), Reg) else []
    i = I(f"{op} " + ", ".join(str(_r(x)) for x in (d,) + src), "salu", rd=rd, wr=wr)
    if d == "m0": i.wr["m0"] = None
    return i
def dsr(op, d, addr, off):
    assert 0 <= off < 65536, off
    return I(f"{op} {_r(d)}, {_r(addr)} offset:{off}", "dsr", rd=[addr], wr=[d])
def dsw(op, addr, data, off):
    assert 0 <= off < 65536, off
    return I(f"{op} {_r(addr)}, {_r(data)} offset:{off}", "dsw", rd=[addr, data])
def dma(voff, srd, soff, off, flags, tag):
    assert 0 <= off < 4096
    i = I(f"buffer_load_dwordx4 {_r(voff)}, {srd}, {soff} offen offset:{off} {flags} lds".replace("  ", " "), "dma",
          rd=[voff, srd] + ([soff] if isinstance(soff, Reg) else []), tag=tag)
    i.rd["m0"] = None
    return i
def vload(d, voff, srd, soff, off, flags="", tag=None, op="buffer_load_dwordx4"):
    assert 0 <= off < 4096
    return I(f"{op} {_r(d)}, {_r(voff)}, {srd}, {soff} offen offset:{off} {flags}".rstrip(), "vml",
             rd=[voff, srd] + ([soff] if isinstance(soff, Reg) else []), wr=[d], tag=tag)
def vstore(data, voff, srd, soff, off, flags="", tag=None, op="buffer_store_dwordx4"):
    assert 0 <= off < 4096
    return I(f"{op} {_r(data)}, {_r(voff)}, {srd}, {soff} offen offset:{off} {flags}".rstrip(), "vms",
             rd=[data, voff, srd] + ([soff] if isinstance(soff, Reg) else []), tag=tag)
def waitvm(*tags):
    i = I("", "waitvm"); i.tag = set(tags); return i
def barrier(vm=(), lgkm=True):
    i = I("s_barrier", "bar", cost=2); i.tag = (set(vm), lgkm); return i
def raw(text, cost=1, rd=(), wr=(), kind="raw"): return I(text, kind, rd=rd, wr=wr, cost=cost)

class Sched:
    def __init__(s, cap=2, settle=7):
        s.bb = []; s.fill = []; s.cap = cap; s.settle = settle
        s.lastq = {}
    @property
    def n(s): return len(s.bb)
    def m(s, i): s.bb.append(i); return len(s.bb) - 1
    def f(s, i, lo, hi, q=None, after=()):
        i.lo, i.hi, i.q = lo, hi, q
        i.after = list(after)
        if q is not None:
            if q in s.lastq: i.after.append(s.lastq[q])
            s.lastq[q] = i
        i.idx = len(s.fill)
        s.fill.append(i); return i
    def run(s):
        for i in s.fill:
            i.hie = i.hi
        for i in s.fill:
            for p in i.after: p.succ.append(i)
        changed = True
        while changed:
            changed = False
            for i in reversed(s.fill):
                for p in i.after:
                    if p.hie > i.hie: p.hie = i.hie; changed = True
        for i in s.fill:
            assert i.lo <= i.hie, f"empty window lo={i.lo} hi={i.hi} hie={i.hie}: {i.text or i.kind}"
        out = []
        lg = []
        vm = []
        stats = dict(over=0, idle=0, waits=0)
        def need(i):
            touch = set(i.rd) | set(i.wr)
            a = b = -1
            for k, (p, _) in enumerate(lg):
                if touch & set(p.wr): a = k
            for k, (p, _) in enumerate(vm):
                if touch & set(p.wr): b = k
            if i.kind == "dsr":
                a2 = -1
                for k, (p, _) in enumerate(lg):
                    if set(i.rd) & set(p.wr): a2 = k
                a = a2
            if i.kind == "waitvm":
                for k, (p, _) in enumerate(vm):
                    if p.tag in i.tag: b = k
            if i.kind == "bar":
                for k, (p, _) in enumerate(vm):
                    if p.tag in i.tag[0]: b = k
                if i.tag[1]: a = len(lg) - 1
            return a, b
        def emit(i, g):
            a, b = need(i)
            used = 0
            parts = []
            if b >= 0:
                n = min(len(vm) - 1 - b, 63); parts.append(f"vmcnt({n})"); del vm[:len(vm) - n]
            if a >= 0:
                while a + 1 < len(lg) and lg[a + 1][1] <= g - s.settle: a += 1
                n = min(len(lg) - 1 - a, 15); parts.append(f"lgkmcnt({n})"); del lg[:len(lg) - n]
            if parts:
                w = I("s_waitcnt " + " ".join(parts), "wait"); w.gap = g; out.append(w); stats["waits"] += 1
                used += 1
            if i.kind != "waitvm":
                i.gap = g; out.append(i); used += (1 if i.kind == "bar" else i.cost)
            if i.kind in ("dsr", "dsw"): lg.append((i, g))
            if i.kind in ("dma", "vml", "vms"):
                vm.append((i, g)); assert len(vm) <= 63, "too many vm ops in flight"
            i.placed = True
            return used
        pend = sorted(s.fill, key=lambda i: (i.lo, i.idx))
        active = []; pi = 0
        for g in range(-1, len(s.bb)):
            while pi < len(pend) and pend[pi].lo <= g: active.append(pend[pi]); pi += 1
            cap = s.cap
            nxt = s.bb[g + 1] if g + 1 < len(s.bb) else None
            if nxt is not None and need(nxt) != (-1, -1): cap -= 1
            while True:
                cand = [i for i in active if all(p.placed for p in i.after)]
                if not cand: break
                cand.sort(key=lambda i: (i.hie, i.idx))
                pick = None
                if cand[0].hie <= g: pick = cand[0]
                else:
                    for c in cand:
                        extra = 0 if c.kind in ("bar", "waitvm") or need(c) == (-1, -1) else 1
                        if c.cost + extra <= cap: pick = c; break
                if pick is None: break
                cap -= emit(pick, g); active.remove(pick)
            for i in active: assert i.hie > g, f"missed deadline {i.text} hie={i.hie} g={g}"
            if 0 <= g < len(s.bb) - 1:
                if cap < 0: stats["over"] += -cap
                else: stats["idle"] += cap
            if nxt is not None: emit(nxt, g + 1)
        assert not active and pi == len(pend)
        s.stats = stats
        return out

def check_tags(seq):
    cur = {}
    for k, i in enumerate(seq):
        for r, t in i.rd.items():
            if t is not None and cur.get(r) != t:
                raise AssertionError(f"tag mismatch at #{k} gap {i.gap}: {i.text}: {r} expected {t} has {cur.get(r)}")
        for r, t in i.wr.items(): cur[r] = t

VALUK = ("valu", "trans", "perm")
def pad_hazards(seq):
    out = []; nops = 0
    def states(i):
        m = re.match(r"s_nop (\d+)", i.text)
        if m: return int(m.group(1)) + 1
        if i.kind == "label": return 0
        return 1
    for i in seq:
        req = 0; dist = 0
        rd, wr = set(i.rd), set(i.wr)
        for p in reversed(out):
            if dist >= 12: break
            pw = set(p.wr); need = 0
            if p.kind in VALUK:
                vw = {r for r in pw if r[0] in "va" and r != "vcc"}
                sw = {r for r in pw if r[0] == "s" or r == "vcc"}
                if i.kind == "mfma" and vw & rd: need = 2
                if i.kind == "perm" and vw & rd: need = 2
                if p.kind == "trans" and i.kind in ("valu", "perm") and vw & rd: need = max(need, 1)
                if "readfirstlane" in i.text and vw & rd: need = max(need, 1)
                if sw & rd:
                    if i.kind in ("dma", "vml", "vms"): need = max(need, 5)
                    if i.kind in VALUK: need = max(need, 2)
            if p.kind == "mfma":
                if i.kind == "mfma":
                    if pw & i.ab: need = 8
                    elif pw & i.srcc and pw != i.srcc: need = 6
                elif i.kind in VALUK or i.kind in ("dsr", "dsw", "vml", "vms", "dma"):
                    if pw & (rd | wr): need = 8
                if i.kind in VALUK and p.srcc & wr: need = max(need, 3)
            if p.kind == "salu" and "m0" in pw and i.kind == "dma": need = 1
            if p.kind in ("vms", "dsw") and i.kind in VALUK and set(p.rd) & wr: need = max(need, 2)
            req = max(req, need - dist)
            dist += states(p)
        if req > 0:
            n = I(f"s_nop {req-1}", "nop"); n.gap = i.gap; out.append(n); nops += req
        out.append(i)
    return out, nops
```

```python
import sys, math, struct
from dsl import *

NAME = "standalone__mha_block_cached__near_ridge"
US, GRP, PS = 17024, 4224, 1056
X9 = 9 * US
FLAG = X9 + 8448
LDSB = 163840
PART = 147456
STAMP_OFF = 0x4000000
def fbits(x): return struct.unpack("<I", struct.pack("<f", x))[0]
CSC = fbits(math.log2(math.e) / math.sqrt(128.0))
THR = fbits(2.0 ** 40)

Sx, Swq, Sk, Sv, Swo, Sws = S(20, 4), S(24, 4), S(28, 4), S(32, 4), S(36, 4), S(40, 4)
sW, sGrp, sOff, sC, sHH, sQH, sB, sJ = S(3), S(44), S(45), S(46, 2), S(48), S(49), S(50), S(51)
sT0, sT1, sMode, sX9, s4096, sOw0, sOw1, sLMw, sLMr, sSt, sT2 = S(52), S(53), S(54), S(55), S(56), S(57), S(58), S(59), S(60), S(61), S(62)
ACC = lambda b, f: V(32 * b + 4 * f, 4)
QF = lambda b, t: (V(128 + 16 * b + 4 * t, 4) if b < 4 else A(180 + 4 * t, 4))
SB = lambda k: V(192 + 8 * k, 8)
PB = lambda k: V(208 + 4 * k, 4)
NM = lambda b: V(216 + 4 * b, 4)
Kr = lambda y, hf: V(236 + 2 * y + hf)
Vr = lambda y, hf: V(240 + 2 * y + hf)
vKV = lambda pp: V(244 + pp)
vL16, vWpat, vWo0, vA8, vB8, vTs, vT0, vT1 = V(248), V(249), V(250), V(251), V(252), V(253), V(254), V(255)
qWr = lambda win, hf: V(216 + 2 * win + hf)
qXr = lambda win: V(220 + win)
qX9r = V(222)
qKw = lambda win: V(223 + win)
qWd = lambda pp: V(225 + pp)
qXd = lambda pp: V(229 + pp)
qX9d = V(233)
KF = lambda y, h, t: A(32 * y + 4 * (2 * t + h), 4)
VF = lambda y, d: A(64 + 32 * y + 4 * d, 4)
O9 = lambda d: A(128 + 4 * d, 4)
LS = lambda b: A(160 + 4 * b, 4)
ONES = A(196, 4)
SAV = lambda b: A(248 + b)
Aq = lambda f: A(32 + 4 * f, 4)
Bq = lambda i, b: A((128, 144, 200, 216)[i % 4] + 4 * b, 4)
B9 = lambda i: A(232 + 4 * (i % 4), 4)
A9 = lambda f: V(192 + 4 * f, 4)
KVst = lambda kv, n: A(64 + 32 * kv + 4 * n, 4)
WQU = {4: 2, 5: 6, 0: 7, 1: 1, 2: 4, 3: 8}
XU = {2: 3, 0: 0, 1: 5}
KVU = lambda slot: (2 * slot, 2 * slot + 1, 4 + 2 * slot, 5 + 2 * slot)
def Ao(p, ks, u):
    n = 2 * ks + u
    return A((0 if n < 8 else 64) + 32 * (p & 1) + 4 * (n & 7), 4)
def Bo(qb, ks):
    if qb < 4: return V(32 * qb + 4 * ks, 4)
    if qb < 8: return A(128 + 32 * (qb - 4) + 4 * ks, 4)
    return V(128 + 4 * ks, 4)
TR, B128 = "ds_read_b64_tr_b16", "ds_read_b128"

class Opt:
    stamps = False
    kvflag = "nt"
    stflag = "sc1"
    dump = None

def group(unit_off, base, voff, srd, soff, flags, tag):
    ops = [salu("s_add_u32", "m0", base, unit_off), salu("s_mov_b32", sOff, soff)]
    ops += [dma(voff(pp), srd, sOff, PS * pp, flags, tag) for pp in range(4)]
    return ops
def g_wq(i): return group(WQU[i % 6] * US, sGrp, qWd, Swq, i * 262144, "", f"wq{i}")
def g_x(I_): return group(XU[I_ % 3] * US, sGrp, qXd, Sx, I_ * 128, "", f"x{I_}")
def g_x9(n): return [salu("s_add_u32", "m0", sX9, X9 + (n & 1) * GRP), salu("s_mov_b32", sOff, n * 256),
                     dma(qX9d, Sx, sOff, 0, "", f"xn{n}")]
def g_kv(e, part, o):
    kv, half = part >> 1, part & 1
    return group(KVU(e & 1)[part] * US, sGrp, vKV, (Sk, Sv)[kv], e * 16384 + half * 4096, o.kvflag, f"{'kv'[kv]}{e}")
def g_wo(p, part): return group(KVU(p & 1)[part] * US, sGrp, vKV, Swo, part * 65536 + 256 * p, "", f"wo{p}")

def prologue(o):
    P = []; a = P.append
    v = lambda n: V(n)
    a(raw("s_cmp_ge_u32 s2, 256")); a(raw("s_cbranch_scc1 Lend"))
    if o.stamps: a(raw("s_memrealtime s[64:65]"))
    a(raw("s_load_dwordx16 s[4:19], s[0:1], 0"))
    a(valu("v_lshrrev_b32", v(1), 6, v(0)))
    a(valu("v_mov_b32", v(2), "0xff800000"))
    a(valu("v_readfirstlane_b32", sW, v(1)))
    for b in range(5): a(valu("v_accvgpr_write_b32", SAV(b), v(2)))
    a(salu("s_and_b32", sT0, S(2), 1)); a(salu("s_lshl_b32", sT0, sT0, 3))
    a(salu("s_bfe_u32", sT1, S(2), (3 << 16) | 3)); a(salu("s_add_u32", sB, sT0, sT1))
    a(salu("s_bfe_u32", sT0, S(2), (2 << 16) | 1)); a(salu("s_lshl_b32", sT0, sT0, 2))
    a(salu("s_lshr_b32", sT1, S(2), 6)); a(salu("s_add_u32", sJ, sT0, sT1))
    a(salu("s_lshr_b32", sHH, sW, 1)); a(salu("s_and_b32", sQH, sW, 1))
    a(salu("s_mul_i32", sGrp, sW, GRP)); a(salu("s_mul_i32", sX9, sW, PS))
    a(salu("s_mov_b32", sMode, 0)); a(salu("s_mov_b32", s4096, 4096))
    a(salu("s_mov_b32", sC[0], hex(CSC))); a(salu("s_mov_b32", sC[1], hex(CSC)))
    for srd, size in ((Sx, PART + 128), (Sk, 262144 + 128), (Sv, 262144 + 128), (Swo, 262144 + 128), (Sws, PART)):
        a(salu("s_mov_b32", srd[2], size)); a(salu("s_mov_b32", srd[3], "0x20000"))
    a(salu("s_mov_b32", Swq[3], "0x20000"))
    a(raw("s_waitcnt lgkmcnt(0)"))
    def base(srd, ptr, shift):
        a(salu("s_add_u32", srd[0], S(ptr), sT0)); a(salu("s_addc_u32", srd[1], S(ptr + 1), 0))
        if shift:
            a(salu("s_sub_u32", srd[0], srd[0], shift)); a(salu("s_subb_u32", srd[1], srd[1], 0))
    a(salu("s_mul_i32", sT0, sB, PART)); base(Sx, 4, 128)
    a(salu("s_lshl_b32", sT0, sJ, 9)); base(Swq, 10, 0); a(salu("s_sub_u32", Swq[2], 4194304, sT0))
    a(salu("s_lshl_b32", sT1, sB, 4)); a(salu("s_add_u32", sT1, sT1, sJ))
    a(salu("s_lshl_b32", sT0, sT1, 18)); base(Sk, 6, 128); base(Sv, 8, 128)
    a(salu("s_mul_i32", sT0, sT1, PART)); base(Sws, 18, 0)
    a(salu("s_lshl_b32", sT0, sJ, 18)); base(Swo, 12, 128)
    a(raw("Lrestart:", kind="label"))
    L, t1, t2, t3, t4, t5, t6 = v(0), v(1), v(2), v(3), v(4), v(5), v(6)
    a(valu("v_mbcnt_lo_u32_b32", L, -1, 0)); a(valu("v_mbcnt_hi_u32_b32", L, -1, L))
    a(valu("v_and_b32", t1, 7, L)); a(valu("v_lshlrev_b32", t1, 4, t1))
    a(valu("v_lshrrev_b32", t2, 3, L)); a(valu("v_lshl_add_u32", t3, t2, 12, t1))
    a(salu("s_lshl_b32", sT0, sW, 15)); a(salu("s_add_u32", sT0, sT0, 128))
    a(valu("v_add_u32", qXd(0), sT0, t3))
    for pp in range(1, 4): a(valu("v_subrev_u32", qXd(pp), 32 * pp, qXd(0)))
    a(valu("v_and_b32", t3, 3, t2)); a(valu("v_lshl_add_u32", t3, t3, 12, t1))
    a(valu("v_lshrrev_b32", t2, 5, L)); a(valu("v_lshl_add_u32", t3, t2, 7, t3))
    a(salu("s_lshl_b32", sT0, sW, 10)); a(salu("s_add_u32", sT0, sT0, 128 * 1024 + 128))
    a(valu("v_add_u32", qX9d, sT0, t3))
    a(valu("v_and_b32", t1, 15, L)); a(valu("v_lshlrev_b32", t1, 4, t1))
    a(valu("v_lshl_add_u32", t3, t2, 15, t1))
    a(valu("v_bfe_u32", t4, L, 4, 1)); a(valu("v_lshl_add_u32", t3, t4, 17, t3))
    a(salu("s_lshl_b32", sT0, sQH, 16)); a(salu("s_lshl_b32", sT1, sHH, 8)); a(salu("s_add_u32", sT0, sT0, sT1))
    a(valu("v_add_u32", qWd(0), sT0, t3))
    for pp in range(1, 4): a(valu("v_add_u32", qWd(pp), (8192 - PS) * pp, qWd(0)))
    first = g_x(0) + g_x9(0) + g_wq(0) + g_wq(1) + g_x(1) + g_wq(2) + g_wq(3) + g_x(2) + g_x9(1) + g_wq(4) + g_wq(5)
    Q = []; a = Q.append
    a(valu("v_lshrrev_b32", t5, 4, L)); a(valu("v_lshl_add_u32", t3, t5, 13, t1))
    a(salu("s_lshl_b32", sT0, sHH, 15)); a(salu("s_lshl_b32", sT1, sQH, 12)); a(salu("s_add_u32", sT0, sT0, sT1))
    a(salu("s_add_u32", sT0, sT0, 128)); a(valu("v_add_u32", vWo0, sT0, t3))
    a(valu("v_lshlrev_b32", vL16, 4, L))
    a(salu("s_lshl_b32", sT0, sHH, 17)); a(salu("s_lshl_b32", sT1, sQH, 13)); a(salu("s_add_u32", sT0, sT0, sT1))
    a(salu("s_add_u32", sT0, sT0, 128)); a(valu("v_add_u32", vKV(0), sT0, vL16))
    for pp in range(1, 4): a(valu("v_subrev_u32", vKV(pp), 32 * pp, vKV(0)))
    a(valu("v_add_u32", qKw(0), sGrp, vL16)); a(valu("v_add_u32", qKw(1), 4 * US, qKw(0)))
    a(valu("v_add_u32", vA8, 8 * US, qKw(0)))
    a(salu("s_xor_b32", sT0, sW, 1)); a(salu("s_mul_i32", sT2, sT0, GRP))
    a(salu("s_add_u32", sT0, sT2, 8 * US)); a(valu("v_add_u32", vB8, sT0, vL16))
    a(salu("s_add_u32", sLMw, sGrp, 8 * US + 4096)); a(salu("s_add_u32", sLMr, sT2, 8 * US + 4096))
    a(valu("v_and_b32", t1, 3, L)); a(valu("v_mul_u32_u24", t1, PS, t1)); a(valu("v_lshl_add_u32", t1, t5, 4, t1))
    a(valu("v_bfe_u32", t3, L, 2, 2)); a(valu("v_lshl_add_u32", t3, t3, 7, t1))
    a(valu("v_add_u32", qX9r, X9, t3))
    a(salu("s_mul_i32", sT0, sQH, 2 * GRP)); a(valu("v_add_u32", qXr(0), sT0, t3))
    a(valu("v_add_u32", qXr(1), 5 * US, qXr(0)))
    a(valu("v_bfe_u32", t3, L, 2, 1)); a(valu("v_mul_u32_u24", t3, US, t3)); a(valu("v_add_u32", t1, t1, t3))
    a(valu("v_bfe_u32", t3, L, 3, 1)); a(valu("v_lshl_add_u32", t1, t3, 8, t1))
    a(salu("s_lshl_b32", sT0, sQH, 7)); a(salu("s_xor_b32", sT1, sT0, 128))
    a(valu("v_add_u32", t3, sT0, t1)); a(valu("v_add_u32", t6, sT1, t1))
    a(valu("v_add_u32", Kr(0, 0), sGrp, t3)); a(valu("v_add_u32", Kr(0, 1), sGrp, t6))
    a(valu("v_add_u32", Kr(1, 0), sT2, t3)); a(valu("v_add_u32", Kr(1, 1), sT2, t6))
    a(valu("v_bfe_u32", t1, L, 2, 2)); a(valu("v_mul_u32_u24", t1, PS, t1)); a(valu("v_lshl_add_u32", t1, t2, 8, t1))
    a(valu("v_and_b32", t3, 3, L)); a(valu("v_lshl_add_u32", t3, t3, 3, t1))
    a(valu("v_mul_u32_u24", t6, US, t4)); a(valu("v_add_u32", t3, t3, t6)); a(valu("v_add_u32", t3, 4 * US, t3))
    a(valu("v_add_u32", t6, sT1, t3)); a(valu("v_add_u32", t3, sT0, t3))
    a(valu("v_add_u32", Vr(0, 0), sGrp, t3)); a(valu("v_add_u32", Vr(0, 1), sGrp, t6))
    a(valu("v_add_u32", Vr(1, 0), sT2, t3)); a(valu("v_add_u32", Vr(1, 1), sT2, t6))
    a(valu("v_mul_u32_u24", t6, GRP, t4)); a(valu("v_add_u32", t1, t1, t6))
    a(valu("v_and_b32", t3, 1, L)); a(valu("v_lshl_add_u32", t1, t3, 4, t1))
    a(valu("v_bfe_u32", t3, L, 1, 1)); a(valu("v_lshl_add_u32", t1, t3, 3, t1))
    a(salu("s_lshl_b32", sT2, sW, 6)); a(valu("v_add_u32", vWpat, sT2, t1))
    a(salu("s_mul_i32", sT2, sHH, 2 * GRP)); a(salu("s_add_u32", sT2, sT2, US)); a(valu("v_add_u32", t1, sT2, t1))
    a(valu("v_add_u32", qWr(0, 0), sT0, t1)); a(valu("v_add_u32", qWr(0, 1), sT1, t1))
    a(valu("v_add_u32", qWr(1, 0), 4 * US, qWr(0, 0))); a(valu("v_add_u32", qWr(1, 1), 4 * US, qWr(0, 1)))
    a(salu("s_mul_i32", sT2, sQH, 4 * US)); a(salu("s_lshl_b32", sOw0, sHH, 12)); a(salu("s_add_u32", sT2, sT2, sOw0))
    a(salu("s_lshl_b32", sT0, sT0, 4)); a(salu("s_lshl_b32", sT1, sT1, 4))
    a(salu("s_add_u32", sOw0, sT2, sT0)); a(salu("s_add_u32", sOw1, sT2, sT1))
    a(valu("v_mov_b32", t1, "0x3f803f80"))
    for r in range(4): a(valu("v_accvgpr_write_b32", (ONES[r], "ones"), t1))
    return P, first, Q

def build_main(o):
    P, first, Q = prologue(o)
    sc = Sched()
    F = sc.f
    nstamp = [1]
    def stamp(g, after=()):
        if o.stamps:
            n = nstamp[0]; nstamp[0] += 1
            F(raw(f"s_memrealtime s[{64+2*n}:{65+2*n}]"), g, g, after=after)
    for i in first + Q: F(i, -1, -1, q="dma")
    k0, fu, lu, lub9, blk_last = {}, {}, {}, {}, {}
    for i in range(16):
        k0[i] = sc.n
        if i < 15: order = [(f, b) for f in range(8) for b in range(5) if b < 4 or f < 4]
        else: order = [(f, 4) for f in range(4)] + [(f, b) for b in range(4) for f in range(8)]
        for f, b in order:
            d = ACC(b, f) if b < 4 else A9(f)
            bb = (Bq(i, b), f"x{i}.{b}") if b < 4 else (B9(i), f"x{i}.4")
            n = sc.m(mfma((d, f"q{i}.{b}.{f}"), (Aq(f), f"w{i}.{f}"), bb, 0 if i == 0 else (d, f"q{i-1}.{b}.{f}")))
            fu.setdefault((i, f), n); lu[(i, f)] = n
            if b == 4: lub9[i] = n
            blk_last[(b, f)] = n
    k0[16] = sc.n
    def rdA(i, f):
        u = WQU[i % 6]; win = 0 if u <= 4 else 1
        off = (u - 1 - 4 * win) * US + ((f >> 1) & 1) * 64 + (f & 1) * 32
        return [dsr(TR, (Aq(f).sub(2 * h, 2), f"w{i}.{f}"), qWr(win, f >> 2), off + 512 * h) for h in range(2)]
    def rdB(i, b):
        u = XU[(i >> 1) % 3]; win = 1 if u == 5 else 0
        return dsr(B128, (Bq(i, b), f"x{i}.{b}"), qXr(win), (u - 5 * win) * US + (b >> 1) * GRP + (b & 1) * 512 + (i & 1) * 64)
    def rdB9(i):
        return dsr(B128, (B9(i), f"x{i}.4"), qX9r, ((i >> 2) & 1) * GRP + ((i >> 1) & 1) * 512 + (i & 1) * 64)
    bpre = F(barrier(vm=("x0", "xn0", "wq0")), -1, -1, q="dma")
    stamp(-1, [bpre])
    prev = []
    for x in rdA(0, 0) + [rdB(0, b) for b in range(4)] + [rdB9(0)] + rdA(0, 1) + rdA(0, 2):
        prev.append(F(x, -1, -1, q="lds", after=[bpre]))
    for x in sum((rdA(0, f) for f in range(3, 8)), []) + [rdB(1, b) for b in range(4)] + [rdB9(i) for i in (1, 2, 3)]:
        prev.append(F(x, -1, 5, q="lds", after=[bpre]))
    BQ = {}
    kvw = []
    for i in range(16):
        g = k0[i] + (12 if i == 0 else 8)
        vm = []
        if i < 15:
            vm.append(f"wq{i+1}")
            if i & 1: vm.append(f"x{(i+1)//2}")
            if i % 4 == 3: vm.append(f"xn{(i+1)//4}")
        bq = BQ[i] = F(barrier(vm=vm), g, g, after=prev)
        prev = []
        end = k0[i + 1] + 2
        ops = []
        if i + 6 < 16: ops += g_wq(i + 6)
        if i % 2 == 0 and i // 2 + 3 < 8: ops += g_x(i // 2 + 3)
        if i % 4 == 0 and i // 4 + 2 < 4: ops += g_x9(i // 4 + 2)
        if i == 10: ops += g_kv(1, 0, o) + g_kv(1, 1, o)
        if i == 11: ops += g_kv(1, 2, o)
        if i == 12: ops += g_kv(1, 3, o)
        if i < 8:
            for n in (2 * i, 2 * i + 1):
                kv, m = n >> 3, n & 7
                ops.append(vload((KVst(kv, m), f"st{n}"), vKV(0), (Sk, Sv)[kv], s4096 if m >= 4 else 0, 1024 * (m & 3), o.kvflag))
        for x in ops: F(x, g, g + 16, q="dma", after=[bq])
        parts = {12: [0], 13: [1], 14: [2, 3]}.get(i, [])
        for part in parts:
            for pp in range(4):
                n = 4 * part + pp
                kvw.append(F(dsw("ds_write_b128", qKw(part >> 1), (KVst(n >> 3, n & 7), f"st{n}"), (part & 1) * US + PS * pp),
                             g, k0[i + 1] - 1, q="kvw", after=[bq]))
        if i < 15:
            for f in range(8):
                for x in rdA(i + 1, f):
                    prev.append(F(x, max(lu[(i, f)], g), max(min(fu[(i + 1, f)] - 6, end), lu[(i, f)]), q="ldsA", after=[bq]))
            if i & 1:
                for ii in (i + 1, i + 2):
                    for b in range(4): prev.append(F(rdB(ii, b), g, k0[i + 1] - (8 if ii == i + 1 else 0), q="ldsB", after=[bq]))
            if i % 4 == 3:
                for ii in range(i + 1, i + 5):
                    prev.append(F(rdB9(ii), max(g, lub9[i]) if ii == i + 4 else g, k0[i + 1] - 4, q="ldsB9", after=[bq]))
    stamp(k0[15])
    NU = 72
    blk = lambda U: (0, 1, 2, 3, 4, 0, 1, 2, 3)[U % 9]
    isY = lambda U: 1 if U % 9 >= 5 else 0
    pre0, preL, qk0, qkL, pv0, pvL, slot = {}, {}, {}, {}, {}, {}, {}
    def emit_pre(b):
        pre0[b] = sc.n
        for t in range(4):
            preL[b] = sc.m(mfma((NM(b), f"pm{b}"), (KF(0, 0, t), "k0.0"), (QF(b, t), f"Q{b}"), 0 if t == 0 else (NM(b), f"pm{b}")))
    def emit_qk(U):
        qk0[U] = sc.n; b, y, e = blk(U), isY(U), U // 9
        for t in range(4):
            for h in range(2):
                d = SB(U & 1).sub(4 * h, 4)
                qkL[U] = sc.m(mfma((d, f"s{U}"), (KF(y, h, t), f"k{e}.{y}"), (QF(b, t), f"Q{b}"),
                                   (NM(b), f"nm{b}") if t == 0 else (d, f"s{U}")))
    def emit_pv(U):
        pv0[U] = sc.n; b, y, e = blk(U), isY(U), U // 9
        first_ = U < 5
        pU = U - (9 if b == 4 else (5 if y else 4))
        sc.m(mfma((LS(b), f"l{U}"), (ONES, "ones"), (PB(U & 1), f"p{U}"), 0 if first_ else (LS(b), f"l{pU}")))
        for d in range(8):
            acc = ACC(b, d) if b < 4 else O9(d)
            pvL[U] = sc.m(mfma((acc, f"o{U}"), (VF(y, d), f"v{e}.{y}"), (PB(U & 1), f"p{U}"), 0 if first_ else (acc, f"o{pU}")))
    emit_pre(0); emit_pre(1); emit_qk(0)
    for U in range(NU + 1):
        slot[U] = sc.n
        if U + 2 < 5: emit_pre(U + 2)
        if U + 1 < NU: emit_qk(U + 1)
        if U >= 1: emit_pv(U - 1)
    attn_end = sc.n - 1
    ou0, ouL = {}, {}
    for p in range(4):
        for qb in range(9):
            n = 9 * p + qb; ou0[n] = sc.n
            for ks in range(8):
                for u in range(2):
                    d = SB(n & 1).sub(4 * u, 4)
                    ouL[n] = sc.m(mfma((d, f"r{n}"), (Ao(p, ks, u), f"wo{p}"), (Bo(qb, ks), f"of{qb}"), 0 if ks == 0 else (d, f"r{n}")))
    last = sc.n - 1
    def pack_q(src, dst, tsrc, tdst, lo, hi, q):
        ops = []
        for m in range(4): ops.append(valu("v_pk_mul_f32", (src.sub(2 * m, 2), "t"), (src.sub(2 * m, 2), tsrc[m >> 1]), sC))
        for m in range(4): ops.append(valu("v_cvt_pk_bf16_f32", (dst[m], "t2"), (src[2 * m], "t"), (src[2 * m + 1], "t")))
        ops.append(swap("v_permlane32_swap_b32", (dst[0], "t2"), (dst[2], "t2"), tdst, tdst))
        ops.append(swap("v_permlane32_swap_b32", (dst[1], "t2"), (dst[3], "t2"), tdst, tdst))
        return [F(x, lo, hi, q=q) for x in ops]
    q9w = []
    for t in range(2):
        l = pack_q(SB(t), PB(t), [f"q15.4.{2*t}", f"q15.4.{2*t+1}"], "q9p", blk_last[(4, 2 * t + 1)] + 3, pre0[0] - 2, "qe")
        q9w.append(F(dsw("ds_write_b128", vA8, (PB(t), "q9p"), 1024 * t), k0[15] + 8, qk0[0] - 1, q="q9w", after=[l[-1], BQ[15]]))
    for b in range(4):
        for t in range(4):
            pack_q(V(32 * b + 8 * t, 8), QF(b, t), [f"q15.{b}.{2*t}", f"q15.{b}.{2*t+1}"], f"Q{b}",
                   blk_last[(b, 2 * t + 1)] + 3, pre0[b] - 1 + t, "qe")
    for b in range(5):
        n = NM(b); pm = f"pm{b}"; nm = f"nm{b}"
        ops = [valu("v_accvgpr_read_b32", vT1, SAV(b)),
               valu("v_max3_f32", n[0], (n[0], pm), (n[1], pm), vT1), valu("v_max3_f32", n[0], n[0], (n[2], pm), (n[3], pm)),
               valu("v_mov_b32", n[1], n[0]), swap("v_permlane32_swap_b32", n[0], n[1]), valu("v_max_f32", n[0], n[0], n[1]),
               valu("v_mov_b32", n[1], n[0]), swap("v_permlane16_swap_b32", n[0], n[1]),
               I(f"v_min_f32_e64 {n[0]}, -{n[0]}, -{n[1]}", "valu", rd=[n[0], n[1]], wr=[(n[0], nm)])]
        ops += [valu("v_mov_b32", (n[r], nm), (n[0], nm)) for r in (1, 2, 3)]
        for x in ops: F(x, min(preL[b] + 3, qk0[b] - 1), qk0[b] - 1, q="nm")
    for U in range(NU):
        s_, p_ = SB(U & 1), PB(U & 1)
        hi = (qk0[U + 2] if U + 2 < NU else pv0[U]) - 1
        hi = min(hi, pv0[U] - 1)
        lo = min(qkL[U] + 3, hi)
        loc = max(lo, pvL[U - 2]) if U >= 2 else lo
        ex = [F(trans("v_exp_f32", (s_[j], f"e{U}"), (s_[j], f"s{U}")), lo, hi - (1 if hi > lo else 0), q="exp") for j in range(8)]
        for m in range(4):
            F(valu("v_cvt_pk_bf16_f32", (p_[m], f"p{U}"), (s_[2 * m], f"e{U}"), (s_[2 * m + 1], f"e{U}")),
              loc, hi, q="cvt", after=[ex[min(2 * m + 2, 7)]] + (q9w if U < 2 else []))
    def rdK(e, y):
        return [dsr(B128, (KF(y, h, t), f"k{e}.{y}"), Kr(y, t >> 1), (e & 1) * 2 * US + 512 * h + 64 * (t & 1))
                for t in range(4) for h in range(2)]
    def rdV(e, y):
        return [dsr(TR, (VF(y, d).sub(2 * h, 2), f"v{e}.{y}"), Vr(y, d >> 2), (e & 1) * 2 * US + 512 * h + 32 * (d & 3))
                for d in range(8) for h in range(2)]
    BB = {}
    for e in range(8):
        U0 = 9 * e
        rd = []
        if e == 0:
            for x in rdK(0, 0): rd.append(F(x, k0[14], pre0[0] - 6, q="ldsK", after=[kvw[7]]))
            for x in rdV(0, 0): rd.append(F(x, k0[15], pv0[0] - 6, q="ldsV", after=[kvw[15]]))
            g = slot[0] - 1
            ba = F(barrier(), g, g, after=q9w + kvw)
            for t in range(4):
                F(dsr(B128, (QF(4, t), "Q4"), vA8 if t < 2 else vB8, 1024 * (t & 1)), g, pre0[4] - 6, q="ldsK", after=[ba])
        else:
            g = slot[U0 - 2] - 1
            wk = F(waitvm(f"k{e}"), g, g + 4, q="ldsK")
            for x in rdK(e, 0): rd.append(F(x, g, slot[U0 - 1] - 6, q="ldsK"))
            g = slot[U0 - 1] - 1
            ba = F(barrier(vm=[f"v{e}"], lgkm=False), g, g, after=[wk])
            for x in rdV(e, 0): rd.append(F(x, g, pv0[U0] - 6, q="ldsV", after=[ba]))
        gb = slot[U0 + 3] - 1 + (8 if e == 0 else 0)
        for x in rdK(e, 1): rd.append(F(x, g, gb - 5, q="ldsK", after=[ba]))
        for x in rdV(e, 1): rd.append(F(x, max(g, pvL[U0 - 1]) if e else g, gb - 5, q="ldsV", after=[ba]))
        bb = BB[e] = F(barrier(vm=["wo0"] if e == 7 else []), gb, gb, after=rd)
        if e in (0, 3, 6, 7): stamp(gb, [bb])
        ops = []
        if e < 6:
            for part in range(4): ops += g_kv(e + 2, part, o)
        if e == 6:
            ops += [valu("v_mov_b32", vKV(0), vWo0)] + [valu("v_subrev_u32", vKV(pp), 32 * pp, vWo0) for pp in (1, 2, 3)]
            for part in range(4): ops += g_wo(0, part)
        for x in ops: F(x, gb, slot[U0 + 7] - 3, q="dma", after=[bb])
    U0 = 63
    vW = lambda win: Kr(0, win)
    vOw = lambda hf: Vr(0, hf)
    vBr = lambda win: Kr(1, win)
    vLMw, vLMr = Vr(1, 0), Vr(1, 1)
    gb = BB[7].lo
    adr = [valu("v_mov_b32", vW(0), vWpat), valu("v_add_u32", vW(1), 4 * US, vWpat),
           valu("v_bfe_u32", vLMr, vL16, 1, 7), valu("v_add_u32", vLMw, sLMw, vLMr), valu("v_add_u32", vLMr, sLMr, vLMr),
           valu("v_add_u32", vOw(0), sOw0, vL16), valu("v_add_u32", vOw(1), sOw1, vL16),
           valu("v_add_u32", vBr(0), 2 * US, vL16), valu("v_add_u32", vBr(1), 6 * US, vL16)]
    adr = [F(x, gb, gb + 12, q="adr", after=[BB[7]]) for x in adr]
    def rdAo(p):
        ops = []
        for ks in range(8):
            unit = KVU(p & 1)[ks >> 1]; win = unit >> 2
            for u in range(2):
                for h in range(2):
                    ops.append(dsr(TR, (Ao(p, ks, u).sub(2 * h, 2), f"wo{p}"), vW(win),
                                   (unit & 3) * US + (ks & 1) * 2 * GRP + 512 * h + 32 * u))
        return ops
    gc = slot[U0 + 8] - 1
    rd = []
    for n, x in enumerate(rdAo(0)):
        rd.append(F(x, qkL[U0 + 4] if n < 16 else pvL[U0 + 4], gc - 5, q="ldsK", after=[adr[-1]]))
    g = pvL[U0 + 4] + 3
    t9 = f"o{U0+4}"
    n9 = NM(4)
    raww = [valu("v_accvgpr_read_b32", vT0, (LS(4)[0], f"l{U0+4}")), valu("v_mov_b32", vT1, (n9[0], "nm4")),
            valu("v_mov_b32", n9[1], vT0), dsw("ds_write_b64", vLMw, V(254, 2), 0)]
    raww += [dsw("ds_write_b128", vA8, (O9(4 + d), t9), 1024 * d) for d in range(4)]
    raww = [F(x, g, pvL[U0 + 5], q="ep", after=[adr[-1]]) for x in raww]
    bc = F(barrier(), gc, gc, after=rd + raww)
    ops = []
    for part in range(4): ops += g_wo(1, part)
    wo1_units = KVU(0)
    ops = []
    for part in range(4): ops += group(wo1_units[part] * US, sGrp, vKV, Swo, part * 65536 + 256, "", "wo1")
    for x in ops: F(x, gc, attn_end, q="dma", after=[bc])
    ow = []
    def norm_block(b):
        U = U0 + 5 + b; lo = min(pvL[U] + 3, attn_end); a32 = V(32 * b, 32)
        ops = [valu("v_accvgpr_read_b32", vT1, (LS(b)[0], f"l{U}")), trans("v_rcp_f32", vT0, vT1),
               valu("v_mov_b32", vTs, vT1) if b == 0 else valu("v_add_f32", vTs, vTs, vT1)]
        for k in range(4):
            for m in range(4):
                r = a32.sub(8 * k + 2 * m, 2)
                ops.append(valu("v_pk_mul_f32", (r, "n"), (r, f"o{U}"), V(254, 2), extra="op_sel_hi:[1,0]"))
            for m in range(4):
                ops.append(valu("v_cvt_pk_bf16_f32", (a32[4 * k + m], "of"), (a32[8 * k + 2 * m], "n"), (a32[8 * k + 2 * m + 1], "n")))
            ops.append(dsw("ds_write_b128", vOw(k >> 1), (a32.sub(4 * k, 4), "of"), (2 + (b >> 1)) * US + (b & 1) * 8192 + (k & 1) * 1024))
        for x in ops: ow.append(F(x, lo, attn_end, q="ep"))
    norm_block(0); norm_block(1)
    rcv = V(216, 16); own = SB(U0 + 7 & 1)
    mr = [dsr("ds_read_b64", n9.sub(2, 2), vLMr, 0)] + [dsr(B128, (rcv.sub(4 * d, 4), "rcv"), vB8, 1024 * d) for d in range(4)]
    mr = [F(x, gc, gc + 4, q="ldsV", after=[bc]) for x in mr]
    ops = [valu("v_sub_f32", n9[3], (n9[0], "nm4"), n9[3]), trans("v_exp_f32", n9[3], n9[3]),
           valu("v_fma_f32", n9[1], n9[2], n9[3], n9[1]), trans("v_rcp_f32", vT0, n9[1]),
           valu("v_add_f32", vTs, vTs, n9[1]), salu("s_lshl_b32", sT0, sW, 11), valu("v_add_u32", vLMw, sT0, vBr(1))]
    for k in range(2):
        for m in range(8): ops.append(valu("v_accvgpr_read_b32", (own[m], "own"), (A(128 + 8 * k + m), t9)))
        for m in range(8): ops.append(valu("v_fma_f32", (own[m], "mg"), (rcv[8 * k + m], "rcv"), n9[3], (own[m], "own")))
        for m in range(4): ops.append(valu("v_pk_mul_f32", (own.sub(2 * m, 2), "n"), (own.sub(2 * m, 2), "mg"), V(254, 2), extra="op_sel_hi:[1,0]"))
        for m in range(4): ops.append(valu("v_cvt_pk_bf16_f32", (rcv[8 * k + m], "of"), (own[2 * m], "n"), (own[2 * m + 1], "n")))
        ops.append(dsw("ds_write_b128", vLMw, (rcv.sub(8 * k, 4), "of"), 3 * US + 1024 * k))
    for x in ops: ow.append(F(x, pv0[U0 + 7], attn_end, q="ep", after=mr))
    norm_block(2); norm_block(3)
    ops = [salu("s_lshl_b32", sT0, sW, 2), valu("v_add_u32", vLMr, sT0, vBr(1)), dsw("ds_write_b32", vLMr, vTs, FLAG - 6 * US)]
    for x in ops: ow.append(F(x, attn_end, attn_end, q="ep"))
    b1 = F(barrier(), attn_end, attn_end, q="dma", after=ow)
    stamp(attn_end, [b1])
    fl = V(216, 4)
    def rdBo(qb, ks):
        if qb < 8: return dsr(B128, (Bo(qb, ks), f"of{qb}"), vBr(qb >> 2), ((qb >> 1) & 1) * US + (qb & 1) * 8192 + 1024 * ks)
        return dsr(B128, (Bo(qb, ks), f"of{qb}"), vBr(1), 3 * US + 1024 * ks)
    gd = {p: ou0[9 * p + 5] - 1 for p in range(3)}
    rd = []
    for ks in range(8): rd.append(F(rdBo(0, ks), attn_end, attn_end, q="ldsB", after=[b1]))
    fr = F(dsr(B128, fl, vBr(1), FLAG - 6 * US), attn_end, attn_end, q="ldsB")
    chk = [valu("v_add_f32", fl[0], fl[0], fl[1]), valu("v_add_f32", fl[2], fl[2], fl[3]), valu("v_add_f32", fl[0], fl[0], fl[2]),
           raw(f"v_cmp_nge_f32 vcc, {hex(THR)}, {fl[0]}", rd=[fl[0]], kind="valu"),
           raw("s_cmp_eq_u32 s54, 0"), raw("s_cselect_b64 vcc, vcc, 0"), raw("s_cbranch_vccnz Lslow"),
           salu("s_lshl_b32", sT0, sW, 10), valu("v_add_u32", vA8, sT0, vL16)]
    chk = [F(x, attn_end + 6, attn_end + 12, q="dma", after=[fr]) for x in chk]
    for qb in range(1, 9):
        for ks in range(8):
            rd.append(F(rdBo(qb, ks), attn_end, min(ou0[qb] - 6 + 2 * ks, gd[0] - 5), q="ldsB", after=[chk[6]] if qb >= 4 else []))
    wo_units = {2: KVU(1), 3: KVU(0)}
    def rdAo2(p, units):
        ops = []
        for ks in range(8):
            unit = units[ks >> 1]; win = unit >> 2
            for u in range(2):
                for h in range(2):
                    ops.append(dsr(TR, (Ao(p, ks, u).sub(2 * h, 2), f"wo{p}"), vW(win),
                                   (unit & 3) * US + (ks & 1) * 2 * GRP + 512 * h + 32 * u))
        return ops
    allu = {1: wo1_units, **wo_units}
    for p in range(3):
        bd = F(barrier(vm=[f"wo{p+1}"]), gd[p], gd[p], after=rd)
        if p + 2 < 4:
            ops = []
            for part in range(4): ops += group(allu[p + 2][part] * US, sGrp, vKV, Swo, part * 65536 + 256 * (p + 2), "", f"wo{p+2}")
            for x in ops: F(x, gd[p], gd[p] + 30, q="dma", after=[bd])
        rd = [F(x, gd[p], ou0[9 * p + 9] - 6, q="ldsK", after=[bd]) for x in rdAo2(p + 1, allu[p + 1])]
    for n in range(36):
        s_, p_ = SB(n & 1), PB(n & 1)
        lo = min(ouL[n] + 3, last); hi = min(lo + 8, last)
        ops = [valu("v_cvt_pk_bf16_f32", (p_[m], f"rp{n}"), (s_[2 * m], f"r{n}"), (s_[2 * m + 1], f"r{n}")) for m in range(4)]
        ops += [salu("s_mov_b32", sSt, n * 4096), vstore((p_, f"rp{n}"), vA8, Sws, sSt, 0, o.stflag)]
        for x in ops: F(x, lo, hi, q="st", after=[chk[-1]])
    seq = sc.run()
    seq = P + seq
    check_tags(seq)
    seq, nops = pad_hazards(seq)
    sys.stderr.write(f"mfma {len(sc.bb)} instrs {len(seq)} over {sc.stats['over']} idle {sc.stats['idle']} waits {sc.stats['waits']} nop-states {nops}\n")
    marks = dict(q_end=k0[16], attn_end=attn_end)
    return seq, nstamp[0], marks

def tail_and_slow(o, nst):
    T = []; a = T.append
    if o.stamps:
        a(f"s_memrealtime s[{64+2*nst}:{65+2*nst}]"); a("s_waitcnt vmcnt(0)")
        a(f"s_memrealtime s[{66+2*nst}:{67+2*nst}]"); a("s_waitcnt lgkmcnt(0)")
        a("s_cmp_lg_u32 s3, 0"); a("s_cbranch_scc1 Lend")
        a("s_mov_b32 s40, s18"); a("s_mov_b32 s41, s19"); a("s_mov_b32 s42, 0x10000000"); a("s_mov_b32 s43, 0x20000")
        a(f"s_lshl_b32 s52, s2, 6"); a(f"s_add_u32 s52, s52, {STAMP_OFF}"); a("v_mov_b32 v1, s52")
        a("s_mov_b64 exec, 1")
        for n in range(nst + 2):
            a(f"v_mov_b32 v2, s{64+2*n}"); a(f"buffer_store_dword v2, v1, s[40:43], 0 offen offset:{4*n}")
    a("Lend:"); a("s_endpgm")
    a("Lslow:"); a("s_waitcnt vmcnt(0) lgkmcnt(0)"); a("s_nop 7"); a("s_barrier")
    a("v_mbcnt_lo_u32_b32 v0, -1, 0"); a("v_mbcnt_hi_u32_b32 v0, -1, v0")
    a("v_and_b32 v1, 15, v0"); a("v_lshlrev_b32 v1, 8, v1"); a("v_lshrrev_b32 v2, 4, v0"); a("v_lshl_add_u32 v1, v2, 4, v1")
    a("s_lshl_b32 s52, s48, 17"); a("s_add_u32 s52, s52, 128"); a("s_lshl_b32 s53, s49, 7"); a("s_add_u32 s62, s52, s53")
    a("v_add_u32 v2, s62, v1"); a("s_xor_b32 s53, s53, 128"); a("s_add_u32 s62, s52, s53"); a("v_add_u32 v3, s62, v1")
    for b in range(5): a(f"v_mov_b32 v{8+b}, 0xff800000")
    a("s_mov_b32 s45, 0"); a("Lslow_loop:")
    for t in range(4): a(f"buffer_load_dwordx4 v[{16+4*t}:{19+4*t}], v{2+(t>>1)}, s[28:31], s45 offen offset:{64*(t&1)}")
    a("s_waitcnt vmcnt(0)")
    for b in range(5):
        for t in range(4):
            a(f"v_mfma_f32_16x16x32_bf16 {NM(b)}, v[{16+4*t}:{19+4*t}], {QF(b,t)}, {0 if t == 0 else NM(b)}")
    a("s_nop 7"); a("s_nop 1")
    for b in range(5):
        n = NM(b); a(f"v_max3_f32 v{8+b}, v{8+b}, {n[0]}, {n[1]}"); a(f"v_max3_f32 v{8+b}, v{8+b}, {n[2]}, {n[3]}")
    a("s_add_u32 s45, s45, 4096"); a("s_cmp_lt_u32 s45, 131072"); a("s_cbranch_scc1 Lslow_loop")
    for b in range(5): a(f"v_accvgpr_write_b32 {SAV(b)}, v{8+b}")
    a("s_mov_b32 s54, 1"); a("s_branch Lrestart")
    return T

def reduce_kernel(o):
    T = []; a = T.append
    a("s_cmp_ge_u32 s2, 576"); a("s_cbranch_scc1 Lrend")
    if o.stamps: a("s_memrealtime s[28:29]")
    a("s_load_dwordx2 s[4:5], s[0:1], 56"); a("s_load_dwordx2 s[8:9], s[0:1], 40")
    a(f"s_mul_hi_u32 s12, s2, {(1 << 32) // 36 + 1}"); a("s_mul_i32 s13, s12, 36"); a("s_sub_u32 s13, s2, s13")
    a(f"s_mul_hi_u32 s14, s13, {(1 << 32) // 9 + 1}"); a("s_mul_i32 s15, s14, 9"); a("s_sub_u32 s15, s13, s15")
    a(f"s_mul_i32 s16, s12, {16 * PART}"); a("s_lshl_b32 s17, s13, 12"); a("s_add_u32 s16, s16, s17")
    a("v_lshlrev_b32 v1, 4, v0")
    a(f"s_mov_b32 s6, {256 * PART}"); a("s_mov_b32 s7, 0x20000"); a(f"s_mov_b32 s10, {16 * PART}"); a("s_mov_b32 s11, 0x20000")
    a("s_waitcnt lgkmcnt(0)")
    for j in range(16):
        a(f"buffer_load_dwordx4 v[{16+4*j}:{19+4*j}], v1, s[4:7], s16 offen")
        if j < 15: a(f"s_add_u32 s16, s16, {PART}")
    a("s_mul_i32 s18, s12, 144"); a("s_lshl_b32 s19, s15, 4"); a("s_add_u32 s18, s18, s19"); a("s_lshl_b32 s18, s18, 10")
    a("s_lshl_b32 s19, s14, 8"); a("s_add_u32 s18, s18, s19")
    a("v_and_b32 v2, 15, v0"); a("v_lshlrev_b32 v2, 10, v2"); a("v_and_b32 v3, 0xf0, v0"); a("v_add_u32 v2, v2, v3")
    a("s_mov_b32 s20, 0xffff0000")
    for j in range(16):
        a(f"s_waitcnt vmcnt({15-j})")
        for m in range(4):
            r = 16 + 4 * j + m
            if j == 0:
                a(f"v_lshlrev_b32 v{4+2*m}, 16, v{r}"); a(f"v_and_b32 v{5+2*m}, s20, v{r}")
            else:
                a(f"v_lshlrev_b32 v12, 16, v{r}"); a(f"v_and_b32 v13, s20, v{r}")
                a(f"v_pk_add_f32 v[{4+2*m}:{5+2*m}], v[{4+2*m}:{5+2*m}], v[12:13]")
    for m in range(4): a(f"v_cvt_pk_bf16_f32 v{12+m}, v{4+2*m}, v{5+2*m}")
    a("s_nop 1"); a("v_permlane32_swap_b32 v12, v14"); a("v_permlane32_swap_b32 v13, v15")
    a("buffer_store_dwordx4 v[12:15], v2, s[8:11], s18 offen")
    if o.stamps:
        a("s_waitcnt vmcnt(0)"); a("s_memrealtime s[30:31]"); a("s_waitcnt lgkmcnt(0)")
        a("s_mov_b32 s6, 0x10000000"); a("s_lshl_b32 s16, s2, 3"); a(f"s_add_u32 s16, s16, {STAMP_OFF + 65536}")
        a("v_mov_b32 v1, s16"); a("v_mov_b32 v2, s28"); a("v_mov_b32 v3, s30")
        a("v_cmp_eq_u32 vcc, 0, v0"); a("s_and_saveexec_b64 s[22:23], vcc"); a("s_cbranch_execz Lrend")
        a("buffer_store_dwordx2 v[2:3], v1, s[4:7], 0 offen")
    a("Lrend:"); a("s_endpgm")
    return T

KD = """.amdhsa_kernel {name}
  .amdhsa_next_free_vgpr {vg}
  .amdhsa_next_free_sgpr {sg}
  .amdhsa_accum_offset {acc}
  .amdhsa_group_segment_fixed_size 0
  .amdhsa_kernarg_size 64
  .amdhsa_user_sgpr_count 2
  .amdhsa_user_sgpr_kernarg_segment_ptr 1
  .amdhsa_system_sgpr_workgroup_id_x 1
  .amdhsa_float_denorm_mode_32 3
.end_amdhsa_kernel"""

def generate(o):
    hdr = [l.rstrip("\n") for l in open(f"cdna_kernels/{NAME}.s.ref") if l.startswith(";") and "launch" not in l and "grid=" not in l]
    seq, nst, marks = build_main(o)
    L = hdr + [f"; @launch kernel={NAME}_kernel grid=(256,1,1) block=(256,1,1) lds={LDSB}",
               "; @launch kernel=mha_reduce_kernel grid=(576,1,1) block=(256,1,1) lds=0",
               '.amdgcn_target "amdgcn-amd-amdhsa--gfx950"', ".text",
               f".globl {NAME}_kernel", ".p2align 8", f".type {NAME}_kernel,@function", f"{NAME}_kernel:"]
    L += [i.text for i in seq] + tail_and_slow(o, nst)
    L += [".globl mha_reduce_kernel", ".p2align 8", ".type mha_reduce_kernel,@function", "mha_reduce_kernel:"] + reduce_kernel(o)
    L += ['.section .rodata,"a"', ".p2align 6", KD.format(name=f"{NAME}_kernel", vg=512, sg=102, acc=256),
          ".p2align 6", KD.format(name="mha_reduce_kernel", vg=80, sg=32, acc=80)]
    return "\n".join(L) + "\n"

if __name__ == "__main__":
    o = Opt()
    out = sys.argv[1]
    for kv in sys.argv[2:]:
        k, v_ = kv.split("=", 1)
        setattr(o, k, {"1": True, "0": False}.get(v_, v_) if k in ("stamps",) else v_)
    open(out, "w").write(generate(o))
```

```python
import sys, math, struct
from dsl import *

NAME = "standalone__mha_block_cached__near_ridge"
US, GRP, PS = 17024, 4224, 1056
X9 = 9 * US
FLAG = X9 + 8448
LDSB = 163840
PART = 147456
STAMP_OFF = 0x4000000
def fbits(x): return struct.unpack("<I", struct.pack("<f", x))[0]
CSC = fbits(math.log2(math.e) / math.sqrt(128.0))
THR = fbits(2.0 ** 40)

Sx, Swq, Sk, Sv, Swo, Sws = S(20, 4), S(24, 4), S(28, 4), S(32, 4), S(36, 4), S(40, 4)
sW, sGrp, sOff, sC, sHH, sQH, sB, sJ = S(3), S(44), S(45), S(46, 2), S(48), S(49), S(50), S(51)
sT0, sT1, sMode, sX9, s4096, sOw0, sOw1, sLMw, sLMr, sSt, sT2 = S(52), S(53), S(54), S(55), S(56), S(57), S(58), S(59), S(60), S(61), S(62)
ACC = lambda b, f: V(32 * b + 4 * f, 4)
QF = lambda b, t: (V(128 + 16 * b + 4 * t, 4) if b < 4 else A(180 + 4 * t, 4))
SB = lambda k: V(192 + 8 * k, 8)
PB = lambda k: V(208 + 4 * k, 4)
NM = lambda b: V(216 + 4 * b, 4)
Kr = lambda y, hf: V(236 + 2 * y + hf)
Vr = lambda y, hf: V(240 + 2 * y + hf)
vKV = lambda pp: V(244 + pp)
vL16, vWpat, vWo0, vA8, vB8, vTs, vT0, vT1 = V(248), V(249), V(250), V(251), V(252), V(253), V(254), V(255)
qWr = lambda win, hf: V(216 + 2 * win + hf)
qXr = lambda win: V(220 + win)
qX9r = V(222)
qKw = lambda win: V(223 + win)
qWd = lambda pp: V(225 + pp)
qXd = lambda pp: V(229 + pp)
qX9d = V(233)
KF = lambda y, h, t: A(32 * y + 4 * (2 * t + h), 4)
VF = lambda y, d: A(64 + 32 * y + 4 * d, 4)
O9 = lambda d: A(128 + 4 * d, 4)
LS = lambda b: A(160 + 4 * b, 4)
ONES = A(196, 4)
SAV = lambda b: A(248 + b)
Aq = lambda f: A(32 + 4 * f, 4)
Bq = lambda i, b: A((128, 144, 200, 216)[i % 4] + 4 * b, 4)
B9 = lambda i: A(232 + 4 * (i % 4), 4)
A9 = lambda f: V(192 + 4 * f, 4)
KVst = lambda kv, n: A(64 + 32 * kv + 4 * n, 4)
WQU = {4: 2, 5: 6, 0: 7, 1: 1, 2: 4, 3: 8}
XU = {2: 3, 0: 0, 1: 5}
KVU = lambda slot: (2 * slot, 2 * slot + 1, 4 + 2 * slot, 5 + 2 * slot)
def Ao(p, ks, u):
    n = 2 * ks + u
    return A((0 if n < 8 else 64) + 32 * (p & 1) + 4 * (n & 7), 4)
def Bo(qb, ks):
    if qb < 4: return V(32 * qb + 4 * ks, 4)
    if qb < 8: return A(128 + 32 * (qb - 4) + 4 * ks, 4)
    return V(128 + 4 * ks, 4)
TR, B128 = "ds_read_b64_tr_b16", "ds_read_b128"

class Opt:
    stamps = False
    kvflag = "nt"
    stflag = "sc1"
    dbg = False

def group(unit_off, base, voff, srd, soff, flags, tag):
    ops = [salu("s_add_u32", "m0", base, unit_off), salu("s_mov_b32", sOff, soff)]
    ops += [dma(voff(pp), srd, sOff, PS * pp, flags, tag) for pp in range(4)]
    return ops
def g_wq(i): return group(WQU[i % 6] * US, sGrp, qWd, Swq, i * 262144, "", f"wq{i}")
def g_x(I_): return group(XU[I_ % 3] * US, sGrp, qXd, Sx, I_ * 128, "", f"x{I_}")
def g_x9(n): return [salu("s_add_u32", "m0", sX9, X9 + (n & 1) * GRP), salu("s_mov_b32", sOff, n * 256),
                     dma(qX9d, Sx, sOff, 0, "", f"xn{n}")]
def g_kv(e, part, o):
    kv, half = part >> 1, part & 1
    return group(KVU(e & 1)[part] * US, sGrp, vKV, (Sk, Sv)[kv], e * 16384 + half * 4096, o.kvflag, f"{'kv'[kv]}{e}")
def g_wo(p, part): return group(KVU(p & 1)[part] * US, sGrp, vKV, Swo, part * 65536 + 256 * p, "", f"wo{p}")

def prologue(o):
    P = []; a = P.append
    v = lambda n: V(n)
    a(raw("s_cmp_ge_u32 s2, 256")); a(raw("s_cbranch_scc1 Lend"))
    if o.stamps: a(raw("s_memrealtime s[64:65]"))
    a(raw("s_load_dwordx16 s[4:19], s[0:1], 0"))
    a(valu("v_lshrrev_b32", v(1), 6, v(0)))
    a(valu("v_mov_b32", v(2), "0xff800000"))
    a(valu("v_readfirstlane_b32", sW, v(1)))
    for b in range(5): a(valu("v_accvgpr_write_b32", SAV(b), v(2)))
    a(salu("s_and_b32", sT0, S(2), 1)); a(salu("s_lshl_b32", sT0, sT0, 3))
    a(salu("s_bfe_u32", sT1, S(2), (3 << 16) | 3)); a(salu("s_add_u32", sB, sT0, sT1))
    a(salu("s_bfe_u32", sT0, S(2), (2 << 16) | 1)); a(salu("s_lshl_b32", sT0, sT0, 2))
    a(salu("s_lshr_b32", sT1, S(2), 6)); a(salu("s_add_u32", sJ, sT0, sT1))
    a(salu("s_lshr_b32", sHH, sW, 1)); a(salu("s_and_b32", sQH, sW, 1))
    a(salu("s_mul_i32", sGrp, sW, GRP)); a(salu("s_mul_i32", sX9, sW, PS))
    a(salu("s_mov_b32", sMode, 0)); a(salu("s_mov_b32", s4096, 4096))
    a(salu("s_mov_b32", sC[0], hex(CSC))); a(salu("s_mov_b32", sC[1], hex(CSC)))
    for srd, size in ((Sx, PART + 128), (Sk, 262144 + 128), (Sv, 262144 + 128), (Swo, 262144 + 128), (Sws, PART)):
        a(salu("s_mov_b32", srd[2], size)); a(salu("s_mov_b32", srd[3], "0x20000"))
    a(salu("s_mov_b32", Swq[3], "0x20000"))
    a(raw("s_waitcnt lgkmcnt(0)"))
    def base(srd, ptr, shift):
        a(salu("s_add_u32", srd[0], S(ptr), sT0)); a(salu("s_addc_u32", srd[1], S(ptr + 1), 0))
        if shift:
            a(salu("s_sub_u32", srd[0], srd[0], shift)); a(salu("s_subb_u32", srd[1], srd[1], 0))
    a(salu("s_mul_i32", sT0, sB, PART)); base(Sx, 4, 128)
    a(salu("s_lshl_b32", sT0, sJ, 9)); base(Swq, 10, 0); a(salu("s_sub_u32", Swq[2], 4194304, sT0))
    a(salu("s_lshl_b32", sT1, sB, 4)); a(salu("s_add_u32", sT1, sT1, sJ))
    a(salu("s_lshl_b32", sT0, sT1, 18)); base(Sk, 6, 128); base(Sv, 8, 128)
    a(salu("s_mul_i32", sT0, sT1, PART)); base(Sws, 18, 0)
    a(salu("s_lshl_b32", sT0, sJ, 18)); base(Swo, 12, 128)
    a(raw("Lrestart:", kind="label"))
    L, t1, t2, t3, t4, t5, t6 = v(0), v(1), v(2), v(3), v(4), v(5), v(6)
    a(valu("v_mbcnt_lo_u32_b32", L, -1, 0)); a(valu("v_mbcnt_hi_u32_b32", L, -1, L))
    a(valu("v_and_b32", t1, 7, L)); a(valu("v_lshlrev_b32", t1, 4, t1))
    a(valu("v_lshrrev_b32", t2, 3, L)); a(valu("v_lshl_add_u32", t3, t2, 12, t1))
    a(salu("s_lshl_b32", sT0, sW, 15)); a(salu("s_add_u32", sT0, sT0, 128))
    a(valu("v_add_u32", qXd(0), sT0, t3))
    for pp in range(1, 4): a(valu("v_subrev_u32", qXd(pp), 32 * pp, qXd(0)))
    a(valu("v_and_b32", t3, 3, t2)); a(valu("v_lshl_add_u32", t3, t3, 12, t1))
    a(valu("v_lshrrev_b32", t2, 5, L)); a(valu("v_lshl_add_u32", t3, t2, 7, t3))
    a(salu("s_lshl_b32", sT0, sW, 10)); a(salu("s_add_u32", sT0, sT0, 128 * 1024 + 128))
    a(valu("v_add_u32", qX9d, sT0, t3))
    a(valu("v_and_b32", t1, 15, L)); a(valu("v_lshlrev_b32", t1, 4, t1))
    a(valu("v_lshl_add_u32", t3, t2, 15, t1))
    a(valu("v_bfe_u32", t4, L, 4, 1)); a(valu("v_lshl_add_u32", t3, t4, 17, t3))
    a(salu("s_lshl_b32", sT0, sQH, 16)); a(salu("s_lshl_b32", sT1, sHH, 8)); a(salu("s_add_u32", sT0, sT0, sT1))
    a(valu("v_add_u32", qWd(0), sT0, t3))
    for pp in range(1, 4): a(valu("v_add_u32", qWd(pp), (8192 - PS) * pp, qWd(0)))
    first = g_x(0) + g_x9(0) + g_wq(0) + g_wq(1) + g_x(1) + g_wq(2) + g_wq(3) + g_x(2) + g_x9(1) + g_wq(4) + g_wq(5)
    Q = []; a = Q.append
    a(valu("v_lshrrev_b32", t5, 4, L)); a(valu("v_lshl_add_u32", t3, t5, 13, t1))
    a(salu("s_lshl_b32", sT0, sHH, 15)); a(salu("s_lshl_b32", sT1, sQH, 12)); a(salu("s_add_u32", sT0, sT0, sT1))
    a(salu("s_add_u32", sT0, sT0, 128)); a(valu("v_add_u32", vWo0, sT0, t3))
    a(valu("v_lshlrev_b32", vL16, 4, L))
    a(salu("s_lshl_b32", sT0, sHH, 17)); a(salu("s_lshl_b32", sT1, sQH, 13)); a(salu("s_add_u32", sT0, sT0, sT1))
    a(salu("s_add_u32", sT0, sT0, 128)); a(valu("v_add_u32", vKV(0), sT0, vL16))
    for pp in range(1, 4): a(valu("v_subrev_u32", vKV(pp), 32 * pp, vKV(0)))
    a(valu("v_add_u32", qKw(0), sGrp, vL16)); a(valu("v_add_u32", qKw(1), 4 * US, qKw(0)))
    a(valu("v_add_u32", vA8, 8 * US, qKw(0)))
    a(salu("s_xor_b32", sT0, sW, 1)); a(salu("s_mul_i32", sT2, sT0, GRP))
    a(salu("s_add_u32", sT0, sT2, 8 * US)); a(valu("v_add_u32", vB8, sT0, vL16))
    a(salu("s_add_u32", sLMw, sGrp, 8 * US + 4096)); a(salu("s_add_u32", sLMr, sT2, 8 * US + 4096))
    a(valu("v_and_b32", t1, 3, L)); a(valu("v_mul_u32_u24", t1, PS, t1)); a(valu("v_lshl_add_u32", t1, t5, 4, t1))
    a(valu("v_bfe_u32", t3, L, 2, 2)); a(valu("v_lshl_add_u32", t3, t3, 7, t1))
    a(valu("v_add_u32", qX9r, X9, t3))
    a(salu("s_mul_i32", sT0, sQH, 2 * GRP)); a(valu("v_add_u32", qXr(0), sT0, t3))
    a(valu("v_add_u32", qXr(1), 5 * US, qXr(0)))
    a(valu("v_bfe_u32", t3, L, 2, 1)); a(valu("v_mul_u32_u24", t3, US, t3)); a(valu("v_add_u32", t1, t1, t3))
    a(valu("v_bfe_u32", t3, L, 3, 1)); a(valu("v_lshl_add_u32", t1, t3, 8, t1))
    a(salu("s_lshl_b32", sT0, sQH, 7)); a(salu("s_xor_b32", sT1, sT0, 128))
    a(valu("v_add_u32", t3, sT0, t1)); a(valu("v_add_u32", t6, sT1, t1))
    a(valu("v_add_u32", Kr(0, 0), sGrp, t3)); a(valu("v_add_u32", Kr(0, 1), sGrp, t6))
    a(valu("v_add_u32", Kr(1, 0), sT2, t3)); a(valu("v_add_u32", Kr(1, 1), sT2, t6))
    a(valu("v_bfe_u32", t1, L, 2, 2)); a(valu("v_mul_u32_u24", t1, PS, t1)); a(valu("v_lshl_add_u32", t1, t2, 8, t1))
    a(valu("v_and_b32", t3, 3, L)); a(valu("v_lshl_add_u32", t3, t3, 3, t1))
    a(valu("v_mul_u32_u24", t6, US, t4)); a(valu("v_add_u32", t3, t3, t6)); a(valu("v_add_u32", t3, 4 * US, t3))
    a(valu("v_add_u32", t6, sT1, t3)); a(valu("v_add_u32", t3, sT0, t3))
    a(valu("v_add_u32", Vr(0, 0), sGrp, t3)); a(valu("v_add_u32", Vr(0, 1), sGrp, t6))
    a(valu("v_add_u32", Vr(1, 0), sT2, t3)); a(valu("v_add_u32", Vr(1, 1), sT2, t6))
    a(valu("v_mul_u32_u24", t6, GRP, t4)); a(valu("v_add_u32", t1, t1, t6))
    a(valu("v_and_b32", t3, 1, L)); a(valu("v_lshl_add_u32", t1, t3, 4, t1))
    a(valu("v_bfe_u32", t3, L, 1, 1)); a(valu("v_lshl_add_u32", t1, t3, 3, t1))
    a(salu("s_lshl_b32", sT2, sW, 6)); a(valu("v_add_u32", vWpat, sT2, t1))
    a(salu("s_mul_i32", sT2, sHH, 2 * GRP)); a(salu("s_add_u32", sT2, sT2, US)); a(valu("v_add_u32", t1, sT2, t1))
    a(valu("v_add_u32", qWr(0, 0), sT0, t1)); a(valu("v_add_u32", qWr(0, 1), sT1, t1))
    a(valu("v_add_u32", qWr(1, 0), 4 * US, qWr(0, 0))); a(valu("v_add_u32", qWr(1, 1), 4 * US, qWr(0, 1)))
    a(salu("s_mul_i32", sT2, sQH, 4 * US)); a(salu("s_lshl_b32", sOw0, sHH, 12)); a(salu("s_add_u32", sT2, sT2, sOw0))
    a(salu("s_lshl_b32", sT0, sT0, 4)); a(salu("s_lshl_b32", sT1, sT1, 4))
    a(salu("s_add_u32", sOw0, sT2, sT0)); a(salu("s_add_u32", sOw1, sT2, sT1))
    a(valu("v_mov_b32", t1, "0x3f803f80"))
    for r in range(4): a(valu("v_accvgpr_write_b32", (ONES[r], "ones"), t1))
    return P, first, Q

def build_main(o):
    P, first, Q = prologue(o)
    sc = Sched()
    F = sc.f
    nstamp = [1]
    def stamp(g, after=()):
        if o.stamps:
            n = nstamp[0]; nstamp[0] += 1
            F(raw(f"s_memrealtime s[{64+2*n}:{65+2*n}]"), g, g, after=after)
    for i in first + Q: F(i, -1, -1, q="dma")
    k0, fu, lu, lub9, blk_last = {}, {}, {}, {}, {}
    for i in range(16):
        k0[i] = sc.n
        if i < 15: order = [(f, b) for f in range(8) for b in range(5) if b < 4 or f < 4]
        else: order = [(f, 4) for f in range(4)] + [(f, b) for b in range(4) for f in range(8)]
        for f, b in order:
            d = ACC(b, f) if b < 4 else A9(f)
            bb = (Bq(i, b), f"x{i}.{b}") if b < 4 else (B9(i), f"x{i}.4")
            n = sc.m(mfma((d, f"q{i}.{b}.{f}"), (Aq(f), f"w{i}.{f}"), bb, 0 if i == 0 else (d, f"q{i-1}.{b}.{f}")))
            fu.setdefault((i, f), n); lu[(i, f)] = n
            if b == 4: lub9[i] = n
            blk_last[(b, f)] = n
    k0[16] = sc.n
    def rdA(i, f):
        u = WQU[i % 6]; win = 0 if u <= 4 else 1
        off = (u - 1 - 4 * win) * US + ((f >> 1) & 1) * 64 + (f & 1) * 32
        return [dsr(TR, (Aq(f).sub(2 * h, 2), f"w{i}.{f}"), qWr(win, f >> 2), off + 512 * h) for h in range(2)]
    def rdB(i, b):
        u = XU[(i >> 1) % 3]; win = 1 if u == 5 else 0
        return dsr(B128, (Bq(i, b), f"x{i}.{b}"), qXr(win), (u - 5 * win) * US + (b >> 1) * GRP + (b & 1) * 512 + (i & 1) * 64)
    def rdB9(i):
        return dsr(B128, (B9(i), f"x{i}.4"), qX9r, ((i >> 2) & 1) * GRP + ((i >> 1) & 1) * 512 + (i & 1) * 64)
    bpre = F(barrier(vm=("x0", "xn0", "wq0")), -1, -1, q="dma")
    stamp(-1, [bpre])
    prev = []
    for x in rdA(0, 0) + [rdB(0, b) for b in range(4)] + [rdB9(0)] + rdA(0, 1) + rdA(0, 2):
        prev.append(F(x, -1, -1, q="lds", after=[bpre]))
    for x in sum((rdA(0, f) for f in range(3, 8)), []) + [rdB(1, b) for b in range(4)] + [rdB9(i) for i in (1, 2, 3)]:
        prev.append(F(x, -1, 5, q="lds", after=[bpre]))
    BQ = {}
    kvw = []
    for i in range(16):
        g = k0[i] + (12 if i == 0 else 8)
        vm = []
        if i < 15:
            vm.append(f"wq{i+1}")
            if i & 1: vm.append(f"x{(i+1)//2}")
            if i % 4 == 3: vm.append(f"xn{(i+1)//4}")
        bq = BQ[i] = F(barrier(vm=vm), g, g, after=prev)
        prev = []
        end = k0[i + 1] + 2
        ops = []
        if i + 6 < 16: ops += g_wq(i + 6)
        if i % 2 == 0 and i // 2 + 3 < 8: ops += g_x(i // 2 + 3)
        if i % 4 == 0 and i // 4 + 2 < 4: ops += g_x9(i // 4 + 2)
        if i == 10: ops += g_kv(1, 0, o) + g_kv(1, 1, o)
        if i == 11: ops += g_kv(1, 2, o)
        if i == 12: ops += g_kv(1, 3, o)
        if i < 8:
            for n in (2 * i, 2 * i + 1):
                kv, m = n >> 3, n & 7
                ops.append(vload((KVst(kv, m), f"st{n}"), vKV(0), (Sk, Sv)[kv], s4096 if m >= 4 else 0, 1024 * (m & 3), o.kvflag))
        for x in ops: F(x, g, g + 16, q="dma", after=[bq])
        parts = {12: [0], 13: [1], 14: [2, 3]}.get(i, [])
        for part in parts:
            for pp in range(4):
                n = 4 * part + pp
                kvw.append(F(dsw("ds_write_b128", qKw(part >> 1), (KVst(n >> 3, n & 7), f"st{n}"), (part & 1) * US + PS * pp),
                             g, k0[i + 1] - 1, q="kvw", after=[bq]))
        if i < 15:
            for f in range(8):
                for x in rdA(i + 1, f):
                    prev.append(F(x, max(lu[(i, f)], g), max(min(fu[(i + 1, f)] - 6, end), lu[(i, f)]), q="ldsA", after=[bq]))
            if i & 1:
                for ii in (i + 1, i + 2):
                    for b in range(4): prev.append(F(rdB(ii, b), g, k0[i + 1] - (8 if ii == i + 1 else 0), q="ldsB", after=[bq]))
            if i % 4 == 3:
                for ii in range(i + 1, i + 5):
                    prev.append(F(rdB9(ii), max(g, lub9[i]) if ii == i + 4 else g, k0[i + 1] - 4, q="ldsB9", after=[bq]))
    stamp(k0[15])
    NU = 72
    blk = lambda U: (0, 1, 2, 3, 4, 0, 1, 2, 3)[U % 9]
    isY = lambda U: 1 if U % 9 >= 5 else 0
    pre0, preL, qk0, qkL, pv0, pvL, slot = {}, {}, {}, {}, {}, {}, {}
    def emit_pre(b):
        pre0[b] = sc.n
        for t in range(4):
            preL[b] = sc.m(mfma((NM(b), f"pm{b}"), (KF(0, 0, t), "k0.0"), (QF(b, t), f"Q{b}"), 0 if t == 0 else (NM(b), f"pm{b}")))
    def emit_qk(U):
        qk0[U] = sc.n; b, y, e = blk(U), isY(U), U // 9
        for t in range(4):
            for h in range(2):
                d = SB(U & 1).sub(4 * h, 4)
                qkL[U] = sc.m(mfma((d, f"s{U}"), (KF(y, h, t), f"k{e}.{y}"), (QF(b, t), f"Q{b}"),
                                   (NM(b), f"nm{b}") if t == 0 else (d, f"s{U}")))
    def emit_pv(U):
        pv0[U] = sc.n; b, y, e = blk(U), isY(U), U // 9
        first_ = U < 5
        pU = U - (9 if b == 4 else (5 if y else 4))
        sc.m(mfma((LS(b), f"l{U}"), (ONES, "ones"), (PB(U & 1), f"p{U}"), 0 if first_ else (LS(b), f"l{pU}")))
        for d in range(8):
            acc = ACC(b, d) if b < 4 else O9(d)
            pvL[U] = sc.m(mfma((acc, f"o{U}"), (VF(y, d), f"v{e}.{y}"), (PB(U & 1), f"p{U}"), 0 if first_ else (acc, f"o{pU}")))
    emit_pre(0); emit_pre(1); emit_qk(0)
    for U in range(NU + 1):
        slot[U] = sc.n
        if U + 2 < 5: emit_pre(U + 2)
        if U + 1 < NU: emit_qk(U + 1)
        if U >= 1: emit_pv(U - 1)
    attn_end = sc.n - 1
    ou0, ouL = {}, {}
    for p in range(4):
        for qb in range(9):
            n = 9 * p + qb; ou0[n] = sc.n
            for ks in range(8):
                for u in range(2):
                    d = SB(n & 1).sub(4 * u, 4)
                    ouL[n] = sc.m(mfma((d, f"r{n}"), (Ao(p, ks, u), f"wo{p}"), (Bo(qb, ks), f"of{qb}"), 0 if ks == 0 else (d, f"r{n}")))
    last = sc.n - 1
    def pack_q(src, dst, tsrc, tdst, lo, hi, q):
        ops = []
        for m in range(4): ops.append(valu("v_pk_mul_f32", (src.sub(2 * m, 2), "t"), (src.sub(2 * m, 2), tsrc[m >> 1]), sC))
        for m in range(4): ops.append(valu("v_cvt_pk_bf16_f32", (dst[m], "t2"), (src[2 * m], "t"), (src[2 * m + 1], "t")))
        ops.append(swap("v_permlane32_swap_b32", (dst[0], "t2"), (dst[2], "t2"), tdst, tdst))
        ops.append(swap("v_permlane32_swap_b32", (dst[1], "t2"), (dst[3], "t2"), tdst, tdst))
        return [F(x, lo, hi, q=q) for x in ops]
    q9w = []
    for t in range(2):
        l = pack_q(SB(t), PB(t), [f"q15.4.{2*t}", f"q15.4.{2*t+1}"], "q9p", blk_last[(4, 2 * t + 1)] + 3, pre0[0] - 2, "qe")
        q9w.append(F(dsw("ds_write_b128", vA8, (PB(t), "q9p"), 1024 * t), k0[15] + 8, qk0[0] - 1, q="q9w", after=[l[-1], BQ[15]]))
    for b in range(4):
        for t in range(4):
            pack_q(V(32 * b + 8 * t, 8), QF(b, t), [f"q15.{b}.{2*t}", f"q15.{b}.{2*t+1}"], f"Q{b}",
                   blk_last[(b, 2 * t + 1)] + 3, pre0[b] - 1 + t, "qe")
    for b in range(5):
        n = NM(b); pm = f"pm{b}"; nm = f"nm{b}"
        ops = [valu("v_accvgpr_read_b32", vT1, SAV(b)),
               valu("v_max3_f32", n[0], (n[0], pm), (n[1], pm), vT1), valu("v_max3_f32", n[0], n[0], (n[2], pm), (n[3], pm)),
               valu("v_mov_b32", n[1], n[0]), swap("v_permlane32_swap_b32", n[0], n[1]), valu("v_max_f32", n[0], n[0], n[1]),
               valu("v_mov_b32", n[1], n[0]), swap("v_permlane16_swap_b32", n[0], n[1]),
               I(f"v_min_f32_e64 {n[0]}, -{n[0]}, -{n[1]}", "valu", rd=[n[0], n[1]], wr=[(n[0], nm)])]
        ops += [valu("v_mov_b32", (n[r], nm), (n[0], nm)) for r in (1, 2, 3)]
        for x in ops: F(x, min(preL[b] + 3, qk0[b] - 1), qk0[b] - 1, q="nm")
    for U in range(NU):
        s_, p_ = SB(U & 1), PB(U & 1)
        hi = (qk0[U + 2] if U + 2 < NU else pv0[U]) - 1
        hi = min(hi, pv0[U] - 1)
        lo = min(qkL[U] + 3, hi)
        loc = max(lo, pvL[U - 2]) if U >= 2 else lo
        ex = [F(trans("v_exp_f32", (s_[j], f"e{U}"), (s_[j], f"s{U}")), lo, hi - (1 if hi > lo else 0), q="exp") for j in range(8)]
        for m in range(4):
            F(valu("v_cvt_pk_bf16_f32", (p_[m], f"p{U}"), (s_[2 * m], f"e{U}"), (s_[2 * m + 1], f"e{U}")),
              loc, hi, q="cvt", after=[ex[min(2 * m + 2, 7)]] + (q9w if U < 2 else []))
    def rdK(e, y):
        return [dsr(B128, (KF(y, h, t), f"k{e}.{y}"), Kr(y, t >> 1), (e & 1) * 2 * US + 512 * h + 64 * (t & 1))
                for t in range(4) for h in range(2)]
    def rdV(e, y):
        return [dsr(TR, (VF(y, d).sub(2 * h, 2), f"v{e}.{y}"), Vr(y, d >> 2), (e & 1) * 2 * US + 512 * h + 32 * (d & 3))
                for d in range(8) for h in range(2)]
    BB = {}
    for e in range(8):
        U0 = 9 * e
        rd = []
        if e == 0:
            for x in rdK(0, 0): rd.append(F(x, k0[14], pre0[0] - 6, q="ldsK", after=[kvw[7]]))
            for x in rdV(0, 0): rd.append(F(x, k0[15], pv0[0] - 6, q="ldsV", after=[kvw[15]]))
            g = slot[0] - 1
            ba = F(barrier(), g, g, after=q9w + kvw)
            for t in range(4):
                F(dsr(B128, (QF(4, t), "Q4"), vA8 if t < 2 else vB8, 1024 * (t & 1)), g, pre0[4] - 6, q="ldsK", after=[ba])
        else:
            g = slot[U0 - 2] - 1
            wk = F(waitvm(f"k{e}"), g, g + 4, q="ldsK")
            for x in rdK(e, 0): rd.append(F(x, g, slot[U0 - 1] - 6, q="ldsK"))
            g = slot[U0 - 1] - 1
            ba = F(barrier(vm=[f"v{e}"], lgkm=False), g, g, after=[wk])
            for x in rdV(e, 0): rd.append(F(x, g, pv0[U0] - 6, q="ldsV", after=[ba]))
        gb = slot[U0 + 3] - 1 + (8 if e == 0 else 0)
        for x in rdK(e, 1): rd.append(F(x, g, gb - 5, q="ldsK", after=[ba]))
        for x in rdV(e, 1): rd.append(F(x, max(g, pvL[U0 - 1]) if e else g, gb - 5, q="ldsV", after=[ba]))
        bb = BB[e] = F(barrier(vm=["wo0"] if e == 7 else []), gb, gb, after=rd)
        if e in (0, 3, 6, 7): stamp(gb, [bb])
        ops = []
        if e < 6:
            for part in range(4): ops += g_kv(e + 2, part, o)
        if e == 6:
            ops += [valu("v_mov_b32", vKV(0), vWo0)] + [valu("v_subrev_u32", vKV(pp), 32 * pp, vWo0) for pp in (1, 2, 3)]
            for part in range(4): ops += g_wo(0, part)
        for x in ops: F(x, gb, slot[U0 + 7] - 3, q="dma", after=[bb])
    U0 = 63
    vW = lambda win: Kr(0, win)
    vOw = lambda hf: Vr(0, hf)
    vBr = lambda win: Kr(1, win)
    vLMw, vLMr = Vr(1, 0), Vr(1, 1)
    gb = BB[7].lo
    adr = [valu("v_mov_b32", vW(0), vWpat), valu("v_add_u32", vW(1), 4 * US, vWpat),
           valu("v_bfe_u32", vLMr, vL16, 1, 7), valu("v_add_u32", vLMw, sLMw, vLMr), valu("v_add_u32", vLMr, sLMr, vLMr),
           valu("v_add_u32", vOw(0), sOw0, vL16), valu("v_add_u32", vOw(1), sOw1, vL16),
           valu("v_add_u32", vBr(0), 2 * US, vL16), valu("v_add_u32", vBr(1), 6 * US, vL16)]
    adr = [F(x, gb, gb + 12, q="adr", after=[BB[7]]) for x in adr]
    def rdAo(p):
        ops = []
        for ks in range(8):
            unit = KVU(p & 1)[ks >> 1]; win = unit >> 2
            for u in range(2):
                for h in range(2):
                    ops.append(dsr(TR, (Ao(p, ks, u).sub(2 * h, 2), f"wo{p}"), vW(win),
                                   (unit & 3) * US + (ks & 1) * 2 * GRP + 512 * h + 32 * u))
        return ops
    gc = slot[U0 + 8] - 1
    rd = []
    for n, x in enumerate(rdAo(0)):
        rd.append(F(x, qkL[U0 + 4] if n < 16 else pvL[U0 + 4], gc - 5, q="ldsK", after=[adr[-1]]))
    g = pvL[U0 + 4] + 3
    t9 = f"o{U0+4}"
    n9 = NM(4)
    raww = [valu("v_accvgpr_read_b32", vT0, (LS(4)[0], f"l{U0+4}")), valu("v_mov_b32", vT1, (n9[0], "nm4")),
            valu("v_mov_b32", n9[1], vT0), dsw("ds_write_b64", vLMw, V(254, 2), 0)]
    raww += [dsw("ds_write_b128", vA8, (O9(4 + d), t9), 1024 * d) for d in range(4)]
    raww = [F(x, g, pvL[U0 + 5], q="ep", after=[adr[-1]]) for x in raww]
    bc = F(barrier(), gc, gc, after=rd + raww)
    ops = []
    for part in range(4): ops += g_wo(1, part)
    wo1_units = KVU(0)
    ops = []
    for part in range(4): ops += group(wo1_units[part] * US, sGrp, vKV, Swo, part * 65536 + 256, "", "wo1")
    for x in ops: F(x, gc, attn_end, q="dma", after=[bc])
    ow = []
    def norm_block(b):
        U = U0 + 5 + b; lo = min(pvL[U] + 3, attn_end); a32 = V(32 * b, 32)
        ops = [valu("v_accvgpr_read_b32", vT1, (LS(b)[0], f"l{U}")), trans("v_rcp_f32", vT0, vT1),
               valu("v_mov_b32", vTs, vT1) if b == 0 else valu("v_add_f32", vTs, vTs, vT1)]
        for k in range(4):
            for m in range(4):
                r = a32.sub(8 * k + 2 * m, 2)
                ops.append(valu("v_pk_mul_f32", (r, "n"), (r, f"o{U}"), V(254, 2), extra="op_sel_hi:[1,0]"))
            for m in range(4):
                ops.append(valu("v_cvt_pk_bf16_f32", (a32[4 * k + m], "of"), (a32[8 * k + 2 * m], "n"), (a32[8 * k + 2 * m + 1], "n")))
            ops.append(dsw("ds_write_b128", vOw(k >> 1), (a32.sub(4 * k, 4), "of"), (2 + (b >> 1)) * US + (b & 1) * 8192 + (k & 1) * 1024))
        for x in ops: ow.append(F(x, lo, attn_end, q="ep"))
    norm_block(0); norm_block(1)
    rcv = V(216, 16); own = SB(U0 + 7 & 1)
    mr = [dsr("ds_read_b64", n9.sub(2, 2), vLMr, 0)] + [dsr(B128, (rcv.sub(4 * d, 4), "rcv"), vB8, 1024 * d) for d in range(4)]
    mr = [F(x, gc, gc + 4, q="ldsV", after=[bc]) for x in mr]
    ops = [valu("v_sub_f32", n9[3], (n9[0], "nm4"), n9[3]), trans("v_exp_f32", n9[3], n9[3]),
           valu("v_fma_f32", n9[1], n9[2], n9[3], n9[1]), trans("v_rcp_f32", vT0, n9[1]),
           valu("v_add_f32", vTs, vTs, n9[1]), salu("s_lshl_b32", sT0, sW, 11), valu("v_add_u32", vLMw, sT0, vBr(1))]
    for k in range(2):
        for m in range(8): ops.append(valu("v_accvgpr_read_b32", (own[m], "own"), (A(128 + 8 * k + m), t9)))
        for m in range(8): ops.append(valu("v_fma_f32", (own[m], "mg"), (rcv[8 * k + m], "rcv"), n9[3], (own[m], "own")))
        for m in range(4): ops.append(valu("v_pk_mul_f32", (own.sub(2 * m, 2), "n"), (own.sub(2 * m, 2), "mg"), V(254, 2), extra="op_sel_hi:[1,0]"))
        for m in range(4): ops.append(valu("v_cvt_pk_bf16_f32", (rcv[8 * k + m], "of"), (own[2 * m], "n"), (own[2 * m + 1], "n")))
        ops.append(dsw("ds_write_b128", vLMw, (rcv.sub(8 * k, 4), "of"), 3 * US + 1024 * k))
    for x in ops: ow.append(F(x, pv0[U0 + 7], attn_end, q="ep", after=mr))
    norm_block(2); norm_block(3)
    ops = [salu("s_lshl_b32", sT0, sW, 2), valu("v_add_u32", vLMr, sT0, vBr(1)), dsw("ds_write_b32", vLMr, vTs, FLAG - 6 * US)]
    for x in ops: ow.append(F(x, attn_end, attn_end, q="ep"))
    b1 = F(barrier(), attn_end, attn_end, q="dma", after=ow)
    stamp(attn_end, [b1])
    fl = V(216, 4)
    def rdBo(qb, ks):
        if qb < 8: return dsr(B128, (Bo(qb, ks), f"of{qb}"), vBr(qb >> 2), ((qb >> 1) & 1) * US + (qb & 1) * 8192 + 1024 * ks)
        return dsr(B128, (Bo(qb, ks), f"of{qb}"), vBr(1), 3 * US + 1024 * ks)
    gd = {p: ou0[9 * p + 5] - 1 for p in range(3)}
    rd = []
    for ks in range(8): rd.append(F(rdBo(0, ks), attn_end, attn_end, q="ldsB", after=[b1]))
    fr = F(dsr(B128, fl, vBr(1), FLAG - 6 * US), attn_end, attn_end, q="ldsB")
    chk = [valu("v_add_f32", fl[0], fl[0], fl[1]), valu("v_add_f32", fl[2], fl[2], fl[3]), valu("v_add_f32", fl[0], fl[0], fl[2]),
           raw(f"v_cmp_nge_f32 vcc, {hex(THR)}, {fl[0]}", rd=[fl[0]], kind="valu"),
           raw("s_cmp_eq_u32 s54, 0"), raw("s_cselect_b64 vcc, vcc, 0"), raw("s_cbranch_vccnz Lslow"),
           salu("s_lshl_b32", sT0, sW, 10), valu("v_add_u32", vA8, sT0, vL16)]
    chk = [F(x, attn_end + 6, attn_end + 12, q="dma", after=[fr]) for x in chk]
    for qb in range(1, 9):
        for ks in range(8):
            rd.append(F(rdBo(qb, ks), attn_end, min(ou0[qb] - 6 + 2 * ks, gd[0] - 5), q="ldsB", after=[chk[6]] if qb >= 4 else []))
    wo_units = {2: KVU(1), 3: KVU(0)}
    def rdAo2(p, units):
        ops = []
        for ks in range(8):
            unit = units[ks >> 1]; win = unit >> 2
            for u in range(2):
                for h in range(2):
                    ops.append(dsr(TR, (Ao(p, ks, u).sub(2 * h, 2), f"wo{p}"), vW(win),
                                   (unit & 3) * US + (ks & 1) * 2 * GRP + 512 * h + 32 * u))
        return ops
    allu = {1: wo1_units, **wo_units}
    for p in range(3):
        bd = F(barrier(vm=[f"wo{p+1}"]), gd[p], gd[p], after=rd)
        if p + 2 < 4:
            ops = []
            for part in range(4): ops += group(allu[p + 2][part] * US, sGrp, vKV, Swo, part * 65536 + 256 * (p + 2), "", f"wo{p+2}")
            for x in ops: F(x, gd[p], gd[p] + 30, q="dma", after=[bd])
        rd = [F(x, gd[p], ou0[9 * p + 9] - 6, q="ldsK", after=[bd]) for x in rdAo2(p + 1, allu[p + 1])]
    for n in range(36):
        s_, p_ = SB(n & 1), PB(n & 1)
        lo = min(ouL[n] + 3, last); hi = min(lo + 8, last)
        ops = [valu("v_cvt_pk_bf16_f32", (p_[m], f"rp{n}"), (s_[2 * m], f"r{n}"), (s_[2 * m + 1], f"r{n}")) for m in range(4)]
        ops += [salu("s_mov_b32", sSt, n * 4096), vstore((p_, f"rp{n}"), vA8, Sws, sSt, 0, o.stflag)]
        for x in ops: F(x, lo, hi, q="st", after=[chk[-1]])
    seq = sc.run()
    seq = P + seq
    check_tags(seq)
    seq, nops = pad_hazards(seq)
    sys.stderr.write(f"mfma {len(sc.bb)} instrs {len(seq)} over {sc.stats['over']} idle {sc.stats['idle']} waits {sc.stats['waits']} nop-states {nops}\n")
    marks = dict(q_end=k0[16], attn_end=attn_end)
    return seq, nstamp[0], marks

def tail_and_slow(o, nst):
    T = []; a = T.append
    if o.stamps:
        a(f"s_memrealtime s[{64+2*nst}:{65+2*nst}]"); a("s_waitcnt vmcnt(0)")
        a(f"s_memrealtime s[{66+2*nst}:{67+2*nst}]"); a("s_waitcnt lgkmcnt(0)")
        a("s_cmp_lg_u32 s3, 0"); a("s_cbranch_scc1 Lend")
        a("s_mov_b32 s40, s18"); a("s_mov_b32 s41, s19"); a("s_mov_b32 s42, 0x10000000"); a("s_mov_b32 s43, 0x20000")
        a(f"s_lshl_b32 s52, s2, 6"); a(f"s_add_u32 s52, s52, {STAMP_OFF}"); a("v_mov_b32 v1, s52")
        a("s_mov_b64 exec, 1")
        for n in range(nst + 2):
            a(f"v_mov_b32 v2, s{64+2*n}"); a(f"buffer_store_dword v2, v1, s[40:43], 0 offen offset:{4*n}")
        if o.dbg:
            a("s_mov_b32 s40, s16"); a("s_mov_b32 s41, s17"); a("s_mov_b32 s42, 256"); a("v_mov_b32 v1, 0")
            for n in range(nst + 2):
                a(f"v_mov_b32 v2, s{64+2*n}"); a(f"buffer_atomic_umax v2, v1, s[40:43], 0 offen offset:{4*n}")
            a("s_not_b32 s52, s64"); a("v_mov_b32 v2, s52"); a(f"buffer_atomic_umax v2, v1, s[40:43], 0 offen offset:60")
    a("Lend:"); a("s_endpgm")
    a("Lslow:"); a("s_waitcnt vmcnt(0) lgkmcnt(0)"); a("s_nop 7"); a("s_barrier")
    a("v_mbcnt_lo_u32_b32 v0, -1, 0"); a("v_mbcnt_hi_u32_b32 v0, -1, v0")
    a("v_and_b32 v1, 15, v0"); a("v_lshlrev_b32 v1, 8, v1"); a("v_lshrrev_b32 v2, 4, v0"); a("v_lshl_add_u32 v1, v2, 4, v1")
    a("s_lshl_b32 s52, s48, 17"); a("s_add_u32 s52, s52, 128"); a("s_lshl_b32 s53, s49, 7"); a("s_add_u32 s62, s52, s53")
    a("v_add_u32 v2, s62, v1"); a("s_xor_b32 s53, s53, 128"); a("s_add_u32 s62, s52, s53"); a("v_add_u32 v3, s62, v1")
    for b in range(5): a(f"v_mov_b32 v{8+b}, 0xff800000")
    a("s_mov_b32 s45, 0"); a("Lslow_loop:")
    for t in range(4): a(f"buffer_load_dwordx4 v[{16+4*t}:{19+4*t}], v{2+(t>>1)}, s[28:31], s45 offen offset:{64*(t&1)}")
    a("s_waitcnt vmcnt(0)")
    for b in range(5):
        for t in range(4):
            a(f"v_mfma_f32_16x16x32_bf16 {NM(b)}, v[{16+4*t}:{19+4*t}], {QF(b,t)}, {0 if t == 0 else NM(b)}")
    a("s_nop 7"); a("s_nop 1")
    for b in range(5):
        n = NM(b); a(f"v_max3_f32 v{8+b}, v{8+b}, {n[0]}, {n[1]}"); a(f"v_max3_f32 v{8+b}, v{8+b}, {n[2]}, {n[3]}")
    a("s_add_u32 s45, s45, 4096"); a("s_cmp_lt_u32 s45, 131072"); a("s_cbranch_scc1 Lslow_loop")
    for b in range(5): a(f"v_accvgpr_write_b32 {SAV(b)}, v{8+b}")
    a("s_mov_b32 s54, 1"); a("s_branch Lrestart")
    return T

def reduce_kernel(o):
    T = []; a = T.append
    a("s_cmp_ge_u32 s2, 576"); a("s_cbranch_scc1 Lrend")
    if o.stamps: a("s_memrealtime s[28:29]")
    a("s_load_dwordx2 s[4:5], s[0:1], 56"); a("s_load_dwordx2 s[8:9], s[0:1], 40")
    a(f"s_mul_hi_u32 s12, s2, {(1 << 32) // 36 + 1}"); a("s_mul_i32 s13, s12, 36"); a("s_sub_u32 s13, s2, s13")
    a(f"s_mul_hi_u32 s14, s13, {(1 << 32) // 9 + 1}"); a("s_mul_i32 s15, s14, 9"); a("s_sub_u32 s15, s13, s15")
    a(f"s_mul_i32 s16, s12, {16 * PART}"); a("s_lshl_b32 s17, s13, 12"); a("s_add_u32 s16, s16, s17")
    a("v_lshlrev_b32 v1, 4, v0")
    a(f"s_mov_b32 s6, {256 * PART}"); a("s_mov_b32 s7, 0x20000"); a(f"s_mov_b32 s10, {16 * PART}"); a("s_mov_b32 s11, 0x20000")
    a("s_waitcnt lgkmcnt(0)")
    for j in range(16):
        a(f"buffer_load_dwordx4 v[{16+4*j}:{19+4*j}], v1, s[4:7], s16 offen")
        if j < 15: a(f"s_add_u32 s16, s16, {PART}")
    a("s_mul_i32 s18, s12, 144"); a("s_lshl_b32 s19, s15, 4"); a("s_add_u32 s18, s18, s19"); a("s_lshl_b32 s18, s18, 10")
    a("s_lshl_b32 s19, s14, 8"); a("s_add_u32 s18, s18, s19")
    a("v_and_b32 v2, 15, v0"); a("v_lshlrev_b32 v2, 10, v2"); a("v_and_b32 v3, 0xf0, v0"); a("v_add_u32 v2, v2, v3")
    a("s_mov_b32 s20, 0xffff0000")
    for j in range(16):
        a(f"s_waitcnt vmcnt({15-j})")
        for m in range(4):
            r = 16 + 4 * j + m
            if j == 0:
                a(f"v_lshlrev_b32 v{4+2*m}, 16, v{r}"); a(f"v_and_b32 v{5+2*m}, s20, v{r}")
            else:
                a(f"v_lshlrev_b32 v12, 16, v{r}"); a(f"v_and_b32 v13, s20, v{r}")
                a(f"v_pk_add_f32 v[{4+2*m}:{5+2*m}], v[{4+2*m}:{5+2*m}], v[12:13]")
    for m in range(4): a(f"v_cvt_pk_bf16_f32 v{12+m}, v{4+2*m}, v{5+2*m}")
    a("s_nop 1"); a("v_permlane32_swap_b32 v12, v14"); a("v_permlane32_swap_b32 v13, v15")
    a("buffer_store_dwordx4 v[12:15], v2, s[8:11], s18 offen")
    if o.stamps:
        a("s_waitcnt vmcnt(0)"); a("s_memrealtime s[30:31]"); a("s_waitcnt lgkmcnt(0)")
        a("s_mov_b32 s6, 0x10000000"); a("s_lshl_b32 s16, s2, 3"); a(f"s_add_u32 s16, s16, {STAMP_OFF + 65536}")
        a("v_mov_b32 v1, s16"); a("v_mov_b32 v2, s28"); a("v_mov_b32 v3, s30")
        a("v_cmp_eq_u32 vcc, 0, v0"); a("s_and_saveexec_b64 s[22:23], vcc"); a("s_cbranch_execz Lrend")
        a("buffer_store_dwordx2 v[2:3], v1, s[4:7], 0 offen")
    a("Lrend:"); a("s_endpgm")
    return T

KD = """.amdhsa_kernel {name}
  .amdhsa_next_free_vgpr {vg}
  .amdhsa_next_free_sgpr {sg}
  .amdhsa_accum_offset {acc}
  .amdhsa_group_segment_fixed_size 0
  .amdhsa_kernarg_size 64
  .amdhsa_user_sgpr_count 2
  .amdhsa_user_sgpr_kernarg_segment_ptr 1
  .amdhsa_system_sgpr_workgroup_id_x 1
  .amdhsa_float_denorm_mode_32 3
.end_amdhsa_kernel"""

def generate(o):
    hdr = [l.rstrip("\n") for l in open(f"cdna_kernels/{NAME}.s.ref") if l.startswith(";") and "launch" not in l and "grid=" not in l]
    seq, nst, marks = build_main(o)
    L = hdr + [f"; @launch kernel={NAME}_kernel grid=(256,1,1) block=(256,1,1) lds={LDSB}",
               "; @launch kernel=mha_reduce_kernel grid=(576,1,1) block=(256,1,1) lds=0",
               '.amdgcn_target "amdgcn-amd-amdhsa--gfx950"', ".text",
               f".globl {NAME}_kernel", ".p2align 8", f".type {NAME}_kernel,@function", f"{NAME}_kernel:"]
    L += [i.text for i in seq] + tail_and_slow(o, nst)
    L += [".globl mha_reduce_kernel", ".p2align 8", ".type mha_reduce_kernel,@function", "mha_reduce_kernel:"] + reduce_kernel(o)
    L += ['.section .rodata,"a"', ".p2align 6", KD.format(name=f"{NAME}_kernel", vg=512, sg=102, acc=256),
          ".p2align 6", KD.format(name="mha_reduce_kernel", vg=80, sg=32, acc=80)]
    return "\n".join(L) + "\n"

if __name__ == "__main__":
    o = Opt()
    out = sys.argv[1]
    for kv in sys.argv[2:]:
        k, v_ = kv.split("=", 1)
        setattr(o, k, {"1": True, "0": False}.get(v_, v_) if k in ("stamps","dbg") else v_)
    open(out, "w").write(generate(o))
```

```python
import sys, math, struct
from dsl import *

NAME = "standalone__mha_block_cached__near_ridge"
US, GRP, PS = 17024, 4224, 1056
X9 = 9 * US
FLAG = X9 + 8448
LDSB = 163840
PART = 147456
STAMP_OFF = 0x4000000
def fbits(x): return struct.unpack("<I", struct.pack("<f", x))[0]
CSC = fbits(math.log2(math.e) / math.sqrt(128.0))
THR = fbits(2.0 ** 40)

Sx, Swq, Sk, Sv, Swo, Sws = S(20, 4), S(24, 4), S(28, 4), S(32, 4), S(36, 4), S(40, 4)
sW, sGrp, sOff, sC, sHH, sQH, sB, sJ = S(3), S(44), S(45), S(46, 2), S(48), S(49), S(50), S(51)
sT0, sT1, sMode, sX9, s4096, sOw0, sOw1, sLMw, sLMr, sSt, sT2 = S(52), S(53), S(54), S(55), S(56), S(57), S(58), S(59), S(60), S(61), S(62)
ACC = lambda b, f: V(32 * b + 4 * f, 4)
QF = lambda b, t: (V(128 + 16 * b + 4 * t, 4) if b < 4 else A(180 + 4 * t, 4))
SB = lambda k: V(192 + 8 * k, 8)
PB = lambda k: V(208 + 4 * k, 4)
NM = lambda b: V(216 + 4 * b, 4)
Kr = lambda y, hf: V(236 + 2 * y + hf)
Vr = lambda y, hf: V(240 + 2 * y + hf)
vKV = lambda pp: V(244 + pp)
vL16, vWpat, vWo0, vA8, vB8, vTs, vT0, vT1 = V(248), V(249), V(250), V(251), V(252), V(253), V(254), V(255)
qWr = lambda win, hf: V(216 + 2 * win + hf)
qXr = lambda win: V(220 + win)
qX9r = V(222)
qKw = lambda win: V(223 + win)
qWd = lambda pp: V(225 + pp)
qXd = lambda pp: V(229 + pp)
qX9d = V(233)
KF = lambda y, h, t: A(32 * y + 4 * (2 * t + h), 4)
VF = lambda y, d: A(64 + 32 * y + 4 * d, 4)
O9 = lambda d: A(128 + 4 * d, 4)
LS = lambda b: A(160 + 4 * b, 4)
ONES = A(196, 4)
SAV = lambda b: A(248 + b)
Aq = lambda f: A(32 + 4 * f, 4)
Bq = lambda i, b: A((128, 144, 200, 216)[i % 4] + 4 * b, 4)
B9 = lambda i: A(232 + 4 * (i % 4), 4)
A9 = lambda f: V(192 + 4 * f, 4)
KVst = lambda kv, n: A(64 + 32 * kv + 4 * n, 4)
WQU = {4: 2, 5: 6, 0: 7, 1: 1, 2: 4, 3: 8}
XU = {2: 3, 0: 0, 1: 5}
KVU = lambda slot: (2 * slot, 2 * slot + 1, 4 + 2 * slot, 5 + 2 * slot)
def Ao(p, ks, u):
    n = 2 * ks + u
    return A((0 if n < 8 else 64) + 32 * (p & 1) + 4 * (n & 7), 4)
def Bo(qb, ks):
    if qb < 4: return V(32 * qb + 4 * ks, 4)
    if qb < 8: return A(128 + 32 * (qb - 4) + 4 * ks, 4)
    return V(128 + 4 * ks, 4)
TR, B128 = "ds_read_b64_tr_b16", "ds_read_b128"

class Opt:
    stamps = False
    kvflag = "nt"
    stflag = "sc1"
    dbg = False

def group(unit_off, base, voff, srd, soff, flags, tag):
    ops = [salu("s_add_u32", "m0", base, unit_off), salu("s_mov_b32", sOff, soff)]
    ops += [dma(voff(pp), srd, sOff, PS * pp, flags, tag) for pp in range(4)]
    return ops
def g_wq(i): return group(WQU[i % 6] * US, sGrp, qWd, Swq, i * 262144, "", f"wq{i}")
def g_x(I_): return group(XU[I_ % 3] * US, sGrp, qXd, Sx, I_ * 128, "", f"x{I_}")
def g_x9(n): return [salu("s_add_u32", "m0", sX9, X9 + (n & 1) * GRP), salu("s_mov_b32", sOff, n * 256),
                     dma(qX9d, Sx, sOff, 0, "", f"xn{n}")]
def g_kv(e, part, o):
    kv, half = part >> 1, part & 1
    return group(KVU(e & 1)[part] * US, sGrp, vKV, (Sk, Sv)[kv], e * 16384 + half * 4096, o.kvflag, f"{'kv'[kv]}{e}")
def g_wo(p, part): return group(KVU(p & 1)[part] * US, sGrp, vKV, Swo, part * 65536 + 256 * p, "", f"wo{p}")

def prologue(o):
    P = []; a = P.append
    v = lambda n: V(n)
    a(raw("s_cmp_ge_u32 s2, 256")); a(raw("s_cbranch_scc1 Lend"))
    if o.stamps: a(raw("s_memrealtime s[64:65]"))
    a(raw("s_load_dwordx16 s[4:19], s[0:1], 0"))
    a(valu("v_lshrrev_b32", v(1), 6, v(0)))
    a(valu("v_mov_b32", v(2), "0xff800000"))
    a(valu("v_readfirstlane_b32", sW, v(1)))
    for b in range(5): a(valu("v_accvgpr_write_b32", SAV(b), v(2)))
    a(salu("s_and_b32", sT0, S(2), 1)); a(salu("s_lshl_b32", sT0, sT0, 3))
    a(salu("s_bfe_u32", sT1, S(2), (3 << 16) | 3)); a(salu("s_add_u32", sB, sT0, sT1))
    a(salu("s_bfe_u32", sT0, S(2), (2 << 16) | 1)); a(salu("s_lshl_b32", sT0, sT0, 2))
    a(salu("s_lshr_b32", sT1, S(2), 6)); a(salu("s_add_u32", sJ, sT0, sT1))
    a(salu("s_lshr_b32", sHH, sW, 1)); a(salu("s_and_b32", sQH, sW, 1))
    a(salu("s_mul_i32", sGrp, sW, GRP)); a(salu("s_mul_i32", sX9, sW, PS))
    a(salu("s_mov_b32", sMode, 0)); a(salu("s_mov_b32", s4096, 4096))
    a(salu("s_mov_b32", sC[0], hex(CSC))); a(salu("s_mov_b32", sC[1], hex(CSC)))
    for srd, size in ((Sx, PART + 128), (Sk, 262144 + 128), (Sv, 262144 + 128), (Swo, 262144 + 128), (Sws, PART)):
        a(salu("s_mov_b32", srd[2], size)); a(salu("s_mov_b32", srd[3], "0x20000"))
    a(salu("s_mov_b32", Swq[3], "0x20000"))
    a(raw("s_waitcnt lgkmcnt(0)"))
    def base(srd, ptr, shift):
        a(salu("s_add_u32", srd[0], S(ptr), sT0)); a(salu("s_addc_u32", srd[1], S(ptr + 1), 0))
        if shift:
            a(salu("s_sub_u32", srd[0], srd[0], shift)); a(salu("s_subb_u32", srd[1], srd[1], 0))
    a(salu("s_mul_i32", sT0, sB, PART)); base(Sx, 4, 128)
    a(salu("s_lshl_b32", sT0, sJ, 9)); base(Swq, 10, 0); a(salu("s_sub_u32", Swq[2], 4194304, sT0))
    a(salu("s_lshl_b32", sT1, sB, 4)); a(salu("s_add_u32", sT1, sT1, sJ))
    a(salu("s_lshl_b32", sT0, sT1, 18)); base(Sk, 6, 128); base(Sv, 8, 128)
    a(salu("s_mul_i32", sT0, sT1, PART)); base(Sws, 18, 0)
    a(salu("s_lshl_b32", sT0, sJ, 18)); base(Swo, 12, 128)
    a(raw("Lrestart:", kind="label"))
    L, t1, t2, t3, t4, t5, t6 = v(0), v(1), v(2), v(3), v(4), v(5), v(6)
    a(valu("v_mbcnt_lo_u32_b32", L, -1, 0)); a(valu("v_mbcnt_hi_u32_b32", L, -1, L))
    a(valu("v_and_b32", t1, 7, L)); a(valu("v_lshlrev_b32", t1, 4, t1))
    a(valu("v_lshrrev_b32", t2, 3, L)); a(valu("v_lshl_add_u32", t3, t2, 12, t1))
    a(salu("s_lshl_b32", sT0, sW, 15)); a(salu("s_add_u32", sT0, sT0, 128))
    a(valu("v_add_u32", qXd(0), sT0, t3))
    for pp in range(1, 4): a(valu("v_subrev_u32", qXd(pp), 32 * pp, qXd(0)))
    a(valu("v_and_b32", t3, 3, t2)); a(valu("v_lshl_add_u32", t3, t3, 12, t1))
    a(valu("v_lshrrev_b32", t2, 5, L)); a(valu("v_lshl_add_u32", t3, t2, 7, t3))
    a(salu("s_lshl_b32", sT0, sW, 10)); a(salu("s_add_u32", sT0, sT0, 128 * 1024 + 128))
    a(valu("v_add_u32", qX9d, sT0, t3))
    a(valu("v_and_b32", t1, 15, L)); a(valu("v_lshlrev_b32", t1, 4, t1))
    a(valu("v_lshl_add_u32", t3, t2, 15, t1))
    a(valu("v_bfe_u32", t4, L, 4, 1)); a(valu("v_lshl_add_u32", t3, t4, 17, t3))
    a(salu("s_lshl_b32", sT0, sQH, 16)); a(salu("s_lshl_b32", sT1, sHH, 8)); a(salu("s_add_u32", sT0, sT0, sT1))
    a(valu("v_add_u32", qWd(0), sT0, t3))
    for pp in range(1, 4): a(valu("v_add_u32", qWd(pp), (8192 - PS) * pp, qWd(0)))
    first = g_x(0) + g_x9(0) + g_wq(0) + g_wq(1) + g_x(1) + g_wq(2) + g_wq(3) + g_x(2) + g_x9(1) + g_wq(4) + g_wq(5)
    Q = []; a = Q.append
    a(valu("v_lshrrev_b32", t5, 4, L)); a(valu("v_lshl_add_u32", t3, t5, 13, t1))
    a(salu("s_lshl_b32", sT0, sHH, 15)); a(salu("s_lshl_b32", sT1, sQH, 12)); a(salu("s_add_u32", sT0, sT0, sT1))
    a(salu("s_add_u32", sT0, sT0, 128)); a(valu("v_add_u32", vWo0, sT0, t3))
    a(valu("v_lshlrev_b32", vL16, 4, L))
    a(salu("s_lshl_b32", sT0, sHH, 17)); a(salu("s_lshl_b32", sT1, sQH, 13)); a(salu("s_add_u32", sT0, sT0, sT1))
    a(salu("s_add_u32", sT0, sT0, 128)); a(valu("v_add_u32", vKV(0), sT0, vL16))
    for pp in range(1, 4): a(valu("v_subrev_u32", vKV(pp), 32 * pp, vKV(0)))
    a(valu("v_add_u32", qKw(0), sGrp, vL16)); a(valu("v_add_u32", qKw(1), 4 * US, qKw(0)))
    a(valu("v_add_u32", vA8, 8 * US, qKw(0)))
    a(salu("s_xor_b32", sT0, sW, 1)); a(salu("s_mul_i32", sT2, sT0, GRP))
    a(salu("s_add_u32", sT0, sT2, 8 * US)); a(valu("v_add_u32", vB8, sT0, vL16))
    a(salu("s_add_u32", sLMw, sGrp, 8 * US + 4096)); a(salu("s_add_u32", sLMr, sT2, 8 * US + 4096))
    a(valu("v_and_b32", t1, 3, L)); a(valu("v_mul_u32_u24", t1, PS, t1)); a(valu("v_lshl_add_u32", t1, t5, 4, t1))
    a(valu("v_bfe_u32", t3, L, 2, 2)); a(valu("v_lshl_add_u32", t3, t3, 7, t1))
    a(valu("v_add_u32", qX9r, X9, t3))
    a(salu("s_mul_i32", sT0, sQH, 2 * GRP)); a(valu("v_add_u32", qXr(0), sT0, t3))
    a(valu("v_add_u32", qXr(1), 5 * US, qXr(0)))
    a(valu("v_bfe_u32", t3, L, 2, 1)); a(valu("v_mul_u32_u24", t3, US, t3)); a(valu("v_add_u32", t1, t1, t3))
    a(valu("v_bfe_u32", t3, L, 3, 1)); a(valu("v_lshl_add_u32", t1, t3, 8, t1))
    a(salu("s_lshl_b32", sT0, sQH, 7)); a(salu("s_xor_b32", sT1, sT0, 128))
    a(valu("v_add_u32", t3, sT0, t1)); a(valu("v_add_u32", t6, sT1, t1))
    a(valu("v_add_u32", Kr(0, 0), sGrp, t3)); a(valu("v_add_u32", Kr(0, 1), sGrp, t6))
    a(valu("v_add_u32", Kr(1, 0), sT2, t3)); a(valu("v_add_u32", Kr(1, 1), sT2, t6))
    a(valu("v_bfe_u32", t1, L, 2, 2)); a(valu("v_mul_u32_u24", t1, PS, t1)); a(valu("v_lshl_add_u32", t1, t2, 8, t1))
    a(valu("v_and_b32", t3, 3, L)); a(valu("v_lshl_add_u32", t3, t3, 3, t1))
    a(valu("v_mul_u32_u24", t6, US, t4)); a(valu("v_add_u32", t3, t3, t6)); a(valu("v_add_u32", t3, 4 * US, t3))
    a(valu("v_add_u32", t6, sT1, t3)); a(valu("v_add_u32", t3, sT0, t3))
    a(valu("v_add_u32", Vr(0, 0), sGrp, t3)); a(valu("v_add_u32", Vr(0, 1), sGrp, t6))
    a(valu("v_add_u32", Vr(1, 0), sT2, t3)); a(valu("v_add_u32", Vr(1, 1), sT2, t6))
    a(valu("v_mul_u32_u24", t6, GRP, t4)); a(valu("v_add_u32", t1, t1, t6))
    a(valu("v_and_b32", t3, 1, L)); a(valu("v_lshl_add_u32", t1, t3, 4, t1))
    a(valu("v_bfe_u32", t3, L, 1, 1)); a(valu("v_lshl_add_u32", t1, t3, 3, t1))
    a(salu("s_lshl_b32", sT2, sW, 6)); a(valu("v_add_u32", vWpat, sT2, t1))
    a(salu("s_mul_i32", sT2, sHH, 2 * GRP)); a(salu("s_add_u32", sT2, sT2, US)); a(valu("v_add_u32", t1, sT2, t1))
    a(valu("v_add_u32", qWr(0, 0), sT0, t1)); a(valu("v_add_u32", qWr(0, 1), sT1, t1))
    a(valu("v_add_u32", qWr(1, 0), 4 * US, qWr(0, 0))); a(valu("v_add_u32", qWr(1, 1), 4 * US, qWr(0, 1)))
    a(salu("s_mul_i32", sT2, sQH, 4 * US)); a(salu("s_lshl_b32", sOw0, sHH, 12)); a(salu("s_add_u32", sT2, sT2, sOw0))
    a(salu("s_lshl_b32", sT0, sT0, 4)); a(salu("s_lshl_b32", sT1, sT1, 4))
    a(salu("s_add_u32", sOw0, sT2, sT0)); a(salu("s_add_u32", sOw1, sT2, sT1))
    a(valu("v_mov_b32", t1, "0x3f803f80"))
    for r in range(4): a(valu("v_accvgpr_write_b32", (ONES[r], "ones"), t1))
    return P, first, Q

def build_main(o):
    P, first, Q = prologue(o)
    sc = Sched()
    F = sc.f
    nstamp = [1]
    def stamp(g, after=()):
        if o.stamps:
            n = nstamp[0]; nstamp[0] += 1
            F(raw(f"s_memrealtime s[{64+2*n}:{65+2*n}]"), g, g, after=after)
    for i in first + Q: F(i, -1, -1, q="dma")
    k0, fu, lu, lub9, blk_last = {}, {}, {}, {}, {}
    for i in range(16):
        k0[i] = sc.n
        if i < 15: order = [(f, b) for f in range(8) for b in range(5) if b < 4 or f < 4]
        else: order = [(f, 4) for f in range(4)] + [(f, b) for b in range(4) for f in range(8)]
        for f, b in order:
            d = ACC(b, f) if b < 4 else A9(f)
            bb = (Bq(i, b), f"x{i}.{b}") if b < 4 else (B9(i), f"x{i}.4")
            n = sc.m(mfma((d, f"q{i}.{b}.{f}"), (Aq(f), f"w{i}.{f}"), bb, 0 if i == 0 else (d, f"q{i-1}.{b}.{f}")))
            fu.setdefault((i, f), n); lu[(i, f)] = n
            if b == 4: lub9[i] = n
            blk_last[(b, f)] = n
    k0[16] = sc.n
    def rdA(i, f):
        u = WQU[i % 6]; win = 0 if u <= 4 else 1
        off = (u - 1 - 4 * win) * US + ((f >> 1) & 1) * 64 + (f & 1) * 32
        return [dsr(TR, (Aq(f).sub(2 * h, 2), f"w{i}.{f}"), qWr(win, f >> 2), off + 512 * h) for h in range(2)]
    def rdB(i, b):
        u = XU[(i >> 1) % 3]; win = 1 if u == 5 else 0
        return dsr(B128, (Bq(i, b), f"x{i}.{b}"), qXr(win), (u - 5 * win) * US + (b >> 1) * GRP + (b & 1) * 512 + (i & 1) * 64)
    def rdB9(i):
        return dsr(B128, (B9(i), f"x{i}.4"), qX9r, ((i >> 2) & 1) * GRP + ((i >> 1) & 1) * 512 + (i & 1) * 64)
    bpre = F(barrier(vm=("x0", "xn0", "wq0")), -1, -1, q="dma")
    stamp(-1, [bpre])
    prev = []
    for x in rdA(0, 0) + [rdB(0, b) for b in range(4)] + [rdB9(0)] + rdA(0, 1) + rdA(0, 2):
        prev.append(F(x, -1, -1, q="lds", after=[bpre]))
    for x in sum((rdA(0, f) for f in range(3, 8)), []) + [rdB(1, b) for b in range(4)] + [rdB9(i) for i in (1, 2, 3)]:
        prev.append(F(x, -1, 5, q="lds", after=[bpre]))
    BQ = {}
    kvw = []
    for i in range(16):
        g = k0[i] + (12 if i == 0 else 8)
        vm = []
        if i < 15:
            vm.append(f"wq{i+1}")
            if i & 1: vm.append(f"x{(i+1)//2}")
            if i % 4 == 3: vm.append(f"xn{(i+1)//4}")
        bq = BQ[i] = F(barrier(vm=vm), g, g, after=prev)
        prev = []
        end = k0[i + 1] + 2
        ops = []
        if i + 6 < 16: ops += g_wq(i + 6)
        if i % 2 == 0 and i // 2 + 3 < 8: ops += g_x(i // 2 + 3)
        if i % 4 == 0 and i // 4 + 2 < 4: ops += g_x9(i // 4 + 2)
        if i == 10: ops += g_kv(1, 0, o) + g_kv(1, 1, o)
        if i == 11: ops += g_kv(1, 2, o)
        if i == 12: ops += g_kv(1, 3, o)
        if i < 8:
            for n in (2 * i, 2 * i + 1):
                kv, m = n >> 3, n & 7
                ops.append(vload((KVst(kv, m), f"st{n}"), vKV(0), (Sk, Sv)[kv], s4096 if m >= 4 else 0, 1024 * (m & 3), o.kvflag))
        for x in ops: F(x, g, g + 16, q="dma", after=[bq])
        parts = {12: [0], 13: [1], 14: [2, 3]}.get(i, [])
        for part in parts:
            for pp in range(4):
                n = 4 * part + pp
                kvw.append(F(dsw("ds_write_b128", qKw(part >> 1), (KVst(n >> 3, n & 7), f"st{n}"), (part & 1) * US + PS * pp),
                             g, k0[i + 1] - 1, q="kvw", after=[bq]))
        if i < 15:
            for f in range(8):
                for x in rdA(i + 1, f):
                    prev.append(F(x, max(lu[(i, f)], g), max(min(fu[(i + 1, f)] - 6, end), lu[(i, f)]), q="ldsA", after=[bq]))
            if i & 1:
                for ii in (i + 1, i + 2):
                    for b in range(4): prev.append(F(rdB(ii, b), g, k0[i + 1] - (8 if ii == i + 1 else 0), q="ldsB", after=[bq]))
            if i % 4 == 3:
                for ii in range(i + 1, i + 5):
                    prev.append(F(rdB9(ii), max(g, lub9[i]) if ii == i + 4 else g, k0[i + 1] - 4, q="ldsB9", after=[bq]))
    stamp(k0[15])
    NU = 72
    blk = lambda U: (0, 1, 2, 3, 4, 0, 1, 2, 3)[U % 9]
    isY = lambda U: 1 if U % 9 >= 5 else 0
    pre0, preL, qk0, qkL, pv0, pvL, slot = {}, {}, {}, {}, {}, {}, {}
    def emit_pre(b):
        pre0[b] = sc.n
        for t in range(4):
            preL[b] = sc.m(mfma((NM(b), f"pm{b}"), (KF(0, 0, t), "k0.0"), (QF(b, t), f"Q{b}"), 0 if t == 0 else (NM(b), f"pm{b}")))
    def emit_qk(U):
        qk0[U] = sc.n; b, y, e = blk(U), isY(U), U // 9
        for t in range(4):
            for h in range(2):
                d = SB(U & 1).sub(4 * h, 4)
                qkL[U] = sc.m(mfma((d, f"s{U}"), (KF(y, h, t), f"k{e}.{y}"), (QF(b, t), f"Q{b}"),
                                   (NM(b), f"nm{b}") if t == 0 else (d, f"s{U}")))
    def emit_pv(U):
        pv0[U] = sc.n; b, y, e = blk(U), isY(U), U // 9
        first_ = U < 5
        pU = U - (9 if b == 4 else (5 if y else 4))
        sc.m(mfma((LS(b), f"l{U}"), (ONES, "ones"), (PB(U & 1), f"p{U}"), 0 if first_ else (LS(b), f"l{pU}")))
        for d in range(8):
            acc = ACC(b, d) if b < 4 else O9(d)
            pvL[U] = sc.m(mfma((acc, f"o{U}"), (VF(y, d), f"v{e}.{y}"), (PB(U & 1), f"p{U}"), 0 if first_ else (acc, f"o{pU}")))
    emit_pre(0); emit_pre(1); emit_qk(0)
    for U in range(NU + 1):
        slot[U] = sc.n
        if U + 2 < 5: emit_pre(U + 2)
        if U + 1 < NU: emit_qk(U + 1)
        if U >= 1: emit_pv(U - 1)
    attn_end = sc.n - 1
    ou0, ouL = {}, {}
    for p in range(4):
        for qb in range(9):
            n = 9 * p + qb; ou0[n] = sc.n
            for ks in range(8):
                for u in range(2):
                    d = SB(n & 1).sub(4 * u, 4)
                    ouL[n] = sc.m(mfma((d, f"r{n}"), (Ao(p, ks, u), f"wo{p}"), (Bo(qb, ks), f"of{qb}"), 0 if ks == 0 else (d, f"r{n}")))
    last = sc.n - 1
    def pack_q(src, dst, tsrc, tdst, lo, hi, q):
        ops = []
        for m in range(4): ops.append(valu("v_pk_mul_f32", (src.sub(2 * m, 2), "t"), (src.sub(2 * m, 2), tsrc[m >> 1]), sC))
        for m in range(4): ops.append(valu("v_cvt_pk_bf16_f32", (dst[m], "t2"), (src[2 * m], "t"), (src[2 * m + 1], "t")))
        ops.append(swap("v_permlane32_swap_b32", (dst[0], "t2"), (dst[2], "t2"), tdst, tdst))
        ops.append(swap("v_permlane32_swap_b32", (dst[1], "t2"), (dst[3], "t2"), tdst, tdst))
        return [F(x, lo, hi, q=q) for x in ops]
    q9w = []
    for t in range(2):
        l = pack_q(SB(t), PB(t), [f"q15.4.{2*t}", f"q15.4.{2*t+1}"], "q9p", blk_last[(4, 2 * t + 1)] + 3, pre0[0] - 2, "qe")
        q9w.append(F(dsw("ds_write_b128", vA8, (PB(t), "q9p"), 1024 * t), k0[15] + 8, qk0[0] - 1, q="q9w", after=[l[-1], BQ[15]]))
    for b in range(4):
        for t in range(4):
            pack_q(V(32 * b + 8 * t, 8), QF(b, t), [f"q15.{b}.{2*t}", f"q15.{b}.{2*t+1}"], f"Q{b}",
                   blk_last[(b, 2 * t + 1)] + 3, pre0[b] - 1 + t, "qe")
    for b in range(5):
        n = NM(b); pm = f"pm{b}"; nm = f"nm{b}"
        ops = [valu("v_accvgpr_read_b32", vT1, SAV(b)),
               valu("v_max3_f32", n[0], (n[0], pm), (n[1], pm), vT1), valu("v_max3_f32", n[0], n[0], (n[2], pm), (n[3], pm)),
               valu("v_mov_b32", n[1], n[0]), swap("v_permlane32_swap_b32", n[0], n[1]), valu("v_max_f32", n[0], n[0], n[1]),
               valu("v_mov_b32", n[1], n[0]), swap("v_permlane16_swap_b32", n[0], n[1]),
               I(f"v_min_f32_e64 {n[0]}, -{n[0]}, -{n[1]}", "valu", rd=[n[0], n[1]], wr=[(n[0], nm)])]
        ops += [valu("v_mov_b32", (n[r], nm), (n[0], nm)) for r in (1, 2, 3)]
        for x in ops: F(x, min(preL[b] + 3, qk0[b] - 1), qk0[b] - 1, q="nm")
    for U in range(NU):
        s_, p_ = SB(U & 1), PB(U & 1)
        hi = (qk0[U + 2] if U + 2 < NU else pv0[U]) - 1
        hi = min(hi, pv0[U] - 1)
        lo = min(qkL[U] + 3, hi)
        loc = max(lo, pvL[U - 2]) if U >= 2 else lo
        ex = [F(trans("v_exp_f32", (s_[j], f"e{U}"), (s_[j], f"s{U}")), lo, hi - (1 if hi > lo else 0), q="exp") for j in range(8)]
        for m in range(4):
            F(valu("v_cvt_pk_bf16_f32", (p_[m], f"p{U}"), (s_[2 * m], f"e{U}"), (s_[2 * m + 1], f"e{U}")),
              loc, hi, q="cvt", after=[ex[min(2 * m + 2, 7)]] + (q9w if U < 2 else []))
    def rdK(e, y):
        return [dsr(B128, (KF(y, h, t), f"k{e}.{y}"), Kr(y, t >> 1), (e & 1) * 2 * US + 512 * h + 64 * (t & 1))
                for t in range(4) for h in range(2)]
    def rdV(e, y):
        return [dsr(TR, (VF(y, d).sub(2 * h, 2), f"v{e}.{y}"), Vr(y, d >> 2), (e & 1) * 2 * US + 512 * h + 32 * (d & 3))
                for d in range(8) for h in range(2)]
    BB = {}
    for e in range(8):
        U0 = 9 * e
        rd = []
        if e == 0:
            for x in rdK(0, 0): rd.append(F(x, k0[14], pre0[0] - 6, q="ldsK", after=[kvw[7]]))
            for x in rdV(0, 0): rd.append(F(x, k0[15], pv0[0] - 6, q="ldsV", after=[kvw[15]]))
            g = slot[0] - 1
            ba = F(barrier(), g, g, after=q9w + kvw)
            for t in range(4):
                F(dsr(B128, (QF(4, t), "Q4"), vA8 if t < 2 else vB8, 1024 * (t & 1)), g, pre0[4] - 6, q="ldsK", after=[ba])
        else:
            g = slot[U0 - 2] - 1
            wk = F(waitvm(f"k{e}"), g, g + 4, q="ldsK")
            for x in rdK(e, 0): rd.append(F(x, g, slot[U0 - 1] - 6, q="ldsK"))
            g = slot[U0 - 1] - 1
            ba = F(barrier(vm=[f"v{e}"], lgkm=False), g, g, after=[wk])
            for x in rdV(e, 0): rd.append(F(x, g, pv0[U0] - 6, q="ldsV", after=[ba]))
        gb = slot[U0 + 3] - 1 + (8 if e == 0 else 0)
        for x in rdK(e, 1): rd.append(F(x, g, gb - 5, q="ldsK", after=[ba]))
        for x in rdV(e, 1): rd.append(F(x, max(g, pvL[U0 - 1]) if e else g, gb - 5, q="ldsV", after=[ba]))
        bb = BB[e] = F(barrier(vm=["wo0"] if e == 7 else []), gb, gb, after=rd)
        if e in (0, 3, 6, 7): stamp(gb, [bb])
        ops = []
        if e < 6:
            for part in range(4): ops += g_kv(e + 2, part, o)
        if e == 6:
            ops += [valu("v_mov_b32", vKV(0), vWo0)] + [valu("v_subrev_u32", vKV(pp), 32 * pp, vWo0) for pp in (1, 2, 3)]
            for part in range(4): ops += g_wo(0, part)
        for x in ops: F(x, gb, slot[U0 + 7] - 3, q="dma", after=[bb])
    U0 = 63
    vW = lambda win: Kr(0, win)
    vOw = lambda hf: Vr(0, hf)
    vBr = lambda win: Kr(1, win)
    vLMw, vLMr = Vr(1, 0), Vr(1, 1)
    gb = BB[7].lo
    adr = [valu("v_mov_b32", vW(0), vWpat), valu("v_add_u32", vW(1), 4 * US, vWpat),
           valu("v_bfe_u32", vLMr, vL16, 1, 7), valu("v_add_u32", vLMw, sLMw, vLMr), valu("v_add_u32", vLMr, sLMr, vLMr),
           valu("v_add_u32", vOw(0), sOw0, vL16), valu("v_add_u32", vOw(1), sOw1, vL16),
           valu("v_add_u32", vBr(0), 2 * US, vL16), valu("v_add_u32", vBr(1), 6 * US, vL16)]
    adr = [F(x, gb, gb + 12, q="adr", after=[BB[7]]) for x in adr]
    def rdAo(p):
        ops = []
        for ks in range(8):
            unit = KVU(p & 1)[ks >> 1]; win = unit >> 2
            for u in range(2):
                for h in range(2):
                    ops.append(dsr(TR, (Ao(p, ks, u).sub(2 * h, 2), f"wo{p}"), vW(win),
                                   (unit & 3) * US + (ks & 1) * 2 * GRP + 512 * h + 32 * u))
        return ops
    gc = slot[U0 + 8] - 1
    rd = []
    for n, x in enumerate(rdAo(0)):
        rd.append(F(x, qkL[U0 + 4] if n < 16 else pvL[U0 + 4], gc - 5, q="ldsK", after=[adr[-1]]))
    g = pvL[U0 + 4] + 3
    t9 = f"o{U0+4}"
    n9 = NM(4)
    raww = [valu("v_accvgpr_read_b32", vT0, (LS(4)[0], f"l{U0+4}")), valu("v_mov_b32", vT1, (n9[0], "nm4")),
            valu("v_mov_b32", n9[1], vT0), dsw("ds_write_b64", vLMw, V(254, 2), 0)]
    raww += [dsw("ds_write_b128", vA8, (O9(4 + d), t9), 1024 * d) for d in range(4)]
    raww = [F(x, g, pvL[U0 + 5], q="ep", after=[adr[-1]]) for x in raww]
    bc = F(barrier(), gc, gc, after=rd + raww)
    ops = []
    for part in range(4): ops += g_wo(1, part)
    wo1_units = KVU(0)
    ops = []
    for part in range(4): ops += group(wo1_units[part] * US, sGrp, vKV, Swo, part * 65536 + 256, "", "wo1")
    for x in ops: F(x, gc, attn_end, q="dma", after=[bc])
    ow = []
    def norm_block(b):
        U = U0 + 5 + b; lo = min(pvL[U] + 3, attn_end); a32 = V(32 * b, 32)
        ops = [valu("v_accvgpr_read_b32", vT1, (LS(b)[0], f"l{U}")), trans("v_rcp_f32", vT0, vT1),
               valu("v_mov_b32", vTs, vT1) if b == 0 else valu("v_add_f32", vTs, vTs, vT1)]
        for k in range(4):
            for m in range(4):
                r = a32.sub(8 * k + 2 * m, 2)
                ops.append(valu("v_pk_mul_f32", (r, "n"), (r, f"o{U}"), V(254, 2), extra="op_sel_hi:[1,0]"))
            for m in range(4):
                ops.append(valu("v_cvt_pk_bf16_f32", (a32[4 * k + m], "of"), (a32[8 * k + 2 * m], "n"), (a32[8 * k + 2 * m + 1], "n")))
            ops.append(dsw("ds_write_b128", vOw(k >> 1), (a32.sub(4 * k, 4), "of"), (2 + (b >> 1)) * US + (b & 1) * 8192 + (k & 1) * 1024))
        for x in ops: ow.append(F(x, lo, attn_end, q="ep"))
    norm_block(0); norm_block(1)
    rcv = V(216, 16); own = SB(U0 + 7 & 1)
    mr = [dsr("ds_read_b64", n9.sub(2, 2), vLMr, 0)] + [dsr(B128, (rcv.sub(4 * d, 4), "rcv"), vB8, 1024 * d) for d in range(4)]
    mr = [F(x, gc, gc + 4, q="ldsV", after=[bc]) for x in mr]
    ops = [valu("v_sub_f32", n9[3], (n9[0], "nm4"), n9[3]), trans("v_exp_f32", n9[3], n9[3]),
           valu("v_fma_f32", n9[1], n9[2], n9[3], n9[1]), trans("v_rcp_f32", vT0, n9[1]),
           valu("v_add_f32", vTs, vTs, n9[1]), salu("s_lshl_b32", sT0, sW, 11), valu("v_add_u32", vLMw, sT0, vBr(1))]
    for k in range(2):
        for m in range(8): ops.append(valu("v_accvgpr_read_b32", (own[m], "own"), (A(128 + 8 * k + m), t9)))
        for m in range(8): ops.append(valu("v_fma_f32", (own[m], "mg"), (rcv[8 * k + m], "rcv"), n9[3], (own[m], "own")))
        for m in range(4): ops.append(valu("v_pk_mul_f32", (own.sub(2 * m, 2), "n"), (own.sub(2 * m, 2), "mg"), V(254, 2), extra="op_sel_hi:[1,0]"))
        for m in range(4): ops.append(valu("v_cvt_pk_bf16_f32", (rcv[8 * k + m], "of"), (own[2 * m], "n"), (own[2 * m + 1], "n")))
        ops.append(dsw("ds_write_b128", vLMw, (rcv.sub(8 * k, 4), "of"), 3 * US + 1024 * k))
    for x in ops: ow.append(F(x, pv0[U0 + 7], attn_end, q="ep", after=mr))
    norm_block(2); norm_block(3)
    ops = [salu("s_lshl_b32", sT0, sW, 2), valu("v_add_u32", vLMr, sT0, vBr(1)), dsw("ds_write_b32", vLMr, vTs, FLAG - 6 * US)]
    for x in ops: ow.append(F(x, attn_end, attn_end, q="ep"))
    b1 = F(barrier(), attn_end, attn_end, q="dma", after=ow)
    stamp(attn_end, [b1])
    fl = V(216, 4)
    def rdBo(qb, ks):
        if qb < 8: return dsr(B128, (Bo(qb, ks), f"of{qb}"), vBr(qb >> 2), ((qb >> 1) & 1) * US + (qb & 1) * 8192 + 1024 * ks)
        return dsr(B128, (Bo(qb, ks), f"of{qb}"), vBr(1), 3 * US + 1024 * ks)
    gd = {p: ou0[9 * p + 5] - 1 for p in range(3)}
    rd = []
    for ks in range(8): rd.append(F(rdBo(0, ks), attn_end, attn_end, q="ldsB", after=[b1]))
    fr = F(dsr(B128, fl, vBr(1), FLAG - 6 * US), attn_end, attn_end, q="ldsB")
    chk = [valu("v_add_f32", fl[0], fl[0], fl[1]), valu("v_add_f32", fl[2], fl[2], fl[3]), valu("v_add_f32", fl[0], fl[0], fl[2]),
           raw(f"v_cmp_nge_f32 vcc, {hex(THR)}, {fl[0]}", rd=[fl[0]], kind="valu"),
           raw("s_cmp_eq_u32 s54, 0"), raw("s_cselect_b64 vcc, vcc, 0"), raw("s_cbranch_vccnz Lslow"),
           salu("s_lshl_b32", sT0, sW, 10), valu("v_add_u32", vA8, sT0, vL16)]
    chk = [F(x, attn_end + 6, attn_end + 12, q="dma", after=[fr]) for x in chk]
    for qb in range(1, 9):
        for ks in range(8):
            rd.append(F(rdBo(qb, ks), attn_end, min(ou0[qb] - 6 + 2 * ks, gd[0] - 5), q="ldsB", after=[chk[6]] if qb >= 4 else []))
    wo_units = {2: KVU(1), 3: KVU(0)}
    def rdAo2(p, units):
        ops = []
        for ks in range(8):
            unit = units[ks >> 1]; win = unit >> 2
            for u in range(2):
                for h in range(2):
                    ops.append(dsr(TR, (Ao(p, ks, u).sub(2 * h, 2), f"wo{p}"), vW(win),
                                   (unit & 3) * US + (ks & 1) * 2 * GRP + 512 * h + 32 * u))
        return ops
    allu = {1: wo1_units, **wo_units}
    for p in range(3):
        bd = F(barrier(vm=[f"wo{p+1}"]), gd[p], gd[p], after=rd)
        if p + 2 < 4:
            ops = []
            for part in range(4): ops += group(allu[p + 2][part] * US, sGrp, vKV, Swo, part * 65536 + 256 * (p + 2), "", f"wo{p+2}")
            for x in ops: F(x, gd[p], gd[p] + 30, q="dma", after=[bd])
        rd = [F(x, gd[p], ou0[9 * p + 9] - 6, q="ldsK", after=[bd]) for x in rdAo2(p + 1, allu[p + 1])]
    for n in range(36):
        s_, p_ = SB(n & 1), PB(n & 1)
        lo = min(ouL[n] + 3, last); hi = min(lo + 8, last)
        ops = [valu("v_cvt_pk_bf16_f32", (p_[m], f"rp{n}"), (s_[2 * m], f"r{n}"), (s_[2 * m + 1], f"r{n}")) for m in range(4)]
        ops += [salu("s_mov_b32", sSt, n * 4096), vstore((p_, f"rp{n}"), vA8, Sws, sSt, 0, o.stflag)]
        for x in ops: F(x, lo, hi, q="st", after=[chk[-1]])
    seq = sc.run()
    seq = P + seq
    check_tags(seq)
    seq, nops = pad_hazards(seq)
    sys.stderr.write(f"mfma {len(sc.bb)} instrs {len(seq)} over {sc.stats['over']} idle {sc.stats['idle']} waits {sc.stats['waits']} nop-states {nops}\n")
    marks = dict(q_end=k0[16], attn_end=attn_end)
    return seq, nstamp[0], marks

def tail_and_slow(o, nst):
    T = []; a = T.append
    if o.stamps:
        a(f"s_memrealtime s[{64+2*nst}:{65+2*nst}]"); a("s_waitcnt vmcnt(0)")
        a(f"s_memrealtime s[{66+2*nst}:{67+2*nst}]"); a("s_waitcnt lgkmcnt(0)")
        a("s_cmp_lg_u32 s3, 0"); a("s_cbranch_scc1 Lend")
        a("s_mov_b32 s40, s18"); a("s_mov_b32 s41, s19"); a("s_mov_b32 s42, 0x10000000"); a("s_mov_b32 s43, 0x20000")
        a(f"s_lshl_b32 s52, s2, 6"); a(f"s_add_u32 s52, s52, {STAMP_OFF}"); a("v_mov_b32 v1, s52")
        a("s_mov_b64 exec, 1")
        for n in range(nst + 2):
            a(f"v_mov_b32 v2, s{64+2*n}"); a(f"buffer_store_dword v2, v1, s[40:43], 0 offen offset:{4*n}")
    a("Lend:"); a("s_endpgm")
    a("Lslow:"); a("s_waitcnt vmcnt(0) lgkmcnt(0)"); a("s_nop 7"); a("s_barrier")
    a("v_mbcnt_lo_u32_b32 v0, -1, 0"); a("v_mbcnt_hi_u32_b32 v0, -1, v0")
    a("v_and_b32 v1, 15, v0"); a("v_lshlrev_b32 v1, 8, v1"); a("v_lshrrev_b32 v2, 4, v0"); a("v_lshl_add_u32 v1, v2, 4, v1")
    a("s_lshl_b32 s52, s48, 17"); a("s_add_u32 s52, s52, 128"); a("s_lshl_b32 s53, s49, 7"); a("s_add_u32 s62, s52, s53")
    a("v_add_u32 v2, s62, v1"); a("s_xor_b32 s53, s53, 128"); a("s_add_u32 s62, s52, s53"); a("v_add_u32 v3, s62, v1")
    for b in range(5): a(f"v_mov_b32 v{8+b}, 0xff800000")
    a("s_mov_b32 s45, 0"); a("Lslow_loop:")
    for t in range(4): a(f"buffer_load_dwordx4 v[{16+4*t}:{19+4*t}], v{2+(t>>1)}, s[28:31], s45 offen offset:{64*(t&1)}")
    a("s_waitcnt vmcnt(0)")
    for b in range(5):
        for t in range(4):
            a(f"v_mfma_f32_16x16x32_bf16 {NM(b)}, v[{16+4*t}:{19+4*t}], {QF(b,t)}, {0 if t == 0 else NM(b)}")
    a("s_nop 7"); a("s_nop 1")
    for b in range(5):
        n = NM(b); a(f"v_max3_f32 v{8+b}, v{8+b}, {n[0]}, {n[1]}"); a(f"v_max3_f32 v{8+b}, v{8+b}, {n[2]}, {n[3]}")
    a("s_add_u32 s45, s45, 4096"); a("s_cmp_lt_u32 s45, 131072"); a("s_cbranch_scc1 Lslow_loop")
    for b in range(5): a(f"v_accvgpr_write_b32 {SAV(b)}, v{8+b}")
    a("s_mov_b32 s54, 1"); a("s_branch Lrestart")
    return T

def reduce_kernel(o):
    T = []; a = T.append
    a("s_cmp_ge_u32 s2, 576"); a("s_cbranch_scc1 Lrend")
    if o.stamps: a("s_memrealtime s[28:29]")
    a("s_load_dwordx2 s[4:5], s[0:1], 56"); a("s_load_dwordx2 s[8:9], s[0:1], 40")
    a(f"s_mul_hi_u32 s12, s2, {(1 << 32) // 36 + 1}"); a("s_mul_i32 s13, s12, 36"); a("s_sub_u32 s13, s2, s13")
    a(f"s_mul_hi_u32 s14, s13, {(1 << 32) // 9 + 1}"); a("s_mul_i32 s15, s14, 9"); a("s_sub_u32 s15, s13, s15")
    a(f"s_mul_i32 s16, s12, {16 * PART}"); a("s_lshl_b32 s17, s13, 12"); a("s_add_u32 s16, s16, s17")
    a("v_lshlrev_b32 v1, 4, v0")
    a(f"s_mov_b32 s6, {256 * PART}"); a("s_mov_b32 s7, 0x20000"); a(f"s_mov_b32 s10, {16 * PART}"); a("s_mov_b32 s11, 0x20000")
    a("s_waitcnt lgkmcnt(0)")
    for j in range(16):
        a(f"buffer_load_dwordx4 v[{16+4*j}:{19+4*j}], v1, s[4:7], s16 offen")
        if j < 15: a(f"s_add_u32 s16, s16, {PART}")
    a("s_mul_i32 s18, s12, 144"); a("s_lshl_b32 s19, s15, 4"); a("s_add_u32 s18, s18, s19"); a("s_lshl_b32 s18, s18, 10")
    a("s_lshl_b32 s19, s14, 8"); a("s_add_u32 s18, s18, s19")
    a("v_and_b32 v2, 15, v0"); a("v_lshlrev_b32 v2, 10, v2"); a("v_and_b32 v3, 0xf0, v0"); a("v_add_u32 v2, v2, v3")
    a("s_mov_b32 s20, 0xffff0000")
    for j in range(16):
        a(f"s_waitcnt vmcnt({15-j})")
        for m in range(4):
            r = 16 + 4 * j + m
            if j == 0:
                a(f"v_lshlrev_b32 v{4+2*m}, 16, v{r}"); a(f"v_and_b32 v{5+2*m}, s20, v{r}")
            else:
                a(f"v_lshlrev_b32 v12, 16, v{r}"); a(f"v_and_b32 v13, s20, v{r}")
                a(f"v_pk_add_f32 v[{4+2*m}:{5+2*m}], v[{4+2*m}:{5+2*m}], v[12:13]")
    for m in range(4): a(f"v_cvt_pk_bf16_f32 v{12+m}, v{4+2*m}, v{5+2*m}")
    a("s_nop 1"); a("v_permlane32_swap_b32 v12, v14"); a("v_permlane32_swap_b32 v13, v15")
    a("buffer_store_dwordx4 v[12:15], v2, s[8:11], s18 offen")
    if o.stamps:
        a("s_waitcnt vmcnt(0)"); a("s_memrealtime s[30:31]"); a("s_waitcnt lgkmcnt(0)")
        a("s_mov_b32 s6, 0x10000000"); a("s_lshl_b32 s16, s2, 3"); a(f"s_add_u32 s16, s16, {STAMP_OFF + 65536}")
        a("v_mov_b32 v1, s16"); a("v_mov_b32 v2, s28"); a("v_mov_b32 v3, s30")
        if o.dbg:
            a("s_cmp_lg_u32 s2, 575"); a("s_cbranch_scc1 Lnodbg")
            a("s_load_dwordx2 s[8:9], s[0:1], 48"); a("s_mov_b32 s10, 256")
            a("v_lshlrev_b32 v4, 6, v0"); a(f"s_mov_b32 s17, {STAMP_OFF}")
            for n in range(3): a(f"buffer_load_dwordx4 v[{16+4*n}:{19+4*n}], v4, s[4:7], s17 offen offset:{16*n}")
            a("v_mov_b32 v5, 0"); a("s_waitcnt vmcnt(0) lgkmcnt(0)"); a("v_not_b32 v6, v16")
            for n in range(12): a(f"buffer_atomic_umax v{16+n}, v5, s[8:11], 0 offen offset:{4*n}")
            a("buffer_atomic_umax v6, v5, s[8:11], 0 offen offset:60")
            a("buffer_atomic_umax v2, v5, s[8:11], 0 offen offset:52")
            a("buffer_atomic_umax v3, v5, s[8:11], 0 offen offset:56")
            a("Lnodbg:")
        a("v_cmp_eq_u32 vcc, 0, v0"); a("s_and_saveexec_b64 s[22:23], vcc"); a("s_cbranch_execz Lrend")
        a("buffer_store_dwordx2 v[2:3], v1, s[4:7], 0 offen")
    a("Lrend:"); a("s_endpgm")
    return T

KD = """.amdhsa_kernel {name}
  .amdhsa_next_free_vgpr {vg}
  .amdhsa_next_free_sgpr {sg}
  .amdhsa_accum_offset {acc}
  .amdhsa_group_segment_fixed_size 0
  .amdhsa_kernarg_size 64
  .amdhsa_user_sgpr_count 2
  .amdhsa_user_sgpr_kernarg_segment_ptr 1
  .amdhsa_system_sgpr_workgroup_id_x 1
  .amdhsa_float_denorm_mode_32 3
.end_amdhsa_kernel"""

def generate(o):
    hdr = [l.rstrip("\n") for l in open(f"cdna_kernels/{NAME}.s.ref") if l.startswith(";") and "launch" not in l and "grid=" not in l]
    seq, nst, marks = build_main(o)
    L = hdr + [f"; @launch kernel={NAME}_kernel grid=(256,1,1) block=(256,1,1) lds={LDSB}",
               "; @launch kernel=mha_reduce_kernel grid=(576,1,1) block=(256,1,1) lds=0",
               '.amdgcn_target "amdgcn-amd-amdhsa--gfx950"', ".text",
               f".globl {NAME}_kernel", ".p2align 8", f".type {NAME}_kernel,@function", f"{NAME}_kernel:"]
    L += [i.text for i in seq] + tail_and_slow(o, nst)
    L += [".globl mha_reduce_kernel", ".p2align 8", ".type mha_reduce_kernel,@function", "mha_reduce_kernel:"] + reduce_kernel(o)
    L += ['.section .rodata,"a"', ".p2align 6", KD.format(name=f"{NAME}_kernel", vg=512, sg=102, acc=256),
          ".p2align 6", KD.format(name="mha_reduce_kernel", vg=80, sg=32, acc=80)]
    return "\n".join(L) + "\n"

if __name__ == "__main__":
    o = Opt()
    out = sys.argv[1]
    for kv in sys.argv[2:]:
        k, v_ = kv.split("=", 1)
        setattr(o, k, {"1": True, "0": False}.get(v_, v_) if k in ("stamps","dbg") else v_)
    open(out, "w").write(generate(o))
```

```python
import sys, math, struct
from dsl import *

NAME = "standalone__mha_block_cached__near_ridge"
US, GRP, PS = 17024, 4224, 1056
X9 = 9 * US
FLAG = X9 + 8448
LDSB = 163840
PART = 147456
STAMP_OFF = 0x4000000
def fbits(x): return struct.unpack("<I", struct.pack("<f", x))[0]
CSC = fbits(math.log2(math.e) / math.sqrt(128.0))
THR = fbits(2.0 ** 40)

Sx, Swq, Sk, Sv, Swo, Sws = S(20, 4), S(24, 4), S(28, 4), S(32, 4), S(36, 4), S(40, 4)
sW, sGrp, sOff, sC, sHH, sQH, sB, sJ = S(3), S(44), S(45), S(46, 2), S(48), S(49), S(50), S(51)
sT0, sT1, sMode, sX9, s4096, sOw0, sOw1, sLMw, sLMr, sSt, sT2 = S(52), S(53), S(54), S(55), S(56), S(57), S(58), S(59), S(60), S(61), S(62)
ACC = lambda b, f: V(32 * b + 4 * f, 4)
QF = lambda b, t: (V(128 + 16 * b + 4 * t, 4) if b < 4 else A(180 + 4 * t, 4))
SB = lambda k: V(192 + 8 * k, 8)
PB = lambda k: V(208 + 4 * k, 4)
NM = lambda b: V(216 + 4 * b, 4)
Kr = lambda y, hf: V(236 + 2 * y + hf)
Vr = lambda y, hf: V(240 + 2 * y + hf)
vKV = lambda pp: V(244 + pp)
vL16, vWpat, vWo0, vA8, vB8, vTs, vT0, vT1 = V(248), V(249), V(250), V(251), V(252), V(253), V(254), V(255)
qWr = lambda win, hf: V(216 + 2 * win + hf)
qXr = lambda win: V(220 + win)
qX9r = V(222)
qKw = lambda win: V(223 + win)
qWd = lambda pp: V(225 + pp)
qXd = lambda pp: V(229 + pp)
qX9d = V(233)
KF = lambda y, h, t: A(32 * y + 4 * (2 * t + h), 4)
VF = lambda y, d: A(64 + 32 * y + 4 * d, 4)
O9 = lambda d: A(128 + 4 * d, 4)
LS = lambda b: A(160 + 4 * b, 4)
ONES = A(196, 4)
SAV = lambda b: A(248 + b)
Aq = lambda f: A(32 + 4 * f, 4)
Bq = lambda i, b: A((128, 144, 200, 216)[i % 4] + 4 * b, 4)
B9 = lambda i: A(232 + 4 * (i % 4), 4)
A9 = lambda f: V(192 + 4 * f, 4)
KVst = lambda kv, n: A(64 + 32 * kv + 4 * n, 4)
WQU = {4: 2, 5: 6, 0: 7, 1: 1, 2: 4, 3: 8}
XU = {2: 3, 0: 0, 1: 5}
KVU = lambda slot: (2 * slot, 2 * slot + 1, 4 + 2 * slot, 5 + 2 * slot)
def Ao(p, ks, u):
    n = 2 * ks + u
    return A((0 if n < 8 else 64) + 32 * (p & 1) + 4 * (n & 7), 4)
def Bo(qb, ks):
    if qb < 4: return V(32 * qb + 4 * ks, 4)
    if qb < 8: return A(128 + 32 * (qb - 4) + 4 * ks, 4)
    return V(128 + 4 * ks, 4)
TR, B128 = "ds_read_b64_tr_b16", "ds_read_b128"

class Opt:
    stamps = False
    kvflag = "nt"
    stflag = "sc1"
    dbg = False
    enc = None

def group(unit_off, base, voff, srd, soff, flags, tag):
    ops = [salu("s_add_u32", "m0", base, unit_off), salu("s_mov_b32", sOff, soff)]
    ops += [dma(voff(pp), srd, sOff, PS * pp, flags, tag) for pp in range(4)]
    return ops
def g_wq(i): return group(WQU[i % 6] * US, sGrp, qWd, Swq, i * 262144, "", f"wq{i}")
def g_x(I_): return group(XU[I_ % 3] * US, sGrp, qXd, Sx, I_ * 128, "", f"x{I_}")
def g_x9(n): return [salu("s_add_u32", "m0", sX9, X9 + (n & 1) * GRP), salu("s_mov_b32", sOff, n * 256),
                     dma(qX9d, Sx, sOff, 0, "", f"xn{n}")]
def g_kv(e, part, o):
    kv, half = part >> 1, part & 1
    return group(KVU(e & 1)[part] * US, sGrp, vKV, (Sk, Sv)[kv], e * 16384 + half * 4096, o.kvflag, f"{'kv'[kv]}{e}")
def g_wo(p, part): return group(KVU(p & 1)[part] * US, sGrp, vKV, Swo, part * 65536 + 256 * p, "", f"wo{p}")

def prologue(o):
    P = []; a = P.append
    v = lambda n: V(n)
    a(raw("s_cmp_ge_u32 s2, 256")); a(raw("s_cbranch_scc1 Lend"))
    if o.stamps: a(raw("s_memrealtime s[64:65]"))
    a(raw("s_load_dwordx16 s[4:19], s[0:1], 0"))
    a(valu("v_lshrrev_b32", v(1), 6, v(0)))
    a(valu("v_mov_b32", v(2), "0xff800000"))
    a(valu("v_readfirstlane_b32", sW, v(1)))
    for b in range(5): a(valu("v_accvgpr_write_b32", SAV(b), v(2)))
    a(salu("s_and_b32", sT0, S(2), 1)); a(salu("s_lshl_b32", sT0, sT0, 3))
    a(salu("s_bfe_u32", sT1, S(2), (3 << 16) | 3)); a(salu("s_add_u32", sB, sT0, sT1))
    a(salu("s_bfe_u32", sT0, S(2), (2 << 16) | 1)); a(salu("s_lshl_b32", sT0, sT0, 2))
    a(salu("s_lshr_b32", sT1, S(2), 6)); a(salu("s_add_u32", sJ, sT0, sT1))
    a(salu("s_lshr_b32", sHH, sW, 1)); a(salu("s_and_b32", sQH, sW, 1))
    a(salu("s_mul_i32", sGrp, sW, GRP)); a(salu("s_mul_i32", sX9, sW, PS))
    a(salu("s_mov_b32", sMode, 0)); a(salu("s_mov_b32", s4096, 4096))
    a(salu("s_mov_b32", sC[0], hex(CSC))); a(salu("s_mov_b32", sC[1], hex(CSC)))
    for srd, size in ((Sx, PART + 128), (Sk, 262144 + 128), (Sv, 262144 + 128), (Swo, 262144 + 128), (Sws, PART)):
        a(salu("s_mov_b32", srd[2], size)); a(salu("s_mov_b32", srd[3], "0x20000"))
    a(salu("s_mov_b32", Swq[3], "0x20000"))
    a(raw("s_waitcnt lgkmcnt(0)"))
    def base(srd, ptr, shift):
        a(salu("s_add_u32", srd[0], S(ptr), sT0)); a(salu("s_addc_u32", srd[1], S(ptr + 1), 0))
        if shift:
            a(salu("s_sub_u32", srd[0], srd[0], shift)); a(salu("s_subb_u32", srd[1], srd[1], 0))
    a(salu("s_mul_i32", sT0, sB, PART)); base(Sx, 4, 128)
    a(salu("s_lshl_b32", sT0, sJ, 9)); base(Swq, 10, 0); a(salu("s_sub_u32", Swq[2], 4194304, sT0))
    a(salu("s_lshl_b32", sT1, sB, 4)); a(salu("s_add_u32", sT1, sT1, sJ))
    a(salu("s_lshl_b32", sT0, sT1, 18)); base(Sk, 6, 128); base(Sv, 8, 128)
    a(salu("s_mul_i32", sT0, sT1, PART)); base(Sws, 18, 0)
    a(salu("s_lshl_b32", sT0, sJ, 18)); base(Swo, 12, 128)
    a(raw("Lrestart:", kind="label"))
    L, t1, t2, t3, t4, t5, t6 = v(0), v(1), v(2), v(3), v(4), v(5), v(6)
    a(valu("v_mbcnt_lo_u32_b32", L, -1, 0)); a(valu("v_mbcnt_hi_u32_b32", L, -1, L))
    a(valu("v_and_b32", t1, 7, L)); a(valu("v_lshlrev_b32", t1, 4, t1))
    a(valu("v_lshrrev_b32", t2, 3, L)); a(valu("v_lshl_add_u32", t3, t2, 12, t1))
    a(salu("s_lshl_b32", sT0, sW, 15)); a(salu("s_add_u32", sT0, sT0, 128))
    a(valu("v_add_u32", qXd(0), sT0, t3))
    for pp in range(1, 4): a(valu("v_subrev_u32", qXd(pp), 32 * pp, qXd(0)))
    a(valu("v_and_b32", t3, 3, t2)); a(valu("v_lshl_add_u32", t3, t3, 12, t1))
    a(valu("v_lshrrev_b32", t2, 5, L)); a(valu("v_lshl_add_u32", t3, t2, 7, t3))
    a(salu("s_lshl_b32", sT0, sW, 10)); a(salu("s_add_u32", sT0, sT0, 128 * 1024 + 128))
    a(valu("v_add_u32", qX9d, sT0, t3))
    a(valu("v_and_b32", t1, 15, L)); a(valu("v_lshlrev_b32", t1, 4, t1))
    a(valu("v_lshl_add_u32", t3, t2, 15, t1))
    a(valu("v_bfe_u32", t4, L, 4, 1)); a(valu("v_lshl_add_u32", t3, t4, 17, t3))
    a(salu("s_lshl_b32", sT0, sQH, 16)); a(salu("s_lshl_b32", sT1, sHH, 8)); a(salu("s_add_u32", sT0, sT0, sT1))
    a(valu("v_add_u32", qWd(0), sT0, t3))
    for pp in range(1, 4): a(valu("v_add_u32", qWd(pp), (8192 - PS) * pp, qWd(0)))
    first = g_x(0) + g_x9(0) + g_wq(0) + g_wq(1) + g_x(1) + g_wq(2) + g_wq(3) + g_x(2) + g_x9(1) + g_wq(4) + g_wq(5)
    Q = []; a = Q.append
    a(valu("v_lshrrev_b32", t5, 4, L)); a(valu("v_lshl_add_u32", t3, t5, 13, t1))
    a(salu("s_lshl_b32", sT0, sHH, 15)); a(salu("s_lshl_b32", sT1, sQH, 12)); a(salu("s_add_u32", sT0, sT0, sT1))
    a(salu("s_add_u32", sT0, sT0, 128)); a(valu("v_add_u32", vWo0, sT0, t3))
    a(valu("v_lshlrev_b32", vL16, 4, L))
    a(salu("s_lshl_b32", sT0, sHH, 17)); a(salu("s_lshl_b32", sT1, sQH, 13)); a(salu("s_add_u32", sT0, sT0, sT1))
    a(salu("s_add_u32", sT0, sT0, 128)); a(valu("v_add_u32", vKV(0), sT0, vL16))
    for pp in range(1, 4): a(valu("v_subrev_u32", vKV(pp), 32 * pp, vKV(0)))
    a(valu("v_add_u32", qKw(0), sGrp, vL16)); a(valu("v_add_u32", qKw(1), 4 * US, qKw(0)))
    a(valu("v_add_u32", vA8, 8 * US, qKw(0)))
    a(salu("s_xor_b32", sT0, sW, 1)); a(salu("s_mul_i32", sT2, sT0, GRP))
    a(salu("s_add_u32", sT0, sT2, 8 * US)); a(valu("v_add_u32", vB8, sT0, vL16))
    a(salu("s_add_u32", sLMw, sGrp, 8 * US + 4096)); a(salu("s_add_u32", sLMr, sT2, 8 * US + 4096))
    a(valu("v_and_b32", t1, 3, L)); a(valu("v_mul_u32_u24", t1, PS, t1)); a(valu("v_lshl_add_u32", t1, t5, 4, t1))
    a(valu("v_bfe_u32", t3, L, 2, 2)); a(valu("v_lshl_add_u32", t3, t3, 7, t1))
    a(valu("v_add_u32", qX9r, X9, t3))
    a(salu("s_mul_i32", sT0, sQH, 2 * GRP)); a(valu("v_add_u32", qXr(0), sT0, t3))
    a(valu("v_add_u32", qXr(1), 5 * US, qXr(0)))
    a(valu("v_bfe_u32", t3, L, 2, 1)); a(valu("v_mul_u32_u24", t3, US, t3)); a(valu("v_add_u32", t1, t1, t3))
    a(valu("v_bfe_u32", t3, L, 3, 1)); a(valu("v_lshl_add_u32", t1, t3, 8, t1))
    a(salu("s_lshl_b32", sT0, sQH, 7)); a(salu("s_xor_b32", sT1, sT0, 128))
    a(valu("v_add_u32", t3, sT0, t1)); a(valu("v_add_u32", t6, sT1, t1))
    a(valu("v_add_u32", Kr(0, 0), sGrp, t3)); a(valu("v_add_u32", Kr(0, 1), sGrp, t6))
    a(valu("v_add_u32", Kr(1, 0), sT2, t3)); a(valu("v_add_u32", Kr(1, 1), sT2, t6))
    a(valu("v_bfe_u32", t1, L, 2, 2)); a(valu("v_mul_u32_u24", t1, PS, t1)); a(valu("v_lshl_add_u32", t1, t2, 8, t1))
    a(valu("v_and_b32", t3, 3, L)); a(valu("v_lshl_add_u32", t3, t3, 3, t1))
    a(valu("v_mul_u32_u24", t6, US, t4)); a(valu("v_add_u32", t3, t3, t6)); a(valu("v_add_u32", t3, 4 * US, t3))
    a(valu("v_add_u32", t6, sT1, t3)); a(valu("v_add_u32", t3, sT0, t3))
    a(valu("v_add_u32", Vr(0, 0), sGrp, t3)); a(valu("v_add_u32", Vr(0, 1), sGrp, t6))
    a(valu("v_add_u32", Vr(1, 0), sT2, t3)); a(valu("v_add_u32", Vr(1, 1), sT2, t6))
    a(valu("v_mul_u32_u24", t6, GRP, t4)); a(valu("v_add_u32", t1, t1, t6))
    a(valu("v_and_b32", t3, 1, L)); a(valu("v_lshl_add_u32", t1, t3, 4, t1))
    a(valu("v_bfe_u32", t3, L, 1, 1)); a(valu("v_lshl_add_u32", t1, t3, 3, t1))
    a(salu("s_lshl_b32", sT2, sW, 6)); a(valu("v_add_u32", vWpat, sT2, t1))
    a(salu("s_mul_i32", sT2, sHH, 2 * GRP)); a(salu("s_add_u32", sT2, sT2, US)); a(valu("v_add_u32", t1, sT2, t1))
    a(valu("v_add_u32", qWr(0, 0), sT0, t1)); a(valu("v_add_u32", qWr(0, 1), sT1, t1))
    a(valu("v_add_u32", qWr(1, 0), 4 * US, qWr(0, 0))); a(valu("v_add_u32", qWr(1, 1), 4 * US, qWr(0, 1)))
    a(salu("s_mul_i32", sT2, sQH, 4 * US)); a(salu("s_lshl_b32", sOw0, sHH, 12)); a(salu("s_add_u32", sT2, sT2, sOw0))
    a(salu("s_lshl_b32", sT0, sT0, 4)); a(salu("s_lshl_b32", sT1, sT1, 4))
    a(salu("s_add_u32", sOw0, sT2, sT0)); a(salu("s_add_u32", sOw1, sT2, sT1))
    a(valu("v_mov_b32", t1, "0x3f803f80"))
    for r in range(4): a(valu("v_accvgpr_write_b32", (ONES[r], "ones"), t1))
    return P, first, Q

def build_main(o):
    P, first, Q = prologue(o)
    sc = Sched()
    F = sc.f
    nstamp = [1]
    def stamp(g, after=()):
        if o.stamps:
            n = nstamp[0]; nstamp[0] += 1
            F(raw(f"s_memrealtime s[{64+2*n}:{65+2*n}]"), g, g, after=after)
    for i in first + Q: F(i, -1, -1, q="dma")
    k0, fu, lu, lub9, blk_last = {}, {}, {}, {}, {}
    for i in range(16):
        k0[i] = sc.n
        if i < 15: order = [(f, b) for f in range(8) for b in range(5) if b < 4 or f < 4]
        else: order = [(f, 4) for f in range(4)] + [(f, b) for b in range(4) for f in range(8)]
        for f, b in order:
            d = ACC(b, f) if b < 4 else A9(f)
            bb = (Bq(i, b), f"x{i}.{b}") if b < 4 else (B9(i), f"x{i}.4")
            n = sc.m(mfma((d, f"q{i}.{b}.{f}"), (Aq(f), f"w{i}.{f}"), bb, 0 if i == 0 else (d, f"q{i-1}.{b}.{f}")))
            fu.setdefault((i, f), n); lu[(i, f)] = n
            if b == 4: lub9[i] = n
            blk_last[(b, f)] = n
    k0[16] = sc.n
    def rdA(i, f):
        u = WQU[i % 6]; win = 0 if u <= 4 else 1
        off = (u - 1 - 4 * win) * US + ((f >> 1) & 1) * 64 + (f & 1) * 32
        return [dsr(TR, (Aq(f).sub(2 * h, 2), f"w{i}.{f}"), qWr(win, f >> 2), off + 512 * h) for h in range(2)]
    def rdB(i, b):
        u = XU[(i >> 1) % 3]; win = 1 if u == 5 else 0
        return dsr(B128, (Bq(i, b), f"x{i}.{b}"), qXr(win), (u - 5 * win) * US + (b >> 1) * GRP + (b & 1) * 512 + (i & 1) * 64)
    def rdB9(i):
        return dsr(B128, (B9(i), f"x{i}.4"), qX9r, ((i >> 2) & 1) * GRP + ((i >> 1) & 1) * 512 + (i & 1) * 64)
    bpre = F(barrier(vm=("x0", "xn0", "wq0")), -1, -1, q="dma")
    stamp(-1, [bpre])
    prev = []
    for x in rdA(0, 0) + [rdB(0, b) for b in range(4)] + [rdB9(0)] + rdA(0, 1) + rdA(0, 2):
        prev.append(F(x, -1, -1, q="lds", after=[bpre]))
    for x in sum((rdA(0, f) for f in range(3, 8)), []) + [rdB(1, b) for b in range(4)] + [rdB9(i) for i in (1, 2, 3)]:
        prev.append(F(x, -1, 5, q="lds", after=[bpre]))
    BQ = {}
    kvw = []
    for i in range(16):
        g = k0[i] + (12 if i == 0 else 8)
        vm = []
        if i < 15:
            vm.append(f"wq{i+1}")
            if i & 1: vm.append(f"x{(i+1)//2}")
            if i % 4 == 3: vm.append(f"xn{(i+1)//4}")
        bq = BQ[i] = F(barrier(vm=vm), g, g, after=prev)
        prev = []
        end = k0[i + 1] + 2
        ops = []
        if i + 6 < 16: ops += g_wq(i + 6)
        if i % 2 == 0 and i // 2 + 3 < 8: ops += g_x(i // 2 + 3)
        if i % 4 == 0 and i // 4 + 2 < 4: ops += g_x9(i // 4 + 2)
        if i == 10: ops += g_kv(1, 0, o) + g_kv(1, 1, o)
        if i == 11: ops += g_kv(1, 2, o)
        if i == 12: ops += g_kv(1, 3, o)
        if i < 8:
            for n in (2 * i, 2 * i + 1):
                kv, m = n >> 3, n & 7
                ops.append(vload((KVst(kv, m), f"st{n}"), vKV(0), (Sk, Sv)[kv], s4096 if m >= 4 else 0, 1024 * (m & 3), o.kvflag))
        for x in ops: F(x, g, g + 16, q="dma", after=[bq])
        parts = {12: [0], 13: [1], 14: [2, 3]}.get(i, [])
        for part in parts:
            for pp in range(4):
                n = 4 * part + pp
                kvw.append(F(dsw("ds_write_b128", qKw(part >> 1), (KVst(n >> 3, n & 7), f"st{n}"), (part & 1) * US + PS * pp),
                             g, k0[i + 1] - 1, q="kvw", after=[bq]))
        if i < 15:
            for f in range(8):
                for x in rdA(i + 1, f):
                    prev.append(F(x, max(lu[(i, f)], g), max(min(fu[(i + 1, f)] - 6, end), lu[(i, f)]), q="ldsA", after=[bq]))
            if i & 1:
                for ii in (i + 1, i + 2):
                    for b in range(4): prev.append(F(rdB(ii, b), g, k0[i + 1] - (8 if ii == i + 1 else 0), q="ldsB", after=[bq]))
            if i % 4 == 3:
                for ii in range(i + 1, i + 5):
                    prev.append(F(rdB9(ii), max(g, lub9[i]) if ii == i + 4 else g, k0[i + 1] - 4, q="ldsB9", after=[bq]))
    stamp(k0[15])
    NU = 72
    blk = lambda U: (0, 1, 2, 3, 4, 0, 1, 2, 3)[U % 9]
    isY = lambda U: 1 if U % 9 >= 5 else 0
    pre0, preL, qk0, qkL, pv0, pvL, slot = {}, {}, {}, {}, {}, {}, {}
    def emit_pre(b):
        pre0[b] = sc.n
        for t in range(4):
            preL[b] = sc.m(mfma((NM(b), f"pm{b}"), (KF(0, 0, t), "k0.0"), (QF(b, t), f"Q{b}"), 0 if t == 0 else (NM(b), f"pm{b}")))
    def emit_qk(U):
        qk0[U] = sc.n; b, y, e = blk(U), isY(U), U // 9
        for t in range(4):
            for h in range(2):
                d = SB(U & 1).sub(4 * h, 4)
                qkL[U] = sc.m(mfma((d, f"s{U}"), (KF(y, h, t), f"k{e}.{y}"), (QF(b, t), f"Q{b}"),
                                   (NM(b), f"nm{b}") if t == 0 else (d, f"s{U}")))
    def emit_pv(U):
        pv0[U] = sc.n; b, y, e = blk(U), isY(U), U // 9
        first_ = U < 5
        pU = U - (9 if b == 4 else (5 if y else 4))
        sc.m(mfma((LS(b), f"l{U}"), (ONES, "ones"), (PB(U & 1), f"p{U}"), 0 if first_ else (LS(b), f"l{pU}")))
        for d in range(8):
            acc = ACC(b, d) if b < 4 else O9(d)
            pvL[U] = sc.m(mfma((acc, f"o{U}"), (VF(y, d), f"v{e}.{y}"), (PB(U & 1), f"p{U}"), 0 if first_ else (acc, f"o{pU}")))
    emit_pre(0); emit_pre(1); emit_qk(0)
    for U in range(NU + 1):
        slot[U] = sc.n
        if U + 2 < 5: emit_pre(U + 2)
        if U + 1 < NU: emit_qk(U + 1)
        if U >= 1: emit_pv(U - 1)
    attn_end = sc.n - 1
    ou0, ouL = {}, {}
    for p in range(4):
        for qb in range(9):
            n = 9 * p + qb; ou0[n] = sc.n
            for ks in range(8):
                for u in range(2):
                    d = SB(n & 1).sub(4 * u, 4)
                    ouL[n] = sc.m(mfma((d, f"r{n}"), (Ao(p, ks, u), f"wo{p}"), (Bo(qb, ks), f"of{qb}"), 0 if ks == 0 else (d, f"r{n}")))
    last = sc.n - 1
    def pack_q(src, dst, tsrc, tdst, lo, hi, q):
        ops = []
        for m in range(4): ops.append(valu("v_pk_mul_f32", (src.sub(2 * m, 2), "t"), (src.sub(2 * m, 2), tsrc[m >> 1]), sC))
        for m in range(4): ops.append(valu("v_cvt_pk_bf16_f32", (dst[m], "t2"), (src[2 * m], "t"), (src[2 * m + 1], "t")))
        ops.append(swap("v_permlane32_swap_b32", (dst[0], "t2"), (dst[2], "t2"), tdst, tdst))
        ops.append(swap("v_permlane32_swap_b32", (dst[1], "t2"), (dst[3], "t2"), tdst, tdst))
        return [F(x, lo, hi, q=q) for x in ops]
    q9w = []
    for t in range(2):
        l = pack_q(SB(t), PB(t), [f"q15.4.{2*t}", f"q15.4.{2*t+1}"], "q9p", blk_last[(4, 2 * t + 1)] + 3, pre0[0] - 2, "qe")
        q9w.append(F(dsw("ds_write_b128", vA8, (PB(t), "q9p"), 1024 * t), k0[15] + 8, qk0[0] - 1, q="q9w", after=[l[-1], BQ[15]]))
    for b in range(4):
        for t in range(4):
            pack_q(V(32 * b + 8 * t, 8), QF(b, t), [f"q15.{b}.{2*t}", f"q15.{b}.{2*t+1}"], f"Q{b}",
                   blk_last[(b, 2 * t + 1)] + 3, pre0[b] - 1 + t, "qe")
    for b in range(5):
        n = NM(b); pm = f"pm{b}"; nm = f"nm{b}"
        ops = [valu("v_accvgpr_read_b32", vT1, SAV(b)),
               valu("v_max3_f32", n[0], (n[0], pm), (n[1], pm), vT1), valu("v_max3_f32", n[0], n[0], (n[2], pm), (n[3], pm)),
               valu("v_mov_b32", n[1], n[0]), swap("v_permlane32_swap_b32", n[0], n[1]), valu("v_max_f32", n[0], n[0], n[1]),
               valu("v_mov_b32", n[1], n[0]), swap("v_permlane16_swap_b32", n[0], n[1]),
               I(f"v_min_f32_e64 {n[0]}, -{n[0]}, -{n[1]}", "valu", rd=[n[0], n[1]], wr=[(n[0], nm)])]
        ops += [valu("v_mov_b32", (n[r], nm), (n[0], nm)) for r in (1, 2, 3)]
        for x in ops: F(x, min(preL[b] + 3, qk0[b] - 1), qk0[b] - 1, q="nm")
    for U in range(NU):
        s_, p_ = SB(U & 1), PB(U & 1)
        hi = (qk0[U + 2] if U + 2 < NU else pv0[U]) - 1
        hi = min(hi, pv0[U] - 1)
        lo = min(qkL[U] + 3, hi)
        loc = max(lo, pvL[U - 2]) if U >= 2 else lo
        ex = [F(trans("v_exp_f32", (s_[j], f"e{U}"), (s_[j], f"s{U}")), lo, hi - (1 if hi > lo else 0), q="exp") for j in range(8)]
        for m in range(4):
            F(valu("v_cvt_pk_bf16_f32", (p_[m], f"p{U}"), (s_[2 * m], f"e{U}"), (s_[2 * m + 1], f"e{U}")),
              loc, hi, q="cvt", after=[ex[min(2 * m + 2, 7)]] + (q9w if U < 2 else []))
    def rdK(e, y):
        return [dsr(B128, (KF(y, h, t), f"k{e}.{y}"), Kr(y, t >> 1), (e & 1) * 2 * US + 512 * h + 64 * (t & 1))
                for t in range(4) for h in range(2)]
    def rdV(e, y):
        return [dsr(TR, (VF(y, d).sub(2 * h, 2), f"v{e}.{y}"), Vr(y, d >> 2), (e & 1) * 2 * US + 512 * h + 32 * (d & 3))
                for d in range(8) for h in range(2)]
    BB = {}
    for e in range(8):
        U0 = 9 * e
        rd = []
        if e == 0:
            for x in rdK(0, 0): rd.append(F(x, k0[14], pre0[0] - 6, q="ldsK", after=[kvw[7]]))
            for x in rdV(0, 0): rd.append(F(x, k0[15], pv0[0] - 6, q="ldsV", after=[kvw[15]]))
            g = slot[0] - 1
            ba = F(barrier(), g, g, after=q9w + kvw)
            for t in range(4):
                F(dsr(B128, (QF(4, t), "Q4"), vA8 if t < 2 else vB8, 1024 * (t & 1)), g, pre0[4] - 6, q="ldsK", after=[ba])
        else:
            g = slot[U0 - 2] - 1
            wk = F(waitvm(f"k{e}"), g, g + 4, q="ldsK")
            for x in rdK(e, 0): rd.append(F(x, g, slot[U0 - 1] - 6, q="ldsK"))
            g = slot[U0 - 1] - 1
            ba = F(barrier(vm=[f"v{e}"], lgkm=False), g, g, after=[wk])
            for x in rdV(e, 0): rd.append(F(x, g, pv0[U0] - 6, q="ldsV", after=[ba]))
        gb = slot[U0 + 3] - 1 + (8 if e == 0 else 0)
        for x in rdK(e, 1): rd.append(F(x, g, gb - 5, q="ldsK", after=[ba]))
        for x in rdV(e, 1): rd.append(F(x, max(g, pvL[U0 - 1]) if e else g, gb - 5, q="ldsV", after=[ba]))
        bb = BB[e] = F(barrier(vm=["wo0"] if e == 7 else []), gb, gb, after=rd)
        if e in (0, 3, 6, 7): stamp(gb, [bb])
        ops = []
        if e < 6:
            for part in range(4): ops += g_kv(e + 2, part, o)
        if e == 6:
            ops += [valu("v_mov_b32", vKV(0), vWo0)] + [valu("v_subrev_u32", vKV(pp), 32 * pp, vWo0) for pp in (1, 2, 3)]
            for part in range(4): ops += g_wo(0, part)
        for x in ops: F(x, gb, slot[U0 + 7] - 3, q="dma", after=[bb])
    U0 = 63
    vW = lambda win: Kr(0, win)
    vOw = lambda hf: Vr(0, hf)
    vBr = lambda win: Kr(1, win)
    vLMw, vLMr = Vr(1, 0), Vr(1, 1)
    gb = BB[7].lo
    adr = [valu("v_mov_b32", vW(0), vWpat), valu("v_add_u32", vW(1), 4 * US, vWpat),
           valu("v_bfe_u32", vLMr, vL16, 1, 7), valu("v_add_u32", vLMw, sLMw, vLMr), valu("v_add_u32", vLMr, sLMr, vLMr),
           valu("v_add_u32", vOw(0), sOw0, vL16), valu("v_add_u32", vOw(1), sOw1, vL16),
           valu("v_add_u32", vBr(0), 2 * US, vL16), valu("v_add_u32", vBr(1), 6 * US, vL16)]
    adr = [F(x, gb, gb + 12, q="adr", after=[BB[7]]) for x in adr]
    def rdAo(p):
        ops = []
        for ks in range(8):
            unit = KVU(p & 1)[ks >> 1]; win = unit >> 2
            for u in range(2):
                for h in range(2):
                    ops.append(dsr(TR, (Ao(p, ks, u).sub(2 * h, 2), f"wo{p}"), vW(win),
                                   (unit & 3) * US + (ks & 1) * 2 * GRP + 512 * h + 32 * u))
        return ops
    gc = slot[U0 + 8] - 1
    rd = []
    for n, x in enumerate(rdAo(0)):
        rd.append(F(x, qkL[U0 + 4] if n < 16 else pvL[U0 + 4], gc - 5, q="ldsK", after=[adr[-1]]))
    g = pvL[U0 + 4] + 3
    t9 = f"o{U0+4}"
    n9 = NM(4)
    raww = [valu("v_accvgpr_read_b32", vT0, (LS(4)[0], f"l{U0+4}")), valu("v_mov_b32", vT1, (n9[0], "nm4")),
            valu("v_mov_b32", n9[1], vT0), dsw("ds_write_b64", vLMw, V(254, 2), 0)]
    raww += [dsw("ds_write_b128", vA8, (O9(4 + d), t9), 1024 * d) for d in range(4)]
    raww = [F(x, g, pvL[U0 + 5], q="ep", after=[adr[-1]]) for x in raww]
    bc = F(barrier(), gc, gc, after=rd + raww)
    ops = []
    for part in range(4): ops += g_wo(1, part)
    wo1_units = KVU(0)
    ops = []
    for part in range(4): ops += group(wo1_units[part] * US, sGrp, vKV, Swo, part * 65536 + 256, "", "wo1")
    for x in ops: F(x, gc, attn_end, q="dma", after=[bc])
    ow = []
    def norm_block(b):
        U = U0 + 5 + b; lo = min(pvL[U] + 3, attn_end); a32 = V(32 * b, 32)
        ops = [valu("v_accvgpr_read_b32", vT1, (LS(b)[0], f"l{U}")), trans("v_rcp_f32", vT0, vT1),
               valu("v_mov_b32", vTs, vT1) if b == 0 else valu("v_add_f32", vTs, vTs, vT1)]
        for k in range(4):
            for m in range(4):
                r = a32.sub(8 * k + 2 * m, 2)
                ops.append(valu("v_pk_mul_f32", (r, "n"), (r, f"o{U}"), V(254, 2), extra="op_sel_hi:[1,0]"))
            for m in range(4):
                ops.append(valu("v_cvt_pk_bf16_f32", (a32[4 * k + m], "of"), (a32[8 * k + 2 * m], "n"), (a32[8 * k + 2 * m + 1], "n")))
            ops.append(dsw("ds_write_b128", vOw(k >> 1), (a32.sub(4 * k, 4), "of"), (2 + (b >> 1)) * US + (b & 1) * 8192 + (k & 1) * 1024))
        for x in ops: ow.append(F(x, lo, attn_end, q="ep"))
    norm_block(0); norm_block(1)
    rcv = V(216, 16); own = SB(U0 + 7 & 1)
    mr = [dsr("ds_read_b64", n9.sub(2, 2), vLMr, 0)] + [dsr(B128, (rcv.sub(4 * d, 4), "rcv"), vB8, 1024 * d) for d in range(4)]
    mr = [F(x, gc, gc + 4, q="ldsV", after=[bc]) for x in mr]
    ops = [valu("v_sub_f32", n9[3], (n9[0], "nm4"), n9[3]), trans("v_exp_f32", n9[3], n9[3]),
           valu("v_fma_f32", n9[1], n9[2], n9[3], n9[1]), trans("v_rcp_f32", vT0, n9[1]),
           valu("v_add_f32", vTs, vTs, n9[1]), salu("s_lshl_b32", sT0, sW, 11), valu("v_add_u32", vLMw, sT0, vBr(1))]
    for k in range(2):
        for m in range(8): ops.append(valu("v_accvgpr_read_b32", (own[m], "own"), (A(128 + 8 * k + m), t9)))
        for m in range(8): ops.append(valu("v_fma_f32", (own[m], "mg"), (rcv[8 * k + m], "rcv"), n9[3], (own[m], "own")))
        for m in range(4): ops.append(valu("v_pk_mul_f32", (own.sub(2 * m, 2), "n"), (own.sub(2 * m, 2), "mg"), V(254, 2), extra="op_sel_hi:[1,0]"))
        for m in range(4): ops.append(valu("v_cvt_pk_bf16_f32", (rcv[8 * k + m], "of"), (own[2 * m], "n"), (own[2 * m + 1], "n")))
        ops.append(dsw("ds_write_b128", vLMw, (rcv.sub(8 * k, 4), "of"), 3 * US + 1024 * k))
    for x in ops: ow.append(F(x, pv0[U0 + 7], attn_end, q="ep", after=mr))
    norm_block(2); norm_block(3)
    ops = [salu("s_lshl_b32", sT0, sW, 2), valu("v_add_u32", vLMr, sT0, vBr(1)), dsw("ds_write_b32", vLMr, vTs, FLAG - 6 * US)]
    for x in ops: ow.append(F(x, attn_end, attn_end, q="ep"))
    b1 = F(barrier(), attn_end, attn_end, q="dma", after=ow)
    stamp(attn_end, [b1])
    fl = V(216, 4)
    def rdBo(qb, ks):
        if qb < 8: return dsr(B128, (Bo(qb, ks), f"of{qb}"), vBr(qb >> 2), ((qb >> 1) & 1) * US + (qb & 1) * 8192 + 1024 * ks)
        return dsr(B128, (Bo(qb, ks), f"of{qb}"), vBr(1), 3 * US + 1024 * ks)
    gd = {p: ou0[9 * p + 5] - 1 for p in range(3)}
    rd = []
    for ks in range(8): rd.append(F(rdBo(0, ks), attn_end, attn_end, q="ldsB", after=[b1]))
    fr = F(dsr(B128, fl, vBr(1), FLAG - 6 * US), attn_end, attn_end, q="ldsB")
    chk = [valu("v_add_f32", fl[0], fl[0], fl[1]), valu("v_add_f32", fl[2], fl[2], fl[3]), valu("v_add_f32", fl[0], fl[0], fl[2]),
           raw(f"v_cmp_nge_f32 vcc, {hex(THR)}, {fl[0]}", rd=[fl[0]], kind="valu"),
           raw("s_cmp_eq_u32 s54, 0"), raw("s_cselect_b64 vcc, vcc, 0"), raw("s_cbranch_vccnz Lslow"),
           salu("s_lshl_b32", sT0, sW, 10), valu("v_add_u32", vA8, sT0, vL16)]
    chk = [F(x, attn_end + 6, attn_end + 12, q="dma", after=[fr]) for x in chk]
    for qb in range(1, 9):
        for ks in range(8):
            rd.append(F(rdBo(qb, ks), attn_end, min(ou0[qb] - 6 + 2 * ks, gd[0] - 5), q="ldsB", after=[chk[6]] if qb >= 4 else []))
    wo_units = {2: KVU(1), 3: KVU(0)}
    def rdAo2(p, units):
        ops = []
        for ks in range(8):
            unit = units[ks >> 1]; win = unit >> 2
            for u in range(2):
                for h in range(2):
                    ops.append(dsr(TR, (Ao(p, ks, u).sub(2 * h, 2), f"wo{p}"), vW(win),
                                   (unit & 3) * US + (ks & 1) * 2 * GRP + 512 * h + 32 * u))
        return ops
    allu = {1: wo1_units, **wo_units}
    for p in range(3):
        bd = F(barrier(vm=[f"wo{p+1}"]), gd[p], gd[p], after=rd)
        if p + 2 < 4:
            ops = []
            for part in range(4): ops += group(allu[p + 2][part] * US, sGrp, vKV, Swo, part * 65536 + 256 * (p + 2), "", f"wo{p+2}")
            for x in ops: F(x, gd[p], gd[p] + 30, q="dma", after=[bd])
        rd = [F(x, gd[p], ou0[9 * p + 9] - 6, q="ldsK", after=[bd]) for x in rdAo2(p + 1, allu[p + 1])]
    for n in range(36):
        s_, p_ = SB(n & 1), PB(n & 1)
        lo = min(ouL[n] + 3, last); hi = min(lo + 8, last)
        ops = [valu("v_cvt_pk_bf16_f32", (p_[m], f"rp{n}"), (s_[2 * m], f"r{n}"), (s_[2 * m + 1], f"r{n}")) for m in range(4)]
        ops += [salu("s_mov_b32", sSt, n * 4096), vstore((p_, f"rp{n}"), vA8, Sws, sSt, 0, o.stflag)]
        for x in ops: F(x, lo, hi, q="st", after=[chk[-1]])
    seq = sc.run()
    seq = P + seq
    check_tags(seq)
    seq, nops = pad_hazards(seq)
    sys.stderr.write(f"mfma {len(sc.bb)} instrs {len(seq)} over {sc.stats['over']} idle {sc.stats['idle']} waits {sc.stats['waits']} nop-states {nops}\n")
    marks = dict(q_end=k0[16], attn_end=attn_end)
    return seq, nstamp[0], marks

def tail_and_slow(o, nst):
    T = []; a = T.append
    if o.stamps:
        a(f"s_memrealtime s[{64+2*nst}:{65+2*nst}]"); a("s_waitcnt vmcnt(0)")
        a(f"s_memrealtime s[{66+2*nst}:{67+2*nst}]"); a("s_waitcnt lgkmcnt(0)")
        a("s_cmp_lg_u32 s3, 0"); a("s_cbranch_scc1 Lend")
        a("s_mov_b32 s40, s18"); a("s_mov_b32 s41, s19"); a("s_mov_b32 s42, 0x10000000"); a("s_mov_b32 s43, 0x20000")
        a(f"s_lshl_b32 s52, s2, 6"); a(f"s_add_u32 s52, s52, {STAMP_OFF}"); a("v_mov_b32 v1, s52")
        a("s_mov_b64 exec, 1")
        for n in range(nst + 2):
            a(f"v_mov_b32 v2, s{64+2*n}"); a(f"buffer_store_dword v2, v1, s[40:43], 0 offen offset:{4*n}")
    a("Lend:"); a("s_endpgm")
    a("Lslow:"); a("s_waitcnt vmcnt(0) lgkmcnt(0)"); a("s_nop 7"); a("s_barrier")
    a("v_mbcnt_lo_u32_b32 v0, -1, 0"); a("v_mbcnt_hi_u32_b32 v0, -1, v0")
    a("v_and_b32 v1, 15, v0"); a("v_lshlrev_b32 v1, 8, v1"); a("v_lshrrev_b32 v2, 4, v0"); a("v_lshl_add_u32 v1, v2, 4, v1")
    a("s_lshl_b32 s52, s48, 17"); a("s_add_u32 s52, s52, 128"); a("s_lshl_b32 s53, s49, 7"); a("s_add_u32 s62, s52, s53")
    a("v_add_u32 v2, s62, v1"); a("s_xor_b32 s53, s53, 128"); a("s_add_u32 s62, s52, s53"); a("v_add_u32 v3, s62, v1")
    for b in range(5): a(f"v_mov_b32 v{8+b}, 0xff800000")
    a("s_mov_b32 s45, 0"); a("Lslow_loop:")
    for t in range(4): a(f"buffer_load_dwordx4 v[{16+4*t}:{19+4*t}], v{2+(t>>1)}, s[28:31], s45 offen offset:{64*(t&1)}")
    a("s_waitcnt vmcnt(0)")
    for b in range(5):
        for t in range(4):
            a(f"v_mfma_f32_16x16x32_bf16 {NM(b)}, v[{16+4*t}:{19+4*t}], {QF(b,t)}, {0 if t == 0 else NM(b)}")
    a("s_nop 7"); a("s_nop 1")
    for b in range(5):
        n = NM(b); a(f"v_max3_f32 v{8+b}, v{8+b}, {n[0]}, {n[1]}"); a(f"v_max3_f32 v{8+b}, v{8+b}, {n[2]}, {n[3]}")
    a("s_add_u32 s45, s45, 4096"); a("s_cmp_lt_u32 s45, 131072"); a("s_cbranch_scc1 Lslow_loop")
    for b in range(5): a(f"v_accvgpr_write_b32 {SAV(b)}, v{8+b}")
    a("s_mov_b32 s54, 1"); a("s_branch Lrestart")
    return T

def reduce_kernel(o):
    T = []; a = T.append
    a("s_cmp_ge_u32 s2, 576"); a("s_cbranch_scc1 Lrend")
    if o.stamps: a("s_memrealtime s[28:29]")
    a("s_load_dwordx2 s[4:5], s[0:1], 56"); a("s_load_dwordx2 s[8:9], s[0:1], 40")
    a(f"s_mul_hi_u32 s12, s2, {(1 << 32) // 36 + 1}"); a("s_mul_i32 s13, s12, 36"); a("s_sub_u32 s13, s2, s13")
    a(f"s_mul_hi_u32 s14, s13, {(1 << 32) // 9 + 1}"); a("s_mul_i32 s15, s14, 9"); a("s_sub_u32 s15, s13, s15")
    a(f"s_mul_i32 s16, s12, {16 * PART}"); a("s_lshl_b32 s17, s13, 12"); a("s_add_u32 s16, s16, s17")
    a("v_lshlrev_b32 v1, 4, v0")
    a(f"s_mov_b32 s6, {256 * PART}"); a("s_mov_b32 s7, 0x20000"); a(f"s_mov_b32 s10, {16 * PART}"); a("s_mov_b32 s11, 0x20000")
    a("s_waitcnt lgkmcnt(0)")
    for j in range(16):
        a(f"buffer_load_dwordx4 v[{16+4*j}:{19+4*j}], v1, s[4:7], s16 offen")
        if j < 15: a(f"s_add_u32 s16, s16, {PART}")
    a("s_mul_i32 s18, s12, 144"); a("s_lshl_b32 s19, s15, 4"); a("s_add_u32 s18, s18, s19"); a("s_lshl_b32 s18, s18, 10")
    a("s_lshl_b32 s19, s14, 8"); a("s_add_u32 s18, s18, s19")
    a("v_and_b32 v2, 15, v0"); a("v_lshlrev_b32 v2, 10, v2"); a("v_and_b32 v3, 0xf0, v0"); a("v_add_u32 v2, v2, v3")
    a("s_mov_b32 s20, 0xffff0000")
    for j in range(16):
        a(f"s_waitcnt vmcnt({15-j})")
        for m in range(4):
            r = 16 + 4 * j + m
            if j == 0:
                a(f"v_lshlrev_b32 v{4+2*m}, 16, v{r}"); a(f"v_and_b32 v{5+2*m}, s20, v{r}")
            else:
                a(f"v_lshlrev_b32 v12, 16, v{r}"); a(f"v_and_b32 v13, s20, v{r}")
                a(f"v_pk_add_f32 v[{4+2*m}:{5+2*m}], v[{4+2*m}:{5+2*m}], v[12:13]")
    for m in range(4): a(f"v_cvt_pk_bf16_f32 v{12+m}, v{4+2*m}, v{5+2*m}")
    a("s_nop 1"); a("v_permlane32_swap_b32 v12, v14"); a("v_permlane32_swap_b32 v13, v15")
    a("buffer_store_dwordx4 v[12:15], v2, s[8:11], s18 offen")
    if o.stamps:
        a("s_waitcnt vmcnt(0)"); a("s_memrealtime s[30:31]"); a("s_waitcnt lgkmcnt(0)")
        a("s_mov_b32 s6, 0x10000000"); a("s_lshl_b32 s16, s2, 3"); a(f"s_add_u32 s16, s16, {STAMP_OFF + 65536}")
        a("v_mov_b32 v1, s16"); a("v_mov_b32 v2, s28"); a("v_mov_b32 v3, s30")
        if o.enc:
            ea, eb = o.enc.split(",")
            a("s_cmp_lg_u32 s2, 575"); a("s_cbranch_scc1 Lnoenc")
            a(f"s_add_u32 s12, s4, {STAMP_OFF + 64 * 100}"); a("s_addc_u32 s13, s5, 0")
            a(f"s_load_dword s14, s[12:13], {4*int(ea)}")
            if eb.isdigit(): a(f"s_load_dword s15, s[12:13], {4*int(eb)}")
            else: a(f"s_mov_b32 s15, {'s30' if eb == 'e' else 's28'}")
            a("s_waitcnt lgkmcnt(0)"); a("s_sub_u32 s14, s15, s14"); a("s_mul_i32 s14, s14, 10"); a("s_min_u32 s14, s14, 200000")
            a("Lspin:"); a("s_memrealtime s[24:25]"); a("s_waitcnt lgkmcnt(0)"); a("s_sub_u32 s24, s24, s30")
            a("s_cmp_lt_u32 s24, s14"); a("s_cbranch_scc1 Lspin"); a("Lnoenc:")
        if o.dbg:
            a("s_cmp_lg_u32 s2, 575"); a("s_cbranch_scc1 Lnodbg")
            a("s_load_dwordx2 s[8:9], s[0:1], 48"); a("s_mov_b32 s10, 256")
            a("v_lshlrev_b32 v4, 6, v0"); a(f"s_mov_b32 s17, {STAMP_OFF}")
            for n in range(3): a(f"buffer_load_dwordx4 v[{16+4*n}:{19+4*n}], v4, s[4:7], s17 offen offset:{16*n}")
            a("v_mov_b32 v5, 0"); a("s_waitcnt vmcnt(0) lgkmcnt(0)"); a("v_not_b32 v6, v16")
            for n in range(12): a(f"buffer_atomic_umax v{16+n}, v5, s[8:11], 0 offen offset:{4*n}")
            a("buffer_atomic_umax v6, v5, s[8:11], 0 offen offset:60")
            a("buffer_atomic_umax v2, v5, s[8:11], 0 offen offset:52")
            a("buffer_atomic_umax v3, v5, s[8:11], 0 offen offset:56")
            a("Lnodbg:")
        a("v_cmp_eq_u32 vcc, 0, v0"); a("s_and_saveexec_b64 s[22:23], vcc"); a("s_cbranch_execz Lrend")
        a("buffer_store_dwordx2 v[2:3], v1, s[4:7], 0 offen")
    a("Lrend:"); a("s_endpgm")
    return T

KD = """.amdhsa_kernel {name}
  .amdhsa_next_free_vgpr {vg}
  .amdhsa_next_free_sgpr {sg}
  .amdhsa_accum_offset {acc}
  .amdhsa_group_segment_fixed_size 0
  .amdhsa_kernarg_size 64
  .amdhsa_user_sgpr_count 2
  .amdhsa_user_sgpr_kernarg_segment_ptr 1
  .amdhsa_system_sgpr_workgroup_id_x 1
  .amdhsa_float_denorm_mode_32 3
.end_amdhsa_kernel"""

def generate(o):
    hdr = [l.rstrip("\n") for l in open(f"cdna_kernels/{NAME}.s.ref") if l.startswith(";") and "launch" not in l and "grid=" not in l]
    seq, nst, marks = build_main(o)
    L = hdr + [f"; @launch kernel={NAME}_kernel grid=(256,1,1) block=(256,1,1) lds={LDSB}",
               "; @launch kernel=mha_reduce_kernel grid=(576,1,1) block=(256,1,1) lds=0",
               '.amdgcn_target "amdgcn-amd-amdhsa--gfx950"', ".text",
               f".globl {NAME}_kernel", ".p2align 8", f".type {NAME}_kernel,@function", f"{NAME}_kernel:"]
    L += [i.text for i in seq] + tail_and_slow(o, nst)
    L += [".globl mha_reduce_kernel", ".p2align 8", ".type mha_reduce_kernel,@function", "mha_reduce_kernel:"] + reduce_kernel(o)
    L += ['.section .rodata,"a"', ".p2align 6", KD.format(name=f"{NAME}_kernel", vg=512, sg=102, acc=256),
          ".p2align 6", KD.format(name="mha_reduce_kernel", vg=80, sg=32, acc=80)]
    return "\n".join(L) + "\n"

if __name__ == "__main__":
    o = Opt()
    out = sys.argv[1]
    for kv in sys.argv[2:]:
        k, v_ = kv.split("=", 1)
        setattr(o, k, {"1": True, "0": False}.get(v_, v_) if k in ("stamps","dbg") else v_)
    open(out, "w").write(generate(o))
```

```python
import re

def R(kind, n, cnt=1):
    return [f"{kind}{n+i}" for i in range(cnt)]
def rs(kind, n, cnt=1):
    return f"{kind}{n}" if cnt == 1 else f"{kind}[{n}:{n+cnt-1}]"

class Reg:
    def __init__(s, kind, n, cnt=1): s.k, s.n, s.c = kind, n, cnt
    def __str__(s): return rs(s.k, s.n, s.c)
    def regs(s): return R(s.k, s.n, s.c)
    def sub(s, off, cnt=1):
        assert off + cnt <= s.c, (s, off, cnt)
        return Reg(s.k, s.n + off, cnt)
    def __getitem__(s, i): return s.sub(i, 1)
def V(n, c=1): return Reg('v', n, c)
def A(n, c=1): return Reg('a', n, c)
def S(n, c=1): return Reg('s', n, c)

class I:
    __slots__ = ("text", "kind", "rd", "wr", "cost", "lo", "hi", "q", "after", "tag", "placed", "hie", "srcc", "ab", "gap", "succ", "idx")
    def __init__(s, text, kind, rd=(), wr=(), cost=1, tag=None):
        s.text, s.kind, s.cost, s.tag = text, kind, cost, tag
        s.rd = dict(); s.wr = dict()
        for x in rd:
            r, t = x if isinstance(x, tuple) else (x, None)
            for n in r.regs(): s.rd[n] = t
        for x in wr:
            r, t = x if isinstance(x, tuple) else (x, None)
            for n in r.regs(): s.wr[n] = t
        s.lo = s.hi = None; s.q = None; s.after = []; s.placed = False
        s.srcc = set(); s.ab = set(); s.gap = None; s.succ = []

def _r(x): return x[0] if isinstance(x, tuple) else x

def mfma(d, a, b, c):
    ctext = "0" if c == 0 else str(_r(c))
    i = I(f"v_mfma_f32_16x16x32_bf16 {_r(d)}, {_r(a)}, {_r(b)}, {ctext}", "mfma",
          rd=[a, b] + ([] if c == 0 else [c]), wr=[d], cost=0)
    i.ab = set(_r(a).regs()) | set(_r(b).regs())
    i.srcc = set() if c == 0 else set(_r(c).regs())
    return i
def valu(op, d, *src, extra="", kind="valu", cost=1, rmw=False):
    rd = [x for x in src if isinstance(_r(x), Reg)]
    txt = ", ".join(str(_r(x)) for x in (d,) + src)
    return I(f"{op} {txt}{(' ' + extra) if extra else ''}", kind, rd=rd, wr=[d], cost=cost)
def trans(op, d, s_): return valu(op, d, s_, kind="trans", cost=2)
def swap(op, a, b, ta=None, tb=None):
    return I(f"{op} {_r(a)}, {_r(b)}", "perm", rd=[a, b], wr=[(_r(a), ta), (_r(b), tb)], cost=2)
def salu(op, d, *src):
    rd = [x for x in src if isinstance(_r(x), Reg)]
    wr = [d] if isinstance(_r(d), Reg) else []
    i = I(f"{op} " + ", ".join(str(_r(x)) for x in (d,) + src), "salu", rd=rd, wr=wr)
    if d == "m0": i.wr["m0"] = None
    return i
def dsr(op, d, addr, off):
    assert 0 <= off < 65536, off
    return I(f"{op} {_r(d)}, {_r(addr)} offset:{off}", "dsr", rd=[addr], wr=[d])
def dsw(op, addr, data, off):
    assert 0 <= off < 65536, off
    return I(f"{op} {_r(addr)}, {_r(data)} offset:{off}", "dsw", rd=[addr, data])
def dma(voff, srd, soff, off, flags, tag):
    assert 0 <= off < 4096
    i = I(f"buffer_load_dwordx4 {_r(voff)}, {srd}, {soff} offen offset:{off} {flags} lds".replace("  ", " "), "dma",
          rd=[voff, srd] + ([soff] if isinstance(soff, Reg) else []), tag=tag)
    i.rd["m0"] = None
    return i
def vload(d, voff, srd, soff, off, flags="", tag=None, op="buffer_load_dwordx4"):
    assert 0 <= off < 4096
    return I(f"{op} {_r(d)}, {_r(voff)}, {srd}, {soff} offen offset:{off} {flags}".rstrip(), "vml",
             rd=[voff, srd] + ([soff] if isinstance(soff, Reg) else []), wr=[d], tag=tag)
def vstore(data, voff, srd, soff, off, flags="", tag=None, op="buffer_store_dwordx4"):
    assert 0 <= off < 4096
    return I(f"{op} {_r(data)}, {_r(voff)}, {srd}, {soff} offen offset:{off} {flags}".rstrip(), "vms",
             rd=[data, voff, srd] + ([soff] if isinstance(soff, Reg) else []), tag=tag)
def waitvm(*tags):
    i = I("", "waitvm"); i.tag = set(tags); return i
def barrier(vm=(), lgkm=True):
    i = I("s_barrier", "bar", cost=2); i.tag = (set(vm), lgkm); return i
def raw(text, cost=1, rd=(), wr=(), kind="raw"): return I(text, kind, rd=rd, wr=wr, cost=cost)

class Sched:
    def __init__(s, cap=2, settle=7, vmgap=4, dswgap=2, maxmem=1):
        s.maxmem = maxmem
        s.vmgap = vmgap; s.dswgap = dswgap
        s.bb = []; s.fill = []; s.cap = cap; s.settle = settle
        s.lastq = {}
    @property
    def n(s): return len(s.bb)
    def m(s, i): s.bb.append(i); return len(s.bb) - 1
    def f(s, i, lo, hi, q=None, after=()):
        i.lo, i.hi, i.q = lo, hi, q
        i.after = list(after)
        if q is not None:
            if q in s.lastq: i.after.append(s.lastq[q])
            s.lastq[q] = i
        i.idx = len(s.fill)
        s.fill.append(i); return i
    def run(s):
        for i in s.fill:
            i.hie = i.hi
        for i in s.fill:
            for p in i.after: p.succ.append(i)
        changed = True
        while changed:
            changed = False
            for i in reversed(s.fill):
                for p in i.after:
                    if p.hie > i.hie: p.hie = i.hie; changed = True
        for i in s.fill:
            assert i.lo <= i.hie, f"empty window lo={i.lo} hi={i.hi} hie={i.hie}: {i.text or i.kind}"
        out = []
        lg = []
        vm = []
        lastg = dict(vm=-99, dsw=-99)
        stats = dict(over=0, idle=0, waits=0)
        def need(i):
            touch = set(i.rd) | set(i.wr)
            a = b = -1
            for k, (p, _) in enumerate(lg):
                if touch & set(p.wr): a = k
            for k, (p, _) in enumerate(vm):
                if touch & set(p.wr): b = k
            if i.kind == "dsr":
                a2 = -1
                for k, (p, _) in enumerate(lg):
                    if set(i.rd) & set(p.wr): a2 = k
                a = a2
            if i.kind == "waitvm":
                for k, (p, _) in enumerate(vm):
                    if p.tag in i.tag: b = k
            if i.kind == "bar":
                for k, (p, _) in enumerate(vm):
                    if p.tag in i.tag[0]: b = k
                if "all0" in i.tag[0]: b = len(vm) - 1
                if i.tag[1]: a = len(lg) - 1
            return a, b
        bytag = {}
        for i in s.fill:
            if i.kind in ("dma", "vml", "vms"): bytag.setdefault(i.tag, []).append(i)
        def emit(i, g):
            if i.kind in ("waitvm", "bar"):
                for t in (i.tag if i.kind == "waitvm" else i.tag[0]):
                    if t in ("ct", "fl"): continue
                    assert all(x.placed for x in bytag.get(t, [])), f"wait on {t} at gap {g} before all its loads were issued"
            a, b = need(i)
            used = 0
            parts = []
            if b >= 0:
                n = min(len(vm) - 1 - b, 63); parts.append(f"vmcnt({n})"); del vm[:len(vm) - n]
            if a >= 0:
                while a + 1 < len(lg) and lg[a + 1][1] <= g - s.settle: a += 1
                n = min(len(lg) - 1 - a, 15); parts.append(f"lgkmcnt({n})"); del lg[:len(lg) - n]
            if parts:
                w = I("s_waitcnt " + " ".join(parts), "wait"); w.gap = g; out.append(w); stats["waits"] += 1
                used += 1
            if i.kind != "waitvm":
                i.gap = g; out.append(i); used += (1 if i.kind == "bar" else i.cost)
            if i.kind in ("dma", "vml", "vms"): lastg["vm"] = g
            if i.kind == "dsw": lastg["dsw"] = g
            if i.kind in ("dsr", "dsw"): lg.append((i, g))
            if i.kind in ("dma", "vml", "vms"):
                vm.append((i, g)); assert len(vm) <= 63, "too many vm ops in flight"
            i.placed = True
            return used
        pend = sorted(s.fill, key=lambda i: (i.lo, i.idx))
        active = []; pi = 0
        SC = ("salu", "waitvm", "raw")
        MEM = ("dsr", "dsw", "dma", "vml", "vms")
        def prewait(i, g):
            a, b = need(i)
            if (a, b) == (-1, -1): return 0
            d = I("", "waitvm"); d.tag = set(); d.rd = dict(i.rd); d.wr = dict(i.wr)
            return emit(d, g)
        for g in range(-1, len(s.bb)):
            while pi < len(pend) and pend[pi].lo <= g: active.append(pend[pi]); pi += 1
            cap = s.cap; shadow = 1; nmem = 0; nval = 0; lds = 0
            nxt = s.bb[g + 1] if g + 1 < len(s.bb) else None
            if nxt is not None and g >= 0 and prewait(nxt, g): shadow = 0
            def ok(c):
                if c.kind in ("dma", "vml", "vms") and g - lastg["vm"] < s.vmgap: return False
                if c.kind == "dsw" and g - lastg["dsw"] < s.dswgap: return False
                if c.kind in MEM and (nval or nmem >= s.maxmem): return False
                return True
            while True:
                cand = [i for i in active if all(p.placed for p in i.after)]
                if not cand: break
                cand.sort(key=lambda i: (i.hie, i.idx))
                pick = None
                must = [c for c in cand if c.hie <= g]
                if shadow:
                    pick = next((c for c in cand if c.kind in SC and c.cost == 1), None)
                if pick is None and must:
                    pick = next((c for c in must if c.kind in MEM), must[0])
                    if pick.kind not in MEM and pick.cost == 1 and cap == 2 and len(must) == 1 and pick.kind != "bar":
                        pick = next((c for c in cand if c.kind in MEM and ok(c) and need(c) == (-1, -1)), pick)
                if pick is None:
                    fit = []
                    for c in cand:
                        if not ok(c): continue
                        extra = 0 if c.kind in ("bar", "waitvm") or need(c) == (-1, -1) or shadow else 1
                        if c.cost + extra <= cap: fit.append(c)
                    if fit:
                        pick = fit[0]
                        if pick.kind not in MEM and pick.cost == 1 and cap == 2:
                            pick = next((c for c in fit if c.kind in MEM), pick)
                if pick is None: break
                n0 = len(out)
                used = emit(pick, g); active.remove(pick)
                if shadow and len(out) > n0:
                    if out[n0].kind in SC + ("wait", "bar"): used -= 1
                    shadow = 0
                cap -= used
                if pick.kind in MEM: nmem += 1
                if pick.kind in ("valu", "trans", "perm"): nval += 1
            for i in active: assert i.hie > g, f"missed deadline {i.text} hie={i.hie} g={g}"
            if 0 <= g < len(s.bb) - 1:
                if cap < 0: stats["over"] += -cap
                else: stats["idle"] += cap
            if nxt is not None: emit(nxt, g + 1)
        assert not active and pi == len(pend)
        s.stats = stats
        return out

def check_tags(seq):
    cur = {}
    for k, i in enumerate(seq):
        for r, t in i.rd.items():
            if t is not None and cur.get(r) != t:
                raise AssertionError(f"tag mismatch at #{k} gap {i.gap}: {i.text}: {r} expected {t} has {cur.get(r)}")
        for r, t in i.wr.items(): cur[r] = t

VALUK = ("valu", "trans", "perm")
def pad_hazards(seq):
    out = []; nops = 0
    def states(i):
        m = re.match(r"s_nop (\d+)", i.text)
        if m: return int(m.group(1)) + 1
        if i.kind == "label": return 0
        return 1
    for i in seq:
        req = 0; dist = 0
        rd, wr = set(i.rd), set(i.wr)
        for p in reversed(out):
            if dist >= 12: break
            pw = set(p.wr); need = 0
            if p.kind in VALUK:
                vw = {r for r in pw if r[0] in "va" and r != "vcc"}
                sw = {r for r in pw if r[0] == "s" or r == "vcc"}
                if i.kind == "mfma" and vw & rd: need = 2
                if i.kind == "perm" and vw & rd: need = 2
                if p.kind == "trans" and i.kind in ("valu", "perm") and vw & rd: need = max(need, 1)
                if "readfirstlane" in i.text and vw & rd: need = max(need, 1)
                if sw & rd:
                    if i.kind in ("dma", "vml", "vms"): need = max(need, 5)
                    if i.kind in VALUK: need = max(need, 2)
            if p.kind == "mfma":
                if i.kind == "mfma":
                    if pw & i.ab: need = 8
                    elif pw & i.srcc and pw != i.srcc: need = 6
                elif i.kind in VALUK or i.kind in ("dsr", "dsw", "vml", "vms", "dma"):
                    if pw & (rd | wr): need = 8
                if i.kind in VALUK and p.srcc & wr: need = max(need, 3)
            if p.kind == "salu" and "m0" in pw and i.kind == "dma": need = 1
            if p.kind in ("vms", "dsw") and i.kind in VALUK and set(p.rd) & wr: need = max(need, 2)
            req = max(req, need - dist)
            dist += states(p)
        if req > 0:
            n = I(f"s_nop {req-1}", "nop"); n.gap = i.gap; out.append(n); nops += req
        out.append(i)
    return out, nops
```

```python
import sys, math, struct
from dsl import *

NAME = "standalone__mha_block_cached__near_ridge"
US, GRP, PS = 17024, 4224, 1056
X9 = 9 * US
FLAG = X9 + 8448
LDSB = 163840
PART = 147456
STAMP_OFF = 0x4000000
MBOFF = 256 * PART
def fbits(x): return struct.unpack("<I", struct.pack("<f", x))[0]
CSC = fbits(math.log2(math.e) / math.sqrt(128.0))
THR = fbits(2.0 ** 40)

Sx, Swq, Sk, Sv, Swo, Sws = S(20, 4), S(24, 4), S(28, 4), S(32, 4), S(36, 4), S(40, 4)
sW, sGrp, sOff, sC, sHH, sQH, sB, sJ = S(3), S(44), S(45), S(46, 2), S(48), S(49), S(50), S(51)
sT0, sT1, sMode, sX9, s4096, sOw0, sOw1, sLMw, sLMr, sSt, sT2 = S(52), S(53), S(54), S(55), S(56), S(57), S(58), S(59), S(60), S(61), S(62)
ACC = lambda b, f: V(32 * b + 4 * f, 4)
QF = lambda b, t: (V(128 + 16 * b + 4 * t, 4) if b < 4 else A(180 + 4 * t, 4))
SB = lambda k: V(192 + 8 * k, 8)
PB = lambda k: V(208 + 4 * k, 4)
NM = lambda b: V(216 + 4 * b, 4)
Kr = lambda y, hf: V(236 + 2 * y + hf)
Vr = lambda y, hf: V(240 + 2 * y + hf)
vKV = lambda pp: V(244 + pp)
vL16, vWpat, vWo0, vA8, vB8, vTs, vT0, vT1 = V(248), V(249), V(250), V(251), V(252), V(253), V(254), V(255)
qWr = lambda win, hf: V(216 + 2 * win + hf)
qXr = lambda win: V(220 + win)
qX9r = V(222)
qKw = lambda win: V(223 + win)
qWd = lambda pp: V(225 + pp)
qXd = lambda pp: V(229 + pp)
qX9d = V(233)
KF = lambda y, h, t: A(32 * y + 4 * (2 * t + h), 4)
VF = lambda y, d: A(64 + 32 * y + 4 * d, 4)
O9 = lambda d: A(128 + 4 * d, 4)
LS = lambda b: A(160 + 4 * b, 4)
ONES = A(196, 4)
SAV = lambda b: A(248 + b)
Aq = lambda f: A(32 + 4 * f, 4)
Bq = lambda i, b: A((128, 144, 200, 216)[i % 4] + 4 * b, 4)
B9 = lambda i: A(232 + 4 * (i % 4), 4)
A9 = lambda f: V(192 + 4 * f, 4)
KVst = lambda kv, n: A(64 + 32 * kv + 4 * n, 4)
WQU = {4: 1, 5: 4, 0: 5, 1: 3, 2: 6, 3: 8}
XU = {2: 0, 0: 2, 1: 7}
KVU = lambda slot: (2 * slot, 2 * slot + 1, 4 + 2 * slot, 5 + 2 * slot)
def Ao(p, ks, u):
    n = 2 * ks + u
    return A((0 if n < 8 else 64) + 32 * (p & 1) + 4 * (n & 7), 4)
def Bo(qb, ks):
    if qb < 4: return V(32 * qb + 4 * ks, 4)
    if qb < 8: return A(128 + 32 * (qb - 4) + 4 * ks, 4)
    return V(128 + 4 * ks, 4)
TR, B128 = "ds_read_b64_tr_b16", "ds_read_b128"

class Opt:
    stamps = False
    kvflag = "nt"
    stflag = "sc1"
    dbg = False
    rdy = 'atomic'
    ate = 2
    outflag = ''
    st0 = False
    bbo = 17
    maxmem = 1
    pkfrom = 2
    xst = ''
    clk = 0
    kvw_lo = "-99,-99,-99,-99"
    qseq = "x0,n0,w0,w1|p1,x1,w2,w3,p4,x2,n1,w4,p9,w5,p3.6,x3,w6,w7,x4,n2,w8,w9,x5,w10,w11,x6,n3,w12,w13,x7,w14,w15,p2,s0,s1,c0,s2,p9.4,s3,k0,k1,k2,p8,k3"
    dy = 1
    wk0 = 16
    ba0 = 0
    vmgap = 2
    qstep0 = 3
    qstep = 4
    astep = 4.5
    astep5 = 8.8
    wo0 = 8
    wostep = 4
    ostep = 4
    dswgap = 4
    cpf = 3
    abl = ''
    qst = False
    rot = 2
    rsh = 1
    bb0 = 8
    stage = 1
    enc = None

Smb, Sred, Sout, Sdbg = S(4, 4), S(8, 4), S(12, 4), S(16, 4)
sAt = S(63); qOne = V(224)
sRx, sRw = S(96), S(97)
sP = lambda p: S(98 + p)
def setoff(soff):
    if isinstance(soff, tuple):
        r, add, mask = soff
        return [salu("s_add_u32", sOff, r, add)] + ([salu("s_and_b32", sOff, sOff, mask)] if mask else [])
    return [salu("s_mov_b32", sOff, soff)]
def group(unit_off, base, voff, srd, soff, flags, tag):
    ops = [salu("s_add_u32", "m0", base, unit_off)] + setoff(soff)
    ops += [dma(voff(pp), srd, sOff, PS * pp, flags, tag) for pp in range(4)]
    return ops
def g_wq(i): return group(WQU[i % 6] * US, sGrp, qWd, Swq, (sRw, i * 262144, 0x3fffff), "", f"wq{i}")
def g_x(I_): return group(XU[I_ % 3] * US, sGrp, qXd, Sx, (sRx, I_ * 128, 1023), "", f"x{I_}")
def g_x9(n): return [salu("s_add_u32", "m0", sX9, X9 + (n & 1) * GRP)] + setoff((sRx, n * 256, 1023)) + [
                     dma(qX9d, Sx, sOff, 0, "", f"xn{n}")]
def g_kv(e, part, o):
    kv, half = part >> 1, part & 1
    return group(KVU(e & 1)[part] * US, sGrp, vKV, (Sk, Sv)[kv], e * 16384 + half * 4096, o.kvflag, f"{'kv'[kv]}{e}")
def g_wo(p, part): return group(KVU(p & 1)[part] * US, sGrp, vKV, Swo, (sP(p), part * 65536, 0), "", f"wo{p}")

def qtok(tok, o):
    c, n = tok[0], int(tok[1:])
    if c == "w": return g_wq(n), n - 6
    if c == "x": return g_x(n), 2 * (n - 3)
    if c == "n": return g_x9(n), 4 * (n - 2)
    if c == "c": return code_touch(0, V(254, 2), vTs, vL16, shift=3), -1
    if c == "s": return g_kv(0, n, o), (10, 10, 11, 12)[n]
    if c == "k": return g_kv(1, n, o), (12, 13, 14, 14)[n]
    raise ValueError(tok)

def code_touch(off, va, vd, lane, shift=7, tid=False):
    n = code_touch.n = getattr(code_touch, "n", 0) + 1
    return [valu("v_lshlrev_b32", va[0], shift, lane)] + ([] if tid else [salu("s_lshl_b32", sT0, sW, 13), valu("v_add_u32", va[0], sT0, va[0])]) + [
            raw(f"s_getpc_b64 s[52:53]\nLpc{n}:", wr=[sT0, sT1], kind="salu"),
            raw(f"v_min_u32 {va[0]}, Lcode_end-Lpc{n}-4, {va[0]}", rd=[va[0]], wr=[va[0]], kind="valu"),
            raw(f"v_mov_b32 {va[1]}, s53\nv_add_co_u32 {va[0]}, vcc, s52, {va[0]}\ns_nop 1\nv_addc_co_u32 {va[1]}, vcc, 0, {va[1]}, vcc",
                rd=[va[0], sT0, sT1], wr=[va], kind="valu", cost=4),
            I(f"global_load_dword {vd}, {va}, off", "vml", rd=[va], wr=[], tag="ct")]

def rdyv(o): return '0x01010101' if o.rdy == 'byte' else 16

def prologue(o):
    P = []; a = P.append
    v = lambda n: V(n)
    a(raw("s_cmp_ge_u32 s2, 256")); a(raw("s_cbranch_scc1 Lend"))
    if o.stamps: a(raw("s_memrealtime s[64:65]"))
    a(raw("s_load_dwordx16 s[4:19], s[0:1], 0"))
    if int(o.cpf) >= 2: P += code_touch(0, V(8, 2), vTs, v(0), shift=int(o.cpf) + 3, tid=True)
    a(valu("v_lshrrev_b32", v(1), 6, v(0)))
    a(valu("v_mov_b32", v(2), "0xff800000"))
    a(valu("v_readfirstlane_b32", sW, v(1)))
    for b in range(5): a(valu("v_accvgpr_write_b32", SAV(b), v(2)))
    a(salu("s_and_b32", sT0, S(2), 1)); a(salu("s_lshl_b32", sT0, sT0, 3))
    a(salu("s_bfe_u32", sT1, S(2), (3 << 16) | 3)); a(salu("s_add_u32", sB, sT0, sT1))
    a(salu("s_bfe_u32", sT0, S(2), (2 << 16) | 1)); a(salu("s_lshl_b32", sT0, sT0, 2))
    a(salu("s_lshr_b32", sT1, S(2), 6)); a(salu("s_add_u32", sJ, sT0, sT1))
    a(salu("s_lshr_b32", sHH, sW, 1)); a(salu("s_and_b32", sQH, sW, 1))
    a(salu("s_mul_i32", sGrp, sW, GRP)); a(salu("s_mul_i32", sX9, sW, PS))
    a(salu("s_mov_b32", sMode, 0)); a(salu("s_mov_b32", s4096, 4096))
    a(salu("s_add_u32", sT1, sB, sJ)); a(salu("s_lshl_b32", sP(0), sT1, 8)); a(salu("s_lshl_b32", sT0, sT1, int(o.rsh))); a(salu("s_and_b32", sT0, sT0, int(o.rot))); a(salu("s_lshl_b32", sRx, sT0, 8)); a(salu("s_lshl_b32", sRw, sT0, 20))
    a(salu("s_mov_b32", sC[0], hex(CSC))); a(salu("s_mov_b32", sC[1], hex(CSC)))
    for srd, size in ((Sx, PART + 128), (Sk, 262144 + 128), (Sv, 262144 + 128), (Swo, 262144 + 128), (Sws, PART)):
        a(salu("s_mov_b32", srd[2], size)); a(salu("s_mov_b32", srd[3], "0x20000"))
    a(salu("s_mov_b32", Swq[3], "0x20000"))
    a(raw("s_waitcnt lgkmcnt(0)"))
    def base(srd, ptr, shift):
        a(salu("s_add_u32", srd[0], S(ptr), sT0)); a(salu("s_addc_u32", srd[1], S(ptr + 1), 0))
        if shift:
            a(salu("s_sub_u32", srd[0], srd[0], shift)); a(salu("s_subb_u32", srd[1], srd[1], 0))
    a(salu("s_mul_i32", sT0, sB, PART)); base(Sx, 4, 128)
    a(salu("s_lshl_b32", sT0, sJ, 9)); base(Swq, 10, 0); a(salu("s_sub_u32", Swq[2], 4194304, sT0))
    a(salu("s_lshl_b32", sT1, sB, 4)); a(salu("s_add_u32", sT1, sT1, sJ))
    a(salu("s_lshl_b32", sT0, sT1, 18)); base(Sk, 6, 128); base(Sv, 8, 128)
    a(salu("s_mul_i32", sT0, sT1, PART)); base(Sws, 18, 0)
    a(salu("s_lshl_b32", sT0, sJ, 18)); base(Swo, 12, 128)
    if int(o.dy):
        a(salu("s_mul_i32", sT0, sB, PART)); a(salu("s_add_u32", Sout[0], S(14), sT0)); a(salu("s_addc_u32", Sout[1], S(15), 0))
        a(salu("s_mov_b32", Sout[2], PART)); a(salu("s_mov_b32", Sout[3], "0x20000"))
        a(salu("s_lshl_b32", sT0, sT0, 4)); base(Sred, 18, 0)
        a(salu("s_mov_b32", Sred[2], 16 * PART)); a(salu("s_mov_b32", Sred[3], "0x20000"))
        a(salu("s_lshl_b32", sT0, sB, 11)); a(salu("s_add_u32", sT0, sT0, MBOFF)); base(Smb, 18, 0)
        a(salu("s_mov_b32", Smb[2], 2048)); a(salu("s_mov_b32", Smb[3], "0x20000"))
        a(salu("s_mov_b32", Sdbg[2], 256)); a(salu("s_mov_b32", Sdbg[3], "0x20000"))
    a(raw("Lrestart:", kind="label"))
    L, t1, t2, t3, t4, t5, t6 = v(0), v(1), v(2), v(3), v(4), v(5), v(6)
    a(valu("v_mbcnt_lo_u32_b32", L, -1, 0)); a(valu("v_mbcnt_hi_u32_b32", L, -1, L))
    a(valu("v_and_b32", t1, 7, L)); a(valu("v_lshlrev_b32", t1, 4, t1))
    a(valu("v_lshrrev_b32", t2, 3, L)); a(valu("v_lshl_add_u32", t3, t2, 12, t1))
    a(salu("s_lshl_b32", sT0, sW, 15)); a(salu("s_add_u32", sT0, sT0, 128))
    a(valu("v_add_u32", qXd(0), sT0, t3))
    for pp in range(1, 4): a(valu("v_subrev_u32", qXd(pp), 32 * pp, qXd(0)))
    a(valu("v_and_b32", t3, 3, t2)); a(valu("v_lshl_add_u32", t3, t3, 12, t1))
    a(valu("v_lshrrev_b32", t2, 5, L)); a(valu("v_lshl_add_u32", t3, t2, 7, t3))
    a(salu("s_lshl_b32", sT0, sW, 10)); a(salu("s_add_u32", sT0, sT0, 128 * 1024 + 128))
    a(valu("v_add_u32", qX9d, sT0, t3))
    a(valu("v_and_b32", t1, 15, L)); a(valu("v_lshlrev_b32", t1, 4, t1))
    a(valu("v_lshl_add_u32", t3, t2, 15, t1))
    a(valu("v_bfe_u32", t4, L, 4, 1)); a(valu("v_lshl_add_u32", t3, t4, 17, t3))
    a(salu("s_lshl_b32", sT0, sQH, 16)); a(salu("s_lshl_b32", sT1, sHH, 8)); a(salu("s_add_u32", sT0, sT0, sT1))
    a(valu("v_add_u32", qWd(0), sT0, t3))
    for pp in range(1, 4): a(valu("v_add_u32", qWd(pp), (8192 - PS) * pp, qWd(0)))
    first = []
    for tok in o.qseq.split("|")[0].split(","): first += qtok(tok, o)[0]
    Q = []; a = Q.append
    if int(o.cpf) == 1: Q += code_touch(0, V(8, 2), vTs, L)
    if int(o.dy):
        a(salu("s_add_u32", sT0, sW, sMode)); a(salu("s_lshl_b32", sAt, sT0, 4)); a(salu("s_add_u32", sAt, sAt, sB))
        a(salu("s_lshl_b32", sAt, sAt, 4))
        if o.rdy == "byte": a(salu("s_add_u32", sAt, sAt, sJ))
        a(valu("v_lshrrev_b32", t5, 4, L)); a(valu("v_add_u32", t5, sT0, t5)); a(valu("v_lshlrev_b32", t5, 11, t5))
        a(valu("v_lshrrev_b32", t3, 2, t1)); a(valu("v_add_u32", t5, t5, t3))
        a(salu("s_lshl_b32", sOff, sJ, 7)); a(valu("v_mov_b32", qOne, 0))
        a(vstore(qOne, t5, Smb, sOff, 0, "sc1", tag="mbz", op="buffer_store_dword"))
    a(valu("v_lshrrev_b32", t5, 4, L)); a(valu("v_lshl_add_u32", t3, t5, 13, t1))
    a(salu("s_lshl_b32", sT0, sHH, 15)); a(salu("s_lshl_b32", sT1, sQH, 12)); a(salu("s_add_u32", sT0, sT0, sT1))
    a(salu("s_add_u32", sT0, sT0, 128)); a(valu("v_add_u32", vWo0, sT0, t3))
    a(valu("v_lshlrev_b32", vL16, 4, L))
    a(salu("s_lshl_b32", sT0, sHH, 17)); a(salu("s_lshl_b32", sT1, sQH, 13)); a(salu("s_add_u32", sT0, sT0, sT1))
    a(salu("s_add_u32", sT0, sT0, 128)); a(valu("v_add_u32", vKV(0), sT0, vL16))
    for pp in range(1, 4): a(valu("v_subrev_u32", vKV(pp), 32 * pp, vKV(0)))
    a(salu("s_add_u32", sT0, sGrp, 8 * US)); a(valu("v_add_u32", vA8, sT0, vL16))
    a(salu("s_xor_b32", sT0, sW, 1)); a(salu("s_mul_i32", sT2, sT0, GRP))
    a(salu("s_add_u32", sT0, sT2, 8 * US)); a(valu("v_add_u32", vB8, sT0, vL16))
    a(salu("s_add_u32", sLMw, sGrp, 8 * US + 4096)); a(salu("s_add_u32", sLMr, sT2, 8 * US + 4096))
    a(valu("v_and_b32", t1, 3, L)); a(valu("v_mul_u32_u24", t1, PS, t1)); a(valu("v_lshl_add_u32", t1, t5, 4, t1))
    a(valu("v_bfe_u32", t3, L, 2, 2)); a(valu("v_lshl_add_u32", t3, t3, 7, t1))
    a(valu("v_add_u32", qX9r, X9, t3))
    a(salu("s_mul_i32", sT0, sQH, 2 * GRP)); a(valu("v_add_u32", qXr(0), sT0, t3))
    a(valu("v_add_u32", qXr(1), 7 * US, qXr(0)))
    a(valu("v_bfe_u32", t3, L, 2, 1)); a(valu("v_mul_u32_u24", t3, US, t3)); a(valu("v_add_u32", t1, t1, t3))
    a(valu("v_bfe_u32", t3, L, 3, 1)); a(valu("v_lshl_add_u32", t1, t3, 8, t1))
    a(salu("s_lshl_b32", sT0, sQH, 7)); a(salu("s_xor_b32", sT1, sT0, 128))
    a(valu("v_add_u32", t3, sT0, t1)); a(valu("v_add_u32", t6, sT1, t1))
    a(valu("v_add_u32", Kr(0, 0), sGrp, t3)); a(valu("v_add_u32", Kr(0, 1), sGrp, t6))
    a(valu("v_add_u32", Kr(1, 0), sT2, t3)); a(valu("v_add_u32", Kr(1, 1), sT2, t6))
    a(valu("v_bfe_u32", t1, L, 2, 2)); a(valu("v_mul_u32_u24", t1, PS, t1)); a(valu("v_lshl_add_u32", t1, t2, 8, t1))
    a(valu("v_and_b32", t3, 3, L)); a(valu("v_lshl_add_u32", t3, t3, 3, t1))
    a(valu("v_mul_u32_u24", t6, US, t4)); a(valu("v_add_u32", t3, t3, t6)); a(valu("v_add_u32", t3, 4 * US, t3))
    a(valu("v_add_u32", t6, sT1, t3)); a(valu("v_add_u32", t3, sT0, t3))
    a(valu("v_add_u32", Vr(0, 0), sGrp, t3)); a(valu("v_add_u32", Vr(0, 1), sGrp, t6))
    a(valu("v_add_u32", Vr(1, 0), sT2, t3)); a(valu("v_add_u32", Vr(1, 1), sT2, t6))
    a(valu("v_mul_u32_u24", t6, GRP, t4)); a(valu("v_add_u32", t1, t1, t6))
    a(valu("v_and_b32", t3, 1, L)); a(valu("v_lshl_add_u32", t1, t3, 4, t1))
    a(valu("v_bfe_u32", t3, L, 1, 1)); a(valu("v_lshl_add_u32", t1, t3, 3, t1))
    a(salu("s_lshl_b32", sT2, sW, 6)); a(valu("v_add_u32", vWpat, sT2, t1))
    a(salu("s_mul_i32", sT2, sHH, 2 * GRP)); a(salu("s_add_u32", sT2, sT2, US)); a(valu("v_add_u32", t1, sT2, t1))
    a(valu("v_add_u32", qWr(0, 0), sT0, t1)); a(valu("v_add_u32", qWr(0, 1), sT1, t1))
    a(valu("v_add_u32", qWr(1, 0), 4 * US, qWr(0, 0))); a(valu("v_add_u32", qWr(1, 1), 4 * US, qWr(0, 1)))
    a(salu("s_mul_i32", sT2, sQH, 4 * US)); a(salu("s_lshl_b32", sOw0, sHH, 12)); a(salu("s_add_u32", sT2, sT2, sOw0))
    a(salu("s_lshl_b32", sT0, sT0, 4)); a(salu("s_lshl_b32", sT1, sT1, 4))
    a(salu("s_add_u32", sOw0, sT2, sT0)); a(salu("s_add_u32", sOw1, sT2, sT1))
    for p in (3, 2, 1, 0):
        a(salu("s_add_u32", sP(p), sP(0), 256 * p)); a(salu("s_and_b32", sP(p), sP(p), 1023))
    a(valu("v_mov_b32", t1, "0x3f803f80"))
    for r in range(4): a(valu("v_accvgpr_write_b32", (ONES[r], "ones"), t1))
    return P, first, Q

def build_main(o):
    P, first, Q = prologue(o)
    sc = Sched(vmgap=int(o.vmgap), dswgap=int(o.dswgap), maxmem=int(o.maxmem))
    F = sc.f
    nstamp = [1]
    def stamp(g, after=()):
        if o.stamps:
            n = nstamp[0]; nstamp[0] += 1
            F(raw(f"s_memrealtime s[{64+2*n}:{65+2*n}]"), g, g, after=after)
    nextvm = [0]
    def spread(ops, lo, step, q="dma", after=(), kinds=("dma", "vml", "vms"), cap=None, state=nextvm):
        out = []; pos = max(lo, state[0]); pend = []
        for x in ops:
            pend.append(x)
            if x.kind in kinds:
                a_, b_ = int(pos), int(pos + step)
                if cap is not None: a_, b_ = min(a_, cap), min(b_, cap)
                for y in pend[:-1]: out.append(F(y, max(lo, min(a_ - 3, b_)), b_, q=q, after=after))
                out.append(F(x, a_, b_, q=q, after=after)); pend = []
                pos += step
        assert not pend
        state[0] = pos
        return out
    if o.st0:
        n = nstamp[0]; nstamp[0] += 2
        first = [raw(f"s_memrealtime s[{64+2*n}:{65+2*n}]")] + first + [raw(f"s_memrealtime s[{66+2*n}:{67+2*n}]")]
    for i in first + Q: F(i, -1, -1, q="dma")
    k0, fu, lu, lub9, blk_last = {}, {}, {}, {}, {}
    for i in range(16):
        k0[i] = sc.n
        if i < 15: order = [(f, b) for f in range(8) for b in range(5) if b < 4 or f < 4]
        else: order = [(f, 4) for f in range(4)] + [(f, b) for b in range(4) for f in range(8)]
        for f, b in order:
            d = ACC(b, f) if b < 4 else A9(f)
            bb = (Bq(i, b), f"x{i}.{b}") if b < 4 else (B9(i), f"x{i}.4")
            n = sc.m(mfma((d, f"q{i}.{b}.{f}"), (Aq(f), f"w{i}.{f}"), bb, 0 if i == 0 else (d, f"q{i-1}.{b}.{f}")))
            fu.setdefault((i, f), n); lu[(i, f)] = n
            if b == 4: lub9[i] = n
            blk_last[(b, f)] = n
    k0[16] = sc.n
    def rdA(i, f):
        u = WQU[i % 6]; win = 0 if u <= 4 else 1
        off = (u - 1 - 4 * win) * US + ((f >> 1) & 1) * 64 + (f & 1) * 32
        return [dsr(TR, (Aq(f).sub(2 * h, 2), f"w{i}.{f}"), qWr(win, f >> 2), off + 512 * h) for h in range(2)]
    def rdB(i, b):
        u = XU[(i >> 1) % 3]; win = 1 if u == 7 else 0
        return dsr(B128, (Bq(i, b), f"x{i}.{b}"), qXr(win), (u - 7 * win) * US + (b >> 1) * GRP + (b & 1) * 512 + (i & 1) * 64)
    def rdB9(i):
        return dsr(B128, (B9(i), f"x{i}.4"), qX9r, ((i >> 2) & 1) * GRP + ((i >> 1) & 1) * 512 + (i & 1) * 64)
    bpre = F(barrier(vm=("x0", "xn0", "wq0")), -1, -1, q="dma")
    stamp(-1, [bpre])
    prev = []
    for x in rdA(0, 0) + [rdB(0, b) for b in range(4)] + [rdB9(0)] + rdA(0, 1) + rdA(0, 2):
        prev.append(F(x, -1, -1, q="lds", after=[bpre]))
    for x in sum((rdA(0, f) for f in range(3, 8)), []) + [rdB(1, b) for b in range(4)] + [rdB9(i) for i in (1, 2, 3)]:
        prev.append(F(x, -1, 5, q="lds", after=[bpre]))
    qdl = lambda i: max(44, 100 - 12 * i)
    BQ = {}
    kvw = []
    for i in range(16):
        g = k0[i] + (12 if i == 0 else 8)
        vm = []
        if i < 15:
            vm.append(f"wq{i+1}")
            if i & 1: vm.append(f"x{(i+1)//2}")
            if i % 4 == 3: vm.append(f"xn{(i+1)//4}")
        if i == 10 and int(o.dy): vm = ["wq15", "ct", "all0"]
        bq = BQ[i] = F(barrier(vm=vm), g, g, after=prev)
        prev = []
        end = k0[i + 1] + 2
        if o.qst and i in eval(o.qst): stamp(g, [bq])
        if i < 15:
            for f in range(8):
                for x in rdA(i + 1, f):
                    prev.append(F(x, max(lu[(i, f)], g), max(min(fu[(i + 1, f)] - 6, end), lu[(i, f)]), q="ldsA", after=[bq]))
            if i & 1:
                for ii in (i + 1, i + 2):
                    for b in range(4): prev.append(F(rdB(ii, b), g, k0[i + 1] - (8 if ii == i + 1 else 0), q="ldsB", after=[bq]))
            if i % 4 == 3:
                for ii in range(i + 1, i + 5):
                    prev.append(F(rdB9(ii), max(g, lub9[i]) if ii == i + 4 else g, k0[i + 1] - 4, q="ldsB9", after=[bq]))
    step = 3.0; seen = set(o.qseq.split("|")[0].split(","))
    for tok in o.qseq.split("|")[1].split(","):
        if tok[0] == "@": nextvm[0] = max(nextvm[0], int(float(tok[1:]) * 36)); continue
        if tok[0] == "+": nextvm[0] += int(tok[1:]); continue
        if tok[0] == "p": step = float(tok[1:]); continue
        if tok[0] == "a" and not int(o.dy): continue
        seen.add(tok)
        if tok[0] in o.abl.replace("k", "ks").replace("x", "xn"): continue
        ops, dep = qtok(tok, o)
        spread(ops, BQ[dep].lo if dep >= 0 else 0, step, after=[BQ[dep]] if dep >= 0 else [])
    assert len([t for t in seen if t[0] not in 'ca']) == 16 + 8 + 4 + 4 + 4, sorted(seen)
    stamp(k0[15])
    NU = 72
    blk = lambda U: (0, 1, 2, 3, 4, 0, 1, 2, 3)[U % 9]
    isY = lambda U: 1 if U % 9 >= 5 else 0
    pre0, preL, qk0, qkL, pv0, pvL, slot = {}, {}, {}, {}, {}, {}, {}
    def emit_pre(b):
        pre0[b] = sc.n
        for t in range(4):
            preL[b] = sc.m(mfma((NM(b), f"pm{b}"), (KF(0, 0, t), "k0.0"), (QF(b, t), f"Q{b}"), 0 if t == 0 else (NM(b), f"pm{b}")))
    def emit_qk(U):
        qk0[U] = sc.n; b, y, e = blk(U), isY(U), U // 9
        for t in range(4):
            for h in range(2):
                d = SB(U & 1).sub(4 * h, 4)
                qkL[U] = sc.m(mfma((d, f"s{U}"), (KF(y, h, t), f"k{e}.{y}"), (QF(b, t), f"Q{b}"),
                                   (NM(b), f"nm{b}") if t == 0 else (d, f"s{U}")))
    def emit_pv(U):
        pv0[U] = sc.n; b, y, e = blk(U), isY(U), U // 9
        first_ = U < 5
        pU = U - (9 if b == 4 else (5 if y else 4))
        sc.m(mfma((LS(b), f"l{U}"), (ONES, "ones"), (PB(U & 1), f"p{U}"), 0 if first_ else (LS(b), f"l{pU}")))
        for d in range(8):
            acc = ACC(b, d) if b < 4 else O9(d)
            pvL[U] = sc.m(mfma((acc, f"o{U}"), (VF(y, d), f"v{e}.{y}"), (PB(U & 1), f"p{U}"), 0 if first_ else (acc, f"o{pU}")))
    emit_pre(0); emit_pre(1); emit_qk(0)
    for U in range(NU + 1):
        slot[U] = sc.n
        if U + 2 < 5: emit_pre(U + 2)
        if U + 1 < NU: emit_qk(U + 1)
        if U >= 1: emit_pv(U - 1)
    attn_end = sc.n - 1
    ou0, ouL = {}, {}
    for p in range(4):
        for qb in range(9):
            n = 9 * p + qb; ou0[n] = sc.n
            for ks in range(8):
                for u in range(2):
                    d = SB(n & 1).sub(4 * u, 4)
                    ouL[n] = sc.m(mfma((d, f"r{n}"), (Ao(p, ks, u), f"wo{p}"), (Bo(qb, ks), f"of{qb}"), 0 if ks == 0 else (d, f"r{n}")))
    last = sc.n - 1
    if o.xst:
        for g_ in eval(o.xst): stamp(g_)
    def pack_q(src, dst, tsrc, tdst, lo, hi, q):
        ops = []
        for m in range(8): ops.append(valu("v_mul_f32", (src[m], "t"), sC[0], (src[m], tsrc[m >> 2])))
        for m in range(4): ops.append(valu("v_cvt_pk_bf16_f32", (dst[m], "t2"), (src[2 * m], "t"), (src[2 * m + 1], "t")))
        ops.append(swap("v_permlane32_swap_b32", (dst[0], "t2"), (dst[2], "t2"), tdst, tdst))
        ops.append(swap("v_permlane32_swap_b32", (dst[1], "t2"), (dst[3], "t2"), tdst, tdst))
        return [F(x, lo, hi, q=q) for x in ops]
    q9w = []
    for t in range(2):
        l = pack_q(SB(t), PB(t), [f"q15.4.{2*t}", f"q15.4.{2*t+1}"], "q9p", blk_last[(4, 2 * t + 1)] + 3, pre0[0] - 2, "qe")
        q9w.append(F(dsw("ds_write_b128", vA8, (PB(t), "q9p"), 1024 * t), k0[15] + 8, qk0[0] - 1, q="q9w", after=[l[-1], BQ[15]]))
    for b in range(4):
        for t in range(4):
            pack_q(V(32 * b + 8 * t, 8), QF(b, t), [f"q15.{b}.{2*t}", f"q15.{b}.{2*t+1}"], f"Q{b}",
                   blk_last[(b, 2 * t + 1)] + 3, pre0[b] - 1 + t, "qe")
    for b in range(5):
        n = NM(b); pm = f"pm{b}"; nm = f"nm{b}"
        ops = [valu("v_accvgpr_read_b32", vT1, SAV(b)),
               valu("v_max3_f32", n[0], (n[0], pm), (n[1], pm), vT1), valu("v_max3_f32", n[0], n[0], (n[2], pm), (n[3], pm)),
               valu("v_mov_b32", n[1], n[0]), swap("v_permlane32_swap_b32", n[0], n[1]), valu("v_max_f32", n[0], n[0], n[1]),
               valu("v_mov_b32", n[1], n[0]), swap("v_permlane16_swap_b32", n[0], n[1]),
               I(f"v_min_f32_e64 {n[0]}, -{n[0]}, -{n[1]}", "valu", rd=[n[0], n[1]], wr=[(n[0], nm)])]
        ops += [valu("v_mov_b32", (n[1], nm), (n[0], nm)), valu("v_mov_b64", (n.sub(2, 2), nm), (n.sub(0, 2), nm))]
        for x in ops: F(x, min(preL[b] + 3, qk0[b] - 1), qk0[b] - 1, q="nm")
    for U in range(NU):
        s_, p_ = SB(U & 1), PB(U & 1)
        hi = (qk0[U + 2] if U + 2 < NU else pv0[U]) - 1
        hi = min(hi, pv0[U] - 1)
        lo = min(qkL[U] + 3, hi)
        loc = max(lo, pvL[U - 2]) if U >= 2 else lo
        ex = [F(trans("v_exp_f32", (s_[j], f"e{U}"), (s_[j], f"s{U}")), lo, hi - (1 if hi > lo else 0), q="exp") for j in range(8)]
        for m in range(4):
            F(valu("v_cvt_pk_bf16_f32", (p_[m], f"p{U}"), (s_[2 * m], f"e{U}"), (s_[2 * m + 1], f"e{U}")),
              loc, hi, q="cvt", after=[ex[min(2 * m + 2, 7)]] + (q9w if U < 2 else []))
    def rdK(e, y):
        return [dsr(B128, (KF(y, h, t), f"k{e}.{y}"), Kr(y, t >> 1), (e & 1) * 2 * US + 512 * h + 64 * (t & 1))
                for t in range(4) for h in range(2)]
    def rdV(e, y):
        return [dsr(TR, (VF(y, d).sub(2 * h, 2), f"v{e}.{y}"), Vr(y, d >> 2), (e & 1) * 2 * US + 512 * h + 32 * (d & 3))
                for d in range(8) for h in range(2)]
    BB = {}
    for e in range(8):
        U0 = 9 * e
        rd = []
        if e == 0:
            g = k0[16] - int(o.wk0)
            wk = F(waitvm("k0"), g, g + 2, q="ldsK")
            for x in rdK(0, 0): rd.append(F(x, g, pre0[0] - 3, q="ldsK"))
            g = slot[0] - 1 + int(o.ba0)
            ba = F(barrier(vm=["v0"]), g, g, after=q9w + [wk])
            for x in rdV(0, 0): rd.append(F(x, g, pv0[0] - 4, q="ldsV", after=[ba]))
            for t in range(4):
                F(dsr(B128, (QF(4, t), "Q4"), vA8 if t < 2 else vB8, 1024 * (t & 1)), g, pre0[4] - 6, q="ldsK", after=[ba])
        else:
            g = slot[U0 - 2] - 1
            wk = F(waitvm(f"k{e}"), g, g + 4, q="ldsK")
            for x in rdK(e, 0): rd.append(F(x, g, slot[U0 - 1] - 6, q="ldsK"))
            g = slot[U0 - 1] - 1
            ba = F(barrier(vm=[f"v{e}"], lgkm=False), g, g, after=[wk])
            for x in rdV(e, 0): rd.append(F(x, g, pv0[U0] - 6, q="ldsV", after=[ba]))
        gb = slot[U0 + 3] - 1 + int(o.bbo) if e else slot[2] - 1 + int(o.bb0)
        for x in rdK(e, 1): rd.append(F(x, g, gb - 5, q="ldsK", after=[ba]))
        for x in rdV(e, 1): rd.append(F(x, max(g, pvL[U0 - 1]) if e else g, gb - 5, q="ldsV", after=[ba]))
        bb = BB[e] = F(barrier(), gb, gb, after=rd)
        if e in (0, 3, 6, 7): stamp(gb, [bb])
        ops = []
        if e < 6:
            for part in range(4): ops += g_kv(e + 2, part, o)
        if e == int(o.ate) and int(o.dy):
            ops += [valu("v_lshl_add_u32", vT0, vL16, 4, sAt), valu("v_mov_b32", vT1, 1),
                    vstore(vT1, vT0, Sdbg, 0, 0, "sc1" if o.rdy == "byte" else "", tag="at", op="buffer_store_byte" if o.rdy == "byte" else "buffer_atomic_add")]
        if e == 4 and int(o.cpf): ops += code_touch(0, V(254, 2), vTs, vL16, shift=3)
        if e == 6:
            ops += [valu("v_mov_b32", vKV(0), vWo0)] + [valu("v_subrev_u32", vKV(pp), 32 * pp, vWo0) for pp in (1, 2, 3)]
            for part in range(4): ops += g_wo(0, part)
        if e == 6: spread(ops, slot[U0 + int(o.wo0)], float(o.wostep), after=[bb])
        else: spread(ops, gb, float(o.astep if e < 5 else o.astep5), after=[bb])
    U0 = 63
    vW = lambda win: Kr(0, win)
    vOw = lambda hf: Vr(0, hf)
    vBr = lambda win: Kr(1, win)
    vLMw, vLMr = Vr(1, 0), Vr(1, 1)
    gb = BB[7].lo
    adr = [valu("v_mov_b32", vW(0), vWpat), valu("v_add_u32", vW(1), 4 * US, vWpat),
           valu("v_bfe_u32", vLMr, vL16, 1, 7), valu("v_add_u32", vLMw, sLMw, vLMr), valu("v_add_u32", vLMr, sLMr, vLMr),
           valu("v_add_u32", vOw(0), sOw0, vL16), valu("v_add_u32", vOw(1), sOw1, vL16),
           valu("v_add_u32", vBr(0), 2 * US, vL16), valu("v_add_u32", vBr(1), 6 * US, vL16)]
    adr = [F(x, gb, gb + 12, q="adr", after=[BB[7]]) for x in adr]
    def rdAo(p):
        ops = []
        for ks in range(8):
            unit = KVU(p & 1)[ks >> 1]; win = unit >> 2
            for u in range(2):
                for h in range(2):
                    ops.append(dsr(TR, (Ao(p, ks, u).sub(2 * h, 2), f"wo{p}"), vW(win),
                                   (unit & 3) * US + (ks & 1) * 2 * GRP + 512 * h + 32 * u))
        return ops
    gc = slot[U0 + 8] - 1
    rd = []
    gw = slot[U0 + 6] - 1
    bw = F(barrier(vm=["wo0"], lgkm=False), gw, gw, after=[BB[7]])
    for n, x in enumerate(rdAo(0)):
        rd.append(F(x, gw, gc - 4, q="ldsK", after=[adr[-1], bw]))
    g = pvL[U0 + 4] + 3
    t9 = f"o{U0+4}"
    n9 = NM(4)
    raww = [valu("v_accvgpr_read_b32", vT0, (LS(4)[0], f"l{U0+4}")), valu("v_mov_b32", vT1, (n9[0], "nm4")),
            valu("v_mov_b32", n9[1], vT0), dsw("ds_write_b64", vLMw, V(254, 2), 0)]
    raww += [dsw("ds_write_b128", vA8, (O9(4 + d), t9), 1024 * d) for d in range(4)]
    raww = [F(x, g, pvL[U0 + 5], q="ep", after=[adr[-1]]) for x in raww]
    bc = F(barrier(), gc, gc, after=rd + raww)
    ops = []
    for part in range(4): ops += g_wo(1, part)
    wo1_units = KVU(0)
    ops = []
    for part in range(4): ops += group(wo1_units[part] * US, sGrp, vKV, Swo, (sP(1), part * 65536, 0), "", "wo1")
    spread(ops, gc, 1.1, after=[bc], cap=attn_end)
    ow = []
    def norm_block(b):
        U = U0 + 5 + b; lo = min(pvL[U] + 3, attn_end); a32 = V(32 * b, 32)
        ops = [valu("v_accvgpr_read_b32", vT1, (LS(b)[0], f"l{U}")), trans("v_rcp_f32", vT0, vT1),
               valu("v_mov_b32", vTs, vT1) if b == 0 else valu("v_add_f32", vTs, vTs, vT1)]
        for k in range(4):
            for m in range(4):
                r = a32.sub(8 * k + 2 * m, 2)
                if b >= int(o.pkfrom): ops.append(valu("v_pk_mul_f32", (r, "n"), (r, f"o{U}"), V(254, 2), extra="op_sel_hi:[1,0]"))
                else: ops += [valu("v_mul_f32", (r[z], "n"), (r[z], f"o{U}"), vT0) for z in range(2)]
            for m in range(4):
                ops.append(valu("v_cvt_pk_bf16_f32", (a32[4 * k + m], "of"), (a32[8 * k + 2 * m], "n"), (a32[8 * k + 2 * m + 1], "n")))
            ops.append(dsw("ds_write_b128", vOw(k >> 1), (a32.sub(4 * k, 4), "of"), (2 + (b >> 1)) * US + (b & 1) * 8192 + (k & 1) * 1024))
        for x in ops: ow.append(F(x, lo, attn_end, q="ep"))
    norm_block(0); norm_block(1)
    rcv = V(216, 16); own = SB(U0 + 7 & 1)
    mr = [dsr("ds_read_b64", n9.sub(2, 2), vLMr, 0)] + [dsr(B128, (rcv.sub(4 * d, 4), "rcv"), vB8, 1024 * d) for d in range(4)]
    mr = [F(x, gc, gc + 4, q="ldsV", after=[bc]) for x in mr]
    ops = [valu("v_sub_f32", n9[3], (n9[0], "nm4"), n9[3]), trans("v_exp_f32", n9[3], n9[3]),
           valu("v_fma_f32", n9[1], n9[2], n9[3], n9[1]), trans("v_rcp_f32", vT0, n9[1]),
           valu("v_add_f32", vTs, vTs, n9[1]), salu("s_lshl_b32", sT0, sW, 11), valu("v_add_u32", vLMw, sT0, vBr(1))]
    for k in range(2):
        for m in range(8): ops.append(valu("v_accvgpr_read_b32", (own[m], "own"), (A(128 + 8 * k + m), t9)))
        for m in range(8): ops.append(valu("v_fma_f32", (own[m], "mg"), (rcv[8 * k + m], "rcv"), n9[3], (own[m], "own")))
        for m in range(4): ops.append(valu("v_pk_mul_f32", (own.sub(2 * m, 2), "n"), (own.sub(2 * m, 2), "mg"), V(254, 2), extra="op_sel_hi:[1,0]"))
        for m in range(4): ops.append(valu("v_cvt_pk_bf16_f32", (rcv[8 * k + m], "of"), (own[2 * m], "n"), (own[2 * m + 1], "n")))
        ops.append(dsw("ds_write_b128", vLMw, (rcv.sub(8 * k, 4), "of"), 3 * US + 1024 * k))
    for x in ops: ow.append(F(x, pv0[U0 + 7], attn_end, q="ep", after=mr))
    norm_block(2); norm_block(3)
    ops = [salu("s_lshl_b32", sT0, sW, 2), valu("v_add_u32", vLMr, sT0, vBr(1)), dsw("ds_write_b32", vLMr, vTs, FLAG - 6 * US)]
    for x in ops: ow.append(F(x, attn_end, attn_end, q="ep"))
    b1 = F(barrier(), attn_end, attn_end, q="dma", after=ow)
    stamp(attn_end, [b1])
    fl = V(216, 4)
    def rdBo(qb, ks):
        if qb < 8: return dsr(B128, (Bo(qb, ks), f"of{qb}"), vBr(qb >> 2), ((qb >> 1) & 1) * US + (qb & 1) * 8192 + 1024 * ks)
        return dsr(B128, (Bo(qb, ks), f"of{qb}"), vBr(1), 3 * US + 1024 * ks)
    gd = {p: ou0[9 * p + 5] - 1 for p in range(3)}
    rd = []
    for ks in range(8): rd.append(F(rdBo(0, ks), attn_end, attn_end, q="ldsB", after=[b1]))
    fr = F(dsr(B128, fl, vBr(1), FLAG - 6 * US), attn_end, attn_end, q="ldsB")
    chk = [valu("v_add_f32", fl[0], fl[0], fl[1]), valu("v_add_f32", fl[2], fl[2], fl[3]), valu("v_add_f32", fl[0], fl[0], fl[2]),
           raw(f"v_cmp_nge_f32 vcc, {hex(THR)}, {fl[0]}", rd=[fl[0]], kind="valu"),
           raw(f"s_cmp_eq_u32 s54, {77 if o.abl else 0}"), raw("s_cselect_b64 vcc, vcc, 0"), raw("s_cbranch_vccnz Lslow"),
           salu("s_lshl_b32", sT0, sW, 10), valu("v_add_u32", vA8, sT0, vL16)]
    chk = [F(x, attn_end + 6, attn_end + 12, q="dma", after=[fr]) for x in chk]
    for qb in range(1, 9):
        for ks in range(8):
            rd.append(F(rdBo(qb, ks), attn_end, min(ou0[qb] - 6 + 2 * ks, gd[0] - 5), q="ldsB", after=[chk[6]] if qb >= 4 else []))
    wo_units = {2: KVU(1), 3: KVU(0)}
    def rdAo2(p, units):
        ops = []
        for ks in range(8):
            unit = units[ks >> 1]; win = unit >> 2
            for u in range(2):
                for h in range(2):
                    ops.append(dsr(TR, (Ao(p, ks, u).sub(2 * h, 2), f"wo{p}"), vW(win),
                                   (unit & 3) * US + (ks & 1) * 2 * GRP + 512 * h + 32 * u))
        return ops
    allu = {1: wo1_units, **wo_units}
    BD = {}
    for p in range(3):
        bd = BD[p] = F(barrier(vm=[f"wo{p+1}"] + ([f"st{p-1}", "rdy"] if p and int(o.dy) else [])), gd[p], gd[p], after=rd)
        if p + 2 < 4:
            ops = []
            for part in range(4): ops += group(allu[p + 2][part] * US, sGrp, vKV, Swo, (sP(p + 2), part * 65536, 0), "", f"wo{p+2}")
            spread(ops, gd[p], float(o.ostep), after=[bd])
        rd = [F(x, gd[p], ou0[9 * p + 9] - 6, q="ldsK", after=[bd]) for x in rdAo2(p + 1, allu[p + 1])]
    for n in range(36):
        s_, p_ = SB(n & 1), PB(n & 1)
        lo = min(ouL[n] + 3, last); hi = min(lo + 8, last)
        ops = [valu("v_cvt_pk_bf16_f32", (p_[m], f"rp{n}"), (s_[2 * m], f"r{n}"), (s_[2 * m + 1], f"r{n}")) for m in range(4)]
        ops += [salu("s_mul_i32", sSt, sP(n // 9), 144) if n % 9 == 0 else salu("s_add_u32", sSt, sSt, 4096), vstore((p_, f"rp{n}"), vA8, Sws, sSt, 0, o.stflag, tag=f"st{n//9}")]
        for x in ops: F(x, lo, hi, q="st", after=[chk[-1]])
    if int(o.dy):
        vF, vOne, vRdy, vPo, vR, vO, SEL, t = V(220), V(221), V(222), V(223), V(224, 3), V(228, 3), V(160, 8), V(168, 4)
        g = ou0[2]; vRdA = V(227)
        ops = [salu("s_lshl_b32", sT1, sB, 4), valu("v_bfe_u32", vRdA, vL16, 2, 4 if o.rdy == "byte" else 2), valu("v_add_u32", vRdA, sT1, vRdA),
               vload(vRdy, vRdA, Sdbg, 0, 0, "sc1", tag="rdy", op="buffer_load_dword"),
               salu("s_lshl_b32", sT0, sW, 7), salu("s_lshl_b32", sT1, sJ, 2), salu("s_add_u32", sT0, sT0, sT1),
               valu("v_lshlrev_b32", vF, 7, vL16), valu("v_add_u32", vF, sT0, vF), valu("v_mov_b32", vOne, 1),
               valu("v_bfe_u32", vPo, vL16, 2, 6), valu("v_lshrrev_b32", t[0], 8, vL16), valu("v_lshl_add_u32", vPo, t[0], 11, vPo),
               salu("s_lshl_b32", sT0, sJ, 7), valu("v_add_u32", vPo, sT0, vPo),
               salu("s_lshr_b32", sT0, sJ, 2), salu("s_mul_i32", sT0, sT0, 9), salu("s_add_u32", sT0, sT0, sW), salu("s_lshl_b32", sT0, sT0, 2),
               salu("s_and_b32", sT1, sJ, 3), salu("s_add_u32", sT0, sT0, sT1), salu("s_lshl_b32", sT0, sT0, 10),
               valu("v_add_u32", vR[0], sT0, vL16), valu("v_add_u32", vR[1], 16384, vR[0]),
               salu("s_lshl_b32", sT1, sW, 28), salu("s_add_u32", sT0, sT1, 32768), valu("v_add_u32", vR[2], sT0, vR[0]),
               valu("v_bfe_u32", t[1], vL16, 4, 4), valu("v_lshlrev_b32", vO[0], 10, t[1]), valu("v_lshl_add_u32", vO[0], t[0], 4, vO[0]),
               salu("s_lshl_b32", sT0, sW, 14), salu("s_lshl_b32", sT2, sJ, 6), salu("s_add_u32", sT0, sT0, sT2),
               valu("v_add_u32", vO[0], sT0, vO[0]), valu("v_add_u32", vO[1], 65536, vO[0]),
               salu("s_add_u32", sT0, sT1, 131072), valu("v_add_u32", vO[2], sT0, vO[0]),
               valu("v_and_b32", t[2], 1, t[1]), valu("v_lshlrev_b32", t[2], 4, t[2]), valu("v_mov_b32", t[3], "0x3f80"),
               valu("v_lshlrev_b32", t[2], t[2], t[3]),
               valu("v_bfe_u32", t[3], t[1], 2, 1), valu("v_xor_b32", t[3], t[3], t[0]),
               valu("v_and_b32", t[0], 1, t[3]), valu("v_lshlrev_b32", t[0], 3, t[0]),
               valu("v_lshrrev_b32", t[3], 1, t[3]), valu("v_lshl_add_u32", t[0], t[3], 2, t[0]),
               valu("v_lshrrev_b32", t[3], 3, t[1]), valu("v_lshl_add_u32", t[0], t[3], 1, t[0]),
               valu("v_bfe_u32", t[3], t[1], 1, 1), valu("v_add_u32", t[0], t[0], t[3])]
        for m in range(8):
            ops.append(raw(f"v_cmp_eq_u32 vcc, {m}, {t[0]}\ns_nop 1\nv_cndmask_b32 {SEL[m]}, 0, {t[2]}, vcc", rd=[t], wr=[SEL[m]], kind="valu", cost=2))
        pre = [F(x, g, gd[1] - 1, q="fl", after=[chk[-1]]) for x in ops]
        for p in range(3):
            g = gd[p + 1] if p < 2 else ou0[32] - 1
            ops = []
            if p == 0: ops += [raw(f"v_cmp_ne_u32 vcc, {rdyv(o)}, {vRdy}\ns_nop 0\ns_cbranch_vccnz Lrdy_spin\nLrdy_back:", rd=[vRdy], kind="valu", cost=2)]
            if p == 2: ops += [waitvm("st2")]
            ops += [salu("s_lshl_b32", sT0, sP(p), 1), vstore(vOne, vF, Smb, sT0, 0, "sc1", tag="fl", op="buffer_store_dword")]
            for x in ops: F(x, g, g + 1, q="fl", after=[BD[p + 1]] if p < 2 else [])
    seq = sc.run()
    if "m" in o.abl: seq = [x for x in seq if not (x.gap < k0[15] and x.kind in ("mfma", "dsr"))]
    if "r" in o.abl: seq = [x for x in seq if not (x.gap < k0[15] and x.kind in ("dsr",))]
    if "f" in o.abl: seq = [x for x in seq if not (x.gap < k0[15] and x.kind in ("mfma",))]
    if "a" in o.abl: seq = [x for x in seq if not (x.gap > 100 and x.kind in ("dma", "vml", "vms"))]
    if "b" in o.abl: seq = [x for x in seq if not (x.kind == "bar")]
    seq = P + seq
    if not o.abl: check_tags(seq)
    seq, nops = pad_hazards(seq)
    sys.stderr.write(f"mfma {len(sc.bb)} instrs {len(seq)} over {sc.stats['over']} idle {sc.stats['idle']} waits {sc.stats['waits']} nop-states {nops}\n")
    marks = dict(q_end=k0[16], attn_end=attn_end)
    return seq, nstamp[0], marks

def dy_tail(o, a, nst):
    vF, vOne, vRdy, vPo, vR, vO, SEL = V(220), V(221), V(222), V(223), V(224, 3), V(228, 3), V(160, 8)
    acc = lambda f, u: V(8 * f + 4 * u, 4)
    buf = lambda t, i, f: A(48 * t + 12 * i + 4 * f, 4)
    poll = f"buffer_load_dword {vRdy}, {vPo}, {Smb}, 0 offen sc1"
    a("s_lshr_b32 s53, s51, 2"); a("s_sub_u32 s53, s53, s50"); a(f"s_lshl_b32 s52, {sP(3)}, 1"); a("s_mov_b32 s63, 0")
    a("s_waitcnt vmcnt(0)")
    a(f"buffer_store_dword {vOne}, {vF}, {Smb}, s52 offen sc1"); a(poll)
    if o.stamps: a(f"s_memrealtime s[{64+2*nst}:{65+2*nst}]")
    def mf(t):
        for i in range(4):
            for f in range(3):
                for u in range(2):
                    a(f"v_mfma_f32_16x16x32_bf16 {acc(f,u)}, {SEL.sub(4*u,4)}, {buf(t,i,f)}, {0 if t == 0 and i == 0 else acc(f,u)}")
    for t in range(4):
        a(f"s_sub_u32 s52, s53, {t}"); a("s_and_b32 s52, s52, 3"); a("s_lshl_b32 s62, 0x1111, s52"); a(f"s_mul_i32 s45, s52, {PART}")
        a(f"s_waitcnt vmcnt({0 if t == 0 else 3})")
        a(f"Lpoll{t}:"); a(f"v_cmp_ne_u32 vcc, 0, {vRdy}"); a("s_nop 0"); a("s_and_b32 s52, vcc_lo, s62"); a("s_cmp_eq_u32 s52, s62")
        a(f"s_cbranch_scc1 Lgo{t}")
        a(poll); a("s_add_u32 s63, s63, 1"); a("s_waitcnt vmcnt(0)"); a("s_cmp_lt_u32 s63, 0x40000"); a(f"s_cbranch_scc1 Lpoll{t}")
        a(f"Lgo{t}:")
        for i in range(4):
            if i == 3 and t < 3: a(poll)
            for f in range(3): a(f"buffer_load_dwordx4 {buf(t,i,f)}, {vR[f]}, {Sred}, s45 offen sc1")
            if i < 3: a(f"s_add_u32 s45, s45, {4*PART}")
        if t:
            a(f"s_waitcnt vmcnt({13 if t < 3 else 12})"); mf(t - 1)
    for i in range(4):
        a(f"s_waitcnt vmcnt({9-3*i})")
        for f in range(3):
            for u in range(2): a(f"v_mfma_f32_16x16x32_bf16 {acc(f,u)}, {SEL.sub(4*u,4)}, {buf(3,i,f)}, {acc(f,u)}")
    a("s_nop 3")
    for f in range(3):
        if f: a("s_nop 1")
        for m in range(4): a(f"v_cvt_pk_bf16_f32 v{32+4*f+m}, v{8*f+2*m}, v{8*f+2*m+1}")
        a(f"buffer_store_dwordx4 v[{32+4*f}:{35+4*f}], {vO[f]}, {Sout}, 0 offen {o.outflag}")

def tail_and_slow(o, nst):
    T = []; a = T.append
    if int(o.dy):
        dy_tail(o, a, nst); nst += 1
    if o.stamps:
        a(f"s_memrealtime s[{64+2*nst}:{65+2*nst}]"); a("s_waitcnt vmcnt(0)")
        a(f"s_memrealtime s[{66+2*nst}:{67+2*nst}]"); a("s_waitcnt lgkmcnt(0)")
        a("s_cmp_lg_u32 s3, 0"); a("s_cbranch_scc1 Lend")
        a("s_load_dwordx2 s[40:41], s[0:1], 56"); a("s_mov_b32 s42, 0x10000000"); a("s_mov_b32 s43, 0x20000"); a("s_waitcnt lgkmcnt(0)")
        a(f"s_lshl_b32 s52, s2, 6"); a(f"s_add_u32 s52, s52, {STAMP_OFF}"); a("v_mov_b32 v1, s52")
        a("s_mov_b64 exec, 1")
        for n in range(nst + 2):
            a(f"v_mov_b32 v2, s{64+2*n}"); a(f"buffer_store_dword v2, v1, s[40:43], 0 offen offset:{4*n}")
    a("Lend:"); a("s_endpgm")
    if int(o.dy):
        a("Lrdy_spin:"); a("s_mov_b32 s63, 0"); a("Lrdy_loop:")
        a(f"buffer_load_dword v222, v227, {Sdbg}, 0 offen sc1"); a("s_add_u32 s63, s63, 1"); a("s_waitcnt vmcnt(0)")
        a(f"v_cmp_ne_u32 vcc, {rdyv(o)}, v222"); a("s_cmp_lt_u32 s63, 0x40000"); a("s_cselect_b64 vcc, vcc, 0")
        a("s_cbranch_vccnz Lrdy_loop"); a("s_branch Lrdy_back")
    a("Lslow:"); a("s_waitcnt vmcnt(0) lgkmcnt(0)"); a("s_nop 7"); a("s_barrier")
    a("v_mbcnt_lo_u32_b32 v0, -1, 0"); a("v_mbcnt_hi_u32_b32 v0, -1, v0")
    a("v_and_b32 v1, 15, v0"); a("v_lshlrev_b32 v1, 8, v1"); a("v_lshrrev_b32 v2, 4, v0"); a("v_lshl_add_u32 v1, v2, 4, v1")
    a("s_lshl_b32 s52, s48, 17"); a("s_add_u32 s52, s52, 128"); a("s_lshl_b32 s53, s49, 7"); a("s_add_u32 s62, s52, s53")
    a("v_add_u32 v2, s62, v1"); a("s_xor_b32 s53, s53, 128"); a("s_add_u32 s62, s52, s53"); a("v_add_u32 v3, s62, v1")
    for b in range(5): a(f"v_mov_b32 v{8+b}, 0xff800000")
    a("s_mov_b32 s45, 0"); a("Lslow_loop:")
    for t in range(4): a(f"buffer_load_dwordx4 v[{16+4*t}:{19+4*t}], v{2+(t>>1)}, s[28:31], s45 offen offset:{64*(t&1)}")
    a("s_waitcnt vmcnt(0)")
    for b in range(5):
        for t in range(4):
            a(f"v_mfma_f32_16x16x32_bf16 {NM(b)}, v[{16+4*t}:{19+4*t}], {QF(b,t)}, {0 if t == 0 else NM(b)}")
    a("s_nop 7"); a("s_nop 1")
    for b in range(5):
        n = NM(b); a(f"v_max3_f32 v{8+b}, v{8+b}, {n[0]}, {n[1]}"); a(f"v_max3_f32 v{8+b}, v{8+b}, {n[2]}, {n[3]}")
    a("s_add_u32 s45, s45, 4096"); a("s_cmp_lt_u32 s45, 131072"); a("s_cbranch_scc1 Lslow_loop")
    for b in range(5): a(f"v_accvgpr_write_b32 {SAV(b)}, v{8+b}")
    a("s_mov_b32 s54, 1"); a("s_branch Lrestart"); a("Lcode_end:")
    return T

def reduce_kernel(o):
    T = []; a = T.append
    a("s_cmp_ge_u32 s2, 576"); a("s_cbranch_scc1 Lrend")
    if o.stamps: a("s_memrealtime s[28:29]")
    a("s_load_dwordx2 s[4:5], s[0:1], 56"); a("s_load_dwordx2 s[8:9], s[0:1], 40")
    a(f"s_mul_hi_u32 s12, s2, {(1 << 32) // 36 + 1}"); a("s_mul_i32 s13, s12, 36"); a("s_sub_u32 s13, s2, s13")
    a(f"s_mul_hi_u32 s14, s13, {(1 << 32) // 9 + 1}"); a("s_mul_i32 s15, s14, 9"); a("s_sub_u32 s15, s13, s15")
    a(f"s_mul_i32 s16, s12, {16 * PART}"); a("s_lshl_b32 s17, s13, 12"); a("s_add_u32 s16, s16, s17")
    a("v_lshlrev_b32 v1, 4, v0")
    a(f"s_mov_b32 s6, {256 * PART}"); a("s_mov_b32 s7, 0x20000"); a(f"s_mov_b32 s10, {16 * PART}"); a("s_mov_b32 s11, 0x20000")
    a("s_waitcnt lgkmcnt(0)")
    for j in range(16):
        a(f"buffer_load_dwordx4 v[{16+4*j}:{19+4*j}], v1, s[4:7], s16 offen")
        if j < 15: a(f"s_add_u32 s16, s16, {PART}")
    a("s_mul_i32 s18, s12, 144"); a("s_lshl_b32 s19, s15, 4"); a("s_add_u32 s18, s18, s19"); a("s_lshl_b32 s18, s18, 10")
    a("s_lshl_b32 s19, s14, 8"); a("s_add_u32 s18, s18, s19")
    a("v_and_b32 v2, 15, v0"); a("v_lshlrev_b32 v2, 10, v2"); a("v_and_b32 v3, 0xf0, v0"); a("v_add_u32 v2, v2, v3")
    a("s_mov_b32 s20, 0xffff0000")
    for j in range(16):
        a(f"s_waitcnt vmcnt({15-j})")
        for m in range(4):
            r = 16 + 4 * j + m
            if j == 0:
                a(f"v_lshlrev_b32 v{4+2*m}, 16, v{r}"); a(f"v_and_b32 v{5+2*m}, s20, v{r}")
            else:
                a(f"v_lshlrev_b32 v12, 16, v{r}"); a(f"v_and_b32 v13, s20, v{r}")
                a(f"v_pk_add_f32 v[{4+2*m}:{5+2*m}], v[{4+2*m}:{5+2*m}], v[12:13]")
    for m in range(4): a(f"v_cvt_pk_bf16_f32 v{12+m}, v{4+2*m}, v{5+2*m}")
    a("s_nop 1"); a("v_permlane32_swap_b32 v12, v14"); a("v_permlane32_swap_b32 v13, v15")
    a("buffer_store_dwordx4 v[12:15], v2, s[8:11], s18 offen")
    if o.stamps:
        a("s_waitcnt vmcnt(0)"); a("s_memrealtime s[30:31]"); a("s_waitcnt lgkmcnt(0)")
        a("s_mov_b32 s6, 0x10000000"); a("s_lshl_b32 s16, s2, 3"); a(f"s_add_u32 s16, s16, {STAMP_OFF + 65536}")
        a("v_mov_b32 v1, s16"); a("v_mov_b32 v2, s28"); a("v_mov_b32 v3, s30")
        if o.enc:
            ea, eb = o.enc.split(",")
            a("s_cmp_lg_u32 s2, 575"); a("s_cbranch_scc1 Lnoenc")
            a(f"s_add_u32 s12, s4, {STAMP_OFF + 64 * 100}"); a("s_addc_u32 s13, s5, 0")
            a(f"s_load_dword s14, s[12:13], {4*int(ea)}")
            if eb.isdigit(): a(f"s_load_dword s15, s[12:13], {4*int(eb)}")
            else: a(f"s_mov_b32 s15, {'s30' if eb == 'e' else 's28'}")
            a("s_waitcnt lgkmcnt(0)"); a("s_sub_u32 s14, s15, s14"); a("s_mul_i32 s14, s14, 10"); a("s_min_u32 s14, s14, 200000")
            a("Lspin:"); a("s_memrealtime s[24:25]"); a("s_waitcnt lgkmcnt(0)"); a("s_sub_u32 s24, s24, s30")
            a("s_cmp_lt_u32 s24, s14"); a("s_cbranch_scc1 Lspin"); a("Lnoenc:")
        if o.dbg:
            a("s_cmp_lg_u32 s2, 575"); a("s_cbranch_scc1 Lnodbg")
            a("s_load_dwordx2 s[8:9], s[0:1], 48"); a("s_mov_b32 s10, 256")
            a("v_lshlrev_b32 v4, 6, v0"); a(f"s_mov_b32 s17, {STAMP_OFF}")
            for n in range(3): a(f"buffer_load_dwordx4 v[{16+4*n}:{19+4*n}], v4, s[4:7], s17 offen offset:{16*n}")
            a("v_mov_b32 v5, 0"); a("s_waitcnt vmcnt(0) lgkmcnt(0)"); a("v_not_b32 v6, v16")
            for n in range(12): a(f"buffer_atomic_umax v{16+n}, v5, s[8:11], 0 offen offset:{4*n}")
            a("buffer_atomic_umax v6, v5, s[8:11], 0 offen offset:60")
            a("buffer_atomic_umax v2, v5, s[8:11], 0 offen offset:52")
            a("buffer_atomic_umax v3, v5, s[8:11], 0 offen offset:56")
            a("Lnodbg:")
        a("v_cmp_eq_u32 vcc, 0, v0"); a("s_and_saveexec_b64 s[22:23], vcc"); a("s_cbranch_execz Lrend")
        a("buffer_store_dwordx2 v[2:3], v1, s[4:7], 0 offen")
    a("Lrend:"); a("s_endpgm")
    return T

KD = """.amdhsa_kernel {name}
  .amdhsa_next_free_vgpr {vg}
  .amdhsa_next_free_sgpr {sg}
  .amdhsa_accum_offset {acc}
  .amdhsa_group_segment_fixed_size 0
  .amdhsa_kernarg_size 64
  .amdhsa_user_sgpr_count 2
  .amdhsa_user_sgpr_kernarg_segment_ptr 1
  .amdhsa_system_sgpr_workgroup_id_x 1
  .amdhsa_float_denorm_mode_32 3
.end_amdhsa_kernel"""

def generate(o):
    hdr = [l.rstrip("\n") for l in open(f"cdna_kernels/{NAME}.s.ref") if l.startswith(";") and "launch" not in l and "grid=" not in l]
    seq, nst, marks = build_main(o)
    dy = int(o.dy)
    L = hdr + ([f"; @launch grid=(256,1,1) block=(256,1,1) lds={LDSB}"] if dy else [
               f"; @launch kernel={NAME}_kernel grid=(256,1,1) block=(256,1,1) lds={LDSB}",
               "; @launch kernel=mha_reduce_kernel grid=(576,1,1) block=(256,1,1) lds=0"]) + [
               '.amdgcn_target "amdgcn-amd-amdhsa--gfx950"', ".text",
               f".globl {NAME}_kernel", ".p2align 8", f".type {NAME}_kernel,@function", f"{NAME}_kernel:"]
    L += [i.text for i in seq] + tail_and_slow(o, nst)
    if not dy: L += [".globl mha_reduce_kernel", ".p2align 8", ".type mha_reduce_kernel,@function", "mha_reduce_kernel:"] + reduce_kernel(o)
    L += ['.section .rodata,"a"', ".p2align 6", KD.format(name=f"{NAME}_kernel", vg=512, sg=102, acc=256)]
    if not dy: L += [".p2align 6", KD.format(name="mha_reduce_kernel", vg=80, sg=32, acc=80)]
    txt = "\n".join(L) + "\n"
    if int(o.clk): txt = txt.replace("s_memrealtime", "s_memtime")
    return txt

if __name__ == "__main__":
    o = Opt()
    out = sys.argv[1]
    for kv in sys.argv[2:]:
        k, v_ = kv.split("=", 1)
        setattr(o, k, {"1": True, "0": False}.get(v_, v_) if k in ("stamps","dbg") else v_)
    open(out, "w").write(generate(o))
```

```python
import sys, math, struct
from dsl import *

NAME = "standalone__mha_block_cached__near_ridge"
US, GRP, PS = 17024, 4224, 1056
X9 = 9 * US
FLAG = X9 + 8448
LDSB = 163840
PART = 147456
STAMP_OFF = 0x4000000
MBOFF = 256 * PART
def fbits(x): return struct.unpack("<I", struct.pack("<f", x))[0]
CSC = fbits(math.log2(math.e) / math.sqrt(128.0))
THR = fbits(2.0 ** 40)

Sx, Swq, Sk, Sv, Swo, Sws = S(20, 4), S(24, 4), S(28, 4), S(32, 4), S(36, 4), S(40, 4)
sW, sGrp, sOff, sC, sHH, sQH, sB, sJ = S(3), S(44), S(45), S(46, 2), S(48), S(49), S(50), S(51)
sT0, sT1, sMode, sX9, s4096, sOw0, sOw1, sLMw, sLMr, sSt, sT2 = S(52), S(53), S(54), S(55), S(56), S(57), S(58), S(59), S(60), S(61), S(62)
ACC = lambda b, f: V(32 * b + 4 * f, 4)
QF = lambda b, t: (V(128 + 16 * b + 4 * t, 4) if b < 4 else A(180 + 4 * t, 4))
SB = lambda k: V(192 + 8 * k, 8)
PB = lambda k: V(208 + 4 * k, 4)
NM = lambda b: V(216 + 4 * b, 4)
Kr = lambda y, hf: V(236 + 2 * y + hf)
Vr = lambda y, hf: V(240 + 2 * y + hf)
vKV = lambda pp: V(244 + pp)
vL16, vWpat, vWo0, vA8, vB8, vTs, vT0, vT1 = V(248), V(249), V(250), V(251), V(252), V(253), V(254), V(255)
qWr = lambda win, hf: V(216 + 2 * win + hf)
qXr = lambda win: V(220 + win)
qX9r = V(222)
qKw = lambda win: V(223 + win)
qWd = lambda pp: V(225 + pp)
qXd = lambda pp: V(229 + pp)
qX9d = V(233)
KF = lambda y, h, t: A(32 * y + 4 * (2 * t + h), 4)
VF = lambda y, d: A(64 + 32 * y + 4 * d, 4)
O9 = lambda d: A(128 + 4 * d, 4)
LS = lambda b: A(160 + 4 * b, 4)
ONES = A(196, 4)
SAV = lambda b: A(248 + b)
Aq = lambda f: A(32 + 4 * f, 4)
Bq = lambda i, b: A((128, 144, 200, 216)[i % 4] + 4 * b, 4)
B9 = lambda i: A(232 + 4 * (i % 4), 4)
A9 = lambda f: V(192 + 4 * f, 4)
KVst = lambda kv, n: A(64 + 32 * kv + 4 * n, 4)
WQU = {4: 1, 5: 4, 0: 5, 1: 3, 2: 6, 3: 8}
XU = {2: 0, 0: 2, 1: 7}
KVU = lambda slot: (2 * slot, 2 * slot + 1, 4 + 2 * slot, 5 + 2 * slot)
def Ao(p, ks, u):
    n = 2 * ks + u
    return A((0 if n < 8 else 64) + 32 * (p & 1) + 4 * (n & 7), 4)
def Bo(qb, ks):
    if qb < 4: return V(32 * qb + 4 * ks, 4)
    if qb < 8: return A(128 + 32 * (qb - 4) + 4 * ks, 4)
    return V(128 + 4 * ks, 4)
TR, B128 = "ds_read_b64_tr_b16", "ds_read_b128"

class Opt:
    stamps = False
    kvflag = "nt"
    stflag = "sc1"
    dbg = False
    wsoff = 0
    rdy = 'atomic'
    ate = 2
    outflag = ''
    st0 = False
    bbo = 17
    maxmem = 1
    pkfrom = 2
    xst = ''
    clk = 0
    kvw_lo = "-99,-99,-99,-99"
    qseq = "x0,n0,w0,w1|p1,x1,w2,w3,p4,x2,n1,w4,p9,w5,p3.6,x3,w6,w7,x4,n2,w8,w9,x5,w10,w11,x6,n3,w12,w13,x7,w14,w15,p2,s0,s1,c0,s2,p9.4,s3,k0,k1,k2,p8,k3"
    dy = 1
    wk0 = 16
    ba0 = 0
    vmgap = 2
    qstep0 = 3
    qstep = 4
    astep = 4.5
    astep5 = 8.8
    wo0 = 8
    wostep = 4
    ostep = 4
    dswgap = 4
    cpf = 3
    abl = ''
    qst = False
    rot = 2
    rsh = 1
    bb0 = 8
    stage = 1
    enc = None

Smb, Sred, Sout, Sdbg = S(4, 4), S(8, 4), S(12, 4), S(16, 4)
sAt = S(63); qOne = V(224)
sRx, sRw = S(96), S(97)
sP = lambda p: S(98 + p)
def setoff(soff):
    if isinstance(soff, tuple):
        r, add, mask = soff
        return [salu("s_add_u32", sOff, r, add)] + ([salu("s_and_b32", sOff, sOff, mask)] if mask else [])
    return [salu("s_mov_b32", sOff, soff)]
def group(unit_off, base, voff, srd, soff, flags, tag):
    ops = [salu("s_add_u32", "m0", base, unit_off)] + setoff(soff)
    ops += [dma(voff(pp), srd, sOff, PS * pp, flags, tag) for pp in range(4)]
    return ops
def g_wq(i): return group(WQU[i % 6] * US, sGrp, qWd, Swq, (sRw, i * 262144, 0x3fffff), "", f"wq{i}")
def g_x(I_): return group(XU[I_ % 3] * US, sGrp, qXd, Sx, (sRx, I_ * 128, 1023), "", f"x{I_}")
def g_x9(n): return [salu("s_add_u32", "m0", sX9, X9 + (n & 1) * GRP)] + setoff((sRx, n * 256, 1023)) + [
                     dma(qX9d, Sx, sOff, 0, "", f"xn{n}")]
def g_kv(e, part, o):
    kv, half = part >> 1, part & 1
    return group(KVU(e & 1)[part] * US, sGrp, vKV, (Sk, Sv)[kv], e * 16384 + half * 4096, o.kvflag, f"{'kv'[kv]}{e}")
def g_wo(p, part): return group(KVU(p & 1)[part] * US, sGrp, vKV, Swo, (sP(p), part * 65536, 0), "", f"wo{p}")

def qtok(tok, o):
    c, n = tok[0], int(tok[1:])
    if c == "w": return g_wq(n), n - 6
    if c == "x": return g_x(n), 2 * (n - 3)
    if c == "n": return g_x9(n), 4 * (n - 2)
    if c == "c": return code_touch(0, V(254, 2), vTs, vL16, shift=3), -1
    if c == "s": return g_kv(0, n, o), (10, 10, 11, 12)[n]
    if c == "k": return g_kv(1, n, o), (12, 13, 14, 14)[n]
    raise ValueError(tok)

def code_touch(off, va, vd, lane, shift=7, tid=False):
    n = code_touch.n = getattr(code_touch, "n", 0) + 1
    return [valu("v_lshlrev_b32", va[0], shift, lane)] + ([] if tid else [salu("s_lshl_b32", sT0, sW, 13), valu("v_add_u32", va[0], sT0, va[0])]) + [
            raw(f"s_getpc_b64 s[52:53]\nLpc{n}:", wr=[sT0, sT1], kind="salu"),
            raw(f"v_min_u32 {va[0]}, Lcode_end-Lpc{n}-4, {va[0]}", rd=[va[0]], wr=[va[0]], kind="valu"),
            raw(f"v_mov_b32 {va[1]}, s53\nv_add_co_u32 {va[0]}, vcc, s52, {va[0]}\ns_nop 1\nv_addc_co_u32 {va[1]}, vcc, 0, {va[1]}, vcc",
                rd=[va[0], sT0, sT1], wr=[va], kind="valu", cost=4),
            I(f"global_load_dword {vd}, {va}, off", "vml", rd=[va], wr=[], tag="ct")]

def rdyv(o): return '0x01010101' if o.rdy == 'byte' else 16

def prologue(o):
    P = []; a = P.append
    v = lambda n: V(n)
    a(raw("s_cmp_ge_u32 s2, 256")); a(raw("s_cbranch_scc1 Lend"))
    if o.stamps: a(raw("s_memrealtime s[64:65]"))
    a(raw("s_load_dwordx16 s[4:19], s[0:1], 0"))
    if int(o.cpf) >= 2: P += code_touch(0, V(8, 2), vTs, v(0), shift=int(o.cpf) + 3, tid=True)
    a(valu("v_lshrrev_b32", v(1), 6, v(0)))
    a(valu("v_mov_b32", v(2), "0xff800000"))
    a(valu("v_readfirstlane_b32", sW, v(1)))
    for b in range(5): a(valu("v_accvgpr_write_b32", SAV(b), v(2)))
    a(salu("s_and_b32", sT0, S(2), 1)); a(salu("s_lshl_b32", sT0, sT0, 3))
    a(salu("s_bfe_u32", sT1, S(2), (3 << 16) | 3)); a(salu("s_add_u32", sB, sT0, sT1))
    a(salu("s_bfe_u32", sT0, S(2), (2 << 16) | 1)); a(salu("s_lshl_b32", sT0, sT0, 2))
    a(salu("s_lshr_b32", sT1, S(2), 6)); a(salu("s_add_u32", sJ, sT0, sT1))
    a(salu("s_lshr_b32", sHH, sW, 1)); a(salu("s_and_b32", sQH, sW, 1))
    a(salu("s_mul_i32", sGrp, sW, GRP)); a(salu("s_mul_i32", sX9, sW, PS))
    a(salu("s_mov_b32", sMode, 0)); a(salu("s_mov_b32", s4096, 4096))
    a(salu("s_add_u32", sT1, sB, sJ)); a(salu("s_lshl_b32", sP(0), sT1, 8)); a(salu("s_lshl_b32", sT0, sT1, int(o.rsh))); a(salu("s_and_b32", sT0, sT0, int(o.rot))); a(salu("s_lshl_b32", sRx, sT0, 8)); a(salu("s_lshl_b32", sRw, sT0, 20))
    a(salu("s_mov_b32", sC[0], hex(CSC))); a(salu("s_mov_b32", sC[1], hex(CSC)))
    for srd, size in ((Sx, PART + 128), (Sk, 262144 + 128), (Sv, 262144 + 128), (Swo, 262144 + 128), (Sws, PART)):
        a(salu("s_mov_b32", srd[2], size)); a(salu("s_mov_b32", srd[3], "0x20000"))
    a(salu("s_mov_b32", Swq[3], "0x20000"))
    a(raw("s_waitcnt lgkmcnt(0)"))
    if int(o.wsoff): a(salu("s_add_u32", S(18), S(18), int(o.wsoff) << 20)); a(salu("s_addc_u32", S(19), S(19), 0))
    def base(srd, ptr, shift):
        a(salu("s_add_u32", srd[0], S(ptr), sT0)); a(salu("s_addc_u32", srd[1], S(ptr + 1), 0))
        if shift:
            a(salu("s_sub_u32", srd[0], srd[0], shift)); a(salu("s_subb_u32", srd[1], srd[1], 0))
    a(salu("s_mul_i32", sT0, sB, PART)); base(Sx, 4, 128)
    a(salu("s_lshl_b32", sT0, sJ, 9)); base(Swq, 10, 0); a(salu("s_sub_u32", Swq[2], 4194304, sT0))
    a(salu("s_lshl_b32", sT1, sB, 4)); a(salu("s_add_u32", sT1, sT1, sJ))
    a(salu("s_lshl_b32", sT0, sT1, 18)); base(Sk, 6, 128); base(Sv, 8, 128)
    a(salu("s_mul_i32", sT0, sT1, PART)); base(Sws, 18, 0)
    a(salu("s_lshl_b32", sT0, sJ, 18)); base(Swo, 12, 128)
    if int(o.dy):
        a(salu("s_mul_i32", sT0, sB, PART)); a(salu("s_add_u32", Sout[0], S(14), sT0)); a(salu("s_addc_u32", Sout[1], S(15), 0))
        a(salu("s_mov_b32", Sout[2], PART)); a(salu("s_mov_b32", Sout[3], "0x20000"))
        a(salu("s_lshl_b32", sT0, sT0, 4)); base(Sred, 18, 0)
        a(salu("s_mov_b32", Sred[2], 16 * PART)); a(salu("s_mov_b32", Sred[3], "0x20000"))
        a(salu("s_lshl_b32", sT0, sB, 11)); a(salu("s_add_u32", sT0, sT0, MBOFF)); base(Smb, 18, 0)
        a(salu("s_mov_b32", Smb[2], 2048)); a(salu("s_mov_b32", Smb[3], "0x20000"))
        a(salu("s_mov_b32", Sdbg[2], 256)); a(salu("s_mov_b32", Sdbg[3], "0x20000"))
    a(raw("Lrestart:", kind="label"))
    L, t1, t2, t3, t4, t5, t6 = v(0), v(1), v(2), v(3), v(4), v(5), v(6)
    a(valu("v_mbcnt_lo_u32_b32", L, -1, 0)); a(valu("v_mbcnt_hi_u32_b32", L, -1, L))
    a(valu("v_and_b32", t1, 7, L)); a(valu("v_lshlrev_b32", t1, 4, t1))
    a(valu("v_lshrrev_b32", t2, 3, L)); a(valu("v_lshl_add_u32", t3, t2, 12, t1))
    a(salu("s_lshl_b32", sT0, sW, 15)); a(salu("s_add_u32", sT0, sT0, 128))
    a(valu("v_add_u32", qXd(0), sT0, t3))
    for pp in range(1, 4): a(valu("v_subrev_u32", qXd(pp), 32 * pp, qXd(0)))
    a(valu("v_and_b32", t3, 3, t2)); a(valu("v_lshl_add_u32", t3, t3, 12, t1))
    a(valu("v_lshrrev_b32", t2, 5, L)); a(valu("v_lshl_add_u32", t3, t2, 7, t3))
    a(salu("s_lshl_b32", sT0, sW, 10)); a(salu("s_add_u32", sT0, sT0, 128 * 1024 + 128))
    a(valu("v_add_u32", qX9d, sT0, t3))
    a(valu("v_and_b32", t1, 15, L)); a(valu("v_lshlrev_b32", t1, 4, t1))
    a(valu("v_lshl_add_u32", t3, t2, 15, t1))
    a(valu("v_bfe_u32", t4, L, 4, 1)); a(valu("v_lshl_add_u32", t3, t4, 17, t3))
    a(salu("s_lshl_b32", sT0, sQH, 16)); a(salu("s_lshl_b32", sT1, sHH, 8)); a(salu("s_add_u32", sT0, sT0, sT1))
    a(valu("v_add_u32", qWd(0), sT0, t3))
    for pp in range(1, 4): a(valu("v_add_u32", qWd(pp), (8192 - PS) * pp, qWd(0)))
    first = []
    for tok in o.qseq.split("|")[0].split(","): first += qtok(tok, o)[0]
    Q = []; a = Q.append
    if int(o.cpf) == 1: Q += code_touch(0, V(8, 2), vTs, L)
    if int(o.dy):
        a(salu("s_add_u32", sT0, sW, sMode)); a(salu("s_lshl_b32", sAt, sT0, 4)); a(salu("s_add_u32", sAt, sAt, sB))
        a(salu("s_lshl_b32", sAt, sAt, 4))
        if o.rdy == "byte": a(salu("s_add_u32", sAt, sAt, sJ))
        a(valu("v_lshrrev_b32", t5, 4, L)); a(valu("v_add_u32", t5, sT0, t5)); a(valu("v_lshlrev_b32", t5, 11, t5))
        a(valu("v_lshrrev_b32", t3, 2, t1)); a(valu("v_add_u32", t5, t5, t3))
        a(salu("s_lshl_b32", sOff, sJ, 7)); a(valu("v_mov_b32", qOne, 0))
        a(vstore(qOne, t5, Smb, sOff, 0, "sc1", tag="mbz", op="buffer_store_dword"))
    a(valu("v_lshrrev_b32", t5, 4, L)); a(valu("v_lshl_add_u32", t3, t5, 13, t1))
    a(salu("s_lshl_b32", sT0, sHH, 15)); a(salu("s_lshl_b32", sT1, sQH, 12)); a(salu("s_add_u32", sT0, sT0, sT1))
    a(salu("s_add_u32", sT0, sT0, 128)); a(valu("v_add_u32", vWo0, sT0, t3))
    a(valu("v_lshlrev_b32", vL16, 4, L))
    a(salu("s_lshl_b32", sT0, sHH, 17)); a(salu("s_lshl_b32", sT1, sQH, 13)); a(salu("s_add_u32", sT0, sT0, sT1))
    a(salu("s_add_u32", sT0, sT0, 128)); a(valu("v_add_u32", vKV(0), sT0, vL16))
    for pp in range(1, 4): a(valu("v_subrev_u32", vKV(pp), 32 * pp, vKV(0)))
    a(salu("s_add_u32", sT0, sGrp, 8 * US)); a(valu("v_add_u32", vA8, sT0, vL16))
    a(salu("s_xor_b32", sT0, sW, 1)); a(salu("s_mul_i32", sT2, sT0, GRP))
    a(salu("s_add_u32", sT0, sT2, 8 * US)); a(valu("v_add_u32", vB8, sT0, vL16))
    a(salu("s_add_u32", sLMw, sGrp, 8 * US + 4096)); a(salu("s_add_u32", sLMr, sT2, 8 * US + 4096))
    a(valu("v_and_b32", t1, 3, L)); a(valu("v_mul_u32_u24", t1, PS, t1)); a(valu("v_lshl_add_u32", t1, t5, 4, t1))
    a(valu("v_bfe_u32", t3, L, 2, 2)); a(valu("v_lshl_add_u32", t3, t3, 7, t1))
    a(valu("v_add_u32", qX9r, X9, t3))
    a(salu("s_mul_i32", sT0, sQH, 2 * GRP)); a(valu("v_add_u32", qXr(0), sT0, t3))
    a(valu("v_add_u32", qXr(1), 7 * US, qXr(0)))
    a(valu("v_bfe_u32", t3, L, 2, 1)); a(valu("v_mul_u32_u24", t3, US, t3)); a(valu("v_add_u32", t1, t1, t3))
    a(valu("v_bfe_u32", t3, L, 3, 1)); a(valu("v_lshl_add_u32", t1, t3, 8, t1))
    a(salu("s_lshl_b32", sT0, sQH, 7)); a(salu("s_xor_b32", sT1, sT0, 128))
    a(valu("v_add_u32", t3, sT0, t1)); a(valu("v_add_u32", t6, sT1, t1))
    a(valu("v_add_u32", Kr(0, 0), sGrp, t3)); a(valu("v_add_u32", Kr(0, 1), sGrp, t6))
    a(valu("v_add_u32", Kr(1, 0), sT2, t3)); a(valu("v_add_u32", Kr(1, 1), sT2, t6))
    a(valu("v_bfe_u32", t1, L, 2, 2)); a(valu("v_mul_u32_u24", t1, PS, t1)); a(valu("v_lshl_add_u32", t1, t2, 8, t1))
    a(valu("v_and_b32", t3, 3, L)); a(valu("v_lshl_add_u32", t3, t3, 3, t1))
    a(valu("v_mul_u32_u24", t6, US, t4)); a(valu("v_add_u32", t3, t3, t6)); a(valu("v_add_u32", t3, 4 * US, t3))
    a(valu("v_add_u32", t6, sT1, t3)); a(valu("v_add_u32", t3, sT0, t3))
    a(valu("v_add_u32", Vr(0, 0), sGrp, t3)); a(valu("v_add_u32", Vr(0, 1), sGrp, t6))
    a(valu("v_add_u32", Vr(1, 0), sT2, t3)); a(valu("v_add_u32", Vr(1, 1), sT2, t6))
    a(valu("v_mul_u32_u24", t6, GRP, t4)); a(valu("v_add_u32", t1, t1, t6))
    a(valu("v_and_b32", t3, 1, L)); a(valu("v_lshl_add_u32", t1, t3, 4, t1))
    a(valu("v_bfe_u32", t3, L, 1, 1)); a(valu("v_lshl_add_u32", t1, t3, 3, t1))
    a(salu("s_lshl_b32", sT2, sW, 6)); a(valu("v_add_u32", vWpat, sT2, t1))
    a(salu("s_mul_i32", sT2, sHH, 2 * GRP)); a(salu("s_add_u32", sT2, sT2, US)); a(valu("v_add_u32", t1, sT2, t1))
    a(valu("v_add_u32", qWr(0, 0), sT0, t1)); a(valu("v_add_u32", qWr(0, 1), sT1, t1))
    a(valu("v_add_u32", qWr(1, 0), 4 * US, qWr(0, 0))); a(valu("v_add_u32", qWr(1, 1), 4 * US, qWr(0, 1)))
    a(salu("s_mul_i32", sT2, sQH, 4 * US)); a(salu("s_lshl_b32", sOw0, sHH, 12)); a(salu("s_add_u32", sT2, sT2, sOw0))
    a(salu("s_lshl_b32", sT0, sT0, 4)); a(salu("s_lshl_b32", sT1, sT1, 4))
    a(salu("s_add_u32", sOw0, sT2, sT0)); a(salu("s_add_u32", sOw1, sT2, sT1))
    for p in (3, 2, 1, 0):
        a(salu("s_add_u32", sP(p), sP(0), 256 * p)); a(salu("s_and_b32", sP(p), sP(p), 1023))
    a(valu("v_mov_b32", t1, "0x3f803f80"))
    for r in range(4): a(valu("v_accvgpr_write_b32", (ONES[r], "ones"), t1))
    return P, first, Q

def build_main(o):
    P, first, Q = prologue(o)
    sc = Sched(vmgap=int(o.vmgap), dswgap=int(o.dswgap), maxmem=int(o.maxmem))
    F = sc.f
    nstamp = [1]
    def stamp(g, after=()):
        if o.stamps:
            n = nstamp[0]; nstamp[0] += 1
            F(raw(f"s_memrealtime s[{64+2*n}:{65+2*n}]"), g, g, after=after)
    nextvm = [0]
    def spread(ops, lo, step, q="dma", after=(), kinds=("dma", "vml", "vms"), cap=None, state=nextvm):
        out = []; pos = max(lo, state[0]); pend = []
        for x in ops:
            pend.append(x)
            if x.kind in kinds:
                a_, b_ = int(pos), int(pos + step)
                if cap is not None: a_, b_ = min(a_, cap), min(b_, cap)
                for y in pend[:-1]: out.append(F(y, max(lo, min(a_ - 3, b_)), b_, q=q, after=after))
                out.append(F(x, a_, b_, q=q, after=after)); pend = []
                pos += step
        assert not pend
        state[0] = pos
        return out
    if o.st0:
        n = nstamp[0]; nstamp[0] += 2
        first = [raw(f"s_memrealtime s[{64+2*n}:{65+2*n}]")] + first + [raw(f"s_memrealtime s[{66+2*n}:{67+2*n}]")]
    for i in first + Q: F(i, -1, -1, q="dma")
    k0, fu, lu, lub9, blk_last = {}, {}, {}, {}, {}
    for i in range(16):
        k0[i] = sc.n
        if i < 15: order = [(f, b) for f in range(8) for b in range(5) if b < 4 or f < 4]
        else: order = [(f, 4) for f in range(4)] + [(f, b) for b in range(4) for f in range(8)]
        for f, b in order:
            d = ACC(b, f) if b < 4 else A9(f)
            bb = (Bq(i, b), f"x{i}.{b}") if b < 4 else (B9(i), f"x{i}.4")
            n = sc.m(mfma((d, f"q{i}.{b}.{f}"), (Aq(f), f"w{i}.{f}"), bb, 0 if i == 0 else (d, f"q{i-1}.{b}.{f}")))
            fu.setdefault((i, f), n); lu[(i, f)] = n
            if b == 4: lub9[i] = n
            blk_last[(b, f)] = n
    k0[16] = sc.n
    def rdA(i, f):
        u = WQU[i % 6]; win = 0 if u <= 4 else 1
        off = (u - 1 - 4 * win) * US + ((f >> 1) & 1) * 64 + (f & 1) * 32
        return [dsr(TR, (Aq(f).sub(2 * h, 2), f"w{i}.{f}"), qWr(win, f >> 2), off + 512 * h) for h in range(2)]
    def rdB(i, b):
        u = XU[(i >> 1) % 3]; win = 1 if u == 7 else 0
        return dsr(B128, (Bq(i, b), f"x{i}.{b}"), qXr(win), (u - 7 * win) * US + (b >> 1) * GRP + (b & 1) * 512 + (i & 1) * 64)
    def rdB9(i):
        return dsr(B128, (B9(i), f"x{i}.4"), qX9r, ((i >> 2) & 1) * GRP + ((i >> 1) & 1) * 512 + (i & 1) * 64)
    bpre = F(barrier(vm=("x0", "xn0", "wq0")), -1, -1, q="dma")
    stamp(-1, [bpre])
    prev = []
    for x in rdA(0, 0) + [rdB(0, b) for b in range(4)] + [rdB9(0)] + rdA(0, 1) + rdA(0, 2):
        prev.append(F(x, -1, -1, q="lds", after=[bpre]))
    for x in sum((rdA(0, f) for f in range(3, 8)), []) + [rdB(1, b) for b in range(4)] + [rdB9(i) for i in (1, 2, 3)]:
        prev.append(F(x, -1, 5, q="lds", after=[bpre]))
    qdl = lambda i: max(44, 100 - 12 * i)
    BQ = {}
    kvw = []
    for i in range(16):
        g = k0[i] + (12 if i == 0 else 8)
        vm = []
        if i < 15:
            vm.append(f"wq{i+1}")
            if i & 1: vm.append(f"x{(i+1)//2}")
            if i % 4 == 3: vm.append(f"xn{(i+1)//4}")
        if i == 10 and int(o.dy): vm = ["wq15", "ct", "all0"]
        bq = BQ[i] = F(barrier(vm=vm), g, g, after=prev)
        prev = []
        end = k0[i + 1] + 2
        if o.qst and i in eval(o.qst): stamp(g, [bq])
        if i < 15:
            for f in range(8):
                for x in rdA(i + 1, f):
                    prev.append(F(x, max(lu[(i, f)], g), max(min(fu[(i + 1, f)] - 6, end), lu[(i, f)]), q="ldsA", after=[bq]))
            if i & 1:
                for ii in (i + 1, i + 2):
                    for b in range(4): prev.append(F(rdB(ii, b), g, k0[i + 1] - (8 if ii == i + 1 else 0), q="ldsB", after=[bq]))
            if i % 4 == 3:
                for ii in range(i + 1, i + 5):
                    prev.append(F(rdB9(ii), max(g, lub9[i]) if ii == i + 4 else g, k0[i + 1] - 4, q="ldsB9", after=[bq]))
    step = 3.0; seen = set(o.qseq.split("|")[0].split(","))
    for tok in o.qseq.split("|")[1].split(","):
        if tok[0] == "@": nextvm[0] = max(nextvm[0], int(float(tok[1:]) * 36)); continue
        if tok[0] == "+": nextvm[0] += int(tok[1:]); continue
        if tok[0] == "p": step = float(tok[1:]); continue
        if tok[0] == "a" and not int(o.dy): continue
        seen.add(tok)
        if tok[0] in o.abl.replace("k", "ks").replace("x", "xn"): continue
        ops, dep = qtok(tok, o)
        spread(ops, BQ[dep].lo if dep >= 0 else 0, step, after=[BQ[dep]] if dep >= 0 else [])
    assert len([t for t in seen if t[0] not in 'ca']) == 16 + 8 + 4 + 4 + 4, sorted(seen)
    stamp(k0[15])
    NU = 72
    blk = lambda U: (0, 1, 2, 3, 4, 0, 1, 2, 3)[U % 9]
    isY = lambda U: 1 if U % 9 >= 5 else 0
    pre0, preL, qk0, qkL, pv0, pvL, slot = {}, {}, {}, {}, {}, {}, {}
    def emit_pre(b):
        pre0[b] = sc.n
        for t in range(4):
            preL[b] = sc.m(mfma((NM(b), f"pm{b}"), (KF(0, 0, t), "k0.0"), (QF(b, t), f"Q{b}"), 0 if t == 0 else (NM(b), f"pm{b}")))
    def emit_qk(U):
        qk0[U] = sc.n; b, y, e = blk(U), isY(U), U // 9
        for t in range(4):
            for h in range(2):
                d = SB(U & 1).sub(4 * h, 4)
                qkL[U] = sc.m(mfma((d, f"s{U}"), (KF(y, h, t), f"k{e}.{y}"), (QF(b, t), f"Q{b}"),
                                   (NM(b), f"nm{b}") if t == 0 else (d, f"s{U}")))
    def emit_pv(U):
        pv0[U] = sc.n; b, y, e = blk(U), isY(U), U // 9
        first_ = U < 5
        pU = U - (9 if b == 4 else (5 if y else 4))
        sc.m(mfma((LS(b), f"l{U}"), (ONES, "ones"), (PB(U & 1), f"p{U}"), 0 if first_ else (LS(b), f"l{pU}")))
        for d in range(8):
            acc = ACC(b, d) if b < 4 else O9(d)
            pvL[U] = sc.m(mfma((acc, f"o{U}"), (VF(y, d), f"v{e}.{y}"), (PB(U & 1), f"p{U}"), 0 if first_ else (acc, f"o{pU}")))
    emit_pre(0); emit_pre(1); emit_qk(0)
    for U in range(NU + 1):
        slot[U] = sc.n
        if U + 2 < 5: emit_pre(U + 2)
        if U + 1 < NU: emit_qk(U + 1)
        if U >= 1: emit_pv(U - 1)
    attn_end = sc.n - 1
    ou0, ouL = {}, {}
    for p in range(4):
        for qb in range(9):
            n = 9 * p + qb; ou0[n] = sc.n
            for ks in range(8):
                for u in range(2):
                    d = SB(n & 1).sub(4 * u, 4)
                    ouL[n] = sc.m(mfma((d, f"r{n}"), (Ao(p, ks, u), f"wo{p}"), (Bo(qb, ks), f"of{qb}"), 0 if ks == 0 else (d, f"r{n}")))
    last = sc.n - 1
    if o.xst:
        for g_ in eval(o.xst): stamp(g_)
    def pack_q(src, dst, tsrc, tdst, lo, hi, q):
        ops = []
        for m in range(8): ops.append(valu("v_mul_f32", (src[m], "t"), sC[0], (src[m], tsrc[m >> 2])))
        for m in range(4): ops.append(valu("v_cvt_pk_bf16_f32", (dst[m], "t2"), (src[2 * m], "t"), (src[2 * m + 1], "t")))
        ops.append(swap("v_permlane32_swap_b32", (dst[0], "t2"), (dst[2], "t2"), tdst, tdst))
        ops.append(swap("v_permlane32_swap_b32", (dst[1], "t2"), (dst[3], "t2"), tdst, tdst))
        return [F(x, lo, hi, q=q) for x in ops]
    q9w = []
    for t in range(2):
        l = pack_q(SB(t), PB(t), [f"q15.4.{2*t}", f"q15.4.{2*t+1}"], "q9p", blk_last[(4, 2 * t + 1)] + 3, pre0[0] - 2, "qe")
        q9w.append(F(dsw("ds_write_b128", vA8, (PB(t), "q9p"), 1024 * t), k0[15] + 8, qk0[0] - 1, q="q9w", after=[l[-1], BQ[15]]))
    for b in range(4):
        for t in range(4):
            pack_q(V(32 * b + 8 * t, 8), QF(b, t), [f"q15.{b}.{2*t}", f"q15.{b}.{2*t+1}"], f"Q{b}",
                   blk_last[(b, 2 * t + 1)] + 3, pre0[b] - 1 + t, "qe")
    for b in range(5):
        n = NM(b); pm = f"pm{b}"; nm = f"nm{b}"
        ops = [valu("v_accvgpr_read_b32", vT1, SAV(b)),
               valu("v_max3_f32", n[0], (n[0], pm), (n[1], pm), vT1), valu("v_max3_f32", n[0], n[0], (n[2], pm), (n[3], pm)),
               valu("v_mov_b32", n[1], n[0]), swap("v_permlane32_swap_b32", n[0], n[1]), valu("v_max_f32", n[0], n[0], n[1]),
               valu("v_mov_b32", n[1], n[0]), swap("v_permlane16_swap_b32", n[0], n[1]),
               I(f"v_min_f32_e64 {n[0]}, -{n[0]}, -{n[1]}", "valu", rd=[n[0], n[1]], wr=[(n[0], nm)])]
        ops += [valu("v_mov_b32", (n[1], nm), (n[0], nm)), valu("v_mov_b64", (n.sub(2, 2), nm), (n.sub(0, 2), nm))]
        for x in ops: F(x, min(preL[b] + 3, qk0[b] - 1), qk0[b] - 1, q="nm")
    for U in range(NU):
        s_, p_ = SB(U & 1), PB(U & 1)
        hi = (qk0[U + 2] if U + 2 < NU else pv0[U]) - 1
        hi = min(hi, pv0[U] - 1)
        lo = min(qkL[U] + 3, hi)
        loc = max(lo, pvL[U - 2]) if U >= 2 else lo
        ex = [F(trans("v_exp_f32", (s_[j], f"e{U}"), (s_[j], f"s{U}")), lo, hi - (1 if hi > lo else 0), q="exp") for j in range(8)]
        for m in range(4):
            F(valu("v_cvt_pk_bf16_f32", (p_[m], f"p{U}"), (s_[2 * m], f"e{U}"), (s_[2 * m + 1], f"e{U}")),
              loc, hi, q="cvt", after=[ex[min(2 * m + 2, 7)]] + (q9w if U < 2 else []))
    def rdK(e, y):
        return [dsr(B128, (KF(y, h, t), f"k{e}.{y}"), Kr(y, t >> 1), (e & 1) * 2 * US + 512 * h + 64 * (t & 1))
                for t in range(4) for h in range(2)]
    def rdV(e, y):
        return [dsr(TR, (VF(y, d).sub(2 * h, 2), f"v{e}.{y}"), Vr(y, d >> 2), (e & 1) * 2 * US + 512 * h + 32 * (d & 3))
                for d in range(8) for h in range(2)]
    BB = {}
    for e in range(8):
        U0 = 9 * e
        rd = []
        if e == 0:
            g = k0[16] - int(o.wk0)
            wk = F(waitvm("k0"), g, g + 2, q="ldsK")
            for x in rdK(0, 0): rd.append(F(x, g, pre0[0] - 3, q="ldsK"))
            g = slot[0] - 1 + int(o.ba0)
            ba = F(barrier(vm=["v0"]), g, g, after=q9w + [wk])
            for x in rdV(0, 0): rd.append(F(x, g, pv0[0] - 4, q="ldsV", after=[ba]))
            for t in range(4):
                F(dsr(B128, (QF(4, t), "Q4"), vA8 if t < 2 else vB8, 1024 * (t & 1)), g, pre0[4] - 6, q="ldsK", after=[ba])
        else:
            g = slot[U0 - 2] - 1
            wk = F(waitvm(f"k{e}"), g, g + 4, q="ldsK")
            for x in rdK(e, 0): rd.append(F(x, g, slot[U0 - 1] - 6, q="ldsK"))
            g = slot[U0 - 1] - 1
            ba = F(barrier(vm=[f"v{e}"], lgkm=False), g, g, after=[wk])
            for x in rdV(e, 0): rd.append(F(x, g, pv0[U0] - 6, q="ldsV", after=[ba]))
        gb = slot[U0 + 3] - 1 + int(o.bbo) if e else slot[2] - 1 + int(o.bb0)
        for x in rdK(e, 1): rd.append(F(x, g, gb - 5, q="ldsK", after=[ba]))
        for x in rdV(e, 1): rd.append(F(x, max(g, pvL[U0 - 1]) if e else g, gb - 5, q="ldsV", after=[ba]))
        bb = BB[e] = F(barrier(), gb, gb, after=rd)
        if e in (0, 3, 6, 7): stamp(gb, [bb])
        ops = []
        if e < 6:
            for part in range(4): ops += g_kv(e + 2, part, o)
        if e == int(o.ate) and int(o.dy):
            ops += [valu("v_lshl_add_u32", vT0, vL16, 4, sAt), valu("v_mov_b32", vT1, 1),
                    vstore(vT1, vT0, Sdbg, 0, 0, "sc1" if o.rdy == "byte" else "", tag="at", op="buffer_store_byte" if o.rdy == "byte" else "buffer_atomic_add")]
        if e == 4 and int(o.cpf): ops += code_touch(0, V(254, 2), vTs, vL16, shift=3)
        if e == 6:
            ops += [valu("v_mov_b32", vKV(0), vWo0)] + [valu("v_subrev_u32", vKV(pp), 32 * pp, vWo0) for pp in (1, 2, 3)]
            for part in range(4): ops += g_wo(0, part)
        if e == 6: spread(ops, slot[U0 + int(o.wo0)], float(o.wostep), after=[bb])
        else: spread(ops, gb, float(o.astep if e < 5 else o.astep5), after=[bb])
    U0 = 63
    vW = lambda win: Kr(0, win)
    vOw = lambda hf: Vr(0, hf)
    vBr = lambda win: Kr(1, win)
    vLMw, vLMr = Vr(1, 0), Vr(1, 1)
    gb = BB[7].lo
    adr = [valu("v_mov_b32", vW(0), vWpat), valu("v_add_u32", vW(1), 4 * US, vWpat),
           valu("v_bfe_u32", vLMr, vL16, 1, 7), valu("v_add_u32", vLMw, sLMw, vLMr), valu("v_add_u32", vLMr, sLMr, vLMr),
           valu("v_add_u32", vOw(0), sOw0, vL16), valu("v_add_u32", vOw(1), sOw1, vL16),
           valu("v_add_u32", vBr(0), 2 * US, vL16), valu("v_add_u32", vBr(1), 6 * US, vL16)]
    adr = [F(x, gb, gb + 12, q="adr", after=[BB[7]]) for x in adr]
    def rdAo(p):
        ops = []
        for ks in range(8):
            unit = KVU(p & 1)[ks >> 1]; win = unit >> 2
            for u in range(2):
                for h in range(2):
                    ops.append(dsr(TR, (Ao(p, ks, u).sub(2 * h, 2), f"wo{p}"), vW(win),
                                   (unit & 3) * US + (ks & 1) * 2 * GRP + 512 * h + 32 * u))
        return ops
    gc = slot[U0 + 8] - 1
    rd = []
    gw = slot[U0 + 6] - 1
    bw = F(barrier(vm=["wo0"], lgkm=False), gw, gw, after=[BB[7]])
    for n, x in enumerate(rdAo(0)):
        rd.append(F(x, gw, gc - 4, q="ldsK", after=[adr[-1], bw]))
    g = pvL[U0 + 4] + 3
    t9 = f"o{U0+4}"
    n9 = NM(4)
    raww = [valu("v_accvgpr_read_b32", vT0, (LS(4)[0], f"l{U0+4}")), valu("v_mov_b32", vT1, (n9[0], "nm4")),
            valu("v_mov_b32", n9[1], vT0), dsw("ds_write_b64", vLMw, V(254, 2), 0)]
    raww += [dsw("ds_write_b128", vA8, (O9(4 + d), t9), 1024 * d) for d in range(4)]
    raww = [F(x, g, pvL[U0 + 5], q="ep", after=[adr[-1]]) for x in raww]
    bc = F(barrier(), gc, gc, after=rd + raww)
    ops = []
    for part in range(4): ops += g_wo(1, part)
    wo1_units = KVU(0)
    ops = []
    for part in range(4): ops += group(wo1_units[part] * US, sGrp, vKV, Swo, (sP(1), part * 65536, 0), "", "wo1")
    spread(ops, gc, 1.1, after=[bc], cap=attn_end)
    ow = []
    def norm_block(b):
        U = U0 + 5 + b; lo = min(pvL[U] + 3, attn_end); a32 = V(32 * b, 32)
        ops = [valu("v_accvgpr_read_b32", vT1, (LS(b)[0], f"l{U}")), trans("v_rcp_f32", vT0, vT1),
               valu("v_mov_b32", vTs, vT1) if b == 0 else valu("v_add_f32", vTs, vTs, vT1)]
        for k in range(4):
            for m in range(4):
                r = a32.sub(8 * k + 2 * m, 2)
                if b >= int(o.pkfrom): ops.append(valu("v_pk_mul_f32", (r, "n"), (r, f"o{U}"), V(254, 2), extra="op_sel_hi:[1,0]"))
                else: ops += [valu("v_mul_f32", (r[z], "n"), (r[z], f"o{U}"), vT0) for z in range(2)]
            for m in range(4):
                ops.append(valu("v_cvt_pk_bf16_f32", (a32[4 * k + m], "of"), (a32[8 * k + 2 * m], "n"), (a32[8 * k + 2 * m + 1], "n")))
            ops.append(dsw("ds_write_b128", vOw(k >> 1), (a32.sub(4 * k, 4), "of"), (2 + (b >> 1)) * US + (b & 1) * 8192 + (k & 1) * 1024))
        for x in ops: ow.append(F(x, lo, attn_end, q="ep"))
    norm_block(0); norm_block(1)
    rcv = V(216, 16); own = SB(U0 + 7 & 1)
    mr = [dsr("ds_read_b64", n9.sub(2, 2), vLMr, 0)] + [dsr(B128, (rcv.sub(4 * d, 4), "rcv"), vB8, 1024 * d) for d in range(4)]
    mr = [F(x, gc, gc + 4, q="ldsV", after=[bc]) for x in mr]
    ops = [valu("v_sub_f32", n9[3], (n9[0], "nm4"), n9[3]), trans("v_exp_f32", n9[3], n9[3]),
           valu("v_fma_f32", n9[1], n9[2], n9[3], n9[1]), trans("v_rcp_f32", vT0, n9[1]),
           valu("v_add_f32", vTs, vTs, n9[1]), salu("s_lshl_b32", sT0, sW, 11), valu("v_add_u32", vLMw, sT0, vBr(1))]
    for k in range(2):
        for m in range(8): ops.append(valu("v_accvgpr_read_b32", (own[m], "own"), (A(128 + 8 * k + m), t9)))
        for m in range(8): ops.append(valu("v_fma_f32", (own[m], "mg"), (rcv[8 * k + m], "rcv"), n9[3], (own[m], "own")))
        for m in range(4): ops.append(valu("v_pk_mul_f32", (own.sub(2 * m, 2), "n"), (own.sub(2 * m, 2), "mg"), V(254, 2), extra="op_sel_hi:[1,0]"))
        for m in range(4): ops.append(valu("v_cvt_pk_bf16_f32", (rcv[8 * k + m], "of"), (own[2 * m], "n"), (own[2 * m + 1], "n")))
        ops.append(dsw("ds_write_b128", vLMw, (rcv.sub(8 * k, 4), "of"), 3 * US + 1024 * k))
    for x in ops: ow.append(F(x, pv0[U0 + 7], attn_end, q="ep", after=mr))
    norm_block(2); norm_block(3)
    ops = [salu("s_lshl_b32", sT0, sW, 2), valu("v_add_u32", vLMr, sT0, vBr(1)), dsw("ds_write_b32", vLMr, vTs, FLAG - 6 * US)]
    for x in ops: ow.append(F(x, attn_end, attn_end, q="ep"))
    b1 = F(barrier(), attn_end, attn_end, q="dma", after=ow)
    stamp(attn_end, [b1])
    fl = V(216, 4)
    def rdBo(qb, ks):
        if qb < 8: return dsr(B128, (Bo(qb, ks), f"of{qb}"), vBr(qb >> 2), ((qb >> 1) & 1) * US + (qb & 1) * 8192 + 1024 * ks)
        return dsr(B128, (Bo(qb, ks), f"of{qb}"), vBr(1), 3 * US + 1024 * ks)
    gd = {p: ou0[9 * p + 5] - 1 for p in range(3)}
    rd = []
    for ks in range(8): rd.append(F(rdBo(0, ks), attn_end, attn_end, q="ldsB", after=[b1]))
    fr = F(dsr(B128, fl, vBr(1), FLAG - 6 * US), attn_end, attn_end, q="ldsB")
    chk = [valu("v_add_f32", fl[0], fl[0], fl[1]), valu("v_add_f32", fl[2], fl[2], fl[3]), valu("v_add_f32", fl[0], fl[0], fl[2]),
           raw(f"v_cmp_nge_f32 vcc, {hex(THR)}, {fl[0]}", rd=[fl[0]], kind="valu"),
           raw(f"s_cmp_eq_u32 s54, {77 if o.abl else 0}"), raw("s_cselect_b64 vcc, vcc, 0"), raw("s_cbranch_vccnz Lslow"),
           salu("s_lshl_b32", sT0, sW, 10), valu("v_add_u32", vA8, sT0, vL16)]
    chk = [F(x, attn_end + 6, attn_end + 12, q="dma", after=[fr]) for x in chk]
    for qb in range(1, 9):
        for ks in range(8):
            rd.append(F(rdBo(qb, ks), attn_end, min(ou0[qb] - 6 + 2 * ks, gd[0] - 5), q="ldsB", after=[chk[6]] if qb >= 4 else []))
    wo_units = {2: KVU(1), 3: KVU(0)}
    def rdAo2(p, units):
        ops = []
        for ks in range(8):
            unit = units[ks >> 1]; win = unit >> 2
            for u in range(2):
                for h in range(2):
                    ops.append(dsr(TR, (Ao(p, ks, u).sub(2 * h, 2), f"wo{p}"), vW(win),
                                   (unit & 3) * US + (ks & 1) * 2 * GRP + 512 * h + 32 * u))
        return ops
    allu = {1: wo1_units, **wo_units}
    BD = {}
    for p in range(3):
        bd = BD[p] = F(barrier(vm=[f"wo{p+1}"] + ([f"st{p-1}", "rdy"] if p and int(o.dy) else [])), gd[p], gd[p], after=rd)
        if p + 2 < 4:
            ops = []
            for part in range(4): ops += group(allu[p + 2][part] * US, sGrp, vKV, Swo, (sP(p + 2), part * 65536, 0), "", f"wo{p+2}")
            spread(ops, gd[p], float(o.ostep), after=[bd])
        rd = [F(x, gd[p], ou0[9 * p + 9] - 6, q="ldsK", after=[bd]) for x in rdAo2(p + 1, allu[p + 1])]
    for n in range(36):
        s_, p_ = SB(n & 1), PB(n & 1)
        lo = min(ouL[n] + 3, last); hi = min(lo + 8, last)
        ops = [valu("v_cvt_pk_bf16_f32", (p_[m], f"rp{n}"), (s_[2 * m], f"r{n}"), (s_[2 * m + 1], f"r{n}")) for m in range(4)]
        ops += [salu("s_mul_i32", sSt, sP(n // 9), 144) if n % 9 == 0 else salu("s_add_u32", sSt, sSt, 4096), vstore((p_, f"rp{n}"), vA8, Sws, sSt, 0, o.stflag, tag=f"st{n//9}")]
        for x in ops: F(x, lo, hi, q="st", after=[chk[-1]])
    if int(o.dy):
        vF, vOne, vRdy, vPo, vR, vO, SEL, t = V(220), V(221), V(222), V(223), V(224, 3), V(228, 3), V(160, 8), V(168, 4)
        g = ou0[2]; vRdA = V(227)
        ops = [salu("s_lshl_b32", sT1, sB, 4), valu("v_bfe_u32", vRdA, vL16, 2, 4 if o.rdy == "byte" else 2), valu("v_add_u32", vRdA, sT1, vRdA),
               vload(vRdy, vRdA, Sdbg, 0, 0, "sc1", tag="rdy", op="buffer_load_dword"),
               salu("s_lshl_b32", sT0, sW, 7), salu("s_lshl_b32", sT1, sJ, 2), salu("s_add_u32", sT0, sT0, sT1),
               valu("v_lshlrev_b32", vF, 7, vL16), valu("v_add_u32", vF, sT0, vF), valu("v_mov_b32", vOne, 1),
               valu("v_bfe_u32", vPo, vL16, 2, 6), valu("v_lshrrev_b32", t[0], 8, vL16), valu("v_lshl_add_u32", vPo, t[0], 11, vPo),
               salu("s_lshl_b32", sT0, sJ, 7), valu("v_add_u32", vPo, sT0, vPo),
               salu("s_lshr_b32", sT0, sJ, 2), salu("s_mul_i32", sT0, sT0, 9), salu("s_add_u32", sT0, sT0, sW), salu("s_lshl_b32", sT0, sT0, 2),
               salu("s_and_b32", sT1, sJ, 3), salu("s_add_u32", sT0, sT0, sT1), salu("s_lshl_b32", sT0, sT0, 10),
               valu("v_add_u32", vR[0], sT0, vL16), valu("v_add_u32", vR[1], 16384, vR[0]),
               salu("s_lshl_b32", sT1, sW, 28), salu("s_add_u32", sT0, sT1, 32768), valu("v_add_u32", vR[2], sT0, vR[0]),
               valu("v_bfe_u32", t[1], vL16, 4, 4), valu("v_lshlrev_b32", vO[0], 10, t[1]), valu("v_lshl_add_u32", vO[0], t[0], 4, vO[0]),
               salu("s_lshl_b32", sT0, sW, 14), salu("s_lshl_b32", sT2, sJ, 6), salu("s_add_u32", sT0, sT0, sT2),
               valu("v_add_u32", vO[0], sT0, vO[0]), valu("v_add_u32", vO[1], 65536, vO[0]),
               salu("s_add_u32", sT0, sT1, 131072), valu("v_add_u32", vO[2], sT0, vO[0]),
               valu("v_and_b32", t[2], 1, t[1]), valu("v_lshlrev_b32", t[2], 4, t[2]), valu("v_mov_b32", t[3], "0x3f80"),
               valu("v_lshlrev_b32", t[2], t[2], t[3]),
               valu("v_bfe_u32", t[3], t[1], 2, 1), valu("v_xor_b32", t[3], t[3], t[0]),
               valu("v_and_b32", t[0], 1, t[3]), valu("v_lshlrev_b32", t[0], 3, t[0]),
               valu("v_lshrrev_b32", t[3], 1, t[3]), valu("v_lshl_add_u32", t[0], t[3], 2, t[0]),
               valu("v_lshrrev_b32", t[3], 3, t[1]), valu("v_lshl_add_u32", t[0], t[3], 1, t[0]),
               valu("v_bfe_u32", t[3], t[1], 1, 1), valu("v_add_u32", t[0], t[0], t[3])]
        for m in range(8):
            ops.append(raw(f"v_cmp_eq_u32 vcc, {m}, {t[0]}\ns_nop 1\nv_cndmask_b32 {SEL[m]}, 0, {t[2]}, vcc", rd=[t], wr=[SEL[m]], kind="valu", cost=2))
        pre = [F(x, g, gd[1] - 1, q="fl", after=[chk[-1]]) for x in ops]
        for p in range(3):
            g = gd[p + 1] if p < 2 else ou0[32] - 1
            ops = []
            if p == 0: ops += [raw(f"v_cmp_gt_u32 vcc, {rdyv(o)}, {vRdy}\ns_nop 0\ns_cbranch_vccnz Lrdy_spin\nLrdy_back:", rd=[vRdy], kind="valu", cost=2)]
            if p == 2: ops += [waitvm("st2")]
            ops += [salu("s_lshl_b32", sT0, sP(p), 1), vstore(vOne, vF, Smb, sT0, 0, "sc1", tag="fl", op="buffer_store_dword")]
            for x in ops: F(x, g, g + 1, q="fl", after=[BD[p + 1]] if p < 2 else [])
    seq = sc.run()
    if "m" in o.abl: seq = [x for x in seq if not (x.gap < k0[15] and x.kind in ("mfma", "dsr"))]
    if "r" in o.abl: seq = [x for x in seq if not (x.gap < k0[15] and x.kind in ("dsr",))]
    if "f" in o.abl: seq = [x for x in seq if not (x.gap < k0[15] and x.kind in ("mfma",))]
    if "a" in o.abl: seq = [x for x in seq if not (x.gap > 100 and x.kind in ("dma", "vml", "vms"))]
    if "b" in o.abl: seq = [x for x in seq if not (x.kind == "bar")]
    seq = P + seq
    if not o.abl: check_tags(seq)
    seq, nops = pad_hazards(seq)
    sys.stderr.write(f"mfma {len(sc.bb)} instrs {len(seq)} over {sc.stats['over']} idle {sc.stats['idle']} waits {sc.stats['waits']} nop-states {nops}\n")
    marks = dict(q_end=k0[16], attn_end=attn_end)
    return seq, nstamp[0], marks

def dy_tail(o, a, nst):
    vF, vOne, vRdy, vPo, vR, vO, SEL = V(220), V(221), V(222), V(223), V(224, 3), V(228, 3), V(160, 8)
    acc = lambda f, u: V(8 * f + 4 * u, 4)
    buf = lambda t, i, f: A(48 * t + 12 * i + 4 * f, 4)
    poll = f"buffer_load_dword {vRdy}, {vPo}, {Smb}, 0 offen sc1"
    a("s_lshr_b32 s53, s51, 2"); a("s_sub_u32 s53, s53, s50"); a(f"s_lshl_b32 s52, {sP(3)}, 1"); a("s_mov_b32 s63, 0")
    a("s_waitcnt vmcnt(0)")
    a(f"buffer_store_dword {vOne}, {vF}, {Smb}, s52 offen sc1"); a(poll)
    if o.stamps: a(f"s_memrealtime s[{64+2*nst}:{65+2*nst}]")
    def mf(t):
        for i in range(4):
            for f in range(3):
                for u in range(2):
                    a(f"v_mfma_f32_16x16x32_bf16 {acc(f,u)}, {SEL.sub(4*u,4)}, {buf(t,i,f)}, {0 if t == 0 and i == 0 else acc(f,u)}")
    for t in range(4):
        a(f"s_sub_u32 s52, s53, {t}"); a("s_and_b32 s52, s52, 3"); a("s_lshl_b32 s62, 0x1111, s52"); a(f"s_mul_i32 s45, s52, {PART}")
        a(f"s_waitcnt vmcnt({0 if t == 0 else 3})")
        a(f"Lpoll{t}:"); a(f"v_cmp_ne_u32 vcc, 0, {vRdy}"); a("s_nop 0"); a("s_and_b32 s52, vcc_lo, s62"); a("s_cmp_eq_u32 s52, s62")
        a(f"s_cbranch_scc1 Lgo{t}")
        a(poll); a("s_add_u32 s63, s63, 1"); a("s_waitcnt vmcnt(0)"); a("s_cmp_lt_u32 s63, 0x40000"); a(f"s_cbranch_scc1 Lpoll{t}")
        a(f"Lgo{t}:")
        for i in range(4):
            if i == 3 and t < 3: a(poll)
            for f in range(3): a(f"buffer_load_dwordx4 {buf(t,i,f)}, {vR[f]}, {Sred}, s45 offen sc1")
            if i < 3: a(f"s_add_u32 s45, s45, {4*PART}")
        if t:
            a(f"s_waitcnt vmcnt({13 if t < 3 else 12})"); mf(t - 1)
    for i in range(4):
        a(f"s_waitcnt vmcnt({9-3*i})")
        for f in range(3):
            for u in range(2): a(f"v_mfma_f32_16x16x32_bf16 {acc(f,u)}, {SEL.sub(4*u,4)}, {buf(3,i,f)}, {acc(f,u)}")
    a("s_nop 3")
    for f in range(3):
        if f: a("s_nop 1")
        for m in range(4): a(f"v_cvt_pk_bf16_f32 v{32+4*f+m}, v{8*f+2*m}, v{8*f+2*m+1}")
        a(f"buffer_store_dwordx4 v[{32+4*f}:{35+4*f}], {vO[f]}, {Sout}, 0 offen {o.outflag}")

def tail_and_slow(o, nst):
    T = []; a = T.append
    if int(o.dy):
        dy_tail(o, a, nst); nst += 1
    if o.stamps:
        a(f"s_memrealtime s[{64+2*nst}:{65+2*nst}]"); a("s_waitcnt vmcnt(0)")
        a(f"s_memrealtime s[{66+2*nst}:{67+2*nst}]"); a("s_waitcnt lgkmcnt(0)")
        a("s_cmp_lg_u32 s3, 0"); a("s_cbranch_scc1 Lend")
        if o.enc and int(o.dy):
            ea, eb = [int(z) for z in o.enc.split(",")]
            a("s_cmp_lg_u32 s2, 100"); a("s_cbranch_scc1 Lnoenc")
            a(f"s_sub_u32 s52, s{64+2*eb}, s{64+2*ea}"); a("s_mul_i32 s52, s52, 10"); a("s_min_u32 s52, s52, 200000"); a("s_add_u32 s52, s52, 500")
            a("Lspin:"); a("s_memrealtime s[46:47]"); a("s_waitcnt lgkmcnt(0)"); a(f"s_sub_u32 s46, s46, s{66+2*nst}")
            a("s_cmp_lt_u32 s46, s52"); a("s_cbranch_scc1 Lspin"); a("Lnoenc:")
        a("s_load_dwordx2 s[40:41], s[0:1], 56"); a("s_mov_b32 s42, 0x10000000"); a("s_mov_b32 s43, 0x20000"); a("s_waitcnt lgkmcnt(0)")
        a(f"s_lshl_b32 s52, s2, 6"); a(f"s_add_u32 s52, s52, {STAMP_OFF}"); a("v_mov_b32 v1, s52")
        a("s_mov_b64 exec, 1")
        for n in range(nst + 2):
            a(f"v_mov_b32 v2, s{64+2*n}"); a(f"buffer_store_dword v2, v1, s[40:43], 0 offen offset:{4*n}")
    a("Lend:"); a("s_endpgm")
    if int(o.dy):
        a("Lrdy_spin:"); a("s_mov_b32 s63, 0"); a("Lrdy_loop:")
        a(f"buffer_load_dword v222, v227, {Sdbg}, 0 offen sc1"); a("s_add_u32 s63, s63, 1"); a("s_waitcnt vmcnt(0)")
        a(f"v_cmp_gt_u32 vcc, {rdyv(o)}, v222"); a("s_cmp_lt_u32 s63, 0x40000"); a("s_cselect_b64 vcc, vcc, 0")
        a("s_cbranch_vccnz Lrdy_loop"); a("s_branch Lrdy_back")
    a("Lslow:"); a("s_waitcnt vmcnt(0) lgkmcnt(0)"); a("s_nop 7"); a("s_barrier")
    a("v_mbcnt_lo_u32_b32 v0, -1, 0"); a("v_mbcnt_hi_u32_b32 v0, -1, v0")
    a("v_and_b32 v1, 15, v0"); a("v_lshlrev_b32 v1, 8, v1"); a("v_lshrrev_b32 v2, 4, v0"); a("v_lshl_add_u32 v1, v2, 4, v1")
    a("s_lshl_b32 s52, s48, 17"); a("s_add_u32 s52, s52, 128"); a("s_lshl_b32 s53, s49, 7"); a("s_add_u32 s62, s52, s53")
    a("v_add_u32 v2, s62, v1"); a("s_xor_b32 s53, s53, 128"); a("s_add_u32 s62, s52, s53"); a("v_add_u32 v3, s62, v1")
    for b in range(5): a(f"v_mov_b32 v{8+b}, 0xff800000")
    a("s_mov_b32 s45, 0"); a("Lslow_loop:")
    for t in range(4): a(f"buffer_load_dwordx4 v[{16+4*t}:{19+4*t}], v{2+(t>>1)}, s[28:31], s45 offen offset:{64*(t&1)}")
    a("s_waitcnt vmcnt(0)")
    for b in range(5):
        for t in range(4):
            a(f"v_mfma_f32_16x16x32_bf16 {NM(b)}, v[{16+4*t}:{19+4*t}], {QF(b,t)}, {0 if t == 0 else NM(b)}")
    a("s_nop 7"); a("s_nop 1")
    for b in range(5):
        n = NM(b); a(f"v_max3_f32 v{8+b}, v{8+b}, {n[0]}, {n[1]}"); a(f"v_max3_f32 v{8+b}, v{8+b}, {n[2]}, {n[3]}")
    a("s_add_u32 s45, s45, 4096"); a("s_cmp_lt_u32 s45, 131072"); a("s_cbranch_scc1 Lslow_loop")
    for b in range(5): a(f"v_accvgpr_write_b32 {SAV(b)}, v{8+b}")
    a("s_mov_b32 s54, 1"); a("s_branch Lrestart"); a("Lcode_end:")
    return T

def reduce_kernel(o):
    T = []; a = T.append
    a("s_cmp_ge_u32 s2, 576"); a("s_cbranch_scc1 Lrend")
    if o.stamps: a("s_memrealtime s[28:29]")
    a("s_load_dwordx2 s[4:5], s[0:1], 56"); a("s_load_dwordx2 s[8:9], s[0:1], 40")
    a(f"s_mul_hi_u32 s12, s2, {(1 << 32) // 36 + 1}"); a("s_mul_i32 s13, s12, 36"); a("s_sub_u32 s13, s2, s13")
    a(f"s_mul_hi_u32 s14, s13, {(1 << 32) // 9 + 1}"); a("s_mul_i32 s15, s14, 9"); a("s_sub_u32 s15, s13, s15")
    a(f"s_mul_i32 s16, s12, {16 * PART}"); a("s_lshl_b32 s17, s13, 12"); a("s_add_u32 s16, s16, s17")
    a("v_lshlrev_b32 v1, 4, v0")
    a(f"s_mov_b32 s6, {256 * PART}"); a("s_mov_b32 s7, 0x20000"); a(f"s_mov_b32 s10, {16 * PART}"); a("s_mov_b32 s11, 0x20000")
    a("s_waitcnt lgkmcnt(0)")
    for j in range(16):
        a(f"buffer_load_dwordx4 v[{16+4*j}:{19+4*j}], v1, s[4:7], s16 offen")
        if j < 15: a(f"s_add_u32 s16, s16, {PART}")
    a("s_mul_i32 s18, s12, 144"); a("s_lshl_b32 s19, s15, 4"); a("s_add_u32 s18, s18, s19"); a("s_lshl_b32 s18, s18, 10")
    a("s_lshl_b32 s19, s14, 8"); a("s_add_u32 s18, s18, s19")
    a("v_and_b32 v2, 15, v0"); a("v_lshlrev_b32 v2, 10, v2"); a("v_and_b32 v3, 0xf0, v0"); a("v_add_u32 v2, v2, v3")
    a("s_mov_b32 s20, 0xffff0000")
    for j in range(16):
        a(f"s_waitcnt vmcnt({15-j})")
        for m in range(4):
            r = 16 + 4 * j + m
            if j == 0:
                a(f"v_lshlrev_b32 v{4+2*m}, 16, v{r}"); a(f"v_and_b32 v{5+2*m}, s20, v{r}")
            else:
                a(f"v_lshlrev_b32 v12, 16, v{r}"); a(f"v_and_b32 v13, s20, v{r}")
                a(f"v_pk_add_f32 v[{4+2*m}:{5+2*m}], v[{4+2*m}:{5+2*m}], v[12:13]")
    for m in range(4): a(f"v_cvt_pk_bf16_f32 v{12+m}, v{4+2*m}, v{5+2*m}")
    a("s_nop 1"); a("v_permlane32_swap_b32 v12, v14"); a("v_permlane32_swap_b32 v13, v15")
    a("buffer_store_dwordx4 v[12:15], v2, s[8:11], s18 offen")
    if o.stamps:
        a("s_waitcnt vmcnt(0)"); a("s_memrealtime s[30:31]"); a("s_waitcnt lgkmcnt(0)")
        a("s_mov_b32 s6, 0x10000000"); a("s_lshl_b32 s16, s2, 3"); a(f"s_add_u32 s16, s16, {STAMP_OFF + 65536}")
        a("v_mov_b32 v1, s16"); a("v_mov_b32 v2, s28"); a("v_mov_b32 v3, s30")
        if o.enc:
            ea, eb = o.enc.split(",")
            a("s_cmp_lg_u32 s2, 575"); a("s_cbranch_scc1 Lnoenc")
            a(f"s_add_u32 s12, s4, {STAMP_OFF + 64 * 100}"); a("s_addc_u32 s13, s5, 0")
            a(f"s_load_dword s14, s[12:13], {4*int(ea)}")
            if eb.isdigit(): a(f"s_load_dword s15, s[12:13], {4*int(eb)}")
            else: a(f"s_mov_b32 s15, {'s30' if eb == 'e' else 's28'}")
            a("s_waitcnt lgkmcnt(0)"); a("s_sub_u32 s14, s15, s14"); a("s_mul_i32 s14, s14, 10"); a("s_min_u32 s14, s14, 200000")
            a("Lspin:"); a("s_memrealtime s[24:25]"); a("s_waitcnt lgkmcnt(0)"); a("s_sub_u32 s24, s24, s30")
            a("s_cmp_lt_u32 s24, s14"); a("s_cbranch_scc1 Lspin"); a("Lnoenc:")
        if o.dbg:
            a("s_cmp_lg_u32 s2, 575"); a("s_cbranch_scc1 Lnodbg")
            a("s_load_dwordx2 s[8:9], s[0:1], 48"); a("s_mov_b32 s10, 256")
            a("v_lshlrev_b32 v4, 6, v0"); a(f"s_mov_b32 s17, {STAMP_OFF}")
            for n in range(3): a(f"buffer_load_dwordx4 v[{16+4*n}:{19+4*n}], v4, s[4:7], s17 offen offset:{16*n}")
            a("v_mov_b32 v5, 0"); a("s_waitcnt vmcnt(0) lgkmcnt(0)"); a("v_not_b32 v6, v16")
            for n in range(12): a(f"buffer_atomic_umax v{16+n}, v5, s[8:11], 0 offen offset:{4*n}")
            a("buffer_atomic_umax v6, v5, s[8:11], 0 offen offset:60")
            a("buffer_atomic_umax v2, v5, s[8:11], 0 offen offset:52")
            a("buffer_atomic_umax v3, v5, s[8:11], 0 offen offset:56")
            a("Lnodbg:")
        a("v_cmp_eq_u32 vcc, 0, v0"); a("s_and_saveexec_b64 s[22:23], vcc"); a("s_cbranch_execz Lrend")
        a("buffer_store_dwordx2 v[2:3], v1, s[4:7], 0 offen")
    a("Lrend:"); a("s_endpgm")
    return T

KD = """.amdhsa_kernel {name}
  .amdhsa_next_free_vgpr {vg}
  .amdhsa_next_free_sgpr {sg}
  .amdhsa_accum_offset {acc}
  .amdhsa_group_segment_fixed_size 0
  .amdhsa_kernarg_size 64
  .amdhsa_user_sgpr_count 2
  .amdhsa_user_sgpr_kernarg_segment_ptr 1
  .amdhsa_system_sgpr_workgroup_id_x 1
  .amdhsa_float_denorm_mode_32 3
.end_amdhsa_kernel"""

def generate(o):
    hdr = [l.rstrip("\n") for l in open(f"cdna_kernels/{NAME}.s.ref") if l.startswith(";") and "launch" not in l and "grid=" not in l]
    seq, nst, marks = build_main(o)
    dy = int(o.dy)
    L = hdr + ([f"; @launch grid=(256,1,1) block=(256,1,1) lds={LDSB}"] if dy else [
               f"; @launch kernel={NAME}_kernel grid=(256,1,1) block=(256,1,1) lds={LDSB}",
               "; @launch kernel=mha_reduce_kernel grid=(576,1,1) block=(256,1,1) lds=0"]) + [
               '.amdgcn_target "amdgcn-amd-amdhsa--gfx950"', ".text",
               f".globl {NAME}_kernel", ".p2align 8", f".type {NAME}_kernel,@function", f"{NAME}_kernel:"]
    L += [i.text for i in seq] + tail_and_slow(o, nst)
    if not dy: L += [".globl mha_reduce_kernel", ".p2align 8", ".type mha_reduce_kernel,@function", "mha_reduce_kernel:"] + reduce_kernel(o)
    L += ['.section .rodata,"a"', ".p2align 6", KD.format(name=f"{NAME}_kernel", vg=512, sg=102, acc=256)]
    if not dy: L += [".p2align 6", KD.format(name="mha_reduce_kernel", vg=80, sg=32, acc=80)]
    txt = "\n".join(L) + "\n"
    if int(o.clk): txt = txt.replace("s_memrealtime", "s_memtime")
    return txt

if __name__ == "__main__":
    o = Opt()
    out = sys.argv[1]
    for kv in sys.argv[2:]:
        k, v_ = kv.split("=", 1)
        setattr(o, k, {"1": True, "0": False}.get(v_, v_) if k in ("stamps","dbg") else v_)
    open(out, "w").write(generate(o))
```

```python
import sys, math, struct
from dsl import *

NAME = "standalone__mha_block_cached__near_ridge"
US, GRP, PS = 17024, 4224, 1056
X9 = 9 * US
FLAG = X9 + 8448
LDSB = 163840
PART = 147456
STAMP_OFF = 0x4000000
MBOFF = 256 * PART
def fbits(x): return struct.unpack("<I", struct.pack("<f", x))[0]
CSC = fbits(math.log2(math.e) / math.sqrt(128.0))
THR = fbits(2.0 ** 40)

Smb, Sred, Sout, Sdbg = S(4, 4), S(8, 4), S(12, 4), S(16, 4)
Sx, Swq, Sk, Sv, Swo, Sws = S(20, 4), S(24, 4), S(28, 4), S(32, 4), S(36, 4), S(40, 4)
sW, sGrp, sOff, sC, sGrP, sHH, sQH, sB, sJ = S(3), S(44), S(45), S(46), S(47), S(48), S(49), S(50), S(51)
sT0, sT1, sMode, sX9, sT3, sOw0, sOw1, sA8, sB8, sSt, sT2, sAt = [S(n) for n in range(52, 64)]
sRx, sRw = S(96), S(97)
sP = lambda p: S(98 + p)
ACC = lambda b, f: V(32 * b + 4 * f, 4)
QF = lambda b, t: (V(128 + 16 * b + 4 * t, 4) if b < 4 else A(180 + 4 * t, 4))
SB = lambda k: V(192 + 8 * k, 8)
PB = lambda k: V((208, 212, 248)[k], 4)
NM = lambda b: V(216 + 4 * b, 4)
Kr = lambda y, p: V(236 + 2 * y + p)
Vr = lambda y, hf: V(240 + 2 * y + hf)
vKV = lambda pp: V(244 + pp)
vL16, vTs, vT0, vT1 = V(252), V(253), V(254), V(255)
qWr = lambda win, p: V(216 + 2 * win + p)
qXr = lambda win: V(220 + win)
qX9r = V(222)
qWd = lambda pp: V(225 + pp)
qXd = lambda pp: V(229 + pp)
qX9d, qA8, qB8 = V(233), V(234), V(235)
KF = lambda y, h, t: A(32 * y + 16 * h + 4 * t, 4)
VF = lambda e, y, d: A((96 if y else (64, 200)[e & 1]) + 4 * d, 4)
O9 = lambda d: A(128 + 4 * d, 4)
LS = lambda b: A(160 + 4 * b, 4)
ONES = A(196, 4)
SAV = lambda b: A(248 + b)
aWpat, aWo0 = A(253), A(254)
Aq = lambda fp, kk: A(96 + 8 * fp + 4 * kk, 4)
Bq = lambda I_, kk, b: A((128, 200)[I_ & 1] + 16 * kk + 4 * b, 4)
B9 = lambda I_, kk: A(232 + 8 * (I_ & 1) + 4 * kk, 4)
SEQ = [(I_, h) for I_ in range(6) for h in range(2)] + [(6, 0), (7, 0), (6, 1), (7, 1)]
WQU = {4: 1, 5: 4, 0: 5, 1: 3, 2: 6, 3: 8}
XU = {2: 0, 0: 2, 1: 7}
KVU = lambda slot: (2 * slot, 2 * slot + 1, 4 + 2 * slot, 5 + 2 * slot)
WOU = {0: KVU(0), 1: KVU(0), 2: KVU(1), 3: KVU(0)}
Ao = lambda p, ks, u: A(64 * (p & 1) + 32 * u + 4 * ks, 4)
def Bo(qb, ks):
    if qb < 4: return V(32 * qb + 4 * ks, 4)
    if qb < 8: return A(128 + 32 * (qb - 4) + 4 * ks, 4)
    return V(128 + 4 * ks, 4)
TR, B128 = "ds_read_b64_tr_b16", "ds_read_b128"
vF, vOne, vRdy, vPo, vR, vRdA, vO, SEL = V(220), V(221), V(222), V(223), V(224, 3), V(227), V(228, 3), V(160, 8)

class Opt:
    stamps = 0; clk = 0; enc = None; xst = ""; qst = ""; abl = ""
    kvflag = "nt"; stflag = "sc1"; outflag = ""
    qseq = ("x0,n0,w0,w1|p1,x1,w2,w3,p4,x2,n1,w4,p9,w5,p3.6,x3,w6,w7,x4,n2,w8,w9,x5,w10,w11,x6,n3,w12,x7,w13,w14,w15,"
            "p2,s0,s1,c0,s2,p9.4,s3,k0,k1,k2,k3")
    rot = 2; rsh = 1; cpf = 3
    ashift = 24; win = 6; winfrom = 2; astep = 9.5; astep4 = 9.5; astep5 = 9.5; wostep = 8; wo0a = 0; wo0o = 1; wostep2 = 2; wot = -1; drain = 0; ostep = 4
    vmgap = 2; dswgap = 4; maxmem = 1
    bk0 = 20; ba0 = 0; bao = 0; bbo = 12; bb7 = 26; bw7 = 54; ate = 2; pkfrom = 3; bdu = 5
    def __getattr__(s, k): raise AttributeError(k)

def setoff(soff):
    if isinstance(soff, tuple):
        r, add, mask = soff
        return [salu("s_add_u32", sOff, r, add)] + ([salu("s_and_b32", sOff, sOff, mask)] if mask else [])
    return [salu("s_mov_b32", sOff, soff)]
def group(unit_off, base, voff, srd, soff, flags, tag):
    return [salu("s_add_u32", "m0", base, unit_off)] + setoff(soff) + [dma(voff(pp), srd, sOff, PS * pp, flags, tag) for pp in range(4)]
def g_wq(j): return group(WQU[j % 6] * US, sGrp, qWd, Swq, (sRw, SEQ[j][0] * 524288 + SEQ[j][1] * 128, 0x3fffff), "", f"wq{j}")
def g_x(I_): return group(XU[I_ % 3] * US, sGrp, qXd, Sx, (sRx, I_ * 128, 1023), "", f"x{I_}")
def g_x9(n): return [salu("s_add_u32", "m0", sX9, X9 + (n & 1) * GRP)] + setoff((sRx, n * 256, 1023)) + [dma(qX9d, Sx, sOff, 0, "", f"xn{n}")]
def g_kv(e, part, o):
    kv, half = part >> 1, part & 1
    ops = group(KVU(e & 1)[part] * US, sGrp, vKV, (Sk, Sv)[kv], e * 16384 + half * 4096, o.kvflag, f"{'kv'[kv]}{e}")
    if int(o.win) and e >= int(o.winfrom):
        for x in ops:
            if x.kind == "dma": x.text = f"s_waitcnt vmcnt({int(o.win)-1})\n" + x.text
    return ops
def g_wo(p): return sum((group(WOU[p][part] * US, sGrp, vKV, Swo, (sP(p), part * 65536, 0), "", f"wo{p}") for part in range(4)), [])

def qtok(tok, o):
    c, n = tok[0], int(tok[1:])
    if c == "w": return g_wq(n), n - 6
    if c == "x": return g_x(n), 2 * (n - 3)
    if c == "n": return g_x9(n), (4 * (n - 2) + 2 if n >= 2 else -1)
    if c == "c": return code_touch(V(254, 2), vTs, vL16, shift=3), -1
    if c == "s": return g_kv(0, n, o), (10, 10, 11, 12)[n]
    if c == "k": return g_kv(1, n, o), (12, 13, 14, 14)[n]
    raise ValueError(tok)

def code_touch(va, vd, lane, shift, tid=False):
    n = code_touch.n = getattr(code_touch, "n", 0) + 1
    return [valu("v_lshlrev_b32", va[0], shift, lane)] + ([] if tid else [salu("s_lshl_b32", sT0, sW, 13), valu("v_add_u32", va[0], sT0, va[0])]) + [
            raw(f"s_getpc_b64 s[52:53]\nLpc{n}:", wr=[sT0, sT1], kind="salu"),
            raw(f"v_min_u32 {va[0]}, Lcode_end-Lpc{n}-4, {va[0]}", rd=[va[0]], wr=[va[0]], kind="valu"),
            valu("v_mov_b32", va[1], 0),
            raw(f"v_lshl_add_u64 {va}, {va}, 0, s[52:53]", rd=[va, sT0, sT1], wr=[va], kind="valu"),
            I(f"global_load_dword {vd}, {va}, off", "vml", rd=[va], wr=[], tag="ct")]

def prologue(o):
    P = []; a = P.append
    v = lambda n: V(n)
    a(raw("s_cmp_ge_u32 s2, 256")); a(raw("s_cbranch_scc1 Lend"))
    a(raw("s_load_dwordx16 s[4:19], s[0:1], 0"))
    if int(o.stamps): a(raw("s_memrealtime s[64:65]"))
    a(valu("v_lshrrev_b32", v(1), 6, v(0)))
    if int(o.cpf): P += code_touch(V(8, 2), vTs, v(0), shift=int(o.cpf) + 3, tid=True)
    a(valu("v_readfirstlane_b32", sW, v(1)))
    a(valu("v_mov_b32", v(2), "0xff800000")); a(salu("s_mov_b32", sMode, 0))
    for b in range(5): a(valu("v_accvgpr_write_b32", SAV(b), v(2)))
    a(raw("Lrestart:", kind="label"))
    L, t1, t2, t3, t4, t5, t6 = v(0), v(1), v(2), v(3), v(4), v(5), v(6)
    a(valu("v_mbcnt_lo_u32_b32", L, -1, 0)); a(valu("v_mbcnt_hi_u32_b32", L, -1, L))
    a(salu("s_and_b32", sT0, S(2), 1)); a(salu("s_bfe_u32", sT1, S(2), (3 << 16) | 3)); a(salu("s_lshl3_add_u32", sB, sT0, sT1))
    a(salu("s_bfe_u32", sT0, S(2), (2 << 16) | 1)); a(salu("s_lshr_b32", sT1, S(2), 6)); a(salu("s_lshl2_add_u32", sJ, sT0, sT1))
    a(salu("s_lshr_b32", sHH, sW, 1)); a(salu("s_and_b32", sQH, sW, 1))
    a(salu("s_mul_i32", sGrp, sW, GRP)); a(salu("s_mul_i32", sX9, sW, PS))
    a(salu("s_add_u32", sT3, sB, sJ)); a(salu("s_lshl_b32", sT0, sT3, int(o.rsh))); a(salu("s_and_b32", sT0, sT0, int(o.rot)))
    a(salu("s_lshl_b32", sRx, sT0, 8)); a(salu("s_lshl_b32", sRw, sT0, 20))
    a(valu("v_and_b32", t1, 7, L)); a(valu("v_lshlrev_b32", t1, 4, t1))
    a(valu("v_lshrrev_b32", t2, 3, L)); a(valu("v_lshl_add_u32", t3, t2, 12, t1))
    a(salu("s_lshl_b32", sT0, sW, 15)); a(salu("s_add_u32", sT0, sT0, 128))
    a(valu("v_add_u32", qXd(0), sT0, t3))
    for pp in range(1, 4): a(valu("v_subrev_u32", qXd(pp), 32 * pp, qXd(0)))
    a(valu("v_and_b32", t4, 3, t2)); a(valu("v_lshl_add_u32", t3, t4, 12, t1))
    a(valu("v_lshrrev_b32", t2, 5, L)); a(valu("v_lshl_add_u32", t3, t2, 7, t3))
    a(salu("s_lshl_b32", sT0, sW, 10)); a(salu("s_add_u32", sT0, sT0, 128 * 1024 + 128))
    a(valu("v_add_u32", qX9d, sT0, t3))
    a(valu("v_lshl_add_u32", t3, t4, 16, t1)); a(valu("v_lshl_add_u32", t3, t2, 15, t3))
    a(salu("s_lshl_b32", sT0, sQH, 18)); a(salu("s_lshl_b32", sT1, sHH, 8)); a(salu("s_add_u32", sT0, sT0, sT1))
    a(valu("v_add_u32", qWd(0), sT0, t3))
    for pp in range(1, 4): a(valu("v_add_u32", qWd(pp), (8192 - PS) * pp, qWd(0)))
    a(salu("s_mov_b32", Sx[2], PART + 128)); a(salu("s_mov_b32", Sx[3], "0x20000")); a(salu("s_mov_b32", Swq[3], "0x20000"))
    a(salu("s_mul_i32", sT2, sB, PART)); a(salu("s_lshl_b32", sT1, sJ, 9)); a(salu("s_sub_u32", Swq[2], 4194304, sT1))
    a(raw("s_waitcnt lgkmcnt(0)"))
    def base(srd, ptr, off, shift=0, size=None):
        a(salu("s_add_u32", srd[0], S(ptr), off)); a(salu("s_addc_u32", srd[1], S(ptr + 1), 0))
        if shift:
            a(salu("s_sub_u32", srd[0], srd[0], shift)); a(salu("s_subb_u32", srd[1], srd[1], 0))
        if size: a(salu("s_mov_b32", srd[2], size + shift)); a(salu("s_mov_b32", srd[3], "0x20000"))
    base(Sx, 4, sT2, 128); base(Swq, 10, sT1)
    first = []
    for tok in o.qseq.split("|")[0].split(","): first += qtok(tok, o)[0]
    Q = []; a = Q.append
    a(salu("s_lshl4_add_u32", sT1, sB, sJ))
    a(salu("s_lshl_b32", sT0, sT1, 18)); base(Sk, 6, sT0, 128, 262144); base(Sv, 8, sT0, 128, 262144)
    a(salu("s_mul_i32", sT0, sT1, PART)); base(Sws, 18, sT0, 0, PART)
    a(salu("s_lshl_b32", sT0, sJ, 18)); base(Swo, 12, sT0, 128, 262144)
    base(Sout, 14, sT2, 0, PART)
    a(salu("s_lshl_b32", sT0, sT2, 4)); base(Sred, 18, sT0, 0, 16 * PART)
    a(salu("s_lshl_b32", sT0, sB, 11)); a(salu("s_add_u32", sT0, sT0, MBOFF)); base(Smb, 18, sT0, 0, 2048)
    a(salu("s_mov_b32", Sdbg[2], 256)); a(salu("s_mov_b32", Sdbg[3], "0x20000"))
    a(salu("s_mov_b32", sC, hex(CSC)))
    for p in range(4): a(salu("s_add_u32", sT0, sT3, p)); a(salu("s_and_b32", sT0, sT0, 3)); a(salu("s_lshl_b32", sP(p), sT0, 8))
    a(valu("v_and_b32", t1, 15, L)); a(valu("v_lshlrev_b32", t1, 4, t1))
    a(valu("v_lshrrev_b32", t5, 4, L))
    a(salu("s_add_u32", sT0, sW, sMode)); a(salu("s_lshl4_add_u32", sAt, sT0, sB)); a(salu("s_lshl_b32", sAt, sAt, 4))
    a(valu("v_add_u32", t6, sT0, t5)); a(valu("v_lshrrev_b32", t3, 2, t1)); a(valu("v_lshl_add_u32", t6, t6, 11, t3))
    a(salu("s_lshl_b32", sOff, sJ, 7)); a(valu("v_mov_b32", V(7), 0))
    a(vstore(V(7), t6, Smb, sOff, 0, "sc1", tag="mbz", op="buffer_store_dword"))
    a(valu("v_lshl_add_u32", t3, t5, 13, t1))
    a(salu("s_lshl_b32", sT0, sHH, 15)); a(salu("s_lshl_b32", sT1, sQH, 12)); a(salu("s_add_u32", sT0, sT0, sT1))
    a(salu("s_add_u32", sT0, sT0, 128)); a(valu("v_add_u32", t3, sT0, t3)); a(valu("v_accvgpr_write_b32", aWo0, t3))
    a(valu("v_lshlrev_b32", vL16, 4, L))
    a(salu("s_lshl_b32", sT0, sHH, 17)); a(salu("s_lshl_b32", sT1, sQH, 13)); a(salu("s_add_u32", sT0, sT0, sT1))
    a(salu("s_add_u32", sT0, sT0, 128)); a(valu("v_add_u32", vKV(0), sT0, vL16))
    for pp in range(1, 4): a(valu("v_subrev_u32", vKV(pp), 32 * pp, vKV(0)))
    a(salu("s_xor_b32", sT0, sW, 1)); a(salu("s_mul_i32", sGrP, sT0, GRP))
    a(salu("s_add_u32", sA8, sGrp, 8 * US)); a(salu("s_add_u32", sB8, sGrP, 8 * US))
    a(valu("v_add_u32", qA8, sA8, vL16)); a(valu("v_add_u32", qB8, sB8, vL16))
    a(valu("v_and_b32", t1, 3, L)); a(valu("v_mul_u32_u24", t1, PS, t1)); a(valu("v_lshl_add_u32", t1, t5, 4, t1))
    a(valu("v_bfe_u32", t3, L, 2, 2)); a(valu("v_lshl_add_u32", t3, t3, 7, t1))
    a(valu("v_add_u32", qX9r, X9, t3))
    a(salu("s_mul_i32", sT0, sQH, 2 * GRP)); a(valu("v_add_u32", qXr(0), sT0, t3))
    a(valu("v_add_u32", qXr(1), 7 * US, qXr(0)))
    a(valu("v_bfe_u32", t3, L, 2, 1)); a(valu("v_mul_u32_u24", t3, US, t3)); a(valu("v_add_u32", t1, t1, t3))
    a(valu("v_bfe_u32", t3, L, 3, 1)); a(valu("v_lshl_add_u32", t1, t3, 8, t1))
    a(salu("s_lshl_b32", sT0, sQH, 6)); a(salu("s_xor_b32", sT1, sT0, 64))
    a(valu("v_add_u32", t3, sT0, t1)); a(valu("v_add_u32", t6, sT1, t1))
    a(valu("v_add_u32", Kr(0, 0), sGrp, t3)); a(valu("v_add_u32", Kr(0, 1), sGrp, t6))
    a(valu("v_add_u32", Kr(1, 0), sGrP, t3)); a(valu("v_add_u32", Kr(1, 1), sGrP, t6))
    a(valu("v_bfe_u32", t1, L, 2, 2)); a(valu("v_mul_u32_u24", t1, PS, t1))
    a(valu("v_and_b32", t3, 1, L)); a(valu("v_lshl_add_u32", t6, t3, 4, t1))
    a(valu("v_bfe_u32", t3, L, 1, 1)); a(valu("v_lshl_add_u32", t6, t3, 3, t6))
    a(valu("v_lshl_add_u32", t3, t5, 7, t6))
    a(salu("s_mul_i32", sT2, sHH, 2 * GRP)); a(salu("s_add_u32", sT2, sT2, US)); a(valu("v_add_u32", t3, sT2, t3))
    a(valu("v_add_u32", qWr(0, 0), sT0, t3)); a(valu("v_add_u32", qWr(0, 1), sT1, t3))
    a(valu("v_add_u32", qWr(1, 0), 4 * US, qWr(0, 0))); a(valu("v_add_u32", qWr(1, 1), 4 * US, qWr(0, 1)))
    a(valu("v_and_b32", t4, 1, t5))
    a(valu("v_lshl_add_u32", t6, t2, 8, t6)); a(valu("v_mul_u32_u24", t3, GRP, t4)); a(valu("v_add_u32", t6, t6, t3))
    a(salu("s_lshl_b32", sT2, sW, 6)); a(valu("v_add_u32", t6, sT2, t6)); a(valu("v_accvgpr_write_b32", aWpat, t6))
    a(valu("v_lshl_add_u32", t1, t2, 8, t1)); a(valu("v_and_b32", t3, 3, L)); a(valu("v_lshl_add_u32", t1, t3, 3, t1))
    a(valu("v_mul_u32_u24", t3, US, t4)); a(valu("v_add_u32", t1, t1, t3)); a(valu("v_add_u32", t1, 4 * US, t1))
    a(salu("s_lshl_b32", sT0, sT0, 1)); a(salu("s_lshl_b32", sT1, sT1, 1))
    a(valu("v_add_u32", t3, sT0, t1)); a(valu("v_add_u32", t6, sT1, t1))
    a(valu("v_add_u32", Vr(0, 0), sGrp, t3)); a(valu("v_add_u32", Vr(0, 1), sGrp, t6))
    a(valu("v_add_u32", Vr(1, 0), sGrP, t3)); a(valu("v_add_u32", Vr(1, 1), sGrP, t6))
    a(salu("s_mul_i32", sT2, sQH, 4 * US)); a(salu("s_lshl_b32", sOw0, sHH, 12)); a(salu("s_add_u32", sT2, sT2, sOw0))
    a(salu("s_lshl4_add_u32", sOw0, sT0, sT2)); a(salu("s_lshl4_add_u32", sOw1, sT1, sT2))
    a(valu("v_mov_b32", t1, "0x3f803f80"))
    for r in range(4): a(valu("v_accvgpr_write_b32", (ONES[r], "ones"), t1))
    return P, first, Q

def build_main(o):
    P, first, Q = prologue(o)
    sc = Sched(vmgap=int(o.vmgap), dswgap=int(o.dswgap), maxmem=int(o.maxmem))
    F = sc.f
    nstamp = [1]
    def stamp(g, after=()):
        if int(o.stamps):
            n = nstamp[0]; nstamp[0] += 1
            F(raw(f"s_memrealtime s[{64+2*n}:{65+2*n}]"), g, g, after=after)
    nextvm = [0]
    def spread(ops, lo, step, q="dma", after=(), cap=None):
        out = []; pos = max(lo, nextvm[0]); pend = []
        for x in ops:
            pend.append(x)
            if x.kind in ("dma", "vml", "vms"):
                a_, b_ = int(pos), int(pos + step)
                if cap is not None: a_, b_ = min(a_, cap), min(b_, cap)
                for y in pend[:-1]: out.append(F(y, max(min(lo, b_), min(a_ - 3, b_)), b_, q=q, after=after))
                out.append(F(x, a_, b_, q=q, after=after)); pend = []
                pos += step
        assert not pend
        nextvm[0] = pos
        return out
    cur = {}; lastrd = {}; firstrd = {}; lastwr = {}
    def M(d, dtag, a_, b_, c):
        cc = (d, cur[str(d)]) if c == "acc" else c
        i = mfma((d, dtag), a_, b_, cc); n = sc.m(i); cur[str(d)] = dtag
        for r, t in i.rd.items():
            lastrd[(r, t)] = n; firstrd.setdefault((r, t), n)
        lastwr[str(d)] = n
        return n
    lr = lambda reg, tag: max(lastrd[(r, tag)] for r in reg.regs())
    fr_ = lambda reg, tag: min(firstrd[(r, tag)] for r in reg.regs())
    for i in first + Q: F(i, -1, -1, q="dma")
    k0 = {}; qdone = {}
    for j, (I_, hf) in enumerate(SEQ):
        k0[j] = sc.n
        if j < 15: order = [(fp, b) for fp in range(4) for b in range(5) if b < 4 or fp < 2]
        else: order = [(fp, 4) for fp in range(2)] + [(fp, b) for b in range(4) for fp in range(4)]
        for fp, b in order:
            d = ACC(b, 4 * hf + fp) if b < 4 else SB(hf).sub(4 * fp, 4)
            for kk in range(2):
                bb = (Bq(I_, kk, b) if b < 4 else B9(I_, kk), f"x{I_}")
                n = M(d, "Qacc" if (I_, kk) == (7, 1) else f"q{I_}.{kk}", (Aq(fp, kk), f"w{j}"), bb, 0 if (I_, kk) == (0, 0) else "acc")
            qdone[str(d)] = n
    k0[16] = sc.n
    units = []; U = {}; G = {}; pre0 = {}; preL = {}
    P7 = {0: PB(0), 1: PB(1), 8: PB(2), 2: NM(0), 3: NM(4), 4: NM(1), 5: NM(2)}
    def pre(b):
        pre0[b] = sc.n
        for t in range(4): preL[b] = M(NM(b), f"pm{b}", (KF(0, 0, t), "k0"), (QF(b, t), f"Q{b}"), 0 if t == 0 else "acc")
    def qk(e, u):
        n = len(units); b, y = (u >> 1, u & 1) if u < 8 else (4, 0)
        s_ = SB(n & 1); p_ = PB(u % 3) if e < 7 else P7.get(u, s_.sub(0, 4))
        un = dict(e=e, u=u, b=b, y=y, S=s_, P=p_, n=n, q0=sc.n, hl=[0, 0])
        for h in range(2):
            for t in range(4):
                un["hl"][h] = M(s_.sub(4 * h, 4), f"s{n}", (KF(y, h, t), f"k{e}"), (QF(b, t), f"Q{b}"), (NM(b), f"nm{b}") if t == 0 else "acc")
        units.append(un); U[(e, u)] = un
    def pv(e, b):
        us = [U[(e, 2 * b)], U[(e, 2 * b + 1)]] if b < 4 else [U[(e, 8)]]
        g = G[(e, b)] = dict(p0=sc.n)
        for d in range(-1, 8):
            acc = LS(b) if d < 0 else (ACC(b, d) if b < 4 else O9(d))
            for k, un in enumerate(us):
                a_ = (ONES, "ones") if d < 0 else (VF(e, un["y"], d), f"v{e}")
                g["pL"] = M(acc, f"o{e}.{k}" if k + 1 < len(us) else f"o{e}", a_, (un["P"], f"p{un['n']}"), 0 if e == 0 and k == 0 else "acc")
        for un in us: un["g"] = g
    st0 = {}
    for e in range(8):
        st0[e] = sc.n
        if e == 0: pre(0); pre(1)
        qk(e, 0); qk(e, 1)
        if e: pv(e - 1, 4)
        if e < 7:
            for b in range(1, 4):
                if e == 0: pre(b + 1)
                qk(e, 2 * b); qk(e, 2 * b + 1); pv(e, b - 1)
            qk(e, 8); pv(e, 3)
        else:
            for u in (8, 2, 3, 4, 5, 6, 7): qk(e, u)
            for b in (4, 0, 1, 2, 3): pv(e, b)
    attn_end = sc.n - 1
    odone = dict(lastwr)
    ou0 = {}; ouh = {}
    for p in range(4):
        for qb in range(9):
            n = 9 * p + qb; ou0[n] = sc.n
            for u in range(2):
                for ks in range(8):
                    ouh[(n, u)] = M(SB(n & 1).sub(4 * u, 4), f"r{n}", (Ao(p, ks, u), f"wo{p}"), (Bo(qb, ks), f"of{qb}"), 0 if ks == 0 else "acc")
    last = sc.n - 1
    ou0[36] = ou0[37] = last + 1
    def rdA(j, fp):
        u = WQU[j % 6]; win = 0 if u <= 4 else 1
        return [dsr(TR, (Aq(fp, kk).sub(2 * h, 2), f"w{j}"), qWr(win, fp >> 1), (u - 1 - 4 * win) * US + kk * GRP + 512 * h + 32 * (fp & 1))
                for kk in range(2) for h in range(2)]
    def rdB(I_):
        u = XU[I_ % 3]; win = 1 if u == 7 else 0
        l = [dsr(B128, (Bq(I_, kk, b), f"x{I_}"), qXr(win), (u - 7 * win) * US + (b >> 1) * GRP + (b & 1) * 512 + kk * 64)
             for b in range(4) for kk in range(2)]
        return l + [dsr(B128, (B9(I_, kk), f"x{I_}"), qX9r, ((I_ >> 1) & 1) * GRP + (I_ & 1) * 512 + kk * 64) for kk in range(2)]
    bpre = F(barrier(vm=("x0", "xn0", "wq0")), -1, -1, q="dma")
    stamp(-1, [bpre])
    l = rdB(0)
    prev = [F(x, -1, -1, q="lds", after=[bpre]) for x in rdA(0, 0) + l[:6]]
    prev += [F(x, -1, 7, q="lds", after=[bpre]) for x in l[6:] + rdA(0, 1) + rdA(0, 2) + rdA(0, 3)]
    BQ = {}
    for j in range(16):
        g = k0[j] + (14 if j == 0 else 9)
        nI = SEQ[j + 1][0] if j < 15 and SEQ[j + 1][1] == 0 else None
        vm = []
        if j < 15: vm.append(f"wq{j+1}")
        if nI is not None: vm += [f"x{nI}", f"xn{nI//2}"]
        if j == 10: vm = ["wq15", "all0"]
        bq = BQ[j] = F(barrier(vm=vm), g, g, after=prev)
        if o.qst and j in eval(o.qst): stamp(g, [bq])
        prev = []
        if j < 15:
            for fp in range(4):
                for x, kk in zip(rdA(j + 1, fp), (0, 0, 1, 1)):
                    lo = max(lr(Aq(fp, kk), f"w{j}"), g)
                    prev.append(F(x, lo, max(min(fr_(Aq(fp, kk), f"w{j+1}") - 6, k0[j + 1] + 3), lo), q="ldsA", after=[bq]))
        if nI is not None:
            for n, x in enumerate(rdB(nI)): prev.append(F(x, g, min(k0[j + 1] - 7 + n, k0[j + 1] + 2), q="ldsB", after=[bq]))
    step = 3.0; seen = set(o.qseq.split("|")[0].split(","))
    for tok in o.qseq.split("|")[1].split(","):
        if tok[0] == "@": nextvm[0] = max(nextvm[0], int(float(tok[1:]) * 36)); continue
        if tok[0] == "+": nextvm[0] += int(tok[1:]); continue
        if tok[0] == "p": step = float(tok[1:]); continue
        seen.add(tok)
        ops, dep = qtok(tok, o)
        spread(ops, BQ[dep].lo if dep >= 0 else 0, step, after=[BQ[dep]] if dep >= 0 else [])
    assert len([t for t in seen if t[0] != "c"]) == 16 + 8 + 4 + 4 + 4, sorted(seen)
    stamp(k0[15])
    if o.xst:
        for g_ in eval(o.xst): stamp(g_)
    def pack_q(src, dst, tdst, hi):
        lo = min(max(qdone[str(src.sub(0, 4))], qdone[str(src.sub(4, 4))]) + 3, hi)
        ops = [valu("v_mul_f32", (src[m], "t"), sC, (src[m], "Qacc")) for m in range(8)]
        ops += [valu("v_cvt_pk_bf16_f32", (dst[m], "t2"), (src[2 * m], "t"), (src[2 * m + 1], "t")) for m in (0, 2, 1, 3)]
        ops += [swap("v_permlane32_swap_b32", (dst[m], "t2"), (dst[m + 2], "t2"), tdst, tdst) for m in range(2)]
        return [F(x, lo, hi, q="qe") for x in ops]
    q9w = []
    for hf in range(2):
        l = pack_q(SB(hf), PB(hf), "q9p", pre0[0] - 2)
        q9w.append(F(dsw("ds_write_b128", qA8, (PB(hf), "q9p"), 1024 * hf), BQ[15].lo, U[(0, 0)]["q0"] - 1, q="q9w", after=[l[-1], BQ[15]]))
        for t, b in ([(t, b) for t in (0, 1) for b in range(4)] if hf == 0 else [(t, b) for b in range(4) for t in (2, 3)]):
            pack_q(V(32 * b + 8 * t, 8), QF(b, t), f"Q{b}", pre0[b] - 1 + t)
    for b in range(5):
        n = NM(b); pm = f"pm{b}"; nm = f"nm{b}"; hi = fr_(n, nm) - 1
        ops = [valu("v_accvgpr_read_b32", vT1, SAV(b)),
               valu("v_max3_f32", n[0], (n[0], pm), (n[1], pm), vT1), valu("v_max3_f32", n[0], n[0], (n[2], pm), (n[3], pm)),
               valu("v_mov_b32", n[1], n[0]), swap("v_permlane32_swap_b32", n[0], n[1]), valu("v_max_f32", n[0], n[0], n[1]),
               valu("v_mov_b32", n[1], n[0]), swap("v_permlane16_swap_b32", n[0], n[1]),
               I(f"v_min_f32_e64 {n[0]}, -{n[0]}, -{n[1]}", "valu", rd=[n[0], n[1]], wr=[(n[0], nm)]),
               valu("v_mov_b32", (n[1], nm), (n[0], nm)), valu("v_mov_b64", (n.sub(2, 2), nm), (n.sub(0, 2), nm))]
        for x in ops: F(x, min(preL[b] + 3, hi), hi, q="nm")
    def rdK(e, y, lo, after, hi=10**9):
        out = []
        for h in range(2):
            for t in range(4):
                r = KF(y, h, t); l_ = max(lo, lr(r, f"k{e-1}")) if e else lo
                x = dsr(B128, (r, f"k{e}"), Kr(y, t & 1), (e & 1) * 2 * US + 512 * h + 128 * (t >> 1))
                out.append(F(x, l_, max(l_, min(fr_(r, f"k{e}") - 6, hi)), q=f"ldsK{y}", after=after))
        return out
    def rdV(e, y, lo, after, hi):
        out = []
        for d in range(8):
            r = VF(e, y, d); l_ = max(lo, lr(r, f"v{e-1}")) if e and y else lo
            for h in range(2):
                x = dsr(TR, (r.sub(2 * h, 2), f"v{e}"), Vr(y, d >> 2), (e & 1) * 2 * US + 512 * h + 32 * (d & 3))
                out.append(F(x, l_, max(l_, min(fr_(r, f"v{e}") - 6, hi)), q=f"ldsV{y}", after=after))
        return out
    BB = {}; wo0 = g_wo(0)
    for e in range(8):
        if e == 0:
            g = k0[16] - int(o.bk0)
            bk = F(barrier(vm=["k0"], lgkm=False), g, g, after=[BQ[15]])
            gv = pre0[2] - 1 + int(o.ba0)
            bv = F(barrier(vm=["v0"]), gv, gv, after=q9w + [bk])
            for t in range(4):
                F(dsr(B128, (QF(4, t), "Q4"), qB8 if t & 1 else qA8, 1024 * (t >> 1)), gv, pre0[4] - 6, q="ldsQ9", after=[bv])
        else:
            g = U[(e - 1, 8)]["q0"] - 1 - int(o.bao)
            bk = F(barrier(vm=[f"k{e}"] + ([f"v{e}"] if e < 7 else []), lgkm=False), g, g, after=[BB[e - 1]])
            bv, gv = bk, g
            if e == 7:
                gv = G[(7, 4)]["p0"] - 1
                bv = F(barrier(vm=["v7"], lgkm=False), gv, gv, after=[bk])
                stamp(gv, [bv])
        gb = G[(e, 0)]["p0"] + int(o.bbo) if e < 7 else gv + int(o.bb7)
        rk = rdK(e, 0, g, [bk]) + rdK(e, 1, g, [bk])
        rv = rdV(e, 0, gv, [bv], gb - 5) + rdV(e, 1, gv, [bv], gb - 5)
        bb = BB[e] = F(barrier(), gb, gb, after=rk + rv)
        if e in (0, 3, 6): stamp(gb, [bb])
        ops = []
        if e < 6:
            for part in range(4): ops += g_kv(e + 2, part, o)
        if e == int(o.ate):
            ops += [valu("v_lshl_add_u32", vT0, vL16, 4, sAt), valu("v_mov_b32", vT1, 1),
                    vstore(vT1, vT0, Sdbg, 0, 0, "", tag="at", op="buffer_atomic_add")]
        if e == 3 and int(o.cpf): ops += code_touch(V(254, 2), vTs, vL16, shift=3)
        if e == int(o.wot):
            ops += [salu("s_and_b32", sT0, sB, 7), salu("s_lshl2_add_u32", sT0, sT0, sW), salu("s_lshl_b32", sT0, sT0, 13), salu("s_add_u32", sT0, sT0, 128),
                    valu("v_lshl_add_u32", vT0, vL16, 3, sT0), I(f"buffer_load_dword {vTs}, {vT0}, {Swo}, 0 offen", "vml", rd=[vT0], tag="ct")]
        nwo = len(wo0) // 4 * int(o.wo0a)
        wset = [valu("v_accvgpr_read_b32", vKV(0), aWo0)] + [valu("v_subrev_u32", vKV(pp), 32 * pp, vKV(0)) for pp in (1, 2, 3)]
        if e == 6 and int(o.drain):
            for n in range(int(o.win) - 1, -1, -1):
                g_ = int(nextvm[0]); F(raw(f"s_waitcnt vmcnt({n})"), g_, g_ + 2, q="dma"); nextvm[0] += float(o.astep)
        if e == 6 and nwo: ops += wset + wo0[:nwo]
        if e == 7: spread(([] if nwo else wset) + wo0[nwo:], gv + int(o.wo0o), float(o.wostep2), after=[bv] if int(o.wo0o) >= 0 else [BB[6]])
        spread(ops, gb + (int(o.ashift) if e < 6 else 0), float({4: o.astep4, 5: o.astep5, 6: o.wostep}.get(e, o.astep)), after=[bb])
    vA8, vLMw, vOw, vW, vB8, vLMr = Kr(0, 0), Kr(0, 1), (Kr(1, 0), Kr(1, 1)), (Vr(0, 0), Vr(0, 1)), Vr(1, 0), Vr(1, 1)
    vBr, vSt = (Kr(0, 0), Kr(0, 1)), Kr(1, 0)
    g = U[(7, 8)]["q0"]
    adr = [valu("v_bfe_u32", vLMw, vL16, 1, 7), valu("v_add_u32", vLMw, sA8, vLMw), dsw("ds_write_b32", vLMw, (NM(4)[0], "nm4"), 4096 + 4),
           valu("v_add_u32", vA8, sA8, vL16), valu("v_add_u32", vOw[0], sOw0, vL16), valu("v_add_u32", vOw[1], sOw1, vL16)]
    adr = [F(x, g, g + 12, q="adr", after=rk) for x in adr]
    gw = gv + int(o.bw7)
    adr2 = [valu("v_accvgpr_read_b32", vW[0], aWpat), valu("v_add_u32", vW[1], 4 * US, vW[0]), valu("v_add_u32", vB8, sB8, vL16),
            valu("v_bfe_u32", vLMr, vL16, 1, 7), valu("v_add_u32", vLMr, sB8, vLMr)]
    adr2 = [F(x, gv + 8, gw - 1, q="adr", after=rv) for x in adr2]
    lastP = {}
    for un in units:
        n, s_, p_ = un["n"], un["S"], un["P"]
        nx = units[n + 2]["q0"] if n + 2 < len(units) else 10**9
        pfree = -1; aft = []
        if str(p_) in lastP: pfree = lastP[str(p_)]["g"]["pL"]
        for b in range(5):
            if str(p_) == str(NM(b)): pfree = lr(p_, f"nm{b}") + 1
        if str(p_) == str(NM(4)): aft = [adr[2]]
        if n < 2: aft = q9w
        lastP[str(p_)] = un
        ex = []
        for j in range(8):
            hi = min(nx - 1 + 4 * (j >> 2), un["g"]["p0"] - 1); lo = min(un["hl"][j >> 2] + 3, hi)
            ex.append(F(trans("v_exp_f32", (s_[j], f"e{n}"), (s_[j], f"s{n}")), lo, max(lo, hi - 1), q="exp"))
        for m in range(4):
            hi = min(nx - 1 + 4 * (m >> 1), un["g"]["p0"] - 1)
            F(valu("v_cvt_pk_bf16_f32", (p_[m], f"p{n}"), (s_[2 * m], f"e{n}"), (s_[2 * m + 1], f"e{n}")),
              max(ex[2 * m + 1].lo, pfree), hi, q="cvt", after=[ex[2 * m + 1]] + aft)
    def rdAo(p):
        return [dsr(TR, (Ao(p, ks, u).sub(2 * h, 2), f"wo{p}"), vW[WOU[p][ks >> 1] >> 2],
                    (WOU[p][ks >> 1] & 3) * US + (ks & 1) * 2 * GRP + 512 * h + 32 * u)
                for u in range(2) for ks in range(8) for h in range(2)]
    g = G[(7, 4)]["pL"] + 3
    raww = [dsw("ds_write_b32", vLMw, (LS(4)[0], "o7"), 4096)] + [dsw("ds_write_b128", vA8, (O9(4 + d), "o7"), 1024 * d) for d in range(4)]
    raww = [F(x, g, gw - 4, q="raw", after=[adr[-1]]) for x in raww]
    bw = F(barrier(vm=["wo0"]), gw, gw, after=raww + [BB[7]])
    ow = [F(x, gw, attn_end, q="ldsK0", after=[adr2[-1], bw]) for x in rdAo(0)]
    def norm_block(b):
        a32 = V(32 * b, 32)
        lo = min(odone[str(LS(b))] + 3, attn_end)
        ops = [valu("v_accvgpr_read_b32", vT1, (LS(b)[0], "o7")), trans("v_rcp_f32", vT0, vT1),
               valu("v_mov_b32", vTs, vT1) if b == 0 else valu("v_add_f32", vTs, vTs, vT1)]
        for x in ops: ow.append(F(x, lo, attn_end, q="ep"))
        for k in range(4):
            ops = []
            for m in range(4):
                r = a32.sub(8 * k + 2 * m, 2)
                if b >= int(o.pkfrom): ops.append(valu("v_pk_mul_f32", (r, "n"), (r, "o7"), V(254, 2), extra="op_sel_hi:[1,0]"))
                else: ops += [valu("v_mul_f32", (r[z], "n"), (r[z], "o7"), vT0) for z in range(2)]
            for m in range(4):
                ops.append(valu("v_cvt_pk_bf16_f32", (a32[8 * k + m], "of"), (a32[8 * k + 2 * m], "n"), (a32[8 * k + 2 * m + 1], "n")))
            lo = min(odone[str(ACC(b, 2 * k + 1))] + 3, attn_end)
            if b >= int(o.pkfrom): lo = attn_end
            for x in ops: ow.append(F(x, lo, attn_end, q="ep"))
            ow.append(F(dsw("ds_write_b128", vOw[k >> 1], (a32.sub(8 * k, 4), "of"), (2 + (b >> 1)) * US + (b & 1) * 8192 + (k & 1) * 1024),
                        lo, attn_end, q="ow", after=[ow[-1], BB[7]]))
    norm_block(0); norm_block(1)
    rcv = [PB(2), PB(0), PB(1), NM(3)]; lm = NM(0)
    g = max(gw, G[(7, 1)]["pL"])
    mr = [dsr("ds_read_b64", lm.sub(0, 2), vLMw, 4096), dsr("ds_read_b64", lm.sub(2, 2), vLMr, 4096)]
    mr += [dsr(B128, (rcv[d], "rcv"), vB8, 1024 * d) for d in range(4)]
    mr = [F(x, g, g + 6, q="ldsV0", after=[bw, adr2[-1]]) for x in mr]
    ops = [valu("v_add_u32", vBr[0], 2 * US, vL16), valu("v_add_u32", vBr[1], 6 * US, vL16),
           salu("s_lshl_b32", sT0, sW, 11), valu("v_add_u32", vB8, sT0, vBr[1]), salu("s_lshl_b32", sT0, sW, 2), valu("v_add_u32", vLMr, sT0, vBr[1]),
           valu("v_sub_f32", lm[1], lm[1], lm[3]), trans("v_exp_f32", lm[1], lm[1]),
           valu("v_fma_f32", lm[0], lm[2], lm[1], lm[0]), trans("v_rcp_f32", lm[2], lm[0]),
           valu("v_add_f32", vTs, vTs, lm[0]), valu("v_mul_f32", lm[1], lm[1], lm[2])]
    for x in ops: ow.append(F(x, g + 4, attn_end, q="ep", after=mr))
    for k in range(2):
        ops = []
        for d in (2 * k, 2 * k + 1):
            for m in range(4):
                t = (vT1, lm[3])[m & 1]
                ops += [valu("v_accvgpr_read_b32", t, (O9(d)[m], "o7")), valu("v_mul_f32", (rcv[d][m], "rs"), (rcv[d][m], "rcv"), lm[1]),
                        valu("v_fma_f32", (rcv[d][m], "n"), t, lm[2], (rcv[d][m], "rs"))]
        for m in range(4):
            src = rcv[2 * k + (m >> 1)]
            ops.append(valu("v_cvt_pk_bf16_f32", (rcv[2 * k][m], "of"), (src[2 * (m & 1)], "n"), (src[2 * (m & 1) + 1], "n")))
        for x in ops: ow.append(F(x, g + 4, attn_end, q="ep"))
        ow.append(F(dsw("ds_write_b128", vB8, (rcv[2 * k], "of"), 3 * US + 1024 * k), g + 4, attn_end, q="ow", after=[ow[-1]]))
    norm_block(2); norm_block(3)
    ow.append(F(dsw("ds_write_b32", vLMr, vTs, FLAG - 6 * US), attn_end, attn_end, q="ow"))
    b1 = F(barrier(), attn_end, attn_end, q="dma", after=ow)
    stamp(attn_end, [b1])
    fl = V(216, 4)
    def rdBo(qb, ks):
        if qb < 8: return dsr(B128, (Bo(qb, ks), f"of{qb}"), vBr[qb >> 2], ((qb >> 1) & 1) * US + (qb & 1) * 8192 + 1024 * ks)
        return dsr(B128, (Bo(qb, ks), f"of{qb}"), vBr[1], 3 * US + 1024 * ks)
    gd = {p: ou0[9 * p + int(o.bdu)] - 1 + (8 if p == 0 else 0) for p in range(4)}
    rd = [F(rdBo(0, ks), attn_end, attn_end, q="ldsB", after=[b1]) for ks in range(8)]
    fr = F(dsr(B128, fl, vBr[1], FLAG - 6 * US), attn_end, attn_end, q="ldsB")
    chk = [valu("v_add_f32", fl[0], fl[0], fl[1]), valu("v_add_f32", fl[2], fl[2], fl[3]), valu("v_add_f32", fl[0], fl[0], fl[2]),
           raw(f"v_cmp_nge_f32 vcc, {hex(THR)}, {fl[0]}", rd=[fl[0]], kind="valu"),
           raw(f"s_cmp_eq_u32 s54, {77 if o.abl else 0}\ns_cselect_b64 vcc, vcc, 0\ns_cbranch_vccnz Lslow", cost=2, kind="br"),
           salu("s_lshl_b32", sT0, sW, 10), valu("v_add_u32", vSt, sT0, vL16)]
    chk = [F(x, attn_end + 6, attn_end + 12, q="fl", after=[fr]) for x in chk]
    spread(g_wo(1), attn_end + 1, 2.5, after=[b1])
    for qb in range(1, 9):
        for ks in range(8):
            rd.append(F(rdBo(qb, ks), attn_end, min(ou0[qb] - 6 + ks, gd[0] - 4), q="ldsB", after=[chk[4]] if qb >= 4 else []))
    BD = {}
    for p in range(3):
        bd = BD[p] = F(barrier(vm=[f"wo{p+1}"] + ([f"st{p-1}", "rdy"] if p else [])), gd[p], gd[p], after=rd)
        if p < 2: spread(g_wo(p + 2), gd[p] + 2, float(o.ostep), after=[bd])
        rd = [F(x, gd[p], ou0[9 * p + 9] - 8 + n // 2, q="ldsK0", after=[bd]) for n, x in enumerate(rdAo(p + 1))]
    for n in range(36):
        s_, p_ = SB(n & 1), PB(n & 1)
        for m in range(4):
            lo = min(ouh[(n, m >> 1)] + 8, last)
            x = F(valu("v_cvt_pk_bf16_f32", (p_[m], f"rp{n}"), (s_[2 * m], f"r{n}"), (s_[2 * m + 1], f"r{n}")), lo, min(lo + 6, last), q="st")
        ops = [salu("s_mul_i32", sSt, sP(n // 9), 144) if n % 9 == 0 else salu("s_add_u32", sSt, sSt, 4096),
               vstore((p_, f"rp{n}"), vSt, Sws, sSt, 0, o.stflag, tag=f"st{n//9}")]
        for x in ops: F(x, lo, min(lo + 8, last), q="st", after=[chk[-1]])
    t = V(168, 4)
    ops = [salu("s_lshl_b32", sT1, sB, 4), valu("v_mov_b32", vRdA, sT1),
           vload(vRdy, vRdA, Sdbg, 0, 0, "sc1", tag="rdy", op="buffer_load_dword"),
           salu("s_lshl_b32", sT0, sW, 7), salu("s_lshl2_add_u32", sT0, sJ, sT0),
           valu("v_lshl_add_u32", vF, vL16, 7, sT0), valu("v_mov_b32", vOne, 1)]
    for x in ops: F(x, ou0[2], gd[1] - 30, q="fl")
    ops = [raw(f"v_cmp_gt_u32 vcc, 16, {vRdy}", rd=[vRdy], kind="valu"), raw("s_cbranch_vccnz Lrdy_spin\nLrdy_back:", kind="br")]
    for p in range(3):
        if p == 2: ops += [waitvm("st2")]
        ops += [salu("s_lshl_b32", sT0, sP(p), 1), vstore(vOne, vF, Smb, sT0, 0, "sc1", tag="fl", op="buffer_store_dword")]
        for x in ops: F(x, gd[p + 1], gd[p + 1] + 2, q="fl", after=[BD[p + 1]] if p < 2 else [])
        ops = []
        if p == 0:
            su = [
               valu("v_bfe_u32", vPo, vL16, 2, 6), valu("v_lshrrev_b32", t[0], 8, vL16), valu("v_lshl_add_u32", vPo, t[0], 11, vPo),
               salu("s_lshl_b32", sT0, sJ, 7), valu("v_add_u32", vPo, sT0, vPo),
               salu("s_lshr_b32", sT0, sJ, 2), salu("s_mul_i32", sT0, sT0, 9), salu("s_add_u32", sT0, sT0, sW),
               salu("s_and_b32", sT1, sJ, 3), salu("s_lshl2_add_u32", sT0, sT0, sT1), salu("s_lshl_b32", sT0, sT0, 10),
               valu("v_add_u32", vR[0], sT0, vL16), valu("v_add_u32", vR[1], 16384, vR[0]),
               salu("s_lshl_b32", sT1, sW, 28), salu("s_add_u32", sT0, sT1, 32768), valu("v_add_u32", vR[2], sT0, vR[0]),
               valu("v_bfe_u32", t[1], vL16, 4, 4), valu("v_lshlrev_b32", vO[0], 10, t[1]), valu("v_lshl_add_u32", vO[0], t[0], 4, vO[0]),
               salu("s_lshl_b32", sT0, sW, 14), salu("s_lshl_b32", sT2, sJ, 6), salu("s_add_u32", sT0, sT0, sT2),
               valu("v_add_u32", vO[0], sT0, vO[0]), valu("v_add_u32", vO[1], 65536, vO[0]),
               salu("s_add_u32", sT0, sT1, 131072), valu("v_add_u32", vO[2], sT0, vO[0]),
               valu("v_and_b32", t[2], 1, t[1]), valu("v_lshlrev_b32", t[2], 4, t[2]), valu("v_mov_b32", t[3], "0x3f80"),
               valu("v_lshlrev_b32", t[2], t[2], t[3]),
               valu("v_bfe_u32", t[3], t[1], 2, 1), valu("v_xor_b32", t[3], t[3], t[0]),
               valu("v_and_b32", t[0], 1, t[3]), valu("v_lshlrev_b32", t[0], 3, t[0]),
               valu("v_lshrrev_b32", t[3], 1, t[3]), valu("v_lshl_add_u32", t[0], t[3], 2, t[0]),
               valu("v_lshrrev_b32", t[3], 3, t[1]), valu("v_lshl_add_u32", t[0], t[3], 1, t[0]),
               valu("v_bfe_u32", t[3], t[1], 1, 1), valu("v_add_u32", t[0], t[0], t[3]),
               valu("v_lshlrev_b32_e64", t[0], t[0], 1)]
            for m in range(8): su += [valu("v_bfe_i32", SEL[m], t[0], m, 1), valu("v_and_b32", SEL[m], SEL[m], t[2])]
            for x in su: F(x, ou0[18], gd[2] - 1, q="fl")
    seq = sc.run()
    if "a" in o.abl: seq = [x for x in seq if not (x.gap > 100 and x.kind in ("dma", "vml"))]
    seq = P + seq
    if not o.abl: check_tags(seq)
    seq, nops = pad_hazards(seq)
    sys.stderr.write(f"mfma {len(sc.bb)} instrs {len(seq)} over {sc.stats['over']} idle {sc.stats['idle']} waits {sc.stats['waits']} nop-states {nops}\n")
    return seq, nstamp[0]

def reduce_tail(o, a, nst):
    acc = lambda f, u: V(8 * f + 4 * u, 4)
    buf = lambda t, i, f: A(48 * t + 12 * i + 4 * f, 4)
    poll = f"buffer_load_dword {vRdy}, {vPo}, {Smb}, 0 offen sc1"
    a("s_lshr_b32 s53, s51, 2"); a("s_sub_u32 s53, s53, s50"); a(f"s_lshl_b32 s52, {sP(3)}, 1"); a("s_mov_b32 s63, 0")
    a("s_waitcnt vmcnt(0)")
    a(f"buffer_store_dword {vOne}, {vF}, {Smb}, s52 offen sc1"); a(poll)
    if int(o.stamps): a(f"s_memrealtime s[{64+2*nst}:{65+2*nst}]")
    def mf(t):
        for f in range(3):
            for u in range(2):
                for i in range(4):
                    a(f"v_mfma_f32_16x16x32_bf16 {acc(f,u)}, {SEL.sub(4*u,4)}, {buf(t,i,f)}, {0 if t == 0 and i == 0 else acc(f,u)}")
    for t in range(4):
        a(f"s_sub_u32 s52, s53, {t}"); a("s_and_b32 s52, s52, 3"); a("s_lshl_b32 s62, 0x1111, s52"); a(f"s_mul_i32 s45, s52, {PART}")
        a(f"s_waitcnt vmcnt({0 if t == 0 else 3})")
        a(f"Lpoll{t}:"); a(f"v_cmp_ne_u32 vcc, 0, {vRdy}"); a("s_nop 0"); a("s_and_b32 s52, vcc_lo, s62"); a("s_cmp_eq_u32 s52, s62")
        a(f"s_cbranch_scc1 Lgo{t}")
        a(poll); a("s_add_u32 s63, s63, 1"); a("s_waitcnt vmcnt(0)"); a("s_cmp_lt_u32 s63, 0x40000"); a(f"s_cbranch_scc1 Lpoll{t}")
        a(f"Lgo{t}:")
        for i in range(4):
            if i == 3 and t < 3: a(poll)
            for f in range(3): a(f"buffer_load_dwordx4 {buf(t,i,f)}, {vR[f]}, {Sred}, s45 offen sc1")
            if i < 3: a(f"s_add_u32 s45, s45, {4*PART}")
        if t:
            a(f"s_waitcnt vmcnt({13 if t < 3 else 12})"); mf(t - 1)
    for i in range(4):
        a(f"s_waitcnt vmcnt({9-3*i})")
        for f in range(3):
            for u in range(2): a(f"v_mfma_f32_16x16x32_bf16 {acc(f,u)}, {SEL.sub(4*u,4)}, {buf(3,i,f)}, {acc(f,u)}")
    a("s_nop 3")
    for f in range(3):
        if f: a("s_nop 1")
        for m in range(4): a(f"v_cvt_pk_bf16_f32 v{32+4*f+m}, v{8*f+2*m}, v{8*f+2*m+1}")
        a(f"buffer_store_dwordx4 v[{32+4*f}:{35+4*f}], {vO[f]}, {Sout}, 0 offen {o.outflag}".rstrip())

def tail_and_slow(o, nst):
    T = []; a = T.append
    reduce_tail(o, a, nst); nst += 1
    if int(o.stamps):
        a(f"s_memrealtime s[{64+2*nst}:{65+2*nst}]"); a("s_waitcnt vmcnt(0)")
        a(f"s_memrealtime s[{66+2*nst}:{67+2*nst}]"); a("s_waitcnt lgkmcnt(0)")
        a("s_cmp_lg_u32 s3, 0"); a("s_cbranch_scc1 Lend")
        if o.enc:
            ea, eb = [int(z) for z in o.enc.split(",")]
            a("s_cmp_lg_u32 s2, 100"); a("s_cbranch_scc1 Lnoenc")
            a(f"s_sub_u32 s52, s{64+2*eb}, s{64+2*ea}"); a("s_mul_i32 s52, s52, 10"); a("s_min_u32 s52, s52, 200000"); a("s_add_u32 s52, s52, 500")
            a("Lspin:"); a("s_memrealtime s[46:47]"); a("s_waitcnt lgkmcnt(0)"); a(f"s_sub_u32 s46, s46, s{66+2*nst}")
            a("s_cmp_lt_u32 s46, s52"); a("s_cbranch_scc1 Lspin"); a("Lnoenc:")
        a("s_load_dwordx2 s[40:41], s[0:1], 56"); a("s_mov_b32 s42, 0x10000000"); a("s_mov_b32 s43, 0x20000"); a("s_waitcnt lgkmcnt(0)")
        a(f"s_lshl_b32 s52, s2, 6"); a(f"s_add_u32 s52, s52, {STAMP_OFF}"); a("v_mov_b32 v1, s52")
        a("s_mov_b64 exec, 1")
        assert nst + 2 <= 16
        for n in range(nst + 2):
            a(f"v_mov_b32 v2, s{64+2*n}"); a(f"buffer_store_dword v2, v1, s[40:43], 0 offen offset:{4*n}")
    a("Lend:"); a("s_endpgm")
    a("Lrdy_spin:"); a("s_mov_b32 s63, 0"); a("Lrdy_loop:")
    a(f"buffer_load_dword {vRdy}, {vRdA}, {Sdbg}, 0 offen sc1"); a("s_add_u32 s63, s63, 1"); a("s_waitcnt vmcnt(0)")
    a(f"v_cmp_gt_u32 vcc, 16, {vRdy}"); a("s_cmp_lt_u32 s63, 0x40000"); a("s_cselect_b64 vcc, vcc, 0")
    a("s_cbranch_vccnz Lrdy_loop"); a("s_branch Lrdy_back")
    a("Lslow:"); a("s_waitcnt vmcnt(0) lgkmcnt(0)"); a("s_nop 7"); a("s_barrier")
    a("v_mbcnt_lo_u32_b32 v0, -1, 0"); a("v_mbcnt_hi_u32_b32 v0, -1, v0")
    a("v_and_b32 v1, 15, v0"); a("v_lshlrev_b32 v1, 8, v1"); a("v_lshrrev_b32 v2, 4, v0"); a("v_lshl_add_u32 v1, v2, 4, v1")
    a("s_lshl_b32 s52, s48, 17"); a("s_add_u32 s52, s52, 128"); a("s_lshl_b32 s53, s49, 6"); a("s_add_u32 s62, s52, s53")
    a("v_add_u32 v2, s62, v1"); a("s_xor_b32 s53, s53, 64"); a("s_add_u32 s62, s52, s53"); a("v_add_u32 v3, s62, v1")
    for b in range(5): a(f"v_mov_b32 v{8+b}, 0xff800000")
    a("s_mov_b32 s45, 0"); a("Lslow_loop:")
    for t in range(4): a(f"buffer_load_dwordx4 v[{16+4*t}:{19+4*t}], v{2+(t&1)}, {Sk}, s45 offen offset:{128*(t>>1)}")
    a("s_waitcnt vmcnt(0)")
    for b in range(5):
        for t in range(4):
            a(f"v_mfma_f32_16x16x32_bf16 {NM(b)}, v[{16+4*t}:{19+4*t}], {QF(b,t)}, {0 if t == 0 else NM(b)}")
    a("s_nop 7"); a("s_nop 1")
    for b in range(5):
        n = NM(b); a(f"v_max3_f32 v{8+b}, v{8+b}, {n[0]}, {n[1]}"); a(f"v_max3_f32 v{8+b}, v{8+b}, {n[2]}, {n[3]}")
    a("s_add_u32 s45, s45, 4096"); a("s_cmp_lt_u32 s45, 131072"); a("s_cbranch_scc1 Lslow_loop")
    for b in range(5): a(f"v_accvgpr_write_b32 {SAV(b)}, v{8+b}")
    a("s_load_dwordx16 s[4:19], s[0:1], 0"); a("s_mov_b32 s54, 1"); a("s_branch Lrestart"); a("Lcode_end:")
    return T

KD = """.amdhsa_kernel {name}
  .amdhsa_next_free_vgpr {vg}
  .amdhsa_next_free_sgpr {sg}
  .amdhsa_accum_offset {acc}
  .amdhsa_group_segment_fixed_size 0
  .amdhsa_kernarg_size 64
  .amdhsa_user_sgpr_count 2
  .amdhsa_user_sgpr_kernarg_segment_ptr 1
  .amdhsa_system_sgpr_workgroup_id_x 1
  .amdhsa_float_denorm_mode_32 3
.end_amdhsa_kernel"""

def generate(o):
    hdr = [l.rstrip("\n") for l in open(f"cdna_kernels/{NAME}.s.ref") if l.startswith(";") and "@launch" not in l and "grid=" not in l and "Override" not in l]
    seq, nst = build_main(o)
    L = hdr + [f"; @launch grid=(256,1,1) block=(256,1,1) lds={LDSB}", '.amdgcn_target "amdgcn-amd-amdhsa--gfx950"', ".text",
               f".globl {NAME}_kernel", ".p2align 8", f".type {NAME}_kernel,@function", f"{NAME}_kernel:"]
    L += [i.text for i in seq] + tail_and_slow(o, nst)
    L += ['.section .rodata,"a"', ".p2align 6", KD.format(name=f"{NAME}_kernel", vg=512, sg=102, acc=256)]
    txt = "\n".join(L) + "\n"
    if int(o.clk): txt = txt.replace("s_memrealtime", "s_memtime")
    return txt

if __name__ == "__main__":
    o = Opt()
    for kv in sys.argv[2:]:
        k, v_ = kv.split("=", 1)
        assert hasattr(Opt, k), k
        setattr(o, k, v_)
    open(sys.argv[1], "w").write(generate(o))
```

```python
import re

def R(kind, n, cnt=1):
    return [f"{kind}{n+i}" for i in range(cnt)]
def rs(kind, n, cnt=1):
    return f"{kind}{n}" if cnt == 1 else f"{kind}[{n}:{n+cnt-1}]"

class Reg:
    def __init__(s, kind, n, cnt=1): s.k, s.n, s.c = kind, n, cnt
    def __str__(s): return rs(s.k, s.n, s.c)
    def regs(s): return R(s.k, s.n, s.c)
    def sub(s, off, cnt=1):
        assert off + cnt <= s.c, (s, off, cnt)
        return Reg(s.k, s.n + off, cnt)
    def __getitem__(s, i): return s.sub(i, 1)
def V(n, c=1): return Reg('v', n, c)
def A(n, c=1): return Reg('a', n, c)
def S(n, c=1): return Reg('s', n, c)

class I:
    __slots__ = ("text", "kind", "rd", "wr", "cost", "lo", "hi", "q", "after", "tag", "placed", "hie", "srcc", "ab", "gap", "succ", "idx", "utag")
    def __init__(s, text, kind, rd=(), wr=(), cost=1, tag=None):
        s.text, s.kind, s.cost, s.tag = text, kind, cost, tag
        s.rd = dict(); s.wr = dict()
        for x in rd:
            r, t = x if isinstance(x, tuple) else (x, None)
            for n in r.regs(): s.rd[n] = t
        for x in wr:
            r, t = x if isinstance(x, tuple) else (x, None)
            for n in r.regs(): s.wr[n] = t
        s.lo = s.hi = None; s.q = None; s.after = []; s.placed = False
        s.srcc = set(); s.ab = set(); s.gap = None; s.succ = []; s.utag = None

def _r(x): return x[0] if isinstance(x, tuple) else x

def mfma(d, a, b, c):
    ctext = "0" if c == 0 else str(_r(c))
    i = I(f"v_mfma_f32_16x16x32_bf16 {_r(d)}, {_r(a)}, {_r(b)}, {ctext}", "mfma",
          rd=[a, b] + ([] if c == 0 else [c]), wr=[d], cost=0)
    i.ab = set(_r(a).regs()) | set(_r(b).regs())
    i.srcc = set() if c == 0 else set(_r(c).regs())
    return i
def valu(op, d, *src, extra="", kind="valu", cost=1, rmw=False):
    rd = [x for x in src if isinstance(_r(x), Reg)]
    txt = ", ".join(str(_r(x)) for x in (d,) + src)
    return I(f"{op} {txt}{(' ' + extra) if extra else ''}", kind, rd=rd, wr=[d], cost=cost)
def trans(op, d, s_): return valu(op, d, s_, kind="trans", cost=2)
def swap(op, a, b, ta=None, tb=None):
    return I(f"{op} {_r(a)}, {_r(b)}", "perm", rd=[a, b], wr=[(_r(a), ta), (_r(b), tb)], cost=2)
def salu(op, d, *src):
    rd = [x for x in src if isinstance(_r(x), Reg)]
    wr = [d] if isinstance(_r(d), Reg) else []
    i = I(f"{op} " + ", ".join(str(_r(x)) for x in (d,) + src), "salu", rd=rd, wr=wr)
    if d == "m0": i.wr["m0"] = None
    return i
def dsr(op, d, addr, off):
    assert 0 <= off < 65536, off
    return I(f"{op} {_r(d)}, {_r(addr)} offset:{off}", "dsr", rd=[addr], wr=[d])
def dsw(op, addr, data, off):
    assert 0 <= off < 65536, off
    return I(f"{op} {_r(addr)}, {_r(data)} offset:{off}", "dsw", rd=[addr, data], cost=2)
def dma(voff, srd, soff, off, flags, tag):
    assert 0 <= off < 4096
    i = I(f"buffer_load_dwordx4 {_r(voff)}, {srd}, {soff} offen offset:{off} {flags} lds".replace("  ", " "), "dma",
          rd=[voff, srd] + ([soff] if isinstance(soff, Reg) else []), tag=tag, cost=2)
    i.rd["m0"] = None
    return i
def vload(d, voff, srd, soff, off, flags="", tag=None, op="buffer_load_dwordx4"):
    assert 0 <= off < 4096
    return I(f"{op} {_r(d)}, {_r(voff)}, {srd}, {soff} offen offset:{off} {flags}".rstrip(), "vml",
             rd=[voff, srd] + ([soff] if isinstance(soff, Reg) else []), wr=[d], tag=tag)
def vstore(data, voff, srd, soff, off, flags="", tag=None, op="buffer_store_dwordx4"):
    assert 0 <= off < 4096
    return I(f"{op} {_r(data)}, {_r(voff)}, {srd}, {soff} offen offset:{off} {flags}".rstrip(), "vms",
             rd=[data, voff, srd] + ([soff] if isinstance(soff, Reg) else []), tag=tag, cost=2)
def waitvm(*tags):
    i = I("", "waitvm"); i.tag = set(tags); return i
def barrier(vm=(), lgkm=True):
    i = I("s_barrier", "bar", cost=2); i.tag = (set(vm), lgkm); return i
def raw(text, cost=1, rd=(), wr=(), kind="raw"): return I(text, kind, rd=rd, wr=wr, cost=cost)

class Sched:
    def __init__(s, cap=2, settle=7, vmgap=4, dswgap=2, maxmem=1, wiso=2, horizon=40):
        s.horizon = horizon
        s.maxmem = maxmem; s.wiso = wiso
        s.vmgap = vmgap; s.dswgap = dswgap
        s.bb = []; s.fill = []; s.cap = cap; s.settle = settle
        s.lastq = {}
    @property
    def n(s): return len(s.bb)
    def m(s, i): s.bb.append(i); return len(s.bb) - 1
    def f(s, i, lo, hi, q=None, after=()):
        i.lo, i.hi, i.q = lo, hi, q
        i.after = list(after)
        if q is not None:
            if q in s.lastq: i.after.append(s.lastq[q])
            s.lastq[q] = i
        i.idx = len(s.fill)
        s.fill.append(i); return i
    def run(s):
        for i in s.fill:
            i.hie = i.hi
        for i in s.fill:
            for p in i.after: p.succ.append(i)
        changed = True
        while changed:
            changed = False
            for i in reversed(s.fill):
                for p in i.after:
                    if p.hie > i.hie: p.hie = i.hie; changed = True
        for i in s.fill:
            assert i.lo <= i.hie, f"empty window lo={i.lo} hi={i.hi} hie={i.hie}: {i.text or i.kind}"
        out = []
        lg = []
        vm = []
        lastg = dict(vm=-99, dsw=-99, w128=-99)
        stats = dict(over=0, idle=0, waits=0)
        def need(i):
            touch = set(i.rd) | set(i.wr)
            a = b = -1
            for k, (p, _) in enumerate(lg):
                if touch & set(p.wr): a = k
            for k, (p, _) in enumerate(vm):
                if touch & set(p.wr): b = k
            if i.kind == "dsr":
                a2 = -1
                for k, (p, _) in enumerate(lg):
                    if set(i.rd) & set(p.wr): a2 = k
                a = a2
            if i.kind == "waitvm":
                for k, (p, _) in enumerate(vm):
                    if p.tag in i.tag or p.utag in i.tag: b = k
            if i.kind == "bar":
                for k, (p, _) in enumerate(vm):
                    if p.tag in i.tag[0]: b = k
                if "all0" in i.tag[0]: b = len(vm) - 1
                if i.tag[1]: a = len(lg) - 1
            return a, b
        bytag = {}
        for i in s.fill:
            if i.kind in ("dma", "vml", "vms"): bytag.setdefault(i.tag, []).append(i)
        def emit(i, g):
            if i.kind in ("waitvm", "bar"):
                for t in (i.tag if i.kind == "waitvm" else i.tag[0]):
                    if t in ("ct", "fl"): continue
                    assert all(x.placed for x in bytag.get(t, [])), f"wait on {t} at gap {g} before all its loads were issued"
            a, b = need(i)
            used = 0
            parts = []
            if b >= 0:
                n = min(len(vm) - 1 - b, 63); parts.append(f"vmcnt({n})"); del vm[:len(vm) - n]
            if a >= 0:
                while a + 1 < len(lg) and lg[a + 1][1] <= g - s.settle: a += 1
                n = min(len(lg) - 1 - a, 15); parts.append(f"lgkmcnt({n})"); del lg[:len(lg) - n]
            if parts:
                w = I("s_waitcnt " + " ".join(parts), "wait"); w.gap = g; out.append(w); stats["waits"] += 1
                used += 1
            if i.kind != "waitvm":
                i.gap = g; out.append(i); used += (1 if i.kind == "bar" else i.cost)
            if i.kind in ("dma", "vml", "vms"): lastg["vm"] = g
            if i.kind == "dsw": lastg["dsw"] = g
            if i.kind == "dsw" and "b128" in i.text: lastg["w128"] = g
            if i.kind in ("dsr", "dsw"): lg.append((i, g))
            if i.kind in ("dma", "vml", "vms"):
                vm.append((i, g)); assert len(vm) <= 63, "too many vm ops in flight"
            i.placed = True
            return used
        pend = sorted(s.fill, key=lambda i: (i.lo, i.idx))
        active = []; pi = 0
        byh = sorted(s.fill, key=lambda i: i.hie); hp = 0; credit = 0.0
        SC = ("salu", "waitvm", "raw")
        MEM = ("dsr", "dsw", "dma", "vml", "vms")
        def prewait(i, g):
            a, b = need(i)
            if (a, b) == (-1, -1): return 0
            d = I("", "waitvm"); d.tag = set(); d.rd = dict(i.rd); d.wr = dict(i.wr)
            return emit(d, g)
        for g in range(-1, len(s.bb)):
            while pi < len(pend) and pend[pi].lo <= g: active.append(pend[pi]); pi += 1
            cap = s.cap; shadow = 1; nmem = 0; nval = 0; lds = 0
            while hp < len(byh) and byh[hp].placed: hp += 1
            rate = mrate = cum = mcum = 0.0
            for c in byh[hp:]:
                if c.hie > g + s.horizon: break
                if c.placed: continue
                if c.kind not in SC: cum += c.cost + (3 if c.kind == "dsw" and "b128" in c.text else 0)
                if c.kind in MEM: mcum += 1
                rate = max(rate, cum / (c.hie - g + 1)); mrate = max(mrate, mcum / (c.hie - g + 1))
            extra_cap = 0
            if s.horizon and rate > s.cap:
                credit += rate - s.cap; extra_cap = int(credit); credit -= extra_cap
            else: credit = 0.0
            cap += extra_cap
            maxmem = s.maxmem + (1 if s.horizon and mrate > 1.0 else 0)
            tight = s.horizon and rate > 0.8 * s.cap
            nxt = s.bb[g + 1] if g + 1 < len(s.bb) else None
            if nxt is not None and g >= 0 and prewait(nxt, g): shadow = 0
            def ok(c):
                if c.kind in ("dma", "vml", "vms") and g - lastg["vm"] < s.vmgap: return False
                if c.kind == "dsw" and g - lastg["dsw"] < s.dswgap: return False
                if c.kind in ("dsr", "dsw") and g - lastg["w128"] <= s.wiso: return False
                if c.kind in MEM and (nval or nmem >= maxmem): return False
                return True
            while True:
                cand = [i for i in active if all(p.placed for p in i.after)]
                if not cand: break
                cand.sort(key=lambda i: (i.hie, i.idx))
                pick = None
                must = [c for c in cand if c.hie <= g]
                if shadow:
                    pick = next((c for c in cand if c.kind in SC and c.cost == 1), None)
                if pick is None and must:
                    pick = next((c for c in must if c.kind in MEM), must[0])
                    if pick.kind not in MEM and cap >= pick.cost + 1 and len(must) == 1 and pick.kind != "bar":
                        pick = next((c for c in cand if c.kind in MEM and c.cost == 1 and ok(c) and need(c) == (-1, -1)), pick)
                if pick is None:
                    fit = []
                    for c in cand:
                        if not ok(c): continue
                        extra = 0 if c.kind in ("bar", "waitvm") or need(c) == (-1, -1) or shadow else 1
                        if c.cost + extra <= cap: fit.append(c)
                    if not fit and tight and cap >= 1:
                        fit = [c for c in cand if ok(c) and c.cost == cap + 1 and c.kind in ("trans", "perm") and need(c) == (-1, -1)]
                    if fit:
                        pick = fit[0]
                        if pick.kind not in MEM and cap >= pick.cost + 1:
                            pick = next((c for c in fit if c.kind in MEM and c.cost == 1), pick)
                if pick is None: break
                n0 = len(out)
                used = emit(pick, g); active.remove(pick)
                if shadow and len(out) > n0:
                    if out[n0].kind in SC + ("wait", "bar"): used -= 1
                    shadow = 0
                cap -= used
                if pick.kind in MEM: nmem += 1
                if pick.kind in ("valu", "trans", "perm"): nval += 1
            for i in active: assert i.hie > g, f"missed deadline {i.text} hie={i.hie} g={g}"
            if 0 <= g < len(s.bb) - 1:
                cap -= extra_cap
                if cap < 0: stats["over"] += -cap
                else: stats["idle"] += cap
            if nxt is not None: emit(nxt, g + 1)
        assert not active and pi == len(pend)
        s.stats = stats; s.vm_left = [p for p, _ in vm]
        return out

def check_tags(seq):
    cur = {}
    for k, i in enumerate(seq):
        for r, t in i.rd.items():
            if t is not None and cur.get(r) != t:
                raise AssertionError(f"tag mismatch at #{k} gap {i.gap}: {i.text}: {r} expected {t} has {cur.get(r)}")
        for r, t in i.wr.items(): cur[r] = t

VALUK = ("valu", "trans", "perm")
def pad_hazards(seq):
    out = []; nops = 0
    def states(i):
        m = re.match(r"s_nop (\d+)", i.text)
        if m: return int(m.group(1)) + 1
        if i.kind == "label": return 0
        return 1
    for i in seq:
        req = 0; dist = 0
        rd, wr = set(i.rd), set(i.wr)
        for p in reversed(out):
            if dist >= 12: break
            pw = set(p.wr); need = 0
            if p.kind in VALUK:
                vw = {r for r in pw if r[0] in "va" and r != "vcc"}
                sw = {r for r in pw if r[0] == "s" or r == "vcc"}
                if i.kind == "mfma" and vw & rd: need = 2
                if i.kind == "perm" and vw & rd: need = 2
                if p.kind == "trans" and i.kind in ("valu", "perm") and vw & rd: need = max(need, 1)
                if "readfirstlane" in i.text and vw & rd: need = max(need, 1)
                if sw & rd:
                    if i.kind in ("dma", "vml", "vms"): need = max(need, 5)
                    if i.kind in VALUK: need = max(need, 2)
            if p.kind == "mfma":
                if i.kind == "mfma":
                    if pw & i.ab: need = 8
                    elif pw & i.srcc and pw != i.srcc: need = 6
                elif i.kind in VALUK or i.kind in ("dsr", "dsw", "vml", "vms", "dma"):
                    if pw & (rd | wr): need = 8
                if i.kind in VALUK and p.srcc & wr: need = max(need, 3)
            if p.kind == "salu" and "m0" in pw and i.kind == "dma": need = 1
            if p.kind in ("vms", "dsw") and i.kind in VALUK and set(p.rd) & wr: need = max(need, 2)
            req = max(req, need - dist)
            dist += states(p)
        if req > 0:
            n = I(f"s_nop {req-1}", "nop"); n.gap = i.gap; out.append(n); nops += req
        out.append(i)
    return out, nops
```

```python
import sys, math, struct
from dsl import *

NAME = "standalone__mha_block_cached__near_ridge"
US, GRP, PS = 17024, 4224, 1056
X9 = 9 * US
FLAG = X9 + 8448
LDSB = 163840
PART = 147456
STAMP_OFF = 0x4000000
MBOFF = 256 * PART
def fbits(x): return struct.unpack("<I", struct.pack("<f", x))[0]
CSC = fbits(math.log2(math.e) / math.sqrt(128.0))
THR = fbits(2.0 ** 40)

Smb, Sred, Sout, Sdbg = S(4, 4), S(8, 4), S(12, 4), S(16, 4)
Sx, Swq, Sk, Sv, Swo, Sws = S(20, 4), S(24, 4), S(28, 4), S(32, 4), S(36, 4), S(40, 4)
sW, sGrp, sOff, sC, sGrP, sHH, sQH, sB, sJ = S(3), S(44), S(45), S(46), S(47), S(48), S(49), S(50), S(51)
sT0, sT1, sMode, sX9, sT3, sOw0, sOw1, sA8, sB8, sSt, sT2, sAt = [S(n) for n in range(52, 64)]
sRx, sRw = S(96), S(97)
sP = lambda p: S(98 + p)
ACC = lambda b, f: V(32 * b + 4 * f, 4)
QF = lambda b, t: (V(128 + 16 * b + 4 * t, 4) if b < 4 else A(180 + 4 * t, 4))
SB = lambda k: V(192 + 8 * k, 8)
PB = lambda k: V((208, 212, 248)[k], 4)
NM = lambda b: V(216 + 4 * b, 4)
Kr = lambda y, p: V(236 + 2 * y + p)
Vr = lambda y, hf: V(240 + 2 * y + hf)
vKV = lambda pp: V(244 + pp)
vL16, vTs, vT0, vT1 = V(252), V(253), V(254), V(255)
qWr = lambda win, p: V(216 + 2 * win + p)
qXr = lambda win: V(220 + win)
qX9r = V(222)
qWd = lambda pp: V(225 + pp)
qXd = lambda pp: V(229 + pp)
qX9d, qA8, qB8 = V(233), V(234), V(235)
KF = lambda y, h, t: A(32 * y + 16 * h + 4 * t, 4)
VF = lambda e, y, d: A((96 if y else (64, 200)[e & 1]) + 4 * d, 4)
O9 = lambda d: A(128 + 4 * d, 4)
LS = lambda b: A(160 + 4 * b, 4)
ONES = A(196, 4)
SAV = lambda b: A(248 + b)
aWpat, aWo0 = A(253), A(254)
Aq = lambda fp, kk: A(96 + 8 * fp + 4 * kk, 4)
Bq = lambda I_, kk, b: A((128, 200)[I_ & 1] + 16 * kk + 4 * b, 4)
B9 = lambda I_, kk: A(232 + 8 * (I_ & 1) + 4 * kk, 4)
SEQ = [(I_, h) for I_ in range(6) for h in range(2)] + [(6, 0), (7, 0), (6, 1), (7, 1)]
WQU = {4: 1, 5: 4, 0: 5, 1: 3, 2: 6, 3: 8}
XU = {2: 0, 0: 2, 1: 7}
KVU = lambda slot: (2 * slot, 2 * slot + 1, 4 + 2 * slot, 5 + 2 * slot)
WOU = {0: (0, 1, 4, 5), 1: (2, 3, 0, 1), 2: (4, 5, 2, 3), 3: (0, 1, 6, 7)}
Ao = lambda p, ks, u: A(64 * (p & 1) + 32 * u + 4 * ks, 4)
QB = [0, 4, 1, 5, 2, 6, 3, 7, 8]
def Bo(qb, ks):
    if qb < 4: return V(32 * qb + 4 * ks, 4)
    if qb == 4: return A(232 + 4 * ks if ks < 6 else 192 + 4 * (ks - 6), 4)
    if qb == 6: return V(128 + 4 * ks, 4)
    return A({5: 200, 7: 160, 8: 128}[qb] + 4 * ks, 4)
TR, B128 = "ds_read_b64_tr_b16", "ds_read_b128"
sG, sGo = S(96), S(97)
vF, vOne, vRdy, vPo, vR, vRdA, vO, SEL = V(220), V(221), V(222), V(223), V(224, 3), V(227), V(228, 3), V(160, 8)

class Opt:
    stamps = 0; clk = 0; enc = None; xst = ""; qst = ""; abl = ""
    kvflag = "nt"; stflag = "sc1"; outflag = ""
    qseq = ("x0,n0,w0,w1|p1,x1,w2,w3,p4,x2,n1,w4,p9,w5,p3.6,x3,w6,w7,x4,n2,w8,w9,x5,w10,w11,x6,n3,w12,x7,w13,w14,w15,"
            "p2,s0,s1,c0,s2,p9.4,s3,k0,k1,k2,k3")
    asym = 0; tflag = ''; rot = 2; rsh = 1; cpf = 3
    ashift = 0; win = 5; winfrom = 2; astep = 10.4; astep4 = 10.4; astep5 = 10.4; wostep = 8; wo0a = 0; wo0o = 1; wostep2 = 3; wot = -1; drain = 1; ostep = 4
    vmgap = 2; dswgap = 4; maxmem = 1; wiso = 1; hor = 40; lead = 8; w64 = 0
    sepv = 3; bvo = 14; bv7 = 56; bk0 = 20; ba0 = 0; bao = 0; bbo = 20; bb7 = 14; ate = 2; swin = 0; rwin = 0; fl3 = 2; polli = 2; b1o = 14; bko = 11; bdo = 100; flo = 104; pollo = 36; wo1o = 70; ostep0 = 6; ostep1 = 4.5; ostep2 = 5; ostep3 = 10
    def __getattr__(s, k): raise AttributeError(k)

def setoff(soff):
    if isinstance(soff, tuple):
        r, add, mask = soff
        return [salu("s_add_u32", sOff, r, add)] + ([salu("s_and_b32", sOff, sOff, mask)] if mask else [])
    return [salu("s_mov_b32", sOff, soff)]
def group(unit_off, base, voff, srd, soff, flags, tag):
    return [salu("s_add_u32", "m0", base, unit_off)] + setoff(soff) + [dma(voff(pp), srd, sOff, PS * pp, flags, tag) for pp in range(4)]
def g_wq(j): return group(WQU[j % 6] * US, sGrp, qWd, Swq, (sRw, SEQ[j][0] * 524288 + SEQ[j][1] * 128, 0x3fffff), "", f"wq{j}")
def g_x(I_): return group(XU[I_ % 3] * US, sGrp, qXd, Sx, (sRx, I_ * 128, 1023), "", f"x{I_}")
def g_x9(n): return [salu("s_add_u32", "m0", sX9, X9 + (n & 1) * GRP)] + setoff((sRx, n * 256, 1023)) + [dma(qX9d, Sx, sOff, 0, "", f"xn{n}")]
def g_kv(e, part, o):
    kv, half = part >> 1, part & 1
    ops = group(KVU(e & 1)[part] * US, sGrp, vKV, (Sk, Sv)[kv], e * 16384 + half * 4096, o.kvflag, f"{'kv'[kv]}{e}")
    if int(o.win) and e >= int(o.winfrom):
        for x in ops:
            if x.kind == "dma": x.text = f"s_waitcnt vmcnt({int(o.win)-1})\n" + x.text
    return ops
def g_wo(p, hf): return sum((group(WOU[p][part] * US, sGrp, vKV, Swo, (sP(p), part * 65536, 0), "", f"wo{p}{'ab'[hf]}") for part in (2 * hf, 2 * hf + 1)), [])
def w128(o, addr, data, off):
    if not int(o.w64): return [dsw("ds_write_b128", addr, data, off)]
    return [dsw("ds_write_b64", addr, (data[0].sub(2 * z, 2), data[1]), off + 8 * z) for z in range(2)]

def qtok(tok, o):
    c, n = tok[0], int(tok[1:])
    if c == "w": return g_wq(n), n - 6
    if c == "x": return g_x(n), 2 * (n - 3)
    if c == "n": return g_x9(n), (4 * (n - 2) + 2 if n >= 2 else -1)
    if c == "c": return code_touch(V(254, 2), vTs, vL16, shift=3), -1
    if c == "s": return g_kv(0, n, o), (10, 10, 11, 12)[n]
    if c == "k": return g_kv(1, n, o), (12, 13, 14, 14)[n]
    raise ValueError(tok)

def code_touch(va, vd, lane, shift, tid=False):
    n = code_touch.n = getattr(code_touch, "n", 0) + 1
    return [valu("v_lshlrev_b32", va[0], shift, lane)] + ([] if tid else [salu("s_lshl_b32", sT0, sW, 13), valu("v_add_u32", va[0], sT0, va[0])]) + [
            raw(f"s_getpc_b64 s[52:53]\nLpc{n}:", wr=[sT0, sT1], kind="salu"),
            raw(f"v_min_u32 {va[0]}, Lcode_end-Lpc{n}-4, {va[0]}", rd=[va[0]], wr=[va[0]], kind="valu"),
            valu("v_mov_b32", va[1], 0),
            raw(f"v_lshl_add_u64 {va}, {va}, 0, s[52:53]", rd=[va, sT0, sT1], wr=[va], kind="valu"),
            I(f"global_load_dword {vd}, {va}, off", "vml", rd=[va], wr=[], tag="ct")]

def prologue(o):
    P = []; a = P.append
    v = lambda n: V(n)
    a(raw("s_cmp_ge_u32 s2, 256")); a(raw("s_cbranch_scc1 Lend"))
    a(raw("s_load_dwordx16 s[4:19], s[0:1], 0"))
    if int(o.stamps): a(raw("s_memrealtime s[64:65]"))
    a(valu("v_lshrrev_b32", v(1), 6, v(0)))
    if int(o.cpf): P += code_touch(V(8, 2), vTs, v(0), shift=int(o.cpf) + 3, tid=True)
    a(valu("v_readfirstlane_b32", sW, v(1)))
    a(valu("v_mov_b32", v(2), "0xff800000")); a(salu("s_mov_b32", sMode, 0))
    for b in range(5): a(valu("v_accvgpr_write_b32", SAV(b), v(2)))
    a(raw("Lrestart:", kind="label"))
    L, t1, t2, t3, t4, t5, t6 = v(0), v(1), v(2), v(3), v(4), v(5), v(6)
    a(valu("v_mbcnt_lo_u32_b32", L, -1, 0)); a(valu("v_mbcnt_hi_u32_b32", L, -1, L))
    a(salu("s_and_b32", sT0, S(2), 1)); a(salu("s_bfe_u32", sT1, S(2), (3 << 16) | 3)); a(salu("s_lshl3_add_u32", sB, sT0, sT1))
    a(salu("s_bfe_u32", sT0, S(2), (2 << 16) | 1)); a(salu("s_lshr_b32", sT1, S(2), 6)); a(salu("s_lshl2_add_u32", sJ, sT0, sT1))
    a(salu("s_lshr_b32", sHH, sW, 1)); a(salu("s_and_b32", sQH, sW, 1))
    a(salu("s_mul_i32", sGrp, sW, GRP)); a(salu("s_mul_i32", sX9, sW, PS))
    a(salu("s_add_u32", sT3, sB, sJ)); a(salu("s_lshl_b32", sT0, sT3, 0 if int(o.asym) else int(o.rsh))); a(salu("s_and_b32", sT0, sT0, int(o.rot)))
    a(salu("s_lshl_b32", sRx, sT0, 8)); a(salu("s_lshl_b32", sRw, sT0, 20))
    a(valu("v_and_b32", t1, 7, L)); a(valu("v_lshlrev_b32", t1, 4, t1))
    a(valu("v_lshrrev_b32", t2, 3, L)); a(valu("v_lshl_add_u32", t3, t2, 12, t1))
    a(salu("s_lshl_b32", sT0, sW, 15)); a(salu("s_add_u32", sT0, sT0, 128))
    a(valu("v_add_u32", qXd(0), sT0, t3))
    for pp in range(1, 4): a(valu("v_subrev_u32", qXd(pp), 32 * pp, qXd(0)))
    a(valu("v_and_b32", t4, 3, t2)); a(valu("v_lshl_add_u32", t3, t4, 12, t1))
    a(valu("v_lshrrev_b32", t2, 5, L)); a(valu("v_lshl_add_u32", t3, t2, 7, t3))
    a(salu("s_lshl_b32", sT0, sW, 10)); a(salu("s_add_u32", sT0, sT0, 128 * 1024 + 128))
    a(valu("v_add_u32", qX9d, sT0, t3))
    a(valu("v_lshl_add_u32", t3, t4, 16, t1)); a(valu("v_lshl_add_u32", t3, t2, 15, t3))
    a(salu("s_lshl_b32", sT0, sQH, 18)); a(salu("s_lshl_b32", sT1, sHH, 8)); a(salu("s_add_u32", sT0, sT0, sT1))
    a(valu("v_add_u32", qWd(0), sT0, t3))
    for pp in range(1, 4): a(valu("v_add_u32", qWd(pp), (8192 - PS) * pp, qWd(0)))
    a(salu("s_mov_b32", Sx[2], PART + 128)); a(salu("s_mov_b32", Sx[3], "0x20000")); a(salu("s_mov_b32", Swq[3], "0x20000"))
    a(salu("s_mul_i32", sT2, sB, PART)); a(salu("s_lshl_b32", sT1, sJ, 9)); a(salu("s_sub_u32", Swq[2], 4194304, sT1))
    a(raw("s_waitcnt lgkmcnt(0)"))
    def base(srd, ptr, off, shift=0, size=None):
        a(salu("s_add_u32", srd[0], S(ptr), off)); a(salu("s_addc_u32", srd[1], S(ptr + 1), 0))
        if shift:
            a(salu("s_sub_u32", srd[0], srd[0], shift)); a(salu("s_subb_u32", srd[1], srd[1], 0))
        if size: a(salu("s_mov_b32", srd[2], size + shift)); a(salu("s_mov_b32", srd[3], "0x20000"))
    base(Sx, 4, sT2, 128); base(Swq, 10, sT1)
    if int(o.asym):
        a(raw("s_bitcmp1_b32 s56, 0")); a(raw("s_cbranch_scc0 Lnotouch"))
        a(salu("s_and_b32", sT0, sB, 14)); a(salu("s_lshl4_add_u32", sT0, sT0, sJ)); a(salu("s_lshl_b32", sT0, sT0, 18))
        base(Sk, 6, sT0, 0, 4194304 + 262144)
        if int(o.asym) > 2: base(Sv, 8, sT0, 0, 4194304 + 262144)
        a(salu("s_lshl4_add_u32", sT0, sHH, sQH)); a(salu("s_lshl_b32", sT0, sT0, 13)); a(valu("v_lshl_add_u32", t3, L, 7, sT0))
        a(salu("s_mov_b32", sOff, 4194304))
        for n in range(int(o.asym)):
            if int(o.asym) == 3 and n == 2:
                a(valu("v_lshrrev_b32", t1, 5, L)); a(valu("v_mul_u32_u24", t1, 4194304 - 4096, t1)); a(valu("v_add_u32", t3, t3, t1))
            a(raw(f"buffer_load_dword {vTs}, {t3}, {(Sk, Sv)[n >> 1]}, {sOff if n & 1 else 0} offen {o.tflag}".rstrip(), rd=[t3], kind="vml"))
        a(raw("Lnotouch:", kind="label"))
    first = []
    for tok in o.qseq.split("|")[0].split(","): first += qtok(tok, o)[0]
    Q = []; a = Q.append
    a(salu("s_lshl4_add_u32", sT1, sB, sJ))
    a(salu("s_lshl_b32", sT0, sT1, 18)); base(Sk, 6, sT0, 128, 262144); base(Sv, 8, sT0, 128, 262144)
    a(salu("s_mul_i32", sT0, sT1, PART)); base(Sws, 18, sT0, 0, PART)
    a(salu("s_lshl_b32", sT0, sJ, 18)); base(Swo, 12, sT0, 128, 262144)
    base(Sout, 14, sT2, 0, PART)
    a(salu("s_lshl_b32", sT0, sT2, 4)); base(Sred, 18, sT0, 0, 16 * PART)
    a(salu("s_lshl_b32", sT0, sB, 15)); a(salu("s_add_u32", sT0, sT0, MBOFF)); base(Smb, 18, sT0, 0, 32768)
    a(salu("s_mov_b32", Sdbg[2], 256)); a(salu("s_mov_b32", Sdbg[3], "0x20000"))
    a(salu("s_mov_b32", sC, hex(CSC)))
    for p in range(4): a(salu("s_add_u32", sT0, sT3, p)); a(salu("s_and_b32", sT0, sT0, 3)); a(salu("s_lshl_b32", sP(p), sT0, 8))
    a(valu("v_and_b32", t1, 15, L)); a(valu("v_lshlrev_b32", t1, 4, t1))
    a(valu("v_lshrrev_b32", t5, 4, L))
    a(salu("s_add_u32", sT0, sW, sMode)); a(salu("s_lshl4_add_u32", sAt, sT0, sB)); a(salu("s_lshl_b32", sAt, sAt, 4))
    a(salu("s_lshl_b32", sT0, sMode, 6)); a(salu("s_add_u32", sT0, sT0, sW)); a(salu("s_lshl_b32", sT0, sT0, 9))
    a(valu("v_lshl_add_u32", t6, L, 3, sT0)); a(salu("s_lshl_b32", sOff, sJ, 11)); a(valu("v_mov_b64", V(8, 2), 0))
    a(vstore(V(8, 2), t6, Smb, sOff, 0, "sc1", tag="mbz", op="buffer_store_dwordx2"))
    a(valu("v_lshl_add_u32", t3, t5, 13, t1))
    a(salu("s_lshl_b32", sT0, sHH, 15)); a(salu("s_lshl_b32", sT1, sQH, 12)); a(salu("s_add_u32", sT0, sT0, sT1))
    a(salu("s_add_u32", sT0, sT0, 128)); a(valu("v_add_u32", t3, sT0, t3)); a(valu("v_accvgpr_write_b32", aWo0, t3))
    a(valu("v_lshlrev_b32", vL16, 4, L))
    a(salu("s_lshl_b32", sT0, sHH, 17)); a(salu("s_lshl_b32", sT1, sQH, 13)); a(salu("s_add_u32", sT0, sT0, sT1))
    a(salu("s_add_u32", sT0, sT0, 128)); a(valu("v_add_u32", vKV(0), sT0, vL16))
    for pp in range(1, 4): a(valu("v_subrev_u32", vKV(pp), 32 * pp, vKV(0)))
    a(salu("s_xor_b32", sT0, sW, 1)); a(salu("s_mul_i32", sGrP, sT0, GRP))
    a(salu("s_add_u32", sA8, sGrp, 8 * US)); a(salu("s_add_u32", sB8, sGrP, 8 * US))
    a(valu("v_add_u32", qA8, sA8, vL16)); a(valu("v_add_u32", qB8, sB8, vL16))
    a(valu("v_and_b32", t1, 3, L)); a(valu("v_mul_u32_u24", t1, PS, t1)); a(valu("v_lshl_add_u32", t1, t5, 4, t1))
    a(valu("v_bfe_u32", t3, L, 2, 2)); a(valu("v_lshl_add_u32", t3, t3, 7, t1))
    a(valu("v_add_u32", qX9r, X9, t3))
    a(salu("s_mul_i32", sT0, sQH, 2 * GRP)); a(valu("v_add_u32", qXr(0), sT0, t3))
    a(valu("v_add_u32", qXr(1), 7 * US, qXr(0)))
    a(valu("v_bfe_u32", t3, L, 2, 1)); a(valu("v_mul_u32_u24", t3, US, t3)); a(valu("v_add_u32", t1, t1, t3))
    a(valu("v_bfe_u32", t3, L, 3, 1)); a(valu("v_lshl_add_u32", t1, t3, 8, t1))
    a(salu("s_lshl_b32", sT0, sQH, 6)); a(salu("s_xor_b32", sT1, sT0, 64))
    a(valu("v_add_u32", t3, sT0, t1)); a(valu("v_add_u32", t6, sT1, t1))
    a(valu("v_add_u32", Kr(0, 0), sGrp, t3)); a(valu("v_add_u32", Kr(0, 1), sGrp, t6))
    a(valu("v_add_u32", Kr(1, 0), sGrP, t3)); a(valu("v_add_u32", Kr(1, 1), sGrP, t6))
    a(valu("v_bfe_u32", t1, L, 2, 2)); a(valu("v_mul_u32_u24", t1, PS, t1))
    a(valu("v_and_b32", t3, 1, L)); a(valu("v_lshl_add_u32", t6, t3, 4, t1))
    a(valu("v_bfe_u32", t3, L, 1, 1)); a(valu("v_lshl_add_u32", t6, t3, 3, t6))
    a(valu("v_lshl_add_u32", t3, t5, 7, t6))
    a(salu("s_mul_i32", sT2, sHH, 2 * GRP)); a(salu("s_add_u32", sT2, sT2, US)); a(valu("v_add_u32", t3, sT2, t3))
    a(valu("v_add_u32", qWr(0, 0), sT0, t3)); a(valu("v_add_u32", qWr(0, 1), sT1, t3))
    a(valu("v_add_u32", qWr(1, 0), 4 * US, qWr(0, 0))); a(valu("v_add_u32", qWr(1, 1), 4 * US, qWr(0, 1)))
    a(valu("v_and_b32", t4, 1, t5))
    a(valu("v_lshl_add_u32", t6, t2, 8, t6)); a(valu("v_mul_u32_u24", t3, GRP, t4)); a(valu("v_add_u32", t6, t6, t3))
    a(salu("s_lshl_b32", sT2, sW, 6)); a(valu("v_add_u32", t6, sT2, t6)); a(valu("v_accvgpr_write_b32", aWpat, t6))
    a(valu("v_lshl_add_u32", t1, t2, 8, t1)); a(valu("v_and_b32", t3, 3, L)); a(valu("v_lshl_add_u32", t1, t3, 3, t1))
    a(valu("v_mul_u32_u24", t3, US, t4)); a(valu("v_add_u32", t1, t1, t3)); a(valu("v_add_u32", t1, 4 * US, t1))
    a(salu("s_lshl_b32", sT0, sT0, 1)); a(salu("s_lshl_b32", sT1, sT1, 1))
    a(valu("v_add_u32", t3, sT0, t1)); a(valu("v_add_u32", t6, sT1, t1))
    a(valu("v_add_u32", Vr(0, 0), sGrp, t3)); a(valu("v_add_u32", Vr(0, 1), sGrp, t6))
    a(valu("v_add_u32", Vr(1, 0), sGrP, t3)); a(valu("v_add_u32", Vr(1, 1), sGrP, t6))
    a(salu("s_lshl1_add_u32", sT2, sQH, sHH)); a(salu("s_lshl_b32", sT2, sT2, 12)); a(salu("s_add_u32", sT2, sT2, 6 * US))
    a(salu("s_lshl4_add_u32", sOw0, sT0, sT2)); a(salu("s_lshl4_add_u32", sOw1, sT1, sT2))
    a(valu("v_mov_b32", t1, "0x3f803f80"))
    for r in range(4): a(valu("v_accvgpr_write_b32", (ONES[r], "ones"), t1))
    return P, first, Q

def build_main(o):
    P, first, Q = prologue(o)
    sc = Sched(vmgap=int(o.vmgap), dswgap=int(o.dswgap), maxmem=int(o.maxmem), wiso=int(o.wiso), horizon=int(o.hor))
    F = sc.f
    nstamp = [1]
    def stamp(g, after=()):
        if int(o.stamps):
            n = nstamp[0]; nstamp[0] += 1
            F(raw(f"s_memrealtime s[{64+2*n}:{65+2*n}]"), g, g, after=after)
    nextvm = [0]
    def spread(ops, lo, step, q="dma", after=(), cap=None):
        out = []; pos = max(lo, nextvm[0]); pend = []
        for x in ops:
            pend.append(x)
            if x.kind in ("dma", "vml", "vms"):
                a_, b_ = int(pos), int(pos + step)
                if cap is not None: a_, b_ = min(a_, cap), min(b_, cap)
                for y in pend[:-1]: out.append(F(y, max(min(lo, b_), min(a_ - 3, b_)), b_, q=q, after=after))
                out.append(F(x, a_, b_, q=q, after=after)); pend = []
                if x.tag not in ('at', 'ct'): pos += step
        assert not pend
        nextvm[0] = pos
        return out
    cur = {}; lastrd = {}; firstrd = {}; lastwr = {}
    def M(d, dtag, a_, b_, c):
        cc = (d, cur[str(d)]) if c == "acc" else c
        i = mfma((d, dtag), a_, b_, cc); n = sc.m(i); cur[str(d)] = dtag
        for r, t in i.rd.items():
            lastrd[(r, t)] = n; firstrd.setdefault((r, t), n)
        lastwr[str(d)] = n
        return n
    lr = lambda reg, tag: max(lastrd[(r, tag)] for r in reg.regs())
    fr_ = lambda reg, tag: min(firstrd[(r, tag)] for r in reg.regs())
    for i in first + Q: F(i, -1, -1, q="dma")
    k0 = {}; qdone = {}
    for j, (I_, hf) in enumerate(SEQ):
        k0[j] = sc.n
        if j < 15: order = [(fp, b) for fp in range(4) for b in range(5) if b < 4 or fp < 2]
        else: order = [(fp, 4) for fp in range(2)] + [(fp, b) for b in range(4) for fp in range(4)]
        for fp, b in order:
            d = ACC(b, 4 * hf + fp) if b < 4 else SB(hf).sub(4 * fp, 4)
            for kk in range(2):
                bb = (Bq(I_, kk, b) if b < 4 else B9(I_, kk), f"x{I_}")
                n = M(d, "Qacc" if (I_, kk) == (7, 1) else f"q{I_}.{kk}", (Aq(fp, kk), f"w{j}"), bb, 0 if (I_, kk) == (0, 0) else "acc")
            qdone[str(d)] = n
    k0[16] = sc.n
    units = []; U = {}; G = {}; pre0 = {}; preL = {}
    P7 = {0: PB(0), 1: PB(1), 8: PB(2), 2: NM(0), 3: NM(4), 4: NM(1), 5: NM(2)}
    def pre(b):
        pre0[b] = sc.n
        for t in range(4): preL[b] = M(NM(b), f"pm{b}", (KF(0, 0, t), "k0"), (QF(b, t), f"Q{b}"), 0 if t == 0 else "acc")
    def qk(e, u):
        n = len(units); b, y = (u >> 1, u & 1) if u < 8 else (4, 0)
        s_ = SB(n & 1); p_ = PB(u % 3) if e < 7 else P7.get(u, s_.sub(0, 4))
        un = dict(e=e, u=u, b=b, y=y, S=s_, P=p_, n=n, q0=sc.n, hl=[0, 0])
        for h in range(2):
            for t in range(4):
                un["hl"][h] = M(s_.sub(4 * h, 4), f"s{n}", (KF(y, h, t), f"k{e}"), (QF(b, t), f"Q{b}"), (NM(b), f"nm{b}") if t == 0 else "acc")
        units.append(un); U[(e, u)] = un
    def pv(e, b, ds=range(-1, 8)):
        us = [U[(e, 2 * b)], U[(e, 2 * b + 1)]] if b < 4 else [U[(e, 8)]]
        g = G.setdefault((e, b), dict(p0=sc.n))
        for d in ds:
            acc = LS(b) if d < 0 else (ACC(b, d) if b < 4 else O9(d))
            for k, un in enumerate(us):
                a_ = (ONES, "ones") if d < 0 else (VF(e, un["y"], d), f"v{e}")
                g["pL"] = M(acc, f"o{e}.{k}" if k + 1 < len(us) else f"o{e}", a_, (un["P"], f"p{un['n']}"), 0 if e == 0 and k == 0 else "acc")
        for un in us: un["g"] = g
    st0 = {}
    for e in range(8):
        st0[e] = sc.n
        if e == 0: pre(0); pre(1)
        qk(e, 0); qk(e, 1)
        if e: pv(e - 1, 4)
        if e < 7:
            for b in range(1, 4):
                if e == 0: pre(b + 1)
                qk(e, 2 * b); qk(e, 2 * b + 1); pv(e, b - 1)
            qk(e, 8); pv(e, 3)
        else:
            for u in (8, 2, 3, 4, 5, 6, 7): qk(e, u)
            for b in (4, 0, 1, 2): pv(e, b, [-1])
            pv(e, 4, range(8)); pv(e, 3, [-1])
            for b in range(4): pv(e, b, range(8))
    attn_end = sc.n - 1
    odone = dict(lastwr)
    ou0 = {}; ouh = {}
    for p in range(4):
        for k, qb in enumerate(QB):
            n = 9 * p + k; ou0[n] = sc.n
            for u in range(2):
                for ks in range(8):
                    ouh[(n, u)] = M(SB(n & 1).sub(4 * u, 4), f"r{n}", (Ao(p, ks, u), f"wo{p}"), (Bo(qb, ks), f"of{qb}"), 0 if ks == 0 else "acc")
    last = sc.n - 1
    ou0[36] = ou0[37] = last + 1
    def rdA(j, fp):
        u = WQU[j % 6]; win = 0 if u <= 4 else 1
        return [dsr(TR, (Aq(fp, kk).sub(2 * h, 2), f"w{j}"), qWr(win, fp >> 1), (u - 1 - 4 * win) * US + kk * GRP + 512 * h + 32 * (fp & 1))
                for kk in range(2) for h in range(2)]
    def rdB(I_):
        u = XU[I_ % 3]; win = 1 if u == 7 else 0
        l = [dsr(B128, (Bq(I_, kk, b), f"x{I_}"), qXr(win), (u - 7 * win) * US + (b >> 1) * GRP + (b & 1) * 512 + kk * 64)
             for b in range(4) for kk in range(2)]
        return l + [dsr(B128, (B9(I_, kk), f"x{I_}"), qX9r, ((I_ >> 1) & 1) * GRP + (I_ & 1) * 512 + kk * 64) for kk in range(2)]
    bpre = F(barrier(vm=("x0", "xn0", "wq0")), -1, -1, q="dma")
    stamp(-1, [bpre])
    l = rdB(0)
    prev = [F(x, -1, -1, q="lds", after=[bpre]) for x in rdA(0, 0) + l[:6]]
    prev += [F(x, -1, 7, q="lds", after=[bpre]) for x in l[6:] + rdA(0, 1) + rdA(0, 2) + rdA(0, 3)]
    BQ = {}
    for j in range(16):
        g = k0[j] + (14 if j == 0 else 9)
        nI = SEQ[j + 1][0] if j < 15 and SEQ[j + 1][1] == 0 else None
        vm = []
        if j < 15: vm.append(f"wq{j+1}")
        if nI is not None: vm += [f"x{nI}", f"xn{nI//2}"]
        if j == 10: vm = ["wq15", "all0"]
        bq = BQ[j] = F(barrier(vm=vm), g, g, after=prev)
        if o.qst and j in eval(o.qst): stamp(g, [bq])
        prev = []
        if j < 15:
            for fp in range(4):
                for x, kk in zip(rdA(j + 1, fp), (0, 0, 1, 1)):
                    lo = max(lr(Aq(fp, kk), f"w{j}"), g)
                    prev.append(F(x, lo, max(min(fr_(Aq(fp, kk), f"w{j+1}") - 6, k0[j + 1] + 3), lo), q="ldsA", after=[bq]))
        if nI is not None:
            for n, x in enumerate(rdB(nI)): prev.append(F(x, g, min(k0[j + 1] - 7 + n, k0[j + 1] + 2), q="ldsB", after=[bq]))
    step = 3.0; seen = set(o.qseq.split("|")[0].split(","))
    for tok in o.qseq.split("|")[1].split(","):
        if tok[0] == "@": nextvm[0] = max(nextvm[0], int(float(tok[1:]) * 36)); continue
        if tok[0] == "+": nextvm[0] += int(tok[1:]); continue
        if tok[0] == "p": step = float(tok[1:]); continue
        seen.add(tok)
        ops, dep = qtok(tok, o)
        spread(ops, BQ[dep].lo if dep >= 0 else 0, step, after=[BQ[dep]] if dep >= 0 else [])
    assert len([t for t in seen if t[0] != "c"]) == 16 + 8 + 4 + 4 + 4, sorted(seen)
    stamp(k0[15])
    if o.xst:
        for g_ in eval(o.xst): stamp(g_)
    def pack_q(src, dst, tdst, hi):
        lo = min(max(qdone[str(src.sub(0, 4))], qdone[str(src.sub(4, 4))]) + 3, hi)
        ops = [valu("v_mul_f32", (src[m], "t"), sC, (src[m], "Qacc")) for m in range(8)]
        ops += [valu("v_cvt_pk_bf16_f32", (dst[m], "t2"), (src[2 * m], "t"), (src[2 * m + 1], "t")) for m in (0, 2, 1, 3)]
        ops += [swap("v_permlane32_swap_b32", (dst[m], "t2"), (dst[m + 2], "t2"), tdst, tdst) for m in range(2)]
        return [F(x, lo, hi, q="qe") for x in ops]
    q9w = []
    for hf in range(2):
        l = pack_q(SB(hf), PB(hf), "q9p", pre0[0] - 2)
        q9w.append(F(dsw("ds_write_b128", qA8, (PB(hf), "q9p"), 1024 * hf), BQ[15].lo, U[(0, 0)]["q0"] - 1, q="q9w", after=[l[-1], BQ[15]]))
        for t, b in ([(t, b) for t in (0, 1) for b in range(4)] if hf == 0 else [(t, b) for b in range(4) for t in (2, 3)]):
            pack_q(V(32 * b + 8 * t, 8), QF(b, t), f"Q{b}", pre0[b] - 1 + t)
    for b in range(5):
        n = NM(b); pm = f"pm{b}"; nm = f"nm{b}"; hi = fr_(n, nm) - 1
        ops = [valu("v_accvgpr_read_b32", vT1, SAV(b)),
               valu("v_max3_f32", n[0], (n[0], pm), (n[1], pm), vT1), valu("v_max3_f32", n[0], n[0], (n[2], pm), (n[3], pm)),
               valu("v_mov_b32", n[1], n[0]), swap("v_permlane32_swap_b32", n[0], n[1]), valu("v_max_f32", n[0], n[0], n[1]),
               valu("v_mov_b32", n[1], n[0]), swap("v_permlane16_swap_b32", n[0], n[1]),
               I(f"v_min_f32_e64 {n[0]}, -{n[0]}, -{n[1]}", "valu", rd=[n[0], n[1]], wr=[(n[0], nm)]),
               valu("v_mov_b32", (n[1], nm), (n[0], nm)), valu("v_mov_b64", (n.sub(2, 2), nm), (n.sub(0, 2), nm))]
        for x in ops: F(x, min(preL[b] + 3, hi), hi, q="nm")
    def rdK(e, y, lo, after, hi=10**9):
        out = []
        for h in range(2):
            for t in range(4):
                r = KF(y, h, t); l_ = max(lo, lr(r, f"k{e-1}")) if e else lo
                x = dsr(B128, (r, f"k{e}"), Kr(y, t & 1), (e & 1) * 2 * US + 512 * h + 128 * (t >> 1))
                out.append(F(x, l_, max(l_, min(fr_(r, f"k{e}") - 6, hi)), q=f"ldsK{y}", after=after))
        return out
    def rdV(e, y, lo, after, hi):
        out = []
        for d in range(8):
            r = VF(e, y, d); l_ = max(lo, lr(r, f"v{e-1}")) if e and y else lo
            for h in range(2):
                x = dsr(TR, (r.sub(2 * h, 2), f"v{e}"), Vr(y, d >> 2), (e & 1) * 2 * US + 512 * h + 32 * (d & 3))
                out.append(F(x, l_, max(l_, min(fr_(r, f"v{e}") - 6, hi)), q=f"ldsV{y}", after=after))
        return out
    BB = {}; wo0 = g_wo(0, 0) + g_wo(0, 1)
    for e in range(8):
        if e == 0:
            g = k0[16] - int(o.bk0)
            bk = F(barrier(vm=["k0"], lgkm=False), g, g, after=[BQ[15]])
            gv = pre0[2] - 1 + int(o.ba0)
            bv = F(barrier(vm=["v0"]), gv, gv, after=q9w + [bk])
            for t in range(4):
                F(dsr(B128, (QF(4, t), "Q4"), qB8 if t & 1 else qA8, 1024 * (t >> 1)), gv, pre0[4] - 6, q="ldsQ9", after=[bv])
        else:
            g = U[(e - 1, 8)]["q0"] - 1 - int(o.bao)
            sep = e == 7 or e >= int(o.sepv)
            bk = F(barrier(vm=[f"k{e}"] + ([] if sep else [f"v{e}"]), lgkm=False), g, g, after=[BB[e - 1]])
            bv, gv = bk, g
            if sep and e < 7:
                gv = st0[e] + int(o.bvo)
                bv = F(barrier(vm=[f"v{e}"], lgkm=False), gv, gv, after=[bk])
            if e == 7:
                gv = G[(7, 4)]["p0"] - 1 - int(o.bv7)
                bv = F(barrier(vm=["v7"], lgkm=False), gv, gv, after=[bk])
                stamp(gv, [bv])
        gb = G[(e, 0)]["p0"] + int(o.bbo) if e < 7 else G[(7, 4)]["p0"] + int(o.bb7)
        rk = rdK(e, 0, g, [bk]) + rdK(e, 1, g, [bk])
        rv = rdV(e, 0, gv, [bv], gb - 5) + rdV(e, 1, gv, [bv], gb - 5)
        bb = BB[e] = F(barrier(), gb, gb, after=rk + rv)
        if e in (0, 3, 6): stamp(gb, [bb])
        ops = []
        if e < 6:
            for part in range(4): ops += g_kv(e + 2, part, o)
        if e == int(o.ate):
            ops += [valu("v_lshl_add_u32", vT0, vL16, 4, sAt), valu("v_mov_b32", vT1, 1),
                    vstore(vT1, vT0, Sdbg, 0, 0, "", tag="at", op="buffer_atomic_add")]
        if e == 3 and int(o.cpf): ops += code_touch(V(254, 2), vTs, vL16, shift=3)
        if e == int(o.wot):
            ops += [salu("s_and_b32", sT0, sB, 7), salu("s_lshl2_add_u32", sT0, sT0, sW), salu("s_lshl_b32", sT0, sT0, 13), salu("s_add_u32", sT0, sT0, 128),
                    valu("v_lshl_add_u32", vT0, vL16, 3, sT0), I(f"buffer_load_dword {vTs}, {vT0}, {Swo}, 0 offen", "vml", rd=[vT0], tag="ct")]
        nwo = len(wo0) // 4 * int(o.wo0a)
        wset = [valu("v_accvgpr_read_b32", vKV(0), aWo0)] + [valu("v_subrev_u32", vKV(pp), 32 * pp, vKV(0)) for pp in (1, 2, 3)]
        if e == 6:
            early = wset + wo0[:nwo] if nwo else []; done = 0; per = -(-4 * int(o.wo0a) // int(o.win))
            for n in range(int(o.win) - 1, -1, -1):
                g_ = int(nextvm[0])
                if int(o.drain): F(raw(f"s_waitcnt vmcnt({n + done})"), g_, g_ + 2, q="dma")
                idx = [k for k, x in enumerate(early) if x.kind == "dma"][:per]
                if idx:
                    spread(early[:idx[-1] + 1], g_ + 1, (float(o.astep) - 2) / per, after=[bb]); early = early[idx[-1] + 1:]; done += len(idx)
                nextvm[0] = g_ + float(o.astep)
            assert not early
        if e == 7: spread(([] if nwo else wset) + wo0[nwo:], gv + int(o.wo0o), float(o.wostep2), after=[bv] if int(o.wo0o) >= 0 else [BB[6]])
        if e == 7:
            bv.after += rk; assert max(fr_(KF(y, h, t), "k7") for y in range(2) for h in range(2) for t in range(4)) <= gv
            spread(g_wo(1, 0), gv + int(o.wo1o), float(o.ostep0), after=[bv])
        spread(ops, gb + (int(o.ashift) if e < 6 else 0), float({4: o.astep4, 5: o.astep5, 6: o.wostep}.get(e, o.astep)), after=[bb])
    vA8, vLMw, vOw, vW, vB8, vLMr = Kr(0, 0), Kr(0, 1), (Kr(1, 0), Kr(1, 1)), (Vr(0, 0), Vr(0, 1)), Vr(1, 0), Vr(1, 1)
    vBr, vFl, vSt, vO9 = (PB(2)[0], PB(2)[1]), vLMw, vLMr, vB8
    g = U[(7, 8)]["q0"]; p7 = G[(7, 4)]["p0"]
    adr = [valu("v_bfe_u32", vLMw, vL16, 1, 7), valu("v_add_u32", vLMw, sA8, vLMw), dsw("ds_write_b32", vLMw, (NM(4)[0], "nm4"), 4096 + 4),
           valu("v_add_u32", vA8, sA8, vL16), valu("v_add_u32", vOw[0], sOw0, vL16), valu("v_add_u32", vOw[1], sOw1, vL16)]
    adr = [F(x, g, g + 12, q="adr", after=rk) for x in adr]
    BB[7].after.append(F(dsw("ds_write_b32", vLMw, (LS(4)[0], "o7"), 4096), p7 + 4, BB[7].lo - 2, q="adr"))
    adr2 = [valu("v_bfe_u32", vLMr, vL16, 1, 7), valu("v_add_u32", vLMr, sB8, vLMr),
            valu("v_accvgpr_read_b32", vW[0], aWpat), valu("v_add_u32", vW[1], 4 * US, vW[0]), valu("v_add_u32", vB8, sB8, vL16)]
    adr2 = [F(x, p7, BB[7].lo + 8, q="adr", after=rv) for x in adr2]
    lastP = {}
    for un in units:
        n, s_, p_ = un["n"], un["S"], un["P"]
        nx = units[n + 2]["q0"] if n + 2 < len(units) else 10**9
        pfree = -1; aft = []
        if str(p_) in lastP: pfree = lastP[str(p_)]["g"]["pL"]
        for b in range(5):
            if str(p_) == str(NM(b)): pfree = lr(p_, f"nm{b}") + 1
        if str(p_) == str(NM(4)): aft = [adr[2]]
        if n < 2: aft = q9w
        lastP[str(p_)] = un
        ex = []
        for j in range(8):
            hi = min(nx - 1 + 4 * (j >> 2), un["g"]["p0"] - 1); lo = min(un["hl"][j >> 2] + 3, hi)
            ex.append(F(trans("v_exp_f32", (s_[j], f"e{n}"), (s_[j], f"s{n}")), lo, max(lo, hi - 1), q="exp"))
        for m in range(4):
            hi = min(nx - 1 + 4 * (m >> 1), un["g"]["p0"] - 1)
            F(valu("v_cvt_pk_bf16_f32", (p_[m], f"p{n}"), (s_[2 * m], f"e{n}"), (s_[2 * m + 1], f"e{n}")),
              max(ex[2 * m + 1].lo, pfree), hi, q="cvt", after=[ex[2 * m + 1]] + aft)
    def rdAo(p, kss=range(8)):
        return [dsr(TR, (Ao(p, ks, u).sub(2 * h, 2), f"wo{p}"), vW[WOU[p][ks >> 1] >> 2],
                    (WOU[p][ks >> 1] & 3) * US + (ks & 1) * 2 * GRP + 512 * h + 32 * u)
                for u in range(2) for ks in kss for h in range(2)]
    gB = [attn_end - int(o.b1o)] + [ou0[2 * k] - int(o.bko) for k in range(1, 5)]
    pub = [[] for _ in range(5)]
    lm = NM(3)
    mr = [dsr("ds_read_b64", lm.sub(0, 2), vLMw, 4096), dsr("ds_read_b64", lm.sub(2, 2), vLMr, 4096)]
    mr = [F(x, BB[7].lo, BB[7].lo + 10, q="lm", after=[BB[7], adr2[1]]) for x in mr]
    ops = [valu("v_add_u32", vBr[1], 6 * US, vL16),
           salu("s_lshl_b32", sT0, sW, 2), valu("v_add_u32", vFl, sT0, vBr[1]), salu("s_lshl_b32", sT0, sW, 10), valu("v_add_u32", vSt, sT0, vL16),
           valu("v_sub_f32", lm[1], lm[1], lm[3]), trans("v_exp_f32", lm[1], lm[1]), valu("v_accvgpr_read_b32", vTs, (LS(0)[0], "o7")),
           valu("v_fma_f32", lm[0], lm[2], lm[1], lm[0]), trans("v_rcp_f32", lm[2], lm[0]),
           valu("v_add_f32", vTs, vTs, lm[0]), valu("v_mul_f32", lm[1], lm[1], lm[2])]
    for b in (1, 2, 3): ops += [valu("v_accvgpr_read_b32", lm[3], (LS(b)[0], "o7")), valu("v_add_f32", vTs, vTs, lm[3])]
    ops.append(dsw("ds_write_b32", vFl, vTs, FLAG - 6 * US))
    lsum = [F(x, max(BB[7].lo + 4, G[(7, 4)]["pL"], odone[str(LS(3))] + 4), gB[0] - 4, q="lm") for x in ops]
    pub[0] += lsum
    raww = [F(x, G[(7, 4)]["pL"] + 4, gB[0] - 4, q="ow", after=[adr[-1]]) for d in range(4) for x in w128(o, vA8, (O9(4 + d), "o7"), 1024 * d)]
    pub[0] += raww
    def norm_block(b):
        a32 = V(32 * b, 32); hi = gB[b] - 4
        ops = [valu("v_accvgpr_read_b32", vT1, (LS(b)[0], "o7")), trans("v_rcp_f32", vT0, vT1)]
        for x in ops: F(x, odone[str(LS(b))] + 4, hi, q="ep")
        for k in range(4):
            ops = [valu("v_mul_f32", (a32[8 * k + m], "n"), (a32[8 * k + m], "o7"), vT0) for m in range(8)]
            ops += [valu("v_cvt_pk_bf16_f32", (a32[8 * k + m], "of"), (a32[8 * k + 2 * m], "n"), (a32[8 * k + 2 * m + 1], "n")) for m in range(4)]
            lo = odone[str(ACC(b, 2 * k + 1))] + 3; hk = max(lo, hi - 4 * (3 - k))
            for x in ops: x = F(x, lo, hk, q="ep")
            for y in w128(o, vOw[k >> 1], (a32.sub(8 * k, 4), "of"), (b & 1) * US + (k & 1) * 1024):
                pub[b].append(F(y, max(lo, gB[b - 1]) if b >= 2 else lo, hk, q="ow", after=[x, BP[b - 1] if b >= 2 else BB[7]]))
    BP = [barrier(vm=v_) for v_ in (["wo0a", "wo0b"], ["wo1a"], [], ["wo1b"], [])]
    for b in range(4): norm_block(b)
    F(BP[0], gB[0], gB[0], after=pub[0])
    stamp(attn_end)
    rdA0 = []
    for x in rdAo(0):
        r = next(iter(x.wr)); rdA0.append(F(x, gB[0], max(gB[0], firstrd[(r, "wo0")] - int(o.lead)), q="ldsK0", after=[adr2[-1], BP[0]]))
    fl = NM(0)
    fr = F(dsr(B128, fl, vBr[1], FLAG - 6 * US), gB[0], gB[0] + 1, q="ldsB", after=[BP[0]])
    chk = [valu("v_add_f32", fl[0], fl[0], fl[1]), valu("v_add_f32", fl[2], fl[2], fl[3]), valu("v_add_f32", fl[0], fl[0], fl[2]),
           raw(f"v_cmp_nge_f32 vcc, {hex(THR)}, {fl[0]}", rd=[fl[0]], kind="valu"),
           raw(f"s_cmp_eq_u32 s54, {77 if o.abl else 0}\ns_cselect_b64 vcc, vcc, 0\ns_cbranch_vccnz Lslow", cost=2, kind="br")]
    chk = [F(x, gB[0] + 7, gB[0] + 14, q="fl", after=[fr]) for x in chk]
    rcv = [V(168 + 4 * d, 4) for d in range(4)]
    mr = [F(dsr(B128, (rcv[d], "rcv"), vB8, 1024 * d), gB[2], gB[3] - 6, q="lm", after=[chk[-1]]) for d in range(4)]
    for x in (salu("s_lshl_b32", sT0, sW, 11), valu("v_add_u32", vO9, sT0, vBr[1])): a9 = F(x, gB[2], gB[4] - 12, q="fl", after=mr)
    for k in range(2):
        ops = []
        for d in (2 * k, 2 * k + 1):
            for m in range(4):
                t = (vT1, lm[3])[m & 1]
                ops += [valu("v_accvgpr_read_b32", t, (O9(d)[m], "o7")), valu("v_mul_f32", (rcv[d][m], "rs"), (rcv[d][m], "rcv"), lm[1]),
                        valu("v_fma_f32", (rcv[d][m], "n"), t, lm[2], (rcv[d][m], "rs"))]
        for m in range(4):
            src = rcv[2 * k + (m >> 1)]
            ops.append(valu("v_cvt_pk_bf16_f32", (rcv[2 * k][m], "of"), (src[2 * (m & 1)], "n"), (src[2 * (m & 1) + 1], "n")))
        for x in ops: x = F(x, gB[2], gB[4] - 8 + 4 * k, q="ep", after=mr + [lsum[-1]])
        for y in w128(o, vO9, (rcv[2 * k], "of"), 3 * US + 1024 * k): pub[4].append(F(y, gB[2], gB[4] - 8 + 4 * k, q="ow", after=[x, a9]))
    def rdBo(qb, ks):
        if qb < 8: return dsr(B128, (Bo(qb, ks), f"of{qb}"), vBr[1], (qb & 1) * US + (qb >> 2) * 8192 + 1024 * ks)
        return dsr(B128, (Bo(qb, ks), f"of{qb}"), vBr[1], 3 * US + 1024 * ks)
    rdp = rdA0
    for k in range(5):
        if k: F(BP[k], gB[k], gB[k], after=pub[k] + [BP[k - 1]] + rdp); rdp = []
        for n in (2 * k, 2 * k + 1)[:2 if k < 4 else 1]:
            for ks in range(8):
                late = QB[n] >= 5 or (QB[n] == 4 and ks >= 6)
                hi = max(gB[k] + ks // 2, ou0[n] - int(o.lead) + ks)
                if k < 4: hi = min(hi, gB[k + 1] - 3)
                rdp.append(F(rdBo(QB[n], ks), gB[k], hi, q="ldsB", after=[BP[k]] + ([chk[-1]] if late else [])))
        if k in (1, 3): rdp += [F(x, gB[k], gB[k + 1] - 3, q="ldsK0", after=[BP[k]]) for x in rdAo(1, range(2 * k - 2, 2 * k + 2))]
    spread(g_wo(1, 1) + g_wo(2, 0), gB[1] + 1, float(o.ostep1), after=[BP[1]])
    spread(g_wo(2, 1), gB[2] + 1, float(o.ostep2), after=[BP[2]])
    spread(g_wo(3, 0) + g_wo(3, 1), gB[4] + 1, float(o.ostep3), after=[BP[4]])
    gd = {p: ou0[9 * p] + int(o.bdo) for p in range(4)}
    bd = BP[4]
    for p in (1, 2):
        bd = F(barrier(vm=[f"wo{p+1}a", f"wo{p+1}b"], lgkm=False), gd[p], gd[p], after=[bd])
        for n, x in enumerate(rdAo(p + 1)): F(x, gd[p], ou0[9 * p + 9] - 8 + n // 2, q="ldsK0", after=[bd])
    for n in range(36):
        s_, p_ = SB(n & 1), PB(n & 1)
        for m in range(4):
            lo = min(ouh[(n, m >> 1)] + (8 if n > 8 else 4), last)
            x = F(valu("v_cvt_pk_bf16_f32", (p_[m], f"rp{n}"), (s_[2 * m], f"r{n}"), (s_[2 * m + 1], f"r{n}")), lo, min(lo + 6, last), q="st")
        ops = ([salu("s_mul_i32", sT3, sP(n // 9), 144)] if n % 9 == 0 else []) + [salu("s_add_u32", sSt, sT3, 4096 * QB[n % 9]),
               vstore((p_, f"rp{n}"), vSt, Sws, sSt, 0, o.stflag, tag=f"st{n//9}")]
        sw = int(str(o.swin).split(",")[n // 9 % len(str(o.swin).split(","))])
        if sw and n >= sw:
            ops.insert(len(ops) - 1, waitvm(f"su{n - sw}"))
        ops[-1].utag = f"su{n}"
        for x in ops: F(x, lo, min(lo + 8, last), q="st", after=[chk[-1]])
    t = V(168, 4)
    ops = [salu("s_lshl_b32", sT1, sB, 4), valu("v_mov_b32", vRdA, sT1),
           vload(vRdy, vRdA, Sdbg, 0, 0, "sc1", tag="rdy", op="buffer_load_dword"),
           salu("s_lshl4_add_u32", sT0, sW, sJ), salu("s_lshl_b32", sT0, sT0, 7),
           valu("v_lshrrev_b32", vF, 9, vL16), valu("v_lshl_add_u32", vF, vF, 15, sT0), valu("v_lshrrev_b32", vOne, 2, vL16),
           valu("v_add_u32", vF, vF, vOne), valu("v_mov_b32", vOne, 1)]
    gf = {p: ou0[9 * p + 9] + int(o.flo) for p in range(3)}
    for x in ops: F(x, gB[4], ou0[10], q="fl")
    ops = [raw(f"v_cmp_gt_u32 vcc, 16, {vRdy}", rd=[vRdy], kind="valu"), raw("s_cbranch_vccnz Lrdy_spin\nLrdy_back:", kind="br")]
    for p in range(3):
        ops = [waitvm(f"st{p}")] + ops + [salu("s_lshl_b32", sT0, sP(p), 5), vstore(vOne, vF, Smb, sT0, 0, "sc1", tag="fl", op="buffer_store_dword")]
        for x in ops: F(x, gf[p], gf[p] + 2, q="fl")
        ops = []
        if p == 0:
            su = [
               valu("v_bfe_u32", vPo, vL16, 4, 2), valu("v_lshrrev_b32", t[0], 8, vL16),
               salu("s_lshl_b32", sT0, sJ, 11), valu("v_lshl_add_u32", vPo, vPo, 9, sT0),
               salu("s_lshr_b32", sG, sJ, 2), salu("s_sub_u32", sG, sG, sB), salu("s_and_b32", sGo, sG, 3), salu("s_lshl_b32", sGo, sGo, 7),
               salu("s_lshr_b32", sT0, sJ, 2), salu("s_mul_i32", sT0, sT0, 9), salu("s_add_u32", sT0, sT0, sW),
               salu("s_and_b32", sT1, sJ, 3), salu("s_lshl2_add_u32", sT0, sT0, sT1), salu("s_lshl_b32", sT0, sT0, 10),
               valu("v_add_u32", vR[0], sT0, vL16), valu("v_add_u32", vR[1], 16384, vR[0]),
               salu("s_lshl_b32", sT1, sW, 28), salu("s_add_u32", sT0, sT1, 32768), valu("v_add_u32", vR[2], sT0, vR[0]),
               valu("v_bfe_u32", t[1], vL16, 4, 4), valu("v_lshlrev_b32", vO[0], 10, t[1]), valu("v_lshl_add_u32", vO[0], t[0], 4, vO[0]),
               salu("s_lshl_b32", sT0, sW, 14), salu("s_lshl_b32", sT2, sJ, 6), salu("s_add_u32", sT0, sT0, sT2),
               valu("v_add_u32", vO[0], sT0, vO[0]), valu("v_add_u32", vO[1], 65536, vO[0]),
               salu("s_add_u32", sT0, sT1, 131072), valu("v_add_u32", vO[2], sT0, vO[0]),
               valu("v_and_b32", t[2], 1, t[1]), valu("v_lshlrev_b32", t[2], 4, t[2]), valu("v_mov_b32", t[3], "0x3f80"),
               valu("v_lshlrev_b32", t[2], t[2], t[3]),
               valu("v_bfe_u32", t[3], t[1], 2, 1), valu("v_xor_b32", t[3], t[3], t[0]),
               valu("v_and_b32", t[0], 1, t[3]), valu("v_lshlrev_b32", t[0], 3, t[0]),
               valu("v_lshrrev_b32", t[3], 1, t[3]), valu("v_lshl_add_u32", t[0], t[3], 2, t[0]),
               valu("v_lshrrev_b32", t[3], 3, t[1]), valu("v_lshl_add_u32", t[0], t[3], 1, t[0]),
               valu("v_bfe_u32", t[3], t[1], 1, 1), valu("v_add_u32", t[0], t[0], t[3]),
               valu("v_lshlrev_b32_e64", t[0], t[0], 1)]
            for m in range(8): su += [valu("v_bfe_i32", SEL[m], t[0], m, 1), valu("v_and_b32", SEL[m], SEL[m], t[2])]
            for x in su: F(x, ou0[18], gf[1] - 1, q="fl")
    g = last - int(o.pollo)
    F(vload(vRdy, vPo, Smb, sGo, 0, "sc1", tag="poll", op="buffer_load_dword"), g, g + 2, q="fl")
    F(waitvm("poll"), last, last, q="st")
    seq = sc.run()
    if "a" in o.abl: seq = [x for x in seq if not (x.gap > 100 and x.kind in ("dma", "vml"))]
    if "s" in o.abl: seq = [x for x in seq if not (x.kind == "vms" and x.tag.startswith("st"))]
    if "w" in o.abl: seq = [x for x in seq if not (x.kind == "dma" and x.tag[:3] == "wo0")]
    if "d" in o.abl: seq = [x for x in seq if not (x.kind == "dsw" and x.gap > 1700)]
    if "o" in o.abl: seq = [x for x in seq if not (x.kind == "dma" and x.tag[:3] in ("wo1", "wo2", "wo3"))]
    seq = P + seq
    if not o.abl: check_tags(seq)
    seq, nops = pad_hazards(seq)
    sys.stderr.write(f"mfma {len(sc.bb)} instrs {len(seq)} over {sc.stats['over']} idle {sc.stats['idle']} waits {sc.stats['waits']} nop-states {nops}\n")
    return seq, nstamp[0]

def reduce_tail(o, a, nst):
    acc = lambda f, u: V(8 * f + 4 * u, 4)
    buf = lambda t, i, f: A(48 * t + 12 * i + 4 * f, 4)
    poll = f"buffer_load_dword {vRdy}, {vPo}, {Smb}, {sGo} offen sc1"
    a(f"s_lshl_b32 s61, {sP(3)}, 5"); a("s_mov_b32 s63, 0")
    if int(o.stamps): a(f"s_memrealtime s[{64+2*nst}:{65+2*nst}]")
    def mf(t):
        for f in range(3):
            for u in range(2):
                for i in range(4):
                    a(f"v_mfma_f32_16x16x32_bf16 {acc(f,u)}, {SEL.sub(4*u,4)}, {buf(t,i,f)}, {0 if t == 0 and i == 0 else acc(f,u)}")
    pa = int(o.polli)
    for t in range(4):
        a(f"s_mul_i32 s45, {sGo}, {PART // 128}")
        if t: a(f"s_waitcnt vmcnt({12 - 3 * pa})")
        a(f"Lpoll{t}:"); a(f"v_cmp_eq_u32 vcc, 0, {vRdy}"); a(f"s_cbranch_vccz Lgo{t}")
        a(poll); a("s_add_u32 s63, s63, 1"); a("s_waitcnt vmcnt(0)"); a("s_cmp_lt_u32 s63, 0x40000"); a(f"s_cbranch_scc1 Lpoll{t}")
        a(f"Lgo{t}:")
        a(f"s_sub_u32 {sGo}, {sGo}, 128"); a(f"s_and_b32 {sGo}, {sGo}, 0x180")
        for i in range(4):
            if i == int(o.fl3) and t == 0:
                a(f"s_waitcnt vmcnt({3*i})"); a(f"buffer_store_dword {vOne}, {vF}, {Smb}, s61 offen sc1")
            if i == pa and t < 3: a(poll)
            for f in range(3):
                rw = int(str(o.rwin).split(",")[t % len(str(o.rwin).split(","))])
                if rw: a(f"s_waitcnt vmcnt({rw-1})")
                a(f"buffer_load_dwordx4 {buf(t,i,f)}, {vR[f]}, {Sred}, s45 offen sc1")
            if i < 3: a(f"s_add_u32 s45, s45, {4*PART}")
        if t:
            a(f"s_waitcnt vmcnt({13 if t < 3 else 12})"); mf(t - 1)
    assert int(o.fl3) <= pa
    for i in range(4):
        a(f"s_waitcnt vmcnt({9-3*i})")
        for f in range(3):
            for u in range(2): a(f"v_mfma_f32_16x16x32_bf16 {acc(f,u)}, {SEL.sub(4*u,4)}, {buf(3,i,f)}, {acc(f,u)}")
    a("s_nop 3")
    for f in range(3):
        if f: a("s_nop 1")
        for m in range(4): a(f"v_cvt_pk_bf16_f32 v{32+4*f+m}, v{8*f+2*m}, v{8*f+2*m+1}")
        a(f"buffer_store_dwordx4 v[{32+4*f}:{35+4*f}], {vO[f]}, {Sout}, 0 offen {o.outflag}".rstrip())

def tail_and_slow(o, nst):
    T = []; a = T.append
    reduce_tail(o, a, nst); nst += 1
    if int(o.stamps):
        a(f"s_memrealtime s[{64+2*nst}:{65+2*nst}]"); a("s_waitcnt vmcnt(0)")
        a(f"s_memrealtime s[{66+2*nst}:{67+2*nst}]"); a("s_waitcnt lgkmcnt(0)")
        a("s_cmp_lg_u32 s3, 0"); a("s_cbranch_scc1 Lend")
        if o.enc:
            ea, eb = [int(z) for z in o.enc.split(",")]
            a("s_cmp_lg_u32 s2, 100"); a("s_cbranch_scc1 Lnoenc")
            a(f"s_sub_u32 s52, s{64+2*eb}, s{64+2*ea}"); a("s_mul_i32 s52, s52, 10"); a("s_min_u32 s52, s52, 200000"); a("s_add_u32 s52, s52, 500")
            a("Lspin:"); a("s_memrealtime s[46:47]"); a("s_waitcnt lgkmcnt(0)"); a(f"s_sub_u32 s46, s46, s{66+2*nst}")
            a("s_cmp_lt_u32 s46, s52"); a("s_cbranch_scc1 Lspin"); a("Lnoenc:")
        a("s_load_dwordx2 s[40:41], s[0:1], 56"); a("s_mov_b32 s42, 0x10000000"); a("s_mov_b32 s43, 0x20000"); a("s_waitcnt lgkmcnt(0)")
        a(f"s_lshl_b32 s52, s2, 6"); a(f"s_add_u32 s52, s52, {STAMP_OFF}"); a("v_mov_b32 v1, s52")
        a("s_mov_b64 exec, 1")
        assert nst + 2 <= 16
        for n in range(nst + 2):
            a(f"v_mov_b32 v2, s{64+2*n}"); a(f"buffer_store_dword v2, v1, s[40:43], 0 offen offset:{4*n}")
    a("Lend:"); a("s_endpgm")
    a("Lrdy_spin:"); a("s_mov_b32 s63, 0"); a("Lrdy_loop:")
    a(f"buffer_load_dword {vRdy}, {vRdA}, {Sdbg}, 0 offen sc1"); a("s_add_u32 s63, s63, 1"); a("s_waitcnt vmcnt(0)")
    a(f"v_cmp_gt_u32 vcc, 16, {vRdy}"); a("s_cmp_lt_u32 s63, 0x40000"); a("s_cselect_b64 vcc, vcc, 0")
    a("s_cbranch_vccnz Lrdy_loop"); a("s_branch Lrdy_back")
    a("Lslow:"); a("s_waitcnt vmcnt(0) lgkmcnt(0)"); a("s_nop 7"); a("s_barrier")
    a("v_mbcnt_lo_u32_b32 v0, -1, 0"); a("v_mbcnt_hi_u32_b32 v0, -1, v0")
    a("v_and_b32 v1, 15, v0"); a("v_lshlrev_b32 v1, 8, v1"); a("v_lshrrev_b32 v2, 4, v0"); a("v_lshl_add_u32 v1, v2, 4, v1")
    a("s_lshl_b32 s52, s48, 17"); a("s_add_u32 s52, s52, 128"); a("s_lshl_b32 s53, s49, 6"); a("s_add_u32 s62, s52, s53")
    a("v_add_u32 v2, s62, v1"); a("s_xor_b32 s53, s53, 64"); a("s_add_u32 s62, s52, s53"); a("v_add_u32 v3, s62, v1")
    for b in range(5): a(f"v_mov_b32 v{8+b}, 0xff800000")
    a("s_mov_b32 s45, 0"); a("Lslow_loop:")
    for t in range(4): a(f"buffer_load_dwordx4 v[{16+4*t}:{19+4*t}], v{2+(t&1)}, {Sk}, s45 offen offset:{128*(t>>1)}")
    a("s_waitcnt vmcnt(0)")
    for b in range(5):
        for t in range(4):
            a(f"v_mfma_f32_16x16x32_bf16 {NM(b)}, v[{16+4*t}:{19+4*t}], {QF(b,t)}, {0 if t == 0 else NM(b)}")
    a("s_nop 7"); a("s_nop 1")
    for b in range(5):
        n = NM(b); a(f"v_max3_f32 v{8+b}, v{8+b}, {n[0]}, {n[1]}"); a(f"v_max3_f32 v{8+b}, v{8+b}, {n[2]}, {n[3]}")
    a("s_add_u32 s45, s45, 4096"); a("s_cmp_lt_u32 s45, 131072"); a("s_cbranch_scc1 Lslow_loop")
    for b in range(5): a(f"v_accvgpr_write_b32 {SAV(b)}, v{8+b}")
    a("s_load_dwordx16 s[4:19], s[0:1], 0"); a("s_mov_b32 s54, 1"); a("s_branch Lrestart"); a("Lcode_end:")
    return T

KD = """.amdhsa_kernel {name}
  .amdhsa_next_free_vgpr {vg}
  .amdhsa_next_free_sgpr {sg}
  .amdhsa_accum_offset {acc}
  .amdhsa_group_segment_fixed_size 0
  .amdhsa_kernarg_size 64
  .amdhsa_user_sgpr_count 2
  .amdhsa_user_sgpr_kernarg_segment_ptr 1
  .amdhsa_system_sgpr_workgroup_id_x 1
  .amdhsa_float_denorm_mode_32 3
.end_amdhsa_kernel"""

def generate(o):
    hdr = [l.rstrip("\n") for l in open(f"cdna_kernels/{NAME}.s.ref") if l.startswith(";") and "@launch" not in l and "grid=" not in l and "Override" not in l]
    seq, nst = build_main(o)
    L = hdr + [f"; @launch grid=(256,1,1) block=(256,1,1) lds={LDSB}", '.amdgcn_target "amdgcn-amd-amdhsa--gfx950"', ".text",
               f".globl {NAME}_kernel", ".p2align 8", f".type {NAME}_kernel,@function", f"{NAME}_kernel:"]
    L += [i.text for i in seq] + tail_and_slow(o, nst)
    L += ['.section .rodata,"a"', ".p2align 6", KD.format(name=f"{NAME}_kernel", vg=512, sg=102, acc=256)]
    txt = "\n".join(L) + "\n"
    if int(o.clk): txt = txt.replace("s_memrealtime", "s_memtime")
    return txt

if __name__ == "__main__":
    o = Opt()
    for kv in sys.argv[2:]:
        k, v_ = kv.split("=", 1)
        assert hasattr(Opt, k), k
        setattr(o, k, v_)
    open(sys.argv[1], "w").write(generate(o))
```

```python
import sys, math, struct
from dsl import *

NAME = "standalone__mha_block_cached__near_ridge"
US, GRP, PS = 17024, 4224, 1056
X9 = 9 * US
FLAG = X9 + 8448
LDSB = 163840
PART = 147456
STAMP_OFF = 0x4000000
MBOFF = 256 * PART
def fbits(x): return struct.unpack("<I", struct.pack("<f", x))[0]
CSC = fbits(math.log2(math.e) / math.sqrt(128.0))
THR = fbits(2.0 ** 40)

Smb, Sred, Sout, Sdbg = S(4, 4), S(8, 4), S(12, 4), S(16, 4)
Sx, Swq, Sk, Sv, Swo, Sws = S(20, 4), S(24, 4), S(28, 4), S(32, 4), S(36, 4), S(40, 4)
sW, sGrp, sOff, sC, sGrP, sHH, sQH, sB, sJ = S(3), S(44), S(45), S(46), S(47), S(48), S(49), S(50), S(51)
sT0, sT1, sMode, sX9, sT3, sOw0, sOw1, sA8, sB8, sSt, sT2, sAt = [S(n) for n in range(52, 64)]
sRx, sRw = S(96), S(97)
sRk = S(47)
sP = lambda p: S(98 + p)
ACC = lambda b, f: V(32 * b + 4 * f, 4)
QF = lambda b, t: (V(128 + 16 * b + 4 * t, 4) if b < 4 else A(180 + 4 * t, 4))
SB = lambda k: V(192 + 8 * k, 8)
PB = lambda k: V((208, 212, 248)[k], 4)
NM = lambda b: V(216 + 4 * b, 4)
Kr = lambda y, p: V(236 + 2 * y + p)
Vr = lambda y, hf: V(240 + 2 * y + hf)
vKV = lambda pp: V(244 + pp)
vL16, vTs, vT0, vT1 = V(252), V(253), V(254), V(255)
qWr = lambda win, p: V(216 + 2 * win + p)
qXr = lambda win: V(220 + win)
qX9r = V(222)
qWd = lambda pp: V(225 + pp)
qXd = lambda pp: V(229 + pp)
qX9d, qA8, qB8 = V(233), V(234), V(235)
KF = lambda y, h, t: A(32 * y + 16 * h + 4 * t, 4)
VF = lambda e, y, d: A((96 if y else (64, 200)[e & 1]) + 4 * d, 4)
O9 = lambda d: A(128 + 4 * d, 4)
LS = lambda b: A(160 + 4 * b, 4)
ONES = A(196, 4)
SAV = lambda b: A(248 + b)
aWpat, aWo0 = A(253), A(254)
Aq = lambda fp, kk: A(96 + 8 * fp + 4 * kk, 4)
Bq = lambda I_, kk, b: A((128, 200)[I_ & 1] + 16 * kk + 4 * b, 4)
B9 = lambda I_, kk: A(232 + 8 * (I_ & 1) + 4 * kk, 4)
SEQ = [(I_, h) for I_ in range(6) for h in range(2)] + [(6, 0), (7, 0), (6, 1), (7, 1)]
WQU = {4: 1, 5: 4, 0: 5, 1: 3, 2: 6, 3: 8}
XU = {2: 0, 0: 2, 1: 7}
KVU = lambda slot: (2 * slot, 2 * slot + 1, 4 + 2 * slot, 5 + 2 * slot)
WOU = {0: (0, 1, 4, 5), 1: (2, 3, 0, 1), 2: (4, 5, 2, 3), 3: (0, 1, 6, 7)}
Ao = lambda p, ks, u: A(64 * (p & 1) + 32 * u + 4 * ks, 4)
QB = [0, 4, 1, 5, 2, 6, 3, 7, 8]
def Bo(qb, ks):
    if qb < 4: return V(32 * qb + 4 * ks, 4)
    if qb == 4: return A(232 + 4 * ks if ks < 6 else 192 + 4 * (ks - 6), 4)
    if qb == 6: return V(128 + 4 * ks, 4)
    return A({5: 200, 7: 160, 8: 128}[qb] + 4 * ks, 4)
TR, B128 = "ds_read_b64_tr_b16", "ds_read_b128"
sG, sGo = S(96), S(97)
vF, vOne, vRdy, vPo, vR, vRdA, vO, SEL = V(220), V(221), V(222), V(223), V(224, 3), V(227), V(228, 3), V(160, 8)

class Opt:
    stamps = 0; clk = 0; enc = None; xst = ""; qst = ""; abl = ""
    kvflag = "nt"; stflag = "sc1"; outflag = ""
    qseq = ("x0,n0,w0,w1|p1,x1,w2,w3,p4,x2,n1,w4,p9,w5,p3.6,x3,w6,w7,t2,x4,n2,w8,w9,x5,w10,w11,x6,n3,w12,x7,w13,w14,w15,"
            "p2,s0,s1,c0,s2,p6,s3,k0,k1,p9,k2,k3")
    bal = '(8,14)'; winlo = 4; winhi = 6; hx = 'h'; asym = 0; lpf = 0; tflag = ''; rot = 2; rsh = 1; cpf = 3
    ashift = 0; win = 5; winfrom = 2; astep0 = 10.4; astep = 10.4; astep4 = 10.4; astep5 = 10.4; wostep = 8; wo0a = 0; wo0o = 1; wostep2 = 3; wot = -1; drain = 1; ostep = 4
    vmgap = 2; dswgap = 4; maxmem = 1; wiso = 1; hor = 40; lead = 8; w64 = 0
    sepv = 3; bvo = 14; bv7 = 56; bk0 = 20; ba0 = 0; bb0 = 0; bao = 0; bbo = 20; bb7 = 14; ate = 2; swin = 0; rwin = 0; fl3 = 2; polli = 2; b1o = 14; bko = 11; bdo = 100; flo = 104; pollo = 36; wo1o = 70; ostep0 = 6; ostep1 = 4.5; ostep2 = 5; ostep3 = 10
    def __getattr__(s, k): raise AttributeError(k)

def setoff(soff):
    if isinstance(soff, tuple):
        r, add, mask = soff
        if mask == "x": return [salu("s_xor_b32", sOff, r, add)]
        return [salu("s_add_u32", sOff, r, add)] + ([salu("s_and_b32", sOff, sOff, mask)] if mask else [])
    return [salu("s_mov_b32", sOff, soff)]
def group(unit_off, base, voff, srd, soff, flags, tag):
    return [salu("s_add_u32", "m0", base, unit_off)] + setoff(soff) + [dma(voff(pp), srd, sOff, PS * pp, flags, tag) for pp in range(4)]
def g_wq(j): return group(WQU[j % 6] * US, sGrp, qWd, Swq, (sRw, SEQ[j][0] * 524288 + SEQ[j][1] * 128, 0x3fffff), "", f"wq{j}")
def g_x(I_): return group(XU[I_ % 3] * US, sGrp, qXd, Sx, (sRx, I_ * 128, 1023), "", f"x{I_}")
def g_x9(n): return [salu("s_add_u32", "m0", sX9, X9 + (n & 1) * GRP)] + setoff((sRx, n * 256, 1023)) + [dma(qX9d, Sx, sOff, 0, "", f"xn{n}")]
def g_kv(e, part, o):
    kv, half = part >> 1, part & 1
    ops = group(KVU(e & 1)[part] * US, sGrp, vKV, (Sk, Sv)[kv], (sRk, e * 16384 + half * 4096, "x"), o.kvflag, f"{'kv'[kv]}{e}")
    if int(o.win) and e >= int(o.winfrom):
        for x in ops:
            if x.kind != "dma": continue
            if 4 * e + part in range(*eval(o.bal)):
                g_kv.n = getattr(g_kv, "n", 0) + 1
                x.text = f"s_cbranch_vccz Lw{g_kv.n}\ns_waitcnt vmcnt({int(o.winlo)-1})\nLw{g_kv.n}:\ns_waitcnt vmcnt({int(o.winhi)-1})\n" + x.text
            else: x.text = f"s_waitcnt vmcnt({int(o.win)-1})\n" + x.text
    return ops
def g_wo(p, hf): return sum((group(WOU[p][part] * US, sGrp, vKV, Swo, (sP(p), part * 65536, 0), "", f"wo{p}{'ab'[hf]}") for part in (2 * hf, 2 * hf + 1)), [])
def w128(o, addr, data, off):
    if not int(o.w64): return [dsw("ds_write_b128", addr, data, off)]
    return [dsw("ds_write_b64", addr, (data[0].sub(2 * z, 2), data[1]), off + 8 * z) for z in range(2)]

def qtok(tok, o):
    c, n = tok[0], int(tok[1:])
    if c == "w": return g_wq(n), n - 6
    if c == "x": return g_x(n), 2 * (n - 3)
    if c == "n": return g_x9(n), (4 * (n - 2) + 2 if n >= 2 else -1)
    if c == "c": return code_touch(V(254, 2), vTs, vL16, shift=3), -1
    if c == "t":
        ops = [salu("s_bfe_u32", sT0, sB, (1 << 16) | 1), salu("s_lshl_b32", sT0, sT0, 24),
               valu("v_mul_u32_u24", vT0, 7, vL16), valu("v_add3_u32", vT0, vT0, vKV(0), sT0)] + (setoff(16384) if n > 2 else [])
        return ops + [I(f"buffer_load_dword {vTs}, {vT0}, {(Sk, Sv)[z & 1]}, {sOff if z >> 1 else 0} offen", "vml", rd=[vT0, sOff], tag="ct") for z in range(n)], -1
    if c == "s": return g_kv(0, n, o), (10, 10, 11, 12)[n]
    if c == "k": return g_kv(1, n, o), (12, 13, 14, 14)[n]
    raise ValueError(tok)

def code_touch(va, vd, lane, shift, tid=False):
    n = code_touch.n = getattr(code_touch, "n", 0) + 1
    return [valu("v_lshlrev_b32", va[0], shift, lane)] + ([] if tid else [salu("s_lshl_b32", sT0, sW, 13), valu("v_add_u32", va[0], sT0, va[0])]) + [
            raw(f"s_getpc_b64 s[52:53]\nLpc{n}:", wr=[sT0, sT1], kind="salu"),
            raw(f"v_min_u32 {va[0]}, Lcode_end-Lpc{n}-4, {va[0]}", rd=[va[0]], wr=[va[0]], kind="valu"),
            valu("v_mov_b32", va[1], 0),
            raw(f"v_lshl_add_u64 {va}, {va}, 0, s[52:53]", rd=[va, sT0, sT1], wr=[va], kind="valu"),
            I(f"global_load_dword {vd}, {va}, off", "vml", rd=[va], wr=[], tag="ct")]

def prologue(o):
    P = []; a = P.append
    v = lambda n: V(n)
    a(raw("s_cmp_ge_u32 s2, 256")); a(raw("s_cbranch_scc1 Lend"))
    a(raw("s_load_dwordx16 s[4:19], s[0:1], 0"))
    if int(o.stamps): a(raw("s_memrealtime s[64:65]"))
    a(valu("v_lshrrev_b32", v(1), 6, v(0)))
    if int(o.cpf): P += code_touch(V(8, 2), vTs, v(0), shift=int(o.cpf) + 3, tid=True)
    a(valu("v_readfirstlane_b32", sW, v(1)))
    a(valu("v_mov_b32", v(2), "0xff800000")); a(salu("s_mov_b32", sMode, 0))
    for b in range(5): a(valu("v_accvgpr_write_b32", SAV(b), v(2)))
    a(raw("Lrestart:", kind="label"))
    L, t1, t2, t3, t4, t5, t6 = v(0), v(1), v(2), v(3), v(4), v(5), v(6)
    a(valu("v_mbcnt_lo_u32_b32", L, -1, 0)); a(valu("v_mbcnt_hi_u32_b32", L, -1, L))
    a(salu("s_and_b32", sT0, S(2), 1)); a(salu("s_bfe_u32", sT1, S(2), (3 << 16) | 3)); a(salu("s_lshl3_add_u32", sB, sT0, sT1))
    a(salu("s_bfe_u32", sT0, S(2), (2 << 16) | 1)); a(salu("s_lshr_b32", sT1, S(2), 6)); a(salu("s_lshl2_add_u32", sJ, sT0, sT1))
    a(salu("s_lshr_b32", sHH, sW, 1)); a(salu("s_and_b32", sQH, sW, 1))
    a(salu("s_mul_i32", sGrp, sW, GRP)); a(salu("s_mul_i32", sX9, sW, PS))
    a(salu("s_add_u32", sT3, sB, sJ)); a(salu("s_lshl_b32", sT0, sT3, 0 if int(o.asym) else int(o.rsh))); a(salu("s_and_b32", sT0, sT0, int(o.rot)))
    a(salu("s_lshl_b32", sRx, sT0, 8)); a(salu("s_lshl_b32", sRw, sT0, 20))
    a(valu("v_and_b32", t1, 7, L)); a(valu("v_lshlrev_b32", t1, 4, t1))
    a(valu("v_lshrrev_b32", t2, 3, L)); a(valu("v_lshl_add_u32", t3, t2, 12, t1))
    a(salu("s_lshl_b32", sT0, sW, 15)); a(salu("s_add_u32", sT0, sT0, 128))
    a(valu("v_add_u32", qXd(0), sT0, t3))
    for pp in range(1, 4): a(valu("v_subrev_u32", qXd(pp), 32 * pp, qXd(0)))
    a(valu("v_and_b32", t4, 3, t2)); a(valu("v_lshl_add_u32", t3, t4, 12, t1))
    a(valu("v_lshrrev_b32", t2, 5, L)); a(valu("v_lshl_add_u32", t3, t2, 7, t3))
    a(salu("s_lshl_b32", sT0, sW, 10)); a(salu("s_add_u32", sT0, sT0, 128 * 1024 + 128))
    a(valu("v_add_u32", qX9d, sT0, t3))
    a(valu("v_lshl_add_u32", t3, t4, 16, t1)); a(valu("v_lshl_add_u32", t3, t2, 15, t3))
    a(salu("s_lshl_b32", sT0, sQH, 18)); a(salu("s_lshl_b32", sT1, sHH, 8)); a(salu("s_add_u32", sT0, sT0, sT1))
    a(valu("v_add_u32", qWd(0), sT0, t3))
    for pp in range(1, 4): a(valu("v_add_u32", qWd(pp), (8192 - PS) * pp, qWd(0)))
    a(salu("s_mov_b32", Sx[2], PART + 128)); a(salu("s_mov_b32", Sx[3], "0x20000")); a(salu("s_mov_b32", Swq[3], "0x20000"))
    a(salu("s_mul_i32", sT2, sB, PART)); a(salu("s_lshl_b32", sT1, sJ, 9)); a(salu("s_sub_u32", Swq[2], 4194304, sT1))
    a(raw("s_waitcnt lgkmcnt(0)"))
    def base(srd, ptr, off, shift=0, size=None):
        a(salu("s_add_u32", srd[0], S(ptr), off)); a(salu("s_addc_u32", srd[1], S(ptr + 1), 0))
        if shift:
            a(salu("s_sub_u32", srd[0], srd[0], shift)); a(salu("s_subb_u32", srd[1], srd[1], 0))
        if size: a(salu("s_mov_b32", srd[2], size + shift)); a(salu("s_mov_b32", srd[3], "0x20000"))
    base(Sx, 4, sT2, 128); base(Swq, 10, sT1)
    if int(o.asym):
        a(raw("s_bitcmp1_b32 s56, 0")); a(raw("s_cbranch_scc0 Lnotouch"))
        a(salu("s_and_b32", sT0, sB, 14)); a(salu("s_lshl4_add_u32", sT0, sT0, sJ)); a(salu("s_lshl_b32", sT0, sT0, 18))
        base(Sk, 6, sT0, 0, 4194304 + 262144)
        if int(o.asym) > 2: base(Sv, 8, sT0, 0, 4194304 + 262144)
        a(salu("s_lshl4_add_u32", sT0, sHH, sQH)); a(salu("s_lshl_b32", sT0, sT0, 13)); a(valu("v_lshl_add_u32", t3, L, 7, sT0))
        a(salu("s_mov_b32", sOff, 4194304))
        for n in range(int(o.asym)):
            if int(o.asym) == 3 and n == 2:
                a(valu("v_lshrrev_b32", t1, 5, L)); a(valu("v_mul_u32_u24", t1, 4194304 - 4096, t1)); a(valu("v_add_u32", t3, t3, t1))
            a(raw(f"buffer_load_dword {vTs}, {t3}, {(Sk, Sv)[n >> 1]}, {sOff if n & 1 else 0} offen {o.tflag}".rstrip(), rd=[t3], kind="vml"))
        a(raw("Lnotouch:", kind="label"))
    lin = []
    if int(o.lpf):
        a = lin.append
        base(Sk, 4, 0, 0, 16 * PART); base(Sv, 10, 0, 0, 4194304)
        a(salu("s_lshl2_add_u32", sT0, S(2), sW)); a(salu("s_mul_i32", sT1, sT0, 2304)); a(salu("s_lshl_b32", sT0, sT0, 12))
        a(valu("v_min_u32", t1, 17, L)); a(valu("v_lshl_add_u32", t1, t1, 7, sT1)); a(valu("v_lshl_add_u32", t3, L, 6, sT0))
        a(I(f"buffer_load_dword {vTs}, {t3}, {Sv}, 0 offen", "vml", rd=[t3], tag="ct"))
        a(I(f"buffer_load_dword {vTs}, {t1}, {Sk}, 0 offen", "vml", rd=[t1], tag="ct"))
    first = []
    for n, tok in enumerate(o.qseq.split("|")[0].split(",")):
        if n == int(o.lpf) - 1: first += lin
        first += qtok(tok, o)[0]
    Q = []; a = Q.append
    a(salu("s_lshl4_add_u32", sT1, sB, sJ))
    a(salu("s_lshl_b32", sT0, sT1, 18)); base(Sk, 6, sT0, 128, 262144); base(Sv, 8, sT0, 128, 262144)
    a(salu("s_mul_i32", sT0, sT1, PART)); base(Sws, 18, sT0, 0, PART)
    a(salu("s_lshl_b32", sT0, sJ, 18)); base(Swo, 12, sT0, 128, 262144)
    base(Sout, 14, sT2, 0, PART)
    a(salu("s_lshl_b32", sT0, sT2, 4)); base(Sred, 18, sT0, 0, 16 * PART)
    a(salu("s_lshl_b32", sT0, sB, 15)); a(salu("s_add_u32", sT0, sT0, MBOFF)); base(Smb, 18, sT0, 0, 32768)
    a(salu("s_mov_b32", Sdbg[2], 256)); a(salu("s_mov_b32", Sdbg[3], "0x20000"))
    a(salu("s_mov_b32", sC, hex(CSC))); a(raw("s_bitcmp1_b32 s50, 1")); a(raw("s_cselect_b64 vcc, -1, 0"))
    for p in range(4): a(salu("s_add_u32", sT0, sT3, p)); a(salu("s_and_b32", sT0, sT0, 3)); a(salu("s_lshl_b32", sP(p), sT0, 8))
    a(valu("v_and_b32", t1, 15, L)); a(valu("v_lshlrev_b32", t1, 4, t1))
    a(valu("v_lshrrev_b32", t5, 4, L))
    a(salu("s_add_u32", sT0, sW, sMode)); a(salu("s_lshl4_add_u32", sAt, sT0, sB)); a(salu("s_lshl_b32", sAt, sAt, 4))
    a(salu("s_lshl_b32", sT0, sMode, 6)); a(salu("s_add_u32", sT0, sT0, sW)); a(salu("s_lshl_b32", sT0, sT0, 9))
    a(valu("v_lshl_add_u32", t6, L, 3, sT0)); a(salu("s_lshl_b32", sOff, sJ, 11)); a(valu("v_mov_b64", V(8, 2), 0))
    a(vstore(V(8, 2), t6, Smb, sOff, 0, "sc1", tag="mbz", op="buffer_store_dwordx2"))
    a(valu("v_lshl_add_u32", t3, t5, 13, t1))
    a(salu("s_lshl_b32", sT0, sHH, 15)); a(salu("s_lshl_b32", sT1, sQH, 12)); a(salu("s_add_u32", sT0, sT0, sT1))
    a(salu("s_add_u32", sT0, sT0, 128)); a(valu("v_add_u32", t3, sT0, t3)); a(valu("v_accvgpr_write_b32", aWo0, t3))
    a(valu("v_lshlrev_b32", vL16, 4, L))
    a(salu("s_lshl_b32", sT0, sHH, 17)); a(salu("s_lshl_b32", sT1, sQH, 13)); a(salu("s_add_u32", sT0, sT0, sT1))
    a(salu("s_add_u32", sT0, sT0, 128)); a(valu("v_add_u32", vKV(0), sT0, vL16))
    for pp in range(1, 4): a(valu("v_subrev_u32", vKV(pp), 32 * pp, vKV(0)))
    a(salu("s_xor_b32", sT0, sW, 1)); a(salu("s_mul_i32", sGrP, sT0, GRP))
    a(salu("s_add_u32", sA8, sGrp, 8 * US)); a(salu("s_add_u32", sB8, sGrP, 8 * US))
    a(valu("v_add_u32", qA8, sA8, vL16)); a(valu("v_add_u32", qB8, sB8, vL16))
    a(valu("v_and_b32", t1, 3, L)); a(valu("v_mul_u32_u24", t1, PS, t1)); a(valu("v_lshl_add_u32", t1, t5, 4, t1))
    a(valu("v_bfe_u32", t3, L, 2, 2)); a(valu("v_lshl_add_u32", t3, t3, 7, t1))
    a(valu("v_add_u32", qX9r, X9, t3))
    a(salu("s_mul_i32", sT0, sQH, 2 * GRP)); a(valu("v_add_u32", qXr(0), sT0, t3))
    a(valu("v_add_u32", qXr(1), 7 * US, qXr(0)))
    a(valu("v_bfe_u32", t3, L, 2, 1)); a(valu("v_mul_u32_u24", t3, US, t3)); a(valu("v_add_u32", t1, t1, t3))
    a(valu("v_bfe_u32", t3, L, 3, 1)); a(valu("v_lshl_add_u32", t1, t3, 8, t1))
    a(salu("s_lshl_b32", sT0, sQH, 6)); a(salu("s_xor_b32", sT1, sT0, 64))
    a(valu("v_add_u32", t3, sT0, t1)); a(valu("v_add_u32", t6, sT1, t1))
    a(valu("v_add_u32", Kr(0, 0), sGrp, t3)); a(valu("v_add_u32", Kr(0, 1), sGrp, t6))
    a(valu("v_add_u32", Kr(1, 0), sGrP, t3)); a(valu("v_add_u32", Kr(1, 1), sGrP, t6))
    a(valu("v_bfe_u32", t1, L, 2, 2)); a(valu("v_mul_u32_u24", t1, PS, t1))
    a(valu("v_and_b32", t3, 1, L)); a(valu("v_lshl_add_u32", t6, t3, 4, t1))
    a(valu("v_bfe_u32", t3, L, 1, 1)); a(valu("v_lshl_add_u32", t6, t3, 3, t6))
    a(valu("v_lshl_add_u32", t3, t5, 7, t6))
    a(salu("s_mul_i32", sT2, sHH, 2 * GRP)); a(salu("s_add_u32", sT2, sT2, US)); a(valu("v_add_u32", t3, sT2, t3))
    a(valu("v_add_u32", qWr(0, 0), sT0, t3)); a(valu("v_add_u32", qWr(0, 1), sT1, t3))
    a(valu("v_add_u32", qWr(1, 0), 4 * US, qWr(0, 0))); a(valu("v_add_u32", qWr(1, 1), 4 * US, qWr(0, 1)))
    a(valu("v_and_b32", t4, 1, t5))
    a(valu("v_lshl_add_u32", t6, t2, 8, t6)); a(valu("v_mul_u32_u24", t3, GRP, t4)); a(valu("v_add_u32", t6, t6, t3))
    a(salu("s_lshl_b32", sT2, sW, 6)); a(valu("v_add_u32", t6, sT2, t6)); a(valu("v_accvgpr_write_b32", aWpat, t6))
    a(valu("v_lshl_add_u32", t1, t2, 8, t1)); a(valu("v_and_b32", t3, 3, L)); a(valu("v_lshl_add_u32", t1, t3, 3, t1))
    a(valu("v_mul_u32_u24", t3, US, t4)); a(valu("v_add_u32", t1, t1, t3)); a(valu("v_add_u32", t1, 4 * US, t1))
    a(salu("s_lshl_b32", sT0, sT0, 1)); a(salu("s_lshl_b32", sT1, sT1, 1))
    a(valu("v_add_u32", t3, sT0, t1)); a(valu("v_add_u32", t6, sT1, t1))
    a(valu("v_add_u32", Vr(0, 0), sGrp, t3)); a(valu("v_add_u32", Vr(0, 1), sGrp, t6))
    a(valu("v_add_u32", Vr(1, 0), sGrP, t3)); a(valu("v_add_u32", Vr(1, 1), sGrP, t6))
    a(salu("s_and_b32", sRk, {"h": sHH, "b": sB, "0": 0}[o.hx], 1)); a(salu("s_lshl_b32", sRk, sRk, 12))
    a(salu("s_lshl1_add_u32", sT2, sQH, sHH)); a(salu("s_lshl_b32", sT2, sT2, 12)); a(salu("s_add_u32", sT2, sT2, 6 * US))
    a(salu("s_lshl4_add_u32", sOw0, sT0, sT2)); a(salu("s_lshl4_add_u32", sOw1, sT1, sT2))
    a(valu("v_mov_b32", t1, "0x3f803f80"))
    for r in range(4): a(valu("v_accvgpr_write_b32", (ONES[r], "ones"), t1))
    return P, first, Q

def build_main(o):
    P, first, Q = prologue(o)
    sc = Sched(vmgap=int(o.vmgap), dswgap=int(o.dswgap), maxmem=int(o.maxmem), wiso=int(o.wiso), horizon=int(o.hor))
    F = sc.f
    nstamp = [1]
    def stamp(g, after=()):
        if int(o.stamps):
            n = nstamp[0]; nstamp[0] += 1
            F(raw(f"s_memrealtime s[{64+2*n}:{65+2*n}]"), g, g, after=after)
    nextvm = [0]
    def spread(ops, lo, step, q="dma", after=(), cap=None):
        out = []; pos = max(lo, nextvm[0]); pend = []
        for x in ops:
            pend.append(x)
            if x.kind in ("dma", "vml", "vms"):
                a_, b_ = int(pos), int(pos + step)
                if cap is not None: a_, b_ = min(a_, cap), min(b_, cap)
                for y in pend[:-1]: out.append(F(y, max(min(lo, b_), min(a_ - 3, b_)), b_, q=q, after=after))
                out.append(F(x, a_, b_, q=q, after=after)); pend = []
                if x.tag not in ('at', 'ct'): pos += step
        assert not pend
        nextvm[0] = pos
        return out
    cur = {}; lastrd = {}; firstrd = {}; lastwr = {}
    def M(d, dtag, a_, b_, c):
        cc = (d, cur[str(d)]) if c == "acc" else c
        i = mfma((d, dtag), a_, b_, cc); n = sc.m(i); cur[str(d)] = dtag
        for r, t in i.rd.items():
            lastrd[(r, t)] = n; firstrd.setdefault((r, t), n)
        lastwr[str(d)] = n
        return n
    lr = lambda reg, tag: max(lastrd[(r, tag)] for r in reg.regs())
    fr_ = lambda reg, tag: min(firstrd[(r, tag)] for r in reg.regs())
    for i in first + Q: F(i, -1, -1, q="dma")
    k0 = {}; qdone = {}
    for j, (I_, hf) in enumerate(SEQ):
        k0[j] = sc.n
        if j < 15: order = [(fp, b) for fp in range(4) for b in range(5) if b < 4 or fp < 2]
        else: order = [(fp, 4) for fp in range(2)] + [(fp, b) for b in range(4) for fp in range(4)]
        for fp, b in order:
            d = ACC(b, 4 * hf + fp) if b < 4 else SB(hf).sub(4 * fp, 4)
            for kk in range(2):
                bb = (Bq(I_, kk, b) if b < 4 else B9(I_, kk), f"x{I_}")
                n = M(d, "Qacc" if (I_, kk) == (7, 1) else f"q{I_}.{kk}", (Aq(fp, kk), f"w{j}"), bb, 0 if (I_, kk) == (0, 0) else "acc")
            qdone[str(d)] = n
    k0[16] = sc.n
    units = []; U = {}; G = {}; pre0 = {}; preL = {}
    P7 = {0: PB(0), 1: PB(1), 8: PB(2), 2: NM(0), 3: NM(4), 4: NM(1), 5: NM(2)}
    def pre(b):
        pre0[b] = sc.n
        for t in range(4): preL[b] = M(NM(b), f"pm{b}", (KF(0, 0, t), "k0"), (QF(b, t), f"Q{b}"), 0 if t == 0 else "acc")
    def qk(e, u):
        n = len(units); b, y = (u >> 1, u & 1) if u < 8 else (4, 0)
        s_ = SB(n & 1); p_ = PB(u % 3) if e < 7 else P7.get(u, s_.sub(0, 4))
        un = dict(e=e, u=u, b=b, y=y, S=s_, P=p_, n=n, q0=sc.n, hl=[0, 0])
        for h in range(2):
            for t in range(4):
                un["hl"][h] = M(s_.sub(4 * h, 4), f"s{n}", (KF(y, h, t), f"k{e}"), (QF(b, t), f"Q{b}"), (NM(b), f"nm{b}") if t == 0 else "acc")
        units.append(un); U[(e, u)] = un
    def pv(e, b, ds=range(-1, 8)):
        us = [U[(e, 2 * b)], U[(e, 2 * b + 1)]] if b < 4 else [U[(e, 8)]]
        g = G.setdefault((e, b), dict(p0=sc.n))
        for d in ds:
            acc = LS(b) if d < 0 else (ACC(b, d) if b < 4 else O9(d))
            for k, un in enumerate(us):
                a_ = (ONES, "ones") if d < 0 else (VF(e, un["y"], d), f"v{e}")
                g["pL"] = M(acc, f"o{e}.{k}" if k + 1 < len(us) else f"o{e}", a_, (un["P"], f"p{un['n']}"), 0 if e == 0 and k == 0 else "acc")
        for un in us: un["g"] = g
    st0 = {}
    for e in range(8):
        st0[e] = sc.n
        if e == 0: pre(0); pre(1)
        qk(e, 0); qk(e, 1)
        if e: pv(e - 1, 4)
        if e < 7:
            for b in range(1, 4):
                if e == 0: pre(b + 1)
                qk(e, 2 * b); qk(e, 2 * b + 1); pv(e, b - 1)
            qk(e, 8); pv(e, 3)
        else:
            for u in (8, 2, 3, 4, 5, 6, 7): qk(e, u)
            for b in (4, 0, 1, 2): pv(e, b, [-1])
            pv(e, 4, range(8)); pv(e, 3, [-1])
            for b in range(4): pv(e, b, range(8))
    attn_end = sc.n - 1
    odone = dict(lastwr)
    ou0 = {}; ouh = {}
    for p in range(4):
        for k, qb in enumerate(QB):
            n = 9 * p + k; ou0[n] = sc.n
            for u in range(2):
                for ks in range(8):
                    ouh[(n, u)] = M(SB(n & 1).sub(4 * u, 4), f"r{n}", (Ao(p, ks, u), f"wo{p}"), (Bo(qb, ks), f"of{qb}"), 0 if ks == 0 else "acc")
    last = sc.n - 1
    ou0[36] = ou0[37] = last + 1
    def rdA(j, fp):
        u = WQU[j % 6]; win = 0 if u <= 4 else 1
        return [dsr(TR, (Aq(fp, kk).sub(2 * h, 2), f"w{j}"), qWr(win, fp >> 1), (u - 1 - 4 * win) * US + kk * GRP + 512 * h + 32 * (fp & 1))
                for kk in range(2) for h in range(2)]
    def rdB(I_):
        u = XU[I_ % 3]; win = 1 if u == 7 else 0
        l = [dsr(B128, (Bq(I_, kk, b), f"x{I_}"), qXr(win), (u - 7 * win) * US + (b >> 1) * GRP + (b & 1) * 512 + kk * 64)
             for b in range(4) for kk in range(2)]
        return l + [dsr(B128, (B9(I_, kk), f"x{I_}"), qX9r, ((I_ >> 1) & 1) * GRP + (I_ & 1) * 512 + kk * 64) for kk in range(2)]
    bpre = F(barrier(vm=("x0", "xn0", "wq0")), -1, -1, q="dma")
    stamp(-1, [bpre])
    l = rdB(0)
    prev = [F(x, -1, -1, q="lds", after=[bpre]) for x in rdA(0, 0) + l[:6]]
    prev += [F(x, -1, 7, q="lds", after=[bpre]) for x in l[6:] + rdA(0, 1) + rdA(0, 2) + rdA(0, 3)]
    BQ = {}
    for j in range(16):
        g = k0[j] + (14 if j == 0 else 9)
        nI = SEQ[j + 1][0] if j < 15 and SEQ[j + 1][1] == 0 else None
        vm = []
        if j < 15: vm.append(f"wq{j+1}")
        if nI is not None: vm += [f"x{nI}", f"xn{nI//2}"]
        if j == 10: vm = ["wq15", "all0"]
        bq = BQ[j] = F(barrier(vm=vm), g, g, after=prev)
        if o.qst and j in eval(o.qst): stamp(g, [bq])
        prev = []
        if j < 15:
            for fp in range(4):
                for x, kk in zip(rdA(j + 1, fp), (0, 0, 1, 1)):
                    lo = max(lr(Aq(fp, kk), f"w{j}"), g)
                    prev.append(F(x, lo, max(min(fr_(Aq(fp, kk), f"w{j+1}") - 6, k0[j + 1] + 3), lo), q="ldsA", after=[bq]))
        if nI is not None:
            for n, x in enumerate(rdB(nI)): prev.append(F(x, g, min(k0[j + 1] - 7 + n, k0[j + 1] + 2), q="ldsB", after=[bq]))
    step = 3.0; seen = set(o.qseq.split("|")[0].split(","))
    for tok in o.qseq.split("|")[1].split(","):
        if tok[0] == "@": nextvm[0] = max(nextvm[0], int(float(tok[1:]) * 36)); continue
        if tok[0] == "+": nextvm[0] += int(tok[1:]); continue
        if tok[0] == "p": step = float(tok[1:]); continue
        seen.add(tok)
        ops, dep = qtok(tok, o)
        spread(ops, BQ[dep].lo if dep >= 0 else 0, step, after=[BQ[dep]] if dep >= 0 else [])
    assert len([t for t in seen if t[0] not in "ct"]) == 16 + 8 + 4 + 4 + 4, sorted(seen)
    stamp(k0[15])
    if o.xst:
        for g_ in eval(o.xst): stamp(g_)
    def pack_q(src, dst, tdst, hi):
        lo = min(max(qdone[str(src.sub(0, 4))], qdone[str(src.sub(4, 4))]) + 3, hi)
        ops = [valu("v_mul_f32", (src[m], "t"), sC, (src[m], "Qacc")) for m in range(8)]
        ops += [valu("v_cvt_pk_bf16_f32", (dst[m], "t2"), (src[2 * m], "t"), (src[2 * m + 1], "t")) for m in (0, 2, 1, 3)]
        ops += [swap("v_permlane32_swap_b32", (dst[m], "t2"), (dst[m + 2], "t2"), tdst, tdst) for m in range(2)]
        return [F(x, lo, hi, q="qe") for x in ops]
    q9w = []
    for hf in range(2):
        l = pack_q(SB(hf), PB(hf), "q9p", pre0[0] - 2)
        q9w.append(F(dsw("ds_write_b128", qA8, (PB(hf), "q9p"), 1024 * hf), BQ[15].lo, min(U[(0, 0)]["q0"] - 1, pre0[2] - 3 + int(o.ba0)), q="q9w", after=[l[-1], BQ[15]]))
        for t, b in ([(t, b) for t in (0, 1) for b in range(4)] if hf == 0 else [(t, b) for b in range(4) for t in (2, 3)]):
            pack_q(V(32 * b + 8 * t, 8), QF(b, t), f"Q{b}", pre0[b] - 1 + t)
    for b in range(5):
        n = NM(b); pm = f"pm{b}"; nm = f"nm{b}"; hi = fr_(n, nm) - 1
        ops = [valu("v_accvgpr_read_b32", vT1, SAV(b)),
               valu("v_max3_f32", n[0], (n[0], pm), (n[1], pm), vT1), valu("v_max3_f32", n[0], n[0], (n[2], pm), (n[3], pm)),
               valu("v_mov_b32", n[1], n[0]), swap("v_permlane32_swap_b32", n[0], n[1]), valu("v_max_f32", n[0], n[0], n[1]),
               valu("v_mov_b32", n[1], n[0]), swap("v_permlane16_swap_b32", n[0], n[1]),
               I(f"v_min_f32_e64 {n[0]}, -{n[0]}, -{n[1]}", "valu", rd=[n[0], n[1]], wr=[(n[0], nm)]),
               valu("v_mov_b32", (n[1], nm), (n[0], nm)), valu("v_mov_b64", (n.sub(2, 2), nm), (n.sub(0, 2), nm))]
        for x in ops: F(x, min(preL[b] + 3, hi), hi, q="nm")
    def rdK(e, y, lo, after, hi=10**9):
        out = []
        for h in range(2):
            for t in range(4):
                r = KF(y, h, t); l_ = max(lo, lr(r, f"k{e-1}")) if e else lo
                x = dsr(B128, (r, f"k{e}"), Kr(y, t & 1), (e & 1) * 2 * US + 512 * h + 128 * (t >> 1))
                out.append(F(x, l_, max(l_, min(fr_(r, f"k{e}") - 6, hi)), q=f"ldsK{y}", after=after))
        return out
    def rdV(e, y, lo, after, hi):
        out = []
        for d in range(8):
            r = VF(e, y, d); l_ = max(lo, lr(r, f"v{e-1}")) if e and y else lo
            for h in range(2):
                x = dsr(TR, (r.sub(2 * h, 2), f"v{e}"), Vr(y, d >> 2), (e & 1) * 2 * US + 512 * h + 32 * (d & 3))
                out.append(F(x, l_, max(l_, min(fr_(r, f"v{e}") - 6, hi)), q=f"ldsV{y}", after=after))
        return out
    BB = {}; wo0 = g_wo(0, 0) + g_wo(0, 1)
    for e in range(8):
        if e == 0:
            g = k0[16] - int(o.bk0)
            bk = F(barrier(vm=["k0"], lgkm=False), g, g, after=[BQ[15]])
            gv = pre0[2] - 1 + int(o.ba0)
            bv = F(barrier(vm=["v0"]), gv, gv, after=q9w + [bk])
            for t in range(4):
                F(dsr(B128, (QF(4, t), "Q4"), qB8 if t & 1 else qA8, 1024 * (t >> 1)), gv, pre0[4] - 6, q="ldsQ9", after=[bv])
        else:
            g = U[(e - 1, 8)]["q0"] - 1 - int(o.bao)
            sep = e == 7 or e >= int(o.sepv)
            bk = F(barrier(vm=[f"k{e}"] + ([] if sep else [f"v{e}"]), lgkm=False), g, g, after=[BB[e - 1]])
            bv, gv = bk, g
            if sep and e < 7:
                gv = st0[e] + int(o.bvo)
                bv = F(barrier(vm=[f"v{e}"], lgkm=False), gv, gv, after=[bk])
            if e == 7:
                gv = G[(7, 4)]["p0"] - 1 - int(o.bv7)
                bv = F(barrier(vm=["v7"], lgkm=False), gv, gv, after=[bk])
                stamp(gv, [bv])
        gb = G[(e, 0)]["p0"] + int(o.bbo) if e < 7 else G[(7, 4)]["p0"] + int(o.bb7)
        if e == 0 and int(o.bb0): gb = gv + int(o.bb0)
        rk = rdK(e, 0, g, [bk]) + rdK(e, 1, g, [bk])
        rv = rdV(e, 0, gv, [bv], gb - 5) + rdV(e, 1, gv, [bv], gb - 5)
        bb = BB[e] = F(barrier(), gb, gb, after=rk + rv)
        if e in (0, 3, 6): stamp(gb, [bb])
        ops = []
        if e < 6:
            for part in range(4): ops += g_kv(e + 2, part, o)
        if e == int(o.ate):
            ops += [valu("v_lshl_add_u32", vT0, vL16, 4, sAt), valu("v_mov_b32", vT1, 1),
                    vstore(vT1, vT0, Sdbg, 0, 0, "", tag="at", op="buffer_atomic_add")]
        if e == 3 and int(o.cpf): ops += code_touch(V(254, 2), vTs, vL16, shift=3)
        if e == int(o.wot):
            ops += [salu("s_and_b32", sT0, sB, 7), salu("s_lshl2_add_u32", sT0, sT0, sW), salu("s_lshl_b32", sT0, sT0, 13), salu("s_add_u32", sT0, sT0, 128),
                    valu("v_lshl_add_u32", vT0, vL16, 3, sT0), I(f"buffer_load_dword {vTs}, {vT0}, {Swo}, 0 offen", "vml", rd=[vT0], tag="ct")]
        nwo = len(wo0) // 4 * int(o.wo0a)
        wset = [valu("v_accvgpr_read_b32", vKV(0), aWo0)] + [valu("v_subrev_u32", vKV(pp), 32 * pp, vKV(0)) for pp in (1, 2, 3)]
        if e == 6:
            early = wset + wo0[:nwo] if nwo else []; done = 0; per = -(-4 * int(o.wo0a) // int(o.win))
            for n in range(int(o.win) - 1, -1, -1):
                g_ = int(nextvm[0])
                if int(o.drain): F(raw(f"s_waitcnt vmcnt({n + done})"), g_, g_ + 2, q="dma")
                idx = [k for k, x in enumerate(early) if x.kind == "dma"][:per]
                if idx:
                    spread(early[:idx[-1] + 1], g_ + 1, (float(o.astep) - 2) / per, after=[bb]); early = early[idx[-1] + 1:]; done += len(idx)
                nextvm[0] = g_ + float(o.astep)
            assert not early
        if e == 7: spread(([] if nwo else wset) + wo0[nwo:], gv + int(o.wo0o), float(o.wostep2), after=[bv] if int(o.wo0o) >= 0 else [BB[6]])
        if e == 7:
            bv.after += rk; assert max(fr_(KF(y, h, t), "k7") for y in range(2) for h in range(2) for t in range(4)) <= gv
            spread(g_wo(1, 0), gv + int(o.wo1o), float(o.ostep0), after=[bv])
        spread(ops, gb + (int(o.ashift) if e < 6 else 0), float({0: o.astep0, 4: o.astep4, 5: o.astep5, 6: o.wostep}.get(e, o.astep)), after=[bb])
    vA8, vLMw, vOw, vW, vB8, vLMr = Kr(0, 0), Kr(0, 1), (Kr(1, 0), Kr(1, 1)), (Vr(0, 0), Vr(0, 1)), Vr(1, 0), Vr(1, 1)
    vBr, vFl, vSt, vO9 = (PB(2)[0], PB(2)[1]), vLMw, vLMr, vB8
    g = U[(7, 8)]["q0"]; p7 = G[(7, 4)]["p0"]
    adr = [valu("v_bfe_u32", vLMw, vL16, 1, 7), valu("v_add_u32", vLMw, sA8, vLMw), dsw("ds_write_b32", vLMw, (NM(4)[0], "nm4"), 4096 + 4),
           valu("v_add_u32", vA8, sA8, vL16), valu("v_add_u32", vOw[0], sOw0, vL16), valu("v_add_u32", vOw[1], sOw1, vL16)]
    adr = [F(x, g, g + 12, q="adr", after=rk) for x in adr]
    BB[7].after.append(F(dsw("ds_write_b32", vLMw, (LS(4)[0], "o7"), 4096), p7 + 4, BB[7].lo - 2, q="adr"))
    adr2 = [valu("v_bfe_u32", vLMr, vL16, 1, 7), valu("v_add_u32", vLMr, sB8, vLMr),
            valu("v_accvgpr_read_b32", vW[0], aWpat), valu("v_add_u32", vW[1], 4 * US, vW[0]), valu("v_add_u32", vB8, sB8, vL16)]
    adr2 = [F(x, p7, BB[7].lo + 8, q="adr", after=rv) for x in adr2]
    lastP = {}
    for un in units:
        n, s_, p_ = un["n"], un["S"], un["P"]
        nx = units[n + 2]["q0"] if n + 2 < len(units) else 10**9
        pfree = -1; aft = []
        if str(p_) in lastP: pfree = lastP[str(p_)]["g"]["pL"]
        for b in range(5):
            if str(p_) == str(NM(b)): pfree = lr(p_, f"nm{b}") + 1
        if str(p_) == str(NM(4)): aft = [adr[2]]
        if n < 2: aft = q9w
        lastP[str(p_)] = un
        ex = []
        for j in range(8):
            hi = min(nx - 1 + 4 * (j >> 2), un["g"]["p0"] - 1); lo = min(un["hl"][j >> 2] + 3, hi)
            ex.append(F(trans("v_exp_f32", (s_[j], f"e{n}"), (s_[j], f"s{n}")), lo, max(lo, hi - 1), q="exp"))
        for m in range(4):
            hi = min(nx - 1 + 4 * (m >> 1), un["g"]["p0"] - 1)
            F(valu("v_cvt_pk_bf16_f32", (p_[m], f"p{n}"), (s_[2 * m], f"e{n}"), (s_[2 * m + 1], f"e{n}")),
              max(ex[2 * m + 1].lo, pfree), hi, q="cvt", after=[ex[2 * m + 1]] + aft)
    def rdAo(p, kss=range(8)):
        return [dsr(TR, (Ao(p, ks, u).sub(2 * h, 2), f"wo{p}"), vW[WOU[p][ks >> 1] >> 2],
                    (WOU[p][ks >> 1] & 3) * US + (ks & 1) * 2 * GRP + 512 * h + 32 * u)
                for u in range(2) for ks in kss for h in range(2)]
    gB = [attn_end - int(o.b1o)] + [ou0[2 * k] - int(o.bko) for k in range(1, 5)]
    pub = [[] for _ in range(5)]
    lm = NM(3)
    mr = [dsr("ds_read_b64", lm.sub(0, 2), vLMw, 4096), dsr("ds_read_b64", lm.sub(2, 2), vLMr, 4096)]
    mr = [F(x, BB[7].lo, BB[7].lo + 10, q="lm", after=[BB[7], adr2[1]]) for x in mr]
    ops = [valu("v_add_u32", vBr[1], 6 * US, vL16),
           salu("s_lshl_b32", sT0, sW, 2), valu("v_add_u32", vFl, sT0, vBr[1]), salu("s_lshl_b32", sT0, sW, 10), valu("v_add_u32", vSt, sT0, vL16),
           valu("v_sub_f32", lm[1], lm[1], lm[3]), trans("v_exp_f32", lm[1], lm[1]), valu("v_accvgpr_read_b32", vTs, (LS(0)[0], "o7")),
           valu("v_fma_f32", lm[0], lm[2], lm[1], lm[0]), trans("v_rcp_f32", lm[2], lm[0]),
           valu("v_add_f32", vTs, vTs, lm[0]), valu("v_mul_f32", lm[1], lm[1], lm[2])]
    for b in (1, 2, 3): ops += [valu("v_accvgpr_read_b32", lm[3], (LS(b)[0], "o7")), valu("v_add_f32", vTs, vTs, lm[3])]
    ops.append(dsw("ds_write_b32", vFl, vTs, FLAG - 6 * US))
    lsum = [F(x, max(BB[7].lo + 4, G[(7, 4)]["pL"], odone[str(LS(3))] + 4), gB[0] - 4, q="lm") for x in ops]
    pub[0] += lsum
    raww = [F(x, G[(7, 4)]["pL"] + 4, gB[0] - 4, q="ow", after=[adr[-1]]) for d in range(4) for x in w128(o, vA8, (O9(4 + d), "o7"), 1024 * d)]
    pub[0] += raww
    def norm_block(b):
        a32 = V(32 * b, 32); hi = gB[b] - 4
        ops = [valu("v_accvgpr_read_b32", vT1, (LS(b)[0], "o7")), trans("v_rcp_f32", vT0, vT1)]
        for x in ops: F(x, odone[str(LS(b))] + 4, hi, q="ep")
        for k in range(4):
            ops = [valu("v_mul_f32", (a32[8 * k + m], "n"), (a32[8 * k + m], "o7"), vT0) for m in range(8)]
            ops += [valu("v_cvt_pk_bf16_f32", (a32[8 * k + m], "of"), (a32[8 * k + 2 * m], "n"), (a32[8 * k + 2 * m + 1], "n")) for m in range(4)]
            lo = odone[str(ACC(b, 2 * k + 1))] + 3; hk = max(lo, hi - 4 * (3 - k))
            for x in ops: x = F(x, lo, hk, q="ep")
            for y in w128(o, vOw[k >> 1], (a32.sub(8 * k, 4), "of"), (b & 1) * US + (k & 1) * 1024):
                pub[b].append(F(y, max(lo, gB[b - 1]) if b >= 2 else lo, hk, q="ow", after=[x, BP[b - 1] if b >= 2 else BB[7]]))
    BP = [barrier(vm=v_) for v_ in (["wo0a", "wo0b"], ["wo1a"], [], ["wo1b"], [])]
    for b in range(4): norm_block(b)
    F(BP[0], gB[0], gB[0], after=pub[0])
    stamp(attn_end)
    rdA0 = []
    for x in rdAo(0):
        r = next(iter(x.wr)); rdA0.append(F(x, gB[0], max(gB[0], firstrd[(r, "wo0")] - int(o.lead)), q="ldsK0", after=[adr2[-1], BP[0]]))
    fl = NM(0)
    fr = F(dsr(B128, fl, vBr[1], FLAG - 6 * US), gB[0], gB[0] + 1, q="ldsB", after=[BP[0]])
    chk = [valu("v_add_f32", fl[0], fl[0], fl[1]), valu("v_add_f32", fl[2], fl[2], fl[3]), valu("v_add_f32", fl[0], fl[0], fl[2]),
           raw(f"v_cmp_nge_f32 vcc, {hex(THR)}, {fl[0]}", rd=[fl[0]], kind="valu"),
           raw(f"s_cmp_eq_u32 s54, {77 if o.abl else 0}\ns_cselect_b64 vcc, vcc, 0\ns_cbranch_vccnz Lslow", cost=2, kind="br")]
    chk = [F(x, gB[0] + 7, gB[0] + 14, q="fl", after=[fr]) for x in chk]
    rcv = [V(168 + 4 * d, 4) for d in range(4)]
    mr = [F(dsr(B128, (rcv[d], "rcv"), vB8, 1024 * d), gB[2], gB[3] - 6, q="lm", after=[chk[-1]]) for d in range(4)]
    for x in (salu("s_lshl_b32", sT0, sW, 11), valu("v_add_u32", vO9, sT0, vBr[1])): a9 = F(x, gB[2], gB[4] - 12, q="fl", after=mr)
    for k in range(2):
        ops = []
        for d in (2 * k, 2 * k + 1):
            for m in range(4):
                t = (vT1, lm[3])[m & 1]
                ops += [valu("v_accvgpr_read_b32", t, (O9(d)[m], "o7")), valu("v_mul_f32", (rcv[d][m], "rs"), (rcv[d][m], "rcv"), lm[1]),
                        valu("v_fma_f32", (rcv[d][m], "n"), t, lm[2], (rcv[d][m], "rs"))]
        for m in range(4):
            src = rcv[2 * k + (m >> 1)]
            ops.append(valu("v_cvt_pk_bf16_f32", (rcv[2 * k][m], "of"), (src[2 * (m & 1)], "n"), (src[2 * (m & 1) + 1], "n")))
        for x in ops: x = F(x, gB[2], gB[4] - 8 + 4 * k, q="ep", after=mr + [lsum[-1]])
        for y in w128(o, vO9, (rcv[2 * k], "of"), 3 * US + 1024 * k): pub[4].append(F(y, gB[2], gB[4] - 8 + 4 * k, q="ow", after=[x, a9]))
    def rdBo(qb, ks):
        if qb < 8: return dsr(B128, (Bo(qb, ks), f"of{qb}"), vBr[1], (qb & 1) * US + (qb >> 2) * 8192 + 1024 * ks)
        return dsr(B128, (Bo(qb, ks), f"of{qb}"), vBr[1], 3 * US + 1024 * ks)
    rdp = rdA0
    for k in range(5):
        if k: F(BP[k], gB[k], gB[k], after=pub[k] + [BP[k - 1]] + rdp); rdp = []
        for n in (2 * k, 2 * k + 1)[:2 if k < 4 else 1]:
            for ks in range(8):
                late = QB[n] >= 5 or (QB[n] == 4 and ks >= 6)
                hi = max(gB[k] + ks // 2, ou0[n] - int(o.lead) + ks)
                if k < 4: hi = min(hi, gB[k + 1] - 3)
                rdp.append(F(rdBo(QB[n], ks), gB[k], hi, q="ldsB", after=[BP[k]] + ([chk[-1]] if late else [])))
        if k in (1, 3): rdp += [F(x, gB[k], gB[k + 1] - 3, q="ldsK0", after=[BP[k]]) for x in rdAo(1, range(2 * k - 2, 2 * k + 2))]
    spread(g_wo(1, 1) + g_wo(2, 0), gB[1] + 1, float(o.ostep1), after=[BP[1]])
    spread(g_wo(2, 1), gB[2] + 1, float(o.ostep2), after=[BP[2]])
    spread(g_wo(3, 0) + g_wo(3, 1), gB[4] + 1, float(o.ostep3), after=[BP[4]])
    gd = {p: ou0[9 * p] + int(o.bdo) for p in range(4)}
    bd = BP[4]
    for p in (1, 2):
        bd = F(barrier(vm=[f"wo{p+1}a", f"wo{p+1}b"], lgkm=False), gd[p], gd[p], after=[bd])
        for n, x in enumerate(rdAo(p + 1)): F(x, gd[p], ou0[9 * p + 9] - 8 + n // 2, q="ldsK0", after=[bd])
    for n in range(36):
        s_, p_ = SB(n & 1), PB(n & 1)
        for m in range(4):
            lo = min(ouh[(n, m >> 1)] + (8 if n > 8 else 4), last)
            x = F(valu("v_cvt_pk_bf16_f32", (p_[m], f"rp{n}"), (s_[2 * m], f"r{n}"), (s_[2 * m + 1], f"r{n}")), lo, min(lo + 6, last), q="st")
        ops = ([salu("s_mul_i32", sT3, sP(n // 9), 144)] if n % 9 == 0 else []) + [salu("s_add_u32", sSt, sT3, 4096 * QB[n % 9]),
               vstore((p_, f"rp{n}"), vSt, Sws, sSt, 0, o.stflag, tag=f"st{n//9}")]
        sw = int(str(o.swin).split(",")[n // 9 % len(str(o.swin).split(","))])
        if sw and n >= sw:
            ops.insert(len(ops) - 1, waitvm(f"su{n - sw}"))
        ops[-1].utag = f"su{n}"
        for x in ops: F(x, lo, min(lo + 8, last), q="st", after=[chk[-1]])
    t = V(168, 4)
    ops = [salu("s_lshl_b32", sT1, sB, 4), valu("v_mov_b32", vRdA, sT1),
           vload(vRdy, vRdA, Sdbg, 0, 0, "sc1", tag="rdy", op="buffer_load_dword"),
           salu("s_lshl4_add_u32", sT0, sW, sJ), salu("s_lshl_b32", sT0, sT0, 7),
           valu("v_lshrrev_b32", vF, 9, vL16), valu("v_lshl_add_u32", vF, vF, 15, sT0), valu("v_lshrrev_b32", vOne, 2, vL16),
           valu("v_add_u32", vF, vF, vOne), valu("v_mov_b32", vOne, 1)]
    gf = {p: ou0[9 * p + 9] + int(o.flo) for p in range(3)}
    for x in ops: F(x, gB[4], ou0[10], q="fl")
    ops = [raw(f"v_cmp_gt_u32 vcc, 16, {vRdy}", rd=[vRdy], kind="valu"), raw("s_cbranch_vccnz Lrdy_spin\nLrdy_back:", kind="br")]
    for p in range(3):
        ops = [waitvm(f"st{p}")] + ops + [salu("s_lshl_b32", sT0, sP(p), 5), vstore(vOne, vF, Smb, sT0, 0, "sc1", tag="fl", op="buffer_store_dword")]
        for x in ops: F(x, gf[p], gf[p] + 2, q="fl")
        ops = []
        if p == 0:
            su = [
               valu("v_bfe_u32", vPo, vL16, 4, 2), valu("v_lshrrev_b32", t[0], 8, vL16),
               salu("s_lshl_b32", sT0, sJ, 11), valu("v_lshl_add_u32", vPo, vPo, 9, sT0),
               salu("s_lshr_b32", sG, sJ, 2), salu("s_sub_u32", sG, sG, sB), salu("s_and_b32", sGo, sG, 3), salu("s_lshl_b32", sGo, sGo, 7),
               salu("s_lshr_b32", sT0, sJ, 2), salu("s_mul_i32", sT0, sT0, 9), salu("s_add_u32", sT0, sT0, sW),
               salu("s_and_b32", sT1, sJ, 3), salu("s_lshl2_add_u32", sT0, sT0, sT1), salu("s_lshl_b32", sT0, sT0, 10),
               valu("v_add_u32", vR[0], sT0, vL16), valu("v_add_u32", vR[1], 16384, vR[0]),
               salu("s_lshl_b32", sT1, sW, 28), salu("s_add_u32", sT0, sT1, 32768), valu("v_add_u32", vR[2], sT0, vR[0]),
               valu("v_bfe_u32", t[1], vL16, 4, 4), valu("v_lshlrev_b32", vO[0], 10, t[1]), valu("v_lshl_add_u32", vO[0], t[0], 4, vO[0]),
               salu("s_lshl_b32", sT0, sW, 14), salu("s_lshl_b32", sT2, sJ, 6), salu("s_add_u32", sT0, sT0, sT2),
               valu("v_add_u32", vO[0], sT0, vO[0]), valu("v_add_u32", vO[1], 65536, vO[0]),
               salu("s_add_u32", sT0, sT1, 131072), valu("v_add_u32", vO[2], sT0, vO[0]),
               valu("v_and_b32", t[2], 1, t[1]), valu("v_lshlrev_b32", t[2], 4, t[2]), valu("v_mov_b32", t[3], "0x3f80"),
               valu("v_lshlrev_b32", t[2], t[2], t[3]),
               valu("v_bfe_u32", t[3], t[1], 2, 1), valu("v_xor_b32", t[3], t[3], t[0]),
               valu("v_and_b32", t[0], 1, t[3]), valu("v_lshlrev_b32", t[0], 3, t[0]),
               valu("v_lshrrev_b32", t[3], 1, t[3]), valu("v_lshl_add_u32", t[0], t[3], 2, t[0]),
               valu("v_lshrrev_b32", t[3], 3, t[1]), valu("v_lshl_add_u32", t[0], t[3], 1, t[0]),
               valu("v_bfe_u32", t[3], t[1], 1, 1), valu("v_add_u32", t[0], t[0], t[3]),
               valu("v_lshlrev_b32_e64", t[0], t[0], 1)]
            for m in range(8): su += [valu("v_bfe_i32", SEL[m], t[0], m, 1), valu("v_and_b32", SEL[m], SEL[m], t[2])]
            for x in su: F(x, ou0[18], gf[1] - 1, q="fl")
    g = last - int(o.pollo)
    F(vload(vRdy, vPo, Smb, sGo, 0, "sc1", tag="poll", op="buffer_load_dword"), g, g + 2, q="fl")
    F(waitvm("poll"), last, last, q="st")
    seq = sc.run()
    if "a" in o.abl: seq = [x for x in seq if not (x.gap > 100 and x.kind in ("dma", "vml"))]
    if "s" in o.abl: seq = [x for x in seq if not (x.kind == "vms" and x.tag.startswith("st"))]
    if "w" in o.abl: seq = [x for x in seq if not (x.kind == "dma" and x.tag[:3] == "wo0")]
    if "d" in o.abl: seq = [x for x in seq if not (x.kind == "dsw" and x.gap > 1700)]
    if "o" in o.abl: seq = [x for x in seq if not (x.kind == "dma" and x.tag[:3] in ("wo1", "wo2", "wo3"))]
    seq = P + seq
    if not o.abl: check_tags(seq)
    seq, nops = pad_hazards(seq)
    sys.stderr.write(f"mfma {len(sc.bb)} instrs {len(seq)} over {sc.stats['over']} idle {sc.stats['idle']} waits {sc.stats['waits']} nop-states {nops}\n")
    return seq, nstamp[0]

def reduce_tail(o, a, nst):
    acc = lambda f, u: V(8 * f + 4 * u, 4)
    buf = lambda t, i, f: A(48 * t + 12 * i + 4 * f, 4)
    poll = f"buffer_load_dword {vRdy}, {vPo}, {Smb}, {sGo} offen sc1"
    a(f"s_lshl_b32 s61, {sP(3)}, 5"); a("s_mov_b32 s63, 0")
    if int(o.stamps): a(f"s_memrealtime s[{64+2*nst}:{65+2*nst}]")
    def mf(t):
        for f in range(3):
            for u in range(2):
                for i in range(4):
                    a(f"v_mfma_f32_16x16x32_bf16 {acc(f,u)}, {SEL.sub(4*u,4)}, {buf(t,i,f)}, {0 if t == 0 and i == 0 else acc(f,u)}")
    pa = int(o.polli)
    for t in range(4):
        a(f"s_mul_i32 s45, {sGo}, {PART // 128}")
        if t: a(f"s_waitcnt vmcnt({12 - 3 * pa})")
        a(f"Lpoll{t}:"); a(f"v_cmp_eq_u32 vcc, 0, {vRdy}"); a(f"s_cbranch_vccz Lgo{t}")
        a(poll); a("s_add_u32 s63, s63, 1"); a("s_waitcnt vmcnt(0)"); a("s_cmp_lt_u32 s63, 0x40000"); a(f"s_cbranch_scc1 Lpoll{t}")
        a(f"Lgo{t}:")
        a(f"s_sub_u32 {sGo}, {sGo}, 128"); a(f"s_and_b32 {sGo}, {sGo}, 0x180")
        for i in range(4):
            if i == int(o.fl3) and t == 0:
                a(f"s_waitcnt vmcnt({3*i})"); a(f"buffer_store_dword {vOne}, {vF}, {Smb}, s61 offen sc1")
            if i == pa and t < 3: a(poll)
            for f in range(3):
                rw = int(str(o.rwin).split(",")[t % len(str(o.rwin).split(","))])
                if rw: a(f"s_waitcnt vmcnt({rw-1})")
                a(f"buffer_load_dwordx4 {buf(t,i,f)}, {vR[f]}, {Sred}, s45 offen sc1")
            if i < 3: a(f"s_add_u32 s45, s45, {4*PART}")
        if t:
            a(f"s_waitcnt vmcnt({13 if t < 3 else 12})"); mf(t - 1)
    assert int(o.fl3) <= pa
    for i in range(4):
        a(f"s_waitcnt vmcnt({9-3*i})")
        for f in range(3):
            for u in range(2): a(f"v_mfma_f32_16x16x32_bf16 {acc(f,u)}, {SEL.sub(4*u,4)}, {buf(3,i,f)}, {acc(f,u)}")
    a("s_nop 3")
    for f in range(3):
        if f: a("s_nop 1")
        for m in range(4): a(f"v_cvt_pk_bf16_f32 v{32+4*f+m}, v{8*f+2*m}, v{8*f+2*m+1}")
        a(f"buffer_store_dwordx4 v[{32+4*f}:{35+4*f}], {vO[f]}, {Sout}, 0 offen {o.outflag}".rstrip())

def tail_and_slow(o, nst):
    T = []; a = T.append
    reduce_tail(o, a, nst); nst += 1
    if int(o.stamps):
        a(f"s_memrealtime s[{64+2*nst}:{65+2*nst}]"); a("s_waitcnt vmcnt(0)")
        a(f"s_memrealtime s[{66+2*nst}:{67+2*nst}]"); a("s_waitcnt lgkmcnt(0)")
        a("s_cmp_lg_u32 s3, 0"); a("s_cbranch_scc1 Lend")
        if o.enc:
            ea, eb = [int(z) for z in o.enc.split(",")]
            a("s_cmp_lg_u32 s2, 100"); a("s_cbranch_scc1 Lnoenc")
            a(f"s_sub_u32 s52, s{64+2*eb}, s{64+2*ea}"); a("s_mul_i32 s52, s52, 10"); a("s_min_u32 s52, s52, 200000"); a("s_add_u32 s52, s52, 500")
            a("Lspin:"); a("s_memrealtime s[46:47]"); a("s_waitcnt lgkmcnt(0)"); a(f"s_sub_u32 s46, s46, s{66+2*nst}")
            a("s_cmp_lt_u32 s46, s52"); a("s_cbranch_scc1 Lspin"); a("Lnoenc:")
        a("s_load_dwordx2 s[40:41], s[0:1], 56"); a("s_mov_b32 s42, 0x10000000"); a("s_mov_b32 s43, 0x20000"); a("s_waitcnt lgkmcnt(0)")
        a(f"s_lshl_b32 s52, s2, 6"); a(f"s_add_u32 s52, s52, {STAMP_OFF}"); a("v_mov_b32 v1, s52")
        a("s_mov_b64 exec, 1")
        assert nst + 2 <= 16
        for n in range(nst + 2):
            a(f"v_mov_b32 v2, s{64+2*n}"); a(f"buffer_store_dword v2, v1, s[40:43], 0 offen offset:{4*n}")
    a("Lend:"); a("s_endpgm")
    a("Lrdy_spin:"); a("s_mov_b32 s63, 0"); a("Lrdy_loop:")
    a(f"buffer_load_dword {vRdy}, {vRdA}, {Sdbg}, 0 offen sc1"); a("s_add_u32 s63, s63, 1"); a("s_waitcnt vmcnt(0)")
    a(f"v_cmp_gt_u32 vcc, 16, {vRdy}"); a("s_cmp_lt_u32 s63, 0x40000"); a("s_cselect_b64 vcc, vcc, 0")
    a("s_cbranch_vccnz Lrdy_loop"); a("s_branch Lrdy_back")
    a("Lslow:"); a("s_waitcnt vmcnt(0) lgkmcnt(0)"); a("s_nop 7"); a("s_barrier")
    a("v_mbcnt_lo_u32_b32 v0, -1, 0"); a("v_mbcnt_hi_u32_b32 v0, -1, v0")
    a("v_and_b32 v1, 15, v0"); a("v_lshlrev_b32 v1, 8, v1"); a("v_lshrrev_b32 v2, 4, v0"); a("v_lshl_add_u32 v1, v2, 4, v1")
    a("s_lshl_b32 s52, s48, 17"); a("s_add_u32 s52, s52, 128"); a("s_lshl_b32 s53, s49, 6"); a("s_add_u32 s62, s52, s53")
    a("v_add_u32 v2, s62, v1"); a("s_xor_b32 s53, s53, 64"); a("s_add_u32 s62, s52, s53"); a("v_add_u32 v3, s62, v1")
    for b in range(5): a(f"v_mov_b32 v{8+b}, 0xff800000")
    a("s_mov_b32 s45, 0"); a("Lslow_loop:")
    for t in range(4): a(f"buffer_load_dwordx4 v[{16+4*t}:{19+4*t}], v{2+(t&1)}, {Sk}, s45 offen offset:{128*(t>>1)}")
    a("s_waitcnt vmcnt(0)")
    for b in range(5):
        for t in range(4):
            a(f"v_mfma_f32_16x16x32_bf16 {NM(b)}, v[{16+4*t}:{19+4*t}], {QF(b,t)}, {0 if t == 0 else NM(b)}")
    a("s_nop 7"); a("s_nop 1")
    for b in range(5):
        n = NM(b); a(f"v_max3_f32 v{8+b}, v{8+b}, {n[0]}, {n[1]}"); a(f"v_max3_f32 v{8+b}, v{8+b}, {n[2]}, {n[3]}")
    a("s_add_u32 s45, s45, 4096"); a("s_cmp_lt_u32 s45, 131072"); a("s_cbranch_scc1 Lslow_loop")
    for b in range(5): a(f"v_accvgpr_write_b32 {SAV(b)}, v{8+b}")
    a("s_load_dwordx16 s[4:19], s[0:1], 0"); a("s_mov_b32 s54, 1"); a("s_branch Lrestart"); a("Lcode_end:")
    return T

KD = """.amdhsa_kernel {name}
  .amdhsa_next_free_vgpr {vg}
  .amdhsa_next_free_sgpr {sg}
  .amdhsa_accum_offset {acc}
  .amdhsa_group_segment_fixed_size 0
  .amdhsa_kernarg_size 64
  .amdhsa_user_sgpr_count 2
  .amdhsa_user_sgpr_kernarg_segment_ptr 1
  .amdhsa_system_sgpr_workgroup_id_x 1
  .amdhsa_float_denorm_mode_32 3
.end_amdhsa_kernel"""

def generate(o):
    hdr = [l.rstrip("\n") for l in open(f"cdna_kernels/{NAME}.s.ref") if l.startswith(";") and "@launch" not in l and "grid=" not in l and "Override" not in l]
    seq, nst = build_main(o)
    L = hdr + [f"; @launch grid=(256,1,1) block=(256,1,1) lds={LDSB}", '.amdgcn_target "amdgcn-amd-amdhsa--gfx950"', ".text",
               f".globl {NAME}_kernel", ".p2align 8", f".type {NAME}_kernel,@function", f"{NAME}_kernel:"]
    L += [i.text for i in seq] + tail_and_slow(o, nst)
    L += ['.section .rodata,"a"', ".p2align 6", KD.format(name=f"{NAME}_kernel", vg=512, sg=102, acc=256)]
    txt = "\n".join(L) + "\n"
    if int(o.clk): txt = txt.replace("s_memrealtime", "s_memtime")
    return txt

if __name__ == "__main__":
    o = Opt()
    for kv in sys.argv[2:]:
        k, v_ = kv.split("=", 1)
        assert hasattr(Opt, k), k
        setattr(o, k, v_)
    open(sys.argv[1], "w").write(generate(o))
```

```python
import sys, math, struct
from dsl import *

NAME = "standalone__mha_block_cached__near_ridge"
US, GRP, PS = 17024, 4224, 1056
X9 = 9 * US
FLAG = X9 + 8448
LDSB = 163840
PART = 147456
STAMP_OFF = 0x4000000
MBOFF = 256 * PART
def fbits(x): return struct.unpack("<I", struct.pack("<f", x))[0]
CSC = fbits(math.log2(math.e) / math.sqrt(128.0))
THR = fbits(2.0 ** 40)

Smb, Sred, Sout, Sdbg = S(4, 4), S(8, 4), S(12, 4), S(16, 4)
Sx, Swq, Sk, Sv, Swo, Sws = S(20, 4), S(24, 4), S(28, 4), S(32, 4), S(36, 4), S(40, 4)
sW, sGrp, sOff, sC, sGrP, sHH, sQH, sB, sJ = S(3), S(44), S(45), S(46), S(47), S(48), S(49), S(50), S(51)
sT0, sT1, sMode, sX9, sT3, sOw0, sOw1, sA8, sB8, sSt, sT2, sAt = [S(n) for n in range(52, 64)]
sRx, sRw = S(96), S(97)
sCc = S(55)
sRk = S(47)
sP = lambda p: S(98 + p)
ACC = lambda b, f: V(32 * b + 4 * f, 4)
QF = lambda b, t: (V(128 + 16 * b + 4 * t, 4) if b < 4 else A(180 + 4 * t, 4))
SB = lambda k: V(192 + 8 * k, 8)
PB = lambda k: V((208, 212, 248)[k], 4)
NM = lambda b: V(216 + 4 * b, 4)
Kr = lambda y, p: V(236 + 2 * y + p)
Vr = lambda y, hf: V(240 + 2 * y + hf)
vKV = lambda pp: V(244 + pp)
vL16, vTs, vT0, vT1 = V(252), V(253), V(254), V(255)
qWr = lambda win, p: V(216 + 2 * win + p)
qXr = lambda win: V(220 + win)
qX9r = V(222)
qWd = lambda pp: V(225 + pp)
qXd = lambda pp: V(229 + pp)
qX9d, qA8, qB8 = V(233), V(234), V(235)
KF = lambda y, h, t: A(32 * y + 16 * h + 4 * t, 4)
VF = lambda e, y, d: A((96 if y else (64, 200)[e & 1]) + 4 * d, 4)
O9 = lambda d: A(128 + 4 * d, 4)
LS = lambda b: A(160 + 4 * b, 4)
ONES = A(196, 4)
SAV = lambda b: A(248 + b)
aWpat, aWo0 = A(253), A(254)
Aq = lambda fp, kk: A(96 + 8 * fp + 4 * kk, 4)
Bq = lambda I_, kk, b: A((128, 200)[I_ & 1] + 16 * kk + 4 * b, 4)
B9 = lambda I_, kk: A(232 + 8 * (I_ & 1) + 4 * kk, 4)
SEQ = [(I_, h) for I_ in range(6) for h in range(2)] + [(6, 0), (7, 0), (6, 1), (7, 1)]
WQU = {4: 1, 5: 4, 0: 5, 1: 3, 2: 6, 3: 8}
XU = {2: 0, 0: 2, 1: 7}
KVU = lambda slot: (2 * slot, 2 * slot + 1, 4 + 2 * slot, 5 + 2 * slot)
WOU = {0: (0, 1, 4, 5), 1: (2, 3, 0, 1), 2: (4, 5, 2, 3), 3: (0, 1, 6, 7)}
Ao = lambda p, ks, u: A(64 * (p & 1) + 32 * u + 4 * ks, 4)
QB = [0, 4, 1, 5, 2, 6, 3, 7, 8]
def Bo(qb, ks):
    if qb < 4: return V(32 * qb + 4 * ks, 4)
    if qb == 4: return A(232 + 4 * ks if ks < 6 else 192 + 4 * (ks - 6), 4)
    if qb == 6: return V(128 + 4 * ks, 4)
    return A({5: 200, 7: 160, 8: 128}[qb] + 4 * ks, 4)
TR, B128 = "ds_read_b64_tr_b16", "ds_read_b128"
sG, sGo = S(96), S(97)
vSt3, vOwn, vOwr = V(232), V(233), V(234)
vF, vOne, vRdy, vPo, vR, vRdA, vO, SEL = V(220), V(221), V(222), V(223), V(224, 3), V(227), V(228, 3), V(160, 8)

class Opt:
    stamps = 0; clk = 0; enc = None; xst = ""; qst = ""; abl = ""
    kvflag = "nt"; stflag = "sc1"; outflag = ""
    qseq = ("x0,n0,w0,w1|p1,x1,w2,w3,p4,x2,n1,w4,p9,w5,p3.6,x3,w6,w7,t2,x4,n2,w8,w9,x5,w10,w11,x6,n3,w12,x7,w13,w14,w15,"
            "p2,s0,s1,c0,s2,p6,s3,k0,k1,p9,k2,k3")
    bal = '(8,14)'; winlo = 4; winhi = 6; hx = 'h'; asym = 0; lpf = 0; tflag = ''; rot = 2; rsh = 1; cpf = 3
    ashift = 0; win = 5; winfrom = 2; astep0 = 10.4; astep = 10.4; astep4 = 10.4; astep5 = 10.4; wostep = 8; wo0a = 0; wo0o = 1; wostep2 = 3; wot = -1; drain = 1; ostep = 4
    vmgap = 2; dswgap = 4; maxmem = 1; wiso = 1; hor = 40; lead = 8; w64 = 0
    sepv = 3; bvo = 14; bv7 = 56; bk0 = 20; ba0 = 0; bb0 = 0; bao = 0; bbo = 20; bb7 = 14; ate = 2; merge = 1; ts = 3; fb = 0; bko1 = 14; byo = 12; hold = 0; lflag = 'sc1'; l3flag = 'sc1'; rflag = 'sc1'; r0in = 0; r0o = 12; r0step = 7; swin = 0; rwin = 0; fl3 = 2; polli = 2; b1o = 14; bko = 11; bdo = 100; flo = 104; pollo = 36; wo1o = 70; ostep0 = 6; ostep1 = 2; ostep2 = 5; ostep3 = 7
    def __getattr__(s, k): raise AttributeError(k)

def setoff(soff):
    if isinstance(soff, tuple):
        r, add, mask = soff
        if mask == "x": return [salu("s_xor_b32", sOff, r, add)]
        return [salu("s_add_u32", sOff, r, add)] + ([salu("s_and_b32", sOff, sOff, mask)] if mask else [])
    return [salu("s_mov_b32", sOff, soff)]
def group(unit_off, base, voff, srd, soff, flags, tag):
    return [salu("s_add_u32", "m0", base, unit_off)] + setoff(soff) + [dma(voff(pp), srd, sOff, PS * pp, flags, tag) for pp in range(4)]
def g_wq(j): return group(WQU[j % 6] * US, sGrp, qWd, Swq, (sRw, SEQ[j][0] * 524288 + SEQ[j][1] * 128, 0x3fffff), "", f"wq{j}")
def g_x(I_): return group(XU[I_ % 3] * US, sGrp, qXd, Sx, (sRx, I_ * 128, 1023), "", f"x{I_}")
def g_x9(n): return [salu("s_add_u32", "m0", sX9, X9 + (n & 1) * GRP)] + setoff((sRx, n * 256, 1023)) + [dma(qX9d, Sx, sOff, 0, "", f"xn{n}")]
def g_kv(e, part, o):
    kv, half = part >> 1, part & 1
    ops = group(KVU(e & 1)[part] * US, sGrp, vKV, (Sk, Sv)[kv], (sRk, e * 16384 + half * 4096, "x"), o.kvflag, f"{'kv'[kv]}{e}")
    if int(o.win) and e >= int(o.winfrom):
        for x in ops:
            if x.kind != "dma": continue
            if 4 * e + part in range(*eval(o.bal)):
                g_kv.n = getattr(g_kv, "n", 0) + 1
                x.text = f"s_cbranch_vccz Lw{g_kv.n}\ns_waitcnt vmcnt({int(o.winlo)-1})\nLw{g_kv.n}:\ns_waitcnt vmcnt({int(o.winhi)-1})\n" + x.text
            else: x.text = f"s_waitcnt vmcnt({int(o.win)-1})\n" + x.text
    return ops
def g_wo(p, hf): return sum((group(WOU[p][part] * US, sGrp, vKV, Swo, (sP(p), part * 65536, 0), "", f"wo{p}{'ab'[hf]}") for part in (2 * hf, 2 * hf + 1)), [])
def w128(o, addr, data, off):
    if not int(o.w64): return [dsw("ds_write_b128", addr, data, off)]
    return [dsw("ds_write_b64", addr, (data[0].sub(2 * z, 2), data[1]), off + 8 * z) for z in range(2)]

def qtok(tok, o):
    c, n = tok[0], int(tok[1:])
    if c == "w": return g_wq(n), n - 6
    if c == "x": return g_x(n), 2 * (n - 3)
    if c == "n": return g_x9(n), (4 * (n - 2) + 2 if n >= 2 else -1)
    if c == "c": return code_touch(V(254, 2), vTs, vL16, shift=3), -1
    if c == "t":
        ops = [salu("s_bfe_u32", sT0, sB, (1 << 16) | 1), salu("s_lshl_b32", sT0, sT0, 24),
               valu("v_mul_u32_u24", vT0, 7, vL16), valu("v_add3_u32", vT0, vT0, vKV(0), sT0)] + (setoff(16384) if n > 2 else [])
        return ops + [I(f"buffer_load_dword {vTs}, {vT0}, {(Sk, Sv)[z & 1]}, {sOff if z >> 1 else 0} offen", "vml", rd=[vT0, sOff], tag="ct") for z in range(n)], -1
    if c == "s": return g_kv(0, n, o), (10, 10, 11, 12)[n]
    if c == "k": return g_kv(1, n, o), (12, 13, 14, 14)[n]
    raise ValueError(tok)

def code_touch(va, vd, lane, shift, tid=False):
    n = code_touch.n = getattr(code_touch, "n", 0) + 1
    return [valu("v_lshlrev_b32", va[0], shift, lane)] + ([] if tid else [salu("s_lshl_b32", sT0, sW, 13), valu("v_add_u32", va[0], sT0, va[0])]) + [
            raw(f"s_getpc_b64 s[52:53]\nLpc{n}:", wr=[sT0, sT1], kind="salu"),
            raw(f"v_min_u32 {va[0]}, Lcode_end-Lpc{n}-4, {va[0]}", rd=[va[0]], wr=[va[0]], kind="valu"),
            valu("v_mov_b32", va[1], 0),
            raw(f"v_lshl_add_u64 {va}, {va}, 0, s[52:53]", rd=[va, sT0, sT1], wr=[va], kind="valu"),
            I(f"global_load_dword {vd}, {va}, off", "vml", rd=[va], wr=[], tag="ct")]

def prologue(o):
    P = []; a = P.append
    v = lambda n: V(n)
    a(raw("s_cmp_ge_u32 s2, 256")); a(raw("s_cbranch_scc1 Lend"))
    a(raw("s_load_dwordx16 s[4:19], s[0:1], 0"))
    if int(o.stamps): a(raw("s_memrealtime s[64:65]"))
    a(valu("v_lshrrev_b32", v(1), 6, v(0)))
    if int(o.cpf): P += code_touch(V(8, 2), vTs, v(0), shift=int(o.cpf) + 3, tid=True)
    a(valu("v_readfirstlane_b32", sW, v(1)))
    a(valu("v_mov_b32", v(2), "0xff800000")); a(salu("s_mov_b32", sMode, 0))
    for b in range(5): a(valu("v_accvgpr_write_b32", SAV(b), v(2)))
    a(raw("Lrestart:", kind="label"))
    L, t1, t2, t3, t4, t5, t6 = v(0), v(1), v(2), v(3), v(4), v(5), v(6)
    a(valu("v_mbcnt_lo_u32_b32", L, -1, 0)); a(valu("v_mbcnt_hi_u32_b32", L, -1, L))
    a(salu("s_and_b32", sT0, S(2), 1)); a(salu("s_bfe_u32", sT1, S(2), (3 << 16) | 3)); a(salu("s_lshl3_add_u32", sB, sT0, sT1))
    a(salu("s_bfe_u32", sT0, S(2), (2 << 16) | 1)); a(salu("s_lshr_b32", sT1, S(2), 6)); a(salu("s_lshl2_add_u32", sJ, sT0, sT1))
    a(salu("s_lshr_b32", sHH, sW, 1)); a(salu("s_and_b32", sQH, sW, 1))
    a(salu("s_mul_i32", sGrp, sW, GRP)); a(salu("s_mul_i32", sX9, sW, PS))
    a(salu("s_add_u32", sT3, sB, sJ)); a(salu("s_lshl_b32", sT0, sT3, 0 if int(o.asym) else int(o.rsh))); a(salu("s_and_b32", sT0, sT0, int(o.rot)))
    a(salu("s_lshl_b32", sRx, sT0, 8)); a(salu("s_lshl_b32", sRw, sT0, 20))
    a(valu("v_and_b32", t1, 7, L)); a(valu("v_lshlrev_b32", t1, 4, t1))
    a(valu("v_lshrrev_b32", t2, 3, L)); a(valu("v_lshl_add_u32", t3, t2, 12, t1))
    a(salu("s_lshl_b32", sT0, sW, 15)); a(salu("s_add_u32", sT0, sT0, 128))
    a(valu("v_add_u32", qXd(0), sT0, t3))
    for pp in range(1, 4): a(valu("v_subrev_u32", qXd(pp), 32 * pp, qXd(0)))
    a(valu("v_and_b32", t4, 3, t2)); a(valu("v_lshl_add_u32", t3, t4, 12, t1))
    a(valu("v_lshrrev_b32", t2, 5, L)); a(valu("v_lshl_add_u32", t3, t2, 7, t3))
    a(salu("s_lshl_b32", sT0, sW, 10)); a(salu("s_add_u32", sT0, sT0, 128 * 1024 + 128))
    a(valu("v_add_u32", qX9d, sT0, t3))
    a(valu("v_lshl_add_u32", t3, t4, 16, t1)); a(valu("v_lshl_add_u32", t3, t2, 15, t3))
    a(salu("s_lshl_b32", sT0, sQH, 18)); a(salu("s_lshl_b32", sT1, sHH, 8)); a(salu("s_add_u32", sT0, sT0, sT1))
    a(valu("v_add_u32", qWd(0), sT0, t3))
    for pp in range(1, 4): a(valu("v_add_u32", qWd(pp), (8192 - PS) * pp, qWd(0)))
    a(salu("s_mov_b32", Sx[2], PART + 128)); a(salu("s_mov_b32", Sx[3], "0x20000")); a(salu("s_mov_b32", Swq[3], "0x20000"))
    a(salu("s_mul_i32", sT2, sB, PART)); a(salu("s_lshl_b32", sT1, sJ, 9)); a(salu("s_sub_u32", Swq[2], 4194304, sT1))
    a(raw("s_waitcnt lgkmcnt(0)"))
    def base(srd, ptr, off, shift=0, size=None):
        a(salu("s_add_u32", srd[0], S(ptr), off)); a(salu("s_addc_u32", srd[1], S(ptr + 1), 0))
        if shift:
            a(salu("s_sub_u32", srd[0], srd[0], shift)); a(salu("s_subb_u32", srd[1], srd[1], 0))
        if size: a(salu("s_mov_b32", srd[2], size + shift)); a(salu("s_mov_b32", srd[3], "0x20000"))
    base(Sx, 4, sT2, 128); base(Swq, 10, sT1)
    if int(o.asym):
        a(raw("s_bitcmp1_b32 s56, 0")); a(raw("s_cbranch_scc0 Lnotouch"))
        a(salu("s_and_b32", sT0, sB, 14)); a(salu("s_lshl4_add_u32", sT0, sT0, sJ)); a(salu("s_lshl_b32", sT0, sT0, 18))
        base(Sk, 6, sT0, 0, 4194304 + 262144)
        if int(o.asym) > 2: base(Sv, 8, sT0, 0, 4194304 + 262144)
        a(salu("s_lshl4_add_u32", sT0, sHH, sQH)); a(salu("s_lshl_b32", sT0, sT0, 13)); a(valu("v_lshl_add_u32", t3, L, 7, sT0))
        a(salu("s_mov_b32", sOff, 4194304))
        for n in range(int(o.asym)):
            if int(o.asym) == 3 and n == 2:
                a(valu("v_lshrrev_b32", t1, 5, L)); a(valu("v_mul_u32_u24", t1, 4194304 - 4096, t1)); a(valu("v_add_u32", t3, t3, t1))
            a(raw(f"buffer_load_dword {vTs}, {t3}, {(Sk, Sv)[n >> 1]}, {sOff if n & 1 else 0} offen {o.tflag}".rstrip(), rd=[t3], kind="vml"))
        a(raw("Lnotouch:", kind="label"))
    lin = []
    if int(o.lpf):
        a = lin.append
        base(Sk, 4, 0, 0, 16 * PART); base(Sv, 10, 0, 0, 4194304)
        a(salu("s_lshl2_add_u32", sT0, S(2), sW)); a(salu("s_mul_i32", sT1, sT0, 2304)); a(salu("s_lshl_b32", sT0, sT0, 12))
        a(valu("v_min_u32", t1, 17, L)); a(valu("v_lshl_add_u32", t1, t1, 7, sT1)); a(valu("v_lshl_add_u32", t3, L, 6, sT0))
        a(I(f"buffer_load_dword {vTs}, {t3}, {Sv}, 0 offen", "vml", rd=[t3], tag="ct"))
        a(I(f"buffer_load_dword {vTs}, {t1}, {Sk}, 0 offen", "vml", rd=[t1], tag="ct"))
    first = []
    for n, tok in enumerate(o.qseq.split("|")[0].split(",")):
        if n == int(o.lpf) - 1: first += lin
        first += qtok(tok, o)[0]
    Q = []; a = Q.append
    a(salu("s_lshl4_add_u32", sT1, sB, sJ))
    a(salu("s_lshl_b32", sT0, sT1, 18)); base(Sk, 6, sT0, 128, 262144); base(Sv, 8, sT0, 128, 262144)
    a(salu("s_mul_i32", sT0, sT1, PART)); base(Sws, 18, sT0, 0, PART)
    a(salu("s_lshl_b32", sT0, sJ, 18)); base(Swo, 12, sT0, 128, 262144)
    base(Sout, 14, sT2, 0, PART)
    a(salu("s_lshl_b32", sT0, sT2, 4)); base(Sred, 18, sT0, 0, 16 * PART)
    a(salu("s_lshl_b32", sT0, sB, 15)); a(salu("s_add_u32", sT0, sT0, MBOFF)); base(Smb, 18, sT0, 0, 32768)
    a(salu("s_mov_b32", Sdbg[2], 256)); a(salu("s_mov_b32", Sdbg[3], "0x20000"))
    a(salu("s_mov_b32", sC, hex(CSC))); a(raw("s_bitcmp1_b32 s50, 1")); a(raw("s_cselect_b64 vcc, -1, 0"))
    a(salu("s_lshr_b32", sT3, sJ, 2)); a(salu("s_lshl_b32", sT0, sB, int(o.fb))); a(salu("s_sub_u32", sT3, sT3, sT0))
    for p in range(4): a(salu("s_add_u32", sT0, sT3, (p - int(o.ts)) & 3)); a(salu("s_and_b32", sT0, sT0, 3)); a(salu("s_lshl_b32", sP(p), sT0, 8))
    a(salu("s_and_b32", sT0, sT3, 3)); a(salu("s_and_b32", sT1, sJ, 3)); a(salu("s_lshl2_add_u32", sT3, sT0, sT1))
    a(valu("v_and_b32", t1, 15, L)); a(valu("v_lshlrev_b32", t1, 4, t1))
    a(valu("v_lshrrev_b32", t5, 4, L))
    a(salu("s_add_u32", sT0, sW, sMode)); a(salu("s_lshl4_add_u32", sAt, sT0, sB)); a(salu("s_lshl_b32", sAt, sAt, 4))
    a(salu("s_lshl_b32", sT0, sMode, 6)); a(salu("s_add_u32", sT0, sT0, sW)); a(salu("s_lshl_b32", sT0, sT0, 9))
    a(valu("v_lshl_add_u32", t6, L, 3, sT0)); a(salu("s_lshl_b32", sOff, sT3, 11)); a(valu("v_mov_b64", V(8, 2), 0))
    a(vstore(V(8, 2), t6, Smb, sOff, 0, "sc1", tag="mbz", op="buffer_store_dwordx2"))
    a(valu("v_lshl_add_u32", t3, t5, 13, t1))
    a(salu("s_lshl_b32", sT0, sHH, 15)); a(salu("s_lshl_b32", sT1, sQH, 12)); a(salu("s_add_u32", sT0, sT0, sT1))
    a(salu("s_add_u32", sT0, sT0, 128)); a(valu("v_add_u32", t3, sT0, t3)); a(valu("v_accvgpr_write_b32", aWo0, t3))
    a(valu("v_lshlrev_b32", vL16, 4, L))
    a(salu("s_lshl_b32", sT0, sHH, 17)); a(salu("s_lshl_b32", sT1, sQH, 13)); a(salu("s_add_u32", sT0, sT0, sT1))
    a(salu("s_add_u32", sT0, sT0, 128)); a(valu("v_add_u32", vKV(0), sT0, vL16))
    for pp in range(1, 4): a(valu("v_subrev_u32", vKV(pp), 32 * pp, vKV(0)))
    a(salu("s_xor_b32", sT0, sW, 1)); a(salu("s_mul_i32", sGrP, sT0, GRP))
    a(salu("s_add_u32", sA8, sGrp, 8 * US)); a(salu("s_add_u32", sB8, sGrP, 8 * US))
    a(valu("v_add_u32", qA8, sA8, vL16)); a(valu("v_add_u32", qB8, sB8, vL16))
    a(valu("v_and_b32", t1, 3, L)); a(valu("v_mul_u32_u24", t1, PS, t1)); a(valu("v_lshl_add_u32", t1, t5, 4, t1))
    a(valu("v_bfe_u32", t3, L, 2, 2)); a(valu("v_lshl_add_u32", t3, t3, 7, t1))
    a(valu("v_add_u32", qX9r, X9, t3))
    a(salu("s_mul_i32", sT0, sQH, 2 * GRP)); a(valu("v_add_u32", qXr(0), sT0, t3))
    a(valu("v_add_u32", qXr(1), 7 * US, qXr(0)))
    a(valu("v_bfe_u32", t3, L, 2, 1)); a(valu("v_mul_u32_u24", t3, US, t3)); a(valu("v_add_u32", t1, t1, t3))
    a(valu("v_bfe_u32", t3, L, 3, 1)); a(valu("v_lshl_add_u32", t1, t3, 8, t1))
    a(salu("s_lshl_b32", sT0, sQH, 6)); a(salu("s_xor_b32", sT1, sT0, 64))
    a(valu("v_add_u32", t3, sT0, t1)); a(valu("v_add_u32", t6, sT1, t1))
    a(valu("v_add_u32", Kr(0, 0), sGrp, t3)); a(valu("v_add_u32", Kr(0, 1), sGrp, t6))
    a(valu("v_add_u32", Kr(1, 0), sGrP, t3)); a(valu("v_add_u32", Kr(1, 1), sGrP, t6))
    a(valu("v_bfe_u32", t1, L, 2, 2)); a(valu("v_mul_u32_u24", t1, PS, t1))
    a(valu("v_and_b32", t3, 1, L)); a(valu("v_lshl_add_u32", t6, t3, 4, t1))
    a(valu("v_bfe_u32", t3, L, 1, 1)); a(valu("v_lshl_add_u32", t6, t3, 3, t6))
    a(valu("v_lshl_add_u32", t3, t5, 7, t6))
    a(salu("s_mul_i32", sT2, sHH, 2 * GRP)); a(salu("s_add_u32", sT2, sT2, US)); a(valu("v_add_u32", t3, sT2, t3))
    a(valu("v_add_u32", qWr(0, 0), sT0, t3)); a(valu("v_add_u32", qWr(0, 1), sT1, t3))
    a(valu("v_add_u32", qWr(1, 0), 4 * US, qWr(0, 0))); a(valu("v_add_u32", qWr(1, 1), 4 * US, qWr(0, 1)))
    a(valu("v_and_b32", t4, 1, t5))
    a(valu("v_lshl_add_u32", t6, t2, 8, t6)); a(valu("v_mul_u32_u24", t3, GRP, t4)); a(valu("v_add_u32", t6, t6, t3))
    a(salu("s_lshl_b32", sT2, sW, 6)); a(valu("v_add_u32", t6, sT2, t6)); a(valu("v_accvgpr_write_b32", aWpat, t6))
    a(valu("v_lshl_add_u32", t1, t2, 8, t1)); a(valu("v_and_b32", t3, 3, L)); a(valu("v_lshl_add_u32", t1, t3, 3, t1))
    a(valu("v_mul_u32_u24", t3, US, t4)); a(valu("v_add_u32", t1, t1, t3)); a(valu("v_add_u32", t1, 4 * US, t1))
    a(salu("s_lshl_b32", sT0, sT0, 1)); a(salu("s_lshl_b32", sT1, sT1, 1))
    a(valu("v_add_u32", t3, sT0, t1)); a(valu("v_add_u32", t6, sT1, t1))
    a(valu("v_add_u32", Vr(0, 0), sGrp, t3)); a(valu("v_add_u32", Vr(0, 1), sGrp, t6))
    a(valu("v_add_u32", Vr(1, 0), sGrP, t3)); a(valu("v_add_u32", Vr(1, 1), sGrP, t6))
    a(salu("s_and_b32", sRk, {"h": sHH, "b": sB, "0": 0}[o.hx], 1)); a(salu("s_lshl_b32", sRk, sRk, 12))
    a(salu("s_lshl1_add_u32", sT2, sQH, sHH)); a(salu("s_lshl_b32", sT2, sT2, 12)); a(salu("s_add_u32", sT2, sT2, 6 * US))
    a(salu("s_lshl4_add_u32", sOw0, sT0, sT2)); a(salu("s_lshl4_add_u32", sOw1, sT1, sT2))
    a(valu("v_mov_b32", t1, "0x3f803f80"))
    for r in range(4): a(valu("v_accvgpr_write_b32", (ONES[r], "ones"), t1))
    return P, first, Q

def build_main(o):
    P, first, Q = prologue(o)
    sc = Sched(vmgap=int(o.vmgap), dswgap=int(o.dswgap), maxmem=int(o.maxmem), wiso=int(o.wiso), horizon=int(o.hor))
    F = sc.f
    nstamp = [1]
    def stamp(g, after=()):
        if int(o.stamps):
            n = nstamp[0]; nstamp[0] += 1
            F(raw(f"s_memrealtime s[{64+2*n}:{65+2*n}]"), g, g, after=after)
    nextvm = [0]
    def spread(ops, lo, step, q="dma", after=(), cap=None):
        out = []; pos = max(lo, nextvm[0]); pend = []
        for x in ops:
            pend.append(x)
            if x.kind in ("dma", "vml", "vms"):
                a_, b_ = int(pos), int(pos + step)
                if cap is not None: a_, b_ = min(a_, cap), min(b_, cap)
                for y in pend[:-1]: out.append(F(y, max(min(lo, b_), min(a_ - 3, b_)), b_, q=q, after=after))
                out.append(F(x, a_, b_, q=q, after=after)); pend = []
                if x.tag not in ('at', 'ct'): pos += step
        assert not pend
        nextvm[0] = pos
        return out
    cur = {}; lastrd = {}; firstrd = {}; lastwr = {}
    def M(d, dtag, a_, b_, c):
        cc = (d, cur[str(d)]) if c == "acc" else c
        i = mfma((d, dtag), a_, b_, cc); n = sc.m(i); cur[str(d)] = dtag
        for r, t in i.rd.items():
            lastrd[(r, t)] = n; firstrd.setdefault((r, t), n)
        lastwr[str(d)] = n
        return n
    lr = lambda reg, tag: max(lastrd[(r, tag)] for r in reg.regs())
    fr_ = lambda reg, tag: min(firstrd[(r, tag)] for r in reg.regs())
    for i in first + Q: F(i, -1, -1, q="dma")
    k0 = {}; qdone = {}
    for j, (I_, hf) in enumerate(SEQ):
        k0[j] = sc.n
        if j < 15: order = [(fp, b) for fp in range(4) for b in range(5) if b < 4 or fp < 2]
        else: order = [(fp, 4) for fp in range(2)] + [(fp, b) for b in range(4) for fp in range(4)]
        for fp, b in order:
            d = ACC(b, 4 * hf + fp) if b < 4 else SB(hf).sub(4 * fp, 4)
            for kk in range(2):
                bb = (Bq(I_, kk, b) if b < 4 else B9(I_, kk), f"x{I_}")
                n = M(d, "Qacc" if (I_, kk) == (7, 1) else f"q{I_}.{kk}", (Aq(fp, kk), f"w{j}"), bb, 0 if (I_, kk) == (0, 0) else "acc")
            qdone[str(d)] = n
    k0[16] = sc.n
    units = []; U = {}; G = {}; pre0 = {}; preL = {}
    P7 = {0: PB(0), 1: PB(1), 8: PB(2), 2: NM(0), 3: NM(4), 4: NM(1), 5: NM(2)}
    def pre(b):
        pre0[b] = sc.n
        for t in range(4): preL[b] = M(NM(b), f"pm{b}", (KF(0, 0, t), "k0"), (QF(b, t), f"Q{b}"), 0 if t == 0 else "acc")
    def qk(e, u):
        n = len(units); b, y = (u >> 1, u & 1) if u < 8 else (4, 0)
        s_ = SB(n & 1); p_ = PB(u % 3) if e < 7 else P7.get(u, s_.sub(0, 4))
        un = dict(e=e, u=u, b=b, y=y, S=s_, P=p_, n=n, q0=sc.n, hl=[0, 0])
        for h in range(2):
            for t in range(4):
                un["hl"][h] = M(s_.sub(4 * h, 4), f"s{n}", (KF(y, h, t), f"k{e}"), (QF(b, t), f"Q{b}"), (NM(b), f"nm{b}") if t == 0 else "acc")
        units.append(un); U[(e, u)] = un
    def pv(e, b, ds=range(-1, 8)):
        us = [U[(e, 2 * b)], U[(e, 2 * b + 1)]] if b < 4 else [U[(e, 8)]]
        g = G.setdefault((e, b), dict(p0=sc.n))
        for d in ds:
            acc = LS(b) if d < 0 else (ACC(b, d) if b < 4 else O9(d))
            for k, un in enumerate(us):
                a_ = (ONES, "ones") if d < 0 else (VF(e, un["y"], d), f"v{e}")
                g["pL"] = M(acc, f"o{e}.{k}" if k + 1 < len(us) else f"o{e}", a_, (un["P"], f"p{un['n']}"), 0 if e == 0 and k == 0 else "acc")
        for un in us: un["g"] = g
    st0 = {}
    for e in range(8):
        st0[e] = sc.n
        if e == 0: pre(0); pre(1)
        qk(e, 0); qk(e, 1)
        if e: pv(e - 1, 4)
        if e < 7:
            for b in range(1, 4):
                if e == 0: pre(b + 1)
                qk(e, 2 * b); qk(e, 2 * b + 1); pv(e, b - 1)
            qk(e, 8); pv(e, 3)
        else:
            for u in (8, 2, 3, 4, 5, 6, 7): qk(e, u)
            for b in (4, 0, 1, 2): pv(e, b, [-1])
            pv(e, 4, range(8)); pv(e, 3, [-1])
            for b in range(4): pv(e, b, range(8))
    attn_end = sc.n - 1
    odone = dict(lastwr)
    ou0 = {}; ouh = {}
    OU = [(p, qb) for p in range(4) for qb in QB]
    mg = int(o.merge)
    if mg:
        OU[:18] = [(0, 0), (0, 4), (0, 1), (0, 5), (1, 0), (1, 4), (0, 2), (0, 6), (1, 1), (1, 5), (0, 3), (0, 7), (1, 2), (1, 6), (0, 8), (1, 3), (1, 7), (1, 8)]
    for n, (p, qb) in enumerate(OU):
        if True:
            ou0[n] = sc.n
            for u in range(2):
                for ks in range(8):
                    ouh[(n, u)] = M(SB(n & 1).sub(4 * u, 4), f"r{n}", (Ao(p, ks, u), f"wo{p}"), (Bo(qb, ks), f"of{qb}"), 0 if ks == 0 else "acc")
    last = sc.n - 1
    ou0[36] = ou0[37] = last + 1
    def rdA(j, fp):
        u = WQU[j % 6]; win = 0 if u <= 4 else 1
        return [dsr(TR, (Aq(fp, kk).sub(2 * h, 2), f"w{j}"), qWr(win, fp >> 1), (u - 1 - 4 * win) * US + kk * GRP + 512 * h + 32 * (fp & 1))
                for kk in range(2) for h in range(2)]
    def rdB(I_):
        u = XU[I_ % 3]; win = 1 if u == 7 else 0
        l = [dsr(B128, (Bq(I_, kk, b), f"x{I_}"), qXr(win), (u - 7 * win) * US + (b >> 1) * GRP + (b & 1) * 512 + kk * 64)
             for b in range(4) for kk in range(2)]
        return l + [dsr(B128, (B9(I_, kk), f"x{I_}"), qX9r, ((I_ >> 1) & 1) * GRP + (I_ & 1) * 512 + kk * 64) for kk in range(2)]
    bpre = F(barrier(vm=("x0", "xn0", "wq0")), -1, -1, q="dma")
    stamp(-1, [bpre])
    l = rdB(0)
    prev = [F(x, -1, -1, q="lds", after=[bpre]) for x in rdA(0, 0) + l[:6]]
    prev += [F(x, -1, 7, q="lds", after=[bpre]) for x in l[6:] + rdA(0, 1) + rdA(0, 2) + rdA(0, 3)]
    BQ = {}
    for j in range(16):
        g = k0[j] + (14 if j == 0 else 9)
        nI = SEQ[j + 1][0] if j < 15 and SEQ[j + 1][1] == 0 else None
        vm = []
        if j < 15: vm.append(f"wq{j+1}")
        if nI is not None: vm += [f"x{nI}", f"xn{nI//2}"]
        if j == 10: vm = ["wq15", "all0"]
        bq = BQ[j] = F(barrier(vm=vm), g, g, after=prev)
        if o.qst and j in eval(o.qst): stamp(g, [bq])
        prev = []
        if j < 15:
            for fp in range(4):
                for x, kk in zip(rdA(j + 1, fp), (0, 0, 1, 1)):
                    lo = max(lr(Aq(fp, kk), f"w{j}"), g)
                    prev.append(F(x, lo, max(min(fr_(Aq(fp, kk), f"w{j+1}") - 6, k0[j + 1] + 3), lo), q="ldsA", after=[bq]))
        if nI is not None:
            for n, x in enumerate(rdB(nI)): prev.append(F(x, g, min(k0[j + 1] - 7 + n, k0[j + 1] + 2), q="ldsB", after=[bq]))
    step = 3.0; seen = set(o.qseq.split("|")[0].split(","))
    for tok in o.qseq.split("|")[1].split(","):
        if tok[0] == "@": nextvm[0] = max(nextvm[0], int(float(tok[1:]) * 36)); continue
        if tok[0] == "+": nextvm[0] += int(tok[1:]); continue
        if tok[0] == "p": step = float(tok[1:]); continue
        seen.add(tok)
        ops, dep = qtok(tok, o)
        spread(ops, BQ[dep].lo if dep >= 0 else 0, step, after=[BQ[dep]] if dep >= 0 else [])
    assert len([t for t in seen if t[0] not in "ct"]) == 16 + 8 + 4 + 4 + 4, sorted(seen)
    stamp(k0[15])
    if o.xst:
        for g_ in eval(o.xst): stamp(g_)
    def pack_q(src, dst, tdst, hi):
        lo = min(max(qdone[str(src.sub(0, 4))], qdone[str(src.sub(4, 4))]) + 3, hi)
        ops = [valu("v_mul_f32", (src[m], "t"), sC, (src[m], "Qacc")) for m in range(8)]
        ops += [valu("v_cvt_pk_bf16_f32", (dst[m], "t2"), (src[2 * m], "t"), (src[2 * m + 1], "t")) for m in (0, 2, 1, 3)]
        ops += [swap("v_permlane32_swap_b32", (dst[m], "t2"), (dst[m + 2], "t2"), tdst, tdst) for m in range(2)]
        return [F(x, lo, hi, q="qe") for x in ops]
    q9w = []
    for hf in range(2):
        l = pack_q(SB(hf), PB(hf), "q9p", pre0[0] - 2)
        q9w.append(F(dsw("ds_write_b128", qA8, (PB(hf), "q9p"), 1024 * hf), BQ[15].lo, min(U[(0, 0)]["q0"] - 1, pre0[2] - 3 + int(o.ba0)), q="q9w", after=[l[-1], BQ[15]]))
        for t, b in ([(t, b) for t in (0, 1) for b in range(4)] if hf == 0 else [(t, b) for b in range(4) for t in (2, 3)]):
            pack_q(V(32 * b + 8 * t, 8), QF(b, t), f"Q{b}", pre0[b] - 1 + t)
    for b in range(5):
        n = NM(b); pm = f"pm{b}"; nm = f"nm{b}"; hi = fr_(n, nm) - 1
        ops = [valu("v_accvgpr_read_b32", vT1, SAV(b)),
               valu("v_max3_f32", n[0], (n[0], pm), (n[1], pm), vT1), valu("v_max3_f32", n[0], n[0], (n[2], pm), (n[3], pm)),
               valu("v_mov_b32", n[1], n[0]), swap("v_permlane32_swap_b32", n[0], n[1]), valu("v_max_f32", n[0], n[0], n[1]),
               valu("v_mov_b32", n[1], n[0]), swap("v_permlane16_swap_b32", n[0], n[1]),
               I(f"v_min_f32_e64 {n[0]}, -{n[0]}, -{n[1]}", "valu", rd=[n[0], n[1]], wr=[(n[0], nm)]),
               valu("v_mov_b32", (n[1], nm), (n[0], nm)), valu("v_mov_b64", (n.sub(2, 2), nm), (n.sub(0, 2), nm))]
        for x in ops: F(x, min(preL[b] + 3, hi), hi, q="nm")
    def rdK(e, y, lo, after, hi=10**9):
        out = []
        for h in range(2):
            for t in range(4):
                r = KF(y, h, t); l_ = max(lo, lr(r, f"k{e-1}")) if e else lo
                x = dsr(B128, (r, f"k{e}"), Kr(y, t & 1), (e & 1) * 2 * US + 512 * h + 128 * (t >> 1))
                out.append(F(x, l_, max(l_, min(fr_(r, f"k{e}") - 6, hi)), q=f"ldsK{y}", after=after))
        return out
    def rdV(e, y, lo, after, hi):
        out = []
        for d in range(8):
            r = VF(e, y, d); l_ = max(lo, lr(r, f"v{e-1}")) if e and y else lo
            for h in range(2):
                x = dsr(TR, (r.sub(2 * h, 2), f"v{e}"), Vr(y, d >> 2), (e & 1) * 2 * US + 512 * h + 32 * (d & 3))
                out.append(F(x, l_, max(l_, min(fr_(r, f"v{e}") - 6, hi)), q=f"ldsV{y}", after=after))
        return out
    BB = {}; wo0 = g_wo(0, 0) + g_wo(0, 1)
    for e in range(8):
        if e == 0:
            g = k0[16] - int(o.bk0)
            bk = F(barrier(vm=["k0"], lgkm=False), g, g, after=[BQ[15]])
            gv = pre0[2] - 1 + int(o.ba0)
            bv = F(barrier(vm=["v0"]), gv, gv, after=q9w + [bk])
            for t in range(4):
                F(dsr(B128, (QF(4, t), "Q4"), qB8 if t & 1 else qA8, 1024 * (t >> 1)), gv, pre0[4] - 6, q="ldsQ9", after=[bv])
        else:
            g = U[(e - 1, 8)]["q0"] - 1 - int(o.bao)
            sep = e == 7 or e >= int(o.sepv)
            bk = F(barrier(vm=[f"k{e}"] + ([] if sep else [f"v{e}"]), lgkm=False), g, g, after=[BB[e - 1]])
            bv, gv = bk, g
            if sep and e < 7:
                gv = st0[e] + int(o.bvo)
                bv = F(barrier(vm=[f"v{e}"], lgkm=False), gv, gv, after=[bk])
            if e == 7:
                gv = G[(7, 4)]["p0"] - 1 - int(o.bv7)
                bv = F(barrier(vm=["v7"], lgkm=False), gv, gv, after=[bk])
                stamp(gv, [bv])
        gb = G[(e, 0)]["p0"] + int(o.bbo) if e < 7 else G[(7, 4)]["p0"] + int(o.bb7)
        if e == 0 and int(o.bb0): gb = gv + int(o.bb0)
        rk = rdK(e, 0, g, [bk]) + rdK(e, 1, g, [bk])
        rv = rdV(e, 0, gv, [bv], gb - 5) + rdV(e, 1, gv, [bv], gb - 5)
        bb = BB[e] = F(barrier(), gb, gb, after=rk + rv)
        if e in (0, 3, 6): stamp(gb, [bb])
        ops = []
        if e < 6:
            for part in range(4): ops += g_kv(e + 2, part, o)
        if e == int(o.ate):
            ops += [valu("v_lshl_add_u32", vT0, vL16, 4, sAt), valu("v_mov_b32", vT1, 1),
                    vstore(vT1, vT0, Sdbg, 0, 0, "", tag="at", op="buffer_atomic_add")]
        if e == 3 and int(o.cpf): ops += code_touch(V(254, 2), vTs, vL16, shift=3)
        if e == int(o.wot):
            ops += [salu("s_and_b32", sT0, sB, 7), salu("s_lshl2_add_u32", sT0, sT0, sW), salu("s_lshl_b32", sT0, sT0, 13), salu("s_add_u32", sT0, sT0, 128),
                    valu("v_lshl_add_u32", vT0, vL16, 3, sT0), I(f"buffer_load_dword {vTs}, {vT0}, {Swo}, 0 offen", "vml", rd=[vT0], tag="ct")]
        nwo = len(wo0) // 4 * int(o.wo0a)
        wset = [valu("v_accvgpr_read_b32", vKV(0), aWo0)] + [valu("v_subrev_u32", vKV(pp), 32 * pp, vKV(0)) for pp in (1, 2, 3)]
        if e == 6:
            early = wset + wo0[:nwo] if nwo else []; done = 0; per = -(-4 * int(o.wo0a) // int(o.win))
            for n in range(int(o.win) - 1, -1, -1):
                g_ = int(nextvm[0])
                if int(o.drain): F(raw(f"s_waitcnt vmcnt({n + done})"), g_, g_ + 2, q="dma")
                idx = [k for k, x in enumerate(early) if x.kind == "dma"][:per]
                if idx:
                    spread(early[:idx[-1] + 1], g_ + 1, (float(o.astep) - 2) / per, after=[bb]); early = early[idx[-1] + 1:]; done += len(idx)
                nextvm[0] = g_ + float(o.astep)
            assert not early
        if e == 7: spread(([] if nwo else wset) + wo0[nwo:], gv + int(o.wo0o), float(o.wostep2), after=[bv] if int(o.wo0o) >= 0 else [BB[6]])
        if e == 7:
            bv.after += rk; assert max(fr_(KF(y, h, t), "k7") for y in range(2) for h in range(2) for t in range(4)) <= gv
            spread(g_wo(1, 0), gv + int(o.wo1o), float(o.ostep0), after=[bv])
        spread(ops, gb + (int(o.ashift) if e < 6 else 0), float({0: o.astep0, 4: o.astep4, 5: o.astep5, 6: o.wostep}.get(e, o.astep)), after=[bb])
    vA8, vLMw, vOw, vW, vB8, vLMr = Kr(0, 0), Kr(0, 1), (Kr(1, 0), Kr(1, 1)), (Vr(0, 0), Vr(0, 1)), Vr(1, 0), Vr(1, 1)
    vBr, vFl, vSt, vO9 = (PB(2)[0], PB(2)[1]), vLMw, vLMr, vB8
    g = U[(7, 8)]["q0"]; p7 = G[(7, 4)]["p0"]
    adr = [valu("v_bfe_u32", vLMw, vL16, 1, 7), valu("v_add_u32", vLMw, sA8, vLMw), dsw("ds_write_b32", vLMw, (NM(4)[0], "nm4"), 4096 + 4),
           valu("v_add_u32", vA8, sA8, vL16), valu("v_add_u32", vOw[0], sOw0, vL16), valu("v_add_u32", vOw[1], sOw1, vL16)]
    adr = [F(x, g, g + 12, q="adr", after=rk) for x in adr]
    BB[7].after.append(F(dsw("ds_write_b32", vLMw, (LS(4)[0], "o7"), 4096), p7 + 4, BB[7].lo - 2, q="adr"))
    adr2 = [valu("v_bfe_u32", vLMr, vL16, 1, 7), valu("v_add_u32", vLMr, sB8, vLMr),
            valu("v_accvgpr_read_b32", vW[0], aWpat), valu("v_add_u32", vW[1], 4 * US, vW[0]), valu("v_add_u32", vB8, sB8, vL16)]
    adr2 = [F(x, p7, BB[7].lo + 8, q="adr", after=rv) for x in adr2]
    lastP = {}
    for un in units:
        n, s_, p_ = un["n"], un["S"], un["P"]
        nx = units[n + 2]["q0"] if n + 2 < len(units) else 10**9
        pfree = -1; aft = []
        if str(p_) in lastP: pfree = lastP[str(p_)]["g"]["pL"]
        for b in range(5):
            if str(p_) == str(NM(b)): pfree = lr(p_, f"nm{b}") + 1
        if str(p_) == str(NM(4)): aft = [adr[2]]
        if n < 2: aft = q9w
        lastP[str(p_)] = un
        ex = []
        for j in range(8):
            hi = min(nx - 1 + 4 * (j >> 2), un["g"]["p0"] - 1); lo = min(un["hl"][j >> 2] + 3, hi)
            ex.append(F(trans("v_exp_f32", (s_[j], f"e{n}"), (s_[j], f"s{n}")), lo, max(lo, hi - 1), q="exp"))
        for m in range(4):
            hi = min(nx - 1 + 4 * (m >> 1), un["g"]["p0"] - 1)
            F(valu("v_cvt_pk_bf16_f32", (p_[m], f"p{n}"), (s_[2 * m], f"e{n}"), (s_[2 * m + 1], f"e{n}")),
              max(ex[2 * m + 1].lo, pfree), hi, q="cvt", after=[ex[2 * m + 1]] + aft)
    def rdAo(p, kss=range(8)):
        return [dsr(TR, (Ao(p, ks, u).sub(2 * h, 2), f"wo{p}"), vW[WOU[p][ks >> 1] >> 2],
                    (WOU[p][ks >> 1] & 3) * US + (ks & 1) * 2 * GRP + 512 * h + 32 * u)
                for u in range(2) for ks in kss for h in range(2)]
    fu = [OU.index((0, qb)) for qb in (0, 1, 2, 3, 8)]
    gB = [attn_end - int(o.b1o)] + [ou0[fu[k]] - int(o.bko1 if k == 1 and mg else o.bko) for k in range(1, 5)]
    pub = [[] for _ in range(5)]
    lm = NM(3)
    mr = [dsr("ds_read_b64", lm.sub(0, 2), vLMw, 4096), dsr("ds_read_b64", lm.sub(2, 2), vLMr, 4096)]
    mr = [F(x, BB[7].lo, BB[7].lo + 10, q="lm", after=[BB[7], adr2[1]]) for x in mr]
    ops = [valu("v_add_u32", vBr[1], 6 * US, vL16),
           salu("s_lshl_b32", sT0, sW, 2), valu("v_add_u32", vFl, sT0, vBr[1]), salu("s_lshl_b32", sT0, sW, 10), valu("v_add_u32", vSt, sT0, vL16),
           valu("v_sub_f32", lm[1], lm[1], lm[3]), trans("v_exp_f32", lm[1], lm[1]), valu("v_accvgpr_read_b32", vTs, (LS(0)[0], "o7")),
           valu("v_fma_f32", lm[0], lm[2], lm[1], lm[0]), trans("v_rcp_f32", lm[2], lm[0]),
           valu("v_add_f32", vTs, vTs, lm[0]), valu("v_mul_f32", lm[1], lm[1], lm[2])]
    for b in (1, 2, 3): ops += [valu("v_accvgpr_read_b32", lm[3], (LS(b)[0], "o7")), valu("v_add_f32", vTs, vTs, lm[3])]
    ops.append(dsw("ds_write_b32", vFl, vTs, FLAG - 6 * US))
    lsum = [F(x, max(BB[7].lo + 4, G[(7, 4)]["pL"], odone[str(LS(3))] + 4), gB[0] - 4, q="lm") for x in ops]
    pub[0] += lsum
    raww = [F(x, G[(7, 4)]["pL"] + 4, gB[0] - 4, q="ow", after=[adr[-1]]) for d in range(4) for x in w128(o, vA8, (O9(4 + d), "o7"), 1024 * d)]
    pub[0] += raww
    def norm_block(b):
        a32 = V(32 * b, 32); hi = gB[b] - 4
        ops = [valu("v_accvgpr_read_b32", vT1, (LS(b)[0], "o7")), trans("v_rcp_f32", vT0, vT1)]
        for x in ops: F(x, odone[str(LS(b))] + 4, hi, q="ep")
        for k in range(4):
            ops = [valu("v_mul_f32", (a32[8 * k + m], "n"), (a32[8 * k + m], "o7"), vT0) for m in range(8)]
            ops += [valu("v_cvt_pk_bf16_f32", (a32[8 * k + m], "of"), (a32[8 * k + 2 * m], "n"), (a32[8 * k + 2 * m + 1], "n")) for m in range(4)]
            lo = odone[str(ACC(b, 2 * k + 1))] + 3; hk = max(lo, hi - 4 * (3 - k))
            for x in ops: x = F(x, lo, hk, q="ep")
            for y in w128(o, vOw[k >> 1], (a32.sub(8 * k, 4), "of"), (b & 1) * US + (k & 1) * 1024):
                pub[b].append(F(y, max(lo, gB[b - 1]) if b >= 2 else lo, hk, q="ow", after=[x, BP[b - 1] if b >= 2 else BB[7]]))
    BP = [barrier(vm=v_) for v_ in (["wo0a", "wo0b"], ["wo1a"], [], [] if mg else ["wo1b"], ["wo2a", "wo2b"] if mg else [])]
    for b in range(4): norm_block(b)
    F(BP[0], gB[0], gB[0], after=pub[0])
    stamp(attn_end)
    rdA0 = []
    for x in rdAo(0):
        r = next(iter(x.wr)); rdA0.append(F(x, gB[0], max(gB[0], min(firstrd[(r, "wo0")] - int(o.lead), gB[1] - 3)), q="ldsK0", after=[adr2[-1], BP[0]]))
    fl = NM(0)
    fr = F(dsr(B128, fl, vBr[1], FLAG - 6 * US), gB[0], gB[0] + 1, q="ldsB", after=[BP[0]])
    chk = [valu("v_add_f32", fl[0], fl[0], fl[1]), valu("v_add_f32", fl[2], fl[2], fl[3]), valu("v_add_f32", fl[0], fl[0], fl[2]),
           raw(f"v_cmp_nge_f32 vcc, {hex(THR)}, {fl[0]}", rd=[fl[0]], kind="valu"),
           raw(f"s_cmp_eq_u32 s54, {77 if o.abl else 0}\ns_cselect_b64 vcc, vcc, 0\ns_cbranch_vccnz Lslow", cost=2, kind="br")]
    chk = [F(x, gB[0] + 7, gB[0] + 14, q="fl", after=[fr]) for x in chk]
    rcv = [V(168 + 4 * d, 4) for d in range(4)]
    mr = [F(dsr(B128, (rcv[d], "rcv"), vB8, 1024 * d), gB[2 + mg], gB[3] + (20 if mg else -6), q="lm", after=[chk[-1]]) for d in range(4)]
    for x in (salu("s_lshl_b32", sT0, sW, 11), valu("v_add_u32", vO9, sT0, vBr[1])): a9 = F(x, gB[2], gB[4] - 12, q="fl", after=mr)
    for k in range(2):
        ops = []
        for d in (2 * k, 2 * k + 1):
            for m in range(4):
                t = (vT1, lm[3])[m & 1]
                ops += [valu("v_accvgpr_read_b32", t, (O9(d)[m], "o7")), valu("v_mul_f32", (rcv[d][m], "rs"), (rcv[d][m], "rcv"), lm[1]),
                        valu("v_fma_f32", (rcv[d][m], "n"), t, lm[2], (rcv[d][m], "rs"))]
        for m in range(4):
            src = rcv[2 * k + (m >> 1)]
            ops.append(valu("v_cvt_pk_bf16_f32", (rcv[2 * k][m], "of"), (src[2 * (m & 1)], "n"), (src[2 * (m & 1) + 1], "n")))
        for x in ops: x = F(x, gB[2], gB[4] - 8 + 4 * k, q="ep", after=mr + [lsum[-1]])
        for y in w128(o, vO9, (rcv[2 * k], "of"), 3 * US + 1024 * k): pub[4].append(F(y, gB[2], gB[4] - 8 + 4 * k, q="ow", after=[x, a9]))
    def rdBo(qb, ks):
        if qb < 8: return dsr(B128, (Bo(qb, ks), f"of{qb}"), vBr[1], (qb & 1) * US + (qb >> 2) * 8192 + 1024 * ks)
        return dsr(B128, (Bo(qb, ks), f"of{qb}"), vBr[1], 3 * US + 1024 * ks)
    rdp = rdA0; prevb = BP[0]
    for k in range(5):
        if k: prevb = F(BP[k], gB[k], gB[k], after=pub[k] + [prevb] + rdp); rdp = []
        for n in (fu[k], fu[k] + 1)[:2 if k < 4 else 1]:
            qb = OU[n][1]
            for ks in range(8):
                late = qb >= 5 or (qb == 4 and ks >= 6)
                hi = max(gB[k] + ks // 2, ou0[n] - int(o.lead) + ks)
                if k < 4: hi = min(hi, gB[k + 1] - 3)
                rdp.append(F(rdBo(qb, ks), gB[k], hi, q="ldsB", after=[BP[k]] + ([chk[-1]] if late else [])))
        if not mg and k in (1, 3): rdp += [F(x, gB[k], gB[k + 1] - 3, q="ldsK0", after=[BP[k]]) for x in rdAo(1, range(2 * k - 2, 2 * k + 2))]
        if mg and k == 1:
            gy = ou0[4] - int(o.byo)
            ra = [F(x, gB[1], gy - 3, q="ldsK0", after=[BP[1]]) for x in rdAo(1, range(4))]
            by = prevb = F(barrier(vm=["wo1b"]), gy, gy, after=ra + [BP[1]])
            for x in rdAo(1, range(4, 8)):
                r = next(iter(x.wr)); rdp.append(F(x, gy, max(gy, firstrd[(r, "wo1")] - int(o.lead)), q="ldsK0", after=[by]))
    gd = {p: ou0[9 * p] + int(o.bdo) for p in range(4)}
    bd = BP[4]
    if mg:
        w1b = spread(g_wo(1, 1), gB[1] + 1, float(o.ostep1), after=[BP[1]])
        spread(g_wo(2, 0), gy + 1, float(o.ostep2), after=[BP[1]])
        spread(g_wo(2, 1), gy + 1, float(o.ostep2), after=[by])
        spread(g_wo(3, 0), gB[2] + 1, float(o.ostep3), after=[BP[2]])
        spread(g_wo(3, 1), gB[4] + 1, float(o.ostep3), after=[BP[4]])
        for n, x in enumerate(rdAo(2)):
            r = next(iter(x.wr)); F(x, lastrd[(r, "wo0")], ou0[18] - 8 + n // 2, q="ldsK0", after=[BP[4]])
    else:
        w1b = []
        spread(g_wo(1, 1) + g_wo(2, 0), gB[1] + 1, float(o.ostep1), after=[BP[1]])
        spread(g_wo(2, 1), gB[2] + 1, float(o.ostep2), after=[BP[2]])
        spread(g_wo(3, 0) + g_wo(3, 1), gB[4] + 1, float(o.ostep3), after=[BP[4]])
    for p in ((2,) if mg else (1, 2)):
        bd = F(barrier(vm=[f"wo{p+1}a", f"wo{p+1}b"], lgkm=False), gd[p], gd[p], after=[bd])
        for n, x in enumerate(rdAo(p + 1)): F(x, gd[p], ou0[9 * p + 9] - 8 + n // 2, q="ldsK0", after=[bd])
    ts = int(o.ts); assert ts >= 2
    for n in range(36):
        s_, p_ = SB(n & 1), PB(n & 1)
        for m in range(4):
            lo = min(ouh[(n, m >> 1)] + (8 if n > 8 + 6 * mg else 4), last)
            x = F(valu("v_cvt_pk_bf16_f32", (p_[m], f"rp{n}"), (s_[2 * m], f"r{n}"), (s_[2 * m + 1], f"r{n}")), lo, min(lo + (16 if n == 1 else 6), last), q="st")
        pp_, qb = OU[n]
        ops = ([salu("s_mul_i32", sT3, sP(pp_), 144)] if n == 0 or OU[n - 1][0] != pp_ else []) + [salu("s_add_u32", sSt, sT3, 4096 * qb),
               vstore((p_, f"rp{n}"), vSt3 if pp_ == ts else vSt, Sws, sSt, 0, o.stflag, tag=f"st{pp_}")]
        if n == 9 * ts:
            pre_ = [salu("s_xor_b32", sG, sJ, sW), raw(f"s_and_b32 {sG}, {sG}, 3\ns_cselect_b32 {sG}, 0, 0x10000000", wr=[sG], cost=2, kind="br"),
                    valu("v_add_u32", vSt3, sG, vSt), salu("s_lshr_b32", sG, sG, 12), salu("s_xor_b32", sG, sG, 0x10000), salu("s_add_u32", sG, sG, 8 * US),
                    valu("v_add_u32", vOwn, sG, vL16), valu("v_add_u32", vOwr, 8 * US, vSt)]
            for y in pre_: y = F(y, ou0[n - 2], ou0[n], q="own")
            own_rdy = y
        sw = int(str(o.swin).split(",")[n // 9 % len(str(o.swin).split(","))])
        if sw and n >= sw:
            ops.insert(len(ops) - 1, waitvm(f"su{n - sw}"))
        ops[-1].utag = f"su{n}"
        for x in ops: F(x, lo, min(lo + (20 if n < 2 else 8), last), q="st", after=[chk[-1]] + (w1b[-1:] if n == 0 and int(o.hold) else []) + ([own_rdy] if n == 9 * ts else []))
        if pp_ == ts: F(dsw("ds_write_b128", vOwn, (p_, f"rp{n}"), 1024 * qb), min(lo + 2, last), min(lo + 10, last), q="st", after=[BP[4]])
    t = V(168, 4)
    ops = [salu("s_lshl_b32", sT1, sB, 4), valu("v_mov_b32", vRdA, sT1),
           vload(vRdy, vRdA, Sdbg, 0, 0, "sc1", tag="rdy", op="buffer_load_dword"),
           salu("s_lshl4_add_u32", sT0, sW, sJ), salu("s_lshl_b32", sT0, sT0, 7),
           valu("v_lshrrev_b32", vF, 9, vL16), valu("v_lshl_add_u32", vF, vF, 15, sT0), valu("v_lshrrev_b32", vOne, 2, vL16),
           valu("v_add_u32", vF, vF, vOne), valu("v_mov_b32", vOne, 1)]
    gf = {p: ou0[max(n for n in range(36) if OU[n][0] == p) + 1] + int(o.flo) for p in range(3)}
    for x in ops: F(x, gB[4], gB[4] + 40, q="fl")
    ops = [raw(f"v_cmp_gt_u32 vcc, 16, {vRdy}", rd=[vRdy], kind="valu"), raw("s_cbranch_vccnz Lrdy_spin\nLrdy_back:", kind="br")]
    for p in range(3):
        ops = [waitvm(f"st{p}")] + ops + [salu("s_lshl_b32", sAt, sP(p), 5), vstore(vOne, vF, Smb, sAt, 0, "sc1", tag="fl", op="buffer_store_dword")]
        for x in ops: flag0 = F(x, gf[p], gf[p] + 2, q="fl")
        ops = []
        if p == 0:
            su = [
               salu("s_lshr_b32", sCc, sP(int(o.ts)), 6), salu("s_and_b32", sT0, sJ, 3), salu("s_add_u32", sCc, sCc, sT0),
               valu("v_bfe_u32", vPo, vL16, 4, 2), valu("v_lshrrev_b32", t[0], 8, vL16),
               salu("s_lshl_b32", sT0, sCc, 11), valu("v_lshl_add_u32", vPo, vPo, 7, sT0),
               salu("s_add_u32", sGo, sJ, 4 * int(o.ts)), salu("s_and_b32", sGo, sGo, 12), salu("s_lshl_b32", sGo, sGo, 7),
               salu("s_lshr_b32", sT0, sCc, 2), salu("s_mul_i32", sT0, sT0, 9), salu("s_add_u32", sT0, sT0, sW),
               salu("s_and_b32", sT1, sJ, 3), salu("s_lshl2_add_u32", sT0, sT0, sT1), salu("s_lshl_b32", sT0, sT0, 10),
               valu("v_add_u32", vR[0], sT0, vL16), valu("v_add_u32", vR[1], 16384, vR[0]),
               salu("s_lshl_b32", sT1, sW, 28), salu("s_add_u32", sT0, sT1, 32768), valu("v_add_u32", vR[2], sT0, vR[0]),
               valu("v_bfe_u32", t[1], vL16, 4, 4), valu("v_lshlrev_b32", vO[0], 10, t[1]), valu("v_lshl_add_u32", vO[0], t[0], 4, vO[0]),
               salu("s_lshl_b32", sT0, sW, 14), salu("s_lshl_b32", sT2, sCc, 6), salu("s_add_u32", sT0, sT0, sT2),
               valu("v_add_u32", vO[0], sT0, vO[0]), valu("v_add_u32", vO[1], 65536, vO[0]),
               salu("s_add_u32", sT0, sT1, 131072), valu("v_add_u32", vO[2], sT0, vO[0]),
               valu("v_and_b32", t[2], 1, t[1]), valu("v_lshlrev_b32", t[2], 4, t[2]), valu("v_mov_b32", t[3], "0x3f80"),
               valu("v_lshlrev_b32", t[2], t[2], t[3]),
               valu("v_bfe_u32", t[3], t[1], 2, 1), valu("v_xor_b32", t[3], t[3], t[0]),
               valu("v_and_b32", t[0], 1, t[3]), valu("v_lshlrev_b32", t[0], 3, t[0]),
               valu("v_lshrrev_b32", t[3], 1, t[3]), valu("v_lshl_add_u32", t[0], t[3], 2, t[0]),
               valu("v_lshrrev_b32", t[3], 3, t[1]), valu("v_lshl_add_u32", t[0], t[3], 1, t[0]),
               valu("v_bfe_u32", t[3], t[1], 1, 1), valu("v_add_u32", t[0], t[0], t[3]),
               valu("v_lshlrev_b32_e64", t[0], t[0], 1)]
            for m in range(8): su += [valu("v_bfe_i32", SEL[m], t[0], m, 1), valu("v_and_b32", SEL[m], SEL[m], t[2])]
            for x in su: F(x, ou0[18], gf[1 + mg] - 1, q="su" if mg else "fl", after=[flag0])
    if int(o.r0in):
        g = ou0[27] - int(o.pollo)
        p0 = F(vload(vRdy, vPo, Smb, sGo, 0, "sc1", tag="poll0", op="buffer_load_dword"), g, g + 2, q="r0", after=[su[-1]])
        g = ou0[27] + int(o.r0o)
        for x in (raw(f"v_cmp_eq_u32 vcc, 0, {vRdy}", rd=[vRdy], kind="valu"), raw("s_cbranch_vccnz Lp0_spin\nLp0_back:", kind="br")): F(x, g, g + 1, q="r0")
        ops = [salu("s_mul_i32", sOff, sGo, PART // 128), salu("s_sub_u32", sGo, sGo, 512), salu("s_and_b32", sGo, sGo, "0x600")]
        for i in range(4):
            if i: ops.append(salu("s_add_u32", sOff, sOff, PART))
            ops += [vload(A(12 * i + 4 * f, 4), vR[f], Sred, sOff, 0, o.rflag, tag="r0") for f in range(3)]
        nextvm[0] = 0
        r0 = spread(ops, g + 2, float(o.r0step), q="r0")
    g = last - int(o.pollo)
    F(vload(vRdy, vPo, Smb, sGo, 0, "sc1", tag="poll", op="buffer_load_dword"), g, g + 2, q="fl", after=[r0[2]] if int(o.r0in) else [su[-1]])
    F(waitvm("poll"), last, last, q="st")
    seq = sc.run()
    if "a" in o.abl: seq = [x for x in seq if not (x.gap > 100 and x.kind in ("dma", "vml"))]
    if "s" in o.abl: seq = [x for x in seq if not (x.kind == "vms" and x.tag.startswith("st"))]
    if "w" in o.abl: seq = [x for x in seq if not (x.kind == "dma" and x.tag[:3] == "wo0")]
    if "d" in o.abl: seq = [x for x in seq if not (x.kind == "dsw" and x.gap > 1700)]
    if "o" in o.abl: seq = [x for x in seq if not (x.kind == "dma" and x.tag[:3] in ("wo1", "wo2", "wo3"))]
    seq = P + seq
    if not o.abl: check_tags(seq)
    seq, nops = pad_hazards(seq)
    sys.stderr.write(f"mfma {len(sc.bb)} instrs {len(seq)} over {sc.stats['over']} idle {sc.stats['idle']} waits {sc.stats['waits']} nop-states {nops}\n")
    return seq, nstamp[0]

def reduce_tail(o, a, nst):
    acc = lambda f, u: V(8 * f + 4 * u, 4)
    buf = lambda t, i, f: A(48 * t + 12 * i + 4 * f, 4)
    poll = f"buffer_load_dword {vRdy}, {vPo}, {Smb}, {sGo} offen sc1"
    a(f"s_lshl_b32 s61, {sP(3)}, 5"); a("s_mov_b32 s63, 0")
    if int(o.stamps): a(f"s_memrealtime s[{64+2*nst}:{65+2*nst}]")
    def mf(t):
        for f in range(3):
            for u in range(2):
                for i in range(4):
                    a(f"v_mfma_f32_16x16x32_bf16 {acc(f,u)}, {SEL.sub(4*u,4)}, {buf(t,i,f)}, {0 if t == 0 and i == 0 else acc(f,u)}")
    pa = int(o.polli)
    t0 = int(o.r0in); ts = int(o.ts)
    nl = lambda t: 9 if t == ts else 12
    for t in range(t0, 4):
        a(f"s_mul_i32 s45, {sGo}, {PART // 128}")
        if t == 2:
            a("s_waitcnt lgkmcnt(0)"); a("s_barrier")
            for f in range(3): a(f"ds_read_b128 {buf(ts,3,f)}, {vOwr} offset:{4096*f}")
        if t == ts: a("s_mov_b32 s62, s45")
        if t > t0: a(f"s_waitcnt vmcnt({nl(t-1) - 3 * pa})")
        a(f"Lpoll{t}:"); a(f"v_cmp_eq_u32 vcc, 0, {vRdy}"); a(f"s_cbranch_vccz Lgo{t}")
        a(poll); a("s_add_u32 s63, s63, 1"); a("s_waitcnt vmcnt(0)"); a("s_cmp_lt_u32 s63, 0x40000"); a(f"s_cbranch_scc1 Lpoll{t}")
        a(f"Lgo{t}:")
        a(f"s_sub_u32 {sGo}, {sGo}, 512"); a(f"s_and_b32 {sGo}, {sGo}, 0x600")
        for i in range(nl(t) // 3):
            if t == ts: a(f"s_add_u32 s52, s51, {i+1}"); a("s_and_b32 s52, s52, 3"); a(f"s_mul_i32 s52, s52, {PART}"); a("s_add_u32 s45, s62, s52")
            if i == int(o.fl3) and t == t0:
                a(f"s_waitcnt vmcnt({3*i})"); a(f"buffer_store_dword {vOne}, {vF}, {Smb}, s61 offen sc1")
            if i == pa and t < 3: a(poll)
            for f in range(3):
                rw = int(str(o.rwin).split(",")[t % len(str(o.rwin).split(","))])
                if rw: a(f"s_waitcnt vmcnt({rw-1})")
                a(f"buffer_load_dwordx4 {buf(t,i,f)}, {vR[f]}, {Sred}, s45 offen {o.rflag}")
            if i < 3 and t != ts: a(f"s_add_u32 s45, s45, {PART}")
        if t:
            a(f"s_waitcnt vmcnt({nl(t) + (1 if t < 3 else 0)})" + (" lgkmcnt(0)" if t == 3 else "")); mf(t - 1)
    assert int(o.fl3) <= pa <= 2
    for i in ((3, 0, 1, 2) if ts == 3 else range(4)):
        if nl(3) - 3 - 3 * i >= 0: a(f"s_waitcnt vmcnt({nl(3) - 3 - 3 * i})")
        for f in range(3):
            for u in range(2): a(f"v_mfma_f32_16x16x32_bf16 {acc(f,u)}, {SEL.sub(4*u,4)}, {buf(3,i,f)}, {acc(f,u)}")
    a("s_nop 3")
    for f in range(3):
        if f: a("s_nop 1")
        for m in range(4): a(f"v_cvt_pk_bf16_f32 v{32+4*f+m}, v{8*f+2*m}, v{8*f+2*m+1}")
        a(f"buffer_store_dwordx4 v[{32+4*f}:{35+4*f}], {vO[f]}, {Sout}, 0 offen {o.outflag}".rstrip())

def tail_and_slow(o, nst):
    T = []; a = T.append
    reduce_tail(o, a, nst); nst += 1
    if int(o.stamps):
        a(f"s_memrealtime s[{64+2*nst}:{65+2*nst}]"); a("s_waitcnt vmcnt(0)")
        a(f"s_memrealtime s[{66+2*nst}:{67+2*nst}]"); a("s_waitcnt lgkmcnt(0)")
        a("s_cmp_lg_u32 s3, 0"); a("s_cbranch_scc1 Lend")
        if o.enc:
            ea, eb = [int(z) for z in o.enc.split(",")]
            a("s_cmp_lg_u32 s2, 100"); a("s_cbranch_scc1 Lnoenc")
            a(f"s_sub_u32 s52, s{64+2*eb}, s{64+2*ea}"); a("s_mul_i32 s52, s52, 10"); a("s_min_u32 s52, s52, 200000"); a("s_add_u32 s52, s52, 500")
            a("Lspin:"); a("s_memrealtime s[46:47]"); a("s_waitcnt lgkmcnt(0)"); a(f"s_sub_u32 s46, s46, s{66+2*nst}")
            a("s_cmp_lt_u32 s46, s52"); a("s_cbranch_scc1 Lspin"); a("Lnoenc:")
        a("s_load_dwordx2 s[40:41], s[0:1], 56"); a("s_mov_b32 s42, 0x10000000"); a("s_mov_b32 s43, 0x20000"); a("s_waitcnt lgkmcnt(0)")
        a(f"s_lshl_b32 s52, s2, 6"); a(f"s_add_u32 s52, s52, {STAMP_OFF}"); a("v_mov_b32 v1, s52")
        a("s_mov_b64 exec, 1")
        assert nst + 2 <= 16
        for n in range(nst + 2):
            a(f"v_mov_b32 v2, s{64+2*n}"); a(f"buffer_store_dword v2, v1, s[40:43], 0 offen offset:{4*n}")
    a("Lend:"); a("s_endpgm")
    if int(o.r0in):
        a("Lp0_spin:"); a("s_mov_b32 s63, 0"); a("Lp0_loop:")
        a(f"buffer_load_dword {vRdy}, {vPo}, {Smb}, {sGo} offen sc1"); a("s_add_u32 s63, s63, 1"); a("s_waitcnt vmcnt(0)")
        a(f"v_cmp_eq_u32 vcc, 0, {vRdy}"); a("s_cmp_lt_u32 s63, 0x40000"); a("s_cselect_b64 vcc, vcc, 0")
        a("s_cbranch_vccnz Lp0_loop"); a("s_branch Lp0_back")
    a("Lrdy_spin:"); a("s_mov_b32 s63, 0"); a("Lrdy_loop:")
    a(f"buffer_load_dword {vRdy}, {vRdA}, {Sdbg}, 0 offen sc1"); a("s_add_u32 s63, s63, 1"); a("s_waitcnt vmcnt(0)")
    a(f"v_cmp_gt_u32 vcc, 16, {vRdy}"); a("s_cmp_lt_u32 s63, 0x40000"); a("s_cselect_b64 vcc, vcc, 0")
    a("s_cbranch_vccnz Lrdy_loop"); a("s_branch Lrdy_back")
    a("Lslow:"); a("s_waitcnt vmcnt(0) lgkmcnt(0)"); a("s_nop 7"); a("s_barrier")
    a("v_mbcnt_lo_u32_b32 v0, -1, 0"); a("v_mbcnt_hi_u32_b32 v0, -1, v0")
    a("v_and_b32 v1, 15, v0"); a("v_lshlrev_b32 v1, 8, v1"); a("v_lshrrev_b32 v2, 4, v0"); a("v_lshl_add_u32 v1, v2, 4, v1")
    a("s_lshl_b32 s52, s48, 17"); a("s_add_u32 s52, s52, 128"); a("s_lshl_b32 s53, s49, 6"); a("s_add_u32 s62, s52, s53")
    a("v_add_u32 v2, s62, v1"); a("s_xor_b32 s53, s53, 64"); a("s_add_u32 s62, s52, s53"); a("v_add_u32 v3, s62, v1")
    for b in range(5): a(f"v_mov_b32 v{8+b}, 0xff800000")
    a("s_mov_b32 s45, 0"); a("Lslow_loop:")
    for t in range(4): a(f"buffer_load_dwordx4 v[{16+4*t}:{19+4*t}], v{2+(t&1)}, {Sk}, s45 offen offset:{128*(t>>1)}")
    a("s_waitcnt vmcnt(0)")
    for b in range(5):
        for t in range(4):
            a(f"v_mfma_f32_16x16x32_bf16 {NM(b)}, v[{16+4*t}:{19+4*t}], {QF(b,t)}, {0 if t == 0 else NM(b)}")
    a("s_nop 7"); a("s_nop 1")
    for b in range(5):
        n = NM(b); a(f"v_max3_f32 v{8+b}, v{8+b}, {n[0]}, {n[1]}"); a(f"v_max3_f32 v{8+b}, v{8+b}, {n[2]}, {n[3]}")
    a("s_add_u32 s45, s45, 4096"); a("s_cmp_lt_u32 s45, 131072"); a("s_cbranch_scc1 Lslow_loop")
    for b in range(5): a(f"v_accvgpr_write_b32 {SAV(b)}, v{8+b}")
    a("s_load_dwordx16 s[4:19], s[0:1], 0"); a("s_mov_b32 s54, 1"); a("s_branch Lrestart"); a("Lcode_end:")
    return T

KD = """.amdhsa_kernel {name}
  .amdhsa_next_free_vgpr {vg}
  .amdhsa_next_free_sgpr {sg}
  .amdhsa_accum_offset {acc}
  .amdhsa_group_segment_fixed_size 0
  .amdhsa_kernarg_size 64
  .amdhsa_user_sgpr_count 2
  .amdhsa_user_sgpr_kernarg_segment_ptr 1
  .amdhsa_system_sgpr_workgroup_id_x 1
  .amdhsa_float_denorm_mode_32 3
.end_amdhsa_kernel"""

def generate(o):
    hdr = [l.rstrip("\n") for l in open(f"cdna_kernels/{NAME}.s.ref") if l.startswith(";") and "@launch" not in l and "grid=" not in l and "Override" not in l]
    seq, nst = build_main(o)
    L = hdr + [f"; @launch grid=(256,1,1) block=(256,1,1) lds={LDSB}", '.amdgcn_target "amdgcn-amd-amdhsa--gfx950"', ".text",
               f".globl {NAME}_kernel", ".p2align 8", f".type {NAME}_kernel,@function", f"{NAME}_kernel:"]
    L += [i.text for i in seq] + tail_and_slow(o, nst)
    L += ['.section .rodata,"a"', ".p2align 6", KD.format(name=f"{NAME}_kernel", vg=512, sg=102, acc=256)]
    txt = "\n".join(L) + "\n"
    if int(o.clk): txt = txt.replace("s_memrealtime", "s_memtime")
    return txt

if __name__ == "__main__":
    o = Opt()
    for kv in sys.argv[2:]:
        k, v_ = kv.split("=", 1)
        assert hasattr(Opt, k), k
        setattr(o, k, v_)
    open(sys.argv[1], "w").write(generate(o))
```

```python
import sys, math, struct
from dsl import *

NAME = "standalone__mha_block_cached__near_ridge"
US, GRP, PS = 17024, 4224, 1056
X9 = 9 * US
FLAG = X9 + 8448
LDSB = 163840
PART = 147456
STAMP_OFF = 0x4000000
MBOFF = 256 * PART
def fbits(x): return struct.unpack("<I", struct.pack("<f", x))[0]
CSC = fbits(math.log2(math.e) / math.sqrt(128.0))
THR = fbits(2.0 ** 40)

Smb, Sred, Sout, Sdbg = S(4, 4), S(8, 4), S(12, 4), S(16, 4)
Sx, Swq, Sk, Sv, Swo, Sws = S(20, 4), S(24, 4), S(28, 4), S(32, 4), S(36, 4), S(40, 4)
sW, sGrp, sOff, sC, sGrP, sHH, sQH, sB, sJ = S(3), S(44), S(45), S(46), S(47), S(48), S(49), S(50), S(51)
sT0, sT1, sMode, sX9, sT3, sOw0, sOw1, sA8, sB8, sSt, sT2, sAt = [S(n) for n in range(52, 64)]
sRx, sRw = S(96), S(97)
sCc = S(55)
sRk = S(47)
sP = lambda p: S(98 + p)
ACC = lambda b, f: V(32 * b + 4 * f, 4)
QF = lambda b, t: (V(128 + 16 * b + 4 * t, 4) if b < 4 else A(180 + 4 * t, 4))
SB = lambda k: V(192 + 8 * k, 8)
PB = lambda k: V((208, 212, 248)[k], 4)
NM = lambda b: V(216 + 4 * b, 4)
Kr = lambda y, p: V(236 + 2 * y + p)
Vr = lambda y, hf: V(240 + 2 * y + hf)
vKV = lambda pp: V(244 + pp)
vL16, vTs, vT0, vT1 = V(252), V(253), V(254), V(255)
qWr = lambda win, p: V(216 + 2 * win + p)
qXr = lambda win: V(220 + win)
qX9r = V(222)
qWd = lambda pp: V(225 + pp)
qXd = lambda pp: V(229 + pp)
qX9d, qA8, qB8 = V(233), V(234), V(235)
KF = lambda y, h, t: A(32 * y + 16 * h + 4 * t, 4)
VF = lambda e, y, d: A((96 if y else (64, 200)[e & 1]) + 4 * d, 4)
O9 = lambda d: A(128 + 4 * d, 4)
LS = lambda b: A(160 + 4 * b, 4)
ONES = A(196, 4)
SAV = lambda b: A(248 + b)
aWpat, aWo0, aKv0 = A(253), A(254), A(255)
Aq = lambda fp, kk: A(96 + 8 * fp + 4 * kk, 4)
Bq = lambda I_, kk, b: A((128, 200)[I_ & 1] + 16 * kk + 4 * b, 4)
B9 = lambda I_, kk: A(232 + 8 * (I_ & 1) + 4 * kk, 4)
SEQ = [(I_, h) for I_ in range(6) for h in range(2)] + [(6, 0), (7, 0), (6, 1), (7, 1)]
WQU = {4: 1, 5: 4, 0: 5, 1: 3, 2: 6, 3: 8}
XU = {2: 0, 0: 2, 1: 7}
KVU = lambda slot: (2 * slot, 2 * slot + 1, 4 + 2 * slot, 5 + 2 * slot)
WOU = {0: (0, 1, 4, 5), 1: (2, 3, 0, 1), 2: (4, 5, 2, 3), 3: (0, 1, 6, 7)}
Ao = lambda p, ks, u: A(((64, 0), (32, 96))[p & 1][ks >> 2] + 16 * u + 4 * (ks & 3), 4)
QB = [0, 4, 1, 5, 2, 6, 3, 7, 8]
def Bo(qb, ks):
    if qb < 4: return V(32 * qb + 4 * ks, 4)
    if qb == 4: return A(232 + 4 * ks if ks < 6 else 192 + 4 * (ks - 6), 4)
    if qb == 6: return V(128 + 4 * ks, 4)
    return A({5: 200, 7: 160, 8: 128}[qb] + 4 * ks, 4)
TR, B128 = "ds_read_b64_tr_b16", "ds_read_b128"
sG, sGo = S(96), S(97)
vSt3, vOwn, vOwr = V(232), V(233), V(234)
vF, vOne, vRdy, vPo, vR, vRdA, vO, SEL = V(220), V(221), V(222), V(223), V(224, 3), V(227), V(228, 3), V(160, 8)

class Opt:
    stamps = 0; clk = 0; enc = None; xst = ""; qst = ""; abl = ""
    kvflag = "nt"; stflag = "sc1"; outflag = "sc1"
    qseq = ("x0,n0,w0,w1|p1,x1,w2,w3,p4,x2,n1,w4,p9,w5,p3.6,x3,w6,w7,t2,x4,n2,w8,w9,x5,w10,w11,x6,n3,w12,x7,w13,w14,w15,"
            "p2,s0,s1,c0,s2,p6,s3,k0,k1,p9,k2,k3")
    bal = '(8,14)'; winlo = 4; winhi = 6; hx = 'h'; asym = 0; lpf = 0; tflag = ''; rot = 2; rsh = 1; cpf = 3
    ashift = 0; win = 5; winfrom = 2; astep0 = 12.4; astep = 10.4; astep4 = 10.4; astep5 = 10.4; estep = 8.6; wow = 0.42; bxo = 10; w1bo = 4
    ouseq = '00,04,10,14,01,05,11,02,06,15,12,03,07,16,08,13,17,18'
    vmgap = 2; dswgap = 4; maxmem = 1; wiso = 1; hor = 40; lead = 8; w64 = 0
    sepv = 3; bvo = 14; bv7 = 0; bk0 = 20; ba0 = -22; bb0 = 30; bao = 0; bbo = 20; bb7 = 34; ate = 2; merge = 1; ts = 3; adw = 0; fb = 0; bko1 = 11; byo = 12; hold = 0; lflag = 'sc1'; l3flag = 'sc1'; rflag = 'sc1'; r0in = 0; r0o = 12; r0step = 7; swin = 0; rwin = 0; fl3 = 2; polli = 2; b1o = 14; bko = 11; bdo = 100; flo = 104; pollo = 36; ostep0 = 3.5; ostep1 = 3.8; ostep2 = 4; ostep3 = 16; ostep4 = 12
    def __getattr__(s, k): raise AttributeError(k)

def setoff(soff):
    if isinstance(soff, tuple):
        r, add, mask = soff
        if mask == "x": return [salu("s_xor_b32", sOff, r, add)]
        return [salu("s_add_u32", sOff, r, add)] + ([salu("s_and_b32", sOff, sOff, mask)] if mask else [])
    return [salu("s_mov_b32", sOff, soff)]
def group(unit_off, base, voff, srd, soff, flags, tag):
    return [salu("s_add_u32", "m0", base, unit_off)] + setoff(soff) + [dma(voff(pp), srd, sOff, PS * pp, flags, tag) for pp in range(4)]
def g_wq(j): return group(WQU[j % 6] * US, sGrp, qWd, Swq, (sRw, SEQ[j][0] * 524288 + SEQ[j][1] * 128, 0x3fffff), "", f"wq{j}")
def g_x(I_): return group(XU[I_ % 3] * US, sGrp, qXd, Sx, (sRx, I_ * 128, 1023), "", f"x{I_}")
def g_x9(n): return [salu("s_add_u32", "m0", sX9, X9 + (n & 1) * GRP)] + setoff((sRx, n * 256, 1023)) + [dma(qX9d, Sx, sOff, 0, "", f"xn{n}")]
def g_kv(e, part, o, cap=True):
    kv, half = part >> 1, part & 1
    ops = group(KVU(e & 1)[part] * US, sGrp, vKV, (Sk, Sv)[kv], (sRk, e * 16384 + half * 4096, "x"), o.kvflag, f"{'kv'[kv]}{e}")
    if cap and int(o.win) and e >= int(o.winfrom):
        for x in ops:
            if x.kind != "dma": continue
            if 4 * e + part in range(*eval(o.bal)):
                g_kv.n = getattr(g_kv, "n", 0) + 1
                x.text = f"s_cbranch_vccz Lw{g_kv.n}\ns_waitcnt vmcnt({int(o.winlo)-1})\nLw{g_kv.n}:\ns_waitcnt vmcnt({int(o.winhi)-1})\n" + x.text
            else: x.text = f"s_waitcnt vmcnt({int(o.win)-1})\n" + x.text
    return ops
def g_wo(p, hf): return sum((group(WOU[p][part] * US, sGrp, vKV, Swo, (sP(p), part * 65536, 0), "", f"wo{p}{'ab'[hf]}") for part in (2 * hf, 2 * hf + 1)), [])
def w128(o, addr, data, off):
    if not int(o.w64): return [dsw("ds_write_b128", addr, data, off)]
    return [dsw("ds_write_b64", addr, (data[0].sub(2 * z, 2), data[1]), off + 8 * z) for z in range(2)]

def qtok(tok, o):
    c, n = tok[0], int(tok[1:])
    if c == "w": return g_wq(n), n - 6
    if c == "x": return g_x(n), 2 * (n - 3)
    if c == "n": return g_x9(n), (4 * (n - 2) + 2 if n >= 2 else -1)
    if c == "c": return code_touch(V(254, 2), vTs, vL16, shift=3), -1
    if c == "t":
        ops = [salu("s_bfe_u32", sT0, sB, (1 << 16) | 1), salu("s_lshl_b32", sT0, sT0, 24),
               valu("v_mul_u32_u24", vT0, 7, vL16), valu("v_add3_u32", vT0, vT0, vKV(0), sT0)] + (setoff(16384) if n > 2 else [])
        return ops + [I(f"buffer_load_dword {vTs}, {vT0}, {(Sk, Sv)[z & 1]}, {sOff if z >> 1 else 0} offen", "vml", rd=[vT0, sOff], tag="ct") for z in range(n)], -1
    if c == "s": return g_kv(0, n, o), (10, 10, 11, 12)[n]
    if c == "k": return g_kv(1, n, o), (12, 13, 14, 14)[n]
    raise ValueError(tok)

def code_touch(va, vd, lane, shift, tid=False):
    n = code_touch.n = getattr(code_touch, "n", 0) + 1
    return [valu("v_lshlrev_b32", va[0], shift, lane)] + ([] if tid else [salu("s_lshl_b32", sT0, sW, 13), valu("v_add_u32", va[0], sT0, va[0])]) + [
            raw(f"s_getpc_b64 s[52:53]\nLpc{n}:", wr=[sT0, sT1], kind="salu"),
            raw(f"v_min_u32 {va[0]}, Lcode_end-Lpc{n}-4, {va[0]}", rd=[va[0]], wr=[va[0]], kind="valu"),
            valu("v_mov_b32", va[1], 0),
            raw(f"v_lshl_add_u64 {va}, {va}, 0, s[52:53]", rd=[va, sT0, sT1], wr=[va], kind="valu"),
            I(f"global_load_dword {vd}, {va}, off", "vml", rd=[va], wr=[], tag="ct")]

def prologue(o):
    P = []; a = P.append
    v = lambda n: V(n)
    a(raw("s_cmp_ge_u32 s2, 256")); a(raw("s_cbranch_scc1 Lend"))
    a(raw("s_load_dwordx16 s[4:19], s[0:1], 0"))
    if int(o.stamps): a(raw("s_memrealtime s[64:65]"))
    a(valu("v_lshrrev_b32", v(1), 6, v(0)))
    if int(o.cpf): P += code_touch(V(8, 2), vTs, v(0), shift=int(o.cpf) + 3, tid=True)
    a(valu("v_readfirstlane_b32", sW, v(1)))
    a(valu("v_mov_b32", v(2), "0xff800000")); a(salu("s_mov_b32", sMode, 0))
    for b in range(5): a(valu("v_accvgpr_write_b32", SAV(b), v(2)))
    a(raw("Lrestart:", kind="label"))
    L, t1, t2, t3, t4, t5, t6 = v(0), v(1), v(2), v(3), v(4), v(5), v(6)
    a(valu("v_mbcnt_lo_u32_b32", L, -1, 0)); a(valu("v_mbcnt_hi_u32_b32", L, -1, L))
    a(salu("s_and_b32", sT0, S(2), 1)); a(salu("s_bfe_u32", sT1, S(2), (3 << 16) | 3)); a(salu("s_lshl3_add_u32", sB, sT0, sT1))
    a(salu("s_bfe_u32", sT0, S(2), (2 << 16) | 1)); a(salu("s_lshr_b32", sT1, S(2), 6)); a(salu("s_lshl2_add_u32", sJ, sT0, sT1))
    a(salu("s_lshr_b32", sHH, sW, 1)); a(salu("s_and_b32", sQH, sW, 1))
    a(salu("s_mul_i32", sGrp, sW, GRP)); a(salu("s_mul_i32", sX9, sW, PS))
    a(salu("s_add_u32", sT3, sB, sJ)); a(salu("s_lshl_b32", sT0, sT3, 0 if int(o.asym) else int(o.rsh))); a(salu("s_and_b32", sT0, sT0, int(o.rot)))
    a(salu("s_lshl_b32", sRx, sT0, 8)); a(salu("s_lshl_b32", sRw, sT0, 20))
    a(valu("v_and_b32", t1, 7, L)); a(valu("v_lshlrev_b32", t1, 4, t1))
    a(valu("v_lshrrev_b32", t2, 3, L)); a(valu("v_lshl_add_u32", t3, t2, 12, t1))
    a(salu("s_lshl_b32", sT0, sW, 15)); a(salu("s_add_u32", sT0, sT0, 128))
    a(valu("v_add_u32", qXd(0), sT0, t3))
    for pp in range(1, 4): a(valu("v_subrev_u32", qXd(pp), 32 * pp, qXd(0)))
    a(valu("v_and_b32", t4, 3, t2)); a(valu("v_lshl_add_u32", t3, t4, 12, t1))
    a(valu("v_lshrrev_b32", t2, 5, L)); a(valu("v_lshl_add_u32", t3, t2, 7, t3))
    a(salu("s_lshl_b32", sT0, sW, 10)); a(salu("s_add_u32", sT0, sT0, 128 * 1024 + 128))
    a(valu("v_add_u32", qX9d, sT0, t3))
    a(valu("v_lshl_add_u32", t3, t4, 16, t1)); a(valu("v_lshl_add_u32", t3, t2, 15, t3))
    a(salu("s_lshl_b32", sT0, sQH, 18)); a(salu("s_lshl_b32", sT1, sHH, 8)); a(salu("s_add_u32", sT0, sT0, sT1))
    a(valu("v_add_u32", qWd(0), sT0, t3))
    for pp in range(1, 4): a(valu("v_add_u32", qWd(pp), (8192 - PS) * pp, qWd(0)))
    a(salu("s_mov_b32", Sx[2], PART + 128)); a(salu("s_mov_b32", Sx[3], "0x20000")); a(salu("s_mov_b32", Swq[3], "0x20000"))
    a(salu("s_mul_i32", sT2, sB, PART)); a(salu("s_lshl_b32", sT1, sJ, 9)); a(salu("s_sub_u32", Swq[2], 4194304, sT1))
    a(raw("s_waitcnt lgkmcnt(0)"))
    def base(srd, ptr, off, shift=0, size=None):
        a(salu("s_add_u32", srd[0], S(ptr), off)); a(salu("s_addc_u32", srd[1], S(ptr + 1), 0))
        if shift:
            a(salu("s_sub_u32", srd[0], srd[0], shift)); a(salu("s_subb_u32", srd[1], srd[1], 0))
        if size: a(salu("s_mov_b32", srd[2], size + shift)); a(salu("s_mov_b32", srd[3], "0x20000"))
    base(Sx, 4, sT2, 128); base(Swq, 10, sT1)
    if int(o.asym):
        a(raw("s_bitcmp1_b32 s56, 0")); a(raw("s_cbranch_scc0 Lnotouch"))
        a(salu("s_and_b32", sT0, sB, 14)); a(salu("s_lshl4_add_u32", sT0, sT0, sJ)); a(salu("s_lshl_b32", sT0, sT0, 18))
        base(Sk, 6, sT0, 0, 4194304 + 262144)
        if int(o.asym) > 2: base(Sv, 8, sT0, 0, 4194304 + 262144)
        a(salu("s_lshl4_add_u32", sT0, sHH, sQH)); a(salu("s_lshl_b32", sT0, sT0, 13)); a(valu("v_lshl_add_u32", t3, L, 7, sT0))
        a(salu("s_mov_b32", sOff, 4194304))
        for n in range(int(o.asym)):
            if int(o.asym) == 3 and n == 2:
                a(valu("v_lshrrev_b32", t1, 5, L)); a(valu("v_mul_u32_u24", t1, 4194304 - 4096, t1)); a(valu("v_add_u32", t3, t3, t1))
            a(raw(f"buffer_load_dword {vTs}, {t3}, {(Sk, Sv)[n >> 1]}, {sOff if n & 1 else 0} offen {o.tflag}".rstrip(), rd=[t3], kind="vml"))
        a(raw("Lnotouch:", kind="label"))
    lin = []
    if int(o.lpf):
        a = lin.append
        base(Sk, 4, 0, 0, 16 * PART); base(Sv, 10, 0, 0, 4194304)
        a(salu("s_lshl2_add_u32", sT0, S(2), sW)); a(salu("s_mul_i32", sT1, sT0, 2304)); a(salu("s_lshl_b32", sT0, sT0, 12))
        a(valu("v_min_u32", t1, 17, L)); a(valu("v_lshl_add_u32", t1, t1, 7, sT1)); a(valu("v_lshl_add_u32", t3, L, 6, sT0))
        a(I(f"buffer_load_dword {vTs}, {t3}, {Sv}, 0 offen", "vml", rd=[t3], tag="ct"))
        a(I(f"buffer_load_dword {vTs}, {t1}, {Sk}, 0 offen", "vml", rd=[t1], tag="ct"))
    first = []
    for n, tok in enumerate(o.qseq.split("|")[0].split(",")):
        if n == int(o.lpf) - 1: first += lin
        first += qtok(tok, o)[0]
    Q = []; a = Q.append
    a(salu("s_lshl4_add_u32", sT1, sB, sJ))
    a(salu("s_lshl_b32", sT0, sT1, 18)); base(Sk, 6, sT0, 128, 262144); base(Sv, 8, sT0, 128, 262144)
    a(salu("s_mul_i32", sT0, sT1, PART)); base(Sws, 18, sT0, 0, PART)
    a(salu("s_lshl_b32", sT0, sJ, 18)); base(Swo, 12, sT0, 128, 262144)
    base(Sout, 14, sT2, 0, PART)
    a(salu("s_lshl_b32", sT0, sT2, 4)); base(Sred, 18, sT0, 0, 16 * PART)
    a(salu("s_lshl_b32", sT0, sB, 15)); a(salu("s_add_u32", sT0, sT0, MBOFF)); base(Smb, 18, sT0, 0, 32768)
    a(salu("s_mov_b32", Sdbg[2], 256)); a(salu("s_mov_b32", Sdbg[3], "0x20000"))
    a(salu("s_mov_b32", sC, hex(CSC))); a(raw("s_bitcmp1_b32 s50, 1")); a(raw("s_cselect_b64 vcc, -1, 0"))
    a(salu("s_lshr_b32", sT3, sJ, 2)); a(salu("s_lshl_b32", sT0, sB, int(o.fb))); a(salu("s_sub_u32", sT3, sT3, sT0))
    for p in range(4): a(salu("s_add_u32", sT0, sT3, (p - int(o.ts)) & 3)); a(salu("s_and_b32", sT0, sT0, 3)); a(salu("s_lshl_b32", sP(p), sT0, 8))
    a(salu("s_and_b32", sT0, sT3, 3)); a(salu("s_and_b32", sT1, sJ, 3)); a(salu("s_lshl2_add_u32", sT3, sT0, sT1))
    a(valu("v_and_b32", t1, 15, L)); a(valu("v_lshlrev_b32", t1, 4, t1))
    a(valu("v_lshrrev_b32", t5, 4, L))
    a(salu("s_add_u32", sT0, sW, sMode)); a(salu("s_lshl4_add_u32", sAt, sT0, sB)); a(salu("s_lshl_b32", sAt, sAt, 4))
    a(salu("s_lshl_b32", sT0, sMode, 6)); a(salu("s_add_u32", sT0, sT0, sW)); a(salu("s_lshl_b32", sT0, sT0, 9))
    a(valu("v_lshl_add_u32", t6, L, 3, sT0)); a(salu("s_lshl_b32", sOff, sT3, 11)); a(valu("v_mov_b64", V(8, 2), 0))
    a(vstore(V(8, 2), t6, Smb, sOff, 0, "sc1", tag="mbz", op="buffer_store_dwordx2"))
    a(valu("v_lshl_add_u32", t3, t5, 13, t1))
    a(salu("s_lshl_b32", sT0, sHH, 15)); a(salu("s_lshl_b32", sT1, sQH, 12)); a(salu("s_add_u32", sT0, sT0, sT1))
    a(salu("s_add_u32", sT0, sT0, 128)); a(valu("v_add_u32", t3, sT0, t3)); a(valu("v_accvgpr_write_b32", aWo0, t3))
    a(valu("v_lshlrev_b32", vL16, 4, L))
    a(salu("s_lshl_b32", sT0, sHH, 17)); a(salu("s_lshl_b32", sT1, sQH, 13)); a(salu("s_add_u32", sT0, sT0, sT1))
    a(salu("s_add_u32", sT0, sT0, 128)); a(valu("v_add_u32", vKV(0), sT0, vL16)); a(valu("v_accvgpr_write_b32", aKv0, vKV(0)))
    for pp in range(1, 4): a(valu("v_subrev_u32", vKV(pp), 32 * pp, vKV(0)))
    a(salu("s_xor_b32", sT0, sW, 1)); a(salu("s_mul_i32", sGrP, sT0, GRP))
    a(salu("s_add_u32", sA8, sGrp, 8 * US)); a(salu("s_add_u32", sB8, sGrP, 8 * US))
    a(valu("v_add_u32", qA8, sA8, vL16)); a(valu("v_add_u32", qB8, sB8, vL16))
    a(valu("v_and_b32", t1, 3, L)); a(valu("v_mul_u32_u24", t1, PS, t1)); a(valu("v_lshl_add_u32", t1, t5, 4, t1))
    a(valu("v_bfe_u32", t3, L, 2, 2)); a(valu("v_lshl_add_u32", t3, t3, 7, t1))
    a(valu("v_add_u32", qX9r, X9, t3))
    a(salu("s_mul_i32", sT0, sQH, 2 * GRP)); a(valu("v_add_u32", qXr(0), sT0, t3))
    a(valu("v_add_u32", qXr(1), 7 * US, qXr(0)))
    a(valu("v_bfe_u32", t3, L, 2, 1)); a(valu("v_mul_u32_u24", t3, US, t3)); a(valu("v_add_u32", t1, t1, t3))
    a(valu("v_bfe_u32", t3, L, 3, 1)); a(valu("v_lshl_add_u32", t1, t3, 8, t1))
    a(salu("s_lshl_b32", sT0, sQH, 6)); a(salu("s_xor_b32", sT1, sT0, 64))
    a(valu("v_add_u32", t3, sT0, t1)); a(valu("v_add_u32", t6, sT1, t1))
    a(valu("v_add_u32", Kr(0, 0), sGrp, t3)); a(valu("v_add_u32", Kr(0, 1), sGrp, t6))
    a(valu("v_add_u32", Kr(1, 0), sGrP, t3)); a(valu("v_add_u32", Kr(1, 1), sGrP, t6))
    a(valu("v_bfe_u32", t1, L, 2, 2)); a(valu("v_mul_u32_u24", t1, PS, t1))
    a(valu("v_and_b32", t3, 1, L)); a(valu("v_lshl_add_u32", t6, t3, 4, t1))
    a(valu("v_bfe_u32", t3, L, 1, 1)); a(valu("v_lshl_add_u32", t6, t3, 3, t6))
    a(valu("v_lshl_add_u32", t3, t5, 7, t6))
    a(salu("s_mul_i32", sT2, sHH, 2 * GRP)); a(salu("s_add_u32", sT2, sT2, US)); a(valu("v_add_u32", t3, sT2, t3))
    a(valu("v_add_u32", qWr(0, 0), sT0, t3)); a(valu("v_add_u32", qWr(0, 1), sT1, t3))
    a(valu("v_add_u32", qWr(1, 0), 4 * US, qWr(0, 0))); a(valu("v_add_u32", qWr(1, 1), 4 * US, qWr(0, 1)))
    a(valu("v_and_b32", t4, 1, t5))
    a(valu("v_lshl_add_u32", t6, t2, 8, t6)); a(valu("v_mul_u32_u24", t3, GRP, t4)); a(valu("v_add_u32", t6, t6, t3))
    a(salu("s_lshl_b32", sT2, sW, 6)); a(valu("v_add_u32", t6, sT2, t6)); a(valu("v_accvgpr_write_b32", aWpat, t6))
    a(valu("v_lshl_add_u32", t1, t2, 8, t1)); a(valu("v_and_b32", t3, 3, L)); a(valu("v_lshl_add_u32", t1, t3, 3, t1))
    a(valu("v_mul_u32_u24", t3, US, t4)); a(valu("v_add_u32", t1, t1, t3)); a(valu("v_add_u32", t1, 4 * US, t1))
    a(salu("s_lshl_b32", sT0, sT0, 1)); a(salu("s_lshl_b32", sT1, sT1, 1))
    a(valu("v_add_u32", t3, sT0, t1)); a(valu("v_add_u32", t6, sT1, t1))
    a(valu("v_add_u32", Vr(0, 0), sGrp, t3)); a(valu("v_add_u32", Vr(0, 1), sGrp, t6))
    a(valu("v_add_u32", Vr(1, 0), sGrP, t3)); a(valu("v_add_u32", Vr(1, 1), sGrP, t6))
    a(salu("s_and_b32", sRk, {"h": sHH, "b": sB, "0": 0}[o.hx], 1)); a(salu("s_lshl_b32", sRk, sRk, 12))
    a(salu("s_lshl1_add_u32", sT2, sQH, sHH)); a(salu("s_lshl_b32", sT2, sT2, 12)); a(salu("s_add_u32", sT2, sT2, 6 * US))
    a(salu("s_lshl4_add_u32", sOw0, sT0, sT2)); a(salu("s_lshl4_add_u32", sOw1, sT1, sT2))
    a(valu("v_mov_b32", t1, "0x3f803f80"))
    for r in range(4): a(valu("v_accvgpr_write_b32", (ONES[r], "ones"), t1))
    return P, first, Q

def build_main(o):
    P, first, Q = prologue(o)
    sc = Sched(vmgap=int(o.vmgap), dswgap=int(o.dswgap), maxmem=int(o.maxmem), wiso=int(o.wiso), horizon=int(o.hor))
    F = sc.f
    nstamp = [1]
    def stamp(g, after=()):
        if int(o.stamps):
            n = nstamp[0]; nstamp[0] += 1
            F(raw(f"s_memrealtime s[{64+2*n}:{65+2*n}]"), g, g, after=after)
    nextvm = [0]
    def spread(ops, lo, step, q="dma", after=(), cap=None):
        out = []; pos = max(lo, nextvm[0]); pend = []
        for x in ops:
            pend.append(x)
            if x.kind in ("dma", "vml", "vms"):
                a_, b_ = int(pos), int(pos + step)
                if cap is not None: a_, b_ = min(a_, cap), min(b_, cap)
                for y in pend[:-1]: out.append(F(y, max(min(lo, b_), min(a_ - 3, b_)), b_, q=q, after=after))
                out.append(F(x, a_, b_, q=q, after=after)); pend = []
                if x.tag not in ('at', 'ct'): pos += step
        assert not pend
        nextvm[0] = pos
        return out
    cur = {}; lastrd = {}; firstrd = {}; lastwr = {}
    def M(d, dtag, a_, b_, c):
        cc = (d, cur[str(d)]) if c == "acc" else c
        i = mfma((d, dtag), a_, b_, cc); n = sc.m(i); cur[str(d)] = dtag
        for r, t in i.rd.items():
            lastrd[(r, t)] = n; firstrd.setdefault((r, t), n)
        lastwr[str(d)] = n
        return n
    lr = lambda reg, tag: max(lastrd[(r, tag)] for r in reg.regs())
    fr_ = lambda reg, tag: min(firstrd[(r, tag)] for r in reg.regs())
    for i in first + Q: F(i, -1, -1, q="dma")
    k0 = {}; qdone = {}
    for j, (I_, hf) in enumerate(SEQ):
        k0[j] = sc.n
        if j < 15: order = [(fp, b) for fp in range(4) for b in range(5) if b < 4 or fp < 2]
        else: order = [(fp, 4) for fp in range(2)] + [(fp, b) for b in range(4) for fp in range(4)]
        for fp, b in order:
            d = ACC(b, 4 * hf + fp) if b < 4 else SB(hf).sub(4 * fp, 4)
            for kk in range(2):
                bb = (Bq(I_, kk, b) if b < 4 else B9(I_, kk), f"x{I_}")
                n = M(d, "Qacc" if (I_, kk) == (7, 1) else f"q{I_}.{kk}", (Aq(fp, kk), f"w{j}"), bb, 0 if (I_, kk) == (0, 0) else "acc")
            qdone[str(d)] = n
    k0[16] = sc.n
    units = []; U = {}; G = {}; pre0 = {}; preL = {}
    P7 = {0: PB(0), 1: PB(1), 8: PB(2), 2: NM(0), 3: NM(4), 4: NM(1), 5: NM(2)}
    def pre(b):
        pre0[b] = sc.n
        for t in range(4): preL[b] = M(NM(b), f"pm{b}", (KF(0, 0, t), "k0"), (QF(b, t), f"Q{b}"), 0 if t == 0 else "acc")
    def qk(e, u):
        n = len(units); b, y = (u >> 1, u & 1) if u < 8 else (4, 0)
        s_ = SB(n & 1); p_ = PB(u % 3) if e < 7 else P7.get(u, s_.sub(0, 4))
        un = dict(e=e, u=u, b=b, y=y, S=s_, P=p_, n=n, q0=sc.n, hl=[0, 0])
        for h in range(2):
            for t in range(4):
                un["hl"][h] = M(s_.sub(4 * h, 4), f"s{n}", (KF(y, h, t), f"k{e}"), (QF(b, t), f"Q{b}"), (NM(b), f"nm{b}") if t == 0 else "acc")
        units.append(un); U[(e, u)] = un
    def pv(e, b, ds=range(-1, 8)):
        us = [U[(e, 2 * b)], U[(e, 2 * b + 1)]] if b < 4 else [U[(e, 8)]]
        g = G.setdefault((e, b), dict(p0=sc.n))
        for d in ds:
            acc = LS(b) if d < 0 else (ACC(b, d) if b < 4 else O9(d))
            for k, un in enumerate(us):
                a_ = (ONES, "ones") if d < 0 else (VF(e, un["y"], d), f"v{e}")
                g["pL"] = M(acc, f"o{e}.{k}" if k + 1 < len(us) else f"o{e}", a_, (un["P"], f"p{un['n']}"), 0 if e == 0 and k == 0 else "acc")
        for un in us: un["g"] = g
    st0 = {}
    for e in range(8):
        st0[e] = sc.n
        if e == 0: pre(0); pre(1)
        qk(e, 0); qk(e, 1)
        if e: pv(e - 1, 4)
        if e < 7:
            for b in range(1, 4):
                if e == 0: pre(b + 1)
                qk(e, 2 * b); qk(e, 2 * b + 1); pv(e, b - 1)
            qk(e, 8); pv(e, 3)
        else:
            for u in (8, 2, 3, 4, 5, 6, 7): qk(e, u)
            for b in (4, 0, 1, 2): pv(e, b, [-1])
            pv(e, 4, range(8)); pv(e, 3, [-1])
            for b in range(4): pv(e, b, range(8))
    attn_end = sc.n - 1
    odone = dict(lastwr)
    ou0 = {}; ouh = {}
    OU = [(p, qb) for p in range(4) for qb in QB]
    mg = int(o.merge)
    if mg:
        OU[:18] = [(int(z[0]), int(z[1])) for z in o.ouseq.split(",")]
    for n, (p, qb) in enumerate(OU):
        if True:
            ou0[n] = sc.n
            for u in range(2):
                for ks in range(8):
                    ouh[(n, u)] = M(SB(n & 1).sub(4 * u, 4), f"r{n}", (Ao(p, ks, u), f"wo{p}"), (Bo(qb, ks), f"of{qb}"), 0 if ks == 0 else "acc")
    last = sc.n - 1
    ou0[36] = ou0[37] = last + 1
    def rdA(j, fp):
        u = WQU[j % 6]; win = 0 if u <= 4 else 1
        return [dsr(TR, (Aq(fp, kk).sub(2 * h, 2), f"w{j}"), qWr(win, fp >> 1), (u - 1 - 4 * win) * US + kk * GRP + 512 * h + 32 * (fp & 1))
                for kk in range(2) for h in range(2)]
    def rdB(I_):
        u = XU[I_ % 3]; win = 1 if u == 7 else 0
        l = [dsr(B128, (Bq(I_, kk, b), f"x{I_}"), qXr(win), (u - 7 * win) * US + (b >> 1) * GRP + (b & 1) * 512 + kk * 64)
             for b in range(4) for kk in range(2)]
        return l + [dsr(B128, (B9(I_, kk), f"x{I_}"), qX9r, ((I_ >> 1) & 1) * GRP + (I_ & 1) * 512 + kk * 64) for kk in range(2)]
    bpre = F(barrier(vm=("x0", "xn0", "wq0")), -1, -1, q="dma")
    stamp(-1, [bpre])
    l = rdB(0)
    prev = [F(x, -1, -1, q="lds", after=[bpre]) for x in rdA(0, 0) + l[:6]]
    prev += [F(x, -1, 7, q="lds", after=[bpre]) for x in l[6:] + rdA(0, 1) + rdA(0, 2) + rdA(0, 3)]
    BQ = {}
    for j in range(16):
        g = k0[j] + (14 if j == 0 else 9)
        nI = SEQ[j + 1][0] if j < 15 and SEQ[j + 1][1] == 0 else None
        vm = []
        if j < 15: vm.append(f"wq{j+1}")
        if nI is not None: vm += [f"x{nI}", f"xn{nI//2}"]
        if j == 10: vm = ["wq15", "all0"]
        bq = BQ[j] = F(barrier(vm=vm), g, g, after=prev)
        if o.qst and j in eval(o.qst): stamp(g, [bq])
        prev = []
        if j < 15:
            for fp in range(4):
                for x, kk in zip(rdA(j + 1, fp), (0, 0, 1, 1)):
                    lo = max(lr(Aq(fp, kk), f"w{j}"), g)
                    prev.append(F(x, lo, max(min(fr_(Aq(fp, kk), f"w{j+1}") - 6, k0[j + 1] + 3), lo), q="ldsA", after=[bq]))
        if nI is not None:
            for n, x in enumerate(rdB(nI)): prev.append(F(x, g, min(k0[j + 1] - 7 + n, k0[j + 1] + 2), q="ldsB", after=[bq]))
    step = 3.0; seen = set(o.qseq.split("|")[0].split(","))
    for tok in o.qseq.split("|")[1].split(","):
        if tok[0] == "@": nextvm[0] = max(nextvm[0], int(float(tok[1:]) * 36)); continue
        if tok[0] == "+": nextvm[0] += int(tok[1:]); continue
        if tok[0] == "p": step = float(tok[1:]); continue
        seen.add(tok)
        ops, dep = qtok(tok, o)
        spread(ops, BQ[dep].lo if dep >= 0 else 0, step, after=[BQ[dep]] if dep >= 0 else [])
    assert len([t for t in seen if t[0] not in "ct"]) == 16 + 8 + 4 + 4 + 4, sorted(seen)
    stamp(k0[15])
    if o.xst:
        for g_ in eval(o.xst): stamp(g_)
    def pack_q(src, dst, tdst, hi):
        lo = min(max(qdone[str(src.sub(0, 4))], qdone[str(src.sub(4, 4))]) + 3, hi)
        ops = [valu("v_mul_f32", (src[m], "t"), sC, (src[m], "Qacc")) for m in range(8)]
        ops += [valu("v_cvt_pk_bf16_f32", (dst[m], "t2"), (src[2 * m], "t"), (src[2 * m + 1], "t")) for m in (0, 2, 1, 3)]
        ops += [swap("v_permlane32_swap_b32", (dst[m], "t2"), (dst[m + 2], "t2"), tdst, tdst) for m in range(2)]
        return [F(x, lo, hi, q="qe") for x in ops]
    q9w = []
    for hf in range(2):
        l = pack_q(SB(hf), PB(hf), "q9p", pre0[0] - 2)
        q9w.append(F(dsw("ds_write_b128", qA8, (PB(hf), "q9p"), 1024 * hf), BQ[15].lo, min(U[(0, 0)]["q0"] - 1, pre0[2] - 3 + int(o.ba0)), q="q9w", after=[l[-1], BQ[15]]))
        for t, b in ([(t, b) for t in (0, 1) for b in range(4)] if hf == 0 else [(t, b) for b in range(4) for t in (2, 3)]):
            pack_q(V(32 * b + 8 * t, 8), QF(b, t), f"Q{b}", pre0[b] - 1 + t)
    for b in range(5):
        n = NM(b); pm = f"pm{b}"; nm = f"nm{b}"; hi = fr_(n, nm) - 1
        ops = [valu("v_accvgpr_read_b32", vT1, SAV(b)),
               valu("v_max3_f32", n[0], (n[0], pm), (n[1], pm), vT1), valu("v_max3_f32", n[0], n[0], (n[2], pm), (n[3], pm)),
               valu("v_mov_b32", n[1], n[0]), swap("v_permlane32_swap_b32", n[0], n[1]), valu("v_max_f32", n[0], n[0], n[1]),
               valu("v_mov_b32", n[1], n[0]), swap("v_permlane16_swap_b32", n[0], n[1]),
               I(f"v_min_f32_e64 {n[0]}, -{n[0]}, -{n[1]}", "valu", rd=[n[0], n[1]], wr=[(n[0], nm)]),
               valu("v_mov_b32", (n[1], nm), (n[0], nm)), valu("v_mov_b64", (n.sub(2, 2), nm), (n.sub(0, 2), nm))]
        for x in ops: F(x, min(preL[b] + 3, hi), hi, q="nm")
    def rdK(e, y, lo, after, hi=10**9):
        out = []
        for h in range(2):
            for t in range(4):
                r = KF(y, h, t); l_ = max(lo, lr(r, f"k{e-1}")) if e else lo
                x = dsr(B128, (r, f"k{e}"), Kr(y, t & 1), (e & 1) * 2 * US + 512 * h + 128 * (t >> 1))
                out.append(F(x, l_, max(l_, min(fr_(r, f"k{e}") - 6, hi)), q=f"ldsK{y}", after=after))
        return out
    def rdV(e, y, lo, after, hi):
        out = []
        for d in range(8):
            r = VF(e, y, d); l_ = max(lo, lr(r, f"v{e-1}")) if e and y else lo
            for h in range(2):
                x = dsr(TR, (r.sub(2 * h, 2), f"v{e}"), Vr(y, d >> 2), (e & 1) * 2 * US + 512 * h + 32 * (d & 3))
                out.append(F(x, l_, max(l_, min(fr_(r, f"v{e}") - 6, hi)), q=f"ldsV{y}", after=after))
        return out
    BB = {}
    vset = lambda src: [valu("v_accvgpr_read_b32", vKV(0), src)] + [valu("v_subrev_u32", vKV(pp), 32 * pp, vKV(0)) for pp in (1, 2, 3)]
    for e in range(8):
        if e == 0:
            g = k0[16] - int(o.bk0)
            bk = F(barrier(vm=["k0"], lgkm=False), g, g, after=[BQ[15]])
            gv = pre0[2] - 1 + int(o.ba0)
            bv = F(barrier(vm=["v0"]), gv, gv, after=q9w + [bk])
            for t in range(4):
                F(dsr(B128, (QF(4, t), "Q4"), qB8 if t & 1 else qA8, 1024 * (t >> 1)), gv, pre0[4] - 6, q="ldsQ9", after=[bv])
        else:
            g = U[(e - 1, 8)]["q0"] - 1 - int(o.bao)
            sep = e == 7 or e >= int(o.sepv)
            bk = F(barrier(vm=[f"k{e}"] + ([] if sep else [f"v{e}"]), lgkm=False), g, g, after=[BB[e - 1]])
            bv, gv = bk, g
            if sep and e < 7:
                gv = st0[e] + int(o.bvo)
                bv = F(barrier(vm=[f"v{e}"], lgkm=False), gv, gv, after=[bk])
            if e == 7:
                gv = G[(7, 4)]["p0"] - 1 - int(o.bv7)
                gx = st0[7] + int(o.bxo)
                bx = F(barrier(vm=["wo0a"]), gx, gx, after=[bk])
                bv = F(barrier(vm=["v7"]), gv, gv, after=[bx])
                stamp(gv, [bv])
        gb = G[(e, 0)]["p0"] + int(o.bbo) if e < 7 else G[(7, 4)]["p0"] + int(o.bb7)
        if e == 0 and int(o.bb0): gb = gv + int(o.bb0)
        rk = rdK(e, 0, g, [bk]) + rdK(e, 1, g, [bk], gx - 4 if e == 7 else 10**9)
        rv = rdV(e, 0, gv, [bv], gb - 5) + rdV(e, 1, gv, [bv], gb - 5)
        bb = BB[e] = F(barrier(vm=["wo1a"] if e == 7 else []), gb, gb, after=rk + rv)
        if e in (0, 3, 6): stamp(gb, [bb])
        ops = []
        if e < 6:
            for part in range(4 if e < 5 else 2): ops += g_kv(e + 2, part, o)
        if e == int(o.ate):
            ops += [valu("v_lshl_add_u32", vT0, vL16, 4, sAt), valu("v_mov_b32", vT1, 1),
                    vstore(vT1, vT0, Sdbg, 0, 0, "", tag="at", op="buffer_atomic_add")]
        if e == 3 and int(o.cpf): ops += code_touch(V(254, 2), vTs, vL16, shift=3)
        if ops: spread(ops, gb, float({0: o.astep0, 4: o.astep4, 5: o.astep5}.get(e, o.astep)), after=[bb])
    bx.after += rk
    wts = [1.0] * 8; win = int(o.win)
    def allowed(limit):
        m = 0; c = 0.0
        while m < len(wts) and c + wts[-1 - m] <= limit + 1e-9: c += wts[-1 - m]; m += 1
        return m
    def capped(ops, w):
        for x in ops:
            if x.kind == "dma": x.text = f"s_waitcnt vmcnt({allowed(win - w)})\n" + x.text; wts.append(w)
        return ops
    es = float(o.estep)
    spread(capped(vset(aWo0) + g_wo(0, 0) + g_wo(0, 1), float(o.wow)), BB[6].lo, es / 2, after=[BB[6]])
    spread(capped(vset(aKv0) + g_kv(7, 2, o, False) + g_kv(7, 3, o, False), 1.0), BB[6].lo, es, after=[BB[5]])
    early = vset(aWo0) + g_wo(1, 0)
    for n in range(win - 1, 0, -1):
        g_ = min(int(nextvm[0]), gv - 3)
        F(raw(f"s_waitcnt vmcnt({allowed(n)})"), g_, g_ + 2, q="dma")
        idx = [k for k, x in enumerate(early) if x.kind == "dma"][:2]
        if idx:
            spread(early[:idx[-1] + 1], max(g_ + 1, gx), (es - 2) / 2, after=[bx]); early = early[idx[-1] + 1:]; wts += [0.0] * len(idx)
        nextvm[0] = max(nextvm[0], g_ + es)
    assert not early
    nextvm[0] = 0
    spread(g_wo(1, 1), gv + int(o.w1bo), float(o.ostep0), after=[bv])
    spread(g_wo(2, 0), BB[7].lo + 1, float(o.ostep1), after=[BB[7]])
    vA8, vLMw, vW, vOw, vB8, vLMr = Kr(0, 0), Kr(0, 1), (Kr(1, 0), Kr(1, 1)), (Vr(0, 0), Vr(0, 1)), Vr(1, 0), Vr(1, 1)
    vBr, vFl, vSt, vO9 = (PB(2)[0], PB(2)[1]), vLMw, vLMr, vB8
    g = U[(7, 8)]["q0"]; p7 = G[(7, 4)]["p0"]
    adr = [valu("v_bfe_u32", vLMw, vL16, 1, 7), valu("v_add_u32", vLMw, sA8, vLMw), dsw("ds_write_b32", vLMw, (NM(4)[0], "nm4"), 4096 + 4),
           valu("v_accvgpr_read_b32", vW[0], aWpat), valu("v_add_u32", vW[1], 4 * US, vW[0]), valu("v_add_u32", vA8, sA8, vL16)]
    adr = [F(x, gx, g + 4, q="adr", after=rk) for x in adr]
    BB[7].after.append(F(dsw("ds_write_b32", vLMw, (LS(4)[0], "o7"), 4096), p7 + 4, BB[7].lo - 2, q="adr"))
    adr2 = [valu("v_bfe_u32", vLMr, vL16, 1, 7), valu("v_add_u32", vLMr, sB8, vLMr),
            valu("v_add_u32", vOw[0], sOw0, vL16), valu("v_add_u32", vOw[1], sOw1, vL16), valu("v_add_u32", vB8, sB8, vL16)]
    adr2 = [F(x, p7, BB[7].lo + 3, q="adr", after=rv) for x in adr2]
    lastP = {}
    for un in units:
        n, s_, p_ = un["n"], un["S"], un["P"]
        nx = units[n + 2]["q0"] if n + 2 < len(units) else 10**9
        pfree = -1; aft = []
        if str(p_) in lastP: pfree = lastP[str(p_)]["g"]["pL"]
        for b in range(5):
            if str(p_) == str(NM(b)): pfree = lr(p_, f"nm{b}") + 1
        if str(p_) == str(NM(4)): aft = [adr[2]]
        if n < 2: aft = q9w
        lastP[str(p_)] = un
        ex = []
        for j in range(8):
            hi = min(nx - 1 + 4 * (j >> 2), un["g"]["p0"] - 1); lo = min(un["hl"][j >> 2] + 3, hi)
            ex.append(F(trans("v_exp_f32", (s_[j], f"e{n}"), (s_[j], f"s{n}")), lo, max(lo, hi - 1), q="exp"))
        for m in range(4):
            hi = min(nx - 1 + 4 * (m >> 1), un["g"]["p0"] - 1)
            F(valu("v_cvt_pk_bf16_f32", (p_[m], f"p{n}"), (s_[2 * m], f"e{n}"), (s_[2 * m + 1], f"e{n}")),
              max(ex[2 * m + 1].lo, pfree), hi, q="cvt", after=[ex[2 * m + 1]] + aft)
    def rdAo(p, kss=range(8)):
        return [dsr(TR, (Ao(p, ks, u).sub(2 * h, 2), f"wo{p}"), vW[WOU[p][ks >> 1] >> 2],
                    (WOU[p][ks >> 1] & 3) * US + (ks & 1) * 2 * GRP + 512 * h + 32 * u)
                for u in range(2) for ks in kss for h in range(2)]
    fu = [OU.index((0, qb)) for qb in (0, 1, 2, 3, 8)]
    gB = [attn_end - int(o.b1o)] + [ou0[fu[k]] - int(o.bko1 if k == 1 and mg else o.bko) for k in range(1, 5)]
    pub = [[] for _ in range(5)]
    lm = NM(3)
    mr = [dsr("ds_read_b64", lm.sub(0, 2), vLMw, 4096), dsr("ds_read_b64", lm.sub(2, 2), vLMr, 4096)]
    mr = [F(x, BB[7].lo, BB[7].lo + 10, q="lm", after=[BB[7], adr2[1]]) for x in mr]
    ops = [valu("v_add_u32", vBr[1], 6 * US, vL16),
           salu("s_lshl_b32", sT0, sW, 2), valu("v_add_u32", vFl, sT0, vBr[1]), salu("s_lshl_b32", sT0, sW, 10), valu("v_add_u32", vSt, sT0, vL16),
           valu("v_sub_f32", lm[1], lm[1], lm[3]), trans("v_exp_f32", lm[1], lm[1]), valu("v_accvgpr_read_b32", vTs, (LS(0)[0], "o7")),
           valu("v_fma_f32", lm[0], lm[2], lm[1], lm[0]), trans("v_rcp_f32", lm[2], lm[0]),
           valu("v_add_f32", vTs, vTs, lm[0]), valu("v_mul_f32", lm[1], lm[1], lm[2])]
    for b in (1, 2, 3): ops += [valu("v_accvgpr_read_b32", lm[3], (LS(b)[0], "o7")), valu("v_add_f32", vTs, vTs, lm[3])]
    ops.append(dsw("ds_write_b32", vFl, vTs, FLAG - 6 * US))
    lsum = [F(x, max(BB[7].lo + 4, G[(7, 4)]["pL"], odone[str(LS(3))] + 4), gB[0] - 4, q="lm") for x in ops]
    pub[0] += lsum
    raww = [F(x, G[(7, 4)]["pL"] + 4, gB[0] - 4, q="ow", after=[adr[-1]]) for d in range(4) for x in w128(o, vA8, (O9(4 + d), "o7"), 1024 * d)]
    pub[0] += raww
    def norm_block(b):
        a32 = V(32 * b, 32); hi = gB[b] - 4
        ops = [valu("v_accvgpr_read_b32", vT1, (LS(b)[0], "o7")), trans("v_rcp_f32", vT0, vT1)]
        for x in ops: F(x, odone[str(LS(b))] + 4, hi, q="ep")
        for k in range(4):
            ops = [valu("v_mul_f32", (a32[8 * k + m], "n"), (a32[8 * k + m], "o7"), vT0) for m in range(8)]
            ops += [valu("v_cvt_pk_bf16_f32", (a32[8 * k + m], "of"), (a32[8 * k + 2 * m], "n"), (a32[8 * k + 2 * m + 1], "n")) for m in range(4)]
            lo = odone[str(ACC(b, 2 * k + 1))] + 3; hk = max(lo, hi - 4 * (3 - k))
            for x in ops: x = F(x, lo, hk, q="ep")
            for y in w128(o, vOw[k >> 1], (a32.sub(8 * k, 4), "of"), (b & 1) * US + (k & 1) * 1024):
                pub[b].append(F(y, max(lo, gB[b - 1]) if b >= 2 else lo, hk, q="ow", after=[x, adr2[-1], BP[b - 1] if b >= 2 else BB[7]]))
    BP = [barrier(vm=v_) for v_ in (["wo1b"], [], [], [], ["wo2a", "wo2b"])]
    bv.after += [F(x, max(gx, G[(6, 4)]["pL"]), gv - 5, q="ldsK0", after=[adr[-1], bx]) for x in rdAo(0, range(4))]
    BB[7].after += [F(x, gv, BB[7].lo - 4, q="ldsK0", after=[bv]) for x in rdAo(0, range(4, 8))]
    pub[0] += [F(x, BB[7].lo, gB[0] - 4, q="ldsK0", after=[BB[7]]) for x in rdAo(1, range(4))]
    for b in range(4): norm_block(b)
    F(BP[0], gB[0], gB[0], after=pub[0])
    stamp(attn_end)
    rdA0 = []
    for x in rdAo(1, range(4, 8)):
        r = next(iter(x.wr)); lo = max(gB[0], lastrd[(r, "v7")])
        rdA0.append(F(x, lo, max(lo, min(firstrd[(r, "wo1")] - int(o.lead), gB[1] - 3)), q="ldsK0", after=[BP[0]]))
    fl = NM(0)
    fr = F(dsr(B128, fl, vBr[1], FLAG - 6 * US), gB[0], gB[0] + 1, q="ldsB", after=[BP[0]])
    chk = [valu("v_add_f32", fl[0], fl[0], fl[1]), valu("v_add_f32", fl[2], fl[2], fl[3]), valu("v_add_f32", fl[0], fl[0], fl[2]),
           raw(f"v_cmp_nge_f32 vcc, {hex(THR)}, {fl[0]}", rd=[fl[0]], kind="valu"),
           raw(f"s_cmp_eq_u32 s54, {77 if o.abl else 0}\ns_cselect_b64 vcc, vcc, 0\ns_cbranch_vccnz Lslow", cost=2, kind="br")]
    chk = [F(x, gB[0] + 7, gB[0] + 14, q="fl", after=[fr]) for x in chk]
    rcv = [V(168 + 4 * d, 4) for d in range(4)]
    mr = [F(dsr(B128, (rcv[d], "rcv"), vB8, 1024 * d), gB[2 + mg], gB[3] + (20 if mg else -6), q="lm", after=[chk[-1]]) for d in range(4)]
    for x in (salu("s_lshl_b32", sT0, sW, 11), valu("v_add_u32", vO9, sT0, vBr[1])): a9 = F(x, gB[2], gB[4] - 12, q="fl", after=mr)
    for k in range(2):
        ops = []
        for d in (2 * k, 2 * k + 1):
            for m in range(4):
                t = (vT1, lm[3])[m & 1]
                ops += [valu("v_accvgpr_read_b32", t, (O9(d)[m], "o7")), valu("v_mul_f32", (rcv[d][m], "rs"), (rcv[d][m], "rcv"), lm[1]),
                        valu("v_fma_f32", (rcv[d][m], "n"), t, lm[2], (rcv[d][m], "rs"))]
        for m in range(4):
            src = rcv[2 * k + (m >> 1)]
            ops.append(valu("v_cvt_pk_bf16_f32", (rcv[2 * k][m], "of"), (src[2 * (m & 1)], "n"), (src[2 * (m & 1) + 1], "n")))
        for x in ops: x = F(x, gB[2], gB[4] - 8 + 4 * k, q="ep", after=mr + [lsum[-1]])
        for y in w128(o, vO9, (rcv[2 * k], "of"), 3 * US + 1024 * k): pub[4].append(F(y, gB[2], gB[4] - 8 + 4 * k, q="ow", after=[x, a9]))
    def rdBo(qb, ks):
        if qb < 8: return dsr(B128, (Bo(qb, ks), f"of{qb}"), vBr[1], (qb & 1) * US + (qb >> 2) * 8192 + 1024 * ks)
        return dsr(B128, (Bo(qb, ks), f"of{qb}"), vBr[1], 3 * US + 1024 * ks)
    rdp = rdA0; prevb = BP[0]
    for k in range(5):
        if k: prevb = F(BP[k], gB[k], gB[k], after=pub[k] + [prevb] + rdp); rdp = []
        for n in (fu[k], fu[k] + 1)[:2 if k < 4 else 1]:
            qb = OU[n][1]
            for ks in range(8):
                late = qb >= 5 or (qb == 4 and ks >= 6)
                hi = max(gB[k] + ks // 2, ou0[n] - int(o.lead) + ks)
                if k < 4: hi = min(hi, gB[k + 1] - 3)
                rdp.append(F(rdBo(qb, ks), gB[k], hi, q="ldsB", after=[BP[k]] + ([chk[-1]] if late else [])))
    gd = {p: ou0[9 * p] + int(o.bdo) for p in range(4)}
    w1b = spread(g_wo(2, 1), gB[0] + 1, float(o.ostep2), after=[BP[0]])
    spread(g_wo(3, 0), gB[1] + 1, float(o.ostep3), after=[BP[1]])
    spread(g_wo(3, 1), gB[4] + 1, float(o.ostep4), after=[BP[4]])
    for n, x in enumerate(rdAo(2)):
        r = next(iter(x.wr)); F(x, lastrd[(r, "wo0")], ou0[18] - 8 + n // 2, q="ldsK0", after=[BP[4]])
    bd = F(barrier(vm=["wo3a", "wo3b"], lgkm=False), gd[2], gd[2], after=[BP[4]])
    for n, x in enumerate(rdAo(3)): F(x, gd[2], ou0[27] - 8 + n // 2, q="ldsK0", after=[bd])
    ts = int(o.ts); assert ts >= 2
    for n in range(36):
        s_, p_ = SB(n & 1), PB(n & 1)
        for m in range(4):
            lo = min(ouh[(n, m >> 1)] + (8 if n > 8 + 6 * mg else 4), last)
            x = F(valu("v_cvt_pk_bf16_f32", (p_[m], f"rp{n}"), (s_[2 * m], f"r{n}"), (s_[2 * m + 1], f"r{n}")), lo, min(lo + (16 if n == 1 else 6), last), q="st")
        pp_, qb = OU[n]
        ops = ([salu("s_mul_i32", sT3, sP(pp_), 144)] if n == 0 or OU[n - 1][0] != pp_ else []) + [salu("s_add_u32", sSt, sT3, 4096 * qb),
               vstore((p_, f"rp{n}"), vSt3 if pp_ == ts else vSt, Sws, sSt, 0, o.stflag, tag=f"st{pp_}")]
        if n == 9 * ts:
            pre_ = [salu("s_xor_b32", sG, sJ, sW), raw(f"s_and_b32 {sG}, {sG}, 3\ns_cselect_b32 {sG}, 0, 0x10000000", wr=[sG], cost=2, kind="br"),
                    valu("v_add_u32", vSt3, sG, vSt), salu("s_lshr_b32", sG, sG, 12), salu("s_xor_b32", sG, sG, 0x10000), salu("s_add_u32", sG, sG, 8 * US),
                    valu("v_add_u32", vOwn, sG, vL16), valu("v_add_u32", vOwr, 8 * US, vSt)]
            for y in pre_: y = F(y, ou0[n - 2], ou0[n], q="own")
            own_rdy = y
        sw = int(str(o.swin).split(",")[n // 9 % len(str(o.swin).split(","))])
        if sw and n >= sw:
            ops.insert(len(ops) - 1, waitvm(f"su{n - sw}"))
        ops[-1].utag = f"su{n}"
        for x in ops: F(x, lo, min(lo + (20 if n < 2 else 8), last), q="st", after=[chk[-1]] + (w1b[-1:] if n == 0 and int(o.hold) else []) + ([own_rdy] if n == 9 * ts else []))
        if pp_ == ts: F(dsw("ds_write_b128", vOwn, (p_, f"rp{n}"), 1024 * qb), min(lo + 2, last), min(lo + 10, last), q="st", after=[BP[4]])
    t = V(168, 4)
    ops = [salu("s_lshl_b32", sT1, sB, 4), valu("v_mov_b32", vRdA, sT1),
           vload(vRdy, vRdA, Sdbg, 0, 0, "sc1", tag="rdy", op="buffer_load_dword"),
           salu("s_lshl4_add_u32", sT0, sW, sJ), salu("s_lshl_b32", sT0, sT0, 7),
           valu("v_lshrrev_b32", vF, 9, vL16), valu("v_lshl_add_u32", vF, vF, 15, sT0), valu("v_lshrrev_b32", vOne, 2, vL16),
           valu("v_add_u32", vF, vF, vOne), valu("v_mov_b32", vOne, 1)]
    gf = {p: ou0[max(n for n in range(36) if OU[n][0] == p) + 1] + int(o.flo) for p in range(3)}
    for x in ops: F(x, gB[4], gB[4] + 40, q="fl")
    ops = [raw(f"v_cmp_gt_u32 vcc, 16, {vRdy}", rd=[vRdy], kind="valu"), raw("s_cbranch_vccnz Lrdy_spin\nLrdy_back:", kind="br")]
    for p in range(3):
        ops = [waitvm(f"st{p}")] + ops + [salu("s_lshl_b32", sAt, sP(p), 5), vstore(vOne, vF, Smb, sAt, 0, "sc1", tag="fl", op="buffer_store_dword")]
        for x in ops: flag0 = F(x, gf[p], gf[p] + 2, q="fl")
        ops = []
        if p == 0:
            su = [
               salu("s_lshr_b32", sCc, sP(int(o.ts)), 6), salu("s_and_b32", sT0, sJ, 3), salu("s_add_u32", sCc, sCc, sT0),
               valu("v_bfe_u32", vPo, vL16, 4, 2), valu("v_lshrrev_b32", t[0], 8, vL16),
               salu("s_lshl_b32", sT0, sCc, 11), valu("v_lshl_add_u32", vPo, vPo, 7, sT0),
               salu("s_add_u32", sGo, sJ, 4 * int(o.ts)), salu("s_and_b32", sGo, sGo, 12), salu("s_lshl_b32", sGo, sGo, 7),
               salu("s_lshr_b32", sT0, sCc, 2), salu("s_mul_i32", sT0, sT0, 9), salu("s_add_u32", sT0, sT0, sW),
               salu("s_and_b32", sT1, sJ, 3), salu("s_lshl2_add_u32", sT0, sT0, sT1), salu("s_lshl_b32", sT0, sT0, 10),
               valu("v_add_u32", vR[0], sT0, vL16), valu("v_add_u32", vR[1], 16384, vR[0]),
               salu("s_lshl_b32", sT1, sW, 28), salu("s_add_u32", sT0, sT1, 32768), valu("v_add_u32", vR[2], sT0, vR[0]),
               valu("v_bfe_u32", t[1], vL16, 4, 4), valu("v_lshlrev_b32", vO[0], 10, t[1]), valu("v_lshl_add_u32", vO[0], t[0], 4, vO[0]),
               salu("s_lshl_b32", sT0, sW, 14), salu("s_lshl_b32", sT2, sCc, 6), salu("s_add_u32", sT0, sT0, sT2),
               valu("v_add_u32", vO[0], sT0, vO[0]), valu("v_add_u32", vO[1], 65536, vO[0]),
               salu("s_add_u32", sT0, sT1, 131072), valu("v_add_u32", vO[2], sT0, vO[0]),
               valu("v_and_b32", t[2], 1, t[1]), valu("v_lshlrev_b32", t[2], 4, t[2]), valu("v_mov_b32", t[3], "0x3f80"),
               valu("v_lshlrev_b32", t[2], t[2], t[3]),
               valu("v_bfe_u32", t[3], t[1], 2, 1), valu("v_xor_b32", t[3], t[3], t[0]),
               valu("v_and_b32", t[0], 1, t[3]), valu("v_lshlrev_b32", t[0], 3, t[0]),
               valu("v_lshrrev_b32", t[3], 1, t[3]), valu("v_lshl_add_u32", t[0], t[3], 2, t[0]),
               valu("v_lshrrev_b32", t[3], 3, t[1]), valu("v_lshl_add_u32", t[0], t[3], 1, t[0]),
               valu("v_bfe_u32", t[3], t[1], 1, 1), valu("v_add_u32", t[0], t[0], t[3]),
               valu("v_lshlrev_b32_e64", t[0], t[0], 1)]
            for m in range(8): su += [valu("v_bfe_i32", SEL[m], t[0], m, 1), valu("v_and_b32", SEL[m], SEL[m], t[2])]
            for x in su: F(x, ou0[18], gf[1 + mg] - 1, q="su" if mg else "fl", after=[flag0])
    if int(o.r0in):
        g = ou0[27] - int(o.pollo)
        p0 = F(vload(vRdy, vPo, Smb, sGo, 0, "sc1", tag="poll0", op="buffer_load_dword"), g, g + 2, q="r0", after=[su[-1]])
        g = ou0[27] + int(o.r0o)
        for x in (raw(f"v_cmp_eq_u32 vcc, 0, {vRdy}", rd=[vRdy], kind="valu"), raw("s_cbranch_vccnz Lp0_spin\nLp0_back:", kind="br")): F(x, g, g + 1, q="r0")
        ops = [salu("s_mul_i32", sOff, sGo, PART // 128), salu("s_sub_u32", sGo, sGo, 512), salu("s_and_b32", sGo, sGo, "0x600")]
        for i in range(4):
            if i: ops.append(salu("s_add_u32", sOff, sOff, PART))
            ops += [vload(A(12 * i + 4 * f, 4), vR[f], Sred, sOff, 0, o.rflag, tag="r0") for f in range(3)]
        nextvm[0] = 0
        r0 = spread(ops, g + 2, float(o.r0step), q="r0")
    g = last - int(o.pollo)
    F(vload(vRdy, vPo, Smb, sGo, 0, "sc1", tag="poll", op="buffer_load_dword"), g, g + 2, q="fl", after=[r0[2]] if int(o.r0in) else [su[-1]])
    if int(o.adw):
        for x in (salu("s_and_b32", sG, sJ, 12), salu("s_lshl_b32", sG, sG, 7), vload(vRdA, vPo, Smb, sG, 0, "sc1", tag="poll", op="buffer_load_dword")):
            F(x, g, g + 6, q="fl", after=[own_rdy])
    F(waitvm("poll"), last, last, q="st")
    seq = sc.run()
    if "a" in o.abl: seq = [x for x in seq if not (x.gap > 100 and x.kind in ("dma", "vml"))]
    if "s" in o.abl: seq = [x for x in seq if not (x.kind == "vms" and x.tag.startswith("st"))]
    if "w" in o.abl: seq = [x for x in seq if not (x.kind == "dma" and x.tag[:3] == "wo0")]
    if "d" in o.abl: seq = [x for x in seq if not (x.kind == "dsw" and x.gap > 1700)]
    if "o" in o.abl: seq = [x for x in seq if not (x.kind == "dma" and x.tag[:3] in ("wo1", "wo2", "wo3"))]
    seq = P + seq
    if not o.abl: check_tags(seq)
    seq, nops = pad_hazards(seq)
    sys.stderr.write(f"mfma {len(sc.bb)} instrs {len(seq)} over {sc.stats['over']} idle {sc.stats['idle']} waits {sc.stats['waits']} nop-states {nops}\n")
    return seq, nstamp[0]

def reduce_tail(o, a, nst):
    acc = lambda f, u: V(8 * f + 4 * u, 4)
    buf = lambda t, i, f: A(48 * t + 12 * i + 4 * f, 4)
    poll = f"buffer_load_dword {vRdy}, {vPo}, {Smb}, {sGo} offen sc1"
    a(f"s_lshl_b32 s61, {sP(3)}, 5"); a("s_mov_b32 s63, 0")
    if int(o.stamps): a(f"s_memrealtime s[{64+2*nst}:{65+2*nst}]")
    def mf(t):
        for f in range(3):
            for u in range(2):
                for i in range(4):
                    a(f"v_mfma_f32_16x16x32_bf16 {acc(f,u)}, {SEL.sub(4*u,4)}, {buf(t,i,f)}, {0 if t == 0 and i == 0 else acc(f,u)}")
    pa = int(o.polli)
    t0 = int(o.r0in); ts = int(o.ts)
    nl = lambda t: 9 if t == ts else 12
    for t in range(t0, 4):
        a(f"s_mul_i32 s45, {sGo}, {PART // 128}")
        if t == 2:
            a("s_waitcnt lgkmcnt(0)"); a("s_barrier")
            for f in range(3): a(f"ds_read_b128 {buf(ts,3,f)}, {vOwr} offset:{4096*f}")
        if t == ts: a("s_mov_b32 s62, s45")
        if t > t0: a(f"s_waitcnt vmcnt({nl(t-1) - 3 * pa})")
        a(f"Lpoll{t}:"); a(f"v_cmp_eq_u32 vcc, 0, {vRdy}"); a(f"s_cbranch_vccz Lgo{t}")
        a(poll); a("s_add_u32 s63, s63, 1"); a("s_waitcnt vmcnt(0)"); a("s_cmp_lt_u32 s63, 0x40000"); a(f"s_cbranch_scc1 Lpoll{t}")
        a(f"Lgo{t}:")
        adw = int(o.adw) if t < 3 else 0
        if adw:
            a(f"v_cmp_eq_u32 vcc, 0, {vRdA}"); a("s_and_b32 s52, s51, 3"); a("s_lshl_b32 s52, 1, s52"); a("s_xor_b32 s52, s52, 15")
            a("s_and_b32 vcc_lo, vcc_lo, s52"); a("s_and_b64 vcc, vcc, 15")
        a(f"s_sub_u32 {sGo}, {sGo}, 512"); a(f"s_and_b32 {sGo}, {sGo}, 0x600")
        for i in range(nl(t) // 3):
            if t == ts: a(f"s_add_u32 s52, s51, {i+1}"); a("s_and_b32 s52, s52, 3"); a(f"s_mul_i32 s52, s52, {PART}"); a("s_add_u32 s45, s62, s52")
            if i == int(o.fl3) and t == t0:
                a(f"s_waitcnt vmcnt({3*i})"); a(f"buffer_store_dword {vOne}, {vF}, {Smb}, s61 offen sc1")
            if i == pa and t < 2 and adw: a(f"buffer_load_dword {vRdA}, {vPo}, {Smb}, {sG} offen sc1")
            if i == pa and t < 3: a(poll)
            for f in range(3):
                rw = int(str(o.rwin).split(",")[t % len(str(o.rwin).split(","))])
                if rw: a(f"s_waitcnt vmcnt({rw-1})")
                if adw: a(f"s_cbranch_vccz La{t}{i}{f}"); a(f"s_waitcnt vmcnt({adw-1})"); a(f"La{t}{i}{f}:")
                a(f"buffer_load_dwordx4 {buf(t,i,f)}, {vR[f]}, {Sred}, s45 offen {o.rflag}")
            if i < 3 and t != ts: a(f"s_add_u32 s45, s45, {PART}")
        if t:
            a(f"s_waitcnt vmcnt({nl(t) + (1 if t < 3 else 0)})" + (" lgkmcnt(0)" if t == 3 else "")); mf(t - 1)
    assert int(o.fl3) <= pa <= 2
    for i in ((3, 0, 1, 2) if ts == 3 else range(4)):
        if nl(3) - 3 - 3 * i >= 0: a(f"s_waitcnt vmcnt({nl(3) - 3 - 3 * i})")
        for f in range(3):
            for u in range(2): a(f"v_mfma_f32_16x16x32_bf16 {acc(f,u)}, {SEL.sub(4*u,4)}, {buf(3,i,f)}, {acc(f,u)}")
    a("s_nop 3")
    for f in range(3):
        if f: a("s_nop 1")
        for m in range(4): a(f"v_cvt_pk_bf16_f32 v{32+4*f+m}, v{8*f+2*m}, v{8*f+2*m+1}")
        a(f"buffer_store_dwordx4 v[{32+4*f}:{35+4*f}], {vO[f]}, {Sout}, 0 offen {o.outflag}".rstrip())

def tail_and_slow(o, nst):
    T = []; a = T.append
    reduce_tail(o, a, nst); nst += 1
    if int(o.stamps):
        a(f"s_memrealtime s[{64+2*nst}:{65+2*nst}]"); a("s_waitcnt vmcnt(0)")
        a(f"s_memrealtime s[{66+2*nst}:{67+2*nst}]"); a("s_waitcnt lgkmcnt(0)")
        a("s_cmp_lg_u32 s3, 0"); a("s_cbranch_scc1 Lend")
        if o.enc:
            ea, eb = [int(z) for z in o.enc.split(",")]
            a("s_cmp_lg_u32 s2, 100"); a("s_cbranch_scc1 Lnoenc")
            a(f"s_sub_u32 s52, s{64+2*eb}, s{64+2*ea}"); a("s_mul_i32 s52, s52, 10"); a("s_min_u32 s52, s52, 200000"); a("s_add_u32 s52, s52, 500")
            a("Lspin:"); a("s_memrealtime s[46:47]"); a("s_waitcnt lgkmcnt(0)"); a(f"s_sub_u32 s46, s46, s{66+2*nst}")
            a("s_cmp_lt_u32 s46, s52"); a("s_cbranch_scc1 Lspin"); a("Lnoenc:")
        a("s_load_dwordx2 s[40:41], s[0:1], 56"); a("s_mov_b32 s42, 0x10000000"); a("s_mov_b32 s43, 0x20000"); a("s_waitcnt lgkmcnt(0)")
        a(f"s_lshl_b32 s52, s2, 6"); a(f"s_add_u32 s52, s52, {STAMP_OFF}"); a("v_mov_b32 v1, s52")
        a("s_mov_b64 exec, 1")
        assert nst + 2 <= 16
        for n in range(nst + 2):
            a(f"v_mov_b32 v2, s{64+2*n}"); a(f"buffer_store_dword v2, v1, s[40:43], 0 offen offset:{4*n}")
    a("Lend:"); a("s_endpgm")
    if int(o.r0in):
        a("Lp0_spin:"); a("s_mov_b32 s63, 0"); a("Lp0_loop:")
        a(f"buffer_load_dword {vRdy}, {vPo}, {Smb}, {sGo} offen sc1"); a("s_add_u32 s63, s63, 1"); a("s_waitcnt vmcnt(0)")
        a(f"v_cmp_eq_u32 vcc, 0, {vRdy}"); a("s_cmp_lt_u32 s63, 0x40000"); a("s_cselect_b64 vcc, vcc, 0")
        a("s_cbranch_vccnz Lp0_loop"); a("s_branch Lp0_back")
    a("Lrdy_spin:"); a("s_mov_b32 s63, 0"); a("Lrdy_loop:")
    a(f"buffer_load_dword {vRdy}, {vRdA}, {Sdbg}, 0 offen sc1"); a("s_add_u32 s63, s63, 1"); a("s_waitcnt vmcnt(0)")
    a(f"v_cmp_gt_u32 vcc, 16, {vRdy}"); a("s_cmp_lt_u32 s63, 0x40000"); a("s_cselect_b64 vcc, vcc, 0")
    a("s_cbranch_vccnz Lrdy_loop"); a("s_branch Lrdy_back")
    a("Lslow:"); a("s_waitcnt vmcnt(0) lgkmcnt(0)"); a("s_nop 7"); a("s_barrier")
    a("v_mbcnt_lo_u32_b32 v0, -1, 0"); a("v_mbcnt_hi_u32_b32 v0, -1, v0")
    a("v_and_b32 v1, 15, v0"); a("v_lshlrev_b32 v1, 8, v1"); a("v_lshrrev_b32 v2, 4, v0"); a("v_lshl_add_u32 v1, v2, 4, v1")
    a("s_lshl_b32 s52, s48, 17"); a("s_add_u32 s52, s52, 128"); a("s_lshl_b32 s53, s49, 6"); a("s_add_u32 s62, s52, s53")
    a("v_add_u32 v2, s62, v1"); a("s_xor_b32 s53, s53, 64"); a("s_add_u32 s62, s52, s53"); a("v_add_u32 v3, s62, v1")
    for b in range(5): a(f"v_mov_b32 v{8+b}, 0xff800000")
    a("s_mov_b32 s45, 0"); a("Lslow_loop:")
    for t in range(4): a(f"buffer_load_dwordx4 v[{16+4*t}:{19+4*t}], v{2+(t&1)}, {Sk}, s45 offen offset:{128*(t>>1)}")
    a("s_waitcnt vmcnt(0)")
    for b in range(5):
        for t in range(4):
            a(f"v_mfma_f32_16x16x32_bf16 {NM(b)}, v[{16+4*t}:{19+4*t}], {QF(b,t)}, {0 if t == 0 else NM(b)}")
    a("s_nop 7"); a("s_nop 1")
    for b in range(5):
        n = NM(b); a(f"v_max3_f32 v{8+b}, v{8+b}, {n[0]}, {n[1]}"); a(f"v_max3_f32 v{8+b}, v{8+b}, {n[2]}, {n[3]}")
    a("s_add_u32 s45, s45, 4096"); a("s_cmp_lt_u32 s45, 131072"); a("s_cbranch_scc1 Lslow_loop")
    for b in range(5): a(f"v_accvgpr_write_b32 {SAV(b)}, v{8+b}")
    a("s_load_dwordx16 s[4:19], s[0:1], 0"); a("s_mov_b32 s54, 1"); a("s_branch Lrestart"); a("Lcode_end:")
    return T

KD = """.amdhsa_kernel {name}
  .amdhsa_next_free_vgpr {vg}
  .amdhsa_next_free_sgpr {sg}
  .amdhsa_accum_offset {acc}
  .amdhsa_group_segment_fixed_size 0
  .amdhsa_kernarg_size 64
  .amdhsa_user_sgpr_count 2
  .amdhsa_user_sgpr_kernarg_segment_ptr 1
  .amdhsa_system_sgpr_workgroup_id_x 1
  .amdhsa_float_denorm_mode_32 3
.end_amdhsa_kernel"""

def generate(o):
    hdr = [l.rstrip("\n") for l in open(f"cdna_kernels/{NAME}.s.ref") if l.startswith(";") and "@launch" not in l and "grid=" not in l and "Override" not in l]
    seq, nst = build_main(o)
    L = hdr + [f"; @launch grid=(256,1,1) block=(256,1,1) lds={LDSB}", '.amdgcn_target "amdgcn-amd-amdhsa--gfx950"', ".text",
               f".globl {NAME}_kernel", ".p2align 8", f".type {NAME}_kernel,@function", f"{NAME}_kernel:"]
    L += [i.text for i in seq] + tail_and_slow(o, nst)
    L += ['.section .rodata,"a"', ".p2align 6", KD.format(name=f"{NAME}_kernel", vg=512, sg=102, acc=256)]
    txt = "\n".join(L) + "\n"
    if int(o.clk): txt = txt.replace("s_memrealtime", "s_memtime")
    return txt

if __name__ == "__main__":
    o = Opt()
    for kv in sys.argv[2:]:
        k, v_ = kv.split("=", 1)
        assert hasattr(Opt, k), k
        setattr(o, k, v_)
    open(sys.argv[1], "w").write(generate(o))
```

```python
import sys, math, struct
from dsl import *

NAME = "standalone__mha_block_cached__near_ridge"
US, GRP, PS = 17024, 4224, 1056
X9 = 9 * US
FLAG = X9 + 8448
LDSB = 163840
PART = 147456
STAMP_OFF = 0x4000000
MBOFF = 256 * PART
def fbits(x): return struct.unpack("<I", struct.pack("<f", x))[0]
CSC = fbits(math.log2(math.e) / math.sqrt(128.0))
THR = fbits(2.0 ** 40)

Smb, Sred, Sout, Sdbg = S(4, 4), S(8, 4), S(12, 4), S(16, 4)
Sx, Swq, Sk, Sv, Swo, Sws = S(20, 4), S(24, 4), S(28, 4), S(32, 4), S(36, 4), S(40, 4)
sW, sGrp, sOff, sC, sGrP, sHH, sQH, sB, sJ = S(3), S(44), S(45), S(46), S(47), S(48), S(49), S(50), S(51)
sT0, sT1, sMode, sX9, sT3, sOw0, sOw1, sA8, sB8, sSt, sT2, sAt = [S(n) for n in range(52, 64)]
sRx, sRw = S(96), S(97)
sCc = S(55)
sRk = S(47)
sP = lambda p: S(98 + p)
ACC = lambda b, f: V(32 * b + 4 * f, 4)
QF = lambda b, t: (V(128 + 16 * b + 4 * t, 4) if b < 4 else A(180 + 4 * t, 4))
SB = lambda k: V(192 + 8 * k, 8)
PB = lambda k: V((208, 212, 248)[k], 4)
NM = lambda b: V(216 + 4 * b, 4)
Kr = lambda y, p: V(236 + 2 * y + p)
Vr = lambda y, hf: V(240 + 2 * y + hf)
vKV = lambda pp: V(244 + pp)
vL16, vTs, vT0, vT1 = V(252), V(253), V(254), V(255)
qWr = lambda win, p: V(216 + 2 * win + p)
qXr = lambda win: V(220 + win)
qX9r = V(222)
qWd = lambda pp: V(225 + pp)
qXd = lambda pp: V(229 + pp)
qX9d, qA8, qB8 = V(233), V(234), V(235)
KF = lambda y, h, t: A(32 * y + 16 * h + 4 * t, 4)
VF = lambda e, y, d: A((96 if y else (64, 200)[e & 1]) + 4 * d, 4)
O9 = lambda d: A(128 + 4 * d, 4)
LS = lambda b: A(160 + 4 * b, 4)
ONES = A(196, 4)
SAV = lambda b: A(248 + b)
aWpat, aWo0, aKv0 = A(253), A(254), A(255)
Aq = lambda fp, kk: A(96 + 8 * fp + 4 * kk, 4)
Bq = lambda I_, kk, b: A((128, 200)[I_ & 1] + 16 * kk + 4 * b, 4)
B9 = lambda I_, kk: A(232 + 8 * (I_ & 1) + 4 * kk, 4)
SEQ = [(I_, h) for I_ in range(6) for h in range(2)] + [(6, 0), (7, 0), (6, 1), (7, 1)]
WQU = {4: 1, 5: 4, 0: 5, 1: 3, 2: 6, 3: 8}
XU = {2: 0, 0: 2, 1: 7}
KVU = lambda slot: (2 * slot, 2 * slot + 1, 4 + 2 * slot, 5 + 2 * slot)
WOU = {0: (0, 1, 4, 5), 1: (2, 3, 0, 1), 2: (4, 5, 2, 3), 3: (0, 1, 6, 7)}
Ao = lambda p, ks, u: A(((64, 0), (32, 96))[p & 1][ks >> 2] + 16 * u + 4 * (ks & 3), 4)
QB = [0, 4, 1, 5, 2, 6, 3, 7, 8]
def Bo(qb, ks):
    if qb < 4: return V(32 * qb + 4 * ks, 4)
    if qb == 4: return A(232 + 4 * ks if ks < 6 else 192 + 4 * (ks - 6), 4)
    if qb == 6: return V(128 + 4 * ks, 4)
    return A({5: 200, 7: 160, 8: 128}[qb] + 4 * ks, 4)
TR, B128 = "ds_read_b64_tr_b16", "ds_read_b128"
sG, sGo = S(96), S(97)
vSt3, vOwn, vOwr = V(232), V(233), V(234)
vF, vOne, vRdy, vPo, vR, vRdA, vO, SEL = V(220), V(221), V(222), V(223), V(224, 3), V(227), V(228, 3), V(160, 8)

class Opt:
    stamps = 0; clk = 0; enc = None; xst = ""; qst = ""; abl = ""
    kvflag = "nt"; stflag = "sc1"; outflag = "sc1"
    qseq = ("x0,n0,w0,w1|p1,x1,w2,p4,w3,p5.6,x2,n1,w4,w5,x3,w6,w7,t2,x4,n2,w8,p4,w9,x5,w10,w11,x6,n3,w12,x7,w13,w14,w15,"
            "p2,s0,s1,c0,s2,p6,s3,k0,k1,p9,k2,k3")
    bal = '(8,13)'; winlo = 4; winhi = 6; hx = 'h'; asym = 0; lpf = 0; tflag = ''; rot = 2; rsh = 1; cpf = 2
    ashift = 0; win = 5; winfrom = 2; astep0 = 12.4; astep = 10.4; astep4 = 10.4; astep5 = 10.4; estep = 8.6; wow = 0.42; bxo = 10; w1bo = 4
    ouseq = '00,04,10,14,01,05,11,02,06,15,12,03,07,16,08,13,17,18'
    vmgap = 2; dswgap = 4; maxmem = 1; wiso = 1; hor = 40; lead = 8; w64 = 0
    sepv = 3; bvo = 14; bv7 = 0; bk0 = 20; ba0 = -22; bb0 = 30; bao = 0; bbo = 20; bb7 = 34; ate = 2; merge = 1; ts = 3; win0 = ''; rox = ''; kvm = 0; all0 = 0; cpl = 0; rawp = 0; winp = ''; adw = 0; fb = 0; bko1 = 11; byo = 12; hold = 0; lflag = 'sc1'; l3flag = 'sc1'; rflag = 'sc1'; r0in = 0; r0o = 12; r0step = 7; swin = 0; rwin = 0; fl3 = 2; polli = 2; b1o = 14; bko = 11; bdo = 100; flo = 104; pollo = 36; ostep0 = 3.5; ostep1 = 3.8; ostep2 = 4; ostep3 = 16; ostep4 = 12
    def __getattr__(s, k): raise AttributeError(k)

def setoff(soff):
    if isinstance(soff, tuple):
        r, add, mask = soff
        if mask == "x": return [salu("s_xor_b32", sOff, r, add)]
        return [salu("s_add_u32", sOff, r, add)] + ([salu("s_and_b32", sOff, sOff, mask)] if mask else [])
    return [salu("s_mov_b32", sOff, soff)]
def group(unit_off, base, voff, srd, soff, flags, tag):
    return [salu("s_add_u32", "m0", base, unit_off)] + setoff(soff) + [dma(voff(pp), srd, sOff, PS * pp, flags, tag) for pp in range(4)]
def g_wq(j): return group(WQU[j % 6] * US, sGrp, qWd, Swq, (sRw, SEQ[j][0] * 524288 + SEQ[j][1] * 128, 0x3fffff), "", f"wq{j}")
def g_x(I_): return group(XU[I_ % 3] * US, sGrp, qXd, Sx, (sRx, I_ * 128, 1023), "", f"x{I_}")
def g_x9(n): return [salu("s_add_u32", "m0", sX9, X9 + (n & 1) * GRP)] + setoff((sRx, n * 256, 1023)) + [dma(qX9d, Sx, sOff, 0, "", f"xn{n}")]
def g_kv(e, part, o, cap=True):
    kv, half = part >> 1, part & 1
    ops = group(KVU(e & 1)[part] * US, sGrp, vKV, (Sk, Sv)[kv], (sRk, e * 16384 + half * (4096 << int(o.kvm)), "x"), o.kvflag, f"{'kv'[kv]}{e}")
    if e < int(o.winfrom) and o.win0:
        for x in ops:
            if x.kind == "dma": x.text = f"s_waitcnt vmcnt({int(o.win0.split(',')[4 * e + part])-1})\n" + x.text
    if cap and int(o.win) and e >= int(o.winfrom):
        for x in ops:
            if x.kind != "dma": continue
            if 4 * e + part in range(*eval(o.bal)):
                g_kv.n = getattr(g_kv, "n", 0) + 1
                x.text = f"s_cbranch_vccz Lw{g_kv.n}\ns_waitcnt vmcnt({int(o.winlo)-1})\nLw{g_kv.n}:\ns_waitcnt vmcnt({int(o.winhi)-1})\n" + x.text
            else:
                g_kv.m = getattr(g_kv, "m", 0) + 1
                x.text = f"s_waitcnt vmcnt({int(o.winp[g_kv.m % len(o.winp)] if o.winp else o.win)-1})\n" + x.text
    return ops
def g_wo(p, hf): return sum((group(WOU[p][part] * US, sGrp, vKV, Swo, (sP(p), part * 65536, 0), "", f"wo{p}{'ab'[hf]}") for part in (2 * hf, 2 * hf + 1)), [])
def w128(o, addr, data, off):
    if not int(o.w64): return [dsw("ds_write_b128", addr, data, off)]
    return [dsw("ds_write_b64", addr, (data[0].sub(2 * z, 2), data[1]), off + 8 * z) for z in range(2)]

def qtok(tok, o):
    c, n = tok[0], int(tok[1:])
    if c == "w": return g_wq(n), n - 6
    if c == "x": return g_x(n), 2 * (n - 3)
    if c == "n": return g_x9(n), (4 * (n - 2) + 2 if n >= 2 else -1)
    if c == "c": return code_touch(V(254, 2), vTs, vL16, shift=3), -1
    if c == "t":
        ops = [salu("s_bfe_u32", sT0, sB, (1 << 16) | 1), salu("s_lshl_b32", sT0, sT0, 24)] + (
               [salu("s_lshl_b32", sT1, sQH, 12), salu("s_add_u32", sT0, sT0, sT1)] if int(o.kvm) else []) + [
               valu("v_mul_u32_u24", vT0, 7, vL16), valu("v_add3_u32", vT0, vT0, vKV(0), sT0)] + (setoff(16384) if 2 < n < 10 else [])
        return ops + [I(f"buffer_load_dword {vTs}, {vT0}, {(Sk, Sv)[z & 1]}, {sOff if z >> 1 else 0} offen", "vml", rd=[vT0, sOff], tag="ct") for z in (range(n) if n < 10 else [n - 10])], -1
    if c == "s": return g_kv(0, n, o), (10, 10, 11, 12)[n]
    if c == "k": return g_kv(1, n, o), (12, 13, 14, 14)[n]
    raise ValueError(tok)

def code_touch(va, vd, lane, shift, tid=False):
    n = code_touch.n = getattr(code_touch, "n", 0) + 1
    return [valu("v_lshlrev_b32", va[0], shift, lane)] + ([] if tid else [salu("s_lshl_b32", sT0, sW, 13), valu("v_add_u32", va[0], sT0, va[0])]) + [
            raw(f"s_getpc_b64 s[52:53]\nLpc{n}:", wr=[sT0, sT1], kind="salu"),
            raw(f"v_min_u32 {va[0]}, Lcode_end-Lpc{n}-4, {va[0]}", rd=[va[0]], wr=[va[0]], kind="valu"),
            valu("v_mov_b32", va[1], 0),
            raw(f"v_lshl_add_u64 {va}, {va}, 0, s[52:53]", rd=[va, sT0, sT1], wr=[va], kind="valu"),
            I(f"global_load_dword {vd}, {va}, off", "vml", rd=[va], wr=[], tag="ct")]

def prologue(o):
    P = []; a = P.append
    v = lambda n: V(n)
    a(raw("s_cmp_ge_u32 s2, 256")); a(raw("s_cbranch_scc1 Lend"))
    a(raw("s_load_dwordx16 s[4:19], s[0:1], 0"))
    if int(o.stamps): a(raw("s_memrealtime s[64:65]"))
    a(valu("v_lshrrev_b32", v(1), 6, v(0)))
    if int(o.cpf) and not int(o.cpl): P += code_touch(V(8, 2), vTs, v(0), shift=int(o.cpf) + 3, tid=True)
    a(valu("v_readfirstlane_b32", sW, v(1)))
    a(valu("v_mov_b32", v(2), "0xff800000")); a(salu("s_mov_b32", sMode, 0))
    for b in range(5): a(valu("v_accvgpr_write_b32", SAV(b), v(2)))
    a(raw("Lrestart:", kind="label"))
    L, t1, t2, t3, t4, t5, t6 = v(0), v(1), v(2), v(3), v(4), v(5), v(6)
    a(valu("v_mbcnt_lo_u32_b32", L, -1, 0)); a(valu("v_mbcnt_hi_u32_b32", L, -1, L))
    a(salu("s_and_b32", sT0, S(2), 1)); a(salu("s_bfe_u32", sT1, S(2), (3 << 16) | 3)); a(salu("s_lshl3_add_u32", sB, sT0, sT1))
    a(salu("s_bfe_u32", sT0, S(2), (2 << 16) | 1)); a(salu("s_lshr_b32", sT1, S(2), 6)); a(salu("s_lshl2_add_u32", sJ, sT0, sT1))
    a(salu("s_lshr_b32", sHH, sW, 1)); a(salu("s_and_b32", sQH, sW, 1))
    a(salu("s_mul_i32", sGrp, sW, GRP)); a(salu("s_mul_i32", sX9, sW, PS))
    a(salu("s_add_u32", sT3, sB, sJ)); a(salu("s_lshl_b32", sT0, sT3, 0 if int(o.asym) else int(o.rsh))); a(salu("s_and_b32", sT0, sT0, int(o.rot)))
    if o.rox:
        a(salu("s_lshr_b32", sT1, S(2), 1))
        a({"b": salu("s_and_b32", sT1, S(2), 1), "h": salu("s_and_b32", sT1, sT1, 1), "x": salu("s_xor_b32", sT1, sT1, S(2))}[o.rox])
        a(salu("s_and_b32", sT1, sT1, 1)); a(salu("s_add_u32", sT0, sT0, sT1))
    a(salu("s_lshl_b32", sRx, sT0, 8)); a(salu("s_lshl_b32", sRw, sT0, 20))
    a(valu("v_and_b32", t1, 7, L)); a(valu("v_lshlrev_b32", t1, 4, t1))
    a(valu("v_lshrrev_b32", t2, 3, L)); a(valu("v_lshl_add_u32", t3, t2, 12, t1))
    a(salu("s_lshl_b32", sT0, sW, 15)); a(salu("s_add_u32", sT0, sT0, 128))
    a(valu("v_add_u32", qXd(0), sT0, t3))
    for pp in range(1, 4): a(valu("v_subrev_u32", qXd(pp), 32 * pp, qXd(0)))
    a(valu("v_and_b32", t4, 3, t2)); a(valu("v_lshl_add_u32", t3, t4, 12, t1))
    a(valu("v_lshrrev_b32", t2, 5, L)); a(valu("v_lshl_add_u32", t3, t2, 7, t3))
    a(salu("s_lshl_b32", sT0, sW, 10)); a(salu("s_add_u32", sT0, sT0, 128 * 1024 + 128))
    a(valu("v_add_u32", qX9d, sT0, t3))
    a(valu("v_lshl_add_u32", t3, t4, 16, t1)); a(valu("v_lshl_add_u32", t3, t2, 15, t3))
    a(salu("s_lshl_b32", sT0, sQH, 18)); a(salu("s_lshl_b32", sT1, sHH, 8)); a(salu("s_add_u32", sT0, sT0, sT1))
    a(valu("v_add_u32", qWd(0), sT0, t3))
    for pp in range(1, 4): a(valu("v_add_u32", qWd(pp), (8192 - PS) * pp, qWd(0)))
    a(salu("s_mov_b32", Sx[2], PART + 128)); a(salu("s_mov_b32", Sx[3], "0x20000")); a(salu("s_mov_b32", Swq[3], "0x20000"))
    a(salu("s_mul_i32", sT2, sB, PART)); a(salu("s_lshl_b32", sT1, sJ, 9)); a(salu("s_sub_u32", Swq[2], 4194304, sT1))
    a(raw("s_waitcnt lgkmcnt(0)"))
    def base(srd, ptr, off, shift=0, size=None):
        a(salu("s_add_u32", srd[0], S(ptr), off)); a(salu("s_addc_u32", srd[1], S(ptr + 1), 0))
        if shift:
            a(salu("s_sub_u32", srd[0], srd[0], shift)); a(salu("s_subb_u32", srd[1], srd[1], 0))
        if size: a(salu("s_mov_b32", srd[2], size + shift)); a(salu("s_mov_b32", srd[3], "0x20000"))
    base(Sx, 4, sT2, 128); base(Swq, 10, sT1)
    if int(o.asym):
        a(raw("s_bitcmp1_b32 s56, 0")); a(raw("s_cbranch_scc0 Lnotouch"))
        a(salu("s_and_b32", sT0, sB, 14)); a(salu("s_lshl4_add_u32", sT0, sT0, sJ)); a(salu("s_lshl_b32", sT0, sT0, 18))
        base(Sk, 6, sT0, 0, 4194304 + 262144)
        if int(o.asym) > 2: base(Sv, 8, sT0, 0, 4194304 + 262144)
        a(salu("s_lshl4_add_u32", sT0, sHH, sQH)); a(salu("s_lshl_b32", sT0, sT0, 13)); a(valu("v_lshl_add_u32", t3, L, 7, sT0))
        a(salu("s_mov_b32", sOff, 4194304))
        for n in range(int(o.asym)):
            if int(o.asym) == 3 and n == 2:
                a(valu("v_lshrrev_b32", t1, 5, L)); a(valu("v_mul_u32_u24", t1, 4194304 - 4096, t1)); a(valu("v_add_u32", t3, t3, t1))
            a(raw(f"buffer_load_dword {vTs}, {t3}, {(Sk, Sv)[n >> 1]}, {sOff if n & 1 else 0} offen {o.tflag}".rstrip(), rd=[t3], kind="vml"))
        a(raw("Lnotouch:", kind="label"))
    lin = []
    if int(o.lpf):
        a = lin.append
        base(Sk, 4, 0, 0, 16 * PART); base(Sv, 10, 0, 0, 4194304)
        a(salu("s_lshl2_add_u32", sT0, S(2), sW)); a(salu("s_mul_i32", sT1, sT0, 2304)); a(salu("s_lshl_b32", sT0, sT0, 12))
        a(valu("v_min_u32", t1, 17, L)); a(valu("v_lshl_add_u32", t1, t1, 7, sT1)); a(valu("v_lshl_add_u32", t3, L, 6, sT0))
        a(I(f"buffer_load_dword {vTs}, {t3}, {Sv}, 0 offen", "vml", rd=[t3], tag="ct"))
        a(I(f"buffer_load_dword {vTs}, {t1}, {Sk}, 0 offen", "vml", rd=[t1], tag="ct"))
    first = []
    for n, tok in enumerate(o.qseq.split("|")[0].split(",")):
        if n == int(o.lpf) - 1: first += lin
        first += qtok(tok, o)[0]
    Q = []; a = Q.append
    if int(o.cpl): a(valu("v_lshl_add_u32", t1, sW, 6, L)); Q += code_touch(V(8, 2), vTs, t1, shift=int(o.cpf) + 3, tid=True)
    a(salu("s_lshl4_add_u32", sT1, sB, sJ))
    a(salu("s_lshl_b32", sT0, sT1, 18)); base(Sk, 6, sT0, 128, 262144); base(Sv, 8, sT0, 128, 262144)
    a(salu("s_mul_i32", sT0, sT1, PART)); base(Sws, 18, sT0, 0, PART)
    a(salu("s_lshl_b32", sT0, sJ, 18)); base(Swo, 12, sT0, 128, 262144)
    base(Sout, 14, sT2, 0, PART)
    a(salu("s_lshl_b32", sT0, sT2, 4)); base(Sred, 18, sT0, 0, 16 * PART)
    a(salu("s_lshl_b32", sT0, sB, 15)); a(salu("s_add_u32", sT0, sT0, MBOFF)); base(Smb, 18, sT0, 0, 32768)
    a(salu("s_mov_b32", Sdbg[2], 256)); a(salu("s_mov_b32", Sdbg[3], "0x20000"))
    a(salu("s_mov_b32", sC, hex(CSC))); a(raw("s_bitcmp1_b32 s50, 1")); a(raw("s_cselect_b64 vcc, -1, 0"))
    a(salu("s_lshr_b32", sT3, sJ, 2)); a(salu("s_lshl_b32", sT0, sB, int(o.fb))); a(salu("s_sub_u32", sT3, sT3, sT0))
    for p in range(4): a(salu("s_add_u32", sT0, sT3, (p - int(o.ts)) & 3)); a(salu("s_and_b32", sT0, sT0, 3)); a(salu("s_lshl_b32", sP(p), sT0, 8))
    a(salu("s_and_b32", sT0, sT3, 3)); a(salu("s_and_b32", sT1, sJ, 3)); a(salu("s_lshl2_add_u32", sT3, sT0, sT1))
    a(valu("v_and_b32", t1, 15, L)); a(valu("v_lshlrev_b32", t1, 4, t1))
    a(valu("v_lshrrev_b32", t5, 4, L))
    a(salu("s_add_u32", sT0, sW, sMode)); a(salu("s_lshl4_add_u32", sAt, sT0, sB)); a(salu("s_lshl_b32", sAt, sAt, 4))
    a(salu("s_lshl_b32", sT0, sMode, 6)); a(salu("s_add_u32", sT0, sT0, sW)); a(salu("s_lshl_b32", sT0, sT0, 9))
    a(valu("v_lshl_add_u32", t6, L, 3, sT0)); a(salu("s_lshl_b32", sOff, sT3, 11)); a(valu("v_mov_b64", V(8, 2), 0))
    a(vstore(V(8, 2), t6, Smb, sOff, 0, "sc1", tag="mbz", op="buffer_store_dwordx2"))
    a(valu("v_lshl_add_u32", t3, t5, 13, t1))
    a(salu("s_lshl_b32", sT0, sHH, 15)); a(salu("s_lshl_b32", sT1, sQH, 12)); a(salu("s_add_u32", sT0, sT0, sT1))
    a(salu("s_add_u32", sT0, sT0, 128)); a(valu("v_add_u32", t3, sT0, t3)); a(valu("v_accvgpr_write_b32", aWo0, t3))
    a(valu("v_lshlrev_b32", vL16, 4, L))
    a(salu("s_lshl_b32", sT0, sHH, 17)); a(salu("s_lshl_b32", sT1, sQH, 13 - int(o.kvm))); a(salu("s_add_u32", sT0, sT0, sT1))
    a(salu("s_add_u32", sT0, sT0, 128)); a(valu("v_add_u32", vKV(0), sT0, vL16)); a(valu("v_accvgpr_write_b32", aKv0, vKV(0)))
    for pp in range(1, 4): a(valu("v_subrev_u32", vKV(pp), 32 * pp, vKV(0)))
    a(salu("s_xor_b32", sT0, sW, 1)); a(salu("s_mul_i32", sGrP, sT0, GRP))
    a(salu("s_add_u32", sA8, sGrp, 8 * US)); a(salu("s_add_u32", sB8, sGrP, 8 * US))
    a(valu("v_add_u32", qA8, sA8, vL16)); a(valu("v_add_u32", qB8, sB8, vL16))
    a(valu("v_and_b32", t1, 3, L)); a(valu("v_mul_u32_u24", t1, PS, t1)); a(valu("v_lshl_add_u32", t1, t5, 4, t1))
    a(valu("v_bfe_u32", t3, L, 2, 2)); a(valu("v_lshl_add_u32", t3, t3, 7, t1))
    a(valu("v_add_u32", qX9r, X9, t3))
    a(salu("s_mul_i32", sT0, sQH, 2 * GRP)); a(valu("v_add_u32", qXr(0), sT0, t3))
    a(valu("v_add_u32", qXr(1), 7 * US, qXr(0)))
    a(valu("v_bfe_u32", t3, L, 2, 1)); a(valu("v_mul_u32_u24", t3, US, t3)); a(valu("v_add_u32", t1, t1, t3))
    a(valu("v_bfe_u32", t3, L, 3, 1)); a(valu("v_lshl_add_u32", t1, t3, 8, t1))
    a(salu("s_lshl_b32", sT0, sQH, 6)); a(salu("s_xor_b32", sT1, sT0, 64))
    a(valu("v_add_u32", t3, sT0, t1)); a(valu("v_add_u32", t6, sT1, t1))
    a(valu("v_add_u32", Kr(0, 0), sGrp, t3)); a(valu("v_add_u32", Kr(0, 1), sGrp, t6))
    a(valu("v_add_u32", Kr(1, 0), sGrP, t3)); a(valu("v_add_u32", Kr(1, 1), sGrP, t6))
    a(valu("v_bfe_u32", t1, L, 2, 2)); a(valu("v_mul_u32_u24", t1, PS, t1))
    a(valu("v_and_b32", t3, 1, L)); a(valu("v_lshl_add_u32", t6, t3, 4, t1))
    a(valu("v_bfe_u32", t3, L, 1, 1)); a(valu("v_lshl_add_u32", t6, t3, 3, t6))
    a(valu("v_lshl_add_u32", t3, t5, 7, t6))
    a(salu("s_mul_i32", sT2, sHH, 2 * GRP)); a(salu("s_add_u32", sT2, sT2, US)); a(valu("v_add_u32", t3, sT2, t3))
    a(valu("v_add_u32", qWr(0, 0), sT0, t3)); a(valu("v_add_u32", qWr(0, 1), sT1, t3))
    a(valu("v_add_u32", qWr(1, 0), 4 * US, qWr(0, 0))); a(valu("v_add_u32", qWr(1, 1), 4 * US, qWr(0, 1)))
    a(valu("v_and_b32", t4, 1, t5))
    a(valu("v_lshl_add_u32", t6, t2, 8, t6)); a(valu("v_mul_u32_u24", t3, GRP, t4)); a(valu("v_add_u32", t6, t6, t3))
    a(salu("s_lshl_b32", sT2, sW, 6)); a(valu("v_add_u32", t6, sT2, t6)); a(valu("v_accvgpr_write_b32", aWpat, t6))
    a(valu("v_lshl_add_u32", t1, t2, 8, t1)); a(valu("v_and_b32", t3, 3, L)); a(valu("v_lshl_add_u32", t1, t3, 3, t1))
    a(valu("v_mul_u32_u24", t3, US, t4)); a(valu("v_add_u32", t1, t1, t3)); a(valu("v_add_u32", t1, 4 * US, t1))
    a(salu("s_lshl_b32", sT0, sT0, 1)); a(salu("s_lshl_b32", sT1, sT1, 1))
    a(valu("v_add_u32", t3, sT0, t1)); a(valu("v_add_u32", t6, sT1, t1))
    a(valu("v_add_u32", Vr(0, 0), sGrp, t3)); a(valu("v_add_u32", Vr(0, 1), sGrp, t6))
    a(valu("v_add_u32", Vr(1, 0), sGrP, t3)); a(valu("v_add_u32", Vr(1, 1), sGrP, t6))
    a(salu("s_and_b32", sRk, {"h": sHH, "b": sB, "0": 0}[o.hx], 1)); a(salu("s_lshl_b32", sRk, sRk, 12 + int(o.kvm)))
    a(salu("s_lshl1_add_u32", sT2, sQH, sHH)); a(salu("s_lshl_b32", sT2, sT2, 12)); a(salu("s_add_u32", sT2, sT2, 6 * US))
    a(salu("s_lshl4_add_u32", sOw0, sT0, sT2)); a(salu("s_lshl4_add_u32", sOw1, sT1, sT2))
    a(valu("v_mov_b32", t1, "0x3f803f80"))
    for r in range(4): a(valu("v_accvgpr_write_b32", (ONES[r], "ones"), t1))
    return P, first, Q

def build_main(o):
    P, first, Q = prologue(o)
    sc = Sched(vmgap=int(o.vmgap), dswgap=int(o.dswgap), maxmem=int(o.maxmem), wiso=int(o.wiso), horizon=int(o.hor))
    F = sc.f
    nstamp = [1]
    def stamp(g, after=()):
        if int(o.stamps):
            n = nstamp[0]; nstamp[0] += 1
            F(raw(f"s_memrealtime s[{64+2*n}:{65+2*n}]"), g, g, after=after)
    nextvm = [0]
    def spread(ops, lo, step, q="dma", after=(), cap=None):
        out = []; pos = max(lo, nextvm[0]); pend = []
        for x in ops:
            pend.append(x)
            if x.kind in ("dma", "vml", "vms"):
                a_, b_ = int(pos), int(pos + step)
                if cap is not None: a_, b_ = min(a_, cap), min(b_, cap)
                for y in pend[:-1]: out.append(F(y, max(min(lo, b_), min(a_ - 3, b_)), b_, q=q, after=after))
                out.append(F(x, a_, b_, q=q, after=after)); pend = []
                if x.tag not in ('at', 'ct'): pos += step
        assert not pend
        nextvm[0] = pos
        return out
    cur = {}; lastrd = {}; firstrd = {}; lastwr = {}
    def M(d, dtag, a_, b_, c):
        cc = (d, cur[str(d)]) if c == "acc" else c
        i = mfma((d, dtag), a_, b_, cc); n = sc.m(i); cur[str(d)] = dtag
        for r, t in i.rd.items():
            lastrd[(r, t)] = n; firstrd.setdefault((r, t), n)
        lastwr[str(d)] = n
        return n
    lr = lambda reg, tag: max(lastrd[(r, tag)] for r in reg.regs())
    fr_ = lambda reg, tag: min(firstrd[(r, tag)] for r in reg.regs())
    for i in first + Q: F(i, -1, -1, q="dma")
    k0 = {}; qdone = {}
    for j, (I_, hf) in enumerate(SEQ):
        k0[j] = sc.n
        if j < 15: order = [(fp, b) for fp in range(4) for b in range(5) if b < 4 or fp < 2]
        else: order = [(fp, 4) for fp in range(2)] + [(fp, b) for b in range(4) for fp in range(4)]
        for fp, b in order:
            d = ACC(b, 4 * hf + fp) if b < 4 else SB(hf).sub(4 * fp, 4)
            for kk in range(2):
                bb = (Bq(I_, kk, b) if b < 4 else B9(I_, kk), f"x{I_}")
                n = M(d, "Qacc" if (I_, kk) == (7, 1) else f"q{I_}.{kk}", (Aq(fp, kk), f"w{j}"), bb, 0 if (I_, kk) == (0, 0) else "acc")
            qdone[str(d)] = n
    k0[16] = sc.n
    units = []; U = {}; G = {}; pre0 = {}; preL = {}
    P7 = {0: PB(0), 1: PB(1), 8: PB(2), 2: NM(0), 3: NM(4), 4: NM(1), 5: NM(2)}
    def pre(b):
        pre0[b] = sc.n
        for t in range(4): preL[b] = M(NM(b), f"pm{b}", (KF(0, 0, t), "k0"), (QF(b, t), f"Q{b}"), 0 if t == 0 else "acc")
    def qk(e, u):
        n = len(units); b, y = (u >> 1, u & 1) if u < 8 else (4, 0)
        s_ = SB(n & 1); p_ = PB(u % 3) if e < 7 else P7.get(u, s_.sub(0, 4))
        un = dict(e=e, u=u, b=b, y=y, S=s_, P=p_, n=n, q0=sc.n, hl=[0, 0])
        for h in range(2):
            for t in range(4):
                un["hl"][h] = M(s_.sub(4 * h, 4), f"s{n}", (KF(y, h, t), f"k{e}"), (QF(b, t), f"Q{b}"), (NM(b), f"nm{b}") if t == 0 else "acc")
        units.append(un); U[(e, u)] = un
    def pv(e, b, ds=range(-1, 8)):
        us = [U[(e, 2 * b)], U[(e, 2 * b + 1)]] if b < 4 else [U[(e, 8)]]
        g = G.setdefault((e, b), dict(p0=sc.n))
        for d in ds:
            acc = LS(b) if d < 0 else (ACC(b, d) if b < 4 else O9(d))
            for k, un in enumerate(us):
                a_ = (ONES, "ones") if d < 0 else (VF(e, un["y"], d), f"v{e}")
                g["pL"] = M(acc, f"o{e}.{k}" if k + 1 < len(us) else f"o{e}", a_, (un["P"], f"p{un['n']}"), 0 if e == 0 and k == 0 else "acc")
        for un in us: un["g"] = g
    st0 = {}
    for e in range(8):
        st0[e] = sc.n
        if e == 0: pre(0); pre(1)
        qk(e, 0); qk(e, 1)
        if e: pv(e - 1, 4)
        if e < 7:
            for b in range(1, 4):
                if e == 0: pre(b + 1)
                qk(e, 2 * b); qk(e, 2 * b + 1); pv(e, b - 1)
            qk(e, 8); pv(e, 3)
        else:
            for u in (8, 2, 3, 4, 5, 6, 7): qk(e, u)
            for b in (4, 0, 1, 2): pv(e, b, [-1])
            pv(e, 4, range(8)); pv(e, 3, [-1])
            for b in range(4): pv(e, b, range(8))
    attn_end = sc.n - 1
    odone = dict(lastwr)
    ou0 = {}; ouh = {}
    OU = [(p, qb) for p in range(4) for qb in QB]
    mg = int(o.merge)
    if mg:
        OU[:18] = [(int(z[0]), int(z[1])) for z in o.ouseq.split(",")]
    for n, (p, qb) in enumerate(OU):
        if True:
            ou0[n] = sc.n
            for u in range(2):
                for ks in range(8):
                    ouh[(n, u)] = M(SB(n & 1).sub(4 * u, 4), f"r{n}", (Ao(p, ks, u), f"wo{p}"), (Bo(qb, ks), f"of{qb}"), 0 if ks == 0 else "acc")
    last = sc.n - 1
    ou0[36] = ou0[37] = last + 1
    def rdA(j, fp):
        u = WQU[j % 6]; win = 0 if u <= 4 else 1
        return [dsr(TR, (Aq(fp, kk).sub(2 * h, 2), f"w{j}"), qWr(win, fp >> 1), (u - 1 - 4 * win) * US + kk * GRP + 512 * h + 32 * (fp & 1))
                for kk in range(2) for h in range(2)]
    def rdB(I_):
        u = XU[I_ % 3]; win = 1 if u == 7 else 0
        l = [dsr(B128, (Bq(I_, kk, b), f"x{I_}"), qXr(win), (u - 7 * win) * US + (b >> 1) * GRP + (b & 1) * 512 + kk * 64)
             for b in range(4) for kk in range(2)]
        return l + [dsr(B128, (B9(I_, kk), f"x{I_}"), qX9r, ((I_ >> 1) & 1) * GRP + (I_ & 1) * 512 + kk * 64) for kk in range(2)]
    bpre = F(barrier(vm=("x0", "xn0", "wq0")), -1, -1, q="dma")
    stamp(-1, [bpre])
    l = rdB(0)
    prev = [F(x, -1, -1, q="lds", after=[bpre]) for x in rdA(0, 0) + l[:6]]
    prev += [F(x, -1, 7, q="lds", after=[bpre]) for x in l[6:] + rdA(0, 1) + rdA(0, 2) + rdA(0, 3)]
    BQ = {}
    for j in range(16):
        g = k0[j] + (14 if j == 0 else 9)
        nI = SEQ[j + 1][0] if j < 15 and SEQ[j + 1][1] == 0 else None
        vm = []
        if j < 15: vm.append(f"wq{j+1}")
        if nI is not None: vm += [f"x{nI}", f"xn{nI//2}"]
        if j == 10: vm = ["wq15", "all0"] if int(o.all0) else vm + ["mbz"]
        bq = BQ[j] = F(barrier(vm=vm), g, g, after=prev)
        if o.qst and j in eval(o.qst): stamp(g, [bq])
        prev = []
        if j < 15:
            for fp in range(4):
                for x, kk in zip(rdA(j + 1, fp), (0, 0, 1, 1)):
                    lo = max(lr(Aq(fp, kk), f"w{j}"), g)
                    prev.append(F(x, lo, max(min(fr_(Aq(fp, kk), f"w{j+1}") - 6, k0[j + 1] + 3), lo), q="ldsA", after=[bq]))
        if nI is not None:
            for n, x in enumerate(rdB(nI)): prev.append(F(x, g, min(k0[j + 1] - 7 + n, k0[j + 1] + 2), q="ldsB", after=[bq]))
    step = 3.0; seen = set(o.qseq.split("|")[0].split(","))
    for tok in o.qseq.split("|")[1].split(","):
        if tok[0] == "@": nextvm[0] = max(nextvm[0], int(float(tok[1:]) * 36)); continue
        if tok[0] == "+": nextvm[0] += int(tok[1:]); continue
        if tok[0] == "p": step = float(tok[1:]); continue
        seen.add(tok)
        ops, dep = qtok(tok, o)
        spread(ops, BQ[dep].lo if dep >= 0 else 0, step, after=[BQ[dep]] if dep >= 0 else [])
    assert len([t for t in seen if t[0] not in "ct"]) == 16 + 8 + 4 + 4 + 4, sorted(seen)
    stamp(k0[15])
    if o.xst:
        for g_ in eval(o.xst): stamp(g_)
    def pack_q(src, dst, tdst, hi):
        lo = min(max(qdone[str(src.sub(0, 4))], qdone[str(src.sub(4, 4))]) + 3, hi)
        ops = [valu("v_mul_f32", (src[m], "t"), sC, (src[m], "Qacc")) for m in range(8)]
        ops += [valu("v_cvt_pk_bf16_f32", (dst[m], "t2"), (src[2 * m], "t"), (src[2 * m + 1], "t")) for m in (0, 2, 1, 3)]
        ops += [swap("v_permlane32_swap_b32", (dst[m], "t2"), (dst[m + 2], "t2"), tdst, tdst) for m in range(2)]
        return [F(x, lo, hi, q="qe") for x in ops]
    q9w = []
    for hf in range(2):
        l = pack_q(SB(hf), PB(hf), "q9p", pre0[0] - 2)
        q9w.append(F(dsw("ds_write_b128", qA8, (PB(hf), "q9p"), 1024 * hf), BQ[15].lo, min(U[(0, 0)]["q0"] - 1, pre0[2] - 3 + int(o.ba0)), q="q9w", after=[l[-1], BQ[15]]))
        for t, b in ([(t, b) for t in (0, 1) for b in range(4)] if hf == 0 else [(t, b) for b in range(4) for t in (2, 3)]):
            pack_q(V(32 * b + 8 * t, 8), QF(b, t), f"Q{b}", pre0[b] - 1 + t)
    for b in range(5):
        n = NM(b); pm = f"pm{b}"; nm = f"nm{b}"; hi = fr_(n, nm) - 1
        ops = [valu("v_accvgpr_read_b32", vT1, SAV(b)),
               valu("v_max3_f32", n[0], (n[0], pm), (n[1], pm), vT1), valu("v_max3_f32", n[0], n[0], (n[2], pm), (n[3], pm)),
               valu("v_mov_b32", n[1], n[0]), swap("v_permlane32_swap_b32", n[0], n[1]), valu("v_max_f32", n[0], n[0], n[1]),
               valu("v_mov_b32", n[1], n[0]), swap("v_permlane16_swap_b32", n[0], n[1]),
               I(f"v_min_f32_e64 {n[0]}, -{n[0]}, -{n[1]}", "valu", rd=[n[0], n[1]], wr=[(n[0], nm)]),
               valu("v_mov_b32", (n[1], nm), (n[0], nm)), valu("v_mov_b64", (n.sub(2, 2), nm), (n.sub(0, 2), nm))]
        for x in ops: F(x, min(preL[b] + 3, hi), hi, q="nm")
    def rdK(e, y, lo, after, hi=10**9):
        out = []
        for h in range(2):
            for t in range(4):
                r = KF(y, h, t); l_ = max(lo, lr(r, f"k{e-1}")) if e else lo
                x = dsr(B128, (r, f"k{e}"), Kr(y, t & 1), (e & 1) * 2 * US + 512 * h + 128 * (t >> 1))
                out.append(F(x, l_, max(l_, min(fr_(r, f"k{e}") - 6, hi)), q=f"ldsK{y}", after=after))
        return out
    def rdV(e, y, lo, after, hi):
        out = []
        for d in range(8):
            r = VF(e, y, d); l_ = max(lo, lr(r, f"v{e-1}")) if e and y else lo
            for h in range(2):
                x = dsr(TR, (r.sub(2 * h, 2), f"v{e}"), Vr(y, d >> 2), (e & 1) * 2 * US + 512 * h + 32 * (d & 3))
                out.append(F(x, l_, max(l_, min(fr_(r, f"v{e}") - 6, hi)), q=f"ldsV{y}", after=after))
        return out
    BB = {}
    vset = lambda src: [valu("v_accvgpr_read_b32", vKV(0), src)] + [valu("v_subrev_u32", vKV(pp), 32 * pp, vKV(0)) for pp in (1, 2, 3)]
    for e in range(8):
        if e == 0:
            g = k0[16] - int(o.bk0)
            bk = F(barrier(vm=["k0"], lgkm=False), g, g, after=[BQ[15]])
            gv = pre0[2] - 1 + int(o.ba0)
            bv = F(barrier(vm=["v0"]), gv, gv, after=q9w + [bk])
            for t in range(4):
                F(dsr(B128, (QF(4, t), "Q4"), qB8 if t & 1 else qA8, 1024 * (t >> 1)), gv, pre0[4] - 6, q="ldsQ9", after=[bv])
        else:
            g = U[(e - 1, 8)]["q0"] - 1 - int(o.bao)
            sep = e == 7 or e >= int(o.sepv)
            bk = F(barrier(vm=[f"k{e}"] + ([] if sep else [f"v{e}"]), lgkm=False), g, g, after=[BB[e - 1]])
            bv, gv = bk, g
            if sep and e < 7:
                gv = st0[e] + int(o.bvo)
                bv = F(barrier(vm=[f"v{e}"], lgkm=False), gv, gv, after=[bk])
            if e == 7:
                gv = G[(7, 4)]["p0"] - 1 - int(o.bv7)
                gx = st0[7] + int(o.bxo)
                bx = F(barrier(vm=["wo0a"]), gx, gx, after=[bk])
                bv = F(barrier(vm=["v7"]), gv, gv, after=[bx])
                stamp(gv, [bv])
        gb = G[(e, 0)]["p0"] + int(o.bbo) if e < 7 else G[(7, 4)]["p0"] + int(o.bb7)
        if e == 0 and int(o.bb0): gb = gv + int(o.bb0)
        rk = rdK(e, 0, g, [bk]) + rdK(e, 1, g, [bk], gx - 4 if e == 7 else 10**9)
        rv = rdV(e, 0, gv, [bv], gb - 5) + rdV(e, 1, gv, [bv], gb - 5)
        bb = BB[e] = F(barrier(vm=["wo1a"] if e == 7 else []), gb, gb, after=rk + rv)
        if e in (0, 3, 6): stamp(gb, [bb])
        ops = []
        if e < 6:
            for part in range(4 if e < 5 else 2): ops += g_kv(e + 2, part, o)
        if e == int(o.ate):
            ops += [valu("v_lshl_add_u32", vT0, vL16, 4, sAt), valu("v_mov_b32", vT1, 1),
                    vstore(vT1, vT0, Sdbg, 0, 0, "", tag="at", op="buffer_atomic_add")]
        if e == 3 and int(o.cpf): ops += code_touch(V(254, 2), vTs, vL16, shift=3)
        if ops: spread(ops, gb, float({0: o.astep0, 4: o.astep4, 5: o.astep5}.get(e, o.astep)), after=[bb])
    bx.after += rk
    wts = [1.0] * 8; win = int(o.win)
    def allowed(limit):
        m = 0; c = 0.0
        while m < len(wts) and c + wts[-1 - m] <= limit + 1e-9: c += wts[-1 - m]; m += 1
        return m
    def capped(ops, w):
        for x in ops:
            if x.kind == "dma": x.text = f"s_waitcnt vmcnt({allowed(win - w)})\n" + x.text; wts.append(w)
        return ops
    es = float(o.estep)
    spread(capped(vset(aWo0) + g_wo(0, 0) + g_wo(0, 1), float(o.wow)), BB[6].lo, es / 2, after=[BB[6]])
    spread(capped(vset(aKv0) + g_kv(7, 2, o, False) + g_kv(7, 3, o, False), 1.0), BB[6].lo, es, after=[BB[5]])
    early = vset(aWo0) + g_wo(1, 0)
    for n in range(win - 1, 0, -1):
        g_ = min(int(nextvm[0]), gv - 3)
        F(raw(f"s_waitcnt vmcnt({allowed(n)})"), g_, g_ + 2, q="dma")
        idx = [k for k, x in enumerate(early) if x.kind == "dma"][:2]
        if idx:
            spread(early[:idx[-1] + 1], max(g_ + 1, gx), (es - 2) / 2, after=[bx]); early = early[idx[-1] + 1:]; wts += [0.0] * len(idx)
        nextvm[0] = max(nextvm[0], g_ + es)
    assert not early
    nextvm[0] = 0
    spread(g_wo(1, 1), gv + int(o.w1bo), float(o.ostep0), after=[bv])
    spread(g_wo(2, 0), BB[7].lo + 1, float(o.ostep1), after=[BB[7]])
    vA8, vLMw, vW, vOw, vB8, vLMr = Kr(0, 0), Kr(0, 1), (Kr(1, 0), Kr(1, 1)), (Vr(0, 0), Vr(0, 1)), Vr(1, 0), Vr(1, 1)
    vBr, vFl, vSt, vO9 = (PB(2)[0], PB(2)[1]), vLMw, vLMr, vB8
    g = U[(7, 8)]["q0"]; p7 = G[(7, 4)]["p0"]
    adr = [valu("v_bfe_u32", vLMw, vL16, 1, 7), valu("v_add_u32", vLMw, sA8, vLMw), dsw("ds_write_b32", vLMw, (NM(4)[0], "nm4"), 4096 + 4),
           valu("v_accvgpr_read_b32", vW[0], aWpat), valu("v_add_u32", vW[1], 4 * US, vW[0]), valu("v_add_u32", vA8, sA8, vL16)]
    adr = [F(x, gx, g + 4, q="adr", after=rk) for x in adr]
    BB[7].after.append(F(dsw("ds_write_b32", vLMw, (LS(4)[0], "o7"), 4096), p7 + 4, BB[7].lo - 2, q="adr"))
    adr2 = [valu("v_bfe_u32", vLMr, vL16, 1, 7), valu("v_add_u32", vLMr, sB8, vLMr),
            valu("v_add_u32", vOw[0], sOw0, vL16), valu("v_add_u32", vOw[1], sOw1, vL16), valu("v_add_u32", vB8, sB8, vL16)]
    adr2 = [F(x, p7, BB[7].lo + 3, q="adr", after=rv) for x in adr2]
    lastP = {}
    for un in units:
        n, s_, p_ = un["n"], un["S"], un["P"]
        nx = units[n + 2]["q0"] if n + 2 < len(units) else 10**9
        pfree = -1; aft = []
        if str(p_) in lastP: pfree = lastP[str(p_)]["g"]["pL"]
        for b in range(5):
            if str(p_) == str(NM(b)): pfree = lr(p_, f"nm{b}") + 1
        if str(p_) == str(NM(4)): aft = [adr[2]]
        if n < 2: aft = q9w
        lastP[str(p_)] = un
        ex = []
        for j in range(8):
            hi = min(nx - 1 + 4 * (j >> 2), un["g"]["p0"] - 1); lo = min(un["hl"][j >> 2] + 3, hi)
            ex.append(F(trans("v_exp_f32", (s_[j], f"e{n}"), (s_[j], f"s{n}")), lo, max(lo, hi - 1), q="exp"))
        for m in range(4):
            hi = min(nx - 1 + 4 * (m >> 1), un["g"]["p0"] - 1)
            F(valu("v_cvt_pk_bf16_f32", (p_[m], f"p{n}"), (s_[2 * m], f"e{n}"), (s_[2 * m + 1], f"e{n}")),
              max(ex[2 * m + 1].lo, pfree), hi, q="cvt", after=[ex[2 * m + 1]] + aft)
    def rdAo(p, kss=range(8)):
        return [dsr(TR, (Ao(p, ks, u).sub(2 * h, 2), f"wo{p}"), vW[WOU[p][ks >> 1] >> 2],
                    (WOU[p][ks >> 1] & 3) * US + (ks & 1) * 2 * GRP + 512 * h + 32 * u)
                for u in range(2) for ks in kss for h in range(2)]
    fu = [OU.index((0, qb)) for qb in (0, 1, 2, 3, 8)]
    gB = [attn_end - int(o.b1o)] + [ou0[fu[k]] - int(o.bko1 if k == 1 and mg else o.bko) for k in range(1, 5)]
    pub = [[] for _ in range(5)]
    lm = NM(3)
    mr = [dsr("ds_read_b64", lm.sub(0, 2), vLMw, 4096), dsr("ds_read_b64", lm.sub(2, 2), vLMr, 4096)]
    mr = [F(x, BB[7].lo, BB[7].lo + 10, q="lm", after=[BB[7], adr2[1]]) for x in mr]
    ops = [valu("v_add_u32", vBr[1], 6 * US, vL16),
           salu("s_lshl_b32", sT0, sW, 2), valu("v_add_u32", vFl, sT0, vBr[1]), salu("s_lshl_b32", sT0, sW, 10), valu("v_add_u32", vSt, sT0, vL16),
           valu("v_sub_f32", lm[1], lm[1], lm[3]), trans("v_exp_f32", lm[1], lm[1]), valu("v_accvgpr_read_b32", vTs, (LS(0)[0], "o7")),
           valu("v_fma_f32", lm[0], lm[2], lm[1], lm[0]), trans("v_rcp_f32", lm[2], lm[0]),
           valu("v_add_f32", vTs, vTs, lm[0]), valu("v_mul_f32", lm[1], lm[1], lm[2])]
    for b in (1, 2, 3): ops += [valu("v_accvgpr_read_b32", lm[3], (LS(b)[0], "o7")), valu("v_add_f32", vTs, vTs, lm[3])]
    ops.append(dsw("ds_write_b32", vFl, vTs, FLAG - 6 * US))
    lsum = [F(x, max(BB[7].lo + 4, G[(7, 4)]["pL"], odone[str(LS(3))] + 4), gB[0] - 4, q="lm") for x in ops]
    pub[0] += lsum
    rp = int(o.rawp)
    raww = [F(x, gB[rp - 1] + 12 if rp else G[(7, 4)]["pL"] + 4, gB[rp] - 4, q="raw" if rp else "ow", after=[adr[-1]])
            for d in range(4) for x in w128(o, vA8, (O9(4 + d), "o7"), 1024 * d)]
    pub[rp] += raww
    def norm_block(b):
        a32 = V(32 * b, 32); hi = gB[b] - 4
        ops = [valu("v_accvgpr_read_b32", vT1, (LS(b)[0], "o7")), trans("v_rcp_f32", vT0, vT1)]
        for x in ops: F(x, odone[str(LS(b))] + 4, hi, q="ep")
        for k in range(4):
            ops = [valu("v_mul_f32", (a32[8 * k + m], "n"), (a32[8 * k + m], "o7"), vT0) for m in range(8)]
            ops += [valu("v_cvt_pk_bf16_f32", (a32[8 * k + m], "of"), (a32[8 * k + 2 * m], "n"), (a32[8 * k + 2 * m + 1], "n")) for m in range(4)]
            lo = odone[str(ACC(b, 2 * k + 1))] + 3; hk = max(lo, hi - 4 * (3 - k))
            for x in ops: x = F(x, lo, hk, q="ep")
            for y in w128(o, vOw[k >> 1], (a32.sub(8 * k, 4), "of"), (b & 1) * US + (k & 1) * 1024):
                pub[b].append(F(y, max(lo, gB[b - 1]) if b >= 2 else lo, hk, q="ow", after=[x, adr2[-1], BP[b - 1] if b >= 2 else BB[7]]))
    BP = [barrier(vm=v_) for v_ in (["wo1b"], [], [], [], ["wo2a", "wo2b"])]
    bv.after += [F(x, max(gx, G[(6, 4)]["pL"]), gv - 5, q="ldsK0", after=[adr[-1], bx]) for x in rdAo(0, range(4))]
    BB[7].after += [F(x, gv, BB[7].lo - 4, q="ldsK0", after=[bv]) for x in rdAo(0, range(4, 8))]
    pub[0] += [F(x, BB[7].lo, gB[0] - 4, q="ldsK0", after=[BB[7]]) for x in rdAo(1, range(4))]
    for b in range(4): norm_block(b)
    F(BP[0], gB[0], gB[0], after=pub[0])
    stamp(attn_end)
    rdA0 = []
    for x in rdAo(1, range(4, 8)):
        r = next(iter(x.wr)); lo = max(gB[0], lastrd[(r, "v7")])
        rdA0.append(F(x, lo, max(lo, min(firstrd[(r, "wo1")] - int(o.lead), gB[1] - 3)), q="ldsK0", after=[BP[0]]))
    fl = NM(0)
    fr = F(dsr(B128, fl, vBr[1], FLAG - 6 * US), gB[0], gB[0] + 1, q="ldsB", after=[BP[0]])
    chk = [valu("v_add_f32", fl[0], fl[0], fl[1]), valu("v_add_f32", fl[2], fl[2], fl[3]), valu("v_add_f32", fl[0], fl[0], fl[2]),
           raw(f"v_cmp_nge_f32 vcc, {hex(THR)}, {fl[0]}", rd=[fl[0]], kind="valu"),
           raw(f"s_cmp_eq_u32 s54, {77 if o.abl else 0}\ns_cselect_b64 vcc, vcc, 0\ns_cbranch_vccnz Lslow", cost=2, kind="br")]
    chk = [F(x, gB[0] + 7, gB[0] + 14, q="fl", after=[fr]) for x in chk]
    rcv = [V(168 + 4 * d, 4) for d in range(4)]
    mr = [F(dsr(B128, (rcv[d], "rcv"), vB8, 1024 * d), gB[2 + mg], gB[3] + (20 if mg else -6), q="lm", after=[chk[-1], BP[rp]]) for d in range(4)]
    for x in (salu("s_lshl_b32", sT0, sW, 11), valu("v_add_u32", vO9, sT0, vBr[1])): a9 = F(x, gB[2], gB[4] - 12, q="fl", after=mr)
    for k in range(2):
        ops = []
        for d in (2 * k, 2 * k + 1):
            for m in range(4):
                t = (vT1, lm[3])[m & 1]
                ops += [valu("v_accvgpr_read_b32", t, (O9(d)[m], "o7")), valu("v_mul_f32", (rcv[d][m], "rs"), (rcv[d][m], "rcv"), lm[1]),
                        valu("v_fma_f32", (rcv[d][m], "n"), t, lm[2], (rcv[d][m], "rs"))]
        for m in range(4):
            src = rcv[2 * k + (m >> 1)]
            ops.append(valu("v_cvt_pk_bf16_f32", (rcv[2 * k][m], "of"), (src[2 * (m & 1)], "n"), (src[2 * (m & 1) + 1], "n")))
        for x in ops: x = F(x, gB[2], gB[4] - 8 + 4 * k, q="ep", after=mr + [lsum[-1]])
        for y in w128(o, vO9, (rcv[2 * k], "of"), 3 * US + 1024 * k): pub[4].append(F(y, gB[2], gB[4] - 8 + 4 * k, q="ow", after=[x, a9]))
    def rdBo(qb, ks):
        if qb < 8: return dsr(B128, (Bo(qb, ks), f"of{qb}"), vBr[1], (qb & 1) * US + (qb >> 2) * 8192 + 1024 * ks)
        return dsr(B128, (Bo(qb, ks), f"of{qb}"), vBr[1], 3 * US + 1024 * ks)
    rdp = rdA0; prevb = BP[0]
    for k in range(5):
        if k: prevb = F(BP[k], gB[k], gB[k], after=pub[k] + [prevb] + rdp); rdp = []
        for n in (fu[k], fu[k] + 1)[:2 if k < 4 else 1]:
            qb = OU[n][1]
            for ks in range(8):
                late = qb >= 5 or (qb == 4 and ks >= 6)
                hi = max(gB[k] + ks // 2, ou0[n] - int(o.lead) + ks)
                if k < 4: hi = min(hi, gB[k + 1] - 3)
                rdp.append(F(rdBo(qb, ks), gB[k], hi, q="ldsB", after=[BP[k]] + ([chk[-1]] if late else [])))
    gd = {p: ou0[9 * p] + int(o.bdo) for p in range(4)}
    w1b = spread(g_wo(2, 1), gB[0] + 1, float(o.ostep2), after=[BP[0]])
    spread(g_wo(3, 0), gB[1] + 1, float(o.ostep3), after=[BP[1]])
    spread(g_wo(3, 1), gB[4] + 1, float(o.ostep4), after=[BP[4]])
    for n, x in enumerate(rdAo(2)):
        r = next(iter(x.wr)); F(x, lastrd[(r, "wo0")], ou0[18] - 8 + n // 2, q="ldsK0", after=[BP[4]])
    bd = F(barrier(vm=["wo3a", "wo3b"], lgkm=False), gd[2], gd[2], after=[BP[4]])
    for n, x in enumerate(rdAo(3)): F(x, gd[2], ou0[27] - 8 + n // 2, q="ldsK0", after=[bd])
    ts = int(o.ts); assert ts >= 2
    for n in range(36):
        s_, p_ = SB(n & 1), PB(n & 1)
        for m in range(4):
            lo = min(ouh[(n, m >> 1)] + (8 if n > 8 + 6 * mg else 4), last)
            x = F(valu("v_cvt_pk_bf16_f32", (p_[m], f"rp{n}"), (s_[2 * m], f"r{n}"), (s_[2 * m + 1], f"r{n}")), lo, min(lo + (16 if n == 1 else 6), last), q="st")
        pp_, qb = OU[n]
        ops = ([salu("s_mul_i32", sT3, sP(pp_), 144)] if n == 0 or OU[n - 1][0] != pp_ else []) + [salu("s_add_u32", sSt, sT3, 4096 * qb),
               vstore((p_, f"rp{n}"), vSt3 if pp_ == ts else vSt, Sws, sSt, 0, o.stflag, tag=f"st{pp_}")]
        if n == 9 * ts:
            pre_ = [salu("s_xor_b32", sG, sJ, sW), raw(f"s_and_b32 {sG}, {sG}, 3\ns_cselect_b32 {sG}, 0, 0x10000000", wr=[sG], cost=2, kind="br"),
                    valu("v_add_u32", vSt3, sG, vSt), salu("s_lshr_b32", sG, sG, 12), salu("s_xor_b32", sG, sG, 0x10000), salu("s_add_u32", sG, sG, 8 * US),
                    valu("v_add_u32", vOwn, sG, vL16), valu("v_add_u32", vOwr, 8 * US, vSt)]
            for y in pre_: y = F(y, ou0[n - 2], ou0[n], q="own")
            own_rdy = y
        sw = int(str(o.swin).split(",")[n // 9 % len(str(o.swin).split(","))])
        if sw and n >= sw:
            ops.insert(len(ops) - 1, waitvm(f"su{n - sw}"))
        ops[-1].utag = f"su{n}"
        for x in ops: F(x, lo, min(lo + (20 if n < 2 else 8), last), q="st", after=[chk[-1]] + (w1b[-1:] if n == 0 and int(o.hold) else []) + ([own_rdy] if n == 9 * ts else []))
        if pp_ == ts: F(dsw("ds_write_b128", vOwn, (p_, f"rp{n}"), 1024 * qb), min(lo + 2, last), min(lo + 10, last), q="st", after=[BP[4]])
    t = V(168, 4)
    ops = [salu("s_lshl_b32", sT1, sB, 4), valu("v_mov_b32", vRdA, sT1),
           vload(vRdy, vRdA, Sdbg, 0, 0, "sc1", tag="rdy", op="buffer_load_dword"),
           salu("s_lshl4_add_u32", sT0, sW, sJ), salu("s_lshl_b32", sT0, sT0, 7),
           valu("v_lshrrev_b32", vF, 9, vL16), valu("v_lshl_add_u32", vF, vF, 15, sT0), valu("v_lshrrev_b32", vOne, 2, vL16),
           valu("v_add_u32", vF, vF, vOne), valu("v_mov_b32", vOne, 1)]
    gf = {p: ou0[max(n for n in range(36) if OU[n][0] == p) + 1] + int(o.flo) for p in range(3)}
    for x in ops: F(x, gB[4], gB[4] + 40, q="fl")
    ops = [raw(f"v_cmp_gt_u32 vcc, 16, {vRdy}", rd=[vRdy], kind="valu"), raw("s_cbranch_vccnz Lrdy_spin\nLrdy_back:", kind="br")]
    for p in range(3):
        ops = [waitvm(f"st{p}")] + ops + [salu("s_lshl_b32", sAt, sP(p), 5), vstore(vOne, vF, Smb, sAt, 0, "sc1", tag="fl", op="buffer_store_dword")]
        for x in ops: flag0 = F(x, gf[p], gf[p] + 2, q="fl")
        ops = []
        if p == 0:
            su = [
               salu("s_lshr_b32", sCc, sP(int(o.ts)), 6), salu("s_and_b32", sT0, sJ, 3), salu("s_add_u32", sCc, sCc, sT0),
               valu("v_bfe_u32", vPo, vL16, 4, 2), valu("v_lshrrev_b32", t[0], 8, vL16),
               salu("s_lshl_b32", sT0, sCc, 11), valu("v_lshl_add_u32", vPo, vPo, 7, sT0),
               salu("s_add_u32", sGo, sJ, 4 * int(o.ts)), salu("s_and_b32", sGo, sGo, 12), salu("s_lshl_b32", sGo, sGo, 7),
               salu("s_lshr_b32", sT0, sCc, 2), salu("s_mul_i32", sT0, sT0, 9), salu("s_add_u32", sT0, sT0, sW),
               salu("s_and_b32", sT1, sJ, 3), salu("s_lshl2_add_u32", sT0, sT0, sT1), salu("s_lshl_b32", sT0, sT0, 10),
               valu("v_add_u32", vR[0], sT0, vL16), valu("v_add_u32", vR[1], 16384, vR[0]),
               salu("s_lshl_b32", sT1, sW, 28), salu("s_add_u32", sT0, sT1, 32768), valu("v_add_u32", vR[2], sT0, vR[0]),
               valu("v_bfe_u32", t[1], vL16, 4, 4), valu("v_lshlrev_b32", vO[0], 10, t[1]), valu("v_lshl_add_u32", vO[0], t[0], 4, vO[0]),
               salu("s_lshl_b32", sT0, sW, 14), salu("s_lshl_b32", sT2, sCc, 6), salu("s_add_u32", sT0, sT0, sT2),
               valu("v_add_u32", vO[0], sT0, vO[0]), valu("v_add_u32", vO[1], 65536, vO[0]),
               salu("s_add_u32", sT0, sT1, 131072), valu("v_add_u32", vO[2], sT0, vO[0]),
               valu("v_and_b32", t[2], 1, t[1]), valu("v_lshlrev_b32", t[2], 4, t[2]), valu("v_mov_b32", t[3], "0x3f80"),
               valu("v_lshlrev_b32", t[2], t[2], t[3]),
               valu("v_bfe_u32", t[3], t[1], 2, 1), valu("v_xor_b32", t[3], t[3], t[0]),
               valu("v_and_b32", t[0], 1, t[3]), valu("v_lshlrev_b32", t[0], 3, t[0]),
               valu("v_lshrrev_b32", t[3], 1, t[3]), valu("v_lshl_add_u32", t[0], t[3], 2, t[0]),
               valu("v_lshrrev_b32", t[3], 3, t[1]), valu("v_lshl_add_u32", t[0], t[3], 1, t[0]),
               valu("v_bfe_u32", t[3], t[1], 1, 1), valu("v_add_u32", t[0], t[0], t[3]),
               valu("v_lshlrev_b32_e64", t[0], t[0], 1)]
            for m in range(8): su += [valu("v_bfe_i32", SEL[m], t[0], m, 1), valu("v_and_b32", SEL[m], SEL[m], t[2])]
            for x in su: F(x, ou0[18], gf[1 + mg] - 1, q="su" if mg else "fl", after=[flag0])
    if int(o.r0in):
        g = ou0[27] - int(o.pollo)
        p0 = F(vload(vRdy, vPo, Smb, sGo, 0, "sc1", tag="poll0", op="buffer_load_dword"), g, g + 2, q="r0", after=[su[-1]])
        g = ou0[27] + int(o.r0o)
        for x in (raw(f"v_cmp_eq_u32 vcc, 0, {vRdy}", rd=[vRdy], kind="valu"), raw("s_cbranch_vccnz Lp0_spin\nLp0_back:", kind="br")): F(x, g, g + 1, q="r0")
        ops = [salu("s_mul_i32", sOff, sGo, PART // 128), salu("s_sub_u32", sGo, sGo, 512), salu("s_and_b32", sGo, sGo, "0x600")]
        for i in range(4):
            if i: ops.append(salu("s_add_u32", sOff, sOff, PART))
            ops += [vload(A(12 * i + 4 * f, 4), vR[f], Sred, sOff, 0, o.rflag, tag="r0") for f in range(3)]
        nextvm[0] = 0
        r0 = spread(ops, g + 2, float(o.r0step), q="r0")
    g = last - int(o.pollo)
    F(vload(vRdy, vPo, Smb, sGo, 0, "sc1", tag="poll", op="buffer_load_dword"), g, g + 2, q="fl", after=[r0[2]] if int(o.r0in) else [su[-1]])
    if int(o.adw):
        for x in (salu("s_and_b32", sG, sJ, 12), salu("s_lshl_b32", sG, sG, 7), vload(vRdA, vPo, Smb, sG, 0, "sc1", tag="poll", op="buffer_load_dword")):
            F(x, g, g + 6, q="fl", after=[own_rdy])
    F(waitvm("poll"), last, last, q="st")
    seq = sc.run()
    if "a" in o.abl: seq = [x for x in seq if not (x.gap > 100 and x.kind in ("dma", "vml"))]
    if "s" in o.abl: seq = [x for x in seq if not (x.kind == "vms" and x.tag.startswith("st"))]
    if "w" in o.abl: seq = [x for x in seq if not (x.kind == "dma" and x.tag[:3] == "wo0")]
    if "d" in o.abl: seq = [x for x in seq if not (x.kind == "dsw" and x.gap > 1700)]
    if "o" in o.abl: seq = [x for x in seq if not (x.kind == "dma" and x.tag[:3] in ("wo1", "wo2", "wo3"))]
    seq = P + seq
    if not o.abl: check_tags(seq)
    seq, nops = pad_hazards(seq)
    sys.stderr.write(f"mfma {len(sc.bb)} instrs {len(seq)} over {sc.stats['over']} idle {sc.stats['idle']} waits {sc.stats['waits']} nop-states {nops}\n")
    return seq, nstamp[0]

def reduce_tail(o, a, nst):
    acc = lambda f, u: V(8 * f + 4 * u, 4)
    buf = lambda t, i, f: A(48 * t + 12 * i + 4 * f, 4)
    poll = f"buffer_load_dword {vRdy}, {vPo}, {Smb}, {sGo} offen sc1"
    a(f"s_lshl_b32 s61, {sP(3)}, 5"); a("s_mov_b32 s63, 0")
    if int(o.stamps): a(f"s_memrealtime s[{64+2*nst}:{65+2*nst}]")
    def mf(t):
        for f in range(3):
            for u in range(2):
                for i in range(4):
                    a(f"v_mfma_f32_16x16x32_bf16 {acc(f,u)}, {SEL.sub(4*u,4)}, {buf(t,i,f)}, {0 if t == 0 and i == 0 else acc(f,u)}")
    pa = int(o.polli)
    t0 = int(o.r0in); ts = int(o.ts)
    nl = lambda t: 9 if t == ts else 12
    for t in range(t0, 4):
        a(f"s_mul_i32 s45, {sGo}, {PART // 128}")
        if t == 2:
            a("s_waitcnt lgkmcnt(0)"); a("s_barrier")
            for f in range(3): a(f"ds_read_b128 {buf(ts,3,f)}, {vOwr} offset:{4096*f}")
        if t == ts: a("s_mov_b32 s62, s45")
        if t > t0: a(f"s_waitcnt vmcnt({nl(t-1) - 3 * pa})")
        a(f"Lpoll{t}:"); a(f"v_cmp_eq_u32 vcc, 0, {vRdy}"); a(f"s_cbranch_vccz Lgo{t}")
        a(poll); a("s_add_u32 s63, s63, 1"); a("s_waitcnt vmcnt(0)"); a("s_cmp_lt_u32 s63, 0x40000"); a(f"s_cbranch_scc1 Lpoll{t}")
        a(f"Lgo{t}:")
        adw = int(o.adw) if t < 3 else 0
        if adw:
            a(f"v_cmp_eq_u32 vcc, 0, {vRdA}"); a("s_and_b32 s52, s51, 3"); a("s_lshl_b32 s52, 1, s52"); a("s_xor_b32 s52, s52, 15")
            a("s_and_b32 vcc_lo, vcc_lo, s52"); a("s_and_b64 vcc, vcc, 15")
        a(f"s_sub_u32 {sGo}, {sGo}, 512"); a(f"s_and_b32 {sGo}, {sGo}, 0x600")
        for i in range(nl(t) // 3):
            if t == ts: a(f"s_add_u32 s52, s51, {i+1}"); a("s_and_b32 s52, s52, 3"); a(f"s_mul_i32 s52, s52, {PART}"); a("s_add_u32 s45, s62, s52")
            if i == int(o.fl3) and t == t0:
                a(f"s_waitcnt vmcnt({3*i})"); a(f"buffer_store_dword {vOne}, {vF}, {Smb}, s61 offen sc1")
            if i == pa and t < 2 and adw: a(f"buffer_load_dword {vRdA}, {vPo}, {Smb}, {sG} offen sc1")
            if i == pa and t < 3: a(poll)
            for f in range(3):
                rw = int(str(o.rwin).split(",")[t % len(str(o.rwin).split(","))])
                if rw: a(f"s_waitcnt vmcnt({rw-1})")
                if adw: a(f"s_cbranch_vccz La{t}{i}{f}"); a(f"s_waitcnt vmcnt({adw-1})"); a(f"La{t}{i}{f}:")
                a(f"buffer_load_dwordx4 {buf(t,i,f)}, {vR[f]}, {Sred}, s45 offen {o.rflag}")
            if i < 3 and t != ts: a(f"s_add_u32 s45, s45, {PART}")
        if t:
            a(f"s_waitcnt vmcnt({nl(t) + (1 if t < 3 else 0)})" + (" lgkmcnt(0)" if t == 3 else "")); mf(t - 1)
    assert int(o.fl3) <= pa <= 2
    for i in ((3, 0, 1, 2) if ts == 3 else range(4)):
        if nl(3) - 3 - 3 * i >= 0: a(f"s_waitcnt vmcnt({nl(3) - 3 - 3 * i})")
        for f in range(3):
            for u in range(2): a(f"v_mfma_f32_16x16x32_bf16 {acc(f,u)}, {SEL.sub(4*u,4)}, {buf(3,i,f)}, {acc(f,u)}")
    a("s_nop 3")
    for f in range(3):
        if f: a("s_nop 1")
        for m in range(4): a(f"v_cvt_pk_bf16_f32 v{32+4*f+m}, v{8*f+2*m}, v{8*f+2*m+1}")
        a(f"buffer_store_dwordx4 v[{32+4*f}:{35+4*f}], {vO[f]}, {Sout}, 0 offen {o.outflag}".rstrip())

def tail_and_slow(o, nst):
    T = []; a = T.append
    reduce_tail(o, a, nst); nst += 1
    if int(o.stamps):
        a(f"s_memrealtime s[{64+2*nst}:{65+2*nst}]"); a("s_waitcnt vmcnt(0)")
        a(f"s_memrealtime s[{66+2*nst}:{67+2*nst}]"); a("s_waitcnt lgkmcnt(0)")
        a("s_cmp_lg_u32 s3, 0"); a("s_cbranch_scc1 Lend")
        if o.enc:
            ea, eb = [int(z) for z in o.enc.split(",")]
            a("s_cmp_lg_u32 s2, 100"); a("s_cbranch_scc1 Lnoenc")
            a(f"s_sub_u32 s52, s{64+2*eb}, s{64+2*ea}"); a("s_mul_i32 s52, s52, 10"); a("s_min_u32 s52, s52, 200000"); a("s_add_u32 s52, s52, 500")
            a("Lspin:"); a("s_memrealtime s[46:47]"); a("s_waitcnt lgkmcnt(0)"); a(f"s_sub_u32 s46, s46, s{66+2*nst}")
            a("s_cmp_lt_u32 s46, s52"); a("s_cbranch_scc1 Lspin"); a("Lnoenc:")
        a("s_load_dwordx2 s[40:41], s[0:1], 56"); a("s_mov_b32 s42, 0x10000000"); a("s_mov_b32 s43, 0x20000"); a("s_waitcnt lgkmcnt(0)")
        a(f"s_lshl_b32 s52, s2, 6"); a(f"s_add_u32 s52, s52, {STAMP_OFF}"); a("v_mov_b32 v1, s52")
        a("s_mov_b64 exec, 1")
        assert nst + 2 <= 16
        for n in range(nst + 2):
            a(f"v_mov_b32 v2, s{64+2*n}"); a(f"buffer_store_dword v2, v1, s[40:43], 0 offen offset:{4*n}")
    a("Lend:"); a("s_endpgm")
    if int(o.r0in):
        a("Lp0_spin:"); a("s_mov_b32 s63, 0"); a("Lp0_loop:")
        a(f"buffer_load_dword {vRdy}, {vPo}, {Smb}, {sGo} offen sc1"); a("s_add_u32 s63, s63, 1"); a("s_waitcnt vmcnt(0)")
        a(f"v_cmp_eq_u32 vcc, 0, {vRdy}"); a("s_cmp_lt_u32 s63, 0x40000"); a("s_cselect_b64 vcc, vcc, 0")
        a("s_cbranch_vccnz Lp0_loop"); a("s_branch Lp0_back")
    a("Lrdy_spin:"); a("s_mov_b32 s63, 0"); a("Lrdy_loop:")
    a(f"buffer_load_dword {vRdy}, {vRdA}, {Sdbg}, 0 offen sc1"); a("s_add_u32 s63, s63, 1"); a("s_waitcnt vmcnt(0)")
    a(f"v_cmp_gt_u32 vcc, 16, {vRdy}"); a("s_cmp_lt_u32 s63, 0x40000"); a("s_cselect_b64 vcc, vcc, 0")
    a("s_cbranch_vccnz Lrdy_loop"); a("s_branch Lrdy_back")
    a("Lslow:"); a("s_waitcnt vmcnt(0) lgkmcnt(0)"); a("s_nop 7"); a("s_barrier")
    a("v_mbcnt_lo_u32_b32 v0, -1, 0"); a("v_mbcnt_hi_u32_b32 v0, -1, v0")
    a("v_and_b32 v1, 15, v0"); a("v_lshlrev_b32 v1, 8, v1"); a("v_lshrrev_b32 v2, 4, v0"); a("v_lshl_add_u32 v1, v2, 4, v1")
    a("s_lshl_b32 s52, s48, 17"); a("s_add_u32 s52, s52, 128"); a("s_lshl_b32 s53, s49, 6"); a("s_add_u32 s62, s52, s53")
    a("v_add_u32 v2, s62, v1"); a("s_xor_b32 s53, s53, 64"); a("s_add_u32 s62, s52, s53"); a("v_add_u32 v3, s62, v1")
    for b in range(5): a(f"v_mov_b32 v{8+b}, 0xff800000")
    a("s_mov_b32 s45, 0"); a("Lslow_loop:")
    for t in range(4): a(f"buffer_load_dwordx4 v[{16+4*t}:{19+4*t}], v{2+(t&1)}, {Sk}, s45 offen offset:{128*(t>>1)}")
    a("s_waitcnt vmcnt(0)")
    for b in range(5):
        for t in range(4):
            a(f"v_mfma_f32_16x16x32_bf16 {NM(b)}, v[{16+4*t}:{19+4*t}], {QF(b,t)}, {0 if t == 0 else NM(b)}")
    a("s_nop 7"); a("s_nop 1")
    for b in range(5):
        n = NM(b); a(f"v_max3_f32 v{8+b}, v{8+b}, {n[0]}, {n[1]}"); a(f"v_max3_f32 v{8+b}, v{8+b}, {n[2]}, {n[3]}")
    a("s_add_u32 s45, s45, 4096"); a("s_cmp_lt_u32 s45, 131072"); a("s_cbranch_scc1 Lslow_loop")
    for b in range(5): a(f"v_accvgpr_write_b32 {SAV(b)}, v{8+b}")
    a("s_load_dwordx16 s[4:19], s[0:1], 0"); a("s_mov_b32 s54, 1"); a("s_branch Lrestart"); a("Lcode_end:")
    return T

KD = """.amdhsa_kernel {name}
  .amdhsa_next_free_vgpr {vg}
  .amdhsa_next_free_sgpr {sg}
  .amdhsa_accum_offset {acc}
  .amdhsa_group_segment_fixed_size 0
  .amdhsa_kernarg_size 64
  .amdhsa_user_sgpr_count 2
  .amdhsa_user_sgpr_kernarg_segment_ptr 1
  .amdhsa_system_sgpr_workgroup_id_x 1
  .amdhsa_float_denorm_mode_32 3
.end_amdhsa_kernel"""

def generate(o):
    hdr = [l.rstrip("\n") for l in open(f"cdna_kernels/{NAME}.s.ref") if l.startswith(";") and "@launch" not in l and "grid=" not in l and "Override" not in l]
    seq, nst = build_main(o)
    L = hdr + [f"; @launch grid=(256,1,1) block=(256,1,1) lds={LDSB}", '.amdgcn_target "amdgcn-amd-amdhsa--gfx950"', ".text",
               f".globl {NAME}_kernel", ".p2align 8", f".type {NAME}_kernel,@function", f"{NAME}_kernel:"]
    L += [i.text for i in seq] + tail_and_slow(o, nst)
    L += ['.section .rodata,"a"', ".p2align 6", KD.format(name=f"{NAME}_kernel", vg=512, sg=102, acc=256)]
    txt = "\n".join(L) + "\n"
    if int(o.clk): txt = txt.replace("s_memrealtime", "s_memtime")
    return txt

if __name__ == "__main__":
    o = Opt()
    for kv in sys.argv[2:]:
        k, v_ = kv.split("=", 1)
        assert hasattr(Opt, k), k
        setattr(o, k, v_)
    open(sys.argv[1], "w").write(generate(o))
```

```python
import sys, math, struct
from dsl import *

NAME = "standalone__mha_block_cached__near_ridge"
US, GRP, PS = 17024, 4224, 1056
X9 = 9 * US
FLAG = X9 + 8448
LDSB = 163840
PART = 147456
STAMP_OFF = 0x4000000
MBOFF = 256 * PART
def fbits(x): return struct.unpack("<I", struct.pack("<f", x))[0]
CSC = fbits(math.log2(math.e) / math.sqrt(128.0))
THR = fbits(2.0 ** 40)

Smb, Sred, Sout, Sdbg = S(4, 4), S(8, 4), S(12, 4), S(16, 4)
Sx, Swq, Sk, Sv, Swo, Sws = S(20, 4), S(24, 4), S(28, 4), S(32, 4), S(36, 4), S(40, 4)
sW, sGrp, sOff, sC, sGrP, sHH, sQH, sB, sJ = S(3), S(44), S(45), S(46), S(47), S(48), S(49), S(50), S(51)
sT0, sT1, sMode, sX9, sT3, sOw0, sOw1, sA8, sB8, sSt, sT2, sAt = [S(n) for n in range(52, 64)]
sRx, sRw = S(96), S(97)
sCc = S(55)
sRk = S(47)
sP = lambda p: S(98 + p)
ACC = lambda b, f: V(32 * b + 4 * f, 4)
QF = lambda b, t: (V(128 + 16 * b + 4 * t, 4) if b < 4 else A(180 + 4 * t, 4))
SB = lambda k: V(192 + 8 * k, 8)
PB = lambda k: V((208, 212, 248)[k], 4)
NM = lambda b: V(216 + 4 * b, 4)
Kr = lambda y, p: V(236 + 2 * y + p)
Vr = lambda y, hf: V(240 + 2 * y + hf)
vKV = lambda pp: V(244 + pp)
vL16, vTs, vT0, vT1 = V(252), V(253), V(254), V(255)
qWr = lambda win, p: V(216 + 2 * win + p)
qXr = lambda win: V(220 + win)
qX9r = V(222)
qWd = lambda pp: V(225 + pp)
qXd = lambda pp: V(229 + pp)
qX9d, qA8, qB8 = V(233), V(234), V(235)
KF = lambda y, h, t: A(32 * y + 16 * h + 4 * t, 4)
VF = lambda e, y, d: A((96 if y else (64, 200)[e & 1]) + 4 * d, 4)
O9 = lambda d: A(128 + 4 * d, 4)
LS = lambda b: A(160 + 4 * b, 4)
ONES = A(196, 4)
SAV = lambda b: A(248 + b)
aWpat, aWo0, aKv0 = A(253), A(254), A(255)
Aq = lambda fp, kk: A(96 + 8 * fp + 4 * kk, 4)
Bq = lambda I_, kk, b: A((128, 200)[I_ & 1] + 16 * kk + 4 * b, 4)
B9 = lambda I_, kk: A(232 + 8 * (I_ & 1) + 4 * kk, 4)
SEQ = [(I_, h) for I_ in range(6) for h in range(2)] + [(6, 0), (7, 0), (6, 1), (7, 1)]
WQU = {4: 1, 5: 4, 0: 5, 1: 3, 2: 6, 3: 8}
XU = {2: 0, 0: 2, 1: 7}
KVU = lambda slot: (2 * slot, 2 * slot + 1, 4 + 2 * slot, 5 + 2 * slot)
WOU = {0: (0, 1, 4, 5), 1: (2, 3, 0, 1), 2: (4, 5, 2, 3), 3: (0, 1, 6, 7)}
Ao = lambda p, ks, u: A(((64, 0), (32, 96))[p & 1][ks >> 2] + 16 * u + 4 * (ks & 3), 4)
QB = [0, 4, 1, 5, 2, 6, 3, 7, 8]
def Bo(qb, ks):
    if qb < 4: return V(32 * qb + 4 * ks, 4)
    if qb == 4: return A(232 + 4 * ks if ks < 6 else 192 + 4 * (ks - 6), 4)
    if qb == 6: return V(128 + 4 * ks, 4)
    return A({5: 200, 7: 160, 8: 128}[qb] + 4 * ks, 4)
TR, B128 = "ds_read_b64_tr_b16", "ds_read_b128"
sG, sGo = S(96), S(97)
vSt3, vOwn, vOwr = V(232), V(233), V(234)
vF, vOne, vRdy, vPo, vR, vRdA, vO, SEL = V(220), V(221), V(222), V(223), V(224, 3), V(227), V(228, 3), V(160, 8)

class Opt:
    stamps = 0; clk = 0; enc = None; xst = ""; qst = ""; abl = ""
    kvflag = "nt"; stflag = "sc1"; outflag = "sc1"
    qseq = ("x0,n0,w0,w1|p1,x1,w2,p4,w3,p5.6,x2,n1,w4,w5,x3,w6,w7,t2,x4,n2,w8,p4,w9,x5,w10,w11,x6,n3,w12,x7,w13,w14,w15,"
            "p2,s0,s1,c0,s2,p6,s3,k0,k1,p9,k2,k3")
    bal = '(8,17)'; winlo = 5; winhi = 7; hx = 'h'; asym = 0; lpf = 0; tflag = ''; rot = 2; rsh = 1; cpf = 2
    ashift = 0; win = 6; winfrom = 2; astep0 = 12.4; astep = 10.4; astep4 = 10.4; astep5 = 10.4; estep = 8.2; wow = 0.5; bxo = 10; w1bo = 4
    ouseq = '00,04,10,14,01,05,11,02,06,15,12,03,07,16,08,13,17,18'
    vmgap = 2; dswgap = 4; maxmem = 1; wiso = 1; hor = 40; lead = 8; w64 = 0
    sepv = 3; bvo = 14; bv7 = 0; bk0 = 20; ba0 = -22; bb0 = 30; bao = 0; bbo = 20; bb7 = 34; ate = 4; merge = 1; ts = 3; rst = 0; wpace = 0.5; thin = 1; call = 1; cte = -1; tt = 0; win0 = ''; rox = ''; kvm = 1; all0 = 0; cpl = 0; rawp = 0; winp = ''; adw = 0; fb = 0; bko1 = 11; byo = 12; hold = 0; lflag = 'sc1'; l3flag = 'sc1'; rflag = 'sc1'; r0in = 0; r0o = 12; r0step = 7; swin = 0; rwin = 7; polli = 1; b1o = 14; bko = 11; bdo = 100; flo = 104; pollo = 36; ostep0 = 3.5; ostep1 = 3.8; ostep2 = 4; ostep3 = 16; ostep4 = 12
    def __getattr__(s, k): raise AttributeError(k)

def setoff(soff):
    if isinstance(soff, tuple):
        r, add, mask = soff
        if mask == "x": return [salu("s_xor_b32", sOff, r, add)]
        return [salu("s_add_u32", sOff, r, add)] + ([salu("s_and_b32", sOff, sOff, mask)] if mask else [])
    return [salu("s_mov_b32", sOff, soff)]
def group(unit_off, base, voff, srd, soff, flags, tag):
    return [salu("s_add_u32", "m0", base, unit_off)] + setoff(soff) + [dma(voff(pp), srd, sOff, PS * pp, flags, tag) for pp in range(4)]
def g_wq(j): return group(WQU[j % 6] * US, sGrp, qWd, Swq, (sRw, SEQ[j][0] * 524288 + SEQ[j][1] * 128, 0x3fffff), "", f"wq{j}")
def g_x(I_): return group(XU[I_ % 3] * US, sGrp, qXd, Sx, (sRx, I_ * 128, 1023), "", f"x{I_}")
def g_x9(n): return [salu("s_add_u32", "m0", sX9, X9 + (n & 1) * GRP)] + setoff((sRx, n * 256, 1023)) + [dma(qX9d, Sx, sOff, 0, "", f"xn{n}")]
def g_kv(e, part, o, cap=True):
    kv, half = part >> 1, part & 1
    ops = group(KVU(e & 1)[part] * US, sGrp, vKV, (Sk, Sv)[kv], (sRk, e * 16384 + half * (4096 << int(o.kvm)), "x"), o.kvflag, f"{'kv'[kv]}{e}")
    if e < int(o.winfrom) and o.win0:
        for x in ops:
            if x.kind == "dma": x.text = f"s_waitcnt vmcnt({int(o.win0.split(',')[4 * e + part])-1})\n" + x.text
    if cap and int(o.win) and e >= int(o.winfrom):
        for x in ops:
            if x.kind != "dma": continue
            if 4 * e + part in range(*eval(o.bal)):
                g_kv.n = getattr(g_kv, "n", 0) + 1
                x.text = f"s_cbranch_vccz Lw{g_kv.n}\ns_waitcnt vmcnt({int(o.winlo)-1})\nLw{g_kv.n}:\ns_waitcnt vmcnt({int(o.winhi)-1})\n" + x.text
            else:
                g_kv.m = getattr(g_kv, "m", 0) + 1
                x.text = f"s_waitcnt vmcnt({int(o.winp[g_kv.m % len(o.winp)] if o.winp else o.win)-1})\n" + x.text
    return ops
def g_wo(p, hf): return sum((group(WOU[p][part] * US, sGrp, vKV, Swo, (sP(p), part * 65536, 0), "", f"wo{p}{'ab'[hf]}") for part in (2 * hf, 2 * hf + 1)), [])
def w128(o, addr, data, off):
    if not int(o.w64): return [dsw("ds_write_b128", addr, data, off)]
    return [dsw("ds_write_b64", addr, (data[0].sub(2 * z, 2), data[1]), off + 8 * z) for z in range(2)]

def qtok(tok, o):
    c, n = tok[0], int(tok[1:])
    if c == "w": return g_wq(n), n - 6
    if c == "x": return g_x(n), 2 * (n - 3)
    if c == "n": return g_x9(n), (4 * (n - 2) + 2 if n >= 2 else -1)
    if c == "c": return code_touch(V(254, 2), vTs, vL16, shift=3), -1
    if c == "t":
        ops = [salu("s_bfe_u32", sT0, sB, (1 << 16) | 1), salu("s_lshl_b32", sT0, sT0, 24)] + (
               [salu("s_lshl_b32", sT1, sQH, 12), salu("s_add_u32", sT0, sT0, sT1)] if int(o.kvm) else []) + [
               valu("v_mul_u32_u24", vT0, 7, vL16), valu("v_add3_u32", vT0, vT0, vKV(0), sT0)] + (setoff(16384) if 2 < n < 10 else [])
        return ops + [I(f"buffer_load_dword {vTs}, {vT0}, {(Sk, Sv)[z & 1]}, {sOff if z >> 1 else 0} offen", "vml", rd=[vT0, sOff], tag="ct") for z in (range(n) if n < 10 else [n - 10])], -1
    if c == "u":
        ops = [salu("s_bfe_u32", sT0, sB, (1 << 16) | 1), salu("s_xor_b32", sT0, sT0, 1), salu("s_lshl_b32", sT0, sT0, 24),
               salu("s_bfe_u32", sT1, sB, (1 << 16) | 2), salu("s_lshl_b32", sT1, sT1, 17), salu("s_add_u32", sT0, sT0, sT1),
               salu("s_and_b32", sT1, sB, 1), salu("s_lshl2_add_u32", sT1, sT1, sW), salu("s_lshl_b32", sT1, sT1, 14), salu("s_add_u32", sT0, sT0, sT1),
               valu("v_lshl_add_u32", vT0, vL16, 3, sT0)] + setoff(8192)
        return ops + [I(f"buffer_load_dword {vTs}, {vT0}, {Swo}, {sOff if z else 0} offen offset:128", "vml", rd=[vT0, sOff], tag="ct") for z in range(2)], -1
    if c == "s": return g_kv(0, n, o), (10, 10, 11, 12)[n]
    if c == "k": return g_kv(1, n, o), (12, 13, 14, 14)[n]
    raise ValueError(tok)

def code_touch(va, vd, lane, shift, tid=False):
    n = code_touch.n = getattr(code_touch, "n", 0) + 1
    return [valu("v_lshlrev_b32", va[0], shift, lane)] + ([] if tid else
            [salu("s_and_b32", sT0, sB, 7), salu("s_lshl_b32", sT1, sW, 6), salu("s_add_u32", sT0, sT0, sT1), salu("s_lshl_b32", sT0, sT0, 7),
             valu("v_and_b32", va[0], "0x1c00", va[0]), valu("v_add_u32", va[0], sT0, va[0])] if code_touch.thin else
            [salu("s_lshl_b32", sT0, sW, 13), valu("v_add_u32", va[0], sT0, va[0])]) + [
            raw(f"s_getpc_b64 s[52:53]\nLpc{n}:", wr=[sT0, sT1], kind="salu"),
            raw(f"v_min_u32 {va[0]}, Lcode_end-Lpc{n}-4, {va[0]}", rd=[va[0]], wr=[va[0]], kind="valu"),
            valu("v_mov_b32", va[1], 0),
            raw(f"v_lshl_add_u64 {va}, {va}, 0, s[52:53]", rd=[va, sT0, sT1], wr=[va], kind="valu"),
            I(f"global_load_dword {vd}, {va}, off", "vml", rd=[va], wr=[], tag="ct")]

def prologue(o):
    P = []; a = P.append
    v = lambda n: V(n)
    a(raw("s_cmp_ge_u32 s2, 256")); a(raw("s_cbranch_scc1 Lend"))
    a(raw("s_load_dwordx16 s[4:19], s[0:1], 0"))
    if int(o.stamps): a(raw("s_memrealtime s[64:65]"))
    a(valu("v_lshrrev_b32", v(1), 6, v(0)))
    if int(o.call):
        a(salu("s_bfe_u32", sT2, S(2), (3 << 16) | 3)); a(valu("v_lshrrev_b32", v(3), 2, v(0))); a(valu("v_lshl_add_u32", v(3), v(3), 3, sT2))
        P += code_touch(V(8, 2), vTs, v(3), shift=7, tid=True)
    elif int(o.cpf) and not int(o.cpl): P += code_touch(V(8, 2), vTs, v(0), shift=int(o.cpf) + 3, tid=True)
    a(valu("v_readfirstlane_b32", sW, v(1)))
    a(valu("v_mov_b32", v(2), "0xff800000")); a(salu("s_mov_b32", sMode, 0))
    for b in range(5): a(valu("v_accvgpr_write_b32", SAV(b), v(2)))
    a(raw("Lrestart:", kind="label"))
    L, t1, t2, t3, t4, t5, t6 = v(0), v(1), v(2), v(3), v(4), v(5), v(6)
    a(valu("v_mbcnt_lo_u32_b32", L, -1, 0)); a(valu("v_mbcnt_hi_u32_b32", L, -1, L))
    a(salu("s_and_b32", sT0, S(2), 1)); a(salu("s_bfe_u32", sT1, S(2), (3 << 16) | 3)); a(salu("s_lshl3_add_u32", sB, sT0, sT1))
    a(salu("s_bfe_u32", sT0, S(2), (2 << 16) | 1)); a(salu("s_lshr_b32", sT1, S(2), 6)); a(salu("s_lshl2_add_u32", sJ, sT0, sT1))
    a(salu("s_lshr_b32", sHH, sW, 1)); a(salu("s_and_b32", sQH, sW, 1))
    a(salu("s_mul_i32", sGrp, sW, GRP)); a(salu("s_mul_i32", sX9, sW, PS))
    a(salu("s_add_u32", sT3, sB, sJ)); a(salu("s_lshl_b32", sT0, sT3, 0 if int(o.asym) else int(o.rsh))); a(salu("s_and_b32", sT0, sT0, int(o.rot)))
    if o.rox:
        a(salu("s_lshr_b32", sT1, S(2), 1))
        a({"b": salu("s_and_b32", sT1, S(2), 1), "h": salu("s_and_b32", sT1, sT1, 1), "x": salu("s_xor_b32", sT1, sT1, S(2))}[o.rox])
        a(salu("s_and_b32", sT1, sT1, 1)); a(salu("s_add_u32", sT0, sT0, sT1))
    a(salu("s_lshl_b32", sRx, sT0, 8)); a(salu("s_lshl_b32", sRw, sT0, 20))
    a(valu("v_and_b32", t1, 7, L)); a(valu("v_lshlrev_b32", t1, 4, t1))
    a(valu("v_lshrrev_b32", t2, 3, L)); a(valu("v_lshl_add_u32", t3, t2, 12, t1))
    a(salu("s_lshl_b32", sT0, sW, 15)); a(salu("s_add_u32", sT0, sT0, 128))
    a(valu("v_add_u32", qXd(0), sT0, t3))
    for pp in range(1, 4): a(valu("v_subrev_u32", qXd(pp), 32 * pp, qXd(0)))
    a(valu("v_and_b32", t4, 3, t2)); a(valu("v_lshl_add_u32", t3, t4, 12, t1))
    a(valu("v_lshrrev_b32", t2, 5, L)); a(valu("v_lshl_add_u32", t3, t2, 7, t3))
    a(salu("s_lshl_b32", sT0, sW, 10)); a(salu("s_add_u32", sT0, sT0, 128 * 1024 + 128))
    a(valu("v_add_u32", qX9d, sT0, t3))
    a(valu("v_lshl_add_u32", t3, t4, 16, t1)); a(valu("v_lshl_add_u32", t3, t2, 15, t3))
    a(salu("s_lshl_b32", sT0, sQH, 18)); a(salu("s_lshl_b32", sT1, sHH, 8)); a(salu("s_add_u32", sT0, sT0, sT1))
    a(valu("v_add_u32", qWd(0), sT0, t3))
    for pp in range(1, 4): a(valu("v_add_u32", qWd(pp), (8192 - PS) * pp, qWd(0)))
    a(salu("s_mov_b32", Sx[2], PART + 128)); a(salu("s_mov_b32", Sx[3], "0x20000")); a(salu("s_mov_b32", Swq[3], "0x20000"))
    a(salu("s_mul_i32", sT2, sB, PART)); a(salu("s_lshl_b32", sT1, sJ, 9)); a(salu("s_sub_u32", Swq[2], 4194304, sT1))
    a(raw("s_waitcnt lgkmcnt(0)"))
    def base(srd, ptr, off, shift=0, size=None):
        a(salu("s_add_u32", srd[0], S(ptr), off)); a(salu("s_addc_u32", srd[1], S(ptr + 1), 0))
        if shift:
            a(salu("s_sub_u32", srd[0], srd[0], shift)); a(salu("s_subb_u32", srd[1], srd[1], 0))
        if size: a(salu("s_mov_b32", srd[2], size + shift)); a(salu("s_mov_b32", srd[3], "0x20000"))
    base(Sx, 4, sT2, 128); base(Swq, 10, sT1)
    if int(o.asym):
        a(raw("s_bitcmp1_b32 s56, 0")); a(raw("s_cbranch_scc0 Lnotouch"))
        a(salu("s_and_b32", sT0, sB, 14)); a(salu("s_lshl4_add_u32", sT0, sT0, sJ)); a(salu("s_lshl_b32", sT0, sT0, 18))
        base(Sk, 6, sT0, 0, 4194304 + 262144)
        if int(o.asym) > 2: base(Sv, 8, sT0, 0, 4194304 + 262144)
        a(salu("s_lshl4_add_u32", sT0, sHH, sQH)); a(salu("s_lshl_b32", sT0, sT0, 13)); a(valu("v_lshl_add_u32", t3, L, 7, sT0))
        a(salu("s_mov_b32", sOff, 4194304))
        for n in range(int(o.asym)):
            if int(o.asym) == 3 and n == 2:
                a(valu("v_lshrrev_b32", t1, 5, L)); a(valu("v_mul_u32_u24", t1, 4194304 - 4096, t1)); a(valu("v_add_u32", t3, t3, t1))
            a(raw(f"buffer_load_dword {vTs}, {t3}, {(Sk, Sv)[n >> 1]}, {sOff if n & 1 else 0} offen {o.tflag}".rstrip(), rd=[t3], kind="vml"))
        a(raw("Lnotouch:", kind="label"))
    lin = []
    if int(o.lpf):
        a = lin.append
        base(Sk, 4, 0, 0, 16 * PART); base(Sv, 10, 0, 0, 4194304)
        a(salu("s_lshl2_add_u32", sT0, S(2), sW)); a(salu("s_mul_i32", sT1, sT0, 2304)); a(salu("s_lshl_b32", sT0, sT0, 12))
        a(valu("v_min_u32", t1, 17, L)); a(valu("v_lshl_add_u32", t1, t1, 7, sT1)); a(valu("v_lshl_add_u32", t3, L, 6, sT0))
        a(I(f"buffer_load_dword {vTs}, {t3}, {Sv}, 0 offen", "vml", rd=[t3], tag="ct"))
        a(I(f"buffer_load_dword {vTs}, {t1}, {Sk}, 0 offen", "vml", rd=[t1], tag="ct"))
    first = []
    for n, tok in enumerate(o.qseq.split("|")[0].split(",")):
        if n == int(o.lpf) - 1: first += lin
        first += qtok(tok, o)[0]
    Q = []; a = Q.append
    if int(o.cpl): a(valu("v_lshl_add_u32", t1, sW, 6, L)); Q += code_touch(V(8, 2), vTs, t1, shift=int(o.cpf) + 3, tid=True)
    a(salu("s_lshl4_add_u32", sT1, sB, sJ))
    a(salu("s_lshl_b32", sT0, sT1, 18)); base(Sk, 6, sT0, 128, 262144); base(Sv, 8, sT0, 128, 262144)
    a(salu("s_mul_i32", sT0, sT1, PART)); base(Sws, 18, sT0, 0, PART)
    a(salu("s_lshl_b32", sT0, sJ, 18)); base(Swo, 12, sT0, 128, 262144)
    base(Sout, 14, sT2, 0, PART)
    a(salu("s_lshl_b32", sT0, sT2, 4)); base(Sred, 18, sT0, 0, 16 * PART)
    a(salu("s_lshl_b32", sT0, sB, 15)); a(salu("s_add_u32", sT0, sT0, MBOFF)); base(Smb, 18, sT0, 0, 32768)
    a(salu("s_mov_b32", Sdbg[2], 256)); a(salu("s_mov_b32", Sdbg[3], "0x20000"))
    a(salu("s_mov_b32", sC, hex(CSC))); a(raw("s_bitcmp1_b32 s50, 1")); a(raw("s_cselect_b64 vcc, -1, 0"))
    a(salu("s_lshr_b32", sT3, sJ, 2)); a(salu("s_lshl_b32", sT0, sB, int(o.fb))); a(salu("s_sub_u32", sT3, sT3, sT0))
    for p in range(4): a(salu("s_add_u32", sT0, sT3, (p - int(o.ts)) & 3)); a(salu("s_and_b32", sT0, sT0, 3)); a(salu("s_lshl_b32", sP(p), sT0, 8))
    a(salu("s_and_b32", sT0, sT3, 3)); a(salu("s_and_b32", sT1, sJ, 3)); a(salu("s_lshl2_add_u32", sT3, sT0, sT1))
    a(valu("v_and_b32", t1, 15, L)); a(valu("v_lshlrev_b32", t1, 4, t1))
    a(valu("v_lshrrev_b32", t5, 4, L))
    a(salu("s_add_u32", sT0, sW, sMode)); a(salu("s_lshl4_add_u32", sAt, sT0, sB)); a(salu("s_lshl_b32", sAt, sAt, 4))
    a(salu("s_lshl_b32", sT0, sMode, 6)); a(salu("s_add_u32", sT0, sT0, sW)); a(salu("s_lshl_b32", sT0, sT0, 9))
    a(valu("v_lshl_add_u32", t6, L, 3, sT0)); a(salu("s_lshl_b32", sOff, sT3, 11)); a(valu("v_mov_b64", V(8, 2), 0))
    a(vstore(V(8, 2), t6, Smb, sOff, 0, "sc1", tag="mbz", op="buffer_store_dwordx2"))
    a(valu("v_lshl_add_u32", t3, t5, 13, t1))
    a(salu("s_lshl_b32", sT0, sHH, 15)); a(salu("s_lshl_b32", sT1, sQH, 12)); a(salu("s_add_u32", sT0, sT0, sT1))
    a(salu("s_add_u32", sT0, sT0, 128)); a(valu("v_add_u32", t3, sT0, t3)); a(valu("v_accvgpr_write_b32", aWo0, t3))
    a(valu("v_lshlrev_b32", vL16, 4, L))
    a(salu("s_lshl_b32", sT0, sHH, 17)); a(salu("s_lshl_b32", sT1, sQH, 13 - int(o.kvm))); a(salu("s_add_u32", sT0, sT0, sT1))
    a(salu("s_add_u32", sT0, sT0, 128)); a(valu("v_add_u32", vKV(0), sT0, vL16)); a(valu("v_accvgpr_write_b32", aKv0, vKV(0)))
    for pp in range(1, 4): a(valu("v_subrev_u32", vKV(pp), 32 * pp, vKV(0)))
    a(salu("s_xor_b32", sT0, sW, 1)); a(salu("s_mul_i32", sGrP, sT0, GRP))
    a(salu("s_add_u32", sA8, sGrp, 8 * US)); a(salu("s_add_u32", sB8, sGrP, 8 * US))
    a(valu("v_add_u32", qA8, sA8, vL16)); a(valu("v_add_u32", qB8, sB8, vL16))
    a(valu("v_and_b32", t1, 3, L)); a(valu("v_mul_u32_u24", t1, PS, t1)); a(valu("v_lshl_add_u32", t1, t5, 4, t1))
    a(valu("v_bfe_u32", t3, L, 2, 2)); a(valu("v_lshl_add_u32", t3, t3, 7, t1))
    a(valu("v_add_u32", qX9r, X9, t3))
    a(salu("s_mul_i32", sT0, sQH, 2 * GRP)); a(valu("v_add_u32", qXr(0), sT0, t3))
    a(valu("v_add_u32", qXr(1), 7 * US, qXr(0)))
    a(valu("v_bfe_u32", t3, L, 2, 1)); a(valu("v_mul_u32_u24", t3, US, t3)); a(valu("v_add_u32", t1, t1, t3))
    a(valu("v_bfe_u32", t3, L, 3, 1)); a(valu("v_lshl_add_u32", t1, t3, 8, t1))
    a(salu("s_lshl_b32", sT0, sQH, 6)); a(salu("s_xor_b32", sT1, sT0, 64))
    a(valu("v_add_u32", t3, sT0, t1)); a(valu("v_add_u32", t6, sT1, t1))
    a(valu("v_add_u32", Kr(0, 0), sGrp, t3)); a(valu("v_add_u32", Kr(0, 1), sGrp, t6))
    a(valu("v_add_u32", Kr(1, 0), sGrP, t3)); a(valu("v_add_u32", Kr(1, 1), sGrP, t6))
    a(valu("v_bfe_u32", t1, L, 2, 2)); a(valu("v_mul_u32_u24", t1, PS, t1))
    a(valu("v_and_b32", t3, 1, L)); a(valu("v_lshl_add_u32", t6, t3, 4, t1))
    a(valu("v_bfe_u32", t3, L, 1, 1)); a(valu("v_lshl_add_u32", t6, t3, 3, t6))
    a(valu("v_lshl_add_u32", t3, t5, 7, t6))
    a(salu("s_mul_i32", sT2, sHH, 2 * GRP)); a(salu("s_add_u32", sT2, sT2, US)); a(valu("v_add_u32", t3, sT2, t3))
    a(valu("v_add_u32", qWr(0, 0), sT0, t3)); a(valu("v_add_u32", qWr(0, 1), sT1, t3))
    a(valu("v_add_u32", qWr(1, 0), 4 * US, qWr(0, 0))); a(valu("v_add_u32", qWr(1, 1), 4 * US, qWr(0, 1)))
    a(valu("v_and_b32", t4, 1, t5))
    a(valu("v_lshl_add_u32", t6, t2, 8, t6)); a(valu("v_mul_u32_u24", t3, GRP, t4)); a(valu("v_add_u32", t6, t6, t3))
    a(salu("s_lshl_b32", sT2, sW, 6)); a(valu("v_add_u32", t6, sT2, t6)); a(valu("v_accvgpr_write_b32", aWpat, t6))
    a(valu("v_lshl_add_u32", t1, t2, 8, t1)); a(valu("v_and_b32", t3, 3, L)); a(valu("v_lshl_add_u32", t1, t3, 3, t1))
    a(valu("v_mul_u32_u24", t3, US, t4)); a(valu("v_add_u32", t1, t1, t3)); a(valu("v_add_u32", t1, 4 * US, t1))
    a(salu("s_lshl_b32", sT0, sT0, 1)); a(salu("s_lshl_b32", sT1, sT1, 1))
    a(valu("v_add_u32", t3, sT0, t1)); a(valu("v_add_u32", t6, sT1, t1))
    a(valu("v_add_u32", Vr(0, 0), sGrp, t3)); a(valu("v_add_u32", Vr(0, 1), sGrp, t6))
    a(valu("v_add_u32", Vr(1, 0), sGrP, t3)); a(valu("v_add_u32", Vr(1, 1), sGrP, t6))
    a(salu("s_and_b32", sRk, {"h": sHH, "b": sB, "0": 0}[o.hx], 1)); a(salu("s_lshl_b32", sRk, sRk, 12 + int(o.kvm)))
    a(salu("s_lshl1_add_u32", sT2, sQH, sHH)); a(salu("s_lshl_b32", sT2, sT2, 12)); a(salu("s_add_u32", sT2, sT2, 6 * US))
    a(salu("s_lshl4_add_u32", sOw0, sT0, sT2)); a(salu("s_lshl4_add_u32", sOw1, sT1, sT2))
    a(valu("v_mov_b32", t1, "0x3f803f80"))
    for r in range(4): a(valu("v_accvgpr_write_b32", (ONES[r], "ones"), t1))
    return P, first, Q

def build_main(o):
    code_touch.thin = int(o.thin)
    P, first, Q = prologue(o)
    sc = Sched(vmgap=int(o.vmgap), dswgap=int(o.dswgap), maxmem=int(o.maxmem), wiso=int(o.wiso), horizon=int(o.hor))
    F = sc.f
    nstamp = [1]
    def stamp(g, after=()):
        if int(o.stamps):
            n = nstamp[0]; nstamp[0] += 1
            F(raw(f"s_memrealtime s[{64+2*n}:{65+2*n}]"), g, g, after=after)
    nextvm = [0]
    def spread(ops, lo, step, q="dma", after=(), cap=None):
        out = []; pos = max(lo, nextvm[0]); pend = []
        for x in ops:
            pend.append(x)
            if x.kind in ("dma", "vml", "vms"):
                a_, b_ = int(pos), int(pos + step)
                if cap is not None: a_, b_ = min(a_, cap), min(b_, cap)
                for y in pend[:-1]: out.append(F(y, max(min(lo, b_), min(a_ - 3, b_)), b_, q=q, after=after))
                out.append(F(x, a_, b_, q=q, after=after)); pend = []
                if x.tag not in ('at', 'ct'): pos += step
        assert not pend
        nextvm[0] = pos
        return out
    cur = {}; lastrd = {}; firstrd = {}; lastwr = {}
    def M(d, dtag, a_, b_, c):
        cc = (d, cur[str(d)]) if c == "acc" else c
        i = mfma((d, dtag), a_, b_, cc); n = sc.m(i); cur[str(d)] = dtag
        for r, t in i.rd.items():
            lastrd[(r, t)] = n; firstrd.setdefault((r, t), n)
        lastwr[str(d)] = n
        return n
    lr = lambda reg, tag: max(lastrd[(r, tag)] for r in reg.regs())
    fr_ = lambda reg, tag: min(firstrd[(r, tag)] for r in reg.regs())
    for i in first + Q: F(i, -1, -1, q="dma")
    k0 = {}; qdone = {}
    for j, (I_, hf) in enumerate(SEQ):
        k0[j] = sc.n
        if j < 15: order = [(fp, b) for fp in range(4) for b in range(5) if b < 4 or fp < 2]
        else: order = [(fp, 4) for fp in range(2)] + [(fp, b) for b in range(4) for fp in range(4)]
        for fp, b in order:
            d = ACC(b, 4 * hf + fp) if b < 4 else SB(hf).sub(4 * fp, 4)
            for kk in range(2):
                bb = (Bq(I_, kk, b) if b < 4 else B9(I_, kk), f"x{I_}")
                n = M(d, "Qacc" if (I_, kk) == (7, 1) else f"q{I_}.{kk}", (Aq(fp, kk), f"w{j}"), bb, 0 if (I_, kk) == (0, 0) else "acc")
            qdone[str(d)] = n
    k0[16] = sc.n
    units = []; U = {}; G = {}; pre0 = {}; preL = {}
    P7 = {0: PB(0), 1: PB(1), 8: PB(2), 2: NM(0), 3: NM(4), 4: NM(1), 5: NM(2)}
    def pre(b):
        pre0[b] = sc.n
        for t in range(4): preL[b] = M(NM(b), f"pm{b}", (KF(0, 0, t), "k0"), (QF(b, t), f"Q{b}"), 0 if t == 0 else "acc")
    def qk(e, u):
        n = len(units); b, y = (u >> 1, u & 1) if u < 8 else (4, 0)
        s_ = SB(n & 1); p_ = PB(u % 3) if e < 7 else P7.get(u, s_.sub(0, 4))
        un = dict(e=e, u=u, b=b, y=y, S=s_, P=p_, n=n, q0=sc.n, hl=[0, 0])
        for h in range(2):
            for t in range(4):
                un["hl"][h] = M(s_.sub(4 * h, 4), f"s{n}", (KF(y, h, t), f"k{e}"), (QF(b, t), f"Q{b}"), (NM(b), f"nm{b}") if t == 0 else "acc")
        units.append(un); U[(e, u)] = un
    def pv(e, b, ds=range(-1, 8)):
        us = [U[(e, 2 * b)], U[(e, 2 * b + 1)]] if b < 4 else [U[(e, 8)]]
        g = G.setdefault((e, b), dict(p0=sc.n))
        for d in ds:
            acc = LS(b) if d < 0 else (ACC(b, d) if b < 4 else O9(d))
            for k, un in enumerate(us):
                a_ = (ONES, "ones") if d < 0 else (VF(e, un["y"], d), f"v{e}")
                g["pL"] = M(acc, f"o{e}.{k}" if k + 1 < len(us) else f"o{e}", a_, (un["P"], f"p{un['n']}"), 0 if e == 0 and k == 0 else "acc")
        for un in us: un["g"] = g
    st0 = {}
    for e in range(8):
        st0[e] = sc.n
        if e == 0: pre(0); pre(1)
        qk(e, 0); qk(e, 1)
        if e: pv(e - 1, 4)
        if e < 7:
            for b in range(1, 4):
                if e == 0: pre(b + 1)
                qk(e, 2 * b); qk(e, 2 * b + 1); pv(e, b - 1)
            qk(e, 8); pv(e, 3)
        else:
            for u in (8, 2, 3, 4, 5, 6, 7): qk(e, u)
            for b in (4, 0, 1, 2): pv(e, b, [-1])
            pv(e, 4, range(8)); pv(e, 3, [-1])
            for b in range(4): pv(e, b, range(8))
    attn_end = sc.n - 1
    odone = dict(lastwr)
    ou0 = {}; ouh = {}
    OU = [(p, qb) for p in range(4) for qb in QB]
    mg = int(o.merge)
    if mg:
        OU[:18] = [(int(z[0]), int(z[1])) for z in o.ouseq.split(",")]
    for n, (p, qb) in enumerate(OU):
        if True:
            ou0[n] = sc.n
            for u in range(2):
                for ks in range(8):
                    ouh[(n, u)] = M(SB(n & 1).sub(4 * u, 4), f"r{n}", (Ao(p, ks, u), f"wo{p}"), (Bo(qb, ks), f"of{qb}"), 0 if ks == 0 else "acc")
    last = sc.n - 1
    ou0[36] = ou0[37] = last + 1
    def rdA(j, fp):
        u = WQU[j % 6]; win = 0 if u <= 4 else 1
        return [dsr(TR, (Aq(fp, kk).sub(2 * h, 2), f"w{j}"), qWr(win, fp >> 1), (u - 1 - 4 * win) * US + kk * GRP + 512 * h + 32 * (fp & 1))
                for kk in range(2) for h in range(2)]
    def rdB(I_):
        u = XU[I_ % 3]; win = 1 if u == 7 else 0
        l = [dsr(B128, (Bq(I_, kk, b), f"x{I_}"), qXr(win), (u - 7 * win) * US + (b >> 1) * GRP + (b & 1) * 512 + kk * 64)
             for b in range(4) for kk in range(2)]
        return l + [dsr(B128, (B9(I_, kk), f"x{I_}"), qX9r, ((I_ >> 1) & 1) * GRP + (I_ & 1) * 512 + kk * 64) for kk in range(2)]
    bpre = F(barrier(vm=("x0", "xn0", "wq0")), -1, -1, q="dma")
    stamp(-1, [bpre])
    l = rdB(0)
    prev = [F(x, -1, -1, q="lds", after=[bpre]) for x in rdA(0, 0) + l[:6]]
    prev += [F(x, -1, 7, q="lds", after=[bpre]) for x in l[6:] + rdA(0, 1) + rdA(0, 2) + rdA(0, 3)]
    BQ = {}
    for j in range(16):
        g = k0[j] + (14 if j == 0 else 9)
        nI = SEQ[j + 1][0] if j < 15 and SEQ[j + 1][1] == 0 else None
        vm = []
        if j < 15: vm.append(f"wq{j+1}")
        if nI is not None: vm += [f"x{nI}", f"xn{nI//2}"]
        if j == 10: vm = ["wq15", "all0"] if int(o.all0) else vm + ["mbz"]
        bq = BQ[j] = F(barrier(vm=vm), g, g, after=prev)
        if o.qst and j in eval(o.qst): stamp(g, [bq])
        prev = []
        if j < 15:
            for fp in range(4):
                for x, kk in zip(rdA(j + 1, fp), (0, 0, 1, 1)):
                    lo = max(lr(Aq(fp, kk), f"w{j}"), g)
                    prev.append(F(x, lo, max(min(fr_(Aq(fp, kk), f"w{j+1}") - 6, k0[j + 1] + 3), lo), q="ldsA", after=[bq]))
        if nI is not None:
            for n, x in enumerate(rdB(nI)): prev.append(F(x, g, min(k0[j + 1] - 7 + n, k0[j + 1] + 2), q="ldsB", after=[bq]))
    step = 3.0; seen = set(o.qseq.split("|")[0].split(","))
    for tok in o.qseq.split("|")[1].split(","):
        if tok[0] == "@": nextvm[0] = max(nextvm[0], int(float(tok[1:]) * 36)); continue
        if tok[0] == "+": nextvm[0] += int(tok[1:]); continue
        if tok[0] == "p": step = float(tok[1:]); continue
        seen.add(tok)
        if tok[0] == "c" and int(o.call): continue
        ops, dep = qtok(tok, o)
        spread(ops, BQ[dep].lo if dep >= 0 else 0, step, after=[BQ[dep]] if dep >= 0 else [])
    assert len([t for t in seen if t[0] not in "ctu"]) == 16 + 8 + 4 + 4 + 4, sorted(seen)
    stamp(k0[15])
    if o.xst:
        for g_ in eval(o.xst): stamp(g_)
    def pack_q(src, dst, tdst, hi):
        lo = min(max(qdone[str(src.sub(0, 4))], qdone[str(src.sub(4, 4))]) + 3, hi)
        ops = [valu("v_mul_f32", (src[m], "t"), sC, (src[m], "Qacc")) for m in range(8)]
        ops += [valu("v_cvt_pk_bf16_f32", (dst[m], "t2"), (src[2 * m], "t"), (src[2 * m + 1], "t")) for m in (0, 2, 1, 3)]
        ops += [swap("v_permlane32_swap_b32", (dst[m], "t2"), (dst[m + 2], "t2"), tdst, tdst) for m in range(2)]
        return [F(x, lo, hi, q="qe") for x in ops]
    q9w = []
    for hf in range(2):
        l = pack_q(SB(hf), PB(hf), "q9p", pre0[0] - 2)
        q9w.append(F(dsw("ds_write_b128", qA8, (PB(hf), "q9p"), 1024 * hf), BQ[15].lo, min(U[(0, 0)]["q0"] - 1, pre0[2] - 3 + int(o.ba0)), q="q9w", after=[l[-1], BQ[15]]))
        for t, b in ([(t, b) for t in (0, 1) for b in range(4)] if hf == 0 else [(t, b) for b in range(4) for t in (2, 3)]):
            pack_q(V(32 * b + 8 * t, 8), QF(b, t), f"Q{b}", pre0[b] - 1 + t)
    for b in range(5):
        n = NM(b); pm = f"pm{b}"; nm = f"nm{b}"; hi = fr_(n, nm) - 1
        ops = [valu("v_accvgpr_read_b32", vT1, SAV(b)),
               valu("v_max3_f32", n[0], (n[0], pm), (n[1], pm), vT1), valu("v_max3_f32", n[0], n[0], (n[2], pm), (n[3], pm)),
               valu("v_mov_b32", n[1], n[0]), swap("v_permlane32_swap_b32", n[0], n[1]), valu("v_max_f32", n[0], n[0], n[1]),
               valu("v_mov_b32", n[1], n[0]), swap("v_permlane16_swap_b32", n[0], n[1]),
               I(f"v_min_f32_e64 {n[0]}, -{n[0]}, -{n[1]}", "valu", rd=[n[0], n[1]], wr=[(n[0], nm)]),
               valu("v_mov_b32", (n[1], nm), (n[0], nm)), valu("v_mov_b64", (n.sub(2, 2), nm), (n.sub(0, 2), nm))]
        for x in ops: F(x, min(preL[b] + 3, hi), hi, q="nm")
    def rdK(e, y, lo, after, hi=10**9):
        out = []
        for h in range(2):
            for t in range(4):
                r = KF(y, h, t); l_ = max(lo, lr(r, f"k{e-1}")) if e else lo
                x = dsr(B128, (r, f"k{e}"), Kr(y, t & 1), (e & 1) * 2 * US + 512 * h + 128 * (t >> 1))
                out.append(F(x, l_, max(l_, min(fr_(r, f"k{e}") - 6, hi)), q=f"ldsK{y}", after=after))
        return out
    def rdV(e, y, lo, after, hi):
        out = []
        for d in range(8):
            r = VF(e, y, d); l_ = max(lo, lr(r, f"v{e-1}")) if e and y else lo
            for h in range(2):
                x = dsr(TR, (r.sub(2 * h, 2), f"v{e}"), Vr(y, d >> 2), (e & 1) * 2 * US + 512 * h + 32 * (d & 3))
                out.append(F(x, l_, max(l_, min(fr_(r, f"v{e}") - 6, hi)), q=f"ldsV{y}", after=after))
        return out
    BB = {}
    vset = lambda src: [valu("v_accvgpr_read_b32", vKV(0), src)] + [valu("v_subrev_u32", vKV(pp), 32 * pp, vKV(0)) for pp in (1, 2, 3)]
    for e in range(8):
        if e == 0:
            g = k0[16] - int(o.bk0)
            bk = F(barrier(vm=["k0"], lgkm=False), g, g, after=[BQ[15]])
            gv = pre0[2] - 1 + int(o.ba0)
            bv = F(barrier(vm=["v0"]), gv, gv, after=q9w + [bk])
            for t in range(4):
                F(dsr(B128, (QF(4, t), "Q4"), qB8 if t & 1 else qA8, 1024 * (t >> 1)), gv, pre0[4] - 6, q="ldsQ9", after=[bv])
        else:
            g = U[(e - 1, 8)]["q0"] - 1 - int(o.bao)
            sep = e == 7 or e >= int(o.sepv)
            bk = F(barrier(vm=[f"k{e}"] + ([] if sep else [f"v{e}"]), lgkm=False), g, g, after=[BB[e - 1]])
            bv, gv = bk, g
            if sep and e < 7:
                gv = st0[e] + int(o.bvo)
                bv = F(barrier(vm=[f"v{e}"], lgkm=False), gv, gv, after=[bk])
            if e == 7:
                gv = G[(7, 4)]["p0"] - 1 - int(o.bv7)
                gx = st0[7] + int(o.bxo)
                bx = F(barrier(vm=["wo0a"]), gx, gx, after=[bk])
                bv = F(barrier(vm=["v7"]), gv, gv, after=[bx])
                stamp(gv, [bv])
        gb = G[(e, 0)]["p0"] + int(o.bbo) if e < 7 else G[(7, 4)]["p0"] + int(o.bb7)
        if e == 0 and int(o.bb0): gb = gv + int(o.bb0)
        rk = rdK(e, 0, g, [bk]) + rdK(e, 1, g, [bk], gx - 4 if e == 7 else 10**9)
        rv = rdV(e, 0, gv, [bv], gb - 5) + rdV(e, 1, gv, [bv], gb - 5)
        bb = BB[e] = F(barrier(vm=["wo1a"] if e == 7 else []), gb, gb, after=rk + rv)
        if e in (0, 3, 6): stamp(gb, [bb])
        ops = []
        if e < 6:
            for part in range(4 if e < 5 else 2): ops += g_kv(e + 2, part, o)
        if e == int(o.ate):
            ops += [valu("v_lshl_add_u32", vT0, vL16, 4, sAt), valu("v_mov_b32", vT1, 1),
                    vstore(vT1, vT0, Sdbg, 0, 0, "", tag="at", op="buffer_atomic_add")]
        if e == int(o.cte) and int(o.cpf): ops += code_touch(V(254, 2), vTs, vL16, shift=3)
        if ops: spread(ops, gb, float({0: o.astep0, 4: o.astep4, 5: o.astep5}.get(e, o.astep)), after=[bb])
    bx.after += rk
    wts = [1.0] * 8; win = int(o.win)
    def allowed(limit):
        m = 0; c = 0.0
        while m < len(wts) and c + wts[-1 - m] <= limit + 1e-9: c += wts[-1 - m]; m += 1
        return m
    def capped(ops, w):
        for x in ops:
            if x.kind == "dma": x.text = f"s_waitcnt vmcnt({allowed(win - w)})\n" + x.text; wts.append(w)
        return ops
    es = float(o.estep)
    spread(capped(vset(aWo0) + g_wo(0, 0) + g_wo(0, 1), float(o.wow)), BB[6].lo, es * float(o.wpace), after=[BB[6]])
    spread(capped(vset(aKv0) + g_kv(7, 2, o, False) + g_kv(7, 3, o, False), 1.0), BB[6].lo, es, after=[BB[5]])
    early = vset(aWo0) + g_wo(1, 0)
    for n in range(win - 1, 0, -1):
        g_ = min(int(nextvm[0]), gv - 3)
        F(raw(f"s_waitcnt vmcnt({allowed(n)})"), g_, g_ + 2, q="dma")
        idx = [k for k, x in enumerate(early) if x.kind == "dma"][:2]
        if idx:
            spread(early[:idx[-1] + 1], max(g_ + 1, gx), (es - 2) / 2, after=[bx]); early = early[idx[-1] + 1:]; wts += [0.0] * len(idx)
        nextvm[0] = max(nextvm[0], g_ + es)
    assert not early
    nextvm[0] = 0
    spread(g_wo(1, 1), gv + int(o.w1bo), float(o.ostep0), after=[bv])
    spread(g_wo(2, 0), BB[7].lo + 1, float(o.ostep1), after=[BB[7]])
    vA8, vLMw, vW, vOw, vB8, vLMr = Kr(0, 0), Kr(0, 1), (Kr(1, 0), Kr(1, 1)), (Vr(0, 0), Vr(0, 1)), Vr(1, 0), Vr(1, 1)
    vBr, vFl, vSt, vO9 = (PB(2)[0], PB(2)[1]), vLMw, vLMr, vB8
    g = U[(7, 8)]["q0"]; p7 = G[(7, 4)]["p0"]
    adr = [valu("v_bfe_u32", vLMw, vL16, 1, 7), valu("v_add_u32", vLMw, sA8, vLMw), dsw("ds_write_b32", vLMw, (NM(4)[0], "nm4"), 4096 + 4),
           valu("v_accvgpr_read_b32", vW[0], aWpat), valu("v_add_u32", vW[1], 4 * US, vW[0]), valu("v_add_u32", vA8, sA8, vL16)]
    adr = [F(x, gx, g + 4, q="adr", after=rk) for x in adr]
    BB[7].after.append(F(dsw("ds_write_b32", vLMw, (LS(4)[0], "o7"), 4096), p7 + 4, BB[7].lo - 2, q="adr"))
    adr2 = [valu("v_bfe_u32", vLMr, vL16, 1, 7), valu("v_add_u32", vLMr, sB8, vLMr),
            valu("v_add_u32", vOw[0], sOw0, vL16), valu("v_add_u32", vOw[1], sOw1, vL16), valu("v_add_u32", vB8, sB8, vL16)]
    adr2 = [F(x, p7, BB[7].lo + 3, q="adr", after=rv) for x in adr2]
    lastP = {}
    for un in units:
        n, s_, p_ = un["n"], un["S"], un["P"]
        nx = units[n + 2]["q0"] if n + 2 < len(units) else 10**9
        pfree = -1; aft = []
        if str(p_) in lastP: pfree = lastP[str(p_)]["g"]["pL"]
        for b in range(5):
            if str(p_) == str(NM(b)): pfree = lr(p_, f"nm{b}") + 1
        if str(p_) == str(NM(4)): aft = [adr[2]]
        if n < 2: aft = q9w
        lastP[str(p_)] = un
        ex = []
        for j in range(8):
            hi = min(nx - 1 + 4 * (j >> 2), un["g"]["p0"] - 1); lo = min(un["hl"][j >> 2] + 3, hi)
            ex.append(F(trans("v_exp_f32", (s_[j], f"e{n}"), (s_[j], f"s{n}")), lo, max(lo, hi - 1), q="exp"))
        for m in range(4):
            hi = min(nx - 1 + 4 * (m >> 1), un["g"]["p0"] - 1)
            F(valu("v_cvt_pk_bf16_f32", (p_[m], f"p{n}"), (s_[2 * m], f"e{n}"), (s_[2 * m + 1], f"e{n}")),
              max(ex[2 * m + 1].lo, pfree), hi, q="cvt", after=[ex[2 * m + 1]] + aft)
    def rdAo(p, kss=range(8)):
        return [dsr(TR, (Ao(p, ks, u).sub(2 * h, 2), f"wo{p}"), vW[WOU[p][ks >> 1] >> 2],
                    (WOU[p][ks >> 1] & 3) * US + (ks & 1) * 2 * GRP + 512 * h + 32 * u)
                for u in range(2) for ks in kss for h in range(2)]
    fu = [OU.index((0, qb)) for qb in (0, 1, 2, 3, 8)]
    gB = [attn_end - int(o.b1o)] + [ou0[fu[k]] - int(o.bko1 if k == 1 and mg else o.bko) for k in range(1, 5)]
    pub = [[] for _ in range(5)]
    lm = NM(3)
    mr = [dsr("ds_read_b64", lm.sub(0, 2), vLMw, 4096), dsr("ds_read_b64", lm.sub(2, 2), vLMr, 4096)]
    mr = [F(x, BB[7].lo, BB[7].lo + 10, q="lm", after=[BB[7], adr2[1]]) for x in mr]
    ops = [valu("v_add_u32", vBr[1], 6 * US, vL16),
           salu("s_lshl_b32", sT0, sW, 2), valu("v_add_u32", vFl, sT0, vBr[1]), salu("s_lshl_b32", sT0, sW, 10), valu("v_add_u32", vSt, sT0, vL16),
           valu("v_sub_f32", lm[1], lm[1], lm[3]), trans("v_exp_f32", lm[1], lm[1]), valu("v_accvgpr_read_b32", vTs, (LS(0)[0], "o7")),
           valu("v_fma_f32", lm[0], lm[2], lm[1], lm[0]), trans("v_rcp_f32", lm[2], lm[0]),
           valu("v_add_f32", vTs, vTs, lm[0]), valu("v_mul_f32", lm[1], lm[1], lm[2])]
    for b in (1, 2, 3): ops += [valu("v_accvgpr_read_b32", lm[3], (LS(b)[0], "o7")), valu("v_add_f32", vTs, vTs, lm[3])]
    ops.append(dsw("ds_write_b32", vFl, vTs, FLAG - 6 * US))
    lsum = [F(x, max(BB[7].lo + 4, G[(7, 4)]["pL"], odone[str(LS(3))] + 4), gB[0] - 4, q="lm") for x in ops]
    pub[0] += lsum
    rp = int(o.rawp)
    raww = [F(x, gB[rp - 1] + 12 if rp else G[(7, 4)]["pL"] + 4, gB[rp] - 4, q="raw" if rp else "ow", after=[adr[-1]])
            for d in range(4) for x in w128(o, vA8, (O9(4 + d), "o7"), 1024 * d)]
    pub[rp] += raww
    def norm_block(b):
        a32 = V(32 * b, 32); hi = gB[b] - 4
        ops = [valu("v_accvgpr_read_b32", vT1, (LS(b)[0], "o7")), trans("v_rcp_f32", vT0, vT1)]
        for x in ops: F(x, odone[str(LS(b))] + 4, hi, q="ep")
        for k in range(4):
            ops = [valu("v_mul_f32", (a32[8 * k + m], "n"), (a32[8 * k + m], "o7"), vT0) for m in range(8)]
            ops += [valu("v_cvt_pk_bf16_f32", (a32[8 * k + m], "of"), (a32[8 * k + 2 * m], "n"), (a32[8 * k + 2 * m + 1], "n")) for m in range(4)]
            lo = odone[str(ACC(b, 2 * k + 1))] + 3; hk = max(lo, hi - 4 * (3 - k))
            for x in ops: x = F(x, lo, hk, q="ep")
            for y in w128(o, vOw[k >> 1], (a32.sub(8 * k, 4), "of"), (b & 1) * US + (k & 1) * 1024):
                pub[b].append(F(y, max(lo, gB[b - 1]) if b >= 2 else lo, hk, q="ow", after=[x, adr2[-1], BP[b - 1] if b >= 2 else BB[7]]))
    BP = [barrier(vm=v_) for v_ in (["wo1b"], [], [], [], ["wo2a", "wo2b"])]
    bv.after += [F(x, max(gx, G[(6, 4)]["pL"]), gv - 5, q="ldsK0", after=[adr[-1], bx]) for x in rdAo(0, range(4))]
    BB[7].after += [F(x, gv, BB[7].lo - 4, q="ldsK0", after=[bv]) for x in rdAo(0, range(4, 8))]
    pub[0] += [F(x, BB[7].lo, gB[0] - 4, q="ldsK0", after=[BB[7]]) for x in rdAo(1, range(4))]
    for b in range(4): norm_block(b)
    F(BP[0], gB[0], gB[0], after=pub[0])
    stamp(attn_end)
    rdA0 = []
    for x in rdAo(1, range(4, 8)):
        r = next(iter(x.wr)); lo = max(gB[0], lastrd[(r, "v7")])
        rdA0.append(F(x, lo, max(lo, min(firstrd[(r, "wo1")] - int(o.lead), gB[1] - 3)), q="ldsK0", after=[BP[0]]))
    fl = NM(0)
    fr = F(dsr(B128, fl, vBr[1], FLAG - 6 * US), gB[0], gB[0] + 1, q="ldsB", after=[BP[0]])
    chk = [valu("v_add_f32", fl[0], fl[0], fl[1]), valu("v_add_f32", fl[2], fl[2], fl[3]), valu("v_add_f32", fl[0], fl[0], fl[2]),
           raw(f"v_cmp_nge_f32 vcc, {hex(THR)}, {fl[0]}", rd=[fl[0]], kind="valu"),
           raw(f"s_cmp_eq_u32 s54, {77 if o.abl else 0}\ns_cselect_b64 vcc, vcc, 0\ns_cbranch_vccnz Lslow", cost=2, kind="br")]
    chk = [F(x, gB[0] + 7, gB[0] + 14, q="fl", after=[fr]) for x in chk]
    rcv = [V(168 + 4 * d, 4) for d in range(4)]
    mr = [F(dsr(B128, (rcv[d], "rcv"), vB8, 1024 * d), gB[2 + mg], gB[3] + (20 if mg else -6), q="lm", after=[chk[-1], BP[rp]]) for d in range(4)]
    for x in (salu("s_lshl_b32", sT0, sW, 11), valu("v_add_u32", vO9, sT0, vBr[1])): a9 = F(x, gB[2], gB[4] - 12, q="fl", after=mr)
    for k in range(2):
        ops = []
        for d in (2 * k, 2 * k + 1):
            for m in range(4):
                t = (vT1, lm[3])[m & 1]
                ops += [valu("v_accvgpr_read_b32", t, (O9(d)[m], "o7")), valu("v_mul_f32", (rcv[d][m], "rs"), (rcv[d][m], "rcv"), lm[1]),
                        valu("v_fma_f32", (rcv[d][m], "n"), t, lm[2], (rcv[d][m], "rs"))]
        for m in range(4):
            src = rcv[2 * k + (m >> 1)]
            ops.append(valu("v_cvt_pk_bf16_f32", (rcv[2 * k][m], "of"), (src[2 * (m & 1)], "n"), (src[2 * (m & 1) + 1], "n")))
        for x in ops: x = F(x, gB[2], gB[4] - 8 + 4 * k, q="ep", after=mr + [lsum[-1]])
        for y in w128(o, vO9, (rcv[2 * k], "of"), 3 * US + 1024 * k): pub[4].append(F(y, gB[2], gB[4] - 8 + 4 * k, q="ow", after=[x, a9]))
    def rdBo(qb, ks):
        if qb < 8: return dsr(B128, (Bo(qb, ks), f"of{qb}"), vBr[1], (qb & 1) * US + (qb >> 2) * 8192 + 1024 * ks)
        return dsr(B128, (Bo(qb, ks), f"of{qb}"), vBr[1], 3 * US + 1024 * ks)
    rdp = rdA0; prevb = BP[0]
    for k in range(5):
        if k: prevb = F(BP[k], gB[k], gB[k], after=pub[k] + [prevb] + rdp); rdp = []
        for n in (fu[k], fu[k] + 1)[:2 if k < 4 else 1]:
            qb = OU[n][1]
            for ks in range(8):
                late = qb >= 5 or (qb == 4 and ks >= 6)
                hi = max(gB[k] + ks // 2, ou0[n] - int(o.lead) + ks)
                if k < 4: hi = min(hi, gB[k + 1] - 3)
                rdp.append(F(rdBo(qb, ks), gB[k], hi, q="ldsB", after=[BP[k]] + ([chk[-1]] if late else [])))
    gd = {p: ou0[9 * p] + int(o.bdo) for p in range(4)}
    w1b = spread(g_wo(2, 1), gB[0] + 1, float(o.ostep2), after=[BP[0]])
    spread(g_wo(3, 0), gB[1] + 1, float(o.ostep3), after=[BP[1]])
    spread(g_wo(3, 1), gB[4] + 1, float(o.ostep4), after=[BP[4]])
    for n, x in enumerate(rdAo(2)):
        r = next(iter(x.wr)); F(x, lastrd[(r, "wo0")], ou0[18] - 8 + n // 2, q="ldsK0", after=[BP[4]])
    bd = F(barrier(vm=["wo3a", "wo3b"], lgkm=False), gd[2], gd[2], after=[BP[4]])
    for n, x in enumerate(rdAo(3)): F(x, gd[2], ou0[27] - 8 + n // 2, q="ldsK0", after=[bd])
    ts = int(o.ts); assert ts >= 2
    for n in range(36):
        s_, p_ = SB(n & 1), PB(n & 1)
        for m in range(4):
            lo = min(ouh[(n, m >> 1)] + (8 if n > 8 + 6 * mg else 4), last)
            x = F(valu("v_cvt_pk_bf16_f32", (p_[m], f"rp{n}"), (s_[2 * m], f"r{n}"), (s_[2 * m + 1], f"r{n}")), lo, min(lo + (16 if n == 1 else 6), last), q="st")
        pp_, qb = OU[n]
        ops = ([salu("s_mul_i32", sT3, sP(pp_), 144)] if n == 0 or OU[n - 1][0] != pp_ else []) + [salu("s_add_u32", sSt, sT3, 4096 * qb),
               vstore((p_, f"rp{n}"), vSt3 if pp_ == ts else vSt, Sws, sSt, 0, o.stflag, tag=f"st{pp_}")]
        if n == 9 * ts:
            pre_ = [salu("s_xor_b32", sG, sJ, sW), raw(f"s_and_b32 {sG}, {sG}, 3\ns_cselect_b32 {sG}, 0, 0x10000000", wr=[sG], cost=2, kind="br"),
                    valu("v_add_u32", vSt3, sG, vSt), salu("s_lshr_b32", sG, sG, 12), salu("s_xor_b32", sG, sG, 0x10000), salu("s_add_u32", sG, sG, 8 * US),
                    valu("v_add_u32", vOwn, sG, vL16), valu("v_add_u32", vOwr, 8 * US, vSt)]
            for y in pre_: y = F(y, ou0[n - 2], ou0[n], q="own")
            own_rdy = y
        sw = int(str(o.swin).split(",")[n // 9 % len(str(o.swin).split(","))])
        if sw and n >= sw:
            ops.insert(len(ops) - 1, waitvm(f"su{n - sw}"))
        ops[-1].utag = f"su{n}"
        for x in ops: F(x, lo, min(lo + (20 if n < 2 else 8), last), q="st", after=[chk[-1]] + (w1b[-1:] if n == 0 and int(o.hold) else []) + ([own_rdy] if n == 9 * ts else []))
        if pp_ == ts: F(dsw("ds_write_b128", vOwn, (p_, f"rp{n}"), 1024 * qb), min(lo + 2, last), min(lo + 10, last), q="st", after=[BP[4]])
    t = V(168, 4)
    ops = [salu("s_lshl_b32", sT1, sB, 4), valu("v_mov_b32", vRdA, sT1),
           vload(vRdy, vRdA, Sdbg, 0, 0, "sc1", tag="rdy", op="buffer_load_dword"),
           salu("s_lshl4_add_u32", sT0, sW, sJ), salu("s_lshl_b32", sT0, sT0, 7),
           valu("v_lshrrev_b32", vF, 9, vL16), valu("v_lshl_add_u32", vF, vF, 15, sT0), valu("v_lshrrev_b32", vOne, 2, vL16),
           valu("v_add_u32", vF, vF, vOne), valu("v_mov_b32", vOne, 1)]
    gf = {p: ou0[max(n for n in range(36) if OU[n][0] == p) + 1] + int(o.flo) for p in range(3)}
    for x in ops: F(x, gB[4], gB[4] + 40, q="fl")
    ops = [raw(f"v_cmp_gt_u32 vcc, 16, {vRdy}", rd=[vRdy], kind="valu"), raw("s_cbranch_vccnz Lrdy_spin\nLrdy_back:", kind="br")]
    for p in range(3):
        ops = [waitvm(f"st{p}")] + ops + [salu("s_lshl_b32", sAt, sP(p), 5), vstore(vOne, vF, Smb, sAt, 0, "sc1", tag="fl", op="buffer_store_dword")]
        for x in ops: flag0 = F(x, gf[p], gf[p] + 2, q="fl")
        ops = []
        if p == 0:
            su = [
               salu("s_lshr_b32", sCc, sP(int(o.ts)), 6), salu("s_and_b32", sT0, sJ, 3), salu("s_add_u32", sCc, sCc, sT0),
               valu("v_bfe_u32", vPo, vL16, 4, 2), valu("v_lshrrev_b32", t[0], 8, vL16),
               salu("s_lshl_b32", sT0, sCc, 11), valu("v_lshl_add_u32", vPo, vPo, 7, sT0),
               salu("s_add_u32", sGo, sJ, 4 * int(o.ts)), salu("s_and_b32", sGo, sGo, 12), salu("s_lshl_b32", sGo, sGo, 7),
               salu("s_lshr_b32", sT0, sCc, 2), salu("s_mul_i32", sT0, sT0, 9), salu("s_add_u32", sT0, sT0, sW),
               salu("s_and_b32", sT1, sJ, 3), salu("s_lshl2_add_u32", sT0, sT0, sT1), salu("s_lshl_b32", sT0, sT0, 10),
               valu("v_add_u32", vR[0], sT0, vL16), valu("v_add_u32", vR[1], 16384, vR[0]),
               salu("s_lshl_b32", sT1, sW, 28), salu("s_add_u32", sT0, sT1, 32768), valu("v_add_u32", vR[2], sT0, vR[0]),
               valu("v_bfe_u32", t[1], vL16, 4, 4), valu("v_lshlrev_b32", vO[0], 10, t[1]), valu("v_lshl_add_u32", vO[0], t[0], 4, vO[0]),
               salu("s_lshl_b32", sT0, sW, 14), salu("s_lshl_b32", sT2, sCc, 6), salu("s_add_u32", sT0, sT0, sT2),
               valu("v_add_u32", vO[0], sT0, vO[0]), valu("v_add_u32", vO[1], 65536, vO[0]),
               salu("s_add_u32", sT0, sT1, 131072), valu("v_add_u32", vO[2], sT0, vO[0]),
               valu("v_and_b32", t[2], 1, t[1]), valu("v_lshlrev_b32", t[2], 4, t[2]), valu("v_mov_b32", t[3], "0x3f80"),
               valu("v_lshlrev_b32", t[2], t[2], t[3]),
               valu("v_bfe_u32", t[3], t[1], 2, 1), valu("v_xor_b32", t[3], t[3], t[0]),
               valu("v_and_b32", t[0], 1, t[3]), valu("v_lshlrev_b32", t[0], 3, t[0]),
               valu("v_lshrrev_b32", t[3], 1, t[3]), valu("v_lshl_add_u32", t[0], t[3], 2, t[0]),
               valu("v_lshrrev_b32", t[3], 3, t[1]), valu("v_lshl_add_u32", t[0], t[3], 1, t[0]),
               valu("v_bfe_u32", t[3], t[1], 1, 1), valu("v_add_u32", t[0], t[0], t[3]),
               valu("v_lshlrev_b32_e64", t[0], t[0], 1)]
            for m in range(8): su += [valu("v_bfe_i32", SEL[m], t[0], m, 1), valu("v_and_b32", SEL[m], SEL[m], t[2])]
            for x in su: F(x, ou0[18], gf[1 + mg] - 1, q="su" if mg else "fl", after=[flag0])
    if int(o.r0in):
        g = ou0[27] - int(o.pollo)
        p0 = F(vload(vRdy, vPo, Smb, sGo, 0, "sc1", tag="poll0", op="buffer_load_dword"), g, g + 2, q="r0", after=[su[-1]])
        g = ou0[27] + int(o.r0o)
        for x in (raw(f"v_cmp_eq_u32 vcc, 0, {vRdy}", rd=[vRdy], kind="valu"), raw("s_cbranch_vccnz Lp0_spin\nLp0_back:", kind="br")): F(x, g, g + 1, q="r0")
        ops = [salu("s_mul_i32", sOff, sGo, PART // 128), salu("s_sub_u32", sGo, sGo, 512), salu("s_and_b32", sGo, sGo, "0x600")]
        for i in range(4):
            if i: ops.append(salu("s_add_u32", sOff, sOff, PART))
            ops += [vload(A(12 * i + 4 * f, 4), vR[f], Sred, sOff, 0, o.rflag, tag="r0") for f in range(3)]
        nextvm[0] = 0
        r0 = spread(ops, g + 2, float(o.r0step), q="r0")
    g = last - int(o.pollo)
    F(vload(vRdy, vPo, Smb, sGo, 0, "sc1", tag="poll", op="buffer_load_dword"), g, g + 2, q="fl", after=[r0[2]] if int(o.r0in) else [su[-1]])
    if int(o.tt):
        for x in code_touch(V(254, 2), vTs, vL16, shift=int(o.tt), tid=True): F(x, g - 30, g - 4, q="su")
    if int(o.adw):
        for x in (salu("s_and_b32", sG, sJ, 12), salu("s_lshl_b32", sG, sG, 7), vload(vRdA, vPo, Smb, sG, 0, "sc1", tag="poll", op="buffer_load_dword")):
            F(x, g, g + 6, q="fl", after=[own_rdy])
    F(waitvm("poll"), last, last, q="st")
    seq = sc.run()
    if "a" in o.abl: seq = [x for x in seq if not (x.gap > 100 and x.kind in ("dma", "vml"))]
    if "s" in o.abl: seq = [x for x in seq if not (x.kind == "vms" and x.tag.startswith("st"))]
    if "w" in o.abl: seq = [x for x in seq if not (x.kind == "dma" and x.tag[:3] == "wo0")]
    if "d" in o.abl: seq = [x for x in seq if not (x.kind == "dsw" and x.gap > 1700)]
    if "o" in o.abl: seq = [x for x in seq if not (x.kind == "dma" and x.tag[:3] in ("wo1", "wo2", "wo3"))]
    seq = P + seq
    if not o.abl: check_tags(seq)
    seq, nops = pad_hazards(seq)
    sys.stderr.write(f"mfma {len(sc.bb)} instrs {len(seq)} over {sc.stats['over']} idle {sc.stats['idle']} waits {sc.stats['waits']} nop-states {nops}\n")
    return seq, nstamp[0]

def reduce_tail(o, a, nst):
    acc = lambda f, u: V(8 * f + 4 * u, 4)
    buf = lambda t, i, f: A(48 * t + 12 * i + 4 * f, 4)
    poll = f"buffer_load_dword {vRdy}, {vPo}, {Smb}, {sGo} offen sc1"
    a(f"s_lshl_b32 s61, {sP(3)}, 5"); a("s_mov_b32 s63, 0")
    if int(o.stamps): a(f"s_memrealtime s[{64+2*nst}:{65+2*nst}]")
    ts = int(o.ts); rw = int(o.rwin); pa = int(o.polli); started = set()
    nl = lambda t: 9 if t == ts else 12
    q = [("st",)]
    def add(fr):
        for u in range(2):
            a(f"v_mfma_f32_16x16x32_bf16 {acc(fr[2],u)}, {SEL.sub(4*u,4)}, {buf(*fr)}, {acc(fr[2],u) if fr[2] in started else 0}")
        started.add(fr[2])
    def wait(n):
        if len(q) <= n: return []
        a(f"s_waitcnt vmcnt({n})"); done = q[:len(q) - n]; del q[:len(q) - n]
        return done
    def retire(done):
        for x in done:
            if x[0] == "st":
                a(f"buffer_store_dword {vOne}, {vF}, {Smb}, s61 offen sc1"); q.append(("fl",))
        for x in done:
            if x[0] == "ld": add(x[1])
    for t in range(4):
        a(f"s_mul_i32 s45, {sGo}, {PART // 128}")
        if t == ts: a("s_mov_b32 s62, s45")
        late = []
        if ("po",) in q: late = wait(len(q) - 1 - q.index(("po",)))
        a(f"Lpoll{t}:"); a(f"v_cmp_eq_u32 vcc, 0, {vRdy}"); a(f"s_cbranch_vccz Lgo{t}")
        a(poll); a("s_add_u32 s63, s63, 1"); a("s_waitcnt vmcnt(0)"); a("s_cmp_lt_u32 s63, 0x40000"); a(f"s_cbranch_scc1 Lpoll{t}")
        a(f"Lgo{t}:")
        if int(o.rst): a(f"s_memrealtime s[{66+2*nst+2*t}:{67+2*nst+2*t}]")
        a(f"s_sub_u32 {sGo}, {sGo}, 512"); a(f"s_and_b32 {sGo}, {sGo}, 0x600")
        for i in range(nl(t) // 3):
            if t == ts: a(f"s_add_u32 s52, s51, {i+1}"); a("s_and_b32 s52, s52, 3"); a(f"s_mul_i32 s52, s52, {PART}"); a("s_add_u32 s45, s62, s52")
            if i == pa and t < 3: a(poll); q.append(("po",))
            for f in range(3):
                done = late + wait(rw - 1); late = []
                a(f"buffer_load_dwordx4 {buf(t,i,f)}, {vR[f]}, {Sred}, s45 offen {o.rflag}"); q.append(("ld", (t, i, f)))
                retire(done)
            if i < 3 and t != ts: a(f"s_add_u32 s45, s45, {PART}")
            if (t, i) == (1, 1):
                a("s_waitcnt lgkmcnt(0)"); a("s_barrier")
                for f in range(3): a(f"ds_read_b128 {buf(ts,3,f)}, {vOwr} offset:{4096*f}")
            if (t, i) == (1, 3):
                a("s_waitcnt lgkmcnt(0)")
                for f in range(3): add((ts, 3, f))
        assert t > 0 or ("st",) not in q
    while q: retire(wait(len(q) - 1))
    a("s_nop 3")
    for f in range(3):
        if f: a("s_nop 1")
        for m in range(4): a(f"v_cvt_pk_bf16_f32 v{32+4*f+m}, v{8*f+2*m}, v{8*f+2*m+1}")
        a(f"buffer_store_dwordx4 v[{32+4*f}:{35+4*f}], {vO[f]}, {Sout}, 0 offen {o.outflag}".rstrip())

def tail_and_slow(o, nst):
    T = []; a = T.append
    reduce_tail(o, a, nst); nst += 1 + 4 * int(o.rst)
    if int(o.stamps):
        a(f"s_memrealtime s[{64+2*nst}:{65+2*nst}]"); a("s_waitcnt vmcnt(0)")
        a(f"s_memrealtime s[{66+2*nst}:{67+2*nst}]"); a("s_waitcnt lgkmcnt(0)")
        a("s_cmp_lg_u32 s3, 0"); a("s_cbranch_scc1 Lend")
        if o.enc:
            ea, eb = [int(z) for z in o.enc.split(",")]
            a("s_cmp_lg_u32 s2, 100"); a("s_cbranch_scc1 Lnoenc")
            a(f"s_sub_u32 s52, s{64+2*eb}, s{64+2*ea}"); a("s_mul_i32 s52, s52, 10"); a("s_min_u32 s52, s52, 200000"); a("s_add_u32 s52, s52, 500")
            a("Lspin:"); a("s_memrealtime s[46:47]"); a("s_waitcnt lgkmcnt(0)"); a(f"s_sub_u32 s46, s46, s{66+2*nst}")
            a("s_cmp_lt_u32 s46, s52"); a("s_cbranch_scc1 Lspin"); a("Lnoenc:")
        a("s_load_dwordx2 s[40:41], s[0:1], 56"); a("s_mov_b32 s42, 0x10000000"); a("s_mov_b32 s43, 0x20000"); a("s_waitcnt lgkmcnt(0)")
        a(f"s_lshl_b32 s52, s2, 6"); a(f"s_add_u32 s52, s52, {STAMP_OFF}"); a("v_mov_b32 v1, s52")
        a("s_mov_b64 exec, 1")
        if int(o.rst): a("s_mul_i32 s63, s63, 100"); a("s_add_u32 s66, s64, s63")
        assert nst + 2 <= 16
        for n in range(nst + 2):
            a(f"v_mov_b32 v2, s{64+2*n}"); a(f"buffer_store_dword v2, v1, s[40:43], 0 offen offset:{4*n}")
    a("Lend:"); a("s_endpgm")
    if int(o.r0in):
        a("Lp0_spin:"); a("s_mov_b32 s63, 0"); a("Lp0_loop:")
        a(f"buffer_load_dword {vRdy}, {vPo}, {Smb}, {sGo} offen sc1"); a("s_add_u32 s63, s63, 1"); a("s_waitcnt vmcnt(0)")
        a(f"v_cmp_eq_u32 vcc, 0, {vRdy}"); a("s_cmp_lt_u32 s63, 0x40000"); a("s_cselect_b64 vcc, vcc, 0")
        a("s_cbranch_vccnz Lp0_loop"); a("s_branch Lp0_back")
    a("Lrdy_spin:"); a("s_mov_b32 s63, 0"); a("Lrdy_loop:")
    a(f"buffer_load_dword {vRdy}, {vRdA}, {Sdbg}, 0 offen sc1"); a("s_add_u32 s63, s63, 1"); a("s_waitcnt vmcnt(0)")
    a(f"v_cmp_gt_u32 vcc, 16, {vRdy}"); a("s_cmp_lt_u32 s63, 0x40000"); a("s_cselect_b64 vcc, vcc, 0")
    a("s_cbranch_vccnz Lrdy_loop"); a("s_branch Lrdy_back")
    a("Lslow:"); a("s_waitcnt vmcnt(0) lgkmcnt(0)"); a("s_nop 7"); a("s_barrier")
    a("v_mbcnt_lo_u32_b32 v0, -1, 0"); a("v_mbcnt_hi_u32_b32 v0, -1, v0")
    a("v_and_b32 v1, 15, v0"); a("v_lshlrev_b32 v1, 8, v1"); a("v_lshrrev_b32 v2, 4, v0"); a("v_lshl_add_u32 v1, v2, 4, v1")
    a("s_lshl_b32 s52, s48, 17"); a("s_add_u32 s52, s52, 128"); a("s_lshl_b32 s53, s49, 6"); a("s_add_u32 s62, s52, s53")
    a("v_add_u32 v2, s62, v1"); a("s_xor_b32 s53, s53, 64"); a("s_add_u32 s62, s52, s53"); a("v_add_u32 v3, s62, v1")
    for b in range(5): a(f"v_mov_b32 v{8+b}, 0xff800000")
    a("s_mov_b32 s45, 0"); a("Lslow_loop:")
    for t in range(4): a(f"buffer_load_dwordx4 v[{16+4*t}:{19+4*t}], v{2+(t&1)}, {Sk}, s45 offen offset:{128*(t>>1)}")
    a("s_waitcnt vmcnt(0)")
    for b in range(5):
        for t in range(4):
            a(f"v_mfma_f32_16x16x32_bf16 {NM(b)}, v[{16+4*t}:{19+4*t}], {QF(b,t)}, {0 if t == 0 else NM(b)}")
    a("s_nop 7"); a("s_nop 1")
    for b in range(5):
        n = NM(b); a(f"v_max3_f32 v{8+b}, v{8+b}, {n[0]}, {n[1]}"); a(f"v_max3_f32 v{8+b}, v{8+b}, {n[2]}, {n[3]}")
    a("s_add_u32 s45, s45, 4096"); a("s_cmp_lt_u32 s45, 131072"); a("s_cbranch_scc1 Lslow_loop")
    for b in range(5): a(f"v_accvgpr_write_b32 {SAV(b)}, v{8+b}")
    a("s_load_dwordx16 s[4:19], s[0:1], 0"); a("s_mov_b32 s54, 1"); a("s_branch Lrestart"); a("Lcode_end:")
    return T

KD = """.amdhsa_kernel {name}
  .amdhsa_next_free_vgpr {vg}
  .amdhsa_next_free_sgpr {sg}
  .amdhsa_accum_offset {acc}
  .amdhsa_group_segment_fixed_size 0
  .amdhsa_kernarg_size 64
  .amdhsa_user_sgpr_count 2
  .amdhsa_user_sgpr_kernarg_segment_ptr 1
  .amdhsa_system_sgpr_workgroup_id_x 1
  .amdhsa_float_denorm_mode_32 3
.end_amdhsa_kernel"""

def generate(o):
    hdr = [l.rstrip("\n") for l in open(f"cdna_kernels/{NAME}.s.ref") if l.startswith(";") and "@launch" not in l and "grid=" not in l and "Override" not in l]
    seq, nst = build_main(o)
    L = hdr + [f"; @launch grid=(256,1,1) block=(256,1,1) lds={LDSB}", '.amdgcn_target "amdgcn-amd-amdhsa--gfx950"', ".text",
               f".globl {NAME}_kernel", ".p2align 8", f".type {NAME}_kernel,@function", f"{NAME}_kernel:"]
    L += [i.text for i in seq] + tail_and_slow(o, nst)
    L += ['.section .rodata,"a"', ".p2align 6", KD.format(name=f"{NAME}_kernel", vg=512, sg=102, acc=256)]
    txt = "\n".join(L) + "\n"
    if int(o.clk): txt = txt.replace("s_memrealtime", "s_memtime")
    return txt

if __name__ == "__main__":
    o = Opt()
    for kv in sys.argv[2:]:
        k, v_ = kv.split("=", 1)
        assert hasattr(Opt, k), k
        setattr(o, k, v_)
    open(sys.argv[1], "w").write(generate(o))
```

```python
import sys, math, struct
from dsl import *

NAME = "standalone__mha_block_cached__near_ridge"
US, GRP, PS = 17024, 4224, 1056
X9 = 9 * US
FLAG = X9 + 8448
LDSB = 163840
PART = 147456
STAMP_OFF = 0x4000000
MBOFF = 256 * PART
def fbits(x): return struct.unpack("<I", struct.pack("<f", x))[0]
CSC = fbits(math.log2(math.e) / math.sqrt(128.0))
THR = fbits(2.0 ** 40)

Smb, Sred, Sout, Sdbg = S(4, 4), S(8, 4), S(12, 4), S(16, 4)
Sx, Swq, Sk, Sv, Swo, Sws = S(20, 4), S(24, 4), S(28, 4), S(32, 4), S(36, 4), S(40, 4)
sW, sGrp, sOff, sC, sGrP, sHH, sQH, sB, sJ = S(3), S(44), S(45), S(46), S(47), S(48), S(49), S(50), S(51)
sT0, sT1, sMode, sX9, sT3, sOw0, sOw1, sA8, sB8, sSt, sT2, sAt = [S(n) for n in range(52, 64)]
sRx, sRw = S(96), S(97)
sCc = S(55)
sRk = S(47)
sP = lambda p: S(98 + p)
ACC = lambda b, f: V(32 * b + 4 * f, 4)
QF = lambda b, t: (V(128 + 16 * b + 4 * t, 4) if b < 4 else A(180 + 4 * t, 4))
SB = lambda k: V(192 + 8 * k, 8)
PB = lambda k: V((208, 212, 248)[k], 4)
NM = lambda b: V(216 + 4 * b, 4)
Kr = lambda y, p: V(236 + 2 * y + p)
Vr = lambda y, hf: V(240 + 2 * y + hf)
vKV = lambda pp: V(244 + pp)
vL16, vTs, vT0, vT1 = V(252), V(253), V(254), V(255)
qWr = lambda win, p: V(216 + 2 * win + p)
qXr = lambda win: V(220 + win)
qX9r = V(222)
qWd = lambda pp: V(225 + pp)
qXd = lambda pp: V(229 + pp)
qX9d, qA8, qB8 = V(233), V(234), V(235)
KF = lambda y, h, t: A(32 * y + 16 * h + 4 * t, 4)
VF = lambda e, y, d: A((96 if y else (64, 200)[e & 1]) + 4 * d, 4)
O9 = lambda d: A(128 + 4 * d, 4)
LS = lambda b: A(160 + 4 * b, 4)
ONES = A(196, 4)
SAV = lambda b: A(248 + b)
aWpat, aWo0, aKv0 = A(253), A(254), A(255)
Aq = lambda fp, kk: A(96 + 8 * fp + 4 * kk, 4)
Bq = lambda I_, kk, b: A((128, 200)[I_ & 1] + 16 * kk + 4 * b, 4)
B9 = lambda I_, kk: A(232 + 8 * (I_ & 1) + 4 * kk, 4)
SEQ = [(I_, h) for I_ in range(6) for h in range(2)] + [(6, 0), (7, 0), (6, 1), (7, 1)]
WQU = {4: 1, 5: 4, 0: 5, 1: 3, 2: 6, 3: 8}
XU = {2: 0, 0: 2, 1: 7}
KVU = lambda slot: (2 * slot, 2 * slot + 1, 4 + 2 * slot, 5 + 2 * slot)
WOU = {0: (0, 1, 4, 5), 1: (2, 3, 0, 1), 2: (4, 5, 2, 3), 3: (0, 1, 6, 7)}
Ao = lambda p, ks, u: A(((64, 0), (32, 96))[p & 1][ks >> 2] + 16 * u + 4 * (ks & 3), 4)
QB = [0, 4, 1, 5, 2, 6, 3, 7, 8]
def Bo(qb, ks):
    if qb < 4: return V(32 * qb + 4 * ks, 4)
    if qb == 4: return A(232 + 4 * ks if ks < 6 else 192 + 4 * (ks - 6), 4)
    if qb == 6: return V(128 + 4 * ks, 4)
    return A({5: 200, 7: 160, 8: 128}[qb] + 4 * ks, 4)
TR, B128 = "ds_read_b64_tr_b16", "ds_read_b128"
sG, sGo = S(96), S(97)
vSt3, vOwn, vOwr = V(232), V(233), V(234)
vF, vOne, vRdy, vPo, vR, vRdA, vO, SEL = V(220), V(221), V(222), V(223), V(224, 3), V(227), V(228, 3), V(160, 8)

class Opt:
    stamps = 0; clk = 0; enc = None; xst = ""; qst = ""; abl = ""
    kvflag = "nt"; stflag = "sc1"; outflag = "sc1"
    qseq = ("x0,n0,w0,w1|p1,x1,w2,p2,w3,p5.3,x2,n1,w4,w5,x3,w6,t2,w7,x4,n2,w8,p4.2,w9,x5,w10,w11,x6,n3,w12,x7,w13,w14,w15,"
            "p2,s0,s1,s2,p3,s3,k0,p5,k1,p9,k2,k3")
    bal = '(12,21)'; winlo = 5; winhi = 7; hx = 'h'; asym = 0; lpf = 0; tflag = ''; rot = 2; rsh = 1; cpf = 2
    ashift = 0; win = 6; winfrom = 2; astep0 = 12.4; astep = 10.4; astep4 = 10.4; astep5 = 10.4; estep = 8.2; wow = 0.5; bxo = 10; w1bo = 4
    ouseq = '00,04,10,14,01,05,11,02,06,15,12,03,07,16,08,13,17,18'
    vmgap = 2; dswgap = 4; maxmem = 1; wiso = 1; hor = 40; lead = 8; w64 = 0
    sepv = 3; bvo = 14; bv7 = 0; bk0 = 20; ba0 = -22; bb0 = 30; bao = 0; bbo = 20; bb7 = 34; ate = 4; merge = 1; ts = 3; wsp = 0; bno = 14; bbo1 = 20; rst = 0; wpace = 0.5; thin = 1; call = 1; cte = -1; tt = 0; win0 = ''; rox = ''; kvm = 1; all0 = 0; cpl = 0; rawp = 0; winp = ''; adw = 0; fb = 0; bko1 = 11; byo = 12; hold = 0; lflag = 'sc1'; l3flag = 'sc1'; rflag = 'sc1'; r0in = 0; r0o = 12; r0step = 7; swin = 0; rwin = 7; polli = 1; b1o = 14; bko = 11; bdo = 100; flo = 104; pollo = 36; ostep0 = 3.5; ostep1 = 3.8; ostep2 = 4; ostep3 = 16; ostep4 = 12
    def __getattr__(s, k): raise AttributeError(k)

def setoff(soff):
    if isinstance(soff, tuple):
        r, add, mask = soff
        if mask == "x": return [salu("s_xor_b32", sOff, r, add)]
        return [salu("s_add_u32", sOff, r, add)] + ([salu("s_and_b32", sOff, sOff, mask)] if mask else [])
    return [salu("s_mov_b32", sOff, soff)]
def group(unit_off, base, voff, srd, soff, flags, tag):
    return [salu("s_add_u32", "m0", base, unit_off)] + setoff(soff) + [dma(voff(pp), srd, sOff, PS * pp, flags, tag) for pp in range(4)]
def g_wq(j): return group(WQU[j % 6] * US, sGrp, qWd, Swq, (sRw, SEQ[j][0] * 524288 + SEQ[j][1] * 128, 0x3fffff), "", f"wq{j}")
def g_x(I_): return group(XU[I_ % 3] * US, sGrp, qXd, Sx, (sRx, I_ * 128, 1023), "", f"x{I_}")
def g_x9(n): return [salu("s_add_u32", "m0", sX9, X9 + (n & 1) * GRP)] + setoff((sRx, n * 256, 1023)) + [dma(qX9d, Sx, sOff, 0, "", f"xn{n}")]
def g_kv(e, part, o, cap=True):
    kv, half = part >> 1, part & 1
    ops = group(KVU(e & 1)[part] * US, sGrp, vKV, (Sk, Sv)[kv], (sRk, e * 16384 + half * (4096 << int(o.kvm)), "x"), o.kvflag, f"{'kv'[kv]}{e}")
    if e < int(o.winfrom) and o.win0:
        for x in ops:
            if x.kind == "dma": x.text = f"s_waitcnt vmcnt({int(o.win0.split(',')[4 * e + part])-1})\n" + x.text
    if cap and int(o.win) and e >= int(o.winfrom):
        for x in ops:
            if x.kind != "dma": continue
            if 4 * e + part in range(*eval(o.bal)):
                g_kv.n = getattr(g_kv, "n", 0) + 1
                x.text = f"s_cbranch_vccz Lw{g_kv.n}\ns_waitcnt vmcnt({int(o.winlo)-1})\nLw{g_kv.n}:\ns_waitcnt vmcnt({int(o.winhi)-1})\n" + x.text
            else:
                g_kv.m = getattr(g_kv, "m", 0) + 1
                x.text = f"s_waitcnt vmcnt({int(o.winp[g_kv.m % len(o.winp)] if o.winp else o.win)-1})\n" + x.text
    return ops
def g_wo(p, hf): return sum((group(WOU[p][part] * US, sGrp, vKV, Swo, (sP(p), part * 65536, 0), "", f"wo{p}{'ab'[hf]}") for part in (2 * hf, 2 * hf + 1)), [])
def w128(o, addr, data, off):
    if not int(o.w64): return [dsw("ds_write_b128", addr, data, off)]
    return [dsw("ds_write_b64", addr, (data[0].sub(2 * z, 2), data[1]), off + 8 * z) for z in range(2)]

def qtok(tok, o):
    c, n = tok[0], int(tok[1:])
    if c == "w": return g_wq(n), n - 6
    if c == "x": return g_x(n), 2 * (n - 3)
    if c == "n": return g_x9(n), (4 * (n - 2) + 2 if n >= 2 else -1)
    if c == "c": return code_touch(V(254, 2), vTs, vL16, shift=3), -1
    if c == "t":
        ops = [salu("s_bfe_u32", sT0, sB, (1 << 16) | 1), salu("s_lshl_b32", sT0, sT0, 24)] + (
               [salu("s_lshl_b32", sT1, sQH, 12), salu("s_add_u32", sT0, sT0, sT1)] if int(o.kvm) else []) + [
               valu("v_mul_u32_u24", vT0, 7, vL16), valu("v_add3_u32", vT0, vT0, vKV(0), sT0)] + (setoff(16384) if 2 < n < 10 else [])
        return ops + [I(f"buffer_load_dword {vTs}, {vT0}, {(Sk, Sv)[z & 1]}, {sOff if z >> 1 else 0} offen", "vml", rd=[vT0, sOff], tag="ct") for z in (range(n) if n < 10 else [n - 10])], -1
    if c == "u":
        ops = [salu("s_bfe_u32", sT0, sB, (1 << 16) | 1), salu("s_xor_b32", sT0, sT0, 1), salu("s_lshl_b32", sT0, sT0, 24),
               salu("s_bfe_u32", sT1, sB, (1 << 16) | 2), salu("s_lshl_b32", sT1, sT1, 17), salu("s_add_u32", sT0, sT0, sT1),
               salu("s_and_b32", sT1, sB, 1), salu("s_lshl2_add_u32", sT1, sT1, sW), salu("s_lshl_b32", sT1, sT1, 14), salu("s_add_u32", sT0, sT0, sT1),
               valu("v_lshl_add_u32", vT0, vL16, 3, sT0)] + setoff(8192)
        return ops + [I(f"buffer_load_dword {vTs}, {vT0}, {Swo}, {sOff if z else 0} offen offset:128", "vml", rd=[vT0, sOff], tag="ct") for z in range(2)], -1
    if c == "s": return g_kv(0, n, o), (10, 10, 11, 12)[n]
    if c == "k": return g_kv(1, n, o), (12, 13, 14, 14)[n]
    raise ValueError(tok)

def code_touch(va, vd, lane, shift, tid=False):
    n = code_touch.n = getattr(code_touch, "n", 0) + 1
    return [valu("v_lshlrev_b32", va[0], shift, lane)] + ([] if tid else
            [salu("s_and_b32", sT0, sB, 7), salu("s_lshl_b32", sT1, sW, 6), salu("s_add_u32", sT0, sT0, sT1), salu("s_lshl_b32", sT0, sT0, 7),
             valu("v_and_b32", va[0], "0x1c00", va[0]), valu("v_add_u32", va[0], sT0, va[0])] if code_touch.thin else
            [salu("s_lshl_b32", sT0, sW, 13), valu("v_add_u32", va[0], sT0, va[0])]) + [
            raw(f"s_getpc_b64 s[52:53]\nLpc{n}:", wr=[sT0, sT1], kind="salu"),
            raw(f"v_min_u32 {va[0]}, Lcode_end-Lpc{n}-4, {va[0]}", rd=[va[0]], wr=[va[0]], kind="valu"),
            valu("v_mov_b32", va[1], 0),
            raw(f"v_lshl_add_u64 {va}, {va}, 0, s[52:53]", rd=[va, sT0, sT1], wr=[va], kind="valu"),
            I(f"global_load_dword {vd}, {va}, off", "vml", rd=[va], wr=[], tag="ct")]

def prologue(o):
    P = []; a = P.append
    v = lambda n: V(n)
    a(raw("s_cmp_ge_u32 s2, 256")); a(raw("s_cbranch_scc1 Lend"))
    a(raw("s_load_dwordx16 s[4:19], s[0:1], 0"))
    if int(o.stamps): a(raw("s_memrealtime s[64:65]"))
    a(valu("v_lshrrev_b32", v(1), 6, v(0)))
    if int(o.call):
        a(salu("s_bfe_u32", sT2, S(2), (3 << 16) | 3)); a(valu("v_lshrrev_b32", v(3), 2, v(0))); a(valu("v_lshl_add_u32", v(3), v(3), 3, sT2))
        P += code_touch(V(8, 2), vTs, v(3), shift=7, tid=True)
    elif int(o.cpf) and not int(o.cpl): P += code_touch(V(8, 2), vTs, v(0), shift=int(o.cpf) + 3, tid=True)
    a(valu("v_readfirstlane_b32", sW, v(1)))
    a(valu("v_mov_b32", v(2), "0xff800000")); a(salu("s_mov_b32", sMode, 0))
    for b in range(5): a(valu("v_accvgpr_write_b32", SAV(b), v(2)))
    a(raw("Lrestart:", kind="label"))
    L, t1, t2, t3, t4, t5, t6 = v(0), v(1), v(2), v(3), v(4), v(5), v(6)
    a(valu("v_mbcnt_lo_u32_b32", L, -1, 0)); a(valu("v_mbcnt_hi_u32_b32", L, -1, L))
    a(salu("s_and_b32", sT0, S(2), 1)); a(salu("s_bfe_u32", sT1, S(2), (3 << 16) | 3)); a(salu("s_lshl3_add_u32", sB, sT0, sT1))
    a(salu("s_bfe_u32", sT0, S(2), (2 << 16) | 1)); a(salu("s_lshr_b32", sT1, S(2), 6)); a(salu("s_lshl2_add_u32", sJ, sT0, sT1))
    a(salu("s_lshr_b32", sHH, sW, 1)); a(salu("s_and_b32", sQH, sW, 1))
    a(salu("s_mul_i32", sGrp, sW, GRP)); a(salu("s_mul_i32", sX9, sW, PS))
    a(salu("s_add_u32", sT3, sB, sJ)); a(salu("s_lshl_b32", sT0, sT3, 0 if int(o.asym) else int(o.rsh))); a(salu("s_and_b32", sT0, sT0, int(o.rot)))
    if o.rox:
        a(salu("s_lshr_b32", sT1, S(2), 1))
        a({"b": salu("s_and_b32", sT1, S(2), 1), "h": salu("s_and_b32", sT1, sT1, 1), "x": salu("s_xor_b32", sT1, sT1, S(2))}[o.rox])
        a(salu("s_and_b32", sT1, sT1, 1)); a(salu("s_add_u32", sT0, sT0, sT1))
    a(salu("s_lshl_b32", sRx, sT0, 8)); a(salu("s_lshl_b32", sRw, sT0, 20))
    a(valu("v_and_b32", t1, 7, L)); a(valu("v_lshlrev_b32", t1, 4, t1))
    a(valu("v_lshrrev_b32", t2, 3, L)); a(valu("v_lshl_add_u32", t3, t2, 12, t1))
    a(salu("s_lshl_b32", sT0, sW, 15)); a(salu("s_add_u32", sT0, sT0, 128))
    a(valu("v_add_u32", qXd(0), sT0, t3))
    for pp in range(1, 4): a(valu("v_subrev_u32", qXd(pp), 32 * pp, qXd(0)))
    a(valu("v_and_b32", t4, 3, t2)); a(valu("v_lshl_add_u32", t3, t4, 12, t1))
    a(valu("v_lshrrev_b32", t2, 5, L)); a(valu("v_lshl_add_u32", t3, t2, 7, t3))
    a(salu("s_lshl_b32", sT0, sW, 10)); a(salu("s_add_u32", sT0, sT0, 128 * 1024 + 128))
    a(valu("v_add_u32", qX9d, sT0, t3))
    a(valu("v_lshl_add_u32", t3, t4, 16, t1)); a(valu("v_lshl_add_u32", t3, t2, 15, t3))
    a(salu("s_lshl_b32", sT0, sQH, 18)); a(salu("s_lshl_b32", sT1, sHH, 8)); a(salu("s_add_u32", sT0, sT0, sT1))
    a(valu("v_add_u32", qWd(0), sT0, t3))
    for pp in range(1, 4): a(valu("v_add_u32", qWd(pp), (8192 - PS) * pp, qWd(0)))
    a(salu("s_mov_b32", Sx[2], PART + 128)); a(salu("s_mov_b32", Sx[3], "0x20000")); a(salu("s_mov_b32", Swq[3], "0x20000"))
    a(salu("s_mul_i32", sT2, sB, PART)); a(salu("s_lshl_b32", sT1, sJ, 9)); a(salu("s_sub_u32", Swq[2], 4194304, sT1))
    a(raw("s_waitcnt lgkmcnt(0)"))
    def base(srd, ptr, off, shift=0, size=None):
        a(salu("s_add_u32", srd[0], S(ptr), off)); a(salu("s_addc_u32", srd[1], S(ptr + 1), 0))
        if shift:
            a(salu("s_sub_u32", srd[0], srd[0], shift)); a(salu("s_subb_u32", srd[1], srd[1], 0))
        if size: a(salu("s_mov_b32", srd[2], size + shift)); a(salu("s_mov_b32", srd[3], "0x20000"))
    base(Sx, 4, sT2, 128); base(Swq, 10, sT1)
    if int(o.asym):
        a(raw("s_bitcmp1_b32 s56, 0")); a(raw("s_cbranch_scc0 Lnotouch"))
        a(salu("s_and_b32", sT0, sB, 14)); a(salu("s_lshl4_add_u32", sT0, sT0, sJ)); a(salu("s_lshl_b32", sT0, sT0, 18))
        base(Sk, 6, sT0, 0, 4194304 + 262144)
        if int(o.asym) > 2: base(Sv, 8, sT0, 0, 4194304 + 262144)
        a(salu("s_lshl4_add_u32", sT0, sHH, sQH)); a(salu("s_lshl_b32", sT0, sT0, 13)); a(valu("v_lshl_add_u32", t3, L, 7, sT0))
        a(salu("s_mov_b32", sOff, 4194304))
        for n in range(int(o.asym)):
            if int(o.asym) == 3 and n == 2:
                a(valu("v_lshrrev_b32", t1, 5, L)); a(valu("v_mul_u32_u24", t1, 4194304 - 4096, t1)); a(valu("v_add_u32", t3, t3, t1))
            a(raw(f"buffer_load_dword {vTs}, {t3}, {(Sk, Sv)[n >> 1]}, {sOff if n & 1 else 0} offen {o.tflag}".rstrip(), rd=[t3], kind="vml"))
        a(raw("Lnotouch:", kind="label"))
    lin = []
    if int(o.lpf):
        a = lin.append
        base(Sk, 4, 0, 0, 16 * PART); base(Sv, 10, 0, 0, 4194304)
        a(salu("s_lshl2_add_u32", sT0, S(2), sW)); a(salu("s_mul_i32", sT1, sT0, 2304)); a(salu("s_lshl_b32", sT0, sT0, 12))
        a(valu("v_min_u32", t1, 17, L)); a(valu("v_lshl_add_u32", t1, t1, 7, sT1)); a(valu("v_lshl_add_u32", t3, L, 6, sT0))
        a(I(f"buffer_load_dword {vTs}, {t3}, {Sv}, 0 offen", "vml", rd=[t3], tag="ct"))
        a(I(f"buffer_load_dword {vTs}, {t1}, {Sk}, 0 offen", "vml", rd=[t1], tag="ct"))
    first = []
    for n, tok in enumerate(o.qseq.split("|")[0].split(",")):
        if n == int(o.lpf) - 1: first += lin
        first += qtok(tok, o)[0]
    Q = []; a = Q.append
    if int(o.cpl): a(valu("v_lshl_add_u32", t1, sW, 6, L)); Q += code_touch(V(8, 2), vTs, t1, shift=int(o.cpf) + 3, tid=True)
    a(salu("s_lshl4_add_u32", sT1, sB, sJ))
    a(salu("s_lshl_b32", sT0, sT1, 18)); base(Sk, 6, sT0, 128, 262144); base(Sv, 8, sT0, 128, 262144)
    a(salu("s_mul_i32", sT0, sT1, PART)); base(Sws, 18, sT0, 0, PART)
    a(salu("s_lshl_b32", sT0, sJ, 18)); base(Swo, 12, sT0, 128, 262144)
    base(Sout, 14, sT2, 0, PART)
    a(salu("s_lshl_b32", sT0, sT2, 4)); base(Sred, 18, sT0, 0, 16 * PART)
    a(salu("s_lshl_b32", sT0, sB, 15)); a(salu("s_add_u32", sT0, sT0, MBOFF)); base(Smb, 18, sT0, 0, 32768)
    a(salu("s_mov_b32", Sdbg[2], 256)); a(salu("s_mov_b32", Sdbg[3], "0x20000"))
    a(salu("s_mov_b32", sC, hex(CSC))); a(raw("s_bitcmp1_b32 s50, 1")); a(raw("s_cselect_b64 vcc, -1, 0"))
    a(salu("s_lshr_b32", sT3, sJ, 2)); a(salu("s_lshl_b32", sT0, sB, int(o.fb))); a(salu("s_sub_u32", sT3, sT3, sT0))
    for p in range(4): a(salu("s_add_u32", sT0, sT3, (p - int(o.ts)) & 3)); a(salu("s_and_b32", sT0, sT0, 3)); a(salu("s_lshl_b32", sP(p), sT0, 8))
    a(salu("s_and_b32", sT0, sT3, 3)); a(salu("s_and_b32", sT1, sJ, 3)); a(salu("s_lshl2_add_u32", sT3, sT0, sT1))
    a(valu("v_and_b32", t1, 15, L)); a(valu("v_lshlrev_b32", t1, 4, t1))
    a(valu("v_lshrrev_b32", t5, 4, L))
    a(salu("s_add_u32", sT0, sW, sMode)); a(salu("s_lshl4_add_u32", sAt, sT0, sB)); a(salu("s_lshl_b32", sAt, sAt, 4))
    a(salu("s_lshl_b32", sT0, sMode, 6)); a(salu("s_add_u32", sT0, sT0, sW)); a(salu("s_lshl_b32", sT0, sT0, 9))
    a(valu("v_lshl_add_u32", t6, L, 3, sT0)); a(salu("s_lshl_b32", sOff, sT3, 11)); a(valu("v_mov_b64", V(8, 2), 0))
    a(vstore(V(8, 2), t6, Smb, sOff, 0, "sc1", tag="mbz", op="buffer_store_dwordx2"))
    a(valu("v_lshl_add_u32", t3, t5, 13, t1))
    a(salu("s_lshl_b32", sT0, sHH, 15)); a(salu("s_lshl_b32", sT1, sQH, 12)); a(salu("s_add_u32", sT0, sT0, sT1))
    a(salu("s_add_u32", sT0, sT0, 128)); a(valu("v_add_u32", t3, sT0, t3)); a(valu("v_accvgpr_write_b32", aWo0, t3))
    a(valu("v_lshlrev_b32", vL16, 4, L))
    a(salu("s_lshl_b32", sT0, sHH, 17)); a(salu("s_lshl_b32", sT1, sQH, 13 - int(o.kvm))); a(salu("s_add_u32", sT0, sT0, sT1))
    a(salu("s_add_u32", sT0, sT0, 128)); a(valu("v_add_u32", vKV(0), sT0, vL16)); a(valu("v_accvgpr_write_b32", aKv0, vKV(0)))
    for pp in range(1, 4): a(valu("v_subrev_u32", vKV(pp), 32 * pp, vKV(0)))
    a(salu("s_xor_b32", sT0, sW, 1)); a(salu("s_mul_i32", sGrP, sT0, GRP))
    a(salu("s_add_u32", sA8, sGrp, 8 * US)); a(salu("s_add_u32", sB8, sGrP, 8 * US))
    a(valu("v_add_u32", qA8, sA8, vL16)); a(valu("v_add_u32", qB8, sB8, vL16))
    a(valu("v_and_b32", t1, 3, L)); a(valu("v_mul_u32_u24", t1, PS, t1)); a(valu("v_lshl_add_u32", t1, t5, 4, t1))
    a(valu("v_bfe_u32", t3, L, 2, 2)); a(valu("v_lshl_add_u32", t3, t3, 7, t1))
    a(valu("v_add_u32", qX9r, X9, t3))
    a(salu("s_mul_i32", sT0, sQH, 2 * GRP)); a(valu("v_add_u32", qXr(0), sT0, t3))
    a(valu("v_add_u32", qXr(1), 7 * US, qXr(0)))
    a(valu("v_bfe_u32", t3, L, 2, 1)); a(valu("v_mul_u32_u24", t3, US, t3)); a(valu("v_add_u32", t1, t1, t3))
    a(valu("v_bfe_u32", t3, L, 3, 1)); a(valu("v_lshl_add_u32", t1, t3, 8, t1))
    a(salu("s_lshl_b32", sT0, sQH, 6)); a(salu("s_xor_b32", sT1, sT0, 64))
    a(valu("v_add_u32", t3, sT0, t1)); a(valu("v_add_u32", t6, sT1, t1))
    a(valu("v_add_u32", Kr(0, 0), sGrp, t3)); a(valu("v_add_u32", Kr(0, 1), sGrp, t6))
    a(valu("v_add_u32", Kr(1, 0), sGrP, t3)); a(valu("v_add_u32", Kr(1, 1), sGrP, t6))
    a(valu("v_bfe_u32", t1, L, 2, 2)); a(valu("v_mul_u32_u24", t1, PS, t1))
    a(valu("v_and_b32", t3, 1, L)); a(valu("v_lshl_add_u32", t6, t3, 4, t1))
    a(valu("v_bfe_u32", t3, L, 1, 1)); a(valu("v_lshl_add_u32", t6, t3, 3, t6))
    a(valu("v_lshl_add_u32", t3, t5, 7, t6))
    a(salu("s_mul_i32", sT2, sHH, 2 * GRP)); a(salu("s_add_u32", sT2, sT2, US)); a(valu("v_add_u32", t3, sT2, t3))
    a(valu("v_add_u32", qWr(0, 0), sT0, t3)); a(valu("v_add_u32", qWr(0, 1), sT1, t3))
    a(valu("v_add_u32", qWr(1, 0), 4 * US, qWr(0, 0))); a(valu("v_add_u32", qWr(1, 1), 4 * US, qWr(0, 1)))
    a(valu("v_and_b32", t4, 1, t5))
    a(valu("v_lshl_add_u32", t6, t2, 8, t6)); a(valu("v_mul_u32_u24", t3, GRP, t4)); a(valu("v_add_u32", t6, t6, t3))
    a(salu("s_lshl_b32", sT2, sW, 6)); a(valu("v_add_u32", t6, sT2, t6)); a(valu("v_accvgpr_write_b32", aWpat, t6))
    a(valu("v_lshl_add_u32", t1, t2, 8, t1)); a(valu("v_and_b32", t3, 3, L)); a(valu("v_lshl_add_u32", t1, t3, 3, t1))
    a(valu("v_mul_u32_u24", t3, US, t4)); a(valu("v_add_u32", t1, t1, t3)); a(valu("v_add_u32", t1, 4 * US, t1))
    a(salu("s_lshl_b32", sT0, sT0, 1)); a(salu("s_lshl_b32", sT1, sT1, 1))
    a(valu("v_add_u32", t3, sT0, t1)); a(valu("v_add_u32", t6, sT1, t1))
    a(valu("v_add_u32", Vr(0, 0), sGrp, t3)); a(valu("v_add_u32", Vr(0, 1), sGrp, t6))
    a(valu("v_add_u32", Vr(1, 0), sGrP, t3)); a(valu("v_add_u32", Vr(1, 1), sGrP, t6))
    a(salu("s_and_b32", sRk, {"h": sHH, "b": sB, "0": 0}[o.hx], 1)); a(salu("s_lshl_b32", sRk, sRk, 12 + int(o.kvm)))
    a(salu("s_lshl1_add_u32", sT2, sQH, sHH)); a(salu("s_lshl_b32", sT2, sT2, 12)); a(salu("s_add_u32", sT2, sT2, 6 * US))
    a(salu("s_lshl4_add_u32", sOw0, sT0, sT2)); a(salu("s_lshl4_add_u32", sOw1, sT1, sT2))
    a(valu("v_mov_b32", t1, "0x3f803f80"))
    for r in range(4): a(valu("v_accvgpr_write_b32", (ONES[r], "ones"), t1))
    return P, first, Q

def build_main(o):
    code_touch.thin = int(o.thin)
    P, first, Q = prologue(o)
    sc = Sched(vmgap=int(o.vmgap), dswgap=int(o.dswgap), maxmem=int(o.maxmem), wiso=int(o.wiso), horizon=int(o.hor))
    F = sc.f
    nstamp = [1]
    def stamp(g, after=()):
        if int(o.stamps):
            n = nstamp[0]; nstamp[0] += 1
            F(raw(f"s_memrealtime s[{64+2*n}:{65+2*n}]"), g, g, after=after)
    nextvm = [0]
    def spread(ops, lo, step, q="dma", after=(), cap=None):
        out = []; pos = max(lo, nextvm[0]); pend = []
        for x in ops:
            pend.append(x)
            if x.kind in ("dma", "vml", "vms"):
                a_, b_ = int(pos), int(pos + step)
                if cap is not None: a_, b_ = min(a_, cap), min(b_, cap)
                for y in pend[:-1]: out.append(F(y, max(min(lo, b_), min(a_ - 3, b_)), b_, q=q, after=after))
                out.append(F(x, a_, b_, q=q, after=after)); pend = []
                if x.tag not in ('at', 'ct'): pos += step
        assert not pend
        nextvm[0] = pos
        return out
    cur = {}; lastrd = {}; firstrd = {}; lastwr = {}
    def M(d, dtag, a_, b_, c):
        cc = (d, cur[str(d)]) if c == "acc" else c
        i = mfma((d, dtag), a_, b_, cc); n = sc.m(i); cur[str(d)] = dtag
        for r, t in i.rd.items():
            lastrd[(r, t)] = n; firstrd.setdefault((r, t), n)
        lastwr[str(d)] = n
        return n
    lr = lambda reg, tag: max(lastrd[(r, tag)] for r in reg.regs())
    fr_ = lambda reg, tag: min(firstrd[(r, tag)] for r in reg.regs())
    for i in first + Q: F(i, -1, -1, q="dma")
    k0 = {}; qdone = {}
    for j, (I_, hf) in enumerate(SEQ):
        k0[j] = sc.n
        if j < 15: order = [(fp, b) for fp in range(4) for b in range(5) if b < 4 or fp < 2]
        else: order = [(fp, 4) for fp in range(2)] + [(fp, b) for b in range(4) for fp in range(4)]
        for fp, b in order:
            d = ACC(b, 4 * hf + fp) if b < 4 else SB(hf).sub(4 * fp, 4)
            for kk in range(2):
                bb = (Bq(I_, kk, b) if b < 4 else B9(I_, kk), f"x{I_}")
                n = M(d, "Qacc" if (I_, kk) == (7, 1) else f"q{I_}.{kk}", (Aq(fp, kk), f"w{j}"), bb, 0 if (I_, kk) == (0, 0) else "acc")
            qdone[str(d)] = n
    k0[16] = sc.n
    units = []; U = {}; G = {}; pre0 = {}; preL = {}
    P7 = {0: PB(0), 1: PB(1), 8: PB(2), 2: NM(0), 3: NM(4), 4: NM(1), 5: NM(2)}
    def pre(b):
        pre0[b] = sc.n
        for t in range(4): preL[b] = M(NM(b), f"pm{b}", (KF(0, 0, t), "k0"), (QF(b, t), f"Q{b}"), 0 if t == 0 else "acc")
    def qk(e, u):
        n = len(units); b, y = (u >> 1, u & 1) if u < 8 else (4, 0)
        s_ = SB(n & 1); p_ = PB(u % 3) if e < 7 else P7.get(u, s_.sub(0, 4))
        un = dict(e=e, u=u, b=b, y=y, S=s_, P=p_, n=n, q0=sc.n, hl=[0, 0])
        for h in range(2):
            for t in range(4):
                un["hl"][h] = M(s_.sub(4 * h, 4), f"s{n}", (KF(y, h, t), f"k{e}"), (QF(b, t), f"Q{b}"), (NM(b), f"nm{b}") if t == 0 else "acc")
        units.append(un); U[(e, u)] = un
    def pv(e, b, ds=range(-1, 8)):
        us = [U[(e, 2 * b)], U[(e, 2 * b + 1)]] if b < 4 else [U[(e, 8)]]
        g = G.setdefault((e, b), dict(p0=sc.n))
        for d in ds:
            acc = LS(b) if d < 0 else (ACC(b, d) if b < 4 else O9(d))
            for k, un in enumerate(us):
                a_ = (ONES, "ones") if d < 0 else (VF(e, un["y"], d), f"v{e}")
                g["pL"] = M(acc, f"o{e}.{k}" if k + 1 < len(us) else f"o{e}", a_, (un["P"], f"p{un['n']}"), 0 if e == 0 and k == 0 else "acc")
        for un in us: un["g"] = g
    st0 = {}
    for e in range(8):
        st0[e] = sc.n
        if e == 0: pre(0); pre(1)
        qk(e, 0); qk(e, 1)
        if e: pv(e - 1, 4)
        if e < 7:
            for b in range(1, 4):
                if e == 0: pre(b + 1)
                qk(e, 2 * b); qk(e, 2 * b + 1); pv(e, b - 1)
            qk(e, 8); pv(e, 3)
        else:
            for u in (8, 2, 3, 4, 5, 6, 7): qk(e, u)
            for b in (4, 0, 1, 2): pv(e, b, [-1])
            pv(e, 4, range(8)); pv(e, 3, [-1])
            for b in range(4): pv(e, b, range(8))
    attn_end = sc.n - 1
    odone = dict(lastwr)
    ou0 = {}; ouh = {}
    OU = [(p, qb) for p in range(4) for qb in QB]
    mg = int(o.merge)
    if mg:
        OU[:18] = [(int(z[0]), int(z[1])) for z in o.ouseq.split(",")]
    for n, (p, qb) in enumerate(OU):
        if True:
            ou0[n] = sc.n
            for u in range(2):
                for ks in range(8):
                    ouh[(n, u)] = M(SB(n & 1).sub(4 * u, 4), f"r{n}", (Ao(p, ks, u), f"wo{p}"), (Bo(qb, ks), f"of{qb}"), 0 if ks == 0 else "acc")
    last = sc.n - 1
    ou0[36] = ou0[37] = last + 1
    def rdA(j, fp):
        u = WQU[j % 6]; win = 0 if u <= 4 else 1
        return [dsr(TR, (Aq(fp, kk).sub(2 * h, 2), f"w{j}"), qWr(win, fp >> 1), (u - 1 - 4 * win) * US + kk * GRP + 512 * h + 32 * (fp & 1))
                for kk in range(2) for h in range(2)]
    def rdB(I_):
        u = XU[I_ % 3]; win = 1 if u == 7 else 0
        l = [dsr(B128, (Bq(I_, kk, b), f"x{I_}"), qXr(win), (u - 7 * win) * US + (b >> 1) * GRP + (b & 1) * 512 + kk * 64)
             for b in range(4) for kk in range(2)]
        return l + [dsr(B128, (B9(I_, kk), f"x{I_}"), qX9r, ((I_ >> 1) & 1) * GRP + (I_ & 1) * 512 + kk * 64) for kk in range(2)]
    bpre = F(barrier(vm=("x0", "xn0", "wq0")), -1, -1, q="dma")
    stamp(-1, [bpre])
    l = rdB(0)
    prev = [F(x, -1, -1, q="lds", after=[bpre]) for x in rdA(0, 0) + l[:6]]
    prev += [F(x, -1, 7, q="lds", after=[bpre]) for x in l[6:] + rdA(0, 1) + rdA(0, 2) + rdA(0, 3)]
    BQ = {}
    for j in range(16):
        g = k0[j] + (14 if j == 0 else 9)
        nI = SEQ[j + 1][0] if j < 15 and SEQ[j + 1][1] == 0 else None
        vm = []
        if j < 15: vm.append(f"wq{j+1}")
        if nI is not None: vm += [f"x{nI}", f"xn{nI//2}"]
        if j == 10: vm = ["wq15", "all0"] if int(o.all0) else vm + ["mbz"]
        bq = BQ[j] = F(barrier(vm=vm), g, g, after=prev)
        if o.qst and j in eval(o.qst): stamp(g, [bq])
        prev = []
        if j < 15:
            for fp in range(4):
                for x, kk in zip(rdA(j + 1, fp), (0, 0, 1, 1)):
                    lo = max(lr(Aq(fp, kk), f"w{j}"), g)
                    prev.append(F(x, lo, max(min(fr_(Aq(fp, kk), f"w{j+1}") - 6, k0[j + 1] + 3), lo), q="ldsA", after=[bq]))
        if nI is not None:
            for n, x in enumerate(rdB(nI)): prev.append(F(x, g, min(k0[j + 1] - 7 + n, k0[j + 1] + 2), q="ldsB", after=[bq]))
    step = 3.0; seen = set(o.qseq.split("|")[0].split(","))
    for tok in o.qseq.split("|")[1].split(","):
        if tok[0] == "@": nextvm[0] = max(nextvm[0], int(float(tok[1:]) * 36)); continue
        if tok[0] == "+": nextvm[0] += int(tok[1:]); continue
        if tok[0] == "p": step = float(tok[1:]); continue
        seen.add(tok)
        if tok[0] == "c" and int(o.call): continue
        ops, dep = qtok(tok, o)
        spread(ops, BQ[dep].lo if dep >= 0 else 0, step, after=[BQ[dep]] if dep >= 0 else [])
    assert len([t for t in seen if t[0] not in "ctu"]) == 16 + 8 + 4 + 4 + 4, sorted(seen)
    stamp(k0[15])
    if o.xst:
        for g_ in eval(o.xst): stamp(g_)
    def pack_q(src, dst, tdst, hi):
        lo = min(max(qdone[str(src.sub(0, 4))], qdone[str(src.sub(4, 4))]) + 3, hi)
        ops = [valu("v_mul_f32", (src[m], "t"), sC, (src[m], "Qacc")) for m in range(8)]
        ops += [valu("v_cvt_pk_bf16_f32", (dst[m], "t2"), (src[2 * m], "t"), (src[2 * m + 1], "t")) for m in (0, 2, 1, 3)]
        ops += [swap("v_permlane32_swap_b32", (dst[m], "t2"), (dst[m + 2], "t2"), tdst, tdst) for m in range(2)]
        return [F(x, lo, hi, q="qe") for x in ops]
    q9w = []
    for hf in range(2):
        l = pack_q(SB(hf), PB(hf), "q9p", pre0[0] - 2)
        q9w.append(F(dsw("ds_write_b128", qA8, (PB(hf), "q9p"), 1024 * hf), BQ[15].lo, min(U[(0, 0)]["q0"] - 1, pre0[2] - 3 + int(o.ba0)), q="q9w", after=[l[-1], BQ[15]]))
        for t, b in ([(t, b) for t in (0, 1) for b in range(4)] if hf == 0 else [(t, b) for b in range(4) for t in (2, 3)]):
            pack_q(V(32 * b + 8 * t, 8), QF(b, t), f"Q{b}", pre0[b] - 1 + t)
    for b in range(5):
        n = NM(b); pm = f"pm{b}"; nm = f"nm{b}"; hi = fr_(n, nm) - 1
        ops = [valu("v_accvgpr_read_b32", vT1, SAV(b)),
               valu("v_max3_f32", n[0], (n[0], pm), (n[1], pm), vT1), valu("v_max3_f32", n[0], n[0], (n[2], pm), (n[3], pm)),
               valu("v_mov_b32", n[1], n[0]), swap("v_permlane32_swap_b32", n[0], n[1]), valu("v_max_f32", n[0], n[0], n[1]),
               valu("v_mov_b32", n[1], n[0]), swap("v_permlane16_swap_b32", n[0], n[1]),
               I(f"v_min_f32_e64 {n[0]}, -{n[0]}, -{n[1]}", "valu", rd=[n[0], n[1]], wr=[(n[0], nm)]),
               valu("v_mov_b32", (n[1], nm), (n[0], nm)), valu("v_mov_b64", (n.sub(2, 2), nm), (n.sub(0, 2), nm))]
        for x in ops: F(x, min(preL[b] + 3, hi), hi, q="nm")
    def rdK(e, y, lo, after, hi=10**9):
        out = []
        for h in range(2):
            for t in range(4):
                r = KF(y, h, t); l_ = max(lo, lr(r, f"k{e-1}")) if e else lo
                x = dsr(B128, (r, f"k{e}"), Kr(y, t & 1), (e & 1) * 2 * US + 512 * h + 128 * (t >> 1))
                out.append(F(x, l_, max(l_, min(fr_(r, f"k{e}") - 6, hi)), q=f"ldsK{y}", after=after))
        return out
    def rdV(e, y, lo, after, hi):
        out = []
        for d in range(8):
            r = VF(e, y, d); l_ = max(lo, lr(r, f"v{e-1}")) if e and y else lo
            for h in range(2):
                x = dsr(TR, (r.sub(2 * h, 2), f"v{e}"), Vr(y, d >> 2), (e & 1) * 2 * US + 512 * h + 32 * (d & 3))
                out.append(F(x, l_, max(l_, min(fr_(r, f"v{e}") - 6, hi)), q=f"ldsV{y}", after=after))
        return out
    BB = {}
    vset = lambda src: [valu("v_accvgpr_read_b32", vKV(0), src)] + [valu("v_subrev_u32", vKV(pp), 32 * pp, vKV(0)) for pp in (1, 2, 3)]
    for e in range(8):
        if e == 0:
            g = k0[16] - int(o.bk0)
            bk = F(barrier(vm=["k0"], lgkm=False), g, g, after=[BQ[15]])
            gv = pre0[2] - 1 + int(o.ba0)
            bv = F(barrier(vm=["v0"]), gv, gv, after=q9w + [bk])
            for t in range(4):
                F(dsr(B128, (QF(4, t), "Q4"), qB8 if t & 1 else qA8, 1024 * (t >> 1)), gv, pre0[4] - 6, q="ldsQ9", after=[bv])
        else:
            g = U[(e - 1, 8)]["q0"] - 1 - int(o.bao)
            sep = e == 7 or e >= int(o.sepv)
            bk = F(barrier(vm=[f"k{e}"] + ([] if sep else [f"v{e}"]), lgkm=False), g, g, after=[BB[e - 1]])
            bv, gv = bk, g
            if sep and e < 7:
                gv = st0[e] + int(o.bvo)
                bv = F(barrier(vm=[f"v{e}"], lgkm=False), gv, gv, after=[bk])
            if e == 7:
                gv = G[(7, 4)]["p0"] - 1 - int(o.bv7)
                gx = st0[7] + int(o.bxo)
                bx = F(barrier(vm=["wo0a"]), gx, gx, after=[bk])
                bv = F(barrier(vm=["v7"]), gv, gv, after=[bx])
                stamp(gv, [bv])
        gb = G[(e, 0)]["p0"] + int(o.bbo if e >= int(o.sepv) else o.bbo1) if e < 7 else G[(7, 4)]["p0"] + int(o.bb7)
        if e == 0 and int(o.bb0): gb = gv + int(o.bb0)
        rk = rdK(e, 0, g, [bk]) + rdK(e, 1, g, [bk], gx - 4 if e == 7 else 10**9)
        rv = rdV(e, 0, gv, [bv], gb - 5) + rdV(e, 1, gv, [bv], gb - 5)
        bb = BB[e] = F(barrier(vm=["wo0b" if int(o.wsp) else "wo1a"] if e == 7 else []), gb, gb, after=rk + rv)
        if e in (0, 3, 6): stamp(gb, [bb])
        ops = []
        if e < 6:
            for part in range(4 if e < 5 else 2): ops += g_kv(e + 2, part, o)
        if e == int(o.ate):
            ops += [valu("v_lshl_add_u32", vT0, vL16, 4, sAt), valu("v_mov_b32", vT1, 1),
                    vstore(vT1, vT0, Sdbg, 0, 0, "", tag="at", op="buffer_atomic_add")]
        if e == int(o.cte) and int(o.cpf): ops += code_touch(V(254, 2), vTs, vL16, shift=3)
        if ops: spread(ops, gb, float({0: o.astep0, 4: o.astep4, 5: o.astep5}.get(e, o.astep)), after=[bb])
    bx.after += rk
    wts = [1.0] * 8; win = int(o.win)
    def allowed(limit):
        m = 0; c = 0.0
        while m < len(wts) and c + wts[-1 - m] <= limit + 1e-9: c += wts[-1 - m]; m += 1
        return m
    def capped(ops, w):
        for x in ops:
            if x.kind == "dma": x.text = f"s_waitcnt vmcnt({allowed(win - w)})\n" + x.text; wts.append(w)
        return ops
    es = float(o.estep); wsp = int(o.wsp)
    spread(capped(vset(aWo0) + g_wo(0, 0) + ([] if wsp else g_wo(0, 1)), float(o.wow)), BB[6].lo, es * float(o.wpace), after=[BB[6]])
    spread(capped(vset(aKv0) + g_kv(7, 2, o, False) + g_kv(7, 3, o, False), 1.0), BB[6].lo, es, after=[BB[5]])
    early = vset(aWo0) + (g_wo(0, 1) if wsp else []) + g_wo(1, 0)
    for n in range(win - 1, 0, -1):
        g_ = min(int(nextvm[0]), gv - 3)
        F(raw(f"s_waitcnt vmcnt({allowed(n)})"), g_, g_ + 2, q="dma")
        idx = [k for k, x in enumerate(early) if x.kind == "dma"][:2]
        if idx:
            spread(early[:idx[-1] + 1], max(g_ + 1, gx), (es - 2) / 2, after=[bx]); early = early[idx[-1] + 1:]; wts += [0.0] * len(idx)
        nextvm[0] = max(nextvm[0], g_ + es)
    assert wsp or not early
    nextvm[0] = 0
    spread(early + g_wo(1, 1), gv + int(o.w1bo), float(o.ostep0), after=[bv])
    if not wsp: spread(g_wo(2, 0), BB[7].lo + 1, float(o.ostep1), after=[BB[7]])
    vA8, vLMw, vW, vOw, vB8, vLMr = Kr(0, 0), Kr(0, 1), (Kr(1, 0), Kr(1, 1)), (Vr(0, 0), Vr(0, 1)), Vr(1, 0), Vr(1, 1)
    vBr, vFl, vSt, vO9 = (PB(2)[0], PB(2)[1]), vLMw, vLMr, vB8
    g = U[(7, 8)]["q0"]; p7 = G[(7, 4)]["p0"]
    adr = [valu("v_bfe_u32", vLMw, vL16, 1, 7), valu("v_add_u32", vLMw, sA8, vLMw), dsw("ds_write_b32", vLMw, (NM(4)[0], "nm4"), 4096 + 4),
           valu("v_accvgpr_read_b32", vW[0], aWpat), valu("v_add_u32", vW[1], 4 * US, vW[0]), valu("v_add_u32", vA8, sA8, vL16)]
    adr = [F(x, gx, g + 4, q="adr", after=rk) for x in adr]
    BB[7].after.append(F(dsw("ds_write_b32", vLMw, (LS(4)[0], "o7"), 4096), p7 + 4, BB[7].lo - 2, q="adr"))
    adr2 = [valu("v_bfe_u32", vLMr, vL16, 1, 7), valu("v_add_u32", vLMr, sB8, vLMr),
            valu("v_add_u32", vOw[0], sOw0, vL16), valu("v_add_u32", vOw[1], sOw1, vL16), valu("v_add_u32", vB8, sB8, vL16)]
    adr2 = [F(x, p7, BB[7].lo + 3, q="adr", after=rv) for x in adr2]
    lastP = {}
    for un in units:
        n, s_, p_ = un["n"], un["S"], un["P"]
        nx = units[n + 2]["q0"] if n + 2 < len(units) else 10**9
        pfree = -1; aft = []
        if str(p_) in lastP: pfree = lastP[str(p_)]["g"]["pL"]
        for b in range(5):
            if str(p_) == str(NM(b)): pfree = lr(p_, f"nm{b}") + 1
        if str(p_) == str(NM(4)): aft = [adr[2]]
        if n < 2: aft = q9w
        lastP[str(p_)] = un
        ex = []
        for j in range(8):
            hi = min(nx - 1 + 4 * (j >> 2), un["g"]["p0"] - 1); lo = min(un["hl"][j >> 2] + 3, hi)
            ex.append(F(trans("v_exp_f32", (s_[j], f"e{n}"), (s_[j], f"s{n}")), lo, max(lo, hi - 1), q="exp"))
        for m in range(4):
            hi = min(nx - 1 + 4 * (m >> 1), un["g"]["p0"] - 1)
            F(valu("v_cvt_pk_bf16_f32", (p_[m], f"p{n}"), (s_[2 * m], f"e{n}"), (s_[2 * m + 1], f"e{n}")),
              max(ex[2 * m + 1].lo, pfree), hi, q="cvt", after=[ex[2 * m + 1]] + aft)
    def rdAo(p, kss=range(8)):
        return [dsr(TR, (Ao(p, ks, u).sub(2 * h, 2), f"wo{p}"), vW[WOU[p][ks >> 1] >> 2],
                    (WOU[p][ks >> 1] & 3) * US + (ks & 1) * 2 * GRP + 512 * h + 32 * u)
                for u in range(2) for ks in kss for h in range(2)]
    fu = [OU.index((0, qb)) for qb in (0, 1, 2, 3, 8)]
    gB = [attn_end - int(o.b1o)] + [ou0[fu[k]] - int(o.bko1 if k == 1 and mg else o.bko) for k in range(1, 5)]
    pub = [[] for _ in range(5)]
    lm = NM(3)
    mr = [dsr("ds_read_b64", lm.sub(0, 2), vLMw, 4096), dsr("ds_read_b64", lm.sub(2, 2), vLMr, 4096)]
    mr = [F(x, BB[7].lo, BB[7].lo + 10, q="lm", after=[BB[7], adr2[1]]) for x in mr]
    ops = [valu("v_add_u32", vBr[1], 6 * US, vL16),
           salu("s_lshl_b32", sT0, sW, 2), valu("v_add_u32", vFl, sT0, vBr[1]), salu("s_lshl_b32", sT0, sW, 10), valu("v_add_u32", vSt, sT0, vL16),
           valu("v_sub_f32", lm[1], lm[1], lm[3]), trans("v_exp_f32", lm[1], lm[1]), valu("v_accvgpr_read_b32", vTs, (LS(0)[0], "o7")),
           valu("v_fma_f32", lm[0], lm[2], lm[1], lm[0]), trans("v_rcp_f32", lm[2], lm[0]),
           valu("v_add_f32", vTs, vTs, lm[0]), valu("v_mul_f32", lm[1], lm[1], lm[2])]
    for b in (1, 2, 3): ops += [valu("v_accvgpr_read_b32", lm[3], (LS(b)[0], "o7")), valu("v_add_f32", vTs, vTs, lm[3])]
    ops.append(dsw("ds_write_b32", vFl, vTs, FLAG - 6 * US))
    lsum = [F(x, max(BB[7].lo + 4, G[(7, 4)]["pL"], odone[str(LS(3))] + 4), gB[0] - 4, q="lm") for x in ops]
    pub[0] += lsum
    rp = int(o.rawp)
    raww = [F(x, gB[rp - 1] + 12 if rp else G[(7, 4)]["pL"] + 4, gB[rp] - 36 + 5 * d if rp else gB[rp] - 4, q="raw" if rp else "ow", after=[adr[-1]])
            for d in range(4) for x in w128(o, vA8, (O9(4 + d), "o7"), 1024 * d)]
    pub[rp] += raww
    def norm_block(b):
        a32 = V(32 * b, 32); hi = gB[b] - 4
        ops = [valu("v_accvgpr_read_b32", vT1, (LS(b)[0], "o7")), trans("v_rcp_f32", vT0, vT1)]
        for x in ops: F(x, odone[str(LS(b))] + 4, hi, q="ep")
        for k in range(4):
            ops = [valu("v_mul_f32", (a32[8 * k + m], "n"), (a32[8 * k + m], "o7"), vT0) for m in range(8)]
            ops += [valu("v_cvt_pk_bf16_f32", (a32[8 * k + m], "of"), (a32[8 * k + 2 * m], "n"), (a32[8 * k + 2 * m + 1], "n")) for m in range(4)]
            lo = odone[str(ACC(b, 2 * k + 1))] + 3; hk = max(lo, hi - 4 * (3 - k))
            for x in ops: x = F(x, lo, hk, q="ep")
            for y in w128(o, vOw[k >> 1], (a32.sub(8 * k, 4), "of"), (b & 1) * US + (k & 1) * 1024):
                pub[b].append(F(y, max(lo, gB[b - 1]) if b >= 2 else lo, hk, q="ow", after=[x, adr2[-1], BP[b - 1] if b >= 2 else BB[7]]))
    BP = [barrier(vm=v_) for v_ in (["wo1a" if wsp else "wo1b"], [], [], [], ["wo2a", "wo2b"])]
    bv.after += [F(x, max(gx, G[(6, 4)]["pL"]), gv - 5, q="ldsK0", after=[adr[-1], bx]) for x in rdAo(0, range(4))]
    if wsp: pub[0] += [F(x, BB[7].lo, gB[0] - 4, q="ldsK0", after=[BB[7]]) for x in rdAo(0, range(4, 8))]
    else:
        BB[7].after += [F(x, gv, BB[7].lo - 4, q="ldsK0", after=[bv]) for x in rdAo(0, range(4, 8))]
        pub[0] += [F(x, BB[7].lo, gB[0] - 4, q="ldsK0", after=[BB[7]]) for x in rdAo(1, range(4))]
    for b in range(4): norm_block(b)
    F(BP[0], gB[0], gB[0], after=pub[0])
    stamp(attn_end)
    rdA0 = []; bn, gn = BP[0], gB[0]
    if wsp:
        gn = ou0[0] + int(o.bno)
        bn = F(barrier(vm=["wo1b"]), gn, gn, after=[BP[0]] + [F(x, gB[0], gn - 4, q="ldsK0", after=[BP[0]]) for x in rdAo(1, range(4))])
    for x in rdAo(1, range(4, 8)):
        r = next(iter(x.wr)); lo = max(gn, lastrd[(r, "v7")])
        rdA0.append(F(x, lo, max(lo, min(firstrd[(r, "wo1")] - int(o.lead), gB[1] - 3)), q="ldsK0", after=[bn]))
    fl = NM(0)
    fr = F(dsr(B128, fl, vBr[1], FLAG - 6 * US), gB[0], gB[0] + 1, q="ldsB", after=[BP[0]])
    chk = [valu("v_add_f32", fl[0], fl[0], fl[1]), valu("v_add_f32", fl[2], fl[2], fl[3]), valu("v_add_f32", fl[0], fl[0], fl[2]),
           raw(f"v_cmp_nge_f32 vcc, {hex(THR)}, {fl[0]}", rd=[fl[0]], kind="valu"),
           raw(f"s_cmp_eq_u32 s54, {77 if o.abl else 0}\ns_cselect_b64 vcc, vcc, 0\ns_cbranch_vccnz Lslow", cost=2, kind="br")]
    chk = [F(x, gB[0] + 7, gB[0] + 14, q="fl", after=[fr]) for x in chk]
    rcv = [V(168 + 4 * d, 4) for d in range(4)]
    mr = [F(dsr(B128, (rcv[d], "rcv"), vB8, 1024 * d), gB[2 + mg], gB[3] + (20 if mg else -6), q="lm", after=[chk[-1], BP[rp]]) for d in range(4)]
    for x in (salu("s_lshl_b32", sT0, sW, 11), valu("v_add_u32", vO9, sT0, vBr[1])): a9 = F(x, gB[2], gB[4] - 12, q="fl", after=mr)
    for k in range(2):
        ops = []
        for d in (2 * k, 2 * k + 1):
            for m in range(4):
                t = (vT1, lm[3])[m & 1]
                ops += [valu("v_accvgpr_read_b32", t, (O9(d)[m], "o7")), valu("v_mul_f32", (rcv[d][m], "rs"), (rcv[d][m], "rcv"), lm[1]),
                        valu("v_fma_f32", (rcv[d][m], "n"), t, lm[2], (rcv[d][m], "rs"))]
        for m in range(4):
            src = rcv[2 * k + (m >> 1)]
            ops.append(valu("v_cvt_pk_bf16_f32", (rcv[2 * k][m], "of"), (src[2 * (m & 1)], "n"), (src[2 * (m & 1) + 1], "n")))
        for x in ops: x = F(x, gB[2], gB[4] - 8 + 4 * k, q="ep", after=mr + [lsum[-1]])
        for y in w128(o, vO9, (rcv[2 * k], "of"), 3 * US + 1024 * k): pub[4].append(F(y, gB[2], gB[4] - 8 + 4 * k, q="ow", after=[x, a9]))
    def rdBo(qb, ks):
        if qb < 8: return dsr(B128, (Bo(qb, ks), f"of{qb}"), vBr[1], (qb & 1) * US + (qb >> 2) * 8192 + 1024 * ks)
        return dsr(B128, (Bo(qb, ks), f"of{qb}"), vBr[1], 3 * US + 1024 * ks)
    rdp = rdA0; prevb = BP[0]
    for k in range(5):
        if k: prevb = F(BP[k], gB[k], gB[k], after=pub[k] + [prevb] + rdp); rdp = []
        for n in (fu[k], fu[k] + 1)[:2 if k < 4 else 1]:
            qb = OU[n][1]
            for ks in range(8):
                late = qb >= 5 or (qb == 4 and ks >= 6)
                hi = max(gB[k] + ks // 2, ou0[n] - int(o.lead) + ks)
                if k < 4: hi = min(hi, gB[k + 1] - 3)
                rdp.append(F(rdBo(qb, ks), gB[k], hi, q="ldsB", after=[BP[k]] + ([chk[-1]] if late else [])))
    gd = {p: ou0[9 * p] + int(o.bdo) for p in range(4)}
    if wsp: spread(g_wo(2, 0), gB[0] + 1, float(o.ostep1), after=[BP[0]])
    w1b = spread(g_wo(2, 1), gn + 1, float(o.ostep2), after=[bn])
    spread(g_wo(3, 0), gB[1] + 1, float(o.ostep3), after=[BP[1]])
    spread(g_wo(3, 1), gB[4] + 1, float(o.ostep4), after=[BP[4]])
    for n, x in enumerate(rdAo(2)):
        r = next(iter(x.wr)); F(x, lastrd[(r, "wo0")], ou0[18] - 8 + n // 2, q="ldsK0", after=[BP[4]])
    bd = F(barrier(vm=["wo3a", "wo3b"], lgkm=False), gd[2], gd[2], after=[BP[4]])
    for n, x in enumerate(rdAo(3)): F(x, gd[2], ou0[27] - 8 + n // 2, q="ldsK0", after=[bd])
    ts = int(o.ts); assert ts >= 2
    for n in range(36):
        s_, p_ = SB(n & 1), PB(n & 1)
        for m in range(4):
            lo = min(ouh[(n, m >> 1)] + (8 if n > 8 + 6 * mg else 4), last)
            x = F(valu("v_cvt_pk_bf16_f32", (p_[m], f"rp{n}"), (s_[2 * m], f"r{n}"), (s_[2 * m + 1], f"r{n}")), lo, min(lo + (16 if n == 1 else 6), last), q="st")
        pp_, qb = OU[n]
        ops = ([salu("s_mul_i32", sT3, sP(pp_), 144)] if n == 0 or OU[n - 1][0] != pp_ else []) + [salu("s_add_u32", sSt, sT3, 4096 * qb),
               vstore((p_, f"rp{n}"), vSt3 if pp_ == ts else vSt, Sws, sSt, 0, o.stflag, tag=f"st{pp_}")]
        if n == 9 * ts:
            pre_ = [salu("s_xor_b32", sG, sJ, sW), raw(f"s_and_b32 {sG}, {sG}, 3\ns_cselect_b32 {sG}, 0, 0x10000000", wr=[sG], cost=2, kind="br"),
                    valu("v_add_u32", vSt3, sG, vSt), salu("s_lshr_b32", sG, sG, 12), salu("s_xor_b32", sG, sG, 0x10000), salu("s_add_u32", sG, sG, 8 * US),
                    valu("v_add_u32", vOwn, sG, vL16), valu("v_add_u32", vOwr, 8 * US, vSt)]
            for y in pre_: y = F(y, ou0[n - 2], ou0[n], q="own")
            own_rdy = y
        sw = int(str(o.swin).split(",")[n // 9 % len(str(o.swin).split(","))])
        if sw and n >= sw:
            ops.insert(len(ops) - 1, waitvm(f"su{n - sw}"))
        ops[-1].utag = f"su{n}"
        for x in ops: F(x, lo, min(lo + (20 if n < 2 else 8), last), q="st", after=[chk[-1]] + (w1b[-1:] if n == 0 and int(o.hold) else []) + ([own_rdy] if n == 9 * ts else []))
        if pp_ == ts: F(dsw("ds_write_b128", vOwn, (p_, f"rp{n}"), 1024 * qb), min(lo + 2, last), min(lo + 10, last), q="st", after=[BP[4]])
    t = V(168, 4)
    ops = [salu("s_lshl_b32", sT1, sB, 4), valu("v_mov_b32", vRdA, sT1),
           vload(vRdy, vRdA, Sdbg, 0, 0, "sc1", tag="rdy", op="buffer_load_dword"),
           salu("s_lshl4_add_u32", sT0, sW, sJ), salu("s_lshl_b32", sT0, sT0, 7),
           valu("v_lshrrev_b32", vF, 9, vL16), valu("v_lshl_add_u32", vF, vF, 15, sT0), valu("v_lshrrev_b32", vOne, 2, vL16),
           valu("v_add_u32", vF, vF, vOne), valu("v_mov_b32", vOne, 1)]
    gf = {p: ou0[max(n for n in range(36) if OU[n][0] == p) + 1] + int(o.flo) for p in range(3)}
    for x in ops: F(x, gB[4], gB[4] + 40, q="fl")
    ops = [raw(f"v_cmp_gt_u32 vcc, 16, {vRdy}", rd=[vRdy], kind="valu"), raw("s_cbranch_vccnz Lrdy_spin\nLrdy_back:", kind="br")]
    for p in range(3):
        ops = [waitvm(f"st{p}")] + ops + [salu("s_lshl_b32", sAt, sP(p), 5), vstore(vOne, vF, Smb, sAt, 0, "sc1", tag="fl", op="buffer_store_dword")]
        for x in ops: flag0 = F(x, gf[p], gf[p] + 2, q="fl")
        ops = []
        if p == 0:
            su = [
               salu("s_lshr_b32", sCc, sP(int(o.ts)), 6), salu("s_and_b32", sT0, sJ, 3), salu("s_add_u32", sCc, sCc, sT0),
               valu("v_bfe_u32", vPo, vL16, 4, 2), valu("v_lshrrev_b32", t[0], 8, vL16),
               salu("s_lshl_b32", sT0, sCc, 11), valu("v_lshl_add_u32", vPo, vPo, 7, sT0),
               salu("s_add_u32", sGo, sJ, 4 * int(o.ts)), salu("s_and_b32", sGo, sGo, 12), salu("s_lshl_b32", sGo, sGo, 7),
               salu("s_lshr_b32", sT0, sCc, 2), salu("s_mul_i32", sT0, sT0, 9), salu("s_add_u32", sT0, sT0, sW),
               salu("s_and_b32", sT1, sJ, 3), salu("s_lshl2_add_u32", sT0, sT0, sT1), salu("s_lshl_b32", sT0, sT0, 10),
               valu("v_add_u32", vR[0], sT0, vL16), valu("v_add_u32", vR[1], 16384, vR[0]),
               salu("s_lshl_b32", sT1, sW, 28), salu("s_add_u32", sT0, sT1, 32768), valu("v_add_u32", vR[2], sT0, vR[0]),
               valu("v_bfe_u32", t[1], vL16, 4, 4), valu("v_lshlrev_b32", vO[0], 10, t[1]), valu("v_lshl_add_u32", vO[0], t[0], 4, vO[0]),
               salu("s_lshl_b32", sT0, sW, 14), salu("s_lshl_b32", sT2, sCc, 6), salu("s_add_u32", sT0, sT0, sT2),
               valu("v_add_u32", vO[0], sT0, vO[0]), valu("v_add_u32", vO[1], 65536, vO[0]),
               salu("s_add_u32", sT0, sT1, 131072), valu("v_add_u32", vO[2], sT0, vO[0]),
               valu("v_and_b32", t[2], 1, t[1]), valu("v_lshlrev_b32", t[2], 4, t[2]), valu("v_mov_b32", t[3], "0x3f80"),
               valu("v_lshlrev_b32", t[2], t[2], t[3]),
               valu("v_bfe_u32", t[3], t[1], 2, 1), valu("v_xor_b32", t[3], t[3], t[0]),
               valu("v_and_b32", t[0], 1, t[3]), valu("v_lshlrev_b32", t[0], 3, t[0]),
               valu("v_lshrrev_b32", t[3], 1, t[3]), valu("v_lshl_add_u32", t[0], t[3], 2, t[0]),
               valu("v_lshrrev_b32", t[3], 3, t[1]), valu("v_lshl_add_u32", t[0], t[3], 1, t[0]),
               valu("v_bfe_u32", t[3], t[1], 1, 1), valu("v_add_u32", t[0], t[0], t[3]),
               valu("v_lshlrev_b32_e64", t[0], t[0], 1)]
            for m in range(8): su += [valu("v_bfe_i32", SEL[m], t[0], m, 1), valu("v_and_b32", SEL[m], SEL[m], t[2])]
            for x in su: F(x, ou0[18], gf[1 + mg] - 1, q="su" if mg else "fl", after=[flag0])
    if int(o.r0in):
        g = ou0[27] - int(o.pollo)
        p0 = F(vload(vRdy, vPo, Smb, sGo, 0, "sc1", tag="poll0", op="buffer_load_dword"), g, g + 2, q="r0", after=[su[-1]])
        g = ou0[27] + int(o.r0o)
        for x in (raw(f"v_cmp_eq_u32 vcc, 0, {vRdy}", rd=[vRdy], kind="valu"), raw("s_cbranch_vccnz Lp0_spin\nLp0_back:", kind="br")): F(x, g, g + 1, q="r0")
        ops = [salu("s_mul_i32", sOff, sGo, PART // 128), salu("s_sub_u32", sGo, sGo, 512), salu("s_and_b32", sGo, sGo, "0x600")]
        for i in range(4):
            if i: ops.append(salu("s_add_u32", sOff, sOff, PART))
            ops += [vload(A(12 * i + 4 * f, 4), vR[f], Sred, sOff, 0, o.rflag, tag="r0") for f in range(3)]
        nextvm[0] = 0
        r0 = spread(ops, g + 2, float(o.r0step), q="r0")
    g = last - int(o.pollo)
    F(vload(vRdy, vPo, Smb, sGo, 0, "sc1", tag="poll", op="buffer_load_dword"), g, g + 2, q="fl", after=[r0[2]] if int(o.r0in) else [su[-1]])
    if int(o.tt):
        for x in code_touch(V(254, 2), vTs, vL16, shift=int(o.tt), tid=True): F(x, g - 30, g - 4, q="su")
    if int(o.adw):
        for x in (salu("s_and_b32", sG, sJ, 12), salu("s_lshl_b32", sG, sG, 7), vload(vRdA, vPo, Smb, sG, 0, "sc1", tag="poll", op="buffer_load_dword")):
            F(x, g, g + 6, q="fl", after=[own_rdy])
    F(waitvm("poll"), last, last, q="st")
    seq = sc.run()
    if "a" in o.abl: seq = [x for x in seq if not (x.gap > 100 and x.kind in ("dma", "vml"))]
    if "s" in o.abl: seq = [x for x in seq if not (x.kind == "vms" and x.tag.startswith("st"))]
    if "w" in o.abl: seq = [x for x in seq if not (x.kind == "dma" and x.tag[:3] == "wo0")]
    if "d" in o.abl: seq = [x for x in seq if not (x.kind == "dsw" and x.gap > 1700)]
    if "o" in o.abl: seq = [x for x in seq if not (x.kind == "dma" and x.tag[:3] in ("wo1", "wo2", "wo3"))]
    seq = P + seq
    if not o.abl: check_tags(seq)
    seq, nops = pad_hazards(seq)
    sys.stderr.write(f"mfma {len(sc.bb)} instrs {len(seq)} over {sc.stats['over']} idle {sc.stats['idle']} waits {sc.stats['waits']} nop-states {nops}\n")
    return seq, nstamp[0]

def reduce_tail(o, a, nst):
    acc = lambda f, u: V(8 * f + 4 * u, 4)
    buf = lambda t, i, f: A(48 * t + 12 * i + 4 * f, 4)
    poll = f"buffer_load_dword {vRdy}, {vPo}, {Smb}, {sGo} offen sc1"
    a(f"s_lshl_b32 s61, {sP(3)}, 5"); a("s_mov_b32 s63, 0")
    if int(o.stamps): a(f"s_memrealtime s[{64+2*nst}:{65+2*nst}]")
    ts = int(o.ts); rw = int(o.rwin); pa = int(o.polli); started = set()
    nl = lambda t: 9 if t == ts else 12
    q = [("st",)]
    def add(fr):
        for u in range(2):
            a(f"v_mfma_f32_16x16x32_bf16 {acc(fr[2],u)}, {SEL.sub(4*u,4)}, {buf(*fr)}, {acc(fr[2],u) if fr[2] in started else 0}")
        started.add(fr[2])
    def wait(n):
        if len(q) <= n: return []
        a(f"s_waitcnt vmcnt({n})"); done = q[:len(q) - n]; del q[:len(q) - n]
        return done
    def retire(done):
        for x in done:
            if x[0] == "st":
                a(f"buffer_store_dword {vOne}, {vF}, {Smb}, s61 offen sc1"); q.append(("fl",))
        for x in done:
            if x[0] == "ld": add(x[1])
    for t in range(4):
        a(f"s_mul_i32 s45, {sGo}, {PART // 128}")
        if t == ts: a("s_mov_b32 s62, s45")
        late = []
        if ("po",) in q: late = wait(len(q) - 1 - q.index(("po",)))
        a(f"Lpoll{t}:"); a(f"v_cmp_eq_u32 vcc, 0, {vRdy}"); a(f"s_cbranch_vccz Lgo{t}")
        a(poll); a("s_add_u32 s63, s63, 1"); a("s_waitcnt vmcnt(0)"); a("s_cmp_lt_u32 s63, 0x40000"); a(f"s_cbranch_scc1 Lpoll{t}")
        a(f"Lgo{t}:")
        if int(o.rst): a(f"s_memrealtime s[{66+2*nst+2*t}:{67+2*nst+2*t}]")
        a(f"s_sub_u32 {sGo}, {sGo}, 512"); a(f"s_and_b32 {sGo}, {sGo}, 0x600")
        for i in range(nl(t) // 3):
            if t == ts: a(f"s_add_u32 s52, s51, {i+1}"); a("s_and_b32 s52, s52, 3"); a(f"s_mul_i32 s52, s52, {PART}"); a("s_add_u32 s45, s62, s52")
            if i == pa and t < 3: a(poll); q.append(("po",))
            for f in range(3):
                done = late + wait(rw - 1); late = []
                a(f"buffer_load_dwordx4 {buf(t,i,f)}, {vR[f]}, {Sred}, s45 offen {o.rflag}"); q.append(("ld", (t, i, f)))
                retire(done)
            if i < 3 and t != ts: a(f"s_add_u32 s45, s45, {PART}")
            if (t, i) == (1, 1):
                a("s_waitcnt lgkmcnt(0)"); a("s_barrier")
                for f in range(3): a(f"ds_read_b128 {buf(ts,3,f)}, {vOwr} offset:{4096*f}")
            if (t, i) == (1, 3):
                a("s_waitcnt lgkmcnt(0)")
                for f in range(3): add((ts, 3, f))
        assert t > 0 or ("st",) not in q
    while q: retire(wait(len(q) - 1))
    a("s_nop 3")
    for f in range(3):
        if f: a("s_nop 1")
        for m in range(4): a(f"v_cvt_pk_bf16_f32 v{32+4*f+m}, v{8*f+2*m}, v{8*f+2*m+1}")
        a(f"buffer_store_dwordx4 v[{32+4*f}:{35+4*f}], {vO[f]}, {Sout}, 0 offen {o.outflag}".rstrip())

def tail_and_slow(o, nst):
    T = []; a = T.append
    reduce_tail(o, a, nst); nst += 1 + 4 * int(o.rst)
    if int(o.stamps):
        a(f"s_memrealtime s[{64+2*nst}:{65+2*nst}]"); a("s_waitcnt vmcnt(0)")
        a(f"s_memrealtime s[{66+2*nst}:{67+2*nst}]"); a("s_waitcnt lgkmcnt(0)")
        a("s_cmp_lg_u32 s3, 0"); a("s_cbranch_scc1 Lend")
        if o.enc:
            ea, eb = [int(z) for z in o.enc.split(",")]
            a("s_cmp_lg_u32 s2, 100"); a("s_cbranch_scc1 Lnoenc")
            a(f"s_sub_u32 s52, s{64+2*eb}, s{64+2*ea}"); a("s_mul_i32 s52, s52, 10"); a("s_min_u32 s52, s52, 200000"); a("s_add_u32 s52, s52, 500")
            a("Lspin:"); a("s_memrealtime s[46:47]"); a("s_waitcnt lgkmcnt(0)"); a(f"s_sub_u32 s46, s46, s{66+2*nst}")
            a("s_cmp_lt_u32 s46, s52"); a("s_cbranch_scc1 Lspin"); a("Lnoenc:")
        a("s_load_dwordx2 s[40:41], s[0:1], 56"); a("s_mov_b32 s42, 0x10000000"); a("s_mov_b32 s43, 0x20000"); a("s_waitcnt lgkmcnt(0)")
        a(f"s_lshl_b32 s52, s2, 6"); a(f"s_add_u32 s52, s52, {STAMP_OFF}"); a("v_mov_b32 v1, s52")
        a("s_mov_b64 exec, 1")
        if int(o.rst): a("s_mul_i32 s63, s63, 100"); a("s_add_u32 s66, s64, s63")
        assert nst + 2 <= 16
        for n in range(nst + 2):
            a(f"v_mov_b32 v2, s{64+2*n}"); a(f"buffer_store_dword v2, v1, s[40:43], 0 offen offset:{4*n}")
    a("Lend:"); a("s_endpgm")
    if int(o.r0in):
        a("Lp0_spin:"); a("s_mov_b32 s63, 0"); a("Lp0_loop:")
        a(f"buffer_load_dword {vRdy}, {vPo}, {Smb}, {sGo} offen sc1"); a("s_add_u32 s63, s63, 1"); a("s_waitcnt vmcnt(0)")
        a(f"v_cmp_eq_u32 vcc, 0, {vRdy}"); a("s_cmp_lt_u32 s63, 0x40000"); a("s_cselect_b64 vcc, vcc, 0")
        a("s_cbranch_vccnz Lp0_loop"); a("s_branch Lp0_back")
    a("Lrdy_spin:"); a("s_mov_b32 s63, 0"); a("Lrdy_loop:")
    a(f"buffer_load_dword {vRdy}, {vRdA}, {Sdbg}, 0 offen sc1"); a("s_add_u32 s63, s63, 1"); a("s_waitcnt vmcnt(0)")
    a(f"v_cmp_gt_u32 vcc, 16, {vRdy}"); a("s_cmp_lt_u32 s63, 0x40000"); a("s_cselect_b64 vcc, vcc, 0")
    a("s_cbranch_vccnz Lrdy_loop"); a("s_branch Lrdy_back")
    a("Lslow:"); a("s_waitcnt vmcnt(0) lgkmcnt(0)"); a("s_nop 7"); a("s_barrier")
    a("v_mbcnt_lo_u32_b32 v0, -1, 0"); a("v_mbcnt_hi_u32_b32 v0, -1, v0")
    a("v_and_b32 v1, 15, v0"); a("v_lshlrev_b32 v1, 8, v1"); a("v_lshrrev_b32 v2, 4, v0"); a("v_lshl_add_u32 v1, v2, 4, v1")
    a("s_lshl_b32 s52, s48, 17"); a("s_add_u32 s52, s52, 128"); a("s_lshl_b32 s53, s49, 6"); a("s_add_u32 s62, s52, s53")
    a("v_add_u32 v2, s62, v1"); a("s_xor_b32 s53, s53, 64"); a("s_add_u32 s62, s52, s53"); a("v_add_u32 v3, s62, v1")
    for b in range(5): a(f"v_mov_b32 v{8+b}, 0xff800000")
    a("s_mov_b32 s45, 0"); a("Lslow_loop:")
    for t in range(4): a(f"buffer_load_dwordx4 v[{16+4*t}:{19+4*t}], v{2+(t&1)}, {Sk}, s45 offen offset:{128*(t>>1)}")
    a("s_waitcnt vmcnt(0)")
    for b in range(5):
        for t in range(4):
            a(f"v_mfma_f32_16x16x32_bf16 {NM(b)}, v[{16+4*t}:{19+4*t}], {QF(b,t)}, {0 if t == 0 else NM(b)}")
    a("s_nop 7"); a("s_nop 1")
    for b in range(5):
        n = NM(b); a(f"v_max3_f32 v{8+b}, v{8+b}, {n[0]}, {n[1]}"); a(f"v_max3_f32 v{8+b}, v{8+b}, {n[2]}, {n[3]}")
    a("s_add_u32 s45, s45, 4096"); a("s_cmp_lt_u32 s45, 131072"); a("s_cbranch_scc1 Lslow_loop")
    for b in range(5): a(f"v_accvgpr_write_b32 {SAV(b)}, v{8+b}")
    a("s_load_dwordx16 s[4:19], s[0:1], 0"); a("s_mov_b32 s54, 1"); a("s_branch Lrestart"); a("Lcode_end:")
    return T

KD = """.amdhsa_kernel {name}
  .amdhsa_next_free_vgpr {vg}
  .amdhsa_next_free_sgpr {sg}
  .amdhsa_accum_offset {acc}
  .amdhsa_group_segment_fixed_size 0
  .amdhsa_kernarg_size 64
  .amdhsa_user_sgpr_count 2
  .amdhsa_user_sgpr_kernarg_segment_ptr 1
  .amdhsa_system_sgpr_workgroup_id_x 1
  .amdhsa_float_denorm_mode_32 3
.end_amdhsa_kernel"""

def generate(o):
    hdr = [l.rstrip("\n") for l in open(f"cdna_kernels/{NAME}.s.ref") if l.startswith(";") and "@launch" not in l and "grid=" not in l and "Override" not in l]
    seq, nst = build_main(o)
    L = hdr + [f"; @launch grid=(256,1,1) block=(256,1,1) lds={LDSB}", '.amdgcn_target "amdgcn-amd-amdhsa--gfx950"', ".text",
               f".globl {NAME}_kernel", ".p2align 8", f".type {NAME}_kernel,@function", f"{NAME}_kernel:"]
    L += [i.text for i in seq] + tail_and_slow(o, nst)
    L += ['.section .rodata,"a"', ".p2align 6", KD.format(name=f"{NAME}_kernel", vg=512, sg=102, acc=256)]
    txt = "\n".join(L) + "\n"
    if int(o.clk): txt = txt.replace("s_memrealtime", "s_memtime")
    return txt

if __name__ == "__main__":
    o = Opt()
    for kv in sys.argv[2:]:
        k, v_ = kv.split("=", 1)
        assert hasattr(Opt, k), k
        setattr(o, k, v_)
    open(sys.argv[1], "w").write(generate(o))
```

```python
import sys, math, struct
from dsl_v6 import *

NAME = "standalone__mha_block_cached__near_ridge"
US, GRP, PS = 17024, 4224, 1056
X9 = 9 * US
FLAG = X9 + 8448
LDSB = 163840
PART = 147456
STAMP_OFF = 0x4000000
MBOFF = 256 * PART
def fbits(x): return struct.unpack("<I", struct.pack("<f", x))[0]
CSC = fbits(math.log2(math.e) / math.sqrt(128.0))
THR = fbits(2.0 ** 40)

Smb, Sred, Sout, Sdbg = S(4, 4), S(8, 4), S(12, 4), S(16, 4)
Sx, Swq, Sk, Sv, Swo, Sws = S(20, 4), S(24, 4), S(28, 4), S(32, 4), S(36, 4), S(40, 4)
sW, sGrp, sOff, sC, sGrP, sHH, sQH, sB, sJ = S(3), S(44), S(45), S(46), S(47), S(48), S(49), S(50), S(51)
sT0, sT1, sMode, sX9, sT3, sOw0, sOw1, sA8, sB8, sSt, sT2, sAt = [S(n) for n in range(52, 64)]
sRx, sRw = S(96), S(97)
sCc = S(55)
sRk = S(47)
sP = lambda p: S(98 + p)
ACC = lambda b, f: V(32 * b + 4 * f, 4)
QF = lambda b, t: (V(128 + 16 * b + 4 * t, 4) if b < 4 else A(180 + 4 * t, 4))
SB = lambda k: V(192 + 8 * k, 8)
PB = lambda k: V((208, 212, 248)[k], 4)
NM = lambda b: V(216 + 4 * b, 4)
Kr = lambda y, p: V(236 + 2 * y + p)
Vr = lambda y, hf: V(240 + 2 * y + hf)
vKV = lambda pp: V(244 + pp)
vL16, vTs, vT0, vT1 = V(252), V(253), V(254), V(255)
qWr = lambda win, p: V(216 + 2 * win + p)
qXr = lambda win: V(220 + win)
qX9r = V(222)
qWd = lambda pp: V(225 + pp)
qXd = lambda pp: V(229 + pp)
qX9d, qA8, qB8 = V(233), V(234), V(235)
KF = lambda y, h, t: A(32 * y + 16 * h + 4 * t, 4)
VF = lambda e, y, d: A((96 if y else (64, 200)[e & 1]) + 4 * d, 4)
O9 = lambda d: A(128 + 4 * d, 4)
LS = lambda b: A(160 + 4 * b, 4)
ONES = A(196, 4)
SAV = lambda b: A(248 + b)
aWpat, aWo0, aKv0 = A(253), A(254), A(255)
Aq = lambda fp, kk: A(96 + 8 * fp + 4 * kk, 4)
Bq = lambda I_, kk, b: A((128, 200)[I_ & 1] + 16 * kk + 4 * b, 4)
B9 = lambda I_, kk: A(232 + 8 * (I_ & 1) + 4 * kk, 4)
SEQ = [(I_, h) for I_ in range(6) for h in range(2)] + [(6, 0), (7, 0), (6, 1), (7, 1)]
WQU = {4: 1, 5: 4, 0: 5, 1: 3, 2: 6, 3: 8}
XU = {2: 0, 0: 2, 1: 7}
KVU = lambda slot: (2 * slot, 2 * slot + 1, 4 + 2 * slot, 5 + 2 * slot)
WOU = {0: (0, 1, 4, 5), 1: (2, 3, 0, 1), 2: (4, 5, 2, 3), 3: (0, 1, 6, 7)}
Ao = lambda p, ks, u: A(((64, 0), (32, 96))[p & 1][ks >> 2] + 16 * u + 4 * (ks & 3), 4)
QB = [0, 4, 1, 5, 2, 6, 3, 7, 8]
def Bo(qb, ks):
    if qb < 4: return V(32 * qb + 4 * ks, 4)
    if qb == 4: return A(232 + 4 * ks if ks < 6 else 192 + 4 * (ks - 6), 4)
    if qb == 6: return V(128 + 4 * ks, 4)
    return A({5: 200, 7: 160, 8: 128}[qb] + 4 * ks, 4)
TR, B128 = "ds_read_b64_tr_b16", "ds_read_b128"
sG, sGo = S(96), S(97)
vSt3, vOwn, vOwr = V(232), V(233), V(234)
vF, vOne, vRdy, vPo, vR, vRdA, vO, SEL = V(220), V(221), V(222), V(223), V(224, 3), V(227), V(228, 3), V(160, 8)

class Opt:
    stamps = 0; clk = 0; enc = None; xst = ""; qst = ""; abl = ""
    kvflag = "nt"; stflag = "sc1"; outflag = "sc1"
    qseq = ("x0,n0,w0,w1|p1,x1,w2,p2,w3,p5.3,x2,n1,w4,w5,x3,w6,t2,w7,x4,n2,w8,p4.2,w9,x5,w10,w11,x6,n3,w12,x7,w13,w14,w15,"
            "p2,s0,s1,s2,p3,s3,k0,p5,k1,p9,k2,k3")
    bal = '(12,21)'; winlo = 5; winhi = 7; hx = 'h'; asym = 0; lpf = 0; tflag = ''; rot = 2; rsh = 1; cpf = 2
    ashift = 0; win = 6; winfrom = 2; astep0 = 12.4; astep = 10.4; astep4 = 10.4; astep5 = 10.4; estep = 8.2; wow = 0.5; bxo = 10; w1bo = 4
    ouseq = '00,04,10,14,01,05,11,02,06,15,12,03,07,16,08,13,17,18'
    vmgap = 2; dswgap = 4; maxmem = 1; wiso = 1; hor = 40; lead = 8; w64 = 0
    sepv = 3; bvo = 14; bv7 = 0; bk0 = 20; ba0 = -22; bb0 = 30; bao = 0; bbo = 20; bb7 = 34; ate = 4; merge = 1; ts = 3; dmin = 1; prev = 0; map4 = 0; wmix = 0; wsp = 0; bno = 14; bbo1 = 20; rst = 0; wpace = 0.5; thin = 1; call = 1; cte = -1; tt = 0; win0 = '10,10,10,10,10,9,8,8'; rox = ''; kvm = 1; all0 = 0; cpl = 0; rawp = 0; winp = ''; adw = 0; fb = 0; bko1 = 11; byo = 12; hold = 0; lflag = 'sc1'; l3flag = 'sc1'; rflag = 'sc1'; r0in = 0; r0o = 12; r0step = 7; swin = 0; rwin = 7; polli = 1; b1o = 14; bko = 11; bdo = 100; flo = 104; pollo = 36; ostep0 = 3.5; ostep1 = 3.8; ostep2 = 4; ostep3 = 16; ostep4 = 12
    def __getattr__(s, k): raise AttributeError(k)

def setoff(soff):
    if isinstance(soff, tuple):
        r, add, mask = soff
        if mask == "x": return [salu("s_xor_b32", sOff, r, add)]
        return [salu("s_add_u32", sOff, r, add)] + ([salu("s_and_b32", sOff, sOff, mask)] if mask else [])
    return [salu("s_mov_b32", sOff, soff)]
def group(unit_off, base, voff, srd, soff, flags, tag):
    return [salu("s_add_u32", "m0", base, unit_off)] + setoff(soff) + [dma(voff(pp), srd, sOff, PS * pp, flags, tag) for pp in range(4)]
def g_wq(j): return group(WQU[j % 6] * US, sGrp, qWd, Swq, (sRw, SEQ[j][0] * 524288 + SEQ[j][1] * 128, 0x3fffff), "", f"wq{j}")
def g_x(I_): return group(XU[I_ % 3] * US, sGrp, qXd, Sx, (sRx, I_ * 128, 1023), "", f"x{I_}")
def g_x9(n): return [salu("s_add_u32", "m0", sX9, X9 + (n & 1) * GRP)] + setoff((sRx, n * 256, 1023)) + [dma(qX9d, Sx, sOff, 0, "", f"xn{n}")]
def g_kv(e, part, o, cap=True):
    kv, half = part >> 1, part & 1
    ops = group(KVU(e & 1)[part] * US, sGrp, vKV, (Sk, Sv)[kv], (sRk, e * 16384 + half * (4096 << int(o.kvm)), "x"), o.kvflag, f"{'kv'[kv]}{e}")
    if e < int(o.winfrom) and o.win0:
        for x in ops:
            if x.kind == "dma": x.text = f"s_waitcnt vmcnt({int(o.win0.split(',')[4 * e + part])-1})\n" + x.text
    if cap and int(o.win) and e >= int(o.winfrom):
        for x in ops:
            if x.kind != "dma": continue
            if 4 * e + part in range(*eval(o.bal)):
                g_kv.n = getattr(g_kv, "n", 0) + 1
                x.text = f"s_cbranch_vccz Lw{g_kv.n}\ns_waitcnt vmcnt({int(o.winlo)-1})\nLw{g_kv.n}:\ns_waitcnt vmcnt({int(o.winhi)-1})\n" + x.text
            else:
                g_kv.m = getattr(g_kv, "m", 0) + 1
                x.text = f"s_waitcnt vmcnt({int(o.winp[g_kv.m % len(o.winp)] if o.winp else o.win)-1})\n" + x.text
    return ops
def g_wo(p, hf): return sum((group(WOU[p][part] * US, sGrp, vKV, Swo, (sP(p), part * 65536, 0), "", f"wo{p}{'ab'[hf]}") for part in (2 * hf, 2 * hf + 1)), [])
def w128(o, addr, data, off):
    if not int(o.w64): return [dsw("ds_write_b128", addr, data, off)]
    return [dsw("ds_write_b64", addr, (data[0].sub(2 * z, 2), data[1]), off + 8 * z) for z in range(2)]

def qtok(tok, o):
    c, n = tok[0], int(tok[1:])
    if c == "w": return g_wq(n), n - 6
    if c == "x": return g_x(n), 2 * (n - 3)
    if c == "n": return g_x9(n), (4 * (n - 2) + 2 if n >= 2 else -1)
    if c == "c": return code_touch(V(254, 2), vTs, vL16, shift=3), -1
    if c == "t":
        ops = [salu("s_bfe_u32", sT0, sB, (1 << 16) | 1), salu("s_lshl_b32", sT0, sT0, 24)] + (
               [salu("s_lshl_b32", sT1, sQH, 12), salu("s_add_u32", sT0, sT0, sT1)] if int(o.kvm) else []) + [
               valu("v_mul_u32_u24", vT0, 7, vL16), valu("v_add3_u32", vT0, vT0, vKV(0), sT0)] + (setoff(16384) if 2 < n < 10 else [])
        return ops + [I(f"buffer_load_dword {vTs}, {vT0}, {(Sk, Sv)[z & 1]}, {sOff if z >> 1 else 0} offen", "vml", rd=[vT0, sOff], tag="ct") for z in (range(n) if n < 10 else [n - 10])], -1
    if c == "u":
        ops = [salu("s_bfe_u32", sT0, sB, (1 << 16) | 1), salu("s_xor_b32", sT0, sT0, 1), salu("s_lshl_b32", sT0, sT0, 24),
               salu("s_bfe_u32", sT1, sB, (1 << 16) | 2), salu("s_lshl_b32", sT1, sT1, 17), salu("s_add_u32", sT0, sT0, sT1),
               salu("s_and_b32", sT1, sB, 1), salu("s_lshl2_add_u32", sT1, sT1, sW), salu("s_lshl_b32", sT1, sT1, 14), salu("s_add_u32", sT0, sT0, sT1),
               valu("v_lshl_add_u32", vT0, vL16, 3, sT0)] + setoff(8192)
        return ops + [I(f"buffer_load_dword {vTs}, {vT0}, {Swo}, {sOff if z else 0} offen offset:128", "vml", rd=[vT0, sOff], tag="ct") for z in range(2)], -1
    if c == "s": return g_kv(0, n, o), (10, 10, 11, 12)[n]
    if c == "k": return g_kv(1, n, o), (12, 13, 14, 14)[n]
    raise ValueError(tok)

def code_touch(va, vd, lane, shift, tid=False):
    n = code_touch.n = getattr(code_touch, "n", 0) + 1
    return [valu("v_lshlrev_b32", va[0], shift, lane)] + ([] if tid else
            [salu("s_and_b32", sT0, sB, 7), salu("s_lshl_b32", sT1, sW, 6), salu("s_add_u32", sT0, sT0, sT1), salu("s_lshl_b32", sT0, sT0, 7),
             valu("v_and_b32", va[0], "0x1c00", va[0]), valu("v_add_u32", va[0], sT0, va[0])] if code_touch.thin else
            [salu("s_lshl_b32", sT0, sW, 13), valu("v_add_u32", va[0], sT0, va[0])]) + [
            raw(f"s_getpc_b64 s[52:53]\nLpc{n}:", wr=[sT0, sT1], kind="salu"),
            raw(f"v_min_u32 {va[0]}, Lcode_end-Lpc{n}-4, {va[0]}", rd=[va[0]], wr=[va[0]], kind="valu"),
            valu("v_mov_b32", va[1], 0),
            raw(f"v_lshl_add_u64 {va}, {va}, 0, s[52:53]", rd=[va, sT0, sT1], wr=[va], kind="valu"),
            I(f"global_load_dword {vd}, {va}, off", "vml", rd=[va], wr=[], tag="ct")]

def prologue(o):
    P = []; a = P.append
    v = lambda n: V(n)
    a(raw("s_cmp_ge_u32 s2, 256")); a(raw("s_cbranch_scc1 Lend"))
    a(raw("s_load_dwordx16 s[4:19], s[0:1], 0"))
    if int(o.stamps): a(raw("s_memrealtime s[64:65]"))
    a(valu("v_lshrrev_b32", v(1), 6, v(0)))
    if int(o.call):
        a(salu("s_bfe_u32", sT2, S(2), (3 << 16) | 3)); a(valu("v_lshrrev_b32", v(3), 2, v(0))); a(valu("v_lshl_add_u32", v(3), v(3), 3, sT2))
        P += code_touch(V(8, 2), vTs, v(3), shift=7, tid=True)
    elif int(o.cpf) and not int(o.cpl): P += code_touch(V(8, 2), vTs, v(0), shift=int(o.cpf) + 3, tid=True)
    a(valu("v_readfirstlane_b32", sW, v(1)))
    a(valu("v_mov_b32", v(2), "0xff800000")); a(salu("s_mov_b32", sMode, 0))
    for b in range(5): a(valu("v_accvgpr_write_b32", SAV(b), v(2)))
    a(raw("Lrestart:", kind="label"))
    L, t1, t2, t3, t4, t5, t6 = v(0), v(1), v(2), v(3), v(4), v(5), v(6)
    a(valu("v_mbcnt_lo_u32_b32", L, -1, 0)); a(valu("v_mbcnt_hi_u32_b32", L, -1, L))
    if int(o.map4):
        a(salu("s_bfe_u32", sB, S(2), (4 << 16) | 3))
        a(salu("s_and_b32", sT0, S(2), 7)); a(salu("s_lshr_b32", sT1, S(2), 7)); a(salu("s_lshl1_add_u32", sJ, sT0, sT1))
    else:
        a(salu("s_and_b32", sT0, S(2), 1)); a(salu("s_bfe_u32", sT1, S(2), (3 << 16) | 3)); a(salu("s_lshl3_add_u32", sB, sT0, sT1))
        a(salu("s_bfe_u32", sT0, S(2), (2 << 16) | 1)); a(salu("s_lshr_b32", sT1, S(2), 6)); a(salu("s_lshl2_add_u32", sJ, sT0, sT1))
    a(salu("s_lshr_b32", sHH, sW, 1)); a(salu("s_and_b32", sQH, sW, 1))
    a(salu("s_mul_i32", sGrp, sW, GRP)); a(salu("s_mul_i32", sX9, sW, PS))
    a(salu("s_add_u32", sT3, sB, sJ)); a(salu("s_lshl_b32", sT0, sT3, 0 if int(o.asym) else int(o.rsh))); a(salu("s_and_b32", sT0, sT0, int(o.rot)))
    if o.rox:
        a(salu("s_lshr_b32", sT1, S(2), 1))
        a({"b": salu("s_and_b32", sT1, S(2), 1), "h": salu("s_and_b32", sT1, sT1, 1), "x": salu("s_xor_b32", sT1, sT1, S(2))}[o.rox])
        a(salu("s_and_b32", sT1, sT1, 1)); a(salu("s_add_u32", sT0, sT0, sT1))
    a(salu("s_lshl_b32", sRx, sT0, 8)); a(salu("s_lshl_b32", sRw, sT0, 20))
    a(valu("v_and_b32", t1, 7, L)); a(valu("v_lshlrev_b32", t1, 4, t1))
    a(valu("v_lshrrev_b32", t2, 3, L)); a(valu("v_lshl_add_u32", t3, t2, 12, t1))
    a(salu("s_lshl_b32", sT0, sW, 15)); a(salu("s_add_u32", sT0, sT0, 128))
    a(valu("v_add_u32", qXd(0), sT0, t3))
    for pp in range(1, 4): a(valu("v_subrev_u32", qXd(pp), 32 * pp, qXd(0)))
    a(valu("v_and_b32", t4, 3, t2)); a(valu("v_lshl_add_u32", t3, t4, 12, t1))
    a(valu("v_lshrrev_b32", t2, 5, L)); a(valu("v_lshl_add_u32", t3, t2, 7, t3))
    a(salu("s_lshl_b32", sT0, sW, 10)); a(salu("s_add_u32", sT0, sT0, 128 * 1024 + 128))
    a(valu("v_add_u32", qX9d, sT0, t3))
    a(valu("v_lshl_add_u32", t3, t4, 16, t1)); a(valu("v_lshl_add_u32", t3, t2, 15, t3))
    a(salu("s_lshl_b32", sT0, sQH, 18)); a(salu("s_lshl_b32", sT1, sHH, 8)); a(salu("s_add_u32", sT0, sT0, sT1))
    a(valu("v_add_u32", qWd(0), sT0, t3))
    for pp in range(1, 4): a(valu("v_add_u32", qWd(pp), (8192 - PS) * pp, qWd(0)))
    a(salu("s_mov_b32", Sx[2], PART + 128)); a(salu("s_mov_b32", Sx[3], "0x20000")); a(salu("s_mov_b32", Swq[3], "0x20000"))
    a(salu("s_mul_i32", sT2, sB, PART)); a(salu("s_lshl_b32", sT1, sJ, 9)); a(salu("s_sub_u32", Swq[2], 4194304, sT1))
    a(raw("s_waitcnt lgkmcnt(0)"))
    def base(srd, ptr, off, shift=0, size=None):
        a(salu("s_add_u32", srd[0], S(ptr), off)); a(salu("s_addc_u32", srd[1], S(ptr + 1), 0))
        if shift:
            a(salu("s_sub_u32", srd[0], srd[0], shift)); a(salu("s_subb_u32", srd[1], srd[1], 0))
        if size: a(salu("s_mov_b32", srd[2], size + shift)); a(salu("s_mov_b32", srd[3], "0x20000"))
    base(Sx, 4, sT2, 128); base(Swq, 10, sT1)
    if int(o.asym):
        a(raw("s_bitcmp1_b32 s56, 0")); a(raw("s_cbranch_scc0 Lnotouch"))
        a(salu("s_and_b32", sT0, sB, 14)); a(salu("s_lshl4_add_u32", sT0, sT0, sJ)); a(salu("s_lshl_b32", sT0, sT0, 18))
        base(Sk, 6, sT0, 0, 4194304 + 262144)
        if int(o.asym) > 2: base(Sv, 8, sT0, 0, 4194304 + 262144)
        a(salu("s_lshl4_add_u32", sT0, sHH, sQH)); a(salu("s_lshl_b32", sT0, sT0, 13)); a(valu("v_lshl_add_u32", t3, L, 7, sT0))
        a(salu("s_mov_b32", sOff, 4194304))
        for n in range(int(o.asym)):
            if int(o.asym) == 3 and n == 2:
                a(valu("v_lshrrev_b32", t1, 5, L)); a(valu("v_mul_u32_u24", t1, 4194304 - 4096, t1)); a(valu("v_add_u32", t3, t3, t1))
            a(raw(f"buffer_load_dword {vTs}, {t3}, {(Sk, Sv)[n >> 1]}, {sOff if n & 1 else 0} offen {o.tflag}".rstrip(), rd=[t3], kind="vml"))
        a(raw("Lnotouch:", kind="label"))
    lin = []
    if int(o.lpf):
        a = lin.append
        base(Sk, 4, 0, 0, 16 * PART); base(Sv, 10, 0, 0, 4194304)
        a(salu("s_lshl2_add_u32", sT0, S(2), sW)); a(salu("s_mul_i32", sT1, sT0, 2304)); a(salu("s_lshl_b32", sT0, sT0, 12))
        a(valu("v_min_u32", t1, 17, L)); a(valu("v_lshl_add_u32", t1, t1, 7, sT1)); a(valu("v_lshl_add_u32", t3, L, 6, sT0))
        a(I(f"buffer_load_dword {vTs}, {t3}, {Sv}, 0 offen", "vml", rd=[t3], tag="ct"))
        a(I(f"buffer_load_dword {vTs}, {t1}, {Sk}, 0 offen", "vml", rd=[t1], tag="ct"))
    first = []
    for n, tok in enumerate(o.qseq.split("|")[0].split(",")):
        if n == int(o.lpf) - 1: first += lin
        first += qtok(tok, o)[0]
    Q = []; a = Q.append
    if int(o.cpl): a(valu("v_lshl_add_u32", t1, sW, 6, L)); Q += code_touch(V(8, 2), vTs, t1, shift=int(o.cpf) + 3, tid=True)
    a(salu("s_lshl4_add_u32", sT1, sB, sJ))
    a(salu("s_lshl_b32", sT0, sT1, 18)); base(Sk, 6, sT0, 128, 262144); base(Sv, 8, sT0, 128, 262144)
    a(salu("s_mul_i32", sT0, sT1, PART)); base(Sws, 18, sT0, 0, PART)
    a(salu("s_lshl_b32", sT0, sJ, 18)); base(Swo, 12, sT0, 128, 262144)
    base(Sout, 14, sT2, 0, PART)
    a(salu("s_lshl_b32", sT0, sT2, 4)); base(Sred, 18, sT0, 0, 16 * PART)
    a(salu("s_lshl_b32", sT0, sB, 15)); a(salu("s_add_u32", sT0, sT0, MBOFF)); base(Smb, 18, sT0, 0, 32768)
    a(salu("s_mov_b32", Sdbg[2], 256)); a(salu("s_mov_b32", Sdbg[3], "0x20000"))
    a(salu("s_mov_b32", sC, hex(CSC))); a(raw("s_bitcmp1_b32 s50, 1")); a(raw("s_cselect_b64 vcc, -1, 0"))
    a(salu("s_lshr_b32", sT3, sJ, 2)); a(salu("s_lshl_b32", sT0, sB, int(o.fb))); a(salu("s_sub_u32", sT3, sT3, sT0))
    for p in range(4): a(salu("s_add_u32", sT0, sT3, (p - int(o.ts)) & 3)); a(salu("s_and_b32", sT0, sT0, 3)); a(salu("s_lshl_b32", sP(p), sT0, 8))
    a(salu("s_and_b32", sT0, sT3, 3)); a(salu("s_and_b32", sT1, sJ, 3)); a(salu("s_lshl2_add_u32", sT3, sT0, sT1))
    a(valu("v_and_b32", t1, 15, L)); a(valu("v_lshlrev_b32", t1, 4, t1))
    a(valu("v_lshrrev_b32", t5, 4, L))
    a(salu("s_add_u32", sT0, sW, sMode)); a(salu("s_lshl4_add_u32", sAt, sT0, sB)); a(salu("s_lshl_b32", sAt, sAt, 4))
    a(salu("s_lshl_b32", sT0, sMode, 6)); a(salu("s_add_u32", sT0, sT0, sW)); a(salu("s_lshl_b32", sT0, sT0, 9))
    a(valu("v_lshl_add_u32", t6, L, 3, sT0)); a(salu("s_lshl_b32", sOff, sT3, 11)); a(valu("v_mov_b64", V(8, 2), 0))
    a(vstore(V(8, 2), t6, Smb, sOff, 0, "sc1", tag="mbz", op="buffer_store_dwordx2"))
    a(valu("v_lshl_add_u32", t3, t5, 13, t1))
    a(salu("s_lshl_b32", sT0, sHH, 15)); a(salu("s_lshl_b32", sT1, sQH, 12)); a(salu("s_add_u32", sT0, sT0, sT1))
    a(salu("s_add_u32", sT0, sT0, 128)); a(valu("v_add_u32", t3, sT0, t3)); a(valu("v_accvgpr_write_b32", aWo0, t3))
    a(valu("v_lshlrev_b32", vL16, 4, L))
    a(salu("s_lshl_b32", sT0, sHH, 17)); a(salu("s_lshl_b32", sT1, sQH, 13 - int(o.kvm))); a(salu("s_add_u32", sT0, sT0, sT1))
    a(salu("s_add_u32", sT0, sT0, 128)); a(valu("v_add_u32", vKV(0), sT0, vL16)); a(valu("v_accvgpr_write_b32", aKv0, vKV(0)))
    for pp in range(1, 4): a(valu("v_subrev_u32", vKV(pp), 32 * pp, vKV(0)))
    a(salu("s_xor_b32", sT0, sW, 1)); a(salu("s_mul_i32", sGrP, sT0, GRP))
    a(salu("s_add_u32", sA8, sGrp, 8 * US)); a(salu("s_add_u32", sB8, sGrP, 8 * US))
    a(valu("v_add_u32", qA8, sA8, vL16)); a(valu("v_add_u32", qB8, sB8, vL16))
    a(valu("v_and_b32", t1, 3, L)); a(valu("v_mul_u32_u24", t1, PS, t1)); a(valu("v_lshl_add_u32", t1, t5, 4, t1))
    a(valu("v_bfe_u32", t3, L, 2, 2)); a(valu("v_lshl_add_u32", t3, t3, 7, t1))
    a(valu("v_add_u32", qX9r, X9, t3))
    a(salu("s_mul_i32", sT0, sQH, 2 * GRP)); a(valu("v_add_u32", qXr(0), sT0, t3))
    a(valu("v_add_u32", qXr(1), 7 * US, qXr(0)))
    a(valu("v_bfe_u32", t3, L, 2, 1)); a(valu("v_mul_u32_u24", t3, US, t3)); a(valu("v_add_u32", t1, t1, t3))
    a(valu("v_bfe_u32", t3, L, 3, 1)); a(valu("v_lshl_add_u32", t1, t3, 8, t1))
    a(salu("s_lshl_b32", sT0, sQH, 6)); a(salu("s_xor_b32", sT1, sT0, 64))
    a(valu("v_add_u32", t3, sT0, t1)); a(valu("v_add_u32", t6, sT1, t1))
    a(valu("v_add_u32", Kr(0, 0), sGrp, t3)); a(valu("v_add_u32", Kr(0, 1), sGrp, t6))
    a(valu("v_add_u32", Kr(1, 0), sGrP, t3)); a(valu("v_add_u32", Kr(1, 1), sGrP, t6))
    a(valu("v_bfe_u32", t1, L, 2, 2)); a(valu("v_mul_u32_u24", t1, PS, t1))
    a(valu("v_and_b32", t3, 1, L)); a(valu("v_lshl_add_u32", t6, t3, 4, t1))
    a(valu("v_bfe_u32", t3, L, 1, 1)); a(valu("v_lshl_add_u32", t6, t3, 3, t6))
    a(valu("v_lshl_add_u32", t3, t5, 7, t6))
    a(salu("s_mul_i32", sT2, sHH, 2 * GRP)); a(salu("s_add_u32", sT2, sT2, US)); a(valu("v_add_u32", t3, sT2, t3))
    a(valu("v_add_u32", qWr(0, 0), sT0, t3)); a(valu("v_add_u32", qWr(0, 1), sT1, t3))
    a(valu("v_add_u32", qWr(1, 0), 4 * US, qWr(0, 0))); a(valu("v_add_u32", qWr(1, 1), 4 * US, qWr(0, 1)))
    a(valu("v_and_b32", t4, 1, t5))
    a(valu("v_lshl_add_u32", t6, t2, 8, t6)); a(valu("v_mul_u32_u24", t3, GRP, t4)); a(valu("v_add_u32", t6, t6, t3))
    a(salu("s_lshl_b32", sT2, sW, 6)); a(valu("v_add_u32", t6, sT2, t6)); a(valu("v_accvgpr_write_b32", aWpat, t6))
    a(valu("v_lshl_add_u32", t1, t2, 8, t1)); a(valu("v_and_b32", t3, 3, L)); a(valu("v_lshl_add_u32", t1, t3, 3, t1))
    a(valu("v_mul_u32_u24", t3, US, t4)); a(valu("v_add_u32", t1, t1, t3)); a(valu("v_add_u32", t1, 4 * US, t1))
    a(salu("s_lshl_b32", sT0, sT0, 1)); a(salu("s_lshl_b32", sT1, sT1, 1))
    a(valu("v_add_u32", t3, sT0, t1)); a(valu("v_add_u32", t6, sT1, t1))
    a(valu("v_add_u32", Vr(0, 0), sGrp, t3)); a(valu("v_add_u32", Vr(0, 1), sGrp, t6))
    a(valu("v_add_u32", Vr(1, 0), sGrP, t3)); a(valu("v_add_u32", Vr(1, 1), sGrP, t6))
    a(salu("s_and_b32", sRk, {"h": sHH, "b": sB, "0": 0}[o.hx], 1)); a(salu("s_lshl_b32", sRk, sRk, 12 + int(o.kvm)))
    a(salu("s_lshl1_add_u32", sT2, sQH, sHH)); a(salu("s_lshl_b32", sT2, sT2, 12)); a(salu("s_add_u32", sT2, sT2, 6 * US))
    a(salu("s_lshl4_add_u32", sOw0, sT0, sT2)); a(salu("s_lshl4_add_u32", sOw1, sT1, sT2))
    a(valu("v_mov_b32", t1, "0x3f803f80"))
    for r in range(4): a(valu("v_accvgpr_write_b32", (ONES[r], "ones"), t1))
    return P, first, Q

def build_main(o):
    code_touch.thin = int(o.thin)
    P, first, Q = prologue(o)
    sc = Sched(vmgap=int(o.vmgap), dswgap=int(o.dswgap), maxmem=int(o.maxmem), wiso=int(o.wiso), horizon=int(o.hor))
    F = sc.f
    nstamp = [1]
    def stamp(g, after=()):
        if int(o.stamps):
            n = nstamp[0]; nstamp[0] += 1
            F(raw(f"s_memrealtime s[{64+2*n}:{65+2*n}]"), g, g, after=after)
    nextvm = [0]
    def spread(ops, lo, step, q="dma", after=(), cap=None):
        out = []; pos = max(lo, nextvm[0]); pend = []
        for x in ops:
            pend.append(x)
            if x.kind in ("dma", "vml", "vms"):
                a_, b_ = int(pos), int(pos + step)
                if cap is not None: a_, b_ = min(a_, cap), min(b_, cap)
                for y in pend[:-1]: out.append(F(y, max(min(lo, b_), min(a_ - 3, b_)), b_, q=q, after=after))
                out.append(F(x, a_, b_, q=q, after=after)); pend = []
                if x.tag not in ('at', 'ct'): pos += step
        assert not pend
        nextvm[0] = pos
        return out
    cur = {}; lastrd = {}; firstrd = {}; lastwr = {}
    def M(d, dtag, a_, b_, c):
        cc = (d, cur[str(d)]) if c == "acc" else c
        i = mfma((d, dtag), a_, b_, cc); n = sc.m(i); cur[str(d)] = dtag
        for r, t in i.rd.items():
            lastrd[(r, t)] = n; firstrd.setdefault((r, t), n)
        lastwr[str(d)] = n
        return n
    lr = lambda reg, tag: max(lastrd[(r, tag)] for r in reg.regs())
    fr_ = lambda reg, tag: min(firstrd[(r, tag)] for r in reg.regs())
    for i in first + Q: F(i, -1, -1, q="dma")
    k0 = {}; qdone = {}
    for j, (I_, hf) in enumerate(SEQ):
        k0[j] = sc.n
        if j < 15: order = [(fp, b) for fp in range(4) for b in range(5) if b < 4 or fp < 2]
        else: order = [(fp, 4) for fp in range(2)] + [(fp, b) for b in range(4) for fp in range(4)]
        for fp, b in order:
            d = ACC(b, 4 * hf + fp) if b < 4 else SB(hf).sub(4 * fp, 4)
            for kk in range(2):
                bb = (Bq(I_, kk, b) if b < 4 else B9(I_, kk), f"x{I_}")
                n = M(d, "Qacc" if (I_, kk) == (7, 1) else f"q{I_}.{kk}", (Aq(fp, kk), f"w{j}"), bb, 0 if (I_, kk) == (0, 0) else "acc")
            qdone[str(d)] = n
    k0[16] = sc.n
    units = []; U = {}; G = {}; pre0 = {}; preL = {}
    P7 = {0: PB(0), 1: PB(1), 8: PB(2), 2: NM(0), 3: NM(4), 4: NM(1), 5: NM(2)}
    def pre(b):
        pre0[b] = sc.n
        for t in range(4): preL[b] = M(NM(b), f"pm{b}", (KF(0, 0, t), "k0"), (QF(b, t), f"Q{b}"), 0 if t == 0 else "acc")
    def qk(e, u):
        n = len(units); b, y = (u >> 1, u & 1) if u < 8 else (4, 0)
        s_ = SB(n & 1); p_ = PB(u % 3) if e < 7 else P7.get(u, s_.sub(0, 4))
        un = dict(e=e, u=u, b=b, y=y, S=s_, P=p_, n=n, q0=sc.n, hl=[0, 0])
        for h in range(2):
            for t in range(4):
                un["hl"][h] = M(s_.sub(4 * h, 4), f"s{n}", (KF(y, h, t), f"k{e}"), (QF(b, t), f"Q{b}"), (NM(b), f"nm{b}") if t == 0 else "acc")
        units.append(un); U[(e, u)] = un
    def pv(e, b, ds=range(-1, 8)):
        us = [U[(e, 2 * b)], U[(e, 2 * b + 1)]] if b < 4 else [U[(e, 8)]]
        g = G.setdefault((e, b), dict(p0=sc.n))
        for d in ds:
            acc = LS(b) if d < 0 else (ACC(b, d) if b < 4 else O9(d))
            for k, un in enumerate(us):
                a_ = (ONES, "ones") if d < 0 else (VF(e, un["y"], d), f"v{e}")
                g["pL"] = M(acc, f"o{e}.{k}" if k + 1 < len(us) else f"o{e}", a_, (un["P"], f"p{un['n']}"), 0 if e == 0 and k == 0 else "acc")
        for un in us: un["g"] = g
    st0 = {}
    for e in range(8):
        st0[e] = sc.n
        if e == 0: pre(0); pre(1)
        qk(e, 0); qk(e, 1)
        if e: pv(e - 1, 4)
        if e < 7:
            for b in range(1, 4):
                if e == 0: pre(b + 1)
                qk(e, 2 * b); qk(e, 2 * b + 1); pv(e, b - 1)
            qk(e, 8); pv(e, 3)
        else:
            prv = int(o.prev)
            for u in (8, 2, 3, 4, 5, 6, 7):
                qk(e, u)
                if u == 3 and prv: pv(e, 4, [-1])
            p7 = sc.n
            for b in ((0, 1, 2, 3) if prv else (4, 0, 1, 2)): pv(e, b, [-1])
            pv(e, 4, range(8))
            if not prv: pv(e, 3, [-1])
            for b in range(4): pv(e, b, range(8))
    attn_end = sc.n - 1
    odone = dict(lastwr)
    ou0 = {}; ouh = {}
    OU = [(p, qb) for p in range(4) for qb in QB]
    mg = int(o.merge)
    if mg:
        OU[:18] = [(int(z[0]), int(z[1])) for z in o.ouseq.split(",")]
    for n, (p, qb) in enumerate(OU):
        if True:
            ou0[n] = sc.n
            for u in range(2):
                for ks in range(8):
                    ouh[(n, u)] = M(SB(n & 1).sub(4 * u, 4), f"r{n}", (Ao(p, ks, u), f"wo{p}"), (Bo(qb, ks), f"of{qb}"), 0 if ks == 0 else "acc")
    last = sc.n - 1
    ou0[36] = ou0[37] = last + 1
    def rdA(j, fp):
        u = WQU[j % 6]; win = 0 if u <= 4 else 1
        return [dsr(TR, (Aq(fp, kk).sub(2 * h, 2), f"w{j}"), qWr(win, fp >> 1), (u - 1 - 4 * win) * US + kk * GRP + 512 * h + 32 * (fp & 1))
                for kk in range(2) for h in range(2)]
    def rdB(I_):
        u = XU[I_ % 3]; win = 1 if u == 7 else 0
        l = [dsr(B128, (Bq(I_, kk, b), f"x{I_}"), qXr(win), (u - 7 * win) * US + (b >> 1) * GRP + (b & 1) * 512 + kk * 64)
             for b in range(4) for kk in range(2)]
        return l + [dsr(B128, (B9(I_, kk), f"x{I_}"), qX9r, ((I_ >> 1) & 1) * GRP + (I_ & 1) * 512 + kk * 64) for kk in range(2)]
    bpre = F(barrier(vm=("x0", "xn0", "wq0")), -1, -1, q="dma")
    stamp(-1, [bpre])
    l = rdB(0)
    prev = [F(x, -1, -1, q="lds", after=[bpre]) for x in rdA(0, 0) + l[:6]]
    prev += [F(x, -1, 7, q="lds", after=[bpre]) for x in l[6:] + rdA(0, 1) + rdA(0, 2) + rdA(0, 3)]
    BQ = {}
    for j in range(16):
        g = k0[j] + (14 if j == 0 else 9)
        nI = SEQ[j + 1][0] if j < 15 and SEQ[j + 1][1] == 0 else None
        vm = []
        if j < 15: vm.append(f"wq{j+1}")
        if nI is not None: vm += [f"x{nI}", f"xn{nI//2}"]
        if j == 10: vm = ["wq15", "all0"] if int(o.all0) else vm + ["mbz"]
        bq = BQ[j] = F(barrier(vm=vm), g, g, after=prev)
        if o.qst and j in eval(o.qst): stamp(g, [bq])
        prev = []
        if j < 15:
            for fp in range(4):
                for x, kk in zip(rdA(j + 1, fp), (0, 0, 1, 1)):
                    lo = max(lr(Aq(fp, kk), f"w{j}"), g)
                    prev.append(F(x, lo, max(min(fr_(Aq(fp, kk), f"w{j+1}") - 6, k0[j + 1] + 3), lo), q="ldsA", after=[bq]))
        if nI is not None:
            for n, x in enumerate(rdB(nI)): prev.append(F(x, g, min(k0[j + 1] - 7 + n, k0[j + 1] + 2), q="ldsB", after=[bq]))
    step = 3.0; seen = set(o.qseq.split("|")[0].split(","))
    for tok in o.qseq.split("|")[1].split(","):
        if tok[0] == "@": nextvm[0] = max(nextvm[0], int(float(tok[1:]) * 36)); continue
        if tok[0] == "+": nextvm[0] += int(tok[1:]); continue
        if tok[0] == "p": step = float(tok[1:]); continue
        seen.add(tok)
        if tok[0] == "c" and int(o.call): continue
        ops, dep = qtok(tok, o)
        spread(ops, BQ[dep].lo if dep >= 0 else 0, step, after=[BQ[dep]] if dep >= 0 else [])
    assert len([t for t in seen if t[0] not in "ctu"]) == 16 + 8 + 4 + 4 + 4, sorted(seen)
    stamp(k0[15])
    if o.xst:
        for g_ in eval(o.xst): stamp(g_)
    def pack_q(src, dst, tdst, hi):
        lo = min(max(qdone[str(src.sub(0, 4))], qdone[str(src.sub(4, 4))]) + 3, hi)
        ops = [valu("v_mul_f32", (src[m], "t"), sC, (src[m], "Qacc")) for m in range(8)]
        ops += [valu("v_cvt_pk_bf16_f32", (dst[m], "t2"), (src[2 * m], "t"), (src[2 * m + 1], "t")) for m in (0, 2, 1, 3)]
        ops += [swap("v_permlane32_swap_b32", (dst[m], "t2"), (dst[m + 2], "t2"), tdst, tdst) for m in range(2)]
        return [F(x, lo, hi, q="qe") for x in ops]
    q9w = []
    for hf in range(2):
        l = pack_q(SB(hf), PB(hf), "q9p", pre0[0] - 2)
        q9w.append(F(dsw("ds_write_b128", qA8, (PB(hf), "q9p"), 1024 * hf), BQ[15].lo, min(U[(0, 0)]["q0"] - 1, pre0[2] - 3 + int(o.ba0)), q="q9w", after=[l[-1], BQ[15]]))
        for t, b in ([(t, b) for t in (0, 1) for b in range(4)] if hf == 0 else [(t, b) for b in range(4) for t in (2, 3)]):
            pack_q(V(32 * b + 8 * t, 8), QF(b, t), f"Q{b}", pre0[b] - 1 + t)
    for b in range(5):
        n = NM(b); pm = f"pm{b}"; nm = f"nm{b}"; hi = fr_(n, nm) - 1
        ops = [valu("v_accvgpr_read_b32", vT1, SAV(b)),
               valu("v_max3_f32", n[0], (n[0], pm), (n[1], pm), vT1), valu("v_max3_f32", n[0], n[0], (n[2], pm), (n[3], pm)),
               valu("v_mov_b32", n[1], n[0]), swap("v_permlane32_swap_b32", n[0], n[1]), valu("v_max_f32", n[0], n[0], n[1]),
               valu("v_mov_b32", n[1], n[0]), swap("v_permlane16_swap_b32", n[0], n[1]),
               I(f"v_min_f32_e64 {n[0]}, -{n[0]}, -{n[1]}", "valu", rd=[n[0], n[1]], wr=[(n[0], nm)]),
               valu("v_mov_b32", (n[1], nm), (n[0], nm)), valu("v_mov_b64", (n.sub(2, 2), nm), (n.sub(0, 2), nm))]
        for x in ops: F(x, min(preL[b] + 3, hi), hi, q="nm")
    def rdK(e, y, lo, after, hi=10**9):
        out = []
        for h in range(2):
            for t in range(4):
                r = KF(y, h, t); l_ = max(lo, lr(r, f"k{e-1}")) if e else lo
                x = dsr(B128, (r, f"k{e}"), Kr(y, t & 1), (e & 1) * 2 * US + 512 * h + 128 * (t >> 1))
                out.append(F(x, l_, max(l_, min(fr_(r, f"k{e}") - 6, hi)), q=f"ldsK{y}", after=after))
        return out
    def rdV(e, y, lo, after, hi):
        out = []
        for d in range(8):
            r = VF(e, y, d); l_ = max(lo, lr(r, f"v{e-1}")) if e and y else lo
            for h in range(2):
                x = dsr(TR, (r.sub(2 * h, 2), f"v{e}"), Vr(y, d >> 2), (e & 1) * 2 * US + 512 * h + 32 * (d & 3))
                out.append(F(x, l_, max(l_, min(fr_(r, f"v{e}") - 6, hi)), q=f"ldsV{y}", after=after))
        return out
    BB = {}
    vset = lambda src: [valu("v_accvgpr_read_b32", vKV(0), src)] + [valu("v_subrev_u32", vKV(pp), 32 * pp, vKV(0)) for pp in (1, 2, 3)]
    for e in range(8):
        if e == 0:
            g = k0[16] - int(o.bk0)
            bk = F(barrier(vm=["k0"], lgkm=False), g, g, after=[BQ[15]])
            gv = pre0[2] - 1 + int(o.ba0)
            bv = F(barrier(vm=["v0"]), gv, gv, after=q9w + [bk])
            for t in range(4):
                F(dsr(B128, (QF(4, t), "Q4"), qB8 if t & 1 else qA8, 1024 * (t >> 1)), gv, pre0[4] - 6, q="ldsQ9", after=[bv])
        else:
            g = U[(e - 1, 8)]["q0"] - 1 - int(o.bao)
            sep = e == 7 or e >= int(o.sepv)
            bk = F(barrier(vm=[f"k{e}"] + ([] if sep else [f"v{e}"]), lgkm=False), g, g, after=[BB[e - 1]])
            bv, gv = bk, g
            if sep and e < 7:
                gv = st0[e] + int(o.bvo)
                bv = F(barrier(vm=[f"v{e}"], lgkm=False), gv, gv, after=[bk])
            if e == 7:
                gv = p7 - 1 - int(o.bv7)
                gx = st0[7] + int(o.bxo)
                bx = F(barrier(vm=["wo0a"]), gx, gx, after=[bk])
                gz = U[(7, 7)]["q0"] - 1
                bz = F(barrier(vm=["wo0b"]), gz, gz, after=[bx]) if prv else bx
                bv = F(barrier(vm=["v7"]), gv, gv, after=[bz])
                stamp(gv, [bv])
        gb = G[(e, 0)]["p0"] + int(o.bbo if e >= int(o.sepv) else o.bbo1) if e < 7 else p7 + int(o.bb7)
        if e == 0 and int(o.bb0): gb = gv + int(o.bb0)
        rk = rdK(e, 0, g, [bk]) + rdK(e, 1, g, [bk], gx - 4 if e == 7 else 10**9)
        rv = rdV(e, 0, gv, [bv], gb - 5) + rdV(e, 1, gv, [bv], gb - 5)
        bb = BB[e] = F(barrier(vm=["wo0b" if int(o.wsp) else "wo1a"] if e == 7 else []), gb, gb, after=rk + rv)
        if e in (0, 3, 6): stamp(gb, [bb])
        ops = []
        if e < 6:
            for part in range(4 if e < 5 else 2): ops += g_kv(e + 2, part, o)
        if e == int(o.ate):
            ops += [valu("v_lshl_add_u32", vT0, vL16, 4, sAt), valu("v_mov_b32", vT1, 1),
                    vstore(vT1, vT0, Sdbg, 0, 0, "", tag="at", op="buffer_atomic_add")]
        if e == int(o.cte) and int(o.cpf): ops += code_touch(V(254, 2), vTs, vL16, shift=3)
        if ops: spread(ops, gb, float({0: o.astep0, 4: o.astep4, 5: o.astep5}.get(e, o.astep)), after=[bb])
    bx.after += rk
    wts = [1.0] * 8; win = int(o.win)
    def allowed(limit):
        m = 0; c = 0.0
        while m < len(wts) and c + wts[-1 - m] <= limit + 1e-9: c += wts[-1 - m]; m += 1
        return m
    def capped(ops, w):
        for x in ops:
            if x.kind == "dma": x.text = f"s_waitcnt vmcnt({allowed(win - w)})\n" + x.text; wts.append(w)
        return ops
    es = float(o.estep); wsp = int(o.wsp)
    if int(o.wmix):
        for hf in range(2):
            spread(capped(vset(aWo0) + g_wo(0, hf), float(o.wow)), BB[6].lo, es * float(o.wpace), after=[BB[6]])
            spread(capped(vset(aKv0) + g_kv(7, 2 + hf, o, False), 1.0), BB[6].lo, es, after=[BB[5]])
    else:
        spread(capped(vset(aWo0) + g_wo(0, 0) + ([] if wsp else g_wo(0, 1)), float(o.wow)), BB[6].lo, es * float(o.wpace), after=[BB[6]])
        spread(capped(vset(aKv0) + g_kv(7, 2, o, False) + g_kv(7, 3, o, False), 1.0), BB[6].lo, es, after=[BB[5]])
    early = vset(aWo0) + (g_wo(0, 1) if wsp else []) + g_wo(1, 0)
    for n in range(win - 1, 0, -1):
        g_ = min(int(nextvm[0]), gv - 3)
        if n >= int(o.dmin): F(raw(f"s_waitcnt vmcnt({allowed(n)})"), g_, g_ + 2, q="dma")
        idx = [k for k, x in enumerate(early) if x.kind == "dma"][:2]
        if idx:
            spread(early[:idx[-1] + 1], max(g_ + 1, gx), (es - 2) / 2, after=[bx]); early = early[idx[-1] + 1:]; wts += [0.0] * len(idx)
        nextvm[0] = max(nextvm[0], g_ + es)
    assert wsp or not early
    nextvm[0] = 0
    spread(early + g_wo(1, 1), gv + int(o.w1bo), float(o.ostep0), after=[bv])
    if prv: spread(g_wo(2, 0), gv + 1, float(o.ostep1), after=[bv])
    elif not wsp: spread(g_wo(2, 0), BB[7].lo + 1, float(o.ostep1), after=[BB[7]])
    vA8, vLMw, vW, vOw, vB8, vLMr = Kr(0, 0), Kr(0, 1), (Kr(1, 0), Kr(1, 1)), (Vr(0, 0), Vr(0, 1)), Vr(1, 0), Vr(1, 1)
    vBr, vFl, vSt, vO9 = (PB(2)[0], PB(2)[1]), vLMw, vLMr, vB8
    g = U[(7, 8)]["q0"]
    adr = [valu("v_bfe_u32", vLMw, vL16, 1, 7), valu("v_add_u32", vLMw, sA8, vLMw), dsw("ds_write_b32", vLMw, (NM(4)[0], "nm4"), 4096 + 4),
           valu("v_accvgpr_read_b32", vW[0], aWpat), valu("v_add_u32", vW[1], 4 * US, vW[0]), valu("v_add_u32", vA8, sA8, vL16)]
    adr = [F(x, gx, g + 4, q="adr", after=rk) for x in adr]
    bl = bz if prv else BB[7]
    bl.after.append(F(dsw("ds_write_b32", vLMw, (LS(4)[0], "o7"), 4096), G[(7, 4)]["p0"] + 4, bl.lo - 2, q="adr"))
    if prv: vLMr = vT0
    adrl = [F(x, gx if prv else p7, bl.lo + 3, q="adr", after=[] if prv else rv) for x in (valu("v_bfe_u32", vLMr, vL16, 1, 7), valu("v_add_u32", vLMr, sB8, vLMr))]
    adr2 = [valu("v_add_u32", vOw[0], sOw0, vL16), valu("v_add_u32", vOw[1], sOw1, vL16), valu("v_add_u32", vB8, sB8, vL16)]
    adr2 = [F(x, p7, BB[7].lo + 3, q="adr", after=rv) for x in adr2]
    lastP = {}
    for un in units:
        n, s_, p_ = un["n"], un["S"], un["P"]
        nx = units[n + 2]["q0"] if n + 2 < len(units) else 10**9
        pfree = -1; aft = []
        if str(p_) in lastP: pfree = lastP[str(p_)]["g"]["pL"]
        for b in range(5):
            if str(p_) == str(NM(b)): pfree = lr(p_, f"nm{b}") + 1
        if str(p_) == str(NM(4)): aft = [adr[2]]
        if n < 2: aft = q9w
        lastP[str(p_)] = un
        ex = []
        for j in range(8):
            hi = min(nx - 1 + 4 * (j >> 2), un["g"]["p0"] - 1, gv if prv else 10**9); lo = min(un["hl"][j >> 2] + 3, hi)
            ex.append(F(trans("v_exp_f32", (s_[j], f"e{n}"), (s_[j], f"s{n}")), lo, max(lo, hi - 1), q="exp"))
        for m in range(4):
            hi = min(nx - 1 + 4 * (m >> 1), un["g"]["p0"] - 1, gv if prv else 10**9)
            x = F(valu("v_cvt_pk_bf16_f32", (p_[m], f"p{n}"), (s_[2 * m], f"e{n}"), (s_[2 * m + 1], f"e{n}")),
                  max(ex[2 * m + 1].lo, pfree), hi, q="cvt", after=[ex[2 * m + 1]] + aft)
    if prv: bv.after.append(x)
    def rdAo(p, kss=range(8)):
        return [dsr(TR, (Ao(p, ks, u).sub(2 * h, 2), f"wo{p}"), vW[WOU[p][ks >> 1] >> 2],
                    (WOU[p][ks >> 1] & 3) * US + (ks & 1) * 2 * GRP + 512 * h + 32 * u)
                for u in range(2) for ks in kss for h in range(2)]
    fu = [OU.index((0, qb)) for qb in (0, 1, 2, 3, 8)]
    gB = [attn_end - int(o.b1o)] + [ou0[fu[k]] - int(o.bko1 if k == 1 and mg else o.bko) for k in range(1, 5)]
    pub = [[] for _ in range(5)]
    lm = NM(3)
    mr = [dsr("ds_read_b64", lm.sub(0, 2), vLMw, 4096), dsr("ds_read_b64", lm.sub(2, 2), vLMr, 4096)]
    g = max(bl.lo, lr(lm, "nm3") + 1)
    mr = [F(x, g, min(g + 10, gv) if prv else g + 10, q="lm", after=[bl, adrl[1]]) for x in mr]
    op1 = [valu("v_sub_f32", lm[1], lm[1], lm[3]), trans("v_exp_f32", lm[1], lm[1]), salu("s_lshl_b32", sT0, sW, 2),
           valu("v_fma_f32", vTs, lm[2], lm[1], lm[0]), trans("v_rcp_f32", lm[2], vTs), salu("s_add_u32", sT0, sT0, 6 * US),
           valu("v_add_u32", vFl, sT0, vL16), valu("v_mul_f32", lm[1], lm[1], lm[2])]
    op2 = []
    for b in range(4): op2 += [valu("v_accvgpr_read_b32", lm[3], (LS(b)[0], "o7")), valu("v_add_f32", vTs, vTs, lm[3])]
    op2.append(dsw("ds_write_b32", vFl, vTs, FLAG - 6 * US))
    op3 = [valu("v_add_u32", vBr[1], 6 * US, vL16), salu("s_lshl_b32", sT0, sW, 10), valu("v_add_u32", vSt, sT0, vL16)]
    lsum = [F(x, gv if prv else BB[7].lo + 4, gv if prv else gB[0] - 4, q="lm") for x in op1]
    if prv: bv.after.append(lsum[-1])
    lsum += [F(x, odone[str(LS(3))] + 4, gB[0] - 4, q="lm") for x in op2]
    lsum += [F(x, G[(7, 4)]["pL"], gB[0] - 2, q="lm", after=rv) for x in op3]
    pub[0] += lsum
    rp = int(o.rawp)
    raww = [F(x, gB[rp - 1] + 12 if rp else G[(7, 4)]["pL"] + 4, gB[rp] - 36 + 5 * d if rp else gB[rp] - 4, q="raw" if rp else "ow", after=[adr[-1]])
            for d in range(4) for x in w128(o, vA8, (O9(4 + d), "o7"), 1024 * d)]
    pub[rp] += raww
    def norm_block(b):
        a32 = V(32 * b, 32); hi = gB[b] - 4
        ops = [valu("v_accvgpr_read_b32", vT1, (LS(b)[0], "o7")), trans("v_rcp_f32", vT0, vT1)]
        for x in ops: F(x, odone[str(LS(b))] + 4, hi, q="ep", after=mr)
        for k in range(4):
            ops = [valu("v_mul_f32", (a32[8 * k + m], "n"), (a32[8 * k + m], "o7"), vT0) for m in range(8)]
            ops += [valu("v_cvt_pk_bf16_f32", (a32[8 * k + m], "of"), (a32[8 * k + 2 * m], "n"), (a32[8 * k + 2 * m + 1], "n")) for m in range(4)]
            lo = odone[str(ACC(b, 2 * k + 1))] + 3; hk = max(lo, hi - 4 * (3 - k))
            for x in ops: x = F(x, lo, hk, q="ep")
            for y in w128(o, vOw[k >> 1], (a32.sub(8 * k, 4), "of"), (b & 1) * US + (k & 1) * 1024):
                pub[b].append(F(y, max(lo, gB[b - 1]) if b >= 2 else lo, hk, q="ow", after=[x, adr2[-1], BP[b - 1] if b >= 2 else BB[7]]))
    BP = [barrier(vm=v_) for v_ in (["wo1a" if wsp else "wo1b"], [], [], [], ["wo2a", "wo2b"])]
    bv.after += [F(x, max(gx, G[(6, 4)]["pL"]), gv - (14 if prv else 5), q="ldsK0", after=[adr[-1], bx]) for x in rdAo(0, range(4))]
    if wsp: pub[0] += [F(x, BB[7].lo, gB[0] - 4, q="ldsK0", after=[BB[7]]) for x in rdAo(0, range(4, 8))]
    else:
        if prv: bv.after += [F(x, gz, gv - 1, q="ldsK0", after=[bz]) for x in rdAo(0, range(4, 8))]
        else: BB[7].after += [F(x, gv, BB[7].lo - 4, q="ldsK0", after=[bv]) for x in rdAo(0, range(4, 8))]
        pub[0] += [F(x, BB[7].lo, gB[0] - 4, q="ldsK0", after=[BB[7]]) for x in rdAo(1, range(4))]
    for b in range(4): norm_block(b)
    F(BP[0], gB[0], gB[0], after=pub[0])
    stamp(attn_end)
    rdA0 = []; bn, gn = BP[0], gB[0]
    if wsp:
        gn = ou0[0] + int(o.bno)
        bn = F(barrier(vm=["wo1b"]), gn, gn, after=[BP[0]] + [F(x, gB[0], gn - 4, q="ldsK0", after=[BP[0]]) for x in rdAo(1, range(4))])
    for x in rdAo(1, range(4, 8)):
        r = next(iter(x.wr)); lo = max(gn, lastrd[(r, "v7")])
        rdA0.append(F(x, lo, max(lo, min(firstrd[(r, "wo1")] - int(o.lead), gB[1] - 3)), q="ldsK0", after=[bn]))
    fl = NM(0)
    fr = F(dsr(B128, fl, vBr[1], FLAG - 6 * US), gB[0], gB[0] + 1, q="ldsB", after=[BP[0]])
    chk = [valu("v_add_f32", fl[0], fl[0], fl[1]), valu("v_add_f32", fl[2], fl[2], fl[3]), valu("v_add_f32", fl[0], fl[0], fl[2]),
           raw(f"v_cmp_nge_f32 vcc, {hex(THR)}, {fl[0]}", rd=[fl[0]], kind="valu"),
           raw(f"s_cmp_eq_u32 s54, {77 if o.abl else 0}\ns_cselect_b64 vcc, vcc, 0\ns_cbranch_vccnz Lslow", cost=2, kind="br")]
    chk = [F(x, gB[0] + 7, gB[0] + 14, q="fl", after=[fr]) for x in chk]
    rcv = [V(168 + 4 * d, 4) for d in range(4)]
    mr = [F(dsr(B128, (rcv[d], "rcv"), vB8, 1024 * d), gB[2 + mg], gB[3] + (20 if mg else -6), q="lm", after=[chk[-1], BP[rp]]) for d in range(4)]
    for x in (salu("s_lshl_b32", sT0, sW, 11), valu("v_add_u32", vO9, sT0, vBr[1])): a9 = F(x, gB[2], gB[4] - 12, q="fl", after=mr)
    for k in range(2):
        ops = []
        for d in (2 * k, 2 * k + 1):
            for m in range(4):
                t = (vT1, lm[3])[m & 1]
                ops += [valu("v_accvgpr_read_b32", t, (O9(d)[m], "o7")), valu("v_mul_f32", (rcv[d][m], "rs"), (rcv[d][m], "rcv"), lm[1]),
                        valu("v_fma_f32", (rcv[d][m], "n"), t, lm[2], (rcv[d][m], "rs"))]
        for m in range(4):
            src = rcv[2 * k + (m >> 1)]
            ops.append(valu("v_cvt_pk_bf16_f32", (rcv[2 * k][m], "of"), (src[2 * (m & 1)], "n"), (src[2 * (m & 1) + 1], "n")))
        for x in ops: x = F(x, gB[2], gB[4] - 8 + 4 * k, q="ep", after=mr + [lsum[-1]])
        for y in w128(o, vO9, (rcv[2 * k], "of"), 3 * US + 1024 * k): pub[4].append(F(y, gB[2], gB[4] - 8 + 4 * k, q="ow", after=[x, a9]))
    def rdBo(qb, ks):
        if qb < 8: return dsr(B128, (Bo(qb, ks), f"of{qb}"), vBr[1], (qb & 1) * US + (qb >> 2) * 8192 + 1024 * ks)
        return dsr(B128, (Bo(qb, ks), f"of{qb}"), vBr[1], 3 * US + 1024 * ks)
    rdp = rdA0; prevb = BP[0]
    for k in range(5):
        if k: prevb = F(BP[k], gB[k], gB[k], after=pub[k] + [prevb] + rdp); rdp = []
        for n in (fu[k], fu[k] + 1)[:2 if k < 4 else 1]:
            qb = OU[n][1]
            for ks in range(8):
                late = qb >= 5 or (qb == 4 and ks >= 6)
                hi = max(gB[k] + ks // 2, ou0[n] - int(o.lead) + ks)
                if k < 4: hi = min(hi, gB[k + 1] - 3)
                rdp.append(F(rdBo(qb, ks), gB[k], hi, q="ldsB", after=[BP[k]] + ([chk[-1]] if late else [])))
    gd = {p: ou0[9 * p] + int(o.bdo) for p in range(4)}
    if wsp: spread(g_wo(2, 0), gB[0] + 1, float(o.ostep1), after=[BP[0]])
    w1b = spread(g_wo(2, 1), gn + 1, float(o.ostep2), after=[bn])
    spread(g_wo(3, 0), gB[1] + 1, float(o.ostep3), after=[BP[1]])
    spread(g_wo(3, 1), gB[4] + 1, float(o.ostep4), after=[BP[4]])
    for n, x in enumerate(rdAo(2)):
        r = next(iter(x.wr)); F(x, lastrd[(r, "wo0")], ou0[18] - 8 + n // 2, q="ldsK0", after=[BP[4]])
    bd = F(barrier(vm=["wo3a", "wo3b"], lgkm=False), gd[2], gd[2], after=[BP[4]])
    for n, x in enumerate(rdAo(3)): F(x, gd[2], ou0[27] - 8 + n // 2, q="ldsK0", after=[bd])
    ts = int(o.ts); assert ts >= 2
    for n in range(36):
        s_, p_ = SB(n & 1), PB(n & 1)
        for m in range(4):
            lo = min(ouh[(n, m >> 1)] + (8 if n > 8 + 6 * mg else 4), last)
            x = F(valu("v_cvt_pk_bf16_f32", (p_[m], f"rp{n}"), (s_[2 * m], f"r{n}"), (s_[2 * m + 1], f"r{n}")), lo, min(lo + (16 if n == 1 else 6), last), q="st")
        pp_, qb = OU[n]
        ops = ([salu("s_mul_i32", sT3, sP(pp_), 144)] if n == 0 or OU[n - 1][0] != pp_ else []) + [salu("s_add_u32", sSt, sT3, 4096 * qb),
               vstore((p_, f"rp{n}"), vSt3 if pp_ == ts else vSt, Sws, sSt, 0, o.stflag, tag=f"st{pp_}")]
        if n == 9 * ts:
            pre_ = [salu("s_xor_b32", sG, sJ, sW), raw(f"s_and_b32 {sG}, {sG}, 3\ns_cselect_b32 {sG}, 0, 0x10000000", wr=[sG], cost=2, kind="br"),
                    valu("v_add_u32", vSt3, sG, vSt), salu("s_lshr_b32", sG, sG, 12), salu("s_xor_b32", sG, sG, 0x10000), salu("s_add_u32", sG, sG, 8 * US),
                    valu("v_add_u32", vOwn, sG, vL16), valu("v_add_u32", vOwr, 8 * US, vSt)]
            for y in pre_: y = F(y, ou0[n - 2], ou0[n], q="own")
            own_rdy = y
        sw = int(str(o.swin).split(",")[n // 9 % len(str(o.swin).split(","))])
        if sw and n >= sw:
            ops.insert(len(ops) - 1, waitvm(f"su{n - sw}"))
        ops[-1].utag = f"su{n}"
        for x in ops: F(x, lo, min(lo + (20 if n < 2 else 8), last), q="st", after=[chk[-1]] + (w1b[-1:] if n == 0 and int(o.hold) else []) + ([own_rdy] if n == 9 * ts else []))
        if pp_ == ts: F(dsw("ds_write_b128", vOwn, (p_, f"rp{n}"), 1024 * qb), min(lo + 2, last), min(lo + 10, last), q="st", after=[BP[4]])
    t = V(168, 4)
    ops = [salu("s_lshl_b32", sT1, sB, 4), valu("v_mov_b32", vRdA, sT1),
           vload(vRdy, vRdA, Sdbg, 0, 0, "sc1", tag="rdy", op="buffer_load_dword"),
           salu("s_lshl4_add_u32", sT0, sW, sJ), salu("s_lshl_b32", sT0, sT0, 7),
           valu("v_lshrrev_b32", vF, 9, vL16), valu("v_lshl_add_u32", vF, vF, 15, sT0), valu("v_lshrrev_b32", vOne, 2, vL16),
           valu("v_add_u32", vF, vF, vOne), valu("v_mov_b32", vOne, 1)]
    gf = {p: ou0[max(n for n in range(36) if OU[n][0] == p) + 1] + int(str(o.flo).split(',')[p % len(str(o.flo).split(','))]) for p in range(3)}
    for x in ops: rset = F(x, gB[4], gB[4] + 40, q="fl")
    ops = [raw(f"v_cmp_gt_u32 vcc, 16, {vRdy}", rd=[vRdy], kind="valu"), raw("s_cbranch_vccnz Lrdy_spin\nLrdy_back:", kind="br")]
    for p in range(3):
        ops = [waitvm(f"st{p}")] + ops + [salu("s_lshl_b32", sAt, sP(p), 5), vstore(vOne, vF, Smb, sAt, 0, "sc1", tag="fl", op="buffer_store_dword")]
        for x in ops: flag0 = F(x, gf[p], gf[p] + 2, q="fl")
        ops = []
        if p == 0:
            su = [
               salu("s_lshr_b32", sCc, sP(int(o.ts)), 6), salu("s_and_b32", sT0, sJ, 3), salu("s_add_u32", sCc, sCc, sT0),
               valu("v_bfe_u32", vPo, vL16, 4, 2), valu("v_lshrrev_b32", t[0], 8, vL16),
               salu("s_lshl_b32", sT0, sCc, 11), valu("v_lshl_add_u32", vPo, vPo, 7, sT0),
               salu("s_add_u32", sGo, sJ, 4 * int(o.ts)), salu("s_and_b32", sGo, sGo, 12), salu("s_lshl_b32", sGo, sGo, 7),
               salu("s_lshr_b32", sT0, sCc, 2), salu("s_mul_i32", sT0, sT0, 9), salu("s_add_u32", sT0, sT0, sW),
               salu("s_and_b32", sT1, sJ, 3), salu("s_lshl2_add_u32", sT0, sT0, sT1), salu("s_lshl_b32", sT0, sT0, 10),
               valu("v_add_u32", vR[0], sT0, vL16), valu("v_add_u32", vR[1], 16384, vR[0]),
               salu("s_lshl_b32", sT1, sW, 28), salu("s_add_u32", sT0, sT1, 32768), valu("v_add_u32", vR[2], sT0, vR[0]),
               valu("v_bfe_u32", t[1], vL16, 4, 4), valu("v_lshlrev_b32", vO[0], 10, t[1]), valu("v_lshl_add_u32", vO[0], t[0], 4, vO[0]),
               salu("s_lshl_b32", sT0, sW, 14), salu("s_lshl_b32", sT2, sCc, 6), salu("s_add_u32", sT0, sT0, sT2),
               valu("v_add_u32", vO[0], sT0, vO[0]), valu("v_add_u32", vO[1], 65536, vO[0]),
               salu("s_add_u32", sT0, sT1, 131072), valu("v_add_u32", vO[2], sT0, vO[0]),
               valu("v_and_b32", t[2], 1, t[1]), valu("v_lshlrev_b32", t[2], 4, t[2]), valu("v_mov_b32", t[3], "0x3f80"),
               valu("v_lshlrev_b32", t[2], t[2], t[3]),
               valu("v_bfe_u32", t[3], t[1], 2, 1), valu("v_xor_b32", t[3], t[3], t[0]),
               valu("v_and_b32", t[0], 1, t[3]), valu("v_lshlrev_b32", t[0], 3, t[0]),
               valu("v_lshrrev_b32", t[3], 1, t[3]), valu("v_lshl_add_u32", t[0], t[3], 2, t[0]),
               valu("v_lshrrev_b32", t[3], 3, t[1]), valu("v_lshl_add_u32", t[0], t[3], 1, t[0]),
               valu("v_bfe_u32", t[3], t[1], 1, 1), valu("v_add_u32", t[0], t[0], t[3]),
               valu("v_lshlrev_b32_e64", t[0], t[0], 1)]
            for m in range(8): su += [valu("v_bfe_i32", SEL[m], t[0], m, 1), valu("v_and_b32", SEL[m], SEL[m], t[2])]
            for x in su: F(x, ou0[18], ou0[26], q="su", after=[rset])
    if int(o.r0in):
        g = ou0[27] - int(o.pollo)
        p0 = F(vload(vRdy, vPo, Smb, sGo, 0, "sc1", tag="poll0", op="buffer_load_dword"), g, g + 2, q="r0", after=[su[-1]])
        g = ou0[27] + int(o.r0o)
        for x in (raw(f"v_cmp_eq_u32 vcc, 0, {vRdy}", rd=[vRdy], kind="valu"), raw("s_cbranch_vccnz Lp0_spin\nLp0_back:", kind="br")): F(x, g, g + 1, q="r0")
        ops = [salu("s_mul_i32", sOff, sGo, PART // 128), salu("s_sub_u32", sGo, sGo, 512), salu("s_and_b32", sGo, sGo, "0x600")]
        for i in range(4):
            if i: ops.append(salu("s_add_u32", sOff, sOff, PART))
            ops += [vload(A(12 * i + 4 * f, 4), vR[f], Sred, sOff, 0, o.rflag, tag="r0") for f in range(3)]
        nextvm[0] = 0
        r0 = spread(ops, g + 2, float(o.r0step), q="r0")
    g = last - int(o.pollo)
    F(vload(vRdy, vPo, Smb, sGo, 0, "sc1", tag="poll", op="buffer_load_dword"), g, g + 2, q="fl", after=[r0[2]] if int(o.r0in) else [su[-1]])
    if int(o.tt):
        for x in code_touch(V(254, 2), vTs, vL16, shift=int(o.tt), tid=True): F(x, g - 30, g - 4, q="su")
    if int(o.adw):
        for x in (salu("s_and_b32", sG, sJ, 12), salu("s_lshl_b32", sG, sG, 7), vload(vRdA, vPo, Smb, sG, 0, "sc1", tag="poll", op="buffer_load_dword")):
            F(x, g, g + 6, q="fl", after=[own_rdy])
    F(waitvm("poll"), last, last, q="st")
    seq = sc.run()
    if "a" in o.abl: seq = [x for x in seq if not (x.gap > 100 and x.kind in ("dma", "vml"))]
    if "s" in o.abl: seq = [x for x in seq if not (x.kind == "vms" and x.tag.startswith("st"))]
    if "w" in o.abl: seq = [x for x in seq if not (x.kind == "dma" and x.tag[:3] == "wo0")]
    if "d" in o.abl: seq = [x for x in seq if not (x.kind == "dsw" and x.gap > 1700)]
    if "o" in o.abl: seq = [x for x in seq if not (x.kind == "dma" and x.tag[:3] in ("wo1", "wo2", "wo3"))]
    seq = P + seq
    if not o.abl: check_tags(seq)
    seq, nops = pad_hazards(seq)
    sys.stderr.write(f"mfma {len(sc.bb)} instrs {len(seq)} over {sc.stats['over']} idle {sc.stats['idle']} waits {sc.stats['waits']} nop-states {nops}\n")
    return seq, nstamp[0]

def reduce_tail(o, a, nst):
    acc = lambda f, u: V(8 * f + 4 * u, 4)
    buf = lambda t, i, f: A(48 * t + 12 * i + 4 * f, 4)
    poll = f"buffer_load_dword {vRdy}, {vPo}, {Smb}, {sGo} offen sc1"
    a(f"s_lshl_b32 s61, {sP(3)}, 5"); a("s_mov_b32 s63, 0")
    if int(o.stamps): a(f"s_memrealtime s[{64+2*nst}:{65+2*nst}]")
    ts = int(o.ts); rw = int(o.rwin); pa = int(o.polli); started = set()
    nl = lambda t: 9 if t == ts else 12
    q = [("st",)]
    def add(fr):
        for u in range(2):
            a(f"v_mfma_f32_16x16x32_bf16 {acc(fr[2],u)}, {SEL.sub(4*u,4)}, {buf(*fr)}, {acc(fr[2],u) if fr[2] in started else 0}")
        started.add(fr[2])
    def wait(n):
        if len(q) <= n: return []
        a(f"s_waitcnt vmcnt({n})"); done = q[:len(q) - n]; del q[:len(q) - n]
        return done
    def retire(done):
        for x in done:
            if x[0] == "st":
                a(f"buffer_store_dword {vOne}, {vF}, {Smb}, s61 offen sc1"); q.append(("fl",))
        for x in done:
            if x[0] == "ld": add(x[1])
    for t in range(4):
        a(f"s_mul_i32 s45, {sGo}, {PART // 128}")
        if t == ts: a("s_mov_b32 s62, s45")
        late = []
        if ("po",) in q: late = wait(len(q) - 1 - q.index(("po",)))
        a(f"Lpoll{t}:"); a(f"v_cmp_eq_u32 vcc, 0, {vRdy}"); a(f"s_cbranch_vccz Lgo{t}")
        a(poll); a("s_add_u32 s63, s63, 1"); a("s_waitcnt vmcnt(0)"); a("s_cmp_lt_u32 s63, 0x40000"); a(f"s_cbranch_scc1 Lpoll{t}")
        a(f"Lgo{t}:")
        if int(o.rst): a(f"s_memrealtime s[{66+2*nst+2*t}:{67+2*nst+2*t}]")
        a(f"s_sub_u32 {sGo}, {sGo}, 512"); a(f"s_and_b32 {sGo}, {sGo}, 0x600")
        for i in range(nl(t) // 3):
            if t == ts: a(f"s_add_u32 s52, s51, {i+1}"); a("s_and_b32 s52, s52, 3"); a(f"s_mul_i32 s52, s52, {PART}"); a("s_add_u32 s45, s62, s52")
            if i == pa and t < 3: a(poll); q.append(("po",))
            for f in range(3):
                done = late + wait(rw - 1); late = []
                a(f"buffer_load_dwordx4 {buf(t,i,f)}, {vR[f]}, {Sred}, s45 offen {o.rflag}"); q.append(("ld", (t, i, f)))
                retire(done)
            if i < 3 and t != ts: a(f"s_add_u32 s45, s45, {PART}")
            if (t, i) == (1, 1):
                a("s_waitcnt lgkmcnt(0)"); a("s_barrier")
                for f in range(3): a(f"ds_read_b128 {buf(ts,3,f)}, {vOwr} offset:{4096*f}")
            if (t, i) == (1, 3):
                a("s_waitcnt lgkmcnt(0)")
                for f in range(3): add((ts, 3, f))
        assert t > 0 or ("st",) not in q
    while q: retire(wait(len(q) - 1))
    a("s_nop 3")
    for f in range(3):
        if f: a("s_nop 1")
        for m in range(4): a(f"v_cvt_pk_bf16_f32 v{32+4*f+m}, v{8*f+2*m}, v{8*f+2*m+1}")
        a(f"buffer_store_dwordx4 v[{32+4*f}:{35+4*f}], {vO[f]}, {Sout}, 0 offen {o.outflag}".rstrip())

def tail_and_slow(o, nst):
    T = []; a = T.append
    reduce_tail(o, a, nst); nst += 1 + 4 * int(o.rst)
    if int(o.stamps):
        a(f"s_memrealtime s[{64+2*nst}:{65+2*nst}]"); a("s_waitcnt vmcnt(0)")
        a(f"s_memrealtime s[{66+2*nst}:{67+2*nst}]"); a("s_waitcnt lgkmcnt(0)")
        a("s_cmp_lg_u32 s3, 0"); a("s_cbranch_scc1 Lend")
        if o.enc:
            ea, eb = [int(z) for z in o.enc.split(",")]
            a("s_cmp_lg_u32 s2, 100"); a("s_cbranch_scc1 Lnoenc")
            a(f"s_sub_u32 s52, s{64+2*eb}, s{64+2*ea}"); a("s_mul_i32 s52, s52, 10"); a("s_min_u32 s52, s52, 200000"); a("s_add_u32 s52, s52, 500")
            a("Lspin:"); a("s_memrealtime s[46:47]"); a("s_waitcnt lgkmcnt(0)"); a(f"s_sub_u32 s46, s46, s{66+2*nst}")
            a("s_cmp_lt_u32 s46, s52"); a("s_cbranch_scc1 Lspin"); a("Lnoenc:")
        a("s_load_dwordx2 s[40:41], s[0:1], 56"); a("s_mov_b32 s42, 0x10000000"); a("s_mov_b32 s43, 0x20000"); a("s_waitcnt lgkmcnt(0)")
        a(f"s_lshl_b32 s52, s2, 6"); a(f"s_add_u32 s52, s52, {STAMP_OFF}"); a("v_mov_b32 v1, s52")
        a("s_mov_b64 exec, 1")
        if int(o.rst): a("s_mul_i32 s63, s63, 100"); a("s_add_u32 s66, s64, s63")
        assert nst + 2 <= 16
        for n in range(nst + 2):
            a(f"v_mov_b32 v2, s{64+2*n}"); a(f"buffer_store_dword v2, v1, s[40:43], 0 offen offset:{4*n}")
    a("Lend:"); a("s_endpgm")
    if int(o.r0in):
        a("Lp0_spin:"); a("s_mov_b32 s63, 0"); a("Lp0_loop:")
        a(f"buffer_load_dword {vRdy}, {vPo}, {Smb}, {sGo} offen sc1"); a("s_add_u32 s63, s63, 1"); a("s_waitcnt vmcnt(0)")
        a(f"v_cmp_eq_u32 vcc, 0, {vRdy}"); a("s_cmp_lt_u32 s63, 0x40000"); a("s_cselect_b64 vcc, vcc, 0")
        a("s_cbranch_vccnz Lp0_loop"); a("s_branch Lp0_back")
    a("Lrdy_spin:"); a("s_mov_b32 s63, 0"); a("Lrdy_loop:")
    a(f"buffer_load_dword {vRdy}, {vRdA}, {Sdbg}, 0 offen sc1"); a("s_add_u32 s63, s63, 1"); a("s_waitcnt vmcnt(0)")
    a(f"v_cmp_gt_u32 vcc, 16, {vRdy}"); a("s_cmp_lt_u32 s63, 0x40000"); a("s_cselect_b64 vcc, vcc, 0")
    a("s_cbranch_vccnz Lrdy_loop"); a("s_branch Lrdy_back")
    a("Lslow:"); a("s_waitcnt vmcnt(0) lgkmcnt(0)"); a("s_nop 7"); a("s_barrier")
    a("v_mbcnt_lo_u32_b32 v0, -1, 0"); a("v_mbcnt_hi_u32_b32 v0, -1, v0")
    a("v_and_b32 v1, 15, v0"); a("v_lshlrev_b32 v1, 8, v1"); a("v_lshrrev_b32 v2, 4, v0"); a("v_lshl_add_u32 v1, v2, 4, v1")
    a("s_lshl_b32 s52, s48, 17"); a("s_add_u32 s52, s52, 128"); a("s_lshl_b32 s53, s49, 6"); a("s_add_u32 s62, s52, s53")
    a("v_add_u32 v2, s62, v1"); a("s_xor_b32 s53, s53, 64"); a("s_add_u32 s62, s52, s53"); a("v_add_u32 v3, s62, v1")
    for b in range(5): a(f"v_mov_b32 v{8+b}, 0xff800000")
    a("s_mov_b32 s45, 0"); a("Lslow_loop:")
    for t in range(4): a(f"buffer_load_dwordx4 v[{16+4*t}:{19+4*t}], v{2+(t&1)}, {Sk}, s45 offen offset:{128*(t>>1)}")
    a("s_waitcnt vmcnt(0)")
    for b in range(5):
        for t in range(4):
            a(f"v_mfma_f32_16x16x32_bf16 {NM(b)}, v[{16+4*t}:{19+4*t}], {QF(b,t)}, {0 if t == 0 else NM(b)}")
    a("s_nop 7"); a("s_nop 1")
    for b in range(5):
        n = NM(b); a(f"v_max3_f32 v{8+b}, v{8+b}, {n[0]}, {n[1]}"); a(f"v_max3_f32 v{8+b}, v{8+b}, {n[2]}, {n[3]}")
    a("s_add_u32 s45, s45, 4096"); a("s_cmp_lt_u32 s45, 131072"); a("s_cbranch_scc1 Lslow_loop")
    for b in range(5): a(f"v_accvgpr_write_b32 {SAV(b)}, v{8+b}")
    a("s_load_dwordx16 s[4:19], s[0:1], 0"); a("s_mov_b32 s54, 1"); a("s_branch Lrestart"); a("Lcode_end:")
    return T

KD = """.amdhsa_kernel {name}
  .amdhsa_next_free_vgpr {vg}
  .amdhsa_next_free_sgpr {sg}
  .amdhsa_accum_offset {acc}
  .amdhsa_group_segment_fixed_size 0
  .amdhsa_kernarg_size 64
  .amdhsa_user_sgpr_count 2
  .amdhsa_user_sgpr_kernarg_segment_ptr 1
  .amdhsa_system_sgpr_workgroup_id_x 1
  .amdhsa_float_denorm_mode_32 3
.end_amdhsa_kernel"""

def generate(o):
    hdr = [l.rstrip("\n") for l in open(f"cdna_kernels/{NAME}.s.ref") if l.startswith(";") and "@launch" not in l and "grid=" not in l and "Override" not in l]
    seq, nst = build_main(o)
    L = hdr + [f"; @launch grid=(256,1,1) block=(256,1,1) lds={LDSB}", '.amdgcn_target "amdgcn-amd-amdhsa--gfx950"', ".text",
               f".globl {NAME}_kernel", ".p2align 8", f".type {NAME}_kernel,@function", f"{NAME}_kernel:"]
    L += [i.text for i in seq] + tail_and_slow(o, nst)
    L += ['.section .rodata,"a"', ".p2align 6", KD.format(name=f"{NAME}_kernel", vg=512, sg=102, acc=256)]
    txt = "\n".join(L) + "\n"
    if int(o.clk): txt = txt.replace("s_memrealtime", "s_memtime")
    return txt

if __name__ == "__main__":
    o = Opt()
    for kv in sys.argv[2:]:
        k, v_ = kv.split("=", 1)
        assert hasattr(Opt, k), k
        setattr(o, k, v_)
    open(sys.argv[1], "w").write(generate(o))
```

```python
import sys, math, struct
from dsl import *

NAME = "standalone__mha_block_cached__near_ridge"
US, GRP, PS = 17024, 4224, 1056
X9 = 9 * US
FLAG = X9 + 8448
LDSB = 163840
PART = 147456
STAMP_OFF = 0x4000000
MBOFF = 256 * PART
def fbits(x): return struct.unpack("<I", struct.pack("<f", x))[0]
CSC = fbits(math.log2(math.e) / math.sqrt(128.0))
THR = fbits(2.0 ** 40)

Smb, Sred, Sout, Sdbg = S(4, 4), S(8, 4), S(12, 4), S(16, 4)
Sx, Swq, Sk, Sv, Swo, Sws = S(20, 4), S(24, 4), S(28, 4), S(32, 4), S(36, 4), S(40, 4)
sW, sGrp, sOff, sC, sGrP, sHH, sQH, sB, sJ = S(3), S(44), S(45), S(46), S(47), S(48), S(49), S(50), S(51)
sT0, sT1, sMode, sX9, sT3, sOw0, sOw1, sA8, sB8, sSt, sT2, sAt = [S(n) for n in range(52, 64)]
sRx, sRw = S(96), S(97)
sCc = S(55)
sRk = S(47)
sP = lambda p: S(98 + p)
ACC = lambda b, f: V(32 * b + 4 * f, 4)
QF = lambda b, t: (V(128 + 16 * b + 4 * t, 4) if b < 4 else A(180 + 4 * t, 4))
SB = lambda k: V(192 + 8 * k, 8)
PB = lambda k: V((208, 212, 248)[k], 4)
NM = lambda b: V(216 + 4 * b, 4)
Kr = lambda y, p: V(236 + 2 * y + p)
Vr = lambda y, hf: V(240 + 2 * y + hf)
vKV = lambda pp: V(244 + pp)
vL16, vTs, vT0, vT1 = V(252), V(253), V(254), V(255)
qWr = lambda win, p: V(216 + 2 * win + p)
qXr = lambda win: V(220 + win)
qX9r = V(222)
qWd = lambda pp: V(225 + pp)
qXd = lambda pp: V(229 + pp)
qX9d, qA8, qB8 = V(233), V(234), V(235)
KF = lambda y, h, t: A(32 * y + 16 * h + 4 * t, 4)
VF = lambda e, y, d: A((96 if y else (64, 200)[e & 1]) + 4 * d, 4)
O9 = lambda d: A(128 + 4 * d, 4)
LS = lambda b: A(160 + 4 * b, 4)
ONES = A(196, 4)
SAV = lambda b: A(248 + b)
aWpat, aWo0, aKv0 = A(253), A(254), A(255)
Aq = lambda fp, kk: A(96 + 8 * fp + 4 * kk, 4)
Bq = lambda I_, kk, b: A((128, 200)[I_ & 1] + 16 * kk + 4 * b, 4)
B9 = lambda I_, kk: A(232 + 8 * (I_ & 1) + 4 * kk, 4)
SEQ = [(I_, h) for I_ in range(6) for h in range(2)] + [(6, 0), (7, 0), (6, 1), (7, 1)]
WQU = {4: 1, 5: 4, 0: 5, 1: 3, 2: 6, 3: 8}
XU = {2: 0, 0: 2, 1: 7}
KVU = lambda slot: (2 * slot, 2 * slot + 1, 4 + 2 * slot, 5 + 2 * slot)
WOU = {0: (0, 1, 4, 5), 1: (2, 3, 0, 1), 2: (4, 5, 2, 3), 3: (0, 1, 6, 7)}
Ao = lambda p, ks, u: A(((64, 0), (32, 96))[p & 1][ks >> 2] + 16 * u + 4 * (ks & 3), 4)
QB = [0, 4, 1, 5, 2, 6, 3, 7, 8]
def Bo(qb, ks):
    if qb < 4: return V(32 * qb + 4 * ks, 4)
    if qb == 4: return A(232 + 4 * ks if ks < 6 else 192 + 4 * (ks - 6), 4)
    if qb == 6: return V(128 + 4 * ks, 4)
    return A({5: 200, 7: 160, 8: 128}[qb] + 4 * ks, 4)
TR, B128 = "ds_read_b64_tr_b16", "ds_read_b128"
sG, sGo = S(96), S(97)
vSt3, vOwn, vOwr = V(232), V(233), V(234)
vF, vOne, vRdy, vPo, vR, vRdA, vO, SEL = V(220), V(221), V(222), V(223), V(224, 3), V(227), V(228, 3), V(160, 8)

class Opt:
    stamps = 0; clk = 0; enc = None; encx = None; xst = ""; qst = ""; abl = ""
    kvflag = "nt"; stflag = "sc1"; outflag = "sc1"
    qseq = ("x0,n0,w0,w1|p1,x1,w2,p2,w3,p5.3,x2,n1,w4,w5,x3,w6,t2,w7,x4,n2,w8,p4.2,w9,x5,w10,w11,x6,n3,w12,x7,w13,w14,w15,"
            "p2,s0,s1,s2,p3,s3,k0,p5,k1,p9,k2,k3")
    bal = '(12,21)'; winlo = 5; winhi = 7; hx = 'h'; asym = 0; lpf = 0; tflag = ''; rot = 2; rsh = 1; cpf = 2
    ashift = 0; win = 6; winfrom = 2; astep0 = 12.4; astep = 10.4; astep4 = 10.4; astep5 = 10.4; estep = 8.7; wow = 0.5; bxo = 10; w1bo = 4
    ouseq = '00,04,10,14,01,05,11,02,06,15,12,03,07,16,08,13,17,18'
    vmgap = 2; dswgap = 4; maxmem = 1; wiso = 1; hor = 40; lead = 8; w64 = 0
    sepv = 3; bvo = 14; bv7 = 0; bk0 = 20; ba0 = -22; bb0 = 30; bao = 0; bbo = 20; bb7 = 32; ate = 4; merge = 1; ts = 3; rdyo = 90; rank = '[]'; rkth = 32; dmin = 3; prev = 1; map4 = 0; wmix = 0; wsp = 0; bno = 14; bbo1 = 20; rst = 0; wpace = 0.5; thin = 1; call = 1; cte = '0,3'; tt = 0; win0 = '10,10,10,10,10,9,8,8'; rox = ''; kvm = 1; all0 = 0; cpl = 0; rawp = 1; winp = ''; adw = 0; fb = 0; bko1 = 11; byo = 12; hold = 0; lflag = 'sc1'; l3flag = 'sc1'; rflag = 'sc1'; r0in = 0; r0o = 12; r0step = 7; swin = 0; rwin = 7; polli = 1; b1o = 18; bko = 11; bdo = 100; flo = 104; pollo = 36; ostep0 = 4; ostep1 = 4; ostep2 = 4; ostep3 = 16; ostep4 = 12
    def __getattr__(s, k): raise AttributeError(k)

def setoff(soff):
    if isinstance(soff, tuple):
        r, add, mask = soff
        if mask == "x": return [salu("s_xor_b32", sOff, r, add)]
        return [salu("s_add_u32", sOff, r, add)] + ([salu("s_and_b32", sOff, sOff, mask)] if mask else [])
    return [salu("s_mov_b32", sOff, soff)]
def group(unit_off, base, voff, srd, soff, flags, tag):
    return [salu("s_add_u32", "m0", base, unit_off)] + setoff(soff) + [dma(voff(pp), srd, sOff, PS * pp, flags, tag) for pp in range(4)]
def g_wq(j): return group(WQU[j % 6] * US, sGrp, qWd, Swq, (sRw, SEQ[j][0] * 524288 + SEQ[j][1] * 128, 0x3fffff), "", f"wq{j}")
def g_x(I_): return group(XU[I_ % 3] * US, sGrp, qXd, Sx, (sRx, I_ * 128, 1023), "", f"x{I_}")
def g_x9(n): return [salu("s_add_u32", "m0", sX9, X9 + (n & 1) * GRP)] + setoff((sRx, n * 256, 1023)) + [dma(qX9d, Sx, sOff, 0, "", f"xn{n}")]
def g_kv(e, part, o, cap=True):
    kv, half = part >> 1, part & 1
    ops = group(KVU(e & 1)[part] * US, sGrp, vKV, (Sk, Sv)[kv], (sRk, e * 16384 + half * (4096 << int(o.kvm)), "x"), o.kvflag, f"{'kv'[kv]}{e}")
    if e < int(o.winfrom) and o.win0:
        for x in ops:
            if x.kind == "dma": x.text = f"s_waitcnt vmcnt({int(o.win0.split(',')[4 * e + part])-1})\n" + x.text
    if cap and int(o.win) and e >= int(o.winfrom):
        for x in ops:
            if x.kind != "dma": continue
            if any(4 * e + part in range(*z) for z in (eval(o.bal) if o.bal[0] == "[" else [eval(o.bal)])):
                g_kv.n = getattr(g_kv, "n", 0) + 1
                x.text = f"s_cbranch_vccz Lw{g_kv.n}\ns_waitcnt vmcnt({int(o.winlo)-1})\nLw{g_kv.n}:\ns_waitcnt vmcnt({int(o.winhi)-1})\n" + x.text
            else:
                g_kv.m = getattr(g_kv, "m", 0) + 1
                x.text = f"s_waitcnt vmcnt({int(o.winp[g_kv.m % len(o.winp)] if o.winp else o.win)-1})\n" + x.text
    return ops
def g_wo(p, hf): return sum((group(WOU[p][part] * US, sGrp, vKV, Swo, (sP(p), part * 65536, 0), "", f"wo{p}{'ab'[hf]}") for part in (2 * hf, 2 * hf + 1)), [])
def w128(o, addr, data, off):
    if not int(o.w64): return [dsw("ds_write_b128", addr, data, off)]
    return [dsw("ds_write_b64", addr, (data[0].sub(2 * z, 2), data[1]), off + 8 * z) for z in range(2)]

def qtok(tok, o):
    c, n = tok[0], int(tok[1:])
    if c == "w": return g_wq(n), n - 6
    if c == "x": return g_x(n), 2 * (n - 3)
    if c == "n": return g_x9(n), (4 * (n - 2) + 2 if n >= 2 else -1)
    if c == "c": return code_touch(V(254, 2), vTs, vL16, shift=3), -1
    if c == "t":
        ops = [salu("s_bfe_u32", sT0, sB, (1 << 16) | 1), salu("s_lshl_b32", sT0, sT0, 24)] + (
               [salu("s_lshl_b32", sT1, sQH, 12), salu("s_add_u32", sT0, sT0, sT1)] if int(o.kvm) else []) + [
               valu("v_mul_u32_u24", vT0, 7, vL16), valu("v_add3_u32", vT0, vT0, vKV(0), sT0)] + (setoff(16384) if 2 < n < 10 else [])
        return ops + [I(f"buffer_load_dword {vTs}, {vT0}, {(Sk, Sv)[z & 1]}, {sOff if z >> 1 else 0} offen", "vml", rd=[vT0, sOff], tag="ct") for z in (range(n) if n < 10 else [n - 10])], -1
    if c == "u":
        ops = [salu("s_bfe_u32", sT0, sB, (1 << 16) | 1), salu("s_xor_b32", sT0, sT0, 1), salu("s_lshl_b32", sT0, sT0, 24),
               salu("s_bfe_u32", sT1, sB, (1 << 16) | 2), salu("s_lshl_b32", sT1, sT1, 17), salu("s_add_u32", sT0, sT0, sT1),
               salu("s_and_b32", sT1, sB, 1), salu("s_lshl2_add_u32", sT1, sT1, sW), salu("s_lshl_b32", sT1, sT1, 14), salu("s_add_u32", sT0, sT0, sT1),
               valu("v_lshl_add_u32", vT0, vL16, 3, sT0)] + setoff(8192)
        return ops + [I(f"buffer_load_dword {vTs}, {vT0}, {Swo}, {sOff if z else 0} offen offset:128", "vml", rd=[vT0, sOff], tag="ct") for z in range(2)], -1
    if c == "s": return g_kv(0, n, o), (10, 10, 11, 12)[n]
    if c == "k": return g_kv(1, n, o), (12, 13, 14, 14)[n]
    raise ValueError(tok)

def code_touch(va, vd, lane, shift, tid=False):
    n = code_touch.n = getattr(code_touch, "n", 0) + 1
    return [valu("v_lshlrev_b32", va[0], shift, lane)] + ([] if tid else
            [salu("s_and_b32", sT0, sB, 7), salu("s_lshl_b32", sT1, sW, 6), salu("s_add_u32", sT0, sT0, sT1), salu("s_lshl_b32", sT0, sT0, 7),
             valu("v_and_b32", va[0], "0x1c00", va[0]), valu("v_add_u32", va[0], sT0, va[0])] if code_touch.thin else
            [salu("s_lshl_b32", sT0, sW, 13), valu("v_add_u32", va[0], sT0, va[0])]) + [
            raw(f"s_getpc_b64 s[52:53]\nLpc{n}:", wr=[sT0, sT1], kind="salu"),
            raw(f"v_min_u32 {va[0]}, Lcode_end-Lpc{n}-4, {va[0]}", rd=[va[0]], wr=[va[0]], kind="valu"),
            valu("v_mov_b32", va[1], 0),
            raw(f"v_lshl_add_u64 {va}, {va}, 0, s[52:53]", rd=[va, sT0, sT1], wr=[va], kind="valu"),
            I(f"global_load_dword {vd}, {va}, off", "vml", rd=[va], wr=[], tag="ct")]

def prologue(o):
    P = []; a = P.append
    v = lambda n: V(n)
    a(raw("s_cmp_ge_u32 s2, 256")); a(raw("s_cbranch_scc1 Lend"))
    a(raw("s_load_dwordx16 s[4:19], s[0:1], 0"))
    if int(o.stamps): a(raw("s_memrealtime s[64:65]"))
    a(valu("v_lshrrev_b32", v(1), 6, v(0)))
    if int(o.call):
        a(salu("s_bfe_u32", sT2, S(2), (3 << 16) | 3)); a(valu("v_lshrrev_b32", v(3), 2, v(0))); a(valu("v_lshl_add_u32", v(3), v(3), 3, sT2))
        P += code_touch(V(8, 2), vTs, v(3), shift=7, tid=True)
    elif int(o.cpf) and not int(o.cpl): P += code_touch(V(8, 2), vTs, v(0), shift=int(o.cpf) + 3, tid=True)
    a(valu("v_readfirstlane_b32", sW, v(1)))
    a(valu("v_mov_b32", v(2), "0xff800000")); a(salu("s_mov_b32", sMode, 0))
    for b in range(5): a(valu("v_accvgpr_write_b32", SAV(b), v(2)))
    a(raw("Lrestart:", kind="label"))
    L, t1, t2, t3, t4, t5, t6 = v(0), v(1), v(2), v(3), v(4), v(5), v(6)
    a(valu("v_mbcnt_lo_u32_b32", L, -1, 0)); a(valu("v_mbcnt_hi_u32_b32", L, -1, L))
    if int(o.map4):
        a(salu("s_bfe_u32", sB, S(2), (4 << 16) | 3))
        a(salu("s_and_b32", sT0, S(2), 7)); a(salu("s_lshr_b32", sT1, S(2), 7)); a(salu("s_lshl1_add_u32", sJ, sT0, sT1))
    else:
        a(salu("s_and_b32", sT0, S(2), 1)); a(salu("s_bfe_u32", sT1, S(2), (3 << 16) | 3)); a(salu("s_lshl3_add_u32", sB, sT0, sT1))
        a(salu("s_bfe_u32", sT0, S(2), (2 << 16) | 1)); a(salu("s_lshr_b32", sT1, S(2), 6)); a(salu("s_lshl2_add_u32", sJ, sT0, sT1))
    a(salu("s_lshr_b32", sHH, sW, 1)); a(salu("s_and_b32", sQH, sW, 1))
    a(salu("s_mul_i32", sGrp, sW, GRP)); a(salu("s_mul_i32", sX9, sW, PS))
    a(salu("s_add_u32", sT3, sB, sJ)); a(salu("s_lshl_b32", sT0, sT3, 0 if int(o.asym) else int(o.rsh))); a(salu("s_and_b32", sT0, sT0, int(o.rot)))
    if o.rox:
        a(salu("s_lshr_b32", sT1, S(2), 1))
        a({"b": salu("s_and_b32", sT1, S(2), 1), "h": salu("s_and_b32", sT1, sT1, 1), "x": salu("s_xor_b32", sT1, sT1, S(2))}[o.rox])
        a(salu("s_and_b32", sT1, sT1, 1)); a(salu("s_add_u32", sT0, sT0, sT1))
    a(salu("s_lshl_b32", sRx, sT0, 8)); a(salu("s_lshl_b32", sRw, sT0, 20))
    a(valu("v_and_b32", t1, 7, L)); a(valu("v_lshlrev_b32", t1, 4, t1))
    a(valu("v_lshrrev_b32", t2, 3, L)); a(valu("v_lshl_add_u32", t3, t2, 12, t1))
    a(salu("s_lshl_b32", sT0, sW, 15)); a(salu("s_add_u32", sT0, sT0, 128))
    a(valu("v_add_u32", qXd(0), sT0, t3))
    for pp in range(1, 4): a(valu("v_subrev_u32", qXd(pp), 32 * pp, qXd(0)))
    a(valu("v_and_b32", t4, 3, t2)); a(valu("v_lshl_add_u32", t3, t4, 12, t1))
    a(valu("v_lshrrev_b32", t2, 5, L)); a(valu("v_lshl_add_u32", t3, t2, 7, t3))
    a(salu("s_lshl_b32", sT0, sW, 10)); a(salu("s_add_u32", sT0, sT0, 128 * 1024 + 128))
    a(valu("v_add_u32", qX9d, sT0, t3))
    a(valu("v_lshl_add_u32", t3, t4, 16, t1)); a(valu("v_lshl_add_u32", t3, t2, 15, t3))
    a(salu("s_lshl_b32", sT0, sQH, 18)); a(salu("s_lshl_b32", sT1, sHH, 8)); a(salu("s_add_u32", sT0, sT0, sT1))
    a(valu("v_add_u32", qWd(0), sT0, t3))
    for pp in range(1, 4): a(valu("v_add_u32", qWd(pp), (8192 - PS) * pp, qWd(0)))
    a(salu("s_mov_b32", Sx[2], PART + 128)); a(salu("s_mov_b32", Sx[3], "0x20000")); a(salu("s_mov_b32", Swq[3], "0x20000"))
    a(salu("s_mul_i32", sT2, sB, PART)); a(salu("s_lshl_b32", sT1, sJ, 9)); a(salu("s_sub_u32", Swq[2], 4194304, sT1))
    a(raw("s_waitcnt lgkmcnt(0)"))
    def base(srd, ptr, off, shift=0, size=None):
        a(salu("s_add_u32", srd[0], S(ptr), off)); a(salu("s_addc_u32", srd[1], S(ptr + 1), 0))
        if shift:
            a(salu("s_sub_u32", srd[0], srd[0], shift)); a(salu("s_subb_u32", srd[1], srd[1], 0))
        if size: a(salu("s_mov_b32", srd[2], size + shift)); a(salu("s_mov_b32", srd[3], "0x20000"))
    base(Sx, 4, sT2, 128); base(Swq, 10, sT1)
    if int(o.asym):
        a(raw("s_bitcmp1_b32 s56, 0")); a(raw("s_cbranch_scc0 Lnotouch"))
        a(salu("s_and_b32", sT0, sB, 14)); a(salu("s_lshl4_add_u32", sT0, sT0, sJ)); a(salu("s_lshl_b32", sT0, sT0, 18))
        base(Sk, 6, sT0, 0, 4194304 + 262144)
        if int(o.asym) > 2: base(Sv, 8, sT0, 0, 4194304 + 262144)
        a(salu("s_lshl4_add_u32", sT0, sHH, sQH)); a(salu("s_lshl_b32", sT0, sT0, 13)); a(valu("v_lshl_add_u32", t3, L, 7, sT0))
        a(salu("s_mov_b32", sOff, 4194304))
        for n in range(int(o.asym)):
            if int(o.asym) == 3 and n == 2:
                a(valu("v_lshrrev_b32", t1, 5, L)); a(valu("v_mul_u32_u24", t1, 4194304 - 4096, t1)); a(valu("v_add_u32", t3, t3, t1))
            a(raw(f"buffer_load_dword {vTs}, {t3}, {(Sk, Sv)[n >> 1]}, {sOff if n & 1 else 0} offen {o.tflag}".rstrip(), rd=[t3], kind="vml"))
        a(raw("Lnotouch:", kind="label"))
    lin = []
    if int(o.lpf):
        a = lin.append
        base(Sk, 4, 0, 0, 16 * PART); base(Sv, 10, 0, 0, 4194304)
        a(salu("s_lshl2_add_u32", sT0, S(2), sW)); a(salu("s_mul_i32", sT1, sT0, 2304)); a(salu("s_lshl_b32", sT0, sT0, 12))
        a(valu("v_min_u32", t1, 17, L)); a(valu("v_lshl_add_u32", t1, t1, 7, sT1)); a(valu("v_lshl_add_u32", t3, L, 6, sT0))
        a(I(f"buffer_load_dword {vTs}, {t3}, {Sv}, 0 offen", "vml", rd=[t3], tag="ct"))
        a(I(f"buffer_load_dword {vTs}, {t1}, {Sk}, 0 offen", "vml", rd=[t1], tag="ct"))
    first = []
    for n, tok in enumerate(o.qseq.split("|")[0].split(",")):
        if n == int(o.lpf) - 1: first += lin
        first += qtok(tok, o)[0]
    Q = []; a = Q.append
    if int(o.cpl): a(valu("v_lshl_add_u32", t1, sW, 6, L)); Q += code_touch(V(8, 2), vTs, t1, shift=int(o.cpf) + 3, tid=True)
    a(salu("s_lshl4_add_u32", sT1, sB, sJ))
    a(salu("s_lshl_b32", sT0, sT1, 18)); base(Sk, 6, sT0, 128, 262144); base(Sv, 8, sT0, 128, 262144)
    a(salu("s_mul_i32", sT0, sT1, PART)); base(Sws, 18, sT0, 0, PART)
    a(salu("s_lshl_b32", sT0, sJ, 18)); base(Swo, 12, sT0, 128, 262144)
    base(Sout, 14, sT2, 0, PART)
    a(salu("s_lshl_b32", sT0, sT2, 4)); base(Sred, 18, sT0, 0, 16 * PART)
    a(salu("s_lshl_b32", sT0, sB, 15)); a(salu("s_add_u32", sT0, sT0, MBOFF)); base(Smb, 18, sT0, 0, 32768)
    a(salu("s_mov_b32", Sdbg[2], 256)); a(salu("s_mov_b32", Sdbg[3], "0x20000"))
    a(salu("s_mov_b32", sC, hex(CSC))); a(raw("s_bitcmp1_b32 s50, 1")); a(raw("s_cselect_b64 vcc, -1, 0"))
    a(salu("s_lshr_b32", sT3, sJ, 2)); a(salu("s_lshl_b32", sT0, sB, int(o.fb))); a(salu("s_sub_u32", sT3, sT3, sT0))
    for p in range(4): a(salu("s_add_u32", sT0, sT3, (p - int(o.ts)) & 3)); a(salu("s_and_b32", sT0, sT0, 3)); a(salu("s_lshl_b32", sP(p), sT0, 8))
    a(salu("s_and_b32", sT0, sT3, 3)); a(salu("s_and_b32", sT1, sJ, 3)); a(salu("s_lshl2_add_u32", sT3, sT0, sT1))
    a(valu("v_and_b32", t1, 15, L)); a(valu("v_lshlrev_b32", t1, 4, t1))
    a(valu("v_lshrrev_b32", t5, 4, L))
    a(salu("s_add_u32", sT0, sW, 0 if str(o.ate) == "9" else sMode)); a(salu("s_lshl4_add_u32", sAt, sT0, sB)); a(salu("s_lshl_b32", sAt, sAt, 4))
    a(salu("s_lshl_b32", sT0, sMode, 6)); a(salu("s_add_u32", sT0, sT0, sW)); a(salu("s_lshl_b32", sT0, sT0, 9))
    a(valu("v_lshl_add_u32", t6, L, 3, sT0)); a(salu("s_lshl_b32", sOff, sT3, 11)); a(valu("v_mov_b64", V(8, 2), 0))
    a(vstore(V(8, 2), t6, Smb, sOff, 0, "sc1", tag="mbz", op="buffer_store_dwordx2"))
    a(valu("v_lshl_add_u32", t3, t5, 13, t1))
    a(salu("s_lshl_b32", sT0, sHH, 15)); a(salu("s_lshl_b32", sT1, sQH, 12)); a(salu("s_add_u32", sT0, sT0, sT1))
    a(salu("s_add_u32", sT0, sT0, 128)); a(valu("v_add_u32", t3, sT0, t3)); a(valu("v_accvgpr_write_b32", aWo0, t3))
    a(valu("v_lshlrev_b32", vL16, 4, L))
    a(salu("s_lshl_b32", sT0, sHH, 17)); a(salu("s_lshl_b32", sT1, sQH, 13 - int(o.kvm))); a(salu("s_add_u32", sT0, sT0, sT1))
    a(salu("s_add_u32", sT0, sT0, 128)); a(valu("v_add_u32", vKV(0), sT0, vL16)); a(valu("v_accvgpr_write_b32", aKv0, vKV(0)))
    for pp in range(1, 4): a(valu("v_subrev_u32", vKV(pp), 32 * pp, vKV(0)))
    a(salu("s_xor_b32", sT0, sW, 1)); a(salu("s_mul_i32", sGrP, sT0, GRP))
    a(salu("s_add_u32", sA8, sGrp, 8 * US)); a(salu("s_add_u32", sB8, sGrP, 8 * US))
    a(valu("v_add_u32", qA8, sA8, vL16)); a(valu("v_add_u32", qB8, sB8, vL16))
    a(valu("v_and_b32", t1, 3, L)); a(valu("v_mul_u32_u24", t1, PS, t1)); a(valu("v_lshl_add_u32", t1, t5, 4, t1))
    a(valu("v_bfe_u32", t3, L, 2, 2)); a(valu("v_lshl_add_u32", t3, t3, 7, t1))
    a(valu("v_add_u32", qX9r, X9, t3))
    a(salu("s_mul_i32", sT0, sQH, 2 * GRP)); a(valu("v_add_u32", qXr(0), sT0, t3))
    a(valu("v_add_u32", qXr(1), 7 * US, qXr(0)))
    a(valu("v_bfe_u32", t3, L, 2, 1)); a(valu("v_mul_u32_u24", t3, US, t3)); a(valu("v_add_u32", t1, t1, t3))
    a(valu("v_bfe_u32", t3, L, 3, 1)); a(valu("v_lshl_add_u32", t1, t3, 8, t1))
    a(salu("s_lshl_b32", sT0, sQH, 6)); a(salu("s_xor_b32", sT1, sT0, 64))
    a(valu("v_add_u32", t3, sT0, t1)); a(valu("v_add_u32", t6, sT1, t1))
    a(valu("v_add_u32", Kr(0, 0), sGrp, t3)); a(valu("v_add_u32", Kr(0, 1), sGrp, t6))
    a(valu("v_add_u32", Kr(1, 0), sGrP, t3)); a(valu("v_add_u32", Kr(1, 1), sGrP, t6))
    a(valu("v_bfe_u32", t1, L, 2, 2)); a(valu("v_mul_u32_u24", t1, PS, t1))
    a(valu("v_and_b32", t3, 1, L)); a(valu("v_lshl_add_u32", t6, t3, 4, t1))
    a(valu("v_bfe_u32", t3, L, 1, 1)); a(valu("v_lshl_add_u32", t6, t3, 3, t6))
    a(valu("v_lshl_add_u32", t3, t5, 7, t6))
    a(salu("s_mul_i32", sT2, sHH, 2 * GRP)); a(salu("s_add_u32", sT2, sT2, US)); a(valu("v_add_u32", t3, sT2, t3))
    a(valu("v_add_u32", qWr(0, 0), sT0, t3)); a(valu("v_add_u32", qWr(0, 1), sT1, t3))
    a(valu("v_add_u32", qWr(1, 0), 4 * US, qWr(0, 0))); a(valu("v_add_u32", qWr(1, 1), 4 * US, qWr(0, 1)))
    a(valu("v_and_b32", t4, 1, t5))
    a(valu("v_lshl_add_u32", t6, t2, 8, t6)); a(valu("v_mul_u32_u24", t3, GRP, t4)); a(valu("v_add_u32", t6, t6, t3))
    a(salu("s_lshl_b32", sT2, sW, 6)); a(valu("v_add_u32", t6, sT2, t6)); a(valu("v_accvgpr_write_b32", aWpat, t6))
    a(valu("v_lshl_add_u32", t1, t2, 8, t1)); a(valu("v_and_b32", t3, 3, L)); a(valu("v_lshl_add_u32", t1, t3, 3, t1))
    a(valu("v_mul_u32_u24", t3, US, t4)); a(valu("v_add_u32", t1, t1, t3)); a(valu("v_add_u32", t1, 4 * US, t1))
    a(salu("s_lshl_b32", sT0, sT0, 1)); a(salu("s_lshl_b32", sT1, sT1, 1))
    a(valu("v_add_u32", t3, sT0, t1)); a(valu("v_add_u32", t6, sT1, t1))
    a(valu("v_add_u32", Vr(0, 0), sGrp, t3)); a(valu("v_add_u32", Vr(0, 1), sGrp, t6))
    a(valu("v_add_u32", Vr(1, 0), sGrP, t3)); a(valu("v_add_u32", Vr(1, 1), sGrP, t6))
    a(salu("s_and_b32", sRk, {"h": sHH, "b": sB, "0": 0}[o.hx], 1)); a(salu("s_lshl_b32", sRk, sRk, 12 + int(o.kvm)))
    a(salu("s_lshl1_add_u32", sT2, sQH, sHH)); a(salu("s_lshl_b32", sT2, sT2, 12)); a(salu("s_add_u32", sT2, sT2, 6 * US))
    a(salu("s_lshl4_add_u32", sOw0, sT0, sT2)); a(salu("s_lshl4_add_u32", sOw1, sT1, sT2))
    a(valu("v_mov_b32", t1, "0x3f803f80"))
    for r in range(4): a(valu("v_accvgpr_write_b32", (ONES[r], "ones"), t1))
    return P, first, Q

def build_main(o):
    code_touch.thin = int(o.thin)
    P, first, Q = prologue(o)
    sc = Sched(vmgap=int(o.vmgap), dswgap=int(o.dswgap), maxmem=int(o.maxmem), wiso=int(o.wiso), horizon=int(o.hor))
    F = sc.f
    nstamp = [1]
    def stamp(g, after=()):
        if int(o.stamps):
            n = nstamp[0]; nstamp[0] += 1
            F(raw(f"s_memrealtime s[{64+2*n}:{65+2*n}]"), g, g, after=after)
    nextvm = [0]
    def spread(ops, lo, step, q="dma", after=(), cap=None):
        out = []; pos = max(lo, nextvm[0]); pend = []
        for x in ops:
            pend.append(x)
            if x.kind in ("dma", "vml", "vms"):
                a_, b_ = int(pos), int(pos + step)
                if cap is not None: a_, b_ = min(a_, cap), min(b_, cap)
                for y in pend[:-1]: out.append(F(y, max(min(lo, b_), min(a_ - 3, b_)), b_, q=q, after=after))
                out.append(F(x, a_, b_, q=q, after=after)); pend = []
                if x.tag not in ('at', 'ct'): pos += step
        assert not pend
        nextvm[0] = pos
        return out
    cur = {}; lastrd = {}; firstrd = {}; lastwr = {}
    def M(d, dtag, a_, b_, c):
        cc = (d, cur[str(d)]) if c == "acc" else c
        i = mfma((d, dtag), a_, b_, cc); n = sc.m(i); cur[str(d)] = dtag
        for r, t in i.rd.items():
            lastrd[(r, t)] = n; firstrd.setdefault((r, t), n)
        lastwr[str(d)] = n
        return n
    lr = lambda reg, tag: max(lastrd[(r, tag)] for r in reg.regs())
    fr_ = lambda reg, tag: min(firstrd[(r, tag)] for r in reg.regs())
    for i in first + Q: F(i, -1, -1, q="dma")
    k0 = {}; qdone = {}
    for j, (I_, hf) in enumerate(SEQ):
        k0[j] = sc.n
        if j < 15: order = [(fp, b) for fp in range(4) for b in range(5) if b < 4 or fp < 2]
        else: order = [(fp, 4) for fp in range(2)] + [(fp, b) for b in range(4) for fp in range(4)]
        for fp, b in order:
            d = ACC(b, 4 * hf + fp) if b < 4 else SB(hf).sub(4 * fp, 4)
            for kk in range(2):
                bb = (Bq(I_, kk, b) if b < 4 else B9(I_, kk), f"x{I_}")
                n = M(d, "Qacc" if (I_, kk) == (7, 1) else f"q{I_}.{kk}", (Aq(fp, kk), f"w{j}"), bb, 0 if (I_, kk) == (0, 0) else "acc")
            qdone[str(d)] = n
    k0[16] = sc.n
    units = []; U = {}; G = {}; pre0 = {}; preL = {}
    P7 = {0: PB(0), 1: PB(1), 8: PB(2), 2: NM(0), 3: NM(4), 4: NM(1), 5: NM(2)}
    def pre(b):
        pre0[b] = sc.n
        for t in range(4): preL[b] = M(NM(b), f"pm{b}", (KF(0, 0, t), "k0"), (QF(b, t), f"Q{b}"), 0 if t == 0 else "acc")
    def qk(e, u):
        n = len(units); b, y = (u >> 1, u & 1) if u < 8 else (4, 0)
        s_ = SB(n & 1); p_ = PB(u % 3) if e < 7 else P7.get(u, s_.sub(0, 4))
        un = dict(e=e, u=u, b=b, y=y, S=s_, P=p_, n=n, q0=sc.n, hl=[0, 0])
        for h in range(2):
            for t in range(4):
                un["hl"][h] = M(s_.sub(4 * h, 4), f"s{n}", (KF(y, h, t), f"k{e}"), (QF(b, t), f"Q{b}"), (NM(b), f"nm{b}") if t == 0 else "acc")
        units.append(un); U[(e, u)] = un
    def pv(e, b, ds=range(-1, 8)):
        us = [U[(e, 2 * b)], U[(e, 2 * b + 1)]] if b < 4 else [U[(e, 8)]]
        g = G.setdefault((e, b), dict(p0=sc.n))
        for d in ds:
            acc = LS(b) if d < 0 else (ACC(b, d) if b < 4 else O9(d))
            for k, un in enumerate(us):
                a_ = (ONES, "ones") if d < 0 else (VF(e, un["y"], d), f"v{e}")
                g["pL"] = M(acc, f"o{e}.{k}" if k + 1 < len(us) else f"o{e}", a_, (un["P"], f"p{un['n']}"), 0 if e == 0 and k == 0 else "acc")
        for un in us: un["g"] = g
    st0 = {}
    for e in range(8):
        st0[e] = sc.n
        if e == 0: pre(0); pre(1)
        qk(e, 0); qk(e, 1)
        if e: pv(e - 1, 4)
        if e < 7:
            for b in range(1, 4):
                if e == 0: pre(b + 1)
                qk(e, 2 * b); qk(e, 2 * b + 1); pv(e, b - 1)
            qk(e, 8); pv(e, 3)
        else:
            prv = int(o.prev)
            for u in (8, 2, 3, 4, 5, 6, 7):
                qk(e, u)
                if u == 3 and prv: pv(e, 4, [-1])
            p7 = sc.n
            for b in ((0, 1, 2, 3) if prv else (4, 0, 1, 2)): pv(e, b, [-1])
            pv(e, 4, range(8))
            if not prv: pv(e, 3, [-1])
            for b in range(4): pv(e, b, range(8))
    attn_end = sc.n - 1
    odone = dict(lastwr)
    ou0 = {}; ouh = {}
    OU = [(p, qb) for p in range(4) for qb in QB]
    mg = int(o.merge)
    if mg:
        OU[:18] = [(int(z[0]), int(z[1])) for z in o.ouseq.split(",")]
    for n, (p, qb) in enumerate(OU):
        if True:
            ou0[n] = sc.n
            for u in range(2):
                for ks in range(8):
                    ouh[(n, u)] = M(SB(n & 1).sub(4 * u, 4), f"r{n}", (Ao(p, ks, u), f"wo{p}"), (Bo(qb, ks), f"of{qb}"), 0 if ks == 0 else "acc")
    last = sc.n - 1
    ou0[36] = ou0[37] = last + 1
    def rdA(j, fp):
        u = WQU[j % 6]; win = 0 if u <= 4 else 1
        return [dsr(TR, (Aq(fp, kk).sub(2 * h, 2), f"w{j}"), qWr(win, fp >> 1), (u - 1 - 4 * win) * US + kk * GRP + 512 * h + 32 * (fp & 1))
                for kk in range(2) for h in range(2)]
    def rdB(I_):
        u = XU[I_ % 3]; win = 1 if u == 7 else 0
        l = [dsr(B128, (Bq(I_, kk, b), f"x{I_}"), qXr(win), (u - 7 * win) * US + (b >> 1) * GRP + (b & 1) * 512 + kk * 64)
             for b in range(4) for kk in range(2)]
        return l + [dsr(B128, (B9(I_, kk), f"x{I_}"), qX9r, ((I_ >> 1) & 1) * GRP + (I_ & 1) * 512 + kk * 64) for kk in range(2)]
    bpre = F(barrier(vm=("x0", "xn0", "wq0")), -1, -1, q="dma")
    stamp(-1, [bpre])
    l = rdB(0)
    prev = [F(x, -1, -1, q="lds", after=[bpre]) for x in rdA(0, 0) + l[:6]]
    prev += [F(x, -1, 7, q="lds", after=[bpre]) for x in l[6:] + rdA(0, 1) + rdA(0, 2) + rdA(0, 3)]
    BQ = {}
    for j in range(16):
        g = k0[j] + (14 if j == 0 else 9)
        nI = SEQ[j + 1][0] if j < 15 and SEQ[j + 1][1] == 0 else None
        vm = []
        if j < 15: vm.append(f"wq{j+1}")
        if nI is not None: vm += [f"x{nI}", f"xn{nI//2}"]
        if j == 10: vm = ["wq15", "all0"] if int(o.all0) else vm + ["mbz"]
        bq = BQ[j] = F(barrier(vm=vm), g, g, after=prev)
        if o.qst and j in eval(o.qst): stamp(g, [bq])
        prev = []
        if j < 15:
            for fp in range(4):
                for x, kk in zip(rdA(j + 1, fp), (0, 0, 1, 1)):
                    lo = max(lr(Aq(fp, kk), f"w{j}"), g)
                    prev.append(F(x, lo, max(min(fr_(Aq(fp, kk), f"w{j+1}") - 6, k0[j + 1] + 3), lo), q="ldsA", after=[bq]))
        if nI is not None:
            for n, x in enumerate(rdB(nI)): prev.append(F(x, g, min(k0[j + 1] - 7 + n, k0[j + 1] + 2), q="ldsB", after=[bq]))
    step = 3.0; seen = set(o.qseq.split("|")[0].split(","))
    for tok in o.qseq.split("|")[1].split(","):
        if tok[0] == "@": nextvm[0] = max(nextvm[0], int(float(tok[1:]) * 36)); continue
        if tok[0] == "+": nextvm[0] += int(tok[1:]); continue
        if tok[0] == "p": step = float(tok[1:]); continue
        seen.add(tok)
        ops, dep = qtok(tok, o)
        spread(ops, BQ[dep].lo if dep >= 0 else 0, step, after=[BQ[dep]] if dep >= 0 else [])
    assert len([t for t in seen if t[0] not in "ctu"]) == 16 + 8 + 4 + 4 + 4, sorted(seen)
    stamp(k0[15])
    if o.xst:
        for g_ in eval(o.xst): stamp(g_)
    def pack_q(src, dst, tdst, hi):
        lo = min(max(qdone[str(src.sub(0, 4))], qdone[str(src.sub(4, 4))]) + 3, hi)
        ops = [valu("v_mul_f32", (src[m], "t"), sC, (src[m], "Qacc")) for m in range(8)]
        ops += [valu("v_cvt_pk_bf16_f32", (dst[m], "t2"), (src[2 * m], "t"), (src[2 * m + 1], "t")) for m in (0, 2, 1, 3)]
        ops += [swap("v_permlane32_swap_b32", (dst[m], "t2"), (dst[m + 2], "t2"), tdst, tdst) for m in range(2)]
        return [F(x, lo, hi, q="qe") for x in ops]
    q9w = []
    for hf in range(2):
        l = pack_q(SB(hf), PB(hf), "q9p", pre0[0] - 2)
        q9w.append(F(dsw("ds_write_b128", qA8, (PB(hf), "q9p"), 1024 * hf), BQ[15].lo, min(U[(0, 0)]["q0"] - 1, pre0[2] - 3 + int(o.ba0)), q="q9w", after=[l[-1], BQ[15]]))
        for t, b in ([(t, b) for t in (0, 1) for b in range(4)] if hf == 0 else [(t, b) for b in range(4) for t in (2, 3)]):
            pack_q(V(32 * b + 8 * t, 8), QF(b, t), f"Q{b}", pre0[b] - 1 + t)
    for b in range(5):
        n = NM(b); pm = f"pm{b}"; nm = f"nm{b}"; hi = fr_(n, nm) - 1
        ops = [valu("v_accvgpr_read_b32", vT1, SAV(b)),
               valu("v_max3_f32", n[0], (n[0], pm), (n[1], pm), vT1), valu("v_max3_f32", n[0], n[0], (n[2], pm), (n[3], pm)),
               valu("v_mov_b32", n[1], n[0]), swap("v_permlane32_swap_b32", n[0], n[1]), valu("v_max_f32", n[0], n[0], n[1]),
               valu("v_mov_b32", n[1], n[0]), swap("v_permlane16_swap_b32", n[0], n[1]),
               I(f"v_min_f32_e64 {n[0]}, -{n[0]}, -{n[1]}", "valu", rd=[n[0], n[1]], wr=[(n[0], nm)]),
               valu("v_mov_b32", (n[1], nm), (n[0], nm)), valu("v_mov_b64", (n.sub(2, 2), nm), (n.sub(0, 2), nm))]
        for x in ops: x = F(x, min(preL[b] + 3, hi), hi, q="nm")
        nmd = [x]
    def rdK(e, y, lo, after, hi=10**9):
        out = []
        for h in range(2):
            for t in range(4):
                r = KF(y, h, t); l_ = max(lo, lr(r, f"k{e-1}")) if e else lo
                x = dsr(B128, (r, f"k{e}"), Kr(y, t & 1), (e & 1) * 2 * US + 512 * h + 128 * (t >> 1))
                out.append(F(x, l_, max(l_, min(fr_(r, f"k{e}") - 6, hi)), q=f"ldsK{y}", after=after))
        return out
    def rdV(e, y, lo, after, hi):
        out = []
        for d in range(8):
            r = VF(e, y, d); l_ = max(lo, lr(r, f"v{e-1}")) if e and y else lo
            for h in range(2):
                x = dsr(TR, (r.sub(2 * h, 2), f"v{e}"), Vr(y, d >> 2), (e & 1) * 2 * US + 512 * h + 32 * (d & 3))
                out.append(F(x, l_, max(l_, min(fr_(r, f"v{e}") - 6, hi)), q=f"ldsV{y}", after=after))
        return out
    BB = {}; rkw = []
    vset = lambda src: [valu("v_accvgpr_read_b32", vKV(0), src)] + [valu("v_subrev_u32", vKV(pp), 32 * pp, vKV(0)) for pp in (1, 2, 3)]
    for e in range(8):
        if e == 0:
            g = k0[16] - int(o.bk0)
            bk = F(barrier(vm=["k0"], lgkm=False), g, g, after=[BQ[15]])
            gv = pre0[2] - 1 + int(o.ba0)
            bv = F(barrier(vm=["v0"]), gv, gv, after=q9w + [bk])
            for t in range(4):
                F(dsr(B128, (QF(4, t), "Q4"), qB8 if t & 1 else qA8, 1024 * (t >> 1)), gv, pre0[4] - 6, q="ldsQ9", after=[bv])
        else:
            g = U[(e - 1, 8)]["q0"] - 1 - int(o.bao)
            sep = e == 7 or e >= int(o.sepv)
            bk = F(barrier(vm=[f"k{e}"] + ([] if sep else [f"v{e}"]), lgkm=bool(rkw)), g, g, after=[BB[e - 1]] + rkw)
            if rkw:
                for x in (valu("v_mov_b32", vT0, sT1), dsr("ds_read_b32", vT1, vT0, 0)): x = F(x, g, g + 6, q="rk", after=[bk])
                F(raw(f"v_cmp_gt_u32 vcc, {int(o.rkth)}, {vT1}", rd=[vT1], kind="valu"), g + 12, g + 16, q="rk")
            rkw = []
            bv, gv = bk, g
            if sep and e < 7:
                gv = st0[e] + int(o.bvo)
                bv = F(barrier(vm=[f"v{e}"], lgkm=False), gv, gv, after=[bk])
            if e == 7:
                gv = p7 - 1 - int(o.bv7)
                gx = st0[7] + int(o.bxo)
                bx = F(barrier(vm=["wo0a"]), gx, gx, after=[bk])
                gz = U[(7, 7)]["q0"] - 1
                bz = F(barrier(vm=["wo0b"]), gz, gz, after=[bx]) if prv else bx
                bv = F(barrier(vm=["v7"]), gv, gv, after=[bz])
                stamp(gv, [bv])
        gb = G[(e, 0)]["p0"] + int(o.bbo if e >= int(o.sepv) else o.bbo1) if e < 7 else p7 + int(o.bb7)
        if e == 0 and int(o.bb0): gb = gv + int(o.bb0)
        rk = rdK(e, 0, g, [bk]) + rdK(e, 1, g, [bk], gx - 4 if e == 7 else 10**9)
        rv = rdV(e, 0, gv, [bv], gb - 5) + rdV(e, 1, gv, [bv], gb - 5)
        bb = BB[e] = F(barrier(vm=["wo0b" if int(o.wsp) else "wo1a"] if e == 7 else []), gb, gb, after=rk + rv)
        if e in (0, 3, 6): stamp(gb, [bb])
        ops = []
        if e < 6:
            for part in range(4 if e < 5 else 2): ops += g_kv(e + 2, part, o)
        if e in eval(o.rank):
            k_ = eval(o.rank).index(e); gn_ = U[(e, 8)]["q0"] - 1 - int(o.bao)
            l_ = [salu("s_and_b32", sT1, sJ, 3), salu("s_lshl_b32", sT1, sT1, 6), salu("s_add_u32", sT1, sT1, 16 * k_ + 4),
                  salu("s_and_b32", sT0, sAt, "0xf00"), salu("s_lshl3_add_u32", sT0, sT0, sT1), salu("s_add_u32", sT1, sT1, FLAG + 1024),
                  valu("v_lshl_add_u32", vT0, vL16, 7, sT0), valu("v_mov_b32", vT1, 1),
                  I(f"buffer_atomic_add {vT1}, {vT0}, {Sdbg}, 0 offen sc0", "vml", rd=[vT0, vT1], wr=[vT1], tag="at", cost=2),
                  valu("v_min_u32", vT0, 2048, vT0), valu("v_add_u32", vT0, FLAG + 1024, vT0)]
            for x in l_[:8]: F(x, gb - 12, gb, q="rk", after=nmd)
            for x in l_[8:]: F(x, gb, gb + 5, q="rk", after=[bb])
            rkw = [F(dsw("ds_write_b32", vT0, vT1, 0), gn_ - 7, gn_ - 4, q="rk")]
        sites = eval(str(o.ate)); sites = sites if isinstance(sites, list) else [sites]
        for k_, site in enumerate(sites):
            if int(site) != e: continue
            at = [salu("s_add_u32", sT0, sJ, k_), salu("s_and_b32", sT0, sT0, len(sites) - 1), salu("s_lshl_b32", sT0, sT0, 8), salu("s_add_u32", sT0, sT0, sAt),
                  valu("v_lshl_add_u32", vT0, vL16, 4, sT0), valu("v_mov_b32", vT1, 1),
                  vstore(vT1, vT0, Sdbg, 0, 0, "", tag="at", op="buffer_atomic_add")]
            pos = len(ops) if site == e else [z for z, x in enumerate(ops) if x.kind == "dma"][7] + 1
            ops[pos:pos] = at
        if e in eval(f'[{o.cte}]') and int(o.cpf): ops += code_touch(V(254, 2), vTs, vL16, shift=3)
        if ops: spread(ops, gb, float({0: o.astep0, 4: o.astep4, 5: o.astep5}.get(e, o.astep)), after=[bb])
    bx.after += rk
    wts = [1.0] * 8; win = int(o.win)
    def allowed(limit):
        m = 0; c = 0.0
        while m < len(wts) and c + wts[-1 - m] <= limit + 1e-9: c += wts[-1 - m]; m += 1
        return m
    def capped(ops, w):
        for x in ops:
            if x.kind == "dma": x.text = f"s_waitcnt vmcnt({allowed(win - w)})\n" + x.text; wts.append(w)
        return ops
    es = float(o.estep); wsp = int(o.wsp)
    if int(o.wmix):
        for hf in range(2):
            spread(capped(vset(aWo0) + g_wo(0, hf), float(o.wow)), BB[6].lo, es * float(o.wpace), after=[BB[6]])
            spread(capped(vset(aKv0) + g_kv(7, 2 + hf, o, False), 1.0), BB[6].lo, es, after=[BB[5]])
    else:
        spread(capped(vset(aWo0) + g_wo(0, 0) + ([] if wsp else g_wo(0, 1)), float(o.wow)), BB[6].lo, es * float(o.wpace), after=[BB[6]])
        spread(capped(vset(aKv0) + g_kv(7, 2, o, False) + g_kv(7, 3, o, False), 1.0), BB[6].lo, es, after=[BB[5]])
    early = vset(aWo0) + (g_wo(0, 1) if wsp else []) + g_wo(1, 0)
    for n in range(win - 1, 0, -1):
        g_ = min(int(nextvm[0]), gv - 3)
        if n >= int(o.dmin): F(raw(f"s_waitcnt vmcnt({allowed(n)})"), g_, g_ + 2, q="dma")
        idx = [k for k, x in enumerate(early) if x.kind == "dma"][:2]
        if idx:
            spread(early[:idx[-1] + 1], max(g_ + 1, gx), (es - 2) / 2, after=[bx]); early = early[idx[-1] + 1:]; wts += [0.0] * len(idx)
        nextvm[0] = max(nextvm[0], g_ + es)
    assert wsp or not early
    nextvm[0] = 0
    if str(o.ate) == "8":
        for x in (valu("v_lshl_add_u32", NM(3)[0], vL16, 4, sAt), valu("v_mov_b32", NM(3)[3], 1),
                  vstore(NM(3)[3], NM(3)[0], Sdbg, 0, 0, "", tag="at", op="buffer_atomic_add")): at8 = F(x, gv, gv + 3, q="dma", after=[bv])
    spread(early + g_wo(1, 1), gv + int(o.w1bo), float(o.ostep0), after=[bv])
    if prv: spread(g_wo(2, 0), gv + 1, float(o.ostep1), after=[bv])
    elif not wsp: spread(g_wo(2, 0), BB[7].lo + 1, float(o.ostep1), after=[BB[7]])
    vA8, vLMw, vW, vOw, vB8, vLMr = Kr(0, 0), Kr(0, 1), (Kr(1, 0), Kr(1, 1)), (Vr(0, 0), Vr(0, 1)), Vr(1, 0), Vr(1, 1)
    vBr, vFl, vSt, vO9 = (PB(2)[0], PB(2)[1]), vLMw, vLMr, vB8
    g = U[(7, 8)]["q0"]
    adr = [valu("v_bfe_u32", vLMw, vL16, 1, 7), valu("v_add_u32", vLMw, sA8, vLMw), dsw("ds_write_b32", vLMw, (NM(4)[0], "nm4"), 4096 + 4),
           valu("v_accvgpr_read_b32", vW[0], aWpat), valu("v_add_u32", vW[1], 4 * US, vW[0]), valu("v_add_u32", vA8, sA8, vL16)]
    adr = [F(x, gx, g + 4, q="adr", after=rk) for x in adr]
    bl = bz if prv else BB[7]
    bl.after.append(F(dsw("ds_write_b32", vLMw, (LS(4)[0], "o7"), 4096), G[(7, 4)]["p0"] + 4, bl.lo - 2, q="adr"))
    if prv: vLMr = vT0
    adrl = [F(x, gx if prv else p7, bl.lo + 3, q="adr", after=[] if prv else rv) for x in (valu("v_bfe_u32", vLMr, vL16, 1, 7), valu("v_add_u32", vLMr, sB8, vLMr))]
    adr2 = [valu("v_add_u32", vOw[0], sOw0, vL16), valu("v_add_u32", vOw[1], sOw1, vL16), valu("v_add_u32", vB8, sB8, vL16)]
    adr2 = [F(x, p7, BB[7].lo + 3, q="adr", after=rv) for x in adr2]
    lastP = {}
    for un in units:
        n, s_, p_ = un["n"], un["S"], un["P"]
        nx = units[n + 2]["q0"] if n + 2 < len(units) else 10**9
        pfree = -1; aft = []
        if str(p_) in lastP: pfree = lastP[str(p_)]["g"]["pL"]
        for b in range(5):
            if str(p_) == str(NM(b)): pfree = lr(p_, f"nm{b}") + 1
        if str(p_) == str(NM(4)): aft = [adr[2]]
        if n < 2: aft = q9w
        lastP[str(p_)] = un
        ex = []
        for j in range(8):
            hi = min(nx - 1 + 4 * (j >> 2), un["g"]["p0"] - 1, gv if prv else 10**9); lo = min(un["hl"][j >> 2] + 3, hi)
            ex.append(F(trans("v_exp_f32", (s_[j], f"e{n}"), (s_[j], f"s{n}")), lo, max(lo, hi - 1), q="exp"))
        for m in range(4):
            hi = min(nx - 1 + 4 * (m >> 1), un["g"]["p0"] - 1, gv if prv else 10**9)
            x = F(valu("v_cvt_pk_bf16_f32", (p_[m], f"p{n}"), (s_[2 * m], f"e{n}"), (s_[2 * m + 1], f"e{n}")),
                  max(ex[2 * m + 1].lo, pfree), hi, q="cvt", after=[ex[2 * m + 1]] + aft)
    if prv: bv.after.append(x)
    def rdAo(p, kss=range(8)):
        return [dsr(TR, (Ao(p, ks, u).sub(2 * h, 2), f"wo{p}"), vW[WOU[p][ks >> 1] >> 2],
                    (WOU[p][ks >> 1] & 3) * US + (ks & 1) * 2 * GRP + 512 * h + 32 * u)
                for u in range(2) for ks in kss for h in range(2)]
    fu = [OU.index((0, qb)) for qb in (0, 1, 2, 3, 8)]
    gB = [attn_end - int(o.b1o)] + [ou0[fu[k]] - int(o.bko1 if k == 1 and mg else o.bko) for k in range(1, 5)]
    pub = [[] for _ in range(5)]
    lm = NM(3)
    mr = [dsr("ds_read_b64", lm.sub(0, 2), vLMw, 4096), dsr("ds_read_b64", lm.sub(2, 2), vLMr, 4096)]
    g = max(bl.lo, lr(lm, "nm3") + 1)
    mr = [F(x, g, min(g + 10, gv) if prv else g + 10, q="lm", after=[bl, adrl[1]]) for x in mr]
    op1 = [valu("v_sub_f32", lm[1], lm[1], lm[3]), trans("v_exp_f32", lm[1], lm[1]), salu("s_lshl_b32", sT0, sW, 2),
           valu("v_fma_f32", vTs, lm[2], lm[1], lm[0]), trans("v_rcp_f32", lm[2], vTs), salu("s_add_u32", sT0, sT0, 6 * US),
           valu("v_add_u32", vFl, sT0, vL16), valu("v_mul_f32", lm[1], lm[1], lm[2])]
    op2 = []
    for b in range(4): op2 += [valu("v_accvgpr_read_b32", lm[3], (LS(b)[0], "o7")), valu("v_add_f32", vTs, vTs, lm[3])]
    op2.append(dsw("ds_write_b32", vFl, vTs, FLAG - 6 * US))
    op3 = [valu("v_add_u32", vBr[1], 6 * US, vL16), salu("s_lshl_b32", sT0, sW, 10), valu("v_add_u32", vSt, sT0, vL16)]
    lsum = [F(x, gv if prv else BB[7].lo + 4, gv if prv else gB[0] - 4, q="lm") for x in op1]
    if prv: bv.after.append(lsum[-1])
    lsum += [F(x, odone[str(LS(3))] + 4, gB[0] - 4, q="lm", after=[at8] if str(o.ate) == "8" else []) for x in op2]
    lsum += [F(x, G[(7, 4)]["pL"], gB[0] - 2, q="lm", after=rv) for x in op3]
    pub[0] += lsum
    rp = int(o.rawp)
    raww = [F(x, gB[rp - 1] + 12 if rp else G[(7, 4)]["pL"] + 4, gB[rp] - 36 + 5 * d if rp else gB[rp] - 4, q="raw" if rp else "ow", after=[adr[-1]])
            for d in range(4) for x in w128(o, vA8, (O9(4 + d), "o7"), 1024 * d)]
    pub[rp] += raww
    def norm_block(b):
        a32 = V(32 * b, 32); hi = gB[b] - 4
        ops = [valu("v_accvgpr_read_b32", vT1, (LS(b)[0], "o7")), trans("v_rcp_f32", vT0, vT1)]
        for x in ops: F(x, odone[str(LS(b))] + 4, hi, q="ep", after=mr)
        for k in range(4):
            ops = [valu("v_mul_f32", (a32[8 * k + m], "n"), (a32[8 * k + m], "o7"), vT0) for m in range(8)]
            ops += [valu("v_cvt_pk_bf16_f32", (a32[8 * k + m], "of"), (a32[8 * k + 2 * m], "n"), (a32[8 * k + 2 * m + 1], "n")) for m in range(4)]
            lo = odone[str(ACC(b, 2 * k + 1))] + 3; hk = max(lo, hi - 4 * (3 - k))
            for x in ops: x = F(x, lo, hk, q="ep")
            for y in w128(o, vOw[k >> 1], (a32.sub(8 * k, 4), "of"), (b & 1) * US + (k & 1) * 1024):
                pub[b].append(F(y, max(lo, gB[b - 1]) if b >= 2 else lo, hk, q="ow", after=[x, adr2[-1], BP[b - 1] if b >= 2 else BB[7]]))
    BP = [barrier(vm=v_) for v_ in (["wo1a" if wsp else "wo1b"], [], [], [], ["wo2a", "wo2b"])]
    bv.after += [F(x, max(gx, G[(6, 4)]["pL"]), gv - (14 if prv else 5), q="ldsK0", after=[adr[-1], bx]) for x in rdAo(0, range(4))]
    if wsp: pub[0] += [F(x, BB[7].lo, gB[0] - 4, q="ldsK0", after=[BB[7]]) for x in rdAo(0, range(4, 8))]
    else:
        if prv: bv.after += [F(x, gz, gv - 1, q="ldsK0", after=[bz]) for x in rdAo(0, range(4, 8))]
        else: BB[7].after += [F(x, gv, BB[7].lo - 4, q="ldsK0", after=[bv]) for x in rdAo(0, range(4, 8))]
        pub[0] += [F(x, BB[7].lo, gB[0] - 4, q="ldsK0", after=[BB[7]]) for x in rdAo(1, range(4))]
    for b in range(4): norm_block(b)
    F(BP[0], gB[0], gB[0], after=pub[0])
    stamp(attn_end)
    rdA0 = []; bn, gn = BP[0], gB[0]
    if wsp:
        gn = ou0[0] + int(o.bno)
        bn = F(barrier(vm=["wo1b"]), gn, gn, after=[BP[0]] + [F(x, gB[0], gn - 4, q="ldsK0", after=[BP[0]]) for x in rdAo(1, range(4))])
    for x in rdAo(1, range(4, 8)):
        r = next(iter(x.wr)); lo = max(gn, lastrd[(r, "v7")])
        rdA0.append(F(x, lo, max(lo, min(firstrd[(r, "wo1")] - int(o.lead), gB[1] - 3)), q="ldsK0", after=[bn]))
    fl = NM(0)
    fr = F(dsr(B128, fl, vBr[1], FLAG - 6 * US), gB[0], gB[0] + 1, q="ldsB", after=[BP[0]])
    chk = [valu("v_add_f32", fl[0], fl[0], fl[1]), valu("v_add_f32", fl[2], fl[2], fl[3]), valu("v_add_f32", fl[0], fl[0], fl[2]),
           raw(f"v_cmp_nge_f32 vcc, {hex(THR)}, {fl[0]}", rd=[fl[0]], kind="valu"),
           raw(f"s_cmp_eq_u32 s54, {77 if o.abl else 0}\ns_cselect_b64 vcc, vcc, 0\ns_cbranch_vccnz Lslow", cost=2, kind="br")]
    chk = [F(x, gB[0] + 7, gB[0] + 14, q="fl", after=[fr]) for x in chk]
    rcv = [V(168 + 4 * d, 4) for d in range(4)]
    mr = [F(dsr(B128, (rcv[d], "rcv"), vB8, 1024 * d), gB[2 + mg], gB[3] + (20 if mg else -6), q="lm", after=[chk[-1], BP[rp]]) for d in range(4)]
    for x in (salu("s_lshl_b32", sT0, sW, 11), valu("v_add_u32", vO9, sT0, vBr[1])): a9 = F(x, gB[2], gB[4] - 12, q="fl", after=mr)
    for k in range(2):
        ops = []
        for d in (2 * k, 2 * k + 1):
            for m in range(4):
                t = (vT1, lm[3])[m & 1]
                ops += [valu("v_accvgpr_read_b32", t, (O9(d)[m], "o7")), valu("v_mul_f32", (rcv[d][m], "rs"), (rcv[d][m], "rcv"), lm[1]),
                        valu("v_fma_f32", (rcv[d][m], "n"), t, lm[2], (rcv[d][m], "rs"))]
        for m in range(4):
            src = rcv[2 * k + (m >> 1)]
            ops.append(valu("v_cvt_pk_bf16_f32", (rcv[2 * k][m], "of"), (src[2 * (m & 1)], "n"), (src[2 * (m & 1) + 1], "n")))
        for x in ops: x = F(x, gB[2], gB[4] - 8 + 4 * k, q="ep", after=mr + [lsum[-1]])
        for y in w128(o, vO9, (rcv[2 * k], "of"), 3 * US + 1024 * k): pub[4].append(F(y, gB[2], gB[4] - 8 + 4 * k, q="ow", after=[x, a9]))
    def rdBo(qb, ks):
        if qb < 8: return dsr(B128, (Bo(qb, ks), f"of{qb}"), vBr[1], (qb & 1) * US + (qb >> 2) * 8192 + 1024 * ks)
        return dsr(B128, (Bo(qb, ks), f"of{qb}"), vBr[1], 3 * US + 1024 * ks)
    rdp = rdA0; prevb = BP[0]
    for k in range(5):
        if k: prevb = F(BP[k], gB[k], gB[k], after=pub[k] + [prevb] + rdp); rdp = []
        for n in (fu[k], fu[k] + 1)[:2 if k < 4 else 1]:
            qb = OU[n][1]
            for ks in range(8):
                late = qb >= 5 or (qb == 4 and ks >= 6)
                hi = max(gB[k] + ks // 2, ou0[n] - int(o.lead) + ks)
                if k < 4: hi = min(hi, gB[k + 1] - 3)
                rdp.append(F(rdBo(qb, ks), gB[k], hi, q="ldsB", after=[BP[k]] + ([chk[-1]] if late else [])))
    gd = {p: ou0[9 * p] + int(o.bdo) for p in range(4)}
    if str(o.ate) == "9":
        for x in (valu("v_lshl_add_u32", V(184), vL16, 4, sAt), valu("v_mov_b32", V(185), 1),
                  vstore(V(185), V(184), Sdbg, 0, 0, "", tag="at", op="buffer_atomic_add")): F(x, ou0[1] + 8, ou0[2], q="at", after=[chk[-1]])
    if wsp: spread(g_wo(2, 0), gB[0] + 1, float(o.ostep1), after=[BP[0]])
    w1b = spread(g_wo(2, 1), gn + 1, float(o.ostep2), after=[bn])
    spread(g_wo(3, 0), gB[1] + 1, float(o.ostep3), after=[BP[1]])
    spread(g_wo(3, 1), gB[4] + 1, float(o.ostep4), after=[BP[4]])
    for n, x in enumerate(rdAo(2)):
        r = next(iter(x.wr)); F(x, lastrd[(r, "wo0")], ou0[18] - 8 + n // 2, q="ldsK0", after=[BP[4]])
    bd = F(barrier(vm=["wo3a", "wo3b"], lgkm=False), gd[2], gd[2], after=[BP[4]])
    for n, x in enumerate(rdAo(3)): F(x, gd[2], ou0[27] - 8 + n // 2, q="ldsK0", after=[bd])
    ts = int(o.ts); assert ts >= 2
    for n in range(36):
        s_, p_ = SB(n & 1), PB(n & 1)
        for m in range(4):
            lo = min(ouh[(n, m >> 1)] + (8 if n > 8 + 6 * mg else 4), last)
            x = F(valu("v_cvt_pk_bf16_f32", (p_[m], f"rp{n}"), (s_[2 * m], f"r{n}"), (s_[2 * m + 1], f"r{n}")), lo, min(lo + (16 if n == 1 else 6), last), q="st")
        pp_, qb = OU[n]
        ops = ([salu("s_mul_i32", sT3, sP(pp_), 144)] if n == 0 or OU[n - 1][0] != pp_ else []) + [salu("s_add_u32", sSt, sT3, 4096 * qb),
               vstore((p_, f"rp{n}"), vSt3 if pp_ == ts else vSt, Sws, sSt, 0, o.stflag, tag=f"st{pp_}")]
        if n == 9 * ts:
            pre_ = [salu("s_xor_b32", sG, sJ, sW), raw(f"s_and_b32 {sG}, {sG}, 3\ns_cselect_b32 {sG}, 0, 0x10000000", wr=[sG], cost=2, kind="br"),
                    valu("v_add_u32", vSt3, sG, vSt), salu("s_lshr_b32", sG, sG, 12), salu("s_xor_b32", sG, sG, 0x10000), salu("s_add_u32", sG, sG, 8 * US),
                    valu("v_add_u32", vOwn, sG, vL16), valu("v_add_u32", vOwr, 8 * US, vSt)]
            for y in pre_: y = F(y, ou0[n - 2], ou0[n], q="own")
            own_rdy = y
        sw = int(str(o.swin).split(",")[n // 9 % len(str(o.swin).split(","))])
        if sw and n >= sw:
            ops.insert(len(ops) - 1, waitvm(f"su{n - sw}"))
        ops[-1].utag = f"su{n}"
        for x in ops: F(x, lo, min(lo + (20 if n < 2 else 8), last), q="st", after=[chk[-1]] + (w1b[-1:] if n == 0 and int(o.hold) else []) + ([own_rdy] if n == 9 * ts else []))
        if pp_ == ts: F(dsw("ds_write_b128", vOwn, (p_, f"rp{n}"), 1024 * qb), min(lo + 2, last), min(lo + 10, last), q="st", after=[BP[4]])
    t = V(168, 4)
    ops = [salu("s_lshl_b32", sT1, sB, 4), valu("v_mov_b32", vRdA, sT1),
           salu("s_lshl4_add_u32", sT0, sW, sJ), salu("s_lshl_b32", sT0, sT0, 7),
           valu("v_lshrrev_b32", vF, 9, vL16), valu("v_lshl_add_u32", vF, vF, 15, sT0), valu("v_lshrrev_b32", vOne, 2, vL16),
           valu("v_add_u32", vF, vF, vOne), valu("v_mov_b32", vOne, 1)]
    gf = {p: ou0[max(n for n in range(36) if OU[n][0] == p) + 1] + int(str(o.flo).split(',')[p % len(str(o.flo).split(','))]) for p in range(3)}
    for x in ops: rset = F(x, gB[4], gB[4] + 40, q="fl")
    g = max(gB[4] + 41, gf[0] - int(o.rdyo)); F(vload(vRdy, vRdA, Sdbg, 0, 0, "sc1", tag="rdy", op="buffer_load_dword"), g, g + 4, q="fl")
    ops = [raw(f"v_cmp_gt_u32 vcc, 16, {vRdy}", rd=[vRdy], kind="valu"), raw("s_cbranch_vccnz Lrdy_spin\nLrdy_back:", kind="br")]
    for p in range(3):
        ops = [waitvm(f"st{p}")] + ops + [salu("s_lshl_b32", sAt, sP(p), 5), vstore(vOne, vF, Smb, sAt, 0, "sc1", tag="fl", op="buffer_store_dword")]
        for x in ops: flag0 = F(x, gf[p], gf[p] + 2, q="fl")
        ops = []
        if p == 0:
            su = [
               salu("s_lshr_b32", sCc, sP(int(o.ts)), 6), salu("s_and_b32", sT0, sJ, 3), salu("s_add_u32", sCc, sCc, sT0),
               valu("v_bfe_u32", vPo, vL16, 4, 2), valu("v_lshrrev_b32", t[0], 8, vL16),
               salu("s_lshl_b32", sT0, sCc, 11), valu("v_lshl_add_u32", vPo, vPo, 7, sT0),
               salu("s_add_u32", sGo, sJ, 4 * int(o.ts)), salu("s_and_b32", sGo, sGo, 12), salu("s_lshl_b32", sGo, sGo, 7),
               salu("s_lshr_b32", sT0, sCc, 2), salu("s_mul_i32", sT0, sT0, 9), salu("s_add_u32", sT0, sT0, sW),
               salu("s_and_b32", sT1, sJ, 3), salu("s_lshl2_add_u32", sT0, sT0, sT1), salu("s_lshl_b32", sT0, sT0, 10),
               valu("v_add_u32", vR[0], sT0, vL16), valu("v_add_u32", vR[1], 16384, vR[0]),
               salu("s_lshl_b32", sT1, sW, 28), salu("s_add_u32", sT0, sT1, 32768), valu("v_add_u32", vR[2], sT0, vR[0]),
               valu("v_bfe_u32", t[1], vL16, 4, 4), valu("v_lshlrev_b32", vO[0], 10, t[1]), valu("v_lshl_add_u32", vO[0], t[0], 4, vO[0]),
               salu("s_lshl_b32", sT0, sW, 14), salu("s_lshl_b32", sT2, sCc, 6), salu("s_add_u32", sT0, sT0, sT2),
               valu("v_add_u32", vO[0], sT0, vO[0]), valu("v_add_u32", vO[1], 65536, vO[0]),
               salu("s_add_u32", sT0, sT1, 131072), valu("v_add_u32", vO[2], sT0, vO[0]),
               valu("v_and_b32", t[2], 1, t[1]), valu("v_lshlrev_b32", t[2], 4, t[2]), valu("v_mov_b32", t[3], "0x3f80"),
               valu("v_lshlrev_b32", t[2], t[2], t[3]),
               valu("v_bfe_u32", t[3], t[1], 2, 1), valu("v_xor_b32", t[3], t[3], t[0]),
               valu("v_and_b32", t[0], 1, t[3]), valu("v_lshlrev_b32", t[0], 3, t[0]),
               valu("v_lshrrev_b32", t[3], 1, t[3]), valu("v_lshl_add_u32", t[0], t[3], 2, t[0]),
               valu("v_lshrrev_b32", t[3], 3, t[1]), valu("v_lshl_add_u32", t[0], t[3], 1, t[0]),
               valu("v_bfe_u32", t[3], t[1], 1, 1), valu("v_add_u32", t[0], t[0], t[3]),
               valu("v_lshlrev_b32_e64", t[0], t[0], 1)]
            for m in range(8): su += [valu("v_bfe_i32", SEL[m], t[0], m, 1), valu("v_and_b32", SEL[m], SEL[m], t[2])]
            for x in su: F(x, ou0[18], ou0[26], q="su", after=[rset])
    if int(o.r0in):
        g = ou0[27] - int(o.pollo)
        p0 = F(vload(vRdy, vPo, Smb, sGo, 0, "sc1", tag="poll0", op="buffer_load_dword"), g, g + 2, q="r0", after=[su[-1]])
        g = ou0[27] + int(o.r0o)
        for x in (raw(f"v_cmp_eq_u32 vcc, 0, {vRdy}", rd=[vRdy], kind="valu"), raw("s_cbranch_vccnz Lp0_spin\nLp0_back:", kind="br")): F(x, g, g + 1, q="r0")
        ops = [salu("s_mul_i32", sOff, sGo, PART // 128), salu("s_sub_u32", sGo, sGo, 512), salu("s_and_b32", sGo, sGo, "0x600")]
        for i in range(4):
            if i: ops.append(salu("s_add_u32", sOff, sOff, PART))
            ops += [vload(A(12 * i + 4 * f, 4), vR[f], Sred, sOff, 0, o.rflag, tag="r0") for f in range(3)]
        nextvm[0] = 0
        r0 = spread(ops, g + 2, float(o.r0step), q="r0")
    g = last - int(o.pollo)
    F(vload(vRdy, vPo, Smb, sGo, 0, "sc1", tag="poll", op="buffer_load_dword"), g, g + 2, q="fl", after=[r0[2]] if int(o.r0in) else [su[-1]])
    if int(o.tt):
        for x in code_touch(V(254, 2), vTs, vL16, shift=int(o.tt), tid=True): F(x, g - 30, g - 4, q="su")
    if int(o.adw):
        for x in (salu("s_and_b32", sG, sJ, 12), salu("s_lshl_b32", sG, sG, 7), vload(vRdA, vPo, Smb, sG, 0, "sc1", tag="poll", op="buffer_load_dword")):
            F(x, g, g + 6, q="fl", after=[own_rdy])
    F(waitvm("poll"), last, last, q="st")
    seq = sc.run()
    if "a" in o.abl: seq = [x for x in seq if not (x.gap > 100 and x.kind in ("dma", "vml"))]
    if "s" in o.abl: seq = [x for x in seq if not (x.kind == "vms" and x.tag.startswith("st"))]
    if "w" in o.abl: seq = [x for x in seq if not (x.kind == "dma" and x.tag[:3] == "wo0")]
    if "d" in o.abl: seq = [x for x in seq if not (x.kind == "dsw" and x.gap > 1700)]
    if "o" in o.abl: seq = [x for x in seq if not (x.kind == "dma" and x.tag[:3] in ("wo1", "wo2", "wo3"))]
    notes = {0: "Q projection: Q^T = Wq^T x^T, 16 half-stages of 64 channels x 64 head dims", k0[16]: "row offsets from the first 16 keys, then attention step 0",
             p7: "last P.V products, normalisation and hand-over of O through LDS", ou0[0]: "O projection, passes 0 and 1 interleaved",
             ou0[18]: "O projection, pass 2", ou0[27]: "O projection, pass 3 (the chunk this workgroup reduces stays in LDS)"}
    notes.update({st0[e]: f"attention step {e} (64 keys)" for e in range(1, 8)})
    for n, txt in notes.items(): sc.bb[n].text = f"; ---- {txt}\n" + sc.bb[n].text
    seq = P + seq
    if not o.abl: check_tags(seq)
    seq, nops = pad_hazards(seq)
    sys.stderr.write(f"mfma {len(sc.bb)} instrs {len(seq)} over {sc.stats['over']} idle {sc.stats['idle']} waits {sc.stats['waits']} nop-states {nops}\n")
    return seq, nstamp[0]

def reduce_tail(o, a, nst):
    acc = lambda f, u: V(8 * f + 4 * u, 4)
    buf = lambda t, i, f: A(48 * t + 12 * i + 4 * f, 4)
    poll = f"buffer_load_dword {vRdy}, {vPo}, {Smb}, {sGo} offen sc1"
    a(f"s_lshl_b32 s61, {sP(3)}, 5"); a("s_mov_b32 s63, 0")
    if int(o.stamps): a(f"s_memrealtime s[{64+2*nst}:{65+2*nst}]")
    ts = int(o.ts); rw = int(o.rwin); pa = int(o.polli); started = set()
    nl = lambda t: 9 if t == ts else 12
    q = [("st",)]
    def add(fr):
        for u in range(2):
            a(f"v_mfma_f32_16x16x32_bf16 {acc(fr[2],u)}, {SEL.sub(4*u,4)}, {buf(*fr)}, {acc(fr[2],u) if fr[2] in started else 0}")
        started.add(fr[2])
    def wait(n):
        if len(q) <= n: return []
        a(f"s_waitcnt vmcnt({n})"); done = q[:len(q) - n]; del q[:len(q) - n]
        return done
    def retire(done):
        for x in done:
            if x[0] == "st":
                a(f"buffer_store_dword {vOne}, {vF}, {Smb}, s61 offen sc1"); q.append(("fl",))
        for x in done:
            if x[0] == "ld": add(x[1])
    for t in range(4):
        a(f"s_mul_i32 s45, {sGo}, {PART // 128}")
        if t == ts: a("s_mov_b32 s62, s45")
        late = []
        if ("po",) in q: late = wait(len(q) - 1 - q.index(("po",)))
        a(f"Lpoll{t}:"); a(f"v_cmp_eq_u32 vcc, 0, {vRdy}"); a(f"s_cbranch_vccz Lgo{t}")
        a(poll); a("s_add_u32 s63, s63, 1"); a("s_waitcnt vmcnt(0)"); a("s_cmp_lt_u32 s63, 0x40000"); a(f"s_cbranch_scc1 Lpoll{t}")
        a(f"Lgo{t}:")
        if int(o.rst): a(f"s_memrealtime s[{66+2*nst+2*t}:{67+2*nst+2*t}]")
        a(f"s_sub_u32 {sGo}, {sGo}, 512"); a(f"s_and_b32 {sGo}, {sGo}, 0x600")
        for i in range(nl(t) // 3):
            if t == ts: a(f"s_add_u32 s52, s51, {i+1}"); a("s_and_b32 s52, s52, 3"); a(f"s_mul_i32 s52, s52, {PART}"); a("s_add_u32 s45, s62, s52")
            if i == pa and t < 3: a(poll); q.append(("po",))
            for f in range(3):
                done = late + wait(rw - 1); late = []
                a(f"buffer_load_dwordx4 {buf(t,i,f)}, {vR[f]}, {Sred}, s45 offen {o.rflag}"); q.append(("ld", (t, i, f)))
                retire(done)
            if i < 3 and t != ts: a(f"s_add_u32 s45, s45, {PART}")
            if (t, i) == (1, 1):
                a("s_waitcnt lgkmcnt(0)"); a("s_barrier")
                for f in range(3): a(f"ds_read_b128 {buf(ts,3,f)}, {vOwr} offset:{4096*f}")
            if (t, i) == (1, 3):
                a("s_waitcnt lgkmcnt(0)")
                for f in range(3): add((ts, 3, f))
        assert t > 0 or ("st",) not in q
    while q: retire(wait(len(q) - 1))
    a("s_nop 3")
    for f in range(3):
        if f: a("s_nop 1")
        for m in range(4): a(f"v_cvt_pk_bf16_f32 v{32+4*f+m}, v{8*f+2*m}, v{8*f+2*m+1}")
        a(f"buffer_store_dwordx4 v[{32+4*f}:{35+4*f}], {vO[f]}, {Sout}, 0 offen {o.outflag}".rstrip())

def tail_and_slow(o, nst):
    T = []; a = T.append
    a("; ---- reduce this workgroup's output chunk over the 16 head pairs of its batch")
    reduce_tail(o, a, nst); nst += 1 + 4 * int(o.rst)
    if int(o.stamps):
        a(f"s_memrealtime s[{64+2*nst}:{65+2*nst}]"); a("s_waitcnt vmcnt(0)")
        a(f"s_memrealtime s[{66+2*nst}:{67+2*nst}]"); a("s_waitcnt lgkmcnt(0)")
        a("s_cmp_lg_u32 s3, 0"); a("s_cbranch_scc1 Lend")
        if o.enc:
            ea, eb = [int(z) for z in o.enc.split(",")]
            a("s_cmp_lg_u32 s2, 100"); a("s_cbranch_scc1 Lnoenc")
            a(f"s_sub_u32 s52, s{64+2*eb}, s{64+2*ea}"); a("s_mul_i32 s52, s52, 10"); a("s_min_u32 s52, s52, 200000"); a("s_add_u32 s52, s52, 500")
            a("Lspin:"); a("s_memrealtime s[46:47]"); a("s_waitcnt lgkmcnt(0)"); a(f"s_sub_u32 s46, s46, s{66+2*nst}")
            a("s_cmp_lt_u32 s46, s52"); a("s_cbranch_scc1 Lspin"); a("Lnoenc:")
        a("s_load_dwordx2 s[40:41], s[0:1], 56"); a("s_mov_b32 s42, 0x10000000"); a("s_mov_b32 s43, 0x20000"); a("s_waitcnt lgkmcnt(0)")
        a(f"s_lshl_b32 s52, s2, 6"); a(f"s_add_u32 s52, s52, {STAMP_OFF}"); a("v_mov_b32 v1, s52")
        a("s_mov_b64 exec, 1")
        if int(o.rst): a("s_mul_i32 s63, s63, 100"); a("s_add_u32 s66, s64, s63")
        assert nst + 2 <= 16
        for n in range(nst + 2):
            a(f"v_mov_b32 v2, s{64+2*n}"); a(f"buffer_store_dword v2, v1, s[40:43], 0 offen offset:{4*n} sc1")
        if o.encx:
            col, fn = o.encx.split(",")
            a("s_cmp_lg_u32 s2, 100"); a("s_cbranch_scc1 Lend"); a("s_mov_b64 exec, -1"); a("s_waitcnt vmcnt(0)")
            a("Lsp1:"); a("s_memrealtime s[46:47]"); a("s_waitcnt lgkmcnt(0)"); a(f"s_sub_u32 s46, s46, s{66+2*nst}"); a("s_cmp_lt_u32 s46, 500"); a("s_cbranch_scc1 Lsp1")
            a(f"v_lshlrev_b32 v1, 4, {vL16}"); a(f"s_mov_b32 s52, {STAMP_OFF}")
            for z in range(4):
                a(f"buffer_load_dword v{4+z}, v1, s[40:43], s52 offen offset:{64*z} sc1"); a(f"buffer_load_dword v{8+z}, v1, s[40:43], s52 offen offset:{64*z+4*int(col)} sc1")
            a("s_waitcnt vmcnt(0)")
            for z in range(8): a(f"v_subrev_u32 v{4+z}, s64, v{4+z}")
            a("v_min_i32 v4, v4, v5"); a("v_min3_i32 v4, v4, v6, v7"); a(f"v_{fn}_i32 v8, v8, v9"); a(f"v_{fn}3_i32 v8, v8, v10, v11"); a("s_nop 1")
            a("v_readlane_b32 s52, v4, 0"); a("v_readlane_b32 s53, v8, 0")
            for z in range(1, 64):
                a(f"v_readlane_b32 s46, v4, {z}"); a(f"v_readlane_b32 s47, v8, {z}"); a("s_min_i32 s52, s52, s46"); a(f"s_{fn}_i32 s53, s53, s47")
            a("s_sub_u32 s52, s53, s52"); a("s_mul_i32 s52, s52, 10"); a("s_min_u32 s52, s52, 200000"); a("s_add_u32 s52, s52, 5000")
            a("Lsp2:"); a("s_memrealtime s[46:47]"); a("s_waitcnt lgkmcnt(0)"); a("s_sub_u32 s46, s46, s64"); a("s_cmp_lt_u32 s46, s52"); a("s_cbranch_scc1 Lsp2")
    a("Lend:"); a("s_endpgm")
    if int(o.r0in):
        a("Lp0_spin:"); a("s_mov_b32 s63, 0"); a("Lp0_loop:")
        a(f"buffer_load_dword {vRdy}, {vPo}, {Smb}, {sGo} offen sc1"); a("s_add_u32 s63, s63, 1"); a("s_waitcnt vmcnt(0)")
        a(f"v_cmp_eq_u32 vcc, 0, {vRdy}"); a("s_cmp_lt_u32 s63, 0x40000"); a("s_cselect_b64 vcc, vcc, 0")
        a("s_cbranch_vccnz Lp0_loop"); a("s_branch Lp0_back")
    a("; ---- wait until all 16 workgroups of the batch have cleared their mailboxes"); a("Lrdy_spin:"); a("s_mov_b32 s63, 0"); a("Lrdy_loop:")
    a(f"buffer_load_dword {vRdy}, {vRdA}, {Sdbg}, 0 offen sc1"); a("s_add_u32 s63, s63, 1"); a("s_waitcnt vmcnt(0)")
    a(f"v_cmp_gt_u32 vcc, 16, {vRdy}"); a("s_cmp_lt_u32 s63, 0x40000"); a("s_cselect_b64 vcc, vcc, 0")
    a("s_cbranch_vccnz Lrdy_loop"); a("s_branch Lrdy_back")
    a("; ---- fallback: a row sum left the safe range, so take the exact row maxima over all keys and redo the workgroup with them"); a("Lslow:"); a("s_waitcnt vmcnt(0) lgkmcnt(0)"); a("s_nop 7"); a("s_barrier")
    a("v_mbcnt_lo_u32_b32 v0, -1, 0"); a("v_mbcnt_hi_u32_b32 v0, -1, v0")
    a("v_and_b32 v1, 15, v0"); a("v_lshlrev_b32 v1, 8, v1"); a("v_lshrrev_b32 v2, 4, v0"); a("v_lshl_add_u32 v1, v2, 4, v1")
    a("s_lshl_b32 s52, s48, 17"); a("s_add_u32 s52, s52, 128"); a("s_lshl_b32 s53, s49, 6"); a("s_add_u32 s62, s52, s53")
    a("v_add_u32 v2, s62, v1"); a("s_xor_b32 s53, s53, 64"); a("s_add_u32 s62, s52, s53"); a("v_add_u32 v3, s62, v1")
    for b in range(5): a(f"v_mov_b32 v{8+b}, 0xff800000")
    a("s_mov_b32 s45, 0"); a("Lslow_loop:")
    for t in range(4): a(f"buffer_load_dwordx4 v[{16+4*t}:{19+4*t}], v{2+(t&1)}, {Sk}, s45 offen offset:{128*(t>>1)}")
    a("s_waitcnt vmcnt(0)")
    for b in range(5):
        for t in range(4):
            a(f"v_mfma_f32_16x16x32_bf16 {NM(b)}, v[{16+4*t}:{19+4*t}], {QF(b,t)}, {0 if t == 0 else NM(b)}")
    a("s_nop 7"); a("s_nop 1")
    for b in range(5):
        n = NM(b); a(f"v_max3_f32 v{8+b}, v{8+b}, {n[0]}, {n[1]}"); a(f"v_max3_f32 v{8+b}, v{8+b}, {n[2]}, {n[3]}")
    a("s_add_u32 s45, s45, 4096"); a("s_cmp_lt_u32 s45, 131072"); a("s_cbranch_scc1 Lslow_loop")
    for b in range(5): a(f"v_accvgpr_write_b32 {SAV(b)}, v{8+b}")
    a("s_load_dwordx16 s[4:19], s[0:1], 0"); a("s_mov_b32 s54, 1"); a("s_branch Lrestart"); a("Lcode_end:")
    return T

KD = """.amdhsa_kernel {name}
  .amdhsa_next_free_vgpr {vg}
  .amdhsa_next_free_sgpr {sg}
  .amdhsa_accum_offset {acc}
  .amdhsa_group_segment_fixed_size 0
  .amdhsa_kernarg_size 64
  .amdhsa_user_sgpr_count 2
  .amdhsa_user_sgpr_kernarg_segment_ptr 1
  .amdhsa_system_sgpr_workgroup_id_x 1
  .amdhsa_float_denorm_mode_32 3
.end_amdhsa_kernel"""

DESC = """
;
; One workgroup per CU, 4 waves, workgroup = (batch b, head pair j).  wave = (head, query half): 4 own blocks of 16
; queries plus the ninth block on every second key tile.  All products are 16x16x32 bf16 MFMAs in transposed form, so
; Q^T, P^T and O^T go from accumulator to operand without leaving registers; x, Wq, K, V and Wo stream through LDS by DMA.
; Softmax: log2(e)/sqrt(128) is folded into Q; each row is shifted by the maximum of its first 16 scores (accumulator
; initial value).  The row sums are checked before anything is stored: if one is above 2^40 (or NaN) the workgroup
; computes the exact maxima over all keys and runs again with them (Lslow).
; Head reduction: bf16 partial outputs go to d_ws with write-through stores; a wave flags a chunk in the consumer's
; mailbox once its stores have completed, and every workgroup sums one 144x32 chunk of its batch in fp32.  Mailboxes are
; cleared by their owner at the start of the launch; d_debug counts the cleared mailboxes of each batch.
; The counted waits in front of the stream loads cap the loads in flight, which keeps the CUs level with each other.
;
"""

def generate(o):
    hdr = [l.rstrip("\n") for l in open(f"cdna_kernels/{NAME}.s.ref") if l.startswith(";") and "@launch" not in l and "grid=" not in l and "Override" not in l]
    seq, nst = build_main(o)
    hdr += DESC.strip("\n").split("\n")
    L = hdr + [f"; @launch grid=(256,1,1) block=(256,1,1) lds={LDSB}", '.amdgcn_target "amdgcn-amd-amdhsa--gfx950"', ".text",
               f".globl {NAME}_kernel", ".p2align 8", f".type {NAME}_kernel,@function", f"{NAME}_kernel:"]
    L += [i.text for i in seq] + tail_and_slow(o, nst)
    L += ['.section .rodata,"a"', ".p2align 6", KD.format(name=f"{NAME}_kernel", vg=512, sg=102, acc=256)]
    txt = "\n".join(L) + "\n"
    if int(o.clk): txt = txt.replace("s_memrealtime", "s_memtime")
    return txt

if __name__ == "__main__":
    o = Opt()
    for kv in sys.argv[2:]:
        k, v_ = kv.split("=", 1)
        assert hasattr(Opt, k), k
        setattr(o, k, v_)
    open(sys.argv[1], "w").write(generate(o))
```

```python
import sys, math, struct
from dsl import *

NAME = "standalone__mha_block_cached__near_ridge"
US, GRP, PS = 17024, 4224, 1056
X9 = 9 * US
FLAG = X9 + 8448
LDSB = 163840
PART = 147456
STAMP_OFF = 0x4000000
MBOFF = 256 * PART
def fbits(x): return struct.unpack("<I", struct.pack("<f", x))[0]
CSC = fbits(math.log2(math.e) / math.sqrt(128.0))
THR = fbits(2.0 ** 40)

Smb, Sred, Sout, Sdbg = S(4, 4), S(8, 4), S(12, 4), S(16, 4)
Sx, Swq, Sk, Sv, Swo, Sws = S(20, 4), S(24, 4), S(28, 4), S(32, 4), S(36, 4), S(40, 4)
sW, sGrp, sOff, sC, sGrP, sHH, sQH, sB, sJ = S(3), S(44), S(45), S(46), S(47), S(48), S(49), S(50), S(51)
sT0, sT1, sMode, sX9, sT3, sOw0, sOw1, sA8, sB8, sSt, sT2, sAt = [S(n) for n in range(52, 64)]
sRx, sRw = S(96), S(97)
sCc = S(55)
sRk = S(47)
sP = lambda p: S(98 + p)
ACC = lambda b, f: V(32 * b + 4 * f, 4)
QF = lambda b, t: (V(128 + 16 * b + 4 * t, 4) if b < 4 else A(180 + 4 * t, 4))
SB = lambda k: V(192 + 8 * k, 8)
PB = lambda k: V((208, 212, 248)[k], 4)
NM = lambda b: V(216 + 4 * b, 4)
Kr = lambda y, p: V(236 + 2 * y + p)
Vr = lambda y, hf: V(240 + 2 * y + hf)
vKV = lambda pp: V(244 + pp)
vL16, vTs, vT0, vT1 = V(252), V(253), V(254), V(255)
qWr = lambda win, p: V(216 + 2 * win + p)
qXr = lambda win: V(220 + win)
qX9r = V(222)
qWd = lambda pp: V(225 + pp)
qXd = lambda pp: V(229 + pp)
qX9d, qA8, qB8 = V(233), V(234), V(235)
KF = lambda y, h, t: A(32 * y + 16 * h + 4 * t, 4)
VF = lambda e, y, d: A((96 if y else (64, 200)[e & 1]) + 4 * d, 4)
O9 = lambda d: A(128 + 4 * d, 4)
LS = lambda b: A(160 + 4 * b, 4)
ONES = A(196, 4)
SAV = lambda b: A(248 + b)
aWpat, aWo0, aKv0 = A(253), A(254), A(255)
Aq = lambda fp, kk: A(96 + 8 * fp + 4 * kk, 4)
Bq = lambda I_, kk, b: A((128, 200)[I_ & 1] + 16 * kk + 4 * b, 4)
B9 = lambda I_, kk: A(232 + 8 * (I_ & 1) + 4 * kk, 4)
SEQ = [(I_, h) for I_ in range(6) for h in range(2)] + [(6, 0), (7, 0), (6, 1), (7, 1)]
WQU = {4: 1, 5: 4, 0: 5, 1: 3, 2: 6, 3: 8}
XU = {2: 0, 0: 2, 1: 7}
KVU = lambda slot: (2 * slot, 2 * slot + 1, 4 + 2 * slot, 5 + 2 * slot)
WOU = {0: (0, 1, 4, 5), 1: (2, 3, 0, 1), 2: (4, 5, 2, 3), 3: (0, 1, 6, 7)}
Ao = lambda p, ks, u: A(((64, 0), (32, 96))[p & 1][ks >> 2] + 16 * u + 4 * (ks & 3), 4)
QB = [0, 4, 1, 5, 2, 6, 3, 7, 8]
def Bo(qb, ks):
    if qb < 4: return V(32 * qb + 4 * ks, 4)
    if qb == 4: return A(232 + 4 * ks if ks < 6 else 192 + 4 * (ks - 6), 4)
    if qb == 6: return V(128 + 4 * ks, 4)
    return A({5: 200, 7: 160, 8: 128}[qb] + 4 * ks, 4)
TR, B128 = "ds_read_b64_tr_b16", "ds_read_b128"
sG, sGo = S(96), S(97)
vSt3, vOwn, vOwr = V(232), V(233), V(234)
vF, vOne, vRdy, vPo, vR, vRdA, vO, SEL = V(220), V(221), V(222), V(223), V(224, 3), V(227), V(228, 3), V(160, 8)

class Opt:
    stamps = 0; clk = 0; enc = None; encx = None; xst = ""; qst = ""; abl = ""
    kvflag = "nt"; stflag = "sc1"; outflag = "sc1"
    qseq = ("x0,n0,w0,w1|p1,x1,w2,p2,w3,p5.3,x2,n1,w4,w5,x3,w6,t2,w7,x4,n2,w8,p4.2,w9,x5,w10,w11,x6,n3,w12,x7,w13,w14,w15,"
            "p2,s0,s1,s2,p3,s3,k0,p5,k1,p9,k2,k3")
    bal = '(12,21)'; winlo = 5; winhi = 7; hx = 'h'; asym = 0; lpf = 0; tflag = ''; rot = 2; rsh = 1; cpf = 2
    ashift = 0; win = 6; winfrom = 2; astep0 = 12.4; astep = 10.4; astep4 = 10.4; astep5 = 10.4; estep = 8.7; wow = 0.5; bxo = 10; w1bo = 4
    ouseq = '00,04,10,14,01,05,11,02,06,15,12,03,07,16,08,13,17,18'
    vmgap = 2; dswgap = 4; maxmem = 1; wiso = 1; hor = 40; lead = 8; w64 = 0
    sepv = 3; bvo = 14; bv7 = 0; bk0 = 20; ba0 = -22; bb0 = 30; bao = 0; bbo = 20; bb7 = 32; ate = 9; merge = 1; ts = 3; stag = 0; rdyo = 90; rank = '[]'; rkth = 32; dmin = 3; prev = 1; map4 = 0; wmix = 0; wsp = 0; bno = 14; bbo1 = 20; rst = 0; wpace = 0.5; thin = 1; call = 1; cte = '0,3'; tt = 0; win0 = '10,10,10,10,10,9,8,8'; rox = ''; kvm = 1; all0 = 0; cpl = 0; rawp = 1; winp = ''; adw = 0; fb = 0; bko1 = 11; byo = 12; hold = 0; lflag = 'sc1'; l3flag = 'sc1'; rflag = 'sc1'; r0in = 0; r0o = 12; r0step = 7; swin = 0; rwin = 6; polli = 2; b1o = 18; bko = 11; bdo = 100; flo = '190,160,104'; pollo = 36; ostep0 = 4; ostep1 = 4; ostep2 = 4; ostep3 = 16; ostep4 = 12
    def __getattr__(s, k): raise AttributeError(k)

def setoff(soff):
    if isinstance(soff, tuple):
        r, add, mask = soff
        if mask == "x": return [salu("s_xor_b32", sOff, r, add)]
        return [salu("s_add_u32", sOff, r, add)] + ([salu("s_and_b32", sOff, sOff, mask)] if mask else [])
    return [salu("s_mov_b32", sOff, soff)]
def group(unit_off, base, voff, srd, soff, flags, tag):
    return [salu("s_add_u32", "m0", base, unit_off)] + setoff(soff) + [dma(voff(pp), srd, sOff, PS * pp, flags, tag) for pp in range(4)]
def g_wq(j): return group(WQU[j % 6] * US, sGrp, qWd, Swq, (sRw, SEQ[j][0] * 524288 + SEQ[j][1] * 128, 0x3fffff), "", f"wq{j}")
def g_x(I_): return group(XU[I_ % 3] * US, sGrp, qXd, Sx, (sRx, I_ * 128, 1023), "", f"x{I_}")
def g_x9(n): return [salu("s_add_u32", "m0", sX9, X9 + (n & 1) * GRP)] + setoff((sRx, n * 256, 1023)) + [dma(qX9d, Sx, sOff, 0, "", f"xn{n}")]
def g_kv(e, part, o, cap=True):
    kv, half = part >> 1, part & 1
    ops = group(KVU(e & 1)[part] * US, sGrp, vKV, (Sk, Sv)[kv], (sRk, e * 16384 + half * (4096 << int(o.kvm)), "x"), o.kvflag, f"{'kv'[kv]}{e}")
    if e < int(o.winfrom) and o.win0:
        for x in ops:
            if x.kind == "dma": x.text = f"s_waitcnt vmcnt({int(o.win0.split(',')[4 * e + part])-1})\n" + x.text
    if cap and int(o.win) and e >= int(o.winfrom):
        for x in ops:
            if x.kind != "dma": continue
            if any(4 * e + part in range(*z) for z in (eval(o.bal) if o.bal[0] == "[" else [eval(o.bal)])):
                g_kv.n = getattr(g_kv, "n", 0) + 1
                x.text = f"s_cbranch_vccz Lw{g_kv.n}\ns_waitcnt vmcnt({int(o.winlo)-1})\nLw{g_kv.n}:\ns_waitcnt vmcnt({int(o.winhi)-1})\n" + x.text
            else:
                g_kv.m = getattr(g_kv, "m", 0) + 1
                x.text = f"s_waitcnt vmcnt({int(o.winp[g_kv.m % len(o.winp)] if o.winp else o.win)-1})\n" + x.text
    return ops
def g_wo(p, hf): return sum((group(WOU[p][part] * US, sGrp, vKV, Swo, (sP(p), part * 65536, 0), "", f"wo{p}{'ab'[hf]}") for part in (2 * hf, 2 * hf + 1)), [])
def w128(o, addr, data, off):
    if not int(o.w64): return [dsw("ds_write_b128", addr, data, off)]
    return [dsw("ds_write_b64", addr, (data[0].sub(2 * z, 2), data[1]), off + 8 * z) for z in range(2)]

def qtok(tok, o):
    c, n = tok[0], int(tok[1:])
    if c == "w": return g_wq(n), n - 6
    if c == "x": return g_x(n), 2 * (n - 3)
    if c == "n": return g_x9(n), (4 * (n - 2) + 2 if n >= 2 else -1)
    if c == "c": return code_touch(V(254, 2), vTs, vL16, shift=3), -1
    if c == "t":
        ops = [salu("s_bfe_u32", sT0, sB, (1 << 16) | 1), salu("s_lshl_b32", sT0, sT0, 24)] + (
               [salu("s_lshl_b32", sT1, sQH, 12), salu("s_add_u32", sT0, sT0, sT1)] if int(o.kvm) else []) + [
               valu("v_mul_u32_u24", vT0, 7, vL16), valu("v_add3_u32", vT0, vT0, vKV(0), sT0)] + (setoff(16384) if 2 < n < 10 else [])
        return ops + [I(f"buffer_load_dword {vTs}, {vT0}, {(Sk, Sv)[z & 1]}, {sOff if z >> 1 else 0} offen", "vml", rd=[vT0, sOff], tag="ct") for z in (range(n) if n < 10 else [n - 10])], -1
    if c == "u":
        ops = [salu("s_bfe_u32", sT0, sB, (1 << 16) | 1), salu("s_xor_b32", sT0, sT0, 1), salu("s_lshl_b32", sT0, sT0, 24),
               salu("s_bfe_u32", sT1, sB, (1 << 16) | 2), salu("s_lshl_b32", sT1, sT1, 17), salu("s_add_u32", sT0, sT0, sT1),
               salu("s_and_b32", sT1, sB, 1), salu("s_lshl2_add_u32", sT1, sT1, sW), salu("s_lshl_b32", sT1, sT1, 14), salu("s_add_u32", sT0, sT0, sT1),
               valu("v_lshl_add_u32", vT0, vL16, 3, sT0)] + setoff(8192)
        return ops + [I(f"buffer_load_dword {vTs}, {vT0}, {Swo}, {sOff if z else 0} offen offset:128", "vml", rd=[vT0, sOff], tag="ct") for z in range(2)], -1
    if c == "s": return g_kv(0, n, o), (10, 10, 11, 12)[n]
    if c == "k": return g_kv(1, n, o), (12, 13, 14, 14)[n]
    raise ValueError(tok)

def code_touch(va, vd, lane, shift, tid=False):
    n = code_touch.n = getattr(code_touch, "n", 0) + 1
    return [valu("v_lshlrev_b32", va[0], shift, lane)] + ([] if tid else
            [salu("s_and_b32", sT0, sB, 7), salu("s_lshl_b32", sT1, sW, 6), salu("s_add_u32", sT0, sT0, sT1), salu("s_lshl_b32", sT0, sT0, 7),
             valu("v_and_b32", va[0], "0x1c00", va[0]), valu("v_add_u32", va[0], sT0, va[0])] if code_touch.thin else
            [salu("s_lshl_b32", sT0, sW, 13), valu("v_add_u32", va[0], sT0, va[0])]) + [
            raw(f"s_getpc_b64 s[52:53]\nLpc{n}:", wr=[sT0, sT1], kind="salu"),
            raw(f"v_min_u32 {va[0]}, Lcode_end-Lpc{n}-4, {va[0]}", rd=[va[0]], wr=[va[0]], kind="valu"),
            valu("v_mov_b32", va[1], 0),
            raw(f"v_lshl_add_u64 {va}, {va}, 0, s[52:53]", rd=[va, sT0, sT1], wr=[va], kind="valu"),
            I(f"global_load_dword {vd}, {va}, off", "vml", rd=[va], wr=[], tag="ct")]

def prologue(o):
    P = []; a = P.append
    v = lambda n: V(n)
    a(raw("s_cmp_ge_u32 s2, 256")); a(raw("s_cbranch_scc1 Lend"))
    a(raw("s_load_dwordx16 s[4:19], s[0:1], 0"))
    if int(o.stamps): a(raw("s_memrealtime s[64:65]"))
    if int(o.stag):
        assert int(o.stamps)
        a(raw("s_bfe_u32 s52, s2, 0x20001\nLstag:\ns_cmp_eq_u32 s52, 0\ns_cbranch_scc1 Lstag_done\ns_sleep %d\ns_sub_u32 s52, s52, 1\ns_branch Lstag\nLstag_done:" % int(o.stag)))
    a(valu("v_lshrrev_b32", v(1), 6, v(0)))
    if int(o.call):
        a(salu("s_bfe_u32", sT2, S(2), (3 << 16) | 3)); a(valu("v_lshrrev_b32", v(3), 2, v(0))); a(valu("v_lshl_add_u32", v(3), v(3), 3, sT2))
        P += code_touch(V(8, 2), vTs, v(3), shift=7, tid=True)
    elif int(o.cpf) and not int(o.cpl): P += code_touch(V(8, 2), vTs, v(0), shift=int(o.cpf) + 3, tid=True)
    a(valu("v_readfirstlane_b32", sW, v(1)))
    a(valu("v_mov_b32", v(2), "0xff800000")); a(salu("s_mov_b32", sMode, 0))
    for b in range(5): a(valu("v_accvgpr_write_b32", SAV(b), v(2)))
    a(raw("Lrestart:", kind="label"))
    L, t1, t2, t3, t4, t5, t6 = v(0), v(1), v(2), v(3), v(4), v(5), v(6)
    a(valu("v_mbcnt_lo_u32_b32", L, -1, 0)); a(valu("v_mbcnt_hi_u32_b32", L, -1, L))
    if int(o.map4):
        a(salu("s_bfe_u32", sB, S(2), (4 << 16) | 3))
        a(salu("s_and_b32", sT0, S(2), 7)); a(salu("s_lshr_b32", sT1, S(2), 7)); a(salu("s_lshl1_add_u32", sJ, sT0, sT1))
    else:
        a(salu("s_and_b32", sT0, S(2), 1)); a(salu("s_bfe_u32", sT1, S(2), (3 << 16) | 3)); a(salu("s_lshl3_add_u32", sB, sT0, sT1))
        a(salu("s_bfe_u32", sT0, S(2), (2 << 16) | 1)); a(salu("s_lshr_b32", sT1, S(2), 6)); a(salu("s_lshl2_add_u32", sJ, sT0, sT1))
    a(salu("s_lshr_b32", sHH, sW, 1)); a(salu("s_and_b32", sQH, sW, 1))
    a(salu("s_mul_i32", sGrp, sW, GRP)); a(salu("s_mul_i32", sX9, sW, PS))
    a(salu("s_add_u32", sT3, sB, sJ)); a(salu("s_lshl_b32", sT0, sT3, 0 if int(o.asym) else int(o.rsh))); a(salu("s_and_b32", sT0, sT0, int(o.rot)))
    if o.rox:
        a(salu("s_lshr_b32", sT1, S(2), 1))
        a({"b": salu("s_and_b32", sT1, S(2), 1), "h": salu("s_and_b32", sT1, sT1, 1), "x": salu("s_xor_b32", sT1, sT1, S(2))}[o.rox])
        a(salu("s_and_b32", sT1, sT1, 1)); a(salu("s_add_u32", sT0, sT0, sT1))
    a(salu("s_lshl_b32", sRx, sT0, 8)); a(salu("s_lshl_b32", sRw, sT0, 20))
    a(valu("v_and_b32", t1, 7, L)); a(valu("v_lshlrev_b32", t1, 4, t1))
    a(valu("v_lshrrev_b32", t2, 3, L)); a(valu("v_lshl_add_u32", t3, t2, 12, t1))
    a(salu("s_lshl_b32", sT0, sW, 15)); a(salu("s_add_u32", sT0, sT0, 128))
    a(valu("v_add_u32", qXd(0), sT0, t3))
    for pp in range(1, 4): a(valu("v_subrev_u32", qXd(pp), 32 * pp, qXd(0)))
    a(valu("v_and_b32", t4, 3, t2)); a(valu("v_lshl_add_u32", t3, t4, 12, t1))
    a(valu("v_lshrrev_b32", t2, 5, L)); a(valu("v_lshl_add_u32", t3, t2, 7, t3))
    a(salu("s_lshl_b32", sT0, sW, 10)); a(salu("s_add_u32", sT0, sT0, 128 * 1024 + 128))
    a(valu("v_add_u32", qX9d, sT0, t3))
    a(valu("v_lshl_add_u32", t3, t4, 16, t1)); a(valu("v_lshl_add_u32", t3, t2, 15, t3))
    a(salu("s_lshl_b32", sT0, sQH, 18)); a(salu("s_lshl_b32", sT1, sHH, 8)); a(salu("s_add_u32", sT0, sT0, sT1))
    a(valu("v_add_u32", qWd(0), sT0, t3))
    for pp in range(1, 4): a(valu("v_add_u32", qWd(pp), (8192 - PS) * pp, qWd(0)))
    a(salu("s_mov_b32", Sx[2], PART + 128)); a(salu("s_mov_b32", Sx[3], "0x20000")); a(salu("s_mov_b32", Swq[3], "0x20000"))
    a(salu("s_mul_i32", sT2, sB, PART)); a(salu("s_lshl_b32", sT1, sJ, 9)); a(salu("s_sub_u32", Swq[2], 4194304, sT1))
    a(raw("s_waitcnt lgkmcnt(0)"))
    def base(srd, ptr, off, shift=0, size=None):
        a(salu("s_add_u32", srd[0], S(ptr), off)); a(salu("s_addc_u32", srd[1], S(ptr + 1), 0))
        if shift:
            a(salu("s_sub_u32", srd[0], srd[0], shift)); a(salu("s_subb_u32", srd[1], srd[1], 0))
        if size: a(salu("s_mov_b32", srd[2], size + shift)); a(salu("s_mov_b32", srd[3], "0x20000"))
    base(Sx, 4, sT2, 128); base(Swq, 10, sT1)
    if int(o.asym):
        a(raw("s_bitcmp1_b32 s56, 0")); a(raw("s_cbranch_scc0 Lnotouch"))
        a(salu("s_and_b32", sT0, sB, 14)); a(salu("s_lshl4_add_u32", sT0, sT0, sJ)); a(salu("s_lshl_b32", sT0, sT0, 18))
        base(Sk, 6, sT0, 0, 4194304 + 262144)
        if int(o.asym) > 2: base(Sv, 8, sT0, 0, 4194304 + 262144)
        a(salu("s_lshl4_add_u32", sT0, sHH, sQH)); a(salu("s_lshl_b32", sT0, sT0, 13)); a(valu("v_lshl_add_u32", t3, L, 7, sT0))
        a(salu("s_mov_b32", sOff, 4194304))
        for n in range(int(o.asym)):
            if int(o.asym) == 3 and n == 2:
                a(valu("v_lshrrev_b32", t1, 5, L)); a(valu("v_mul_u32_u24", t1, 4194304 - 4096, t1)); a(valu("v_add_u32", t3, t3, t1))
            a(raw(f"buffer_load_dword {vTs}, {t3}, {(Sk, Sv)[n >> 1]}, {sOff if n & 1 else 0} offen {o.tflag}".rstrip(), rd=[t3], kind="vml"))
        a(raw("Lnotouch:", kind="label"))
    lin = []
    if int(o.lpf):
        a = lin.append
        base(Sk, 4, 0, 0, 16 * PART); base(Sv, 10, 0, 0, 4194304)
        a(salu("s_lshl2_add_u32", sT0, S(2), sW)); a(salu("s_mul_i32", sT1, sT0, 2304)); a(salu("s_lshl_b32", sT0, sT0, 12))
        a(valu("v_min_u32", t1, 17, L)); a(valu("v_lshl_add_u32", t1, t1, 7, sT1)); a(valu("v_lshl_add_u32", t3, L, 6, sT0))
        a(I(f"buffer_load_dword {vTs}, {t3}, {Sv}, 0 offen", "vml", rd=[t3], tag="ct"))
        a(I(f"buffer_load_dword {vTs}, {t1}, {Sk}, 0 offen", "vml", rd=[t1], tag="ct"))
    first = []
    for n, tok in enumerate(o.qseq.split("|")[0].split(",")):
        if n == int(o.lpf) - 1: first += lin
        first += qtok(tok, o)[0]
    Q = []; a = Q.append
    if int(o.cpl): a(valu("v_lshl_add_u32", t1, sW, 6, L)); Q += code_touch(V(8, 2), vTs, t1, shift=int(o.cpf) + 3, tid=True)
    a(salu("s_lshl4_add_u32", sT1, sB, sJ))
    a(salu("s_lshl_b32", sT0, sT1, 18)); base(Sk, 6, sT0, 128, 262144); base(Sv, 8, sT0, 128, 262144)
    a(salu("s_mul_i32", sT0, sT1, PART)); base(Sws, 18, sT0, 0, PART)
    a(salu("s_lshl_b32", sT0, sJ, 18)); base(Swo, 12, sT0, 128, 262144)
    base(Sout, 14, sT2, 0, PART)
    a(salu("s_lshl_b32", sT0, sT2, 4)); base(Sred, 18, sT0, 0, 16 * PART)
    a(salu("s_lshl_b32", sT0, sB, 15)); a(salu("s_add_u32", sT0, sT0, MBOFF)); base(Smb, 18, sT0, 0, 32768)
    a(salu("s_mov_b32", Sdbg[2], 256)); a(salu("s_mov_b32", Sdbg[3], "0x20000"))
    a(salu("s_mov_b32", sC, hex(CSC))); a(raw("s_bitcmp1_b32 s50, 1")); a(raw("s_cselect_b64 vcc, -1, 0"))
    a(salu("s_lshr_b32", sT3, sJ, 2)); a(salu("s_lshl_b32", sT0, sB, int(o.fb))); a(salu("s_sub_u32", sT3, sT3, sT0))
    for p in range(4): a(salu("s_add_u32", sT0, sT3, (p - int(o.ts)) & 3)); a(salu("s_and_b32", sT0, sT0, 3)); a(salu("s_lshl_b32", sP(p), sT0, 8))
    a(salu("s_and_b32", sT0, sT3, 3)); a(salu("s_and_b32", sT1, sJ, 3)); a(salu("s_lshl2_add_u32", sT3, sT0, sT1))
    a(valu("v_and_b32", t1, 15, L)); a(valu("v_lshlrev_b32", t1, 4, t1))
    a(valu("v_lshrrev_b32", t5, 4, L))
    a(salu("s_add_u32", sT0, sW, 0 if str(o.ate) == "9" else sMode)); a(salu("s_lshl4_add_u32", sAt, sT0, sB)); a(salu("s_lshl_b32", sAt, sAt, 4))
    a(salu("s_lshl_b32", sT0, sMode, 6)); a(salu("s_add_u32", sT0, sT0, sW)); a(salu("s_lshl_b32", sT0, sT0, 9))
    a(valu("v_lshl_add_u32", t6, L, 3, sT0)); a(salu("s_lshl_b32", sOff, sT3, 11)); a(valu("v_mov_b64", V(8, 2), 0))
    a(vstore(V(8, 2), t6, Smb, sOff, 0, "sc1", tag="mbz", op="buffer_store_dwordx2"))
    a(valu("v_lshl_add_u32", t3, t5, 13, t1))
    a(salu("s_lshl_b32", sT0, sHH, 15)); a(salu("s_lshl_b32", sT1, sQH, 12)); a(salu("s_add_u32", sT0, sT0, sT1))
    a(salu("s_add_u32", sT0, sT0, 128)); a(valu("v_add_u32", t3, sT0, t3)); a(valu("v_accvgpr_write_b32", aWo0, t3))
    a(valu("v_lshlrev_b32", vL16, 4, L))
    a(salu("s_lshl_b32", sT0, sHH, 17)); a(salu("s_lshl_b32", sT1, sQH, 13 - int(o.kvm))); a(salu("s_add_u32", sT0, sT0, sT1))
    a(salu("s_add_u32", sT0, sT0, 128)); a(valu("v_add_u32", vKV(0), sT0, vL16)); a(valu("v_accvgpr_write_b32", aKv0, vKV(0)))
    for pp in range(1, 4): a(valu("v_subrev_u32", vKV(pp), 32 * pp, vKV(0)))
    a(salu("s_xor_b32", sT0, sW, 1)); a(salu("s_mul_i32", sGrP, sT0, GRP))
    a(salu("s_add_u32", sA8, sGrp, 8 * US)); a(salu("s_add_u32", sB8, sGrP, 8 * US))
    a(valu("v_add_u32", qA8, sA8, vL16)); a(valu("v_add_u32", qB8, sB8, vL16))
    a(valu("v_and_b32", t1, 3, L)); a(valu("v_mul_u32_u24", t1, PS, t1)); a(valu("v_lshl_add_u32", t1, t5, 4, t1))
    a(valu("v_bfe_u32", t3, L, 2, 2)); a(valu("v_lshl_add_u32", t3, t3, 7, t1))
    a(valu("v_add_u32", qX9r, X9, t3))
    a(salu("s_mul_i32", sT0, sQH, 2 * GRP)); a(valu("v_add_u32", qXr(0), sT0, t3))
    a(valu("v_add_u32", qXr(1), 7 * US, qXr(0)))
    a(valu("v_bfe_u32", t3, L, 2, 1)); a(valu("v_mul_u32_u24", t3, US, t3)); a(valu("v_add_u32", t1, t1, t3))
    a(valu("v_bfe_u32", t3, L, 3, 1)); a(valu("v_lshl_add_u32", t1, t3, 8, t1))
    a(salu("s_lshl_b32", sT0, sQH, 6)); a(salu("s_xor_b32", sT1, sT0, 64))
    a(valu("v_add_u32", t3, sT0, t1)); a(valu("v_add_u32", t6, sT1, t1))
    a(valu("v_add_u32", Kr(0, 0), sGrp, t3)); a(valu("v_add_u32", Kr(0, 1), sGrp, t6))
    a(valu("v_add_u32", Kr(1, 0), sGrP, t3)); a(valu("v_add_u32", Kr(1, 1), sGrP, t6))
    a(valu("v_bfe_u32", t1, L, 2, 2)); a(valu("v_mul_u32_u24", t1, PS, t1))
    a(valu("v_and_b32", t3, 1, L)); a(valu("v_lshl_add_u32", t6, t3, 4, t1))
    a(valu("v_bfe_u32", t3, L, 1, 1)); a(valu("v_lshl_add_u32", t6, t3, 3, t6))
    a(valu("v_lshl_add_u32", t3, t5, 7, t6))
    a(salu("s_mul_i32", sT2, sHH, 2 * GRP)); a(salu("s_add_u32", sT2, sT2, US)); a(valu("v_add_u32", t3, sT2, t3))
    a(valu("v_add_u32", qWr(0, 0), sT0, t3)); a(valu("v_add_u32", qWr(0, 1), sT1, t3))
    a(valu("v_add_u32", qWr(1, 0), 4 * US, qWr(0, 0))); a(valu("v_add_u32", qWr(1, 1), 4 * US, qWr(0, 1)))
    a(valu("v_and_b32", t4, 1, t5))
    a(valu("v_lshl_add_u32", t6, t2, 8, t6)); a(valu("v_mul_u32_u24", t3, GRP, t4)); a(valu("v_add_u32", t6, t6, t3))
    a(salu("s_lshl_b32", sT2, sW, 6)); a(valu("v_add_u32", t6, sT2, t6)); a(valu("v_accvgpr_write_b32", aWpat, t6))
    a(valu("v_lshl_add_u32", t1, t2, 8, t1)); a(valu("v_and_b32", t3, 3, L)); a(valu("v_lshl_add_u32", t1, t3, 3, t1))
    a(valu("v_mul_u32_u24", t3, US, t4)); a(valu("v_add_u32", t1, t1, t3)); a(valu("v_add_u32", t1, 4 * US, t1))
    a(salu("s_lshl_b32", sT0, sT0, 1)); a(salu("s_lshl_b32", sT1, sT1, 1))
    a(valu("v_add_u32", t3, sT0, t1)); a(valu("v_add_u32", t6, sT1, t1))
    a(valu("v_add_u32", Vr(0, 0), sGrp, t3)); a(valu("v_add_u32", Vr(0, 1), sGrp, t6))
    a(valu("v_add_u32", Vr(1, 0), sGrP, t3)); a(valu("v_add_u32", Vr(1, 1), sGrP, t6))
    a(salu("s_and_b32", sRk, {"h": sHH, "b": sB, "0": 0}[o.hx], 1)); a(salu("s_lshl_b32", sRk, sRk, 12 + int(o.kvm)))
    a(salu("s_lshl1_add_u32", sT2, sQH, sHH)); a(salu("s_lshl_b32", sT2, sT2, 12)); a(salu("s_add_u32", sT2, sT2, 6 * US))
    a(salu("s_lshl4_add_u32", sOw0, sT0, sT2)); a(salu("s_lshl4_add_u32", sOw1, sT1, sT2))
    a(valu("v_mov_b32", t1, "0x3f803f80"))
    for r in range(4): a(valu("v_accvgpr_write_b32", (ONES[r], "ones"), t1))
    return P, first, Q

def build_main(o):
    code_touch.thin = int(o.thin)
    P, first, Q = prologue(o)
    sc = Sched(vmgap=int(o.vmgap), dswgap=int(o.dswgap), maxmem=int(o.maxmem), wiso=int(o.wiso), horizon=int(o.hor))
    F = sc.f
    nstamp = [1]
    def stamp(g, after=()):
        if int(o.stamps):
            n = nstamp[0]; nstamp[0] += 1
            F(raw(f"s_memrealtime s[{64+2*n}:{65+2*n}]"), g, g, after=after)
    nextvm = [0]
    def spread(ops, lo, step, q="dma", after=(), cap=None):
        out = []; pos = max(lo, nextvm[0]); pend = []
        for x in ops:
            pend.append(x)
            if x.kind in ("dma", "vml", "vms"):
                a_, b_ = int(pos), int(pos + step)
                if cap is not None: a_, b_ = min(a_, cap), min(b_, cap)
                for y in pend[:-1]: out.append(F(y, max(min(lo, b_), min(a_ - 3, b_)), b_, q=q, after=after))
                out.append(F(x, a_, b_, q=q, after=after)); pend = []
                if x.tag not in ('at', 'ct'): pos += step
        assert not pend
        nextvm[0] = pos
        return out
    cur = {}; lastrd = {}; firstrd = {}; lastwr = {}
    def M(d, dtag, a_, b_, c):
        cc = (d, cur[str(d)]) if c == "acc" else c
        i = mfma((d, dtag), a_, b_, cc); n = sc.m(i); cur[str(d)] = dtag
        for r, t in i.rd.items():
            lastrd[(r, t)] = n; firstrd.setdefault((r, t), n)
        lastwr[str(d)] = n
        return n
    lr = lambda reg, tag: max(lastrd[(r, tag)] for r in reg.regs())
    fr_ = lambda reg, tag: min(firstrd[(r, tag)] for r in reg.regs())
    for i in first + Q: F(i, -1, -1, q="dma")
    k0 = {}; qdone = {}
    for j, (I_, hf) in enumerate(SEQ):
        k0[j] = sc.n
        if j < 15: order = [(fp, b) for fp in range(4) for b in range(5) if b < 4 or fp < 2]
        else: order = [(fp, 4) for fp in range(2)] + [(fp, b) for b in range(4) for fp in range(4)]
        for fp, b in order:
            d = ACC(b, 4 * hf + fp) if b < 4 else SB(hf).sub(4 * fp, 4)
            for kk in range(2):
                bb = (Bq(I_, kk, b) if b < 4 else B9(I_, kk), f"x{I_}")
                n = M(d, "Qacc" if (I_, kk) == (7, 1) else f"q{I_}.{kk}", (Aq(fp, kk), f"w{j}"), bb, 0 if (I_, kk) == (0, 0) else "acc")
            qdone[str(d)] = n
    k0[16] = sc.n
    units = []; U = {}; G = {}; pre0 = {}; preL = {}
    P7 = {0: PB(0), 1: PB(1), 8: PB(2), 2: NM(0), 3: NM(4), 4: NM(1), 5: NM(2)}
    def pre(b):
        pre0[b] = sc.n
        for t in range(4): preL[b] = M(NM(b), f"pm{b}", (KF(0, 0, t), "k0"), (QF(b, t), f"Q{b}"), 0 if t == 0 else "acc")
    def qk(e, u):
        n = len(units); b, y = (u >> 1, u & 1) if u < 8 else (4, 0)
        s_ = SB(n & 1); p_ = PB(u % 3) if e < 7 else P7.get(u, s_.sub(0, 4))
        un = dict(e=e, u=u, b=b, y=y, S=s_, P=p_, n=n, q0=sc.n, hl=[0, 0])
        for h in range(2):
            for t in range(4):
                un["hl"][h] = M(s_.sub(4 * h, 4), f"s{n}", (KF(y, h, t), f"k{e}"), (QF(b, t), f"Q{b}"), (NM(b), f"nm{b}") if t == 0 else "acc")
        units.append(un); U[(e, u)] = un
    def pv(e, b, ds=range(-1, 8)):
        us = [U[(e, 2 * b)], U[(e, 2 * b + 1)]] if b < 4 else [U[(e, 8)]]
        g = G.setdefault((e, b), dict(p0=sc.n))
        for d in ds:
            acc = LS(b) if d < 0 else (ACC(b, d) if b < 4 else O9(d))
            for k, un in enumerate(us):
                a_ = (ONES, "ones") if d < 0 else (VF(e, un["y"], d), f"v{e}")
                g["pL"] = M(acc, f"o{e}.{k}" if k + 1 < len(us) else f"o{e}", a_, (un["P"], f"p{un['n']}"), 0 if e == 0 and k == 0 else "acc")
        for un in us: un["g"] = g
    st0 = {}
    for e in range(8):
        st0[e] = sc.n
        if e == 0: pre(0); pre(1)
        qk(e, 0); qk(e, 1)
        if e: pv(e - 1, 4)
        if e < 7:
            for b in range(1, 4):
                if e == 0: pre(b + 1)
                qk(e, 2 * b); qk(e, 2 * b + 1); pv(e, b - 1)
            qk(e, 8); pv(e, 3)
        else:
            prv = int(o.prev)
            for u in (8, 2, 3, 4, 5, 6, 7):
                qk(e, u)
                if u == 3 and prv: pv(e, 4, [-1])
            p7 = sc.n
            for b in ((0, 1, 2, 3) if prv else (4, 0, 1, 2)): pv(e, b, [-1])
            pv(e, 4, range(8))
            if not prv: pv(e, 3, [-1])
            for b in range(4): pv(e, b, range(8))
    attn_end = sc.n - 1
    odone = dict(lastwr)
    ou0 = {}; ouh = {}
    OU = [(p, qb) for p in range(4) for qb in QB]
    mg = int(o.merge)
    if mg:
        OU[:18] = [(int(z[0]), int(z[1])) for z in o.ouseq.split(",")]
    for n, (p, qb) in enumerate(OU):
        if True:
            ou0[n] = sc.n
            for u in range(2):
                for ks in range(8):
                    ouh[(n, u)] = M(SB(n & 1).sub(4 * u, 4), f"r{n}", (Ao(p, ks, u), f"wo{p}"), (Bo(qb, ks), f"of{qb}"), 0 if ks == 0 else "acc")
    last = sc.n - 1
    ou0[36] = ou0[37] = last + 1
    def rdA(j, fp):
        u = WQU[j % 6]; win = 0 if u <= 4 else 1
        return [dsr(TR, (Aq(fp, kk).sub(2 * h, 2), f"w{j}"), qWr(win, fp >> 1), (u - 1 - 4 * win) * US + kk * GRP + 512 * h + 32 * (fp & 1))
                for kk in range(2) for h in range(2)]
    def rdB(I_):
        u = XU[I_ % 3]; win = 1 if u == 7 else 0
        l = [dsr(B128, (Bq(I_, kk, b), f"x{I_}"), qXr(win), (u - 7 * win) * US + (b >> 1) * GRP + (b & 1) * 512 + kk * 64)
             for b in range(4) for kk in range(2)]
        return l + [dsr(B128, (B9(I_, kk), f"x{I_}"), qX9r, ((I_ >> 1) & 1) * GRP + (I_ & 1) * 512 + kk * 64) for kk in range(2)]
    bpre = F(barrier(vm=("x0", "xn0", "wq0")), -1, -1, q="dma")
    stamp(-1, [bpre])
    l = rdB(0)
    prev = [F(x, -1, -1, q="lds", after=[bpre]) for x in rdA(0, 0) + l[:6]]
    prev += [F(x, -1, 7, q="lds", after=[bpre]) for x in l[6:] + rdA(0, 1) + rdA(0, 2) + rdA(0, 3)]
    BQ = {}
    for j in range(16):
        g = k0[j] + (14 if j == 0 else 9)
        nI = SEQ[j + 1][0] if j < 15 and SEQ[j + 1][1] == 0 else None
        vm = []
        if j < 15: vm.append(f"wq{j+1}")
        if nI is not None: vm += [f"x{nI}", f"xn{nI//2}"]
        if j == 10: vm = ["wq15", "all0"] if int(o.all0) else vm + ["mbz"]
        bq = BQ[j] = F(barrier(vm=vm), g, g, after=prev)
        if o.qst and j in eval(o.qst): stamp(g, [bq])
        prev = []
        if j < 15:
            for fp in range(4):
                for x, kk in zip(rdA(j + 1, fp), (0, 0, 1, 1)):
                    lo = max(lr(Aq(fp, kk), f"w{j}"), g)
                    prev.append(F(x, lo, max(min(fr_(Aq(fp, kk), f"w{j+1}") - 6, k0[j + 1] + 3), lo), q="ldsA", after=[bq]))
        if nI is not None:
            for n, x in enumerate(rdB(nI)): prev.append(F(x, g, min(k0[j + 1] - 7 + n, k0[j + 1] + 2), q="ldsB", after=[bq]))
    step = 3.0; seen = set(o.qseq.split("|")[0].split(","))
    for tok in o.qseq.split("|")[1].split(","):
        if tok[0] == "@": nextvm[0] = max(nextvm[0], int(float(tok[1:]) * 36)); continue
        if tok[0] == "+": nextvm[0] += int(tok[1:]); continue
        if tok[0] == "p": step = float(tok[1:]); continue
        seen.add(tok)
        ops, dep = qtok(tok, o)
        spread(ops, BQ[dep].lo if dep >= 0 else 0, step, after=[BQ[dep]] if dep >= 0 else [])
    assert len([t for t in seen if t[0] not in "ctu"]) == 16 + 8 + 4 + 4 + 4, sorted(seen)
    stamp(k0[15])
    if o.xst:
        for g_ in eval(o.xst): stamp(g_)
    def pack_q(src, dst, tdst, hi):
        lo = min(max(qdone[str(src.sub(0, 4))], qdone[str(src.sub(4, 4))]) + 3, hi)
        ops = [valu("v_mul_f32", (src[m], "t"), sC, (src[m], "Qacc")) for m in range(8)]
        ops += [valu("v_cvt_pk_bf16_f32", (dst[m], "t2"), (src[2 * m], "t"), (src[2 * m + 1], "t")) for m in (0, 2, 1, 3)]
        ops += [swap("v_permlane32_swap_b32", (dst[m], "t2"), (dst[m + 2], "t2"), tdst, tdst) for m in range(2)]
        return [F(x, lo, hi, q="qe") for x in ops]
    q9w = []
    for hf in range(2):
        l = pack_q(SB(hf), PB(hf), "q9p", pre0[0] - 2)
        q9w.append(F(dsw("ds_write_b128", qA8, (PB(hf), "q9p"), 1024 * hf), BQ[15].lo, min(U[(0, 0)]["q0"] - 1, pre0[2] - 3 + int(o.ba0)), q="q9w", after=[l[-1], BQ[15]]))
        for t, b in ([(t, b) for t in (0, 1) for b in range(4)] if hf == 0 else [(t, b) for b in range(4) for t in (2, 3)]):
            pack_q(V(32 * b + 8 * t, 8), QF(b, t), f"Q{b}", pre0[b] - 1 + t)
    for b in range(5):
        n = NM(b); pm = f"pm{b}"; nm = f"nm{b}"; hi = fr_(n, nm) - 1
        ops = [valu("v_accvgpr_read_b32", vT1, SAV(b)),
               valu("v_max3_f32", n[0], (n[0], pm), (n[1], pm), vT1), valu("v_max3_f32", n[0], n[0], (n[2], pm), (n[3], pm)),
               valu("v_mov_b32", n[1], n[0]), swap("v_permlane32_swap_b32", n[0], n[1]), valu("v_max_f32", n[0], n[0], n[1]),
               valu("v_mov_b32", n[1], n[0]), swap("v_permlane16_swap_b32", n[0], n[1]),
               I(f"v_min_f32_e64 {n[0]}, -{n[0]}, -{n[1]}", "valu", rd=[n[0], n[1]], wr=[(n[0], nm)]),
               valu("v_mov_b32", (n[1], nm), (n[0], nm)), valu("v_mov_b64", (n.sub(2, 2), nm), (n.sub(0, 2), nm))]
        for x in ops: x = F(x, min(preL[b] + 3, hi), hi, q="nm")
        nmd = [x]
    def rdK(e, y, lo, after, hi=10**9):
        out = []
        for h in range(2):
            for t in range(4):
                r = KF(y, h, t); l_ = max(lo, lr(r, f"k{e-1}")) if e else lo
                x = dsr(B128, (r, f"k{e}"), Kr(y, t & 1), (e & 1) * 2 * US + 512 * h + 128 * (t >> 1))
                out.append(F(x, l_, max(l_, min(fr_(r, f"k{e}") - 6, hi)), q=f"ldsK{y}", after=after))
        return out
    def rdV(e, y, lo, after, hi):
        out = []
        for d in range(8):
            r = VF(e, y, d); l_ = max(lo, lr(r, f"v{e-1}")) if e and y else lo
            for h in range(2):
                x = dsr(TR, (r.sub(2 * h, 2), f"v{e}"), Vr(y, d >> 2), (e & 1) * 2 * US + 512 * h + 32 * (d & 3))
                out.append(F(x, l_, max(l_, min(fr_(r, f"v{e}") - 6, hi)), q=f"ldsV{y}", after=after))
        return out
    BB = {}; rkw = []
    vset = lambda src: [valu("v_accvgpr_read_b32", vKV(0), src)] + [valu("v_subrev_u32", vKV(pp), 32 * pp, vKV(0)) for pp in (1, 2, 3)]
    for e in range(8):
        if e == 0:
            g = k0[16] - int(o.bk0)
            bk = F(barrier(vm=["k0"], lgkm=False), g, g, after=[BQ[15]])
            gv = pre0[2] - 1 + int(o.ba0)
            bv = F(barrier(vm=["v0"]), gv, gv, after=q9w + [bk])
            for t in range(4):
                F(dsr(B128, (QF(4, t), "Q4"), qB8 if t & 1 else qA8, 1024 * (t >> 1)), gv, pre0[4] - 6, q="ldsQ9", after=[bv])
        else:
            g = U[(e - 1, 8)]["q0"] - 1 - int(o.bao)
            sep = e == 7 or e >= int(o.sepv)
            bk = F(barrier(vm=[f"k{e}"] + ([] if sep else [f"v{e}"]), lgkm=bool(rkw)), g, g, after=[BB[e - 1]] + rkw)
            if rkw:
                for x in (valu("v_mov_b32", vT0, sT1), dsr("ds_read_b32", vT1, vT0, 0)): x = F(x, g, g + 6, q="rk", after=[bk])
                F(raw(f"v_cmp_gt_u32 vcc, {int(o.rkth)}, {vT1}", rd=[vT1], kind="valu"), g + 12, g + 16, q="rk")
            rkw = []
            bv, gv = bk, g
            if sep and e < 7:
                gv = st0[e] + int(o.bvo)
                bv = F(barrier(vm=[f"v{e}"], lgkm=False), gv, gv, after=[bk])
            if e == 7:
                gv = p7 - 1 - int(o.bv7)
                gx = st0[7] + int(o.bxo)
                bx = F(barrier(vm=["wo0a"]), gx, gx, after=[bk])
                gz = U[(7, 7)]["q0"] - 1
                bz = F(barrier(vm=["wo0b"]), gz, gz, after=[bx]) if prv else bx
                bv = F(barrier(vm=["v7"]), gv, gv, after=[bz])
                stamp(gv, [bv])
        gb = G[(e, 0)]["p0"] + int(o.bbo if e >= int(o.sepv) else o.bbo1) if e < 7 else p7 + int(o.bb7)
        if e == 0 and int(o.bb0): gb = gv + int(o.bb0)
        rk = rdK(e, 0, g, [bk]) + rdK(e, 1, g, [bk], gx - 4 if e == 7 else 10**9)
        rv = rdV(e, 0, gv, [bv], gb - 5) + rdV(e, 1, gv, [bv], gb - 5)
        bb = BB[e] = F(barrier(vm=["wo0b" if int(o.wsp) else "wo1a"] if e == 7 else []), gb, gb, after=rk + rv)
        if e in (0, 3, 6): stamp(gb, [bb])
        ops = []
        if e < 6:
            for part in range(4 if e < 5 else 2): ops += g_kv(e + 2, part, o)
        if e in eval(o.rank):
            k_ = eval(o.rank).index(e); gn_ = U[(e, 8)]["q0"] - 1 - int(o.bao)
            l_ = [salu("s_and_b32", sT1, sJ, 3), salu("s_lshl_b32", sT1, sT1, 6), salu("s_add_u32", sT1, sT1, 16 * k_ + 4),
                  salu("s_and_b32", sT0, sAt, "0xf00"), salu("s_lshl3_add_u32", sT0, sT0, sT1), salu("s_add_u32", sT1, sT1, FLAG + 1024),
                  valu("v_lshl_add_u32", vT0, vL16, 7, sT0), valu("v_mov_b32", vT1, 1),
                  I(f"buffer_atomic_add {vT1}, {vT0}, {Sdbg}, 0 offen sc0", "vml", rd=[vT0, vT1], wr=[vT1], tag="at", cost=2),
                  valu("v_min_u32", vT0, 2048, vT0), valu("v_add_u32", vT0, FLAG + 1024, vT0)]
            for x in l_[:8]: F(x, gb - 12, gb, q="rk", after=nmd)
            for x in l_[8:]: F(x, gb, gb + 5, q="rk", after=[bb])
            rkw = [F(dsw("ds_write_b32", vT0, vT1, 0), gn_ - 7, gn_ - 4, q="rk")]
        sites = eval(str(o.ate)); sites = sites if isinstance(sites, list) else [sites]
        for k_, site in enumerate(sites):
            if int(site) != e: continue
            at = [salu("s_add_u32", sT0, sJ, k_), salu("s_and_b32", sT0, sT0, len(sites) - 1), salu("s_lshl_b32", sT0, sT0, 8), salu("s_add_u32", sT0, sT0, sAt),
                  valu("v_lshl_add_u32", vT0, vL16, 4, sT0), valu("v_mov_b32", vT1, 1),
                  vstore(vT1, vT0, Sdbg, 0, 0, "", tag="at", op="buffer_atomic_add")]
            pos = len(ops) if site == e else [z for z, x in enumerate(ops) if x.kind == "dma"][7] + 1
            ops[pos:pos] = at
        if e in eval(f'[{o.cte}]') and int(o.cpf): ops += code_touch(V(254, 2), vTs, vL16, shift=3)
        if ops: spread(ops, gb, float({0: o.astep0, 4: o.astep4, 5: o.astep5}.get(e, o.astep)), after=[bb])
    bx.after += rk
    wts = [1.0] * 8; win = int(o.win)
    def allowed(limit):
        m = 0; c = 0.0
        while m < len(wts) and c + wts[-1 - m] <= limit + 1e-9: c += wts[-1 - m]; m += 1
        return m
    def capped(ops, w):
        for x in ops:
            if x.kind == "dma": x.text = f"s_waitcnt vmcnt({allowed(win - w)})\n" + x.text; wts.append(w)
        return ops
    es = float(o.estep); wsp = int(o.wsp)
    if int(o.wmix):
        for hf in range(2):
            spread(capped(vset(aWo0) + g_wo(0, hf), float(o.wow)), BB[6].lo, es * float(o.wpace), after=[BB[6]])
            spread(capped(vset(aKv0) + g_kv(7, 2 + hf, o, False), 1.0), BB[6].lo, es, after=[BB[5]])
    else:
        spread(capped(vset(aWo0) + g_wo(0, 0) + ([] if wsp else g_wo(0, 1)), float(o.wow)), BB[6].lo, es * float(o.wpace), after=[BB[6]])
        spread(capped(vset(aKv0) + g_kv(7, 2, o, False) + g_kv(7, 3, o, False), 1.0), BB[6].lo, es, after=[BB[5]])
    early = vset(aWo0) + (g_wo(0, 1) if wsp else []) + g_wo(1, 0)
    for n in range(win - 1, 0, -1):
        g_ = min(int(nextvm[0]), gv - 3)
        if n >= int(o.dmin): F(raw(f"s_waitcnt vmcnt({allowed(n)})"), g_, g_ + 2, q="dma")
        idx = [k for k, x in enumerate(early) if x.kind == "dma"][:2]
        if idx:
            spread(early[:idx[-1] + 1], max(g_ + 1, gx), (es - 2) / 2, after=[bx]); early = early[idx[-1] + 1:]; wts += [0.0] * len(idx)
        nextvm[0] = max(nextvm[0], g_ + es)
    assert wsp or not early
    nextvm[0] = 0
    if str(o.ate) == "8":
        for x in (valu("v_lshl_add_u32", NM(3)[0], vL16, 4, sAt), valu("v_mov_b32", NM(3)[3], 1),
                  vstore(NM(3)[3], NM(3)[0], Sdbg, 0, 0, "", tag="at", op="buffer_atomic_add")): at8 = F(x, gv, gv + 3, q="dma", after=[bv])
    spread(early + g_wo(1, 1), gv + int(o.w1bo), float(o.ostep0), after=[bv])
    if prv: spread(g_wo(2, 0), gv + 1, float(o.ostep1), after=[bv])
    elif not wsp: spread(g_wo(2, 0), BB[7].lo + 1, float(o.ostep1), after=[BB[7]])
    vA8, vLMw, vW, vOw, vB8, vLMr = Kr(0, 0), Kr(0, 1), (Kr(1, 0), Kr(1, 1)), (Vr(0, 0), Vr(0, 1)), Vr(1, 0), Vr(1, 1)
    vBr, vFl, vSt, vO9 = (PB(2)[0], PB(2)[1]), vLMw, vLMr, vB8
    g = U[(7, 8)]["q0"]
    adr = [valu("v_bfe_u32", vLMw, vL16, 1, 7), valu("v_add_u32", vLMw, sA8, vLMw), dsw("ds_write_b32", vLMw, (NM(4)[0], "nm4"), 4096 + 4),
           valu("v_accvgpr_read_b32", vW[0], aWpat), valu("v_add_u32", vW[1], 4 * US, vW[0]), valu("v_add_u32", vA8, sA8, vL16)]
    adr = [F(x, gx, g + 4, q="adr", after=rk) for x in adr]
    bl = bz if prv else BB[7]
    bl.after.append(F(dsw("ds_write_b32", vLMw, (LS(4)[0], "o7"), 4096), G[(7, 4)]["p0"] + 4, bl.lo - 2, q="adr"))
    if prv: vLMr = vT0
    adrl = [F(x, gx if prv else p7, bl.lo + 3, q="adr", after=[] if prv else rv) for x in (valu("v_bfe_u32", vLMr, vL16, 1, 7), valu("v_add_u32", vLMr, sB8, vLMr))]
    adr2 = [valu("v_add_u32", vOw[0], sOw0, vL16), valu("v_add_u32", vOw[1], sOw1, vL16), valu("v_add_u32", vB8, sB8, vL16)]
    adr2 = [F(x, p7, BB[7].lo + 3, q="adr", after=rv) for x in adr2]
    lastP = {}
    for un in units:
        n, s_, p_ = un["n"], un["S"], un["P"]
        nx = units[n + 2]["q0"] if n + 2 < len(units) else 10**9
        pfree = -1; aft = []
        if str(p_) in lastP: pfree = lastP[str(p_)]["g"]["pL"]
        for b in range(5):
            if str(p_) == str(NM(b)): pfree = lr(p_, f"nm{b}") + 1
        if str(p_) == str(NM(4)): aft = [adr[2]]
        if n < 2: aft = q9w
        lastP[str(p_)] = un
        ex = []
        for j in range(8):
            hi = min(nx - 1 + 4 * (j >> 2), un["g"]["p0"] - 1, gv if prv else 10**9); lo = min(un["hl"][j >> 2] + 3, hi)
            ex.append(F(trans("v_exp_f32", (s_[j], f"e{n}"), (s_[j], f"s{n}")), lo, max(lo, hi - 1), q="exp"))
        for m in range(4):
            hi = min(nx - 1 + 4 * (m >> 1), un["g"]["p0"] - 1, gv if prv else 10**9)
            x = F(valu("v_cvt_pk_bf16_f32", (p_[m], f"p{n}"), (s_[2 * m], f"e{n}"), (s_[2 * m + 1], f"e{n}")),
                  max(ex[2 * m + 1].lo, pfree), hi, q="cvt", after=[ex[2 * m + 1]] + aft)
    if prv: bv.after.append(x)
    def rdAo(p, kss=range(8)):
        return [dsr(TR, (Ao(p, ks, u).sub(2 * h, 2), f"wo{p}"), vW[WOU[p][ks >> 1] >> 2],
                    (WOU[p][ks >> 1] & 3) * US + (ks & 1) * 2 * GRP + 512 * h + 32 * u)
                for u in range(2) for ks in kss for h in range(2)]
    fu = [OU.index((0, qb)) for qb in (0, 1, 2, 3, 8)]
    gB = [attn_end - int(o.b1o)] + [ou0[fu[k]] - int(o.bko1 if k == 1 and mg else o.bko) for k in range(1, 5)]
    pub = [[] for _ in range(5)]
    lm = NM(3)
    mr = [dsr("ds_read_b64", lm.sub(0, 2), vLMw, 4096), dsr("ds_read_b64", lm.sub(2, 2), vLMr, 4096)]
    g = max(bl.lo, lr(lm, "nm3") + 1)
    mr = [F(x, g, min(g + 10, gv) if prv else g + 10, q="lm", after=[bl, adrl[1]]) for x in mr]
    op1 = [valu("v_sub_f32", lm[1], lm[1], lm[3]), trans("v_exp_f32", lm[1], lm[1]), salu("s_lshl_b32", sT0, sW, 2),
           valu("v_fma_f32", vTs, lm[2], lm[1], lm[0]), trans("v_rcp_f32", lm[2], vTs), salu("s_add_u32", sT0, sT0, 6 * US),
           valu("v_add_u32", vFl, sT0, vL16), valu("v_mul_f32", lm[1], lm[1], lm[2])]
    op2 = []
    for b in range(4): op2 += [valu("v_accvgpr_read_b32", lm[3], (LS(b)[0], "o7")), valu("v_add_f32", vTs, vTs, lm[3])]
    op2.append(dsw("ds_write_b32", vFl, vTs, FLAG - 6 * US))
    op3 = [valu("v_add_u32", vBr[1], 6 * US, vL16), salu("s_lshl_b32", sT0, sW, 10), valu("v_add_u32", vSt, sT0, vL16)]
    lsum = [F(x, gv if prv else BB[7].lo + 4, gv if prv else gB[0] - 4, q="lm") for x in op1]
    if prv: bv.after.append(lsum[-1])
    lsum += [F(x, odone[str(LS(3))] + 4, gB[0] - 4, q="lm", after=[at8] if str(o.ate) == "8" else []) for x in op2]
    lsum += [F(x, G[(7, 4)]["pL"], gB[0] - 2, q="lm", after=rv) for x in op3]
    pub[0] += lsum
    rp = int(o.rawp)
    raww = [F(x, gB[rp - 1] + 12 if rp else G[(7, 4)]["pL"] + 4, gB[rp] - 36 + 5 * d if rp else gB[rp] - 4, q="raw" if rp else "ow", after=[adr[-1]])
            for d in range(4) for x in w128(o, vA8, (O9(4 + d), "o7"), 1024 * d)]
    pub[rp] += raww
    def norm_block(b):
        a32 = V(32 * b, 32); hi = gB[b] - 4
        ops = [valu("v_accvgpr_read_b32", vT1, (LS(b)[0], "o7")), trans("v_rcp_f32", vT0, vT1)]
        for x in ops: F(x, odone[str(LS(b))] + 4, hi, q="ep", after=mr)
        for k in range(4):
            ops = [valu("v_mul_f32", (a32[8 * k + m], "n"), (a32[8 * k + m], "o7"), vT0) for m in range(8)]
            ops += [valu("v_cvt_pk_bf16_f32", (a32[8 * k + m], "of"), (a32[8 * k + 2 * m], "n"), (a32[8 * k + 2 * m + 1], "n")) for m in range(4)]
            lo = odone[str(ACC(b, 2 * k + 1))] + 3; hk = max(lo, hi - 4 * (3 - k))
            for x in ops: x = F(x, lo, hk, q="ep")
            for y in w128(o, vOw[k >> 1], (a32.sub(8 * k, 4), "of"), (b & 1) * US + (k & 1) * 1024):
                pub[b].append(F(y, max(lo, gB[b - 1]) if b >= 2 else lo, hk, q="ow", after=[x, adr2[-1], BP[b - 1] if b >= 2 else BB[7]]))
    BP = [barrier(vm=v_) for v_ in (["wo1a" if wsp else "wo1b"], [], [], [], ["wo2a", "wo2b"])]
    bv.after += [F(x, max(gx, G[(6, 4)]["pL"]), gv - (14 if prv else 5), q="ldsK0", after=[adr[-1], bx]) for x in rdAo(0, range(4))]
    if wsp: pub[0] += [F(x, BB[7].lo, gB[0] - 4, q="ldsK0", after=[BB[7]]) for x in rdAo(0, range(4, 8))]
    else:
        if prv: bv.after += [F(x, gz, gv - 1, q="ldsK0", after=[bz]) for x in rdAo(0, range(4, 8))]
        else: BB[7].after += [F(x, gv, BB[7].lo - 4, q="ldsK0", after=[bv]) for x in rdAo(0, range(4, 8))]
        pub[0] += [F(x, BB[7].lo, gB[0] - 4, q="ldsK0", after=[BB[7]]) for x in rdAo(1, range(4))]
    for b in range(4): norm_block(b)
    F(BP[0], gB[0], gB[0], after=pub[0])
    stamp(attn_end)
    rdA0 = []; bn, gn = BP[0], gB[0]
    if wsp:
        gn = ou0[0] + int(o.bno)
        bn = F(barrier(vm=["wo1b"]), gn, gn, after=[BP[0]] + [F(x, gB[0], gn - 4, q="ldsK0", after=[BP[0]]) for x in rdAo(1, range(4))])
    for x in rdAo(1, range(4, 8)):
        r = next(iter(x.wr)); lo = max(gn, lastrd[(r, "v7")])
        rdA0.append(F(x, lo, max(lo, min(firstrd[(r, "wo1")] - int(o.lead), gB[1] - 3)), q="ldsK0", after=[bn]))
    fl = NM(0)
    fr = F(dsr(B128, fl, vBr[1], FLAG - 6 * US), gB[0], gB[0] + 1, q="ldsB", after=[BP[0]])
    chk = [valu("v_add_f32", fl[0], fl[0], fl[1]), valu("v_add_f32", fl[2], fl[2], fl[3]), valu("v_add_f32", fl[0], fl[0], fl[2]),
           raw(f"v_cmp_nge_f32 vcc, {hex(THR)}, {fl[0]}", rd=[fl[0]], kind="valu"),
           raw(f"s_cmp_eq_u32 s54, {77 if o.abl else 0}\ns_cselect_b64 vcc, vcc, 0\ns_cbranch_vccnz Lslow", cost=2, kind="br")]
    chk = [F(x, gB[0] + 7, gB[0] + 14, q="fl", after=[fr]) for x in chk]
    rcv = [V(168 + 4 * d, 4) for d in range(4)]
    mr = [F(dsr(B128, (rcv[d], "rcv"), vB8, 1024 * d), gB[2 + mg], gB[3] + (20 if mg else -6), q="lm", after=[chk[-1], BP[rp]]) for d in range(4)]
    for x in (salu("s_lshl_b32", sT0, sW, 11), valu("v_add_u32", vO9, sT0, vBr[1])): a9 = F(x, gB[2], gB[4] - 12, q="fl", after=mr)
    for k in range(2):
        ops = []
        for d in (2 * k, 2 * k + 1):
            for m in range(4):
                t = (vT1, lm[3])[m & 1]
                ops += [valu("v_accvgpr_read_b32", t, (O9(d)[m], "o7")), valu("v_mul_f32", (rcv[d][m], "rs"), (rcv[d][m], "rcv"), lm[1]),
                        valu("v_fma_f32", (rcv[d][m], "n"), t, lm[2], (rcv[d][m], "rs"))]
        for m in range(4):
            src = rcv[2 * k + (m >> 1)]
            ops.append(valu("v_cvt_pk_bf16_f32", (rcv[2 * k][m], "of"), (src[2 * (m & 1)], "n"), (src[2 * (m & 1) + 1], "n")))
        for x in ops: x = F(x, gB[2], gB[4] - 8 + 4 * k, q="ep", after=mr + [lsum[-1]])
        for y in w128(o, vO9, (rcv[2 * k], "of"), 3 * US + 1024 * k): pub[4].append(F(y, gB[2], gB[4] - 8 + 4 * k, q="ow", after=[x, a9]))
    def rdBo(qb, ks):
        if qb < 8: return dsr(B128, (Bo(qb, ks), f"of{qb}"), vBr[1], (qb & 1) * US + (qb >> 2) * 8192 + 1024 * ks)
        return dsr(B128, (Bo(qb, ks), f"of{qb}"), vBr[1], 3 * US + 1024 * ks)
    rdp = rdA0; prevb = BP[0]
    for k in range(5):
        if k: prevb = F(BP[k], gB[k], gB[k], after=pub[k] + [prevb] + rdp); rdp = []
        for n in (fu[k], fu[k] + 1)[:2 if k < 4 else 1]:
            qb = OU[n][1]
            for ks in range(8):
                late = qb >= 5 or (qb == 4 and ks >= 6)
                hi = max(gB[k] + ks // 2, ou0[n] - int(o.lead) + ks)
                if k < 4: hi = min(hi, gB[k + 1] - 3)
                rdp.append(F(rdBo(qb, ks), gB[k], hi, q="ldsB", after=[BP[k]] + ([chk[-1]] if late else [])))
    gd = {p: ou0[9 * p] + int(o.bdo) for p in range(4)}
    if str(o.ate) == "9":
        for x in (valu("v_lshl_add_u32", V(184), vL16, 4, sAt), valu("v_mov_b32", V(185), 1),
                  vstore(V(185), V(184), Sdbg, 0, 0, "", tag="at", op="buffer_atomic_add")): F(x, ou0[1] + 8, ou0[2], q="at", after=[chk[-1]])
    if wsp: spread(g_wo(2, 0), gB[0] + 1, float(o.ostep1), after=[BP[0]])
    w1b = spread(g_wo(2, 1), gn + 1, float(o.ostep2), after=[bn])
    spread(g_wo(3, 0), gB[1] + 1, float(o.ostep3), after=[BP[1]])
    spread(g_wo(3, 1), gB[4] + 1, float(o.ostep4), after=[BP[4]])
    for n, x in enumerate(rdAo(2)):
        r = next(iter(x.wr)); F(x, lastrd[(r, "wo0")], ou0[18] - 8 + n // 2, q="ldsK0", after=[BP[4]])
    bd = F(barrier(vm=["wo3a", "wo3b"], lgkm=False), gd[2], gd[2], after=[BP[4]])
    for n, x in enumerate(rdAo(3)): F(x, gd[2], ou0[27] - 8 + n // 2, q="ldsK0", after=[bd])
    ts = int(o.ts); assert ts >= 2
    for n in range(36):
        s_, p_ = SB(n & 1), PB(n & 1)
        for m in range(4):
            lo = min(ouh[(n, m >> 1)] + (8 if n > 8 + 6 * mg else 4), last)
            x = F(valu("v_cvt_pk_bf16_f32", (p_[m], f"rp{n}"), (s_[2 * m], f"r{n}"), (s_[2 * m + 1], f"r{n}")), lo, min(lo + (16 if n == 1 else 6), last), q="st")
        pp_, qb = OU[n]
        ops = ([salu("s_mul_i32", sT3, sP(pp_), 144)] if n == 0 or OU[n - 1][0] != pp_ else []) + [salu("s_add_u32", sSt, sT3, 4096 * qb),
               vstore((p_, f"rp{n}"), vSt3 if pp_ == ts else vSt, Sws, sSt, 0, o.stflag, tag=f"st{pp_}")]
        if n == 9 * ts:
            pre_ = [salu("s_xor_b32", sG, sJ, sW), raw(f"s_and_b32 {sG}, {sG}, 3\ns_cselect_b32 {sG}, 0, 0x10000000", wr=[sG], cost=2, kind="br"),
                    valu("v_add_u32", vSt3, sG, vSt), salu("s_lshr_b32", sG, sG, 12), salu("s_xor_b32", sG, sG, 0x10000), salu("s_add_u32", sG, sG, 8 * US),
                    valu("v_add_u32", vOwn, sG, vL16), valu("v_add_u32", vOwr, 8 * US, vSt)]
            for y in pre_: y = F(y, ou0[n - 2], ou0[n], q="own")
            own_rdy = y
        sw = int(str(o.swin).split(",")[n // 9 % len(str(o.swin).split(","))])
        if sw and n >= sw:
            ops.insert(len(ops) - 1, waitvm(f"su{n - sw}"))
        ops[-1].utag = f"su{n}"
        for x in ops: F(x, lo, min(lo + (20 if n < 2 else 8), last), q="st", after=[chk[-1]] + (w1b[-1:] if n == 0 and int(o.hold) else []) + ([own_rdy] if n == 9 * ts else []))
        if pp_ == ts: F(dsw("ds_write_b128", vOwn, (p_, f"rp{n}"), 1024 * qb), min(lo + 2, last), min(lo + 10, last), q="st", after=[BP[4]])
    t = V(168, 4)
    ops = [salu("s_lshl_b32", sT1, sB, 4), valu("v_mov_b32", vRdA, sT1),
           salu("s_lshl4_add_u32", sT0, sW, sJ), salu("s_lshl_b32", sT0, sT0, 7),
           valu("v_lshrrev_b32", vF, 9, vL16), valu("v_lshl_add_u32", vF, vF, 15, sT0), valu("v_lshrrev_b32", vOne, 2, vL16),
           valu("v_add_u32", vF, vF, vOne), valu("v_mov_b32", vOne, 1)]
    gf = {p: ou0[max(n for n in range(36) if OU[n][0] == p) + 1] + int(str(o.flo).split(',')[p % len(str(o.flo).split(','))]) for p in range(3)}
    for x in ops: rset = F(x, gB[4], gB[4] + 40, q="fl")
    g = max(gB[4] + 41, gf[0] - int(o.rdyo)); F(vload(vRdy, vRdA, Sdbg, 0, 0, "sc1", tag="rdy", op="buffer_load_dword"), g, g + 4, q="fl")
    ops = [raw(f"v_cmp_gt_u32 vcc, 16, {vRdy}", rd=[vRdy], kind="valu"), raw("s_cbranch_vccnz Lrdy_spin\nLrdy_back:", kind="br")]
    for p in range(3):
        ops = [waitvm(f"st{p}")] + ops + [salu("s_lshl_b32", sAt, sP(p), 5), vstore(vOne, vF, Smb, sAt, 0, "sc1", tag="fl", op="buffer_store_dword")]
        for x in ops: flag0 = F(x, gf[p], gf[p] + 2, q="fl")
        ops = []
        if p == 0:
            su = [
               salu("s_lshr_b32", sCc, sP(int(o.ts)), 6), salu("s_and_b32", sT0, sJ, 3), salu("s_add_u32", sCc, sCc, sT0),
               valu("v_bfe_u32", vPo, vL16, 4, 2), valu("v_lshrrev_b32", t[0], 8, vL16),
               salu("s_lshl_b32", sT0, sCc, 11), valu("v_lshl_add_u32", vPo, vPo, 7, sT0),
               salu("s_add_u32", sGo, sJ, 4 * int(o.ts)), salu("s_and_b32", sGo, sGo, 12), salu("s_lshl_b32", sGo, sGo, 7),
               salu("s_lshr_b32", sT0, sCc, 2), salu("s_mul_i32", sT0, sT0, 9), salu("s_add_u32", sT0, sT0, sW),
               salu("s_and_b32", sT1, sJ, 3), salu("s_lshl2_add_u32", sT0, sT0, sT1), salu("s_lshl_b32", sT0, sT0, 10),
               valu("v_add_u32", vR[0], sT0, vL16), valu("v_add_u32", vR[1], 16384, vR[0]),
               salu("s_lshl_b32", sT1, sW, 28), salu("s_add_u32", sT0, sT1, 32768), valu("v_add_u32", vR[2], sT0, vR[0]),
               valu("v_bfe_u32", t[1], vL16, 4, 4), valu("v_lshlrev_b32", vO[0], 10, t[1]), valu("v_lshl_add_u32", vO[0], t[0], 4, vO[0]),
               salu("s_lshl_b32", sT0, sW, 14), salu("s_lshl_b32", sT2, sCc, 6), salu("s_add_u32", sT0, sT0, sT2),
               valu("v_add_u32", vO[0], sT0, vO[0]), valu("v_add_u32", vO[1], 65536, vO[0]),
               salu("s_add_u32", sT0, sT1, 131072), valu("v_add_u32", vO[2], sT0, vO[0]),
               valu("v_and_b32", t[2], 1, t[1]), valu("v_lshlrev_b32", t[2], 4, t[2]), valu("v_mov_b32", t[3], "0x3f80"),
               valu("v_lshlrev_b32", t[2], t[2], t[3]),
               valu("v_bfe_u32", t[3], t[1], 2, 1), valu("v_xor_b32", t[3], t[3], t[0]),
               valu("v_and_b32", t[0], 1, t[3]), valu("v_lshlrev_b32", t[0], 3, t[0]),
               valu("v_lshrrev_b32", t[3], 1, t[3]), valu("v_lshl_add_u32", t[0], t[3], 2, t[0]),
               valu("v_lshrrev_b32", t[3], 3, t[1]), valu("v_lshl_add_u32", t[0], t[3], 1, t[0]),
               valu("v_bfe_u32", t[3], t[1], 1, 1), valu("v_add_u32", t[0], t[0], t[3]),
               valu("v_lshlrev_b32_e64", t[0], t[0], 1)]
            for m in range(8): su += [valu("v_bfe_i32", SEL[m], t[0], m, 1), valu("v_and_b32", SEL[m], SEL[m], t[2])]
            for x in su: F(x, ou0[18], ou0[26], q="su", after=[rset])
    if int(o.r0in):
        g = ou0[27] - int(o.pollo)
        p0 = F(vload(vRdy, vPo, Smb, sGo, 0, "sc1", tag="poll0", op="buffer_load_dword"), g, g + 2, q="r0", after=[su[-1]])
        g = ou0[27] + int(o.r0o)
        for x in (raw(f"v_cmp_eq_u32 vcc, 0, {vRdy}", rd=[vRdy], kind="valu"), raw("s_cbranch_vccnz Lp0_spin\nLp0_back:", kind="br")): F(x, g, g + 1, q="r0")
        ops = [salu("s_mul_i32", sOff, sGo, PART // 128), salu("s_sub_u32", sGo, sGo, 512), salu("s_and_b32", sGo, sGo, "0x600")]
        for i in range(4):
            if i: ops.append(salu("s_add_u32", sOff, sOff, PART))
            ops += [vload(A(12 * i + 4 * f, 4), vR[f], Sred, sOff, 0, o.rflag, tag="r0") for f in range(3)]
        nextvm[0] = 0
        r0 = spread(ops, g + 2, float(o.r0step), q="r0")
    g = last - int(o.pollo)
    F(vload(vRdy, vPo, Smb, sGo, 0, "sc1", tag="poll", op="buffer_load_dword"), g, g + 2, q="fl", after=[r0[2]] if int(o.r0in) else [su[-1]])
    if int(o.tt):
        for x in code_touch(V(254, 2), vTs, vL16, shift=int(o.tt), tid=True): F(x, g - 30, g - 4, q="su")
    if int(o.adw):
        for x in (salu("s_and_b32", sG, sJ, 12), salu("s_lshl_b32", sG, sG, 7), vload(vRdA, vPo, Smb, sG, 0, "sc1", tag="poll", op="buffer_load_dword")):
            F(x, g, g + 6, q="fl", after=[own_rdy])
    F(waitvm("poll"), last, last, q="st")
    seq = sc.run()
    if "a" in o.abl: seq = [x for x in seq if not (x.gap > 100 and x.kind in ("dma", "vml"))]
    if "s" in o.abl: seq = [x for x in seq if not (x.kind == "vms" and x.tag.startswith("st"))]
    if "w" in o.abl: seq = [x for x in seq if not (x.kind == "dma" and x.tag[:3] == "wo0")]
    if "d" in o.abl: seq = [x for x in seq if not (x.kind == "dsw" and x.gap > 1700)]
    if "o" in o.abl: seq = [x for x in seq if not (x.kind == "dma" and x.tag[:3] in ("wo1", "wo2", "wo3"))]
    notes = {0: "Q projection: Q^T = Wq^T x^T, 16 half-stages of 64 channels x 64 head dims", k0[16]: "row offsets from the first 16 keys, then attention step 0",
             p7: "last P.V products, normalisation and hand-over of O through LDS", ou0[0]: "O projection, passes 0 and 1 interleaved",
             ou0[18]: "O projection, pass 2", ou0[27]: "O projection, pass 3 (the chunk this workgroup reduces stays in LDS)"}
    notes.update({st0[e]: f"attention step {e} (64 keys)" for e in range(1, 8)})
    for n, txt in notes.items(): sc.bb[n].text = f"; ---- {txt}\n" + sc.bb[n].text
    seq = P + seq
    if not o.abl: check_tags(seq)
    seq, nops = pad_hazards(seq)
    sys.stderr.write(f"mfma {len(sc.bb)} instrs {len(seq)} over {sc.stats['over']} idle {sc.stats['idle']} waits {sc.stats['waits']} nop-states {nops}\n")
    return seq, nstamp[0]

def reduce_tail(o, a, nst):
    acc = lambda f, u: V(8 * f + 4 * u, 4)
    buf = lambda t, i, f: A(48 * t + 12 * i + 4 * f, 4)
    poll = f"buffer_load_dword {vRdy}, {vPo}, {Smb}, {sGo} offen sc1"
    a(f"s_lshl_b32 s61, {sP(3)}, 5"); a("s_mov_b32 s63, 0")
    if int(o.stamps): a(f"s_memrealtime s[{64+2*nst}:{65+2*nst}]")
    ts = int(o.ts); rw = int(o.rwin); pa = int(o.polli); started = set()
    nl = lambda t: 9 if t == ts else 12
    q = [("st",)]
    def add(fr):
        for u in range(2):
            a(f"v_mfma_f32_16x16x32_bf16 {acc(fr[2],u)}, {SEL.sub(4*u,4)}, {buf(*fr)}, {acc(fr[2],u) if fr[2] in started else 0}")
        started.add(fr[2])
    def wait(n):
        if len(q) <= n: return []
        a(f"s_waitcnt vmcnt({n})"); done = q[:len(q) - n]; del q[:len(q) - n]
        return done
    def retire(done):
        for x in done:
            if x[0] == "st":
                a(f"buffer_store_dword {vOne}, {vF}, {Smb}, s61 offen sc1"); q.append(("fl",))
        for x in done:
            if x[0] == "ld": add(x[1])
    for t in range(4):
        a(f"s_mul_i32 s45, {sGo}, {PART // 128}")
        if t == ts: a("s_mov_b32 s62, s45")
        late = []
        if ("po",) in q: late = wait(len(q) - 1 - q.index(("po",)))
        a(f"Lpoll{t}:"); a(f"v_cmp_eq_u32 vcc, 0, {vRdy}"); a(f"s_cbranch_vccz Lgo{t}")
        a(poll); a("s_add_u32 s63, s63, 1"); a("s_waitcnt vmcnt(0)"); a("s_cmp_lt_u32 s63, 0x40000"); a(f"s_cbranch_scc1 Lpoll{t}")
        a(f"Lgo{t}:")
        if int(o.rst): a(f"s_memrealtime s[{66+2*nst+2*t}:{67+2*nst+2*t}]")
        a(f"s_sub_u32 {sGo}, {sGo}, 512"); a(f"s_and_b32 {sGo}, {sGo}, 0x600")
        for i in range(nl(t) // 3):
            if t == ts: a(f"s_add_u32 s52, s51, {i+1}"); a("s_and_b32 s52, s52, 3"); a(f"s_mul_i32 s52, s52, {PART}"); a("s_add_u32 s45, s62, s52")
            if i == pa and t < 3: a(poll); q.append(("po",))
            for f in range(3):
                done = late + wait(rw - 1); late = []
                a(f"buffer_load_dwordx4 {buf(t,i,f)}, {vR[f]}, {Sred}, s45 offen {o.rflag}"); q.append(("ld", (t, i, f)))
                retire(done)
            if i < 3 and t != ts: a(f"s_add_u32 s45, s45, {PART}")
            if (t, i) == (1, 1):
                a("s_waitcnt lgkmcnt(0)"); a("s_barrier")
                for f in range(3): a(f"ds_read_b128 {buf(ts,3,f)}, {vOwr} offset:{4096*f}")
            if (t, i) == (1, 3):
                a("s_waitcnt lgkmcnt(0)")
                for f in range(3): add((ts, 3, f))
        assert t > 0 or ("st",) not in q
    while q: retire(wait(len(q) - 1))
    a("s_nop 3")
    for f in range(3):
        if f: a("s_nop 1")
        for m in range(4): a(f"v_cvt_pk_bf16_f32 v{32+4*f+m}, v{8*f+2*m}, v{8*f+2*m+1}")
        a(f"buffer_store_dwordx4 v[{32+4*f}:{35+4*f}], {vO[f]}, {Sout}, 0 offen {o.outflag}".rstrip())

def tail_and_slow(o, nst):
    T = []; a = T.append
    a("; ---- reduce this workgroup's output chunk over the 16 head pairs of its batch")
    reduce_tail(o, a, nst); nst += 1 + 4 * int(o.rst)
    if int(o.stamps):
        a(f"s_memrealtime s[{64+2*nst}:{65+2*nst}]"); a("s_waitcnt vmcnt(0)")
        a(f"s_memrealtime s[{66+2*nst}:{67+2*nst}]"); a("s_waitcnt lgkmcnt(0)")
        a("s_cmp_lg_u32 s3, 0"); a("s_cbranch_scc1 Lend")
        if o.enc:
            ea, eb = [int(z) for z in o.enc.split(",")]
            a("s_cmp_lg_u32 s2, 100"); a("s_cbranch_scc1 Lnoenc")
            a(f"s_sub_u32 s52, s{64+2*eb}, s{64+2*ea}"); a("s_mul_i32 s52, s52, 10"); a("s_min_u32 s52, s52, 200000"); a("s_add_u32 s52, s52, 500")
            a("Lspin:"); a("s_memrealtime s[46:47]"); a("s_waitcnt lgkmcnt(0)"); a(f"s_sub_u32 s46, s46, s{66+2*nst}")
            a("s_cmp_lt_u32 s46, s52"); a("s_cbranch_scc1 Lspin"); a("Lnoenc:")
        a("s_load_dwordx2 s[40:41], s[0:1], 56"); a("s_mov_b32 s42, 0x10000000"); a("s_mov_b32 s43, 0x20000"); a("s_waitcnt lgkmcnt(0)")
        a(f"s_lshl_b32 s52, s2, 6"); a(f"s_add_u32 s52, s52, {STAMP_OFF}"); a("v_mov_b32 v1, s52")
        a("s_mov_b64 exec, 1")
        if int(o.rst): a("s_mul_i32 s63, s63, 100"); a("s_add_u32 s66, s64, s63")
        assert nst + 2 <= 16
        for n in range(nst + 2):
            a(f"v_mov_b32 v2, s{64+2*n}"); a(f"buffer_store_dword v2, v1, s[40:43], 0 offen offset:{4*n} sc1")
        if o.encx:
            col, fn = o.encx.split(",")
            a("s_cmp_lg_u32 s2, 100"); a("s_cbranch_scc1 Lend"); a("s_mov_b64 exec, -1"); a("s_waitcnt vmcnt(0)")
            a("Lsp1:"); a("s_memrealtime s[46:47]"); a("s_waitcnt lgkmcnt(0)"); a(f"s_sub_u32 s46, s46, s{66+2*nst}"); a("s_cmp_lt_u32 s46, 500"); a("s_cbranch_scc1 Lsp1")
            a(f"v_lshlrev_b32 v1, 4, {vL16}"); a(f"s_mov_b32 s52, {STAMP_OFF}")
            for z in range(4):
                a(f"buffer_load_dword v{4+z}, v1, s[40:43], s52 offen offset:{64*z} sc1"); a(f"buffer_load_dword v{8+z}, v1, s[40:43], s52 offen offset:{64*z+4*int(col)} sc1")
            a("s_waitcnt vmcnt(0)")
            for z in range(8): a(f"v_subrev_u32 v{4+z}, s64, v{4+z}")
            a("v_min_i32 v4, v4, v5"); a("v_min3_i32 v4, v4, v6, v7"); a(f"v_{fn}_i32 v8, v8, v9"); a(f"v_{fn}3_i32 v8, v8, v10, v11"); a("s_nop 1")
            a("v_readlane_b32 s52, v4, 0"); a("v_readlane_b32 s53, v8, 0")
            for z in range(1, 64):
                a(f"v_readlane_b32 s46, v4, {z}"); a(f"v_readlane_b32 s47, v8, {z}"); a("s_min_i32 s52, s52, s46"); a(f"s_{fn}_i32 s53, s53, s47")
            a("s_sub_u32 s52, s53, s52"); a("s_mul_i32 s52, s52, 10"); a("s_min_u32 s52, s52, 200000"); a("s_add_u32 s52, s52, 5000")
            a("Lsp2:"); a("s_memrealtime s[46:47]"); a("s_waitcnt lgkmcnt(0)"); a("s_sub_u32 s46, s46, s64"); a("s_cmp_lt_u32 s46, s52"); a("s_cbranch_scc1 Lsp2")
    a("Lend:"); a("s_endpgm")
    if int(o.r0in):
        a("Lp0_spin:"); a("s_mov_b32 s63, 0"); a("Lp0_loop:")
        a(f"buffer_load_dword {vRdy}, {vPo}, {Smb}, {sGo} offen sc1"); a("s_add_u32 s63, s63, 1"); a("s_waitcnt vmcnt(0)")
        a(f"v_cmp_eq_u32 vcc, 0, {vRdy}"); a("s_cmp_lt_u32 s63, 0x40000"); a("s_cselect_b64 vcc, vcc, 0")
        a("s_cbranch_vccnz Lp0_loop"); a("s_branch Lp0_back")
    a("; ---- wait until all 16 workgroups of the batch have cleared their mailboxes"); a("Lrdy_spin:"); a("s_mov_b32 s63, 0"); a("Lrdy_loop:")
    a(f"buffer_load_dword {vRdy}, {vRdA}, {Sdbg}, 0 offen sc1"); a("s_add_u32 s63, s63, 1"); a("s_waitcnt vmcnt(0)")
    a(f"v_cmp_gt_u32 vcc, 16, {vRdy}"); a("s_cmp_lt_u32 s63, 0x40000"); a("s_cselect_b64 vcc, vcc, 0")
    a("s_cbranch_vccnz Lrdy_loop"); a("s_branch Lrdy_back")
    a("; ---- fallback: a row sum left the safe range, so take the exact row maxima over all keys and redo the workgroup with them"); a("Lslow:"); a("s_waitcnt vmcnt(0) lgkmcnt(0)"); a("s_nop 7"); a("s_barrier")
    a("v_mbcnt_lo_u32_b32 v0, -1, 0"); a("v_mbcnt_hi_u32_b32 v0, -1, v0")
    a("v_and_b32 v1, 15, v0"); a("v_lshlrev_b32 v1, 8, v1"); a("v_lshrrev_b32 v2, 4, v0"); a("v_lshl_add_u32 v1, v2, 4, v1")
    a("s_lshl_b32 s52, s48, 17"); a("s_add_u32 s52, s52, 128"); a("s_lshl_b32 s53, s49, 6"); a("s_add_u32 s62, s52, s53")
    a("v_add_u32 v2, s62, v1"); a("s_xor_b32 s53, s53, 64"); a("s_add_u32 s62, s52, s53"); a("v_add_u32 v3, s62, v1")
    for b in range(5): a(f"v_mov_b32 v{8+b}, 0xff800000")
    a("s_mov_b32 s45, 0"); a("Lslow_loop:")
    for t in range(4): a(f"buffer_load_dwordx4 v[{16+4*t}:{19+4*t}], v{2+(t&1)}, {Sk}, s45 offen offset:{128*(t>>1)}")
    a("s_waitcnt vmcnt(0)")
    for b in range(5):
        for t in range(4):
            a(f"v_mfma_f32_16x16x32_bf16 {NM(b)}, v[{16+4*t}:{19+4*t}], {QF(b,t)}, {0 if t == 0 else NM(b)}")
    a("s_nop 7"); a("s_nop 1")
    for b in range(5):
        n = NM(b); a(f"v_max3_f32 v{8+b}, v{8+b}, {n[0]}, {n[1]}"); a(f"v_max3_f32 v{8+b}, v{8+b}, {n[2]}, {n[3]}")
    a("s_add_u32 s45, s45, 4096"); a("s_cmp_lt_u32 s45, 131072"); a("s_cbranch_scc1 Lslow_loop")
    for b in range(5): a(f"v_accvgpr_write_b32 {SAV(b)}, v{8+b}")
    a("s_load_dwordx16 s[4:19], s[0:1], 0"); a("s_mov_b32 s54, 1"); a("s_branch Lrestart"); a("Lcode_end:")
    return T

KD = """.amdhsa_kernel {name}
  .amdhsa_next_free_vgpr {vg}
  .amdhsa_next_free_sgpr {sg}
  .amdhsa_accum_offset {acc}
  .amdhsa_group_segment_fixed_size 0
  .amdhsa_kernarg_size 64
  .amdhsa_user_sgpr_count 2
  .amdhsa_user_sgpr_kernarg_segment_ptr 1
  .amdhsa_system_sgpr_workgroup_id_x 1
  .amdhsa_float_denorm_mode_32 3
.end_amdhsa_kernel"""

DESC = """
;
; One workgroup per CU, 4 waves, workgroup = (batch b, head pair j).  wave = (head, query half): 4 own blocks of 16
; queries plus the ninth block on every second key tile.  All products are 16x16x32 bf16 MFMAs in transposed form, so
; Q^T, P^T and O^T go from accumulator to operand without leaving registers; x, Wq, K, V and Wo stream through LDS by DMA.
; Softmax: log2(e)/sqrt(128) is folded into Q; each row is shifted by the maximum of its first 16 scores (accumulator
; initial value).  The row sums are checked before anything is stored: if one is above 2^40 (or NaN) the workgroup
; computes the exact maxima over all keys and runs again with them (Lslow).
; Head reduction: bf16 partial outputs go to d_ws with write-through stores; a wave flags a chunk in the consumer's
; mailbox once its stores have completed, and every workgroup sums one 144x32 chunk of its batch in fp32.  Mailboxes are
; cleared by their owner at the start of the launch; d_debug counts the cleared mailboxes of each batch.
; The counted waits in front of the stream loads cap the loads in flight, which keeps the CUs level with each other.
;
"""

def generate(o):
    hdr = [l.rstrip("\n") for l in open(f"cdna_kernels/{NAME}.s.ref") if l.startswith(";") and "@launch" not in l and "grid=" not in l and "Override" not in l]
    seq, nst = build_main(o)
    hdr += DESC.strip("\n").split("\n")
    L = hdr + [f"; @launch grid=(256,1,1) block=(256,1,1) lds={LDSB}", '.amdgcn_target "amdgcn-amd-amdhsa--gfx950"', ".text",
               f".globl {NAME}_kernel", ".p2align 8", f".type {NAME}_kernel,@function", f"{NAME}_kernel:"]
    L += [i.text for i in seq] + tail_and_slow(o, nst)
    L += ['.section .rodata,"a"', ".p2align 6", KD.format(name=f"{NAME}_kernel", vg=512, sg=102, acc=256)]
    txt = "\n".join(L) + "\n"
    if int(o.clk): txt = txt.replace("s_memrealtime", "s_memtime")
    return txt

if __name__ == "__main__":
    o = Opt()
    for kv in sys.argv[2:]:
        k, v_ = kv.split("=", 1)
        assert hasattr(Opt, k), k
        setattr(o, k, v_)
    open(sys.argv[1], "w").write(generate(o))
```

```python
import sys, math, struct
from dsl import *

NAME = "standalone__mha_block_cached__near_ridge"
US, GRP, PS = 17024, 4224, 1056
X9 = 9 * US
FLAG = X9 + 8448
LDSB = 163840
PART = 147456
STAMP_OFF = 0x4000000
MBOFF = 256 * PART
def fbits(x): return struct.unpack("<I", struct.pack("<f", x))[0]
CSC = fbits(math.log2(math.e) / math.sqrt(128.0))
THR = fbits(2.0 ** 40)

Smb, Sred, Sout, Sdbg = S(4, 4), S(8, 4), S(12, 4), S(16, 4)
Sx, Swq, Sk, Sv, Swo, Sws = S(20, 4), S(24, 4), S(28, 4), S(32, 4), S(36, 4), S(40, 4)
sW, sGrp, sOff, sC, sGrP, sHH, sQH, sB, sJ = S(3), S(44), S(45), S(46), S(47), S(48), S(49), S(50), S(51)
sT0, sT1, sMode, sX9, sT3, sOw0, sOw1, sA8, sB8, sSt, sT2, sAt = [S(n) for n in range(52, 64)]
sRx, sRw = S(96), S(97)
sCc = S(55)
sRk = S(47)
sP = lambda p: S(98 + p)
ACC = lambda b, f: V(32 * b + 4 * f, 4)
QF = lambda b, t: (V(128 + 16 * b + 4 * t, 4) if b < 4 else A(180 + 4 * t, 4))
SB = lambda k: V(192 + 8 * k, 8)
PB = lambda k: V((208, 212, 248)[k], 4)
NM = lambda b: V(216 + 4 * b, 4)
Kr = lambda y, p: V(236 + 2 * y + p)
Vr = lambda y, hf: V(240 + 2 * y + hf)
vKV = lambda pp: V(244 + pp)
vL16, vTs, vT0, vT1 = V(252), V(253), V(254), V(255)
qWr = lambda win, p: V(216 + 2 * win + p)
qXr = lambda win: V(220 + win)
qX9r = V(222)
qWd = lambda pp: V(225 + pp)
qXd = lambda pp: V(229 + pp)
qX9d, qA8, qB8 = V(233), V(234), V(235)
KF = lambda y, h, t: A(32 * y + 16 * h + 4 * t, 4)
VF = lambda e, y, d: A((96 if y else (64, 200)[e & 1]) + 4 * d, 4)
O9 = lambda d: A(128 + 4 * d, 4)
LS = lambda b: A(160 + 4 * b, 4)
ONES = A(196, 4)
SAV = lambda b: A(248 + b)
aWpat, aWo0, aKv0 = A(253), A(254), A(255)
Aq = lambda fp, kk: A(96 + 8 * fp + 4 * kk, 4)
Bq = lambda I_, kk, b: A((128, 200)[I_ & 1] + 16 * kk + 4 * b, 4)
B9 = lambda I_, kk: A(232 + 8 * (I_ & 1) + 4 * kk, 4)
SEQ = [(I_, h) for I_ in range(6) for h in range(2)] + [(6, 0), (7, 0), (6, 1), (7, 1)]
WQU = {4: 1, 5: 4, 0: 5, 1: 3, 2: 6, 3: 8}
XU = {2: 0, 0: 2, 1: 7}
KVU = lambda slot: (2 * slot, 2 * slot + 1, 4 + 2 * slot, 5 + 2 * slot)
WOU = {0: (0, 1, 4, 5), 1: (2, 3, 0, 1), 2: (4, 5, 2, 3), 3: (0, 1, 6, 7)}
Ao = lambda p, ks, u: A(((64, 0), (32, 96))[p & 1][ks >> 2] + 16 * u + 4 * (ks & 3), 4)
QB = [0, 4, 1, 5, 2, 6, 3, 7, 8]
def Bo(qb, ks):
    if qb < 4: return V(32 * qb + 4 * ks, 4)
    if qb == 4: return A(232 + 4 * ks if ks < 6 else 192 + 4 * (ks - 6), 4)
    if qb == 6: return V(128 + 4 * ks, 4)
    return A({5: 200, 7: 160, 8: 128}[qb] + 4 * ks, 4)
TR, B128 = "ds_read_b64_tr_b16", "ds_read_b128"
sG, sGo = S(96), S(97)
def rbuf(t, i, f):
    n = 12 * t + 3 * i + f
    return A((0, 64, 32)[n >> 3] + 4 * (n & 7) if n < 24 else 4 * n, 4)
vSt3, vOwn, vOwr = V(232), V(233), V(234)
vF, vOne, vRdy, vPo, vR, vRdA, vO, SEL = V(220), V(221), V(222), V(223), V(224, 3), V(227), V(228, 3), V(160, 8)

class Opt:
    stamps = 0; clk = 0; enc = None; encx = None; xst = ""; qst = ""; abl = ""
    kvflag = "nt"; stflag = "sc1"; outflag = "sc1"
    qseq = ("x0,n0,w0,w1|p1,x1,w2,p2,w3,p5.3,x2,n1,w4,w5,x3,t2,w6,w7,x4,n2,w8,p4.2,w9,x5,w10,w11,x6,n3,w12,x7,w13,w14,w15,"
            "p2,s0,s1,s2,p3,s3,k0,p5,k1,p9,k2,k3")
    bal = '(12,17)'; winlo = 5; winhi = 7; hx = 'h'; asym = 0; lpf = 0; tflag = ''; rot = 2; rsh = 1; cpf = 2
    ashift = 0; win = 6; winfrom = 2; astep0 = 11.3; astep = 10.65; astep4 = 10.65; astep5 = 10.65; estep = 8.4; wow = 0.6; bxo = 10; w1bo = 4
    ouseq = '00,04,10,14,01,05,11,02,06,15,12,03,07,16,08,13,17,18'
    vmgap = 2; dswgap = 4; maxmem = 1; wiso = 1; hor = 40; lead = 8; w64 = 0
    sepv = 3; bvo = 14; bv7 = 0; bk0 = 20; ba0 = -22; bb0 = 30; bao = 0; bbo = 20; bb7 = 32; ate = 9; merge = 1; ts = 3; ppw = 0; stag = 0; rdyo = 90; rank = '[]'; rkth = 32; dmin = 1; prev = 1; map4 = 0; wmix = 0; wsp = 0; bno = 14; bbo1 = 8; rst = 0; wpace = 0.5; thin = 1; call = 1; cte = '0,3'; tt = 0; win0 = '11,11,11,11,11,10,9,9'; rox = ''; kvm = 1; all0 = 0; cpl = 0; rawp = 1; winp = ''; adw = 0; fb = 0; bko1 = 11; byo = 12; hold = 0; lflag = 'sc1'; l3flag = 'sc1'; rflag = 'sc1'; r0in = 0; r0o = 12; r0step = 10; r0w = 5; r0p = 44; swin = 0; rwin = 6; polli = 2; b1o = 18; bko = 11; bdo = 100; flo = '190,160,104'; pollo = 36; ostep0 = 4; ostep1 = 4; ostep2 = 4; ostep3 = 16; ostep4 = 12
    def __getattr__(s, k): raise AttributeError(k)

def setoff(soff):
    if isinstance(soff, tuple):
        r, add, mask = soff
        if mask == "x": return [salu("s_xor_b32", sOff, r, add)]
        return [salu("s_add_u32", sOff, r, add)] + ([salu("s_and_b32", sOff, sOff, mask)] if mask else [])
    return [salu("s_mov_b32", sOff, soff)]
def group(unit_off, base, voff, srd, soff, flags, tag):
    return [salu("s_add_u32", "m0", base, unit_off)] + setoff(soff) + [dma(voff(pp), srd, sOff, PS * pp, flags, tag) for pp in range(4)]
def g_wq(j): return group(WQU[j % 6] * US, sGrp, qWd, Swq, (sRw, SEQ[j][0] * 524288 + SEQ[j][1] * 128, 0x3fffff), "", f"wq{j}")
def g_x(I_): return group(XU[I_ % 3] * US, sGrp, qXd, Sx, (sRx, I_ * 128, 1023), "", f"x{I_}")
def g_x9(n): return [salu("s_add_u32", "m0", sX9, X9 + (n & 1) * GRP)] + setoff((sRx, n * 256, 1023)) + [dma(qX9d, Sx, sOff, 0, "", f"xn{n}")]
def g_kv(e, part, o, cap=True):
    kv, half = part >> 1, part & 1
    ops = group(KVU(e & 1)[part] * US, sGrp, vKV, (Sk, Sv)[kv], (sRk, e * 16384 + half * (4096 << int(o.kvm)), "x"), o.kvflag, f"{'kv'[kv]}{e}")
    if e < int(o.winfrom) and o.win0:
        for x in ops:
            if x.kind == "dma": x.text = f"s_waitcnt vmcnt({int(o.win0.split(',')[4 * e + part])-1})\n" + x.text
    if cap and int(o.win) and e >= int(o.winfrom):
        for x in ops:
            if x.kind != "dma": continue
            if any(4 * e + part in range(*z) for z in (eval(o.bal) if o.bal[0] == "[" else [eval(o.bal)])):
                g_kv.n = getattr(g_kv, "n", 0) + 1
                x.text = f"s_cbranch_vccz Lw{g_kv.n}\ns_waitcnt vmcnt({int(o.winlo)-1})\nLw{g_kv.n}:\ns_waitcnt vmcnt({int(o.winhi)-1})\n" + x.text
            else:
                g_kv.m = getattr(g_kv, "m", 0) + 1
                x.text = f"s_waitcnt vmcnt({int(o.winp[g_kv.m % len(o.winp)] if o.winp else o.win)-1})\n" + x.text
    return ops
def g_wo(p, hf): return sum((group(WOU[p][part] * US, sGrp, vKV, Swo, (sP(p), part * 65536, 0), "", f"wo{p}{'ab'[hf]}") for part in (2 * hf, 2 * hf + 1)), [])
def w128(o, addr, data, off):
    if not int(o.w64): return [dsw("ds_write_b128", addr, data, off)]
    return [dsw("ds_write_b64", addr, (data[0].sub(2 * z, 2), data[1]), off + 8 * z) for z in range(2)]

def qtok(tok, o):
    c, n = tok[0], int(tok[1:])
    if c == "w": return g_wq(n), n - 6
    if c == "x": return g_x(n), 2 * (n - 3)
    if c == "n": return g_x9(n), (4 * (n - 2) + 2 if n >= 2 else -1)
    if c == "c": return code_touch(V(254, 2), vTs, vL16, shift=3), -1
    if c == "t":
        ops = [salu("s_bfe_u32", sT0, sB, (1 << 16) | 1), salu("s_lshl_b32", sT0, sT0, 24)] + (
               [salu("s_lshl_b32", sT1, sQH, 12), salu("s_add_u32", sT0, sT0, sT1)] if int(o.kvm) else []) + [
               valu("v_mul_u32_u24", vT0, 7, vL16), valu("v_accvgpr_read_b32", vT1, aKv0), valu("v_add3_u32", vT0, vT0, vT1, sT0)] + (setoff(16384) if 2 < n < 10 else [])
        return ops + [I(f"buffer_load_dword {vTs}, {vT0}, {(Sk, Sv)[z & 1]}, {sOff if z >> 1 else 0} offen", "vml", rd=[vT0, sOff], tag="ct") for z in (range(n) if n < 10 else [n - 10])], -1
    if c == "u":
        ops = [salu("s_bfe_u32", sT0, sB, (1 << 16) | 1), salu("s_xor_b32", sT0, sT0, 1), salu("s_lshl_b32", sT0, sT0, 24),
               salu("s_bfe_u32", sT1, sB, (1 << 16) | 2), salu("s_lshl_b32", sT1, sT1, 17), salu("s_add_u32", sT0, sT0, sT1),
               salu("s_and_b32", sT1, sB, 1), salu("s_lshl2_add_u32", sT1, sT1, sW), salu("s_lshl_b32", sT1, sT1, 14), salu("s_add_u32", sT0, sT0, sT1),
               valu("v_lshl_add_u32", vT0, vL16, 3, sT0)] + setoff(8192)
        return ops + [I(f"buffer_load_dword {vTs}, {vT0}, {Swo}, {sOff if z else 0} offen offset:128", "vml", rd=[vT0, sOff], tag="ct") for z in range(2)], -1
    if c == "s": return g_kv(0, n, o), (10, 10, 11, 12)[n]
    if c == "k": return g_kv(1, n, o), (12, 13, 14, 14)[n]
    raise ValueError(tok)

def code_touch(va, vd, lane, shift, tid=False):
    n = code_touch.n = getattr(code_touch, "n", 0) + 1
    return [valu("v_lshlrev_b32", va[0], shift, lane)] + ([] if tid else
            [salu("s_and_b32", sT0, sB, 7), salu("s_lshl_b32", sT1, sW, 6), salu("s_add_u32", sT0, sT0, sT1), salu("s_lshl_b32", sT0, sT0, 7),
             valu("v_and_b32", va[0], "0x1c00", va[0]), valu("v_add_u32", va[0], sT0, va[0])] if code_touch.thin else
            [salu("s_lshl_b32", sT0, sW, 13), valu("v_add_u32", va[0], sT0, va[0])]) + [
            raw(f"s_getpc_b64 s[52:53]\nLpc{n}:", wr=[sT0, sT1], kind="salu"),
            raw(f"v_min_u32 {va[0]}, Lcode_end-Lpc{n}-4, {va[0]}", rd=[va[0]], wr=[va[0]], kind="valu"),
            valu("v_mov_b32", va[1], 0),
            raw(f"v_lshl_add_u64 {va}, {va}, 0, s[52:53]", rd=[va, sT0, sT1], wr=[va], kind="valu"),
            I(f"global_load_dword {vd}, {va}, off", "vml", rd=[va], wr=[], tag="ct")]

def KSH(o): return 4096 if int(o.ppw) else 128
def kvset(o):
    if not int(o.ppw): return [valu("v_subrev_u32", vKV(pp), 32 * pp, vKV(0)) for pp in (1, 2, 3)]
    ops = []
    for pp in (3, 2, 1, 0):
        ops += [salu("s_xor_b32", sT2, sW, pp), salu("s_lshl_b32", sT2, sT2, 10), salu("s_sub_u32", sT2, sT2, PS * pp), valu("v_add_u32", vKV(pp), sT2, vKV(0))]
    return ops

def prologue(o):
    P = []; a = P.append
    v = lambda n: V(n)
    a(raw("s_cmp_ge_u32 s2, 256")); a(raw("s_cbranch_scc1 Lend"))
    a(raw("s_load_dwordx16 s[4:19], s[0:1], 0"))
    if int(o.stamps): a(raw("s_memrealtime s[64:65]"))
    if int(o.stag):
        assert int(o.stamps)
        a(raw("s_bfe_u32 s52, s2, 0x20001\nLstag:\ns_cmp_eq_u32 s52, 0\ns_cbranch_scc1 Lstag_done\ns_sleep %d\ns_sub_u32 s52, s52, 1\ns_branch Lstag\nLstag_done:" % int(o.stag)))
    a(valu("v_lshrrev_b32", v(1), 6, v(0)))
    if int(o.call):
        a(salu("s_bfe_u32", sT2, S(2), (3 << 16) | 3)); a(valu("v_lshrrev_b32", v(3), 2, v(0))); a(valu("v_lshl_add_u32", v(3), v(3), 3, sT2))
        P += code_touch(V(8, 2), vTs, v(3), shift=7, tid=True)
    elif int(o.cpf) and not int(o.cpl): P += code_touch(V(8, 2), vTs, v(0), shift=int(o.cpf) + 3, tid=True)
    a(valu("v_readfirstlane_b32", sW, v(1)))
    a(valu("v_mov_b32", v(2), "0xff800000")); a(salu("s_mov_b32", sMode, 0))
    for b in range(5): a(valu("v_accvgpr_write_b32", SAV(b), v(2)))
    a(raw("Lrestart:", kind="label"))
    L, t1, t2, t3, t4, t5, t6 = v(0), v(1), v(2), v(3), v(4), v(5), v(6)
    a(valu("v_mbcnt_lo_u32_b32", L, -1, 0)); a(valu("v_mbcnt_hi_u32_b32", L, -1, L))
    if int(o.map4):
        a(salu("s_bfe_u32", sB, S(2), (4 << 16) | 3))
        a(salu("s_and_b32", sT0, S(2), 7)); a(salu("s_lshr_b32", sT1, S(2), 7)); a(salu("s_lshl1_add_u32", sJ, sT0, sT1))
    else:
        a(salu("s_and_b32", sT0, S(2), 1)); a(salu("s_bfe_u32", sT1, S(2), (3 << 16) | 3)); a(salu("s_lshl3_add_u32", sB, sT0, sT1))
        a(salu("s_bfe_u32", sT0, S(2), (2 << 16) | 1)); a(salu("s_lshr_b32", sT1, S(2), 6)); a(salu("s_lshl2_add_u32", sJ, sT0, sT1))
    a(salu("s_lshr_b32", sHH, sW, 1)); a(salu("s_and_b32", sQH, sW, 1))
    a(salu("s_mul_i32", sGrp, sW, GRP)); a(salu("s_mul_i32", sX9, sW, PS))
    a(salu("s_add_u32", sT3, sB, sJ)); a(salu("s_lshl_b32", sT0, sT3, 0 if int(o.asym) else int(o.rsh))); a(salu("s_and_b32", sT0, sT0, int(o.rot)))
    if o.rox:
        a(salu("s_lshr_b32", sT1, S(2), 1))
        a({"b": salu("s_and_b32", sT1, S(2), 1), "h": salu("s_and_b32", sT1, sT1, 1), "x": salu("s_xor_b32", sT1, sT1, S(2))}[o.rox])
        a(salu("s_and_b32", sT1, sT1, 1)); a(salu("s_add_u32", sT0, sT0, sT1))
    a(salu("s_lshl_b32", sRx, sT0, 8)); a(salu("s_lshl_b32", sRw, sT0, 20))
    a(valu("v_and_b32", t1, 7, L)); a(valu("v_lshlrev_b32", t1, 4, t1))
    a(valu("v_lshrrev_b32", t2, 3, L)); a(valu("v_lshl_add_u32", t3, t2, 12, t1))
    a(salu("s_lshl_b32", sT0, sW, 15)); a(salu("s_add_u32", sT0, sT0, 128))
    a(valu("v_add_u32", qXd(0), sT0, t3))
    for pp in range(1, 4): a(valu("v_subrev_u32", qXd(pp), 32 * pp, qXd(0)))
    a(valu("v_and_b32", t4, 3, t2)); a(valu("v_lshl_add_u32", t3, t4, 12, t1))
    a(valu("v_lshrrev_b32", t2, 5, L)); a(valu("v_lshl_add_u32", t3, t2, 7, t3))
    a(salu("s_lshl_b32", sT0, sW, 10)); a(salu("s_add_u32", sT0, sT0, 128 * 1024 + 128))
    a(valu("v_add_u32", qX9d, sT0, t3))
    a(valu("v_lshl_add_u32", t3, t4, 16, t1)); a(valu("v_lshl_add_u32", t3, t2, 15, t3))
    a(salu("s_lshl_b32", sT0, sQH, 18)); a(salu("s_lshl_b32", sT1, sHH, 8)); a(salu("s_add_u32", sT0, sT0, sT1))
    a(valu("v_add_u32", qWd(0), sT0, t3))
    for pp in range(1, 4): a(valu("v_add_u32", qWd(pp), (8192 - PS) * pp, qWd(0)))
    a(salu("s_mov_b32", Sx[2], PART + 128)); a(salu("s_mov_b32", Sx[3], "0x20000")); a(salu("s_mov_b32", Swq[3], "0x20000"))
    a(salu("s_mul_i32", sT2, sB, PART)); a(salu("s_lshl_b32", sT1, sJ, 9)); a(salu("s_sub_u32", Swq[2], 4194304, sT1))
    a(raw("s_waitcnt lgkmcnt(0)"))
    def base(srd, ptr, off, shift=0, size=None):
        a(salu("s_add_u32", srd[0], S(ptr), off)); a(salu("s_addc_u32", srd[1], S(ptr + 1), 0))
        if shift:
            a(salu("s_sub_u32", srd[0], srd[0], shift)); a(salu("s_subb_u32", srd[1], srd[1], 0))
        if size: a(salu("s_mov_b32", srd[2], size + shift)); a(salu("s_mov_b32", srd[3], "0x20000"))
    base(Sx, 4, sT2, 128); base(Swq, 10, sT1)
    if int(o.asym):
        a(raw("s_bitcmp1_b32 s56, 0")); a(raw("s_cbranch_scc0 Lnotouch"))
        a(salu("s_and_b32", sT0, sB, 14)); a(salu("s_lshl4_add_u32", sT0, sT0, sJ)); a(salu("s_lshl_b32", sT0, sT0, 18))
        base(Sk, 6, sT0, 0, 4194304 + 262144)
        if int(o.asym) > 2: base(Sv, 8, sT0, 0, 4194304 + 262144)
        a(salu("s_lshl4_add_u32", sT0, sHH, sQH)); a(salu("s_lshl_b32", sT0, sT0, 13)); a(valu("v_lshl_add_u32", t3, L, 7, sT0))
        a(salu("s_mov_b32", sOff, 4194304))
        for n in range(int(o.asym)):
            if int(o.asym) == 3 and n == 2:
                a(valu("v_lshrrev_b32", t1, 5, L)); a(valu("v_mul_u32_u24", t1, 4194304 - 4096, t1)); a(valu("v_add_u32", t3, t3, t1))
            a(raw(f"buffer_load_dword {vTs}, {t3}, {(Sk, Sv)[n >> 1]}, {sOff if n & 1 else 0} offen {o.tflag}".rstrip(), rd=[t3], kind="vml"))
        a(raw("Lnotouch:", kind="label"))
    lin = []
    if int(o.lpf):
        a = lin.append
        base(Sk, 4, 0, 0, 16 * PART); base(Sv, 10, 0, 0, 4194304)
        a(salu("s_lshl2_add_u32", sT0, S(2), sW)); a(salu("s_mul_i32", sT1, sT0, 2304)); a(salu("s_lshl_b32", sT0, sT0, 12))
        a(valu("v_min_u32", t1, 17, L)); a(valu("v_lshl_add_u32", t1, t1, 7, sT1)); a(valu("v_lshl_add_u32", t3, L, 6, sT0))
        a(I(f"buffer_load_dword {vTs}, {t3}, {Sv}, 0 offen", "vml", rd=[t3], tag="ct"))
        a(I(f"buffer_load_dword {vTs}, {t1}, {Sk}, 0 offen", "vml", rd=[t1], tag="ct"))
    first = []
    for n, tok in enumerate(o.qseq.split("|")[0].split(",")):
        if n == int(o.lpf) - 1: first += lin
        first += qtok(tok, o)[0]
    Q = []; a = Q.append
    if int(o.cpl): a(valu("v_lshl_add_u32", t1, sW, 6, L)); Q += code_touch(V(8, 2), vTs, t1, shift=int(o.cpf) + 3, tid=True)
    a(salu("s_lshl4_add_u32", sT1, sB, sJ))
    a(salu("s_lshl_b32", sT0, sT1, 18)); base(Sk, 6, sT0, KSH(o), 262144); base(Sv, 8, sT0, KSH(o), 262144)
    a(salu("s_mul_i32", sT0, sT1, PART)); base(Sws, 18, sT0, 0, PART)
    a(salu("s_lshl_b32", sT0, sJ, 18)); base(Swo, 12, sT0, 128, 262144)
    base(Sout, 14, sT2, 0, PART)
    a(salu("s_lshl_b32", sT0, sT2, 4)); base(Sred, 18, sT0, 0, 16 * PART)
    a(salu("s_lshl_b32", sT0, sB, 15)); a(salu("s_add_u32", sT0, sT0, MBOFF)); base(Smb, 18, sT0, 0, 32768)
    a(salu("s_mov_b32", Sdbg[2], 256)); a(salu("s_mov_b32", Sdbg[3], "0x20000"))
    a(salu("s_mov_b32", sC, hex(CSC))); a(raw("s_bitcmp1_b32 s50, 1")); a(raw("s_cselect_b64 vcc, -1, 0"))
    a(salu("s_lshr_b32", sT3, sJ, 2)); a(salu("s_lshl_b32", sT0, sB, int(o.fb))); a(salu("s_sub_u32", sT3, sT3, sT0))
    for p in range(4): a(salu("s_add_u32", sT0, sT3, (p - int(o.ts)) & 3)); a(salu("s_and_b32", sT0, sT0, 3)); a(salu("s_lshl_b32", sP(p), sT0, 8))
    a(salu("s_and_b32", sT0, sT3, 3)); a(salu("s_and_b32", sT1, sJ, 3)); a(salu("s_lshl2_add_u32", sT3, sT0, sT1))
    a(valu("v_and_b32", t1, 15, L)); a(valu("v_lshlrev_b32", t1, 4, t1))
    a(valu("v_lshrrev_b32", t5, 4, L))
    a(salu("s_add_u32", sT0, sW, 0 if str(o.ate) == "9" else sMode)); a(salu("s_lshl4_add_u32", sAt, sT0, sB)); a(salu("s_lshl_b32", sAt, sAt, 4))
    a(salu("s_lshl_b32", sT0, sMode, 6)); a(salu("s_add_u32", sT0, sT0, sW)); a(salu("s_lshl_b32", sT0, sT0, 9))
    a(valu("v_lshl_add_u32", t6, L, 3, sT0)); a(salu("s_lshl_b32", sOff, sT3, 11)); a(valu("v_mov_b64", V(8, 2), 0))
    a(vstore(V(8, 2), t6, Smb, sOff, 0, "sc1", tag="mbz", op="buffer_store_dwordx2"))
    a(valu("v_lshl_add_u32", t3, t5, 13, t1))
    a(salu("s_lshl_b32", sT0, sHH, 15)); a(salu("s_lshl_b32", sT1, sQH, 12)); a(salu("s_add_u32", sT0, sT0, sT1))
    a(salu("s_add_u32", sT0, sT0, 128)); a(valu("v_add_u32", t3, sT0, t3)); a(valu("v_accvgpr_write_b32", aWo0, t3))
    a(valu("v_lshlrev_b32", vL16, 4, L))
    a(salu("s_lshl_b32", sT0, sHH, 17)); a(salu("s_lshl_b32", sT1, sQH, 13 - int(o.kvm))); a(salu("s_add_u32", sT0, sT0, sT1))
    a(salu("s_add_u32", sT0, sT0, KSH(o))); a(valu("v_add_u32", vKV(0), sT0, vL16)); a(valu("v_accvgpr_write_b32", aKv0, vKV(0)))
    Q += kvset(o)
    a(salu("s_xor_b32", sT0, sW, 1)); a(salu("s_mul_i32", sGrP, sT0, GRP))
    a(salu("s_add_u32", sA8, sGrp, 8 * US)); a(salu("s_add_u32", sB8, sGrP, 8 * US))
    a(valu("v_add_u32", qA8, sA8, vL16)); a(valu("v_add_u32", qB8, sB8, vL16))
    a(valu("v_and_b32", t1, 3, L)); a(valu("v_mul_u32_u24", t1, PS, t1)); a(valu("v_lshl_add_u32", t1, t5, 4, t1))
    a(valu("v_bfe_u32", t3, L, 2, 2)); a(valu("v_lshl_add_u32", t3, t3, 7, t1))
    a(valu("v_add_u32", qX9r, X9, t3))
    a(salu("s_mul_i32", sT0, sQH, 2 * GRP)); a(valu("v_add_u32", qXr(0), sT0, t3))
    a(valu("v_add_u32", qXr(1), 7 * US, qXr(0)))
    a(valu("v_bfe_u32", t3, L, 2, 1)); a(valu("v_mul_u32_u24", t3, US, t3)); a(valu("v_add_u32", t1, t1, t3))
    a(valu("v_bfe_u32", t3, L, 3, 1)); a(valu("v_lshl_add_u32", t1, t3, 8, t1))
    a(salu("s_lshl_b32", sT0, sQH, 6)); a(salu("s_xor_b32", sT1, sT0, 64))
    a(valu("v_add_u32", t3, sT0, t1)); a(valu("v_add_u32", t6, sT1, t1))
    a(valu("v_add_u32", Kr(0, 0), sGrp, t3)); a(valu("v_add_u32", Kr(0, 1), sGrp, t6))
    a(valu("v_add_u32", Kr(1, 0), sGrP, t3)); a(valu("v_add_u32", Kr(1, 1), sGrP, t6))
    a(valu("v_bfe_u32", t1, L, 2, 2)); a(valu("v_mul_u32_u24", t1, PS, t1))
    a(valu("v_and_b32", t3, 1, L)); a(valu("v_lshl_add_u32", t6, t3, 4, t1))
    a(valu("v_bfe_u32", t3, L, 1, 1)); a(valu("v_lshl_add_u32", t6, t3, 3, t6))
    a(valu("v_lshl_add_u32", t3, t5, 7, t6))
    a(salu("s_mul_i32", sT2, sHH, 2 * GRP)); a(salu("s_add_u32", sT2, sT2, US)); a(valu("v_add_u32", t3, sT2, t3))
    a(valu("v_add_u32", qWr(0, 0), sT0, t3)); a(valu("v_add_u32", qWr(0, 1), sT1, t3))
    a(valu("v_add_u32", qWr(1, 0), 4 * US, qWr(0, 0))); a(valu("v_add_u32", qWr(1, 1), 4 * US, qWr(0, 1)))
    a(valu("v_and_b32", t4, 1, t5))
    a(valu("v_lshl_add_u32", t6, t2, 8, t6)); a(valu("v_mul_u32_u24", t3, GRP, t4)); a(valu("v_add_u32", t6, t6, t3))
    a(salu("s_lshl_b32", sT2, sW, 6)); a(valu("v_add_u32", t6, sT2, t6)); a(valu("v_accvgpr_write_b32", aWpat, t6))
    a(valu("v_lshl_add_u32", t1, t2, 8, t1)); a(valu("v_and_b32", t3, 3, L)); a(valu("v_lshl_add_u32", t1, t3, 3, t1))
    a(valu("v_mul_u32_u24", t3, US, t4)); a(valu("v_add_u32", t1, t1, t3)); a(valu("v_add_u32", t1, 4 * US, t1))
    a(salu("s_lshl_b32", sT0, sT0, 1)); a(salu("s_lshl_b32", sT1, sT1, 1))
    a(valu("v_add_u32", t3, sT0, t1)); a(valu("v_add_u32", t6, sT1, t1))
    a(valu("v_add_u32", Vr(0, 0), sGrp, t3)); a(valu("v_add_u32", Vr(0, 1), sGrp, t6))
    a(valu("v_add_u32", Vr(1, 0), sGrP, t3)); a(valu("v_add_u32", Vr(1, 1), sGrP, t6))
    a(salu("s_and_b32", sRk, {"h": sHH, "b": sB, "0": 0}[o.hx], 1)); a(salu("s_lshl_b32", sRk, sRk, 12 + int(o.kvm)))
    a(salu("s_lshl1_add_u32", sT2, sQH, sHH)); a(salu("s_lshl_b32", sT2, sT2, 12)); a(salu("s_add_u32", sT2, sT2, 6 * US))
    a(salu("s_lshl4_add_u32", sOw0, sT0, sT2)); a(salu("s_lshl4_add_u32", sOw1, sT1, sT2))
    a(valu("v_mov_b32", t1, "0x3f803f80"))
    for r in range(4): a(valu("v_accvgpr_write_b32", (ONES[r], "ones"), t1))
    return P, first, Q

def build_main(o):
    code_touch.thin = int(o.thin)
    P, first, Q = prologue(o)
    sc = Sched(vmgap=int(o.vmgap), dswgap=int(o.dswgap), maxmem=int(o.maxmem), wiso=int(o.wiso), horizon=int(o.hor))
    F = sc.f
    nstamp = [1]
    def stamp(g, after=()):
        if int(o.stamps):
            n = nstamp[0]; nstamp[0] += 1
            F(raw(f"s_memrealtime s[{64+2*n}:{65+2*n}]"), g, g, after=after)
    nextvm = [0]
    def spread(ops, lo, step, q="dma", after=(), cap=None):
        out = []; pos = max(lo, nextvm[0]); pend = []
        for x in ops:
            pend.append(x)
            if x.kind in ("dma", "vml", "vms"):
                a_, b_ = int(pos), int(pos + step)
                if cap is not None: a_, b_ = min(a_, cap), min(b_, cap)
                for y in pend[:-1]: out.append(F(y, max(min(lo, b_), min(a_ - 3, b_)), b_, q=q, after=after))
                out.append(F(x, a_, b_, q=q, after=after)); pend = []
                if x.tag not in ('at', 'ct'): pos += step
        assert not pend
        nextvm[0] = pos
        return out
    cur = {}; lastrd = {}; firstrd = {}; lastwr = {}
    def M(d, dtag, a_, b_, c):
        cc = (d, cur[str(d)]) if c == "acc" else c
        i = mfma((d, dtag), a_, b_, cc); n = sc.m(i); cur[str(d)] = dtag
        for r, t in i.rd.items():
            lastrd[(r, t)] = n; firstrd.setdefault((r, t), n)
        lastwr[str(d)] = n
        return n
    lr = lambda reg, tag: max(lastrd[(r, tag)] for r in reg.regs())
    fr_ = lambda reg, tag: min(firstrd[(r, tag)] for r in reg.regs())
    for i in first + Q: F(i, -1, -1, q="dma")
    k0 = {}; qdone = {}
    for j, (I_, hf) in enumerate(SEQ):
        k0[j] = sc.n
        if j < 15: order = [(fp, b) for fp in range(4) for b in range(5) if b < 4 or fp < 2]
        else: order = [(fp, 4) for fp in range(2)] + [(fp, b) for b in range(4) for fp in range(4)]
        for fp, b in order:
            d = ACC(b, 4 * hf + fp) if b < 4 else SB(hf).sub(4 * fp, 4)
            for kk in range(2):
                bb = (Bq(I_, kk, b) if b < 4 else B9(I_, kk), f"x{I_}")
                n = M(d, "Qacc" if (I_, kk) == (7, 1) else f"q{I_}.{kk}", (Aq(fp, kk), f"w{j}"), bb, 0 if (I_, kk) == (0, 0) else "acc")
            qdone[str(d)] = n
    k0[16] = sc.n
    units = []; U = {}; G = {}; pre0 = {}; preL = {}
    P7 = {0: PB(0), 1: PB(1), 8: PB(2), 2: NM(0), 3: NM(4), 4: NM(1), 5: NM(2)}
    def pre(b):
        pre0[b] = sc.n
        for t in range(4): preL[b] = M(NM(b), f"pm{b}", (KF(0, 0, t), "k0"), (QF(b, t), f"Q{b}"), 0 if t == 0 else "acc")
    def qk(e, u):
        n = len(units); b, y = (u >> 1, u & 1) if u < 8 else (4, 0)
        s_ = SB(n & 1); p_ = PB(u % 3) if e < 7 else P7.get(u, s_.sub(0, 4))
        un = dict(e=e, u=u, b=b, y=y, S=s_, P=p_, n=n, q0=sc.n, hl=[0, 0])
        for h in range(2):
            for t in range(4):
                un["hl"][h] = M(s_.sub(4 * h, 4), f"s{n}", (KF(y, h, t), f"k{e}"), (QF(b, t), f"Q{b}"), (NM(b), f"nm{b}") if t == 0 else "acc")
        units.append(un); U[(e, u)] = un
    def pv(e, b, ds=range(-1, 8)):
        us = [U[(e, 2 * b)], U[(e, 2 * b + 1)]] if b < 4 else [U[(e, 8)]]
        g = G.setdefault((e, b), dict(p0=sc.n))
        for d in ds:
            acc = LS(b) if d < 0 else (ACC(b, d) if b < 4 else O9(d))
            for k, un in enumerate(us):
                a_ = (ONES, "ones") if d < 0 else (VF(e, un["y"], d), f"v{e}")
                g["pL"] = M(acc, f"o{e}.{k}" if k + 1 < len(us) else f"o{e}", a_, (un["P"], f"p{un['n']}"), 0 if e == 0 and k == 0 else "acc")
        for un in us: un["g"] = g
    st0 = {}
    for e in range(8):
        st0[e] = sc.n
        if e == 0: pre(0); pre(1)
        qk(e, 0); qk(e, 1)
        if e: pv(e - 1, 4)
        if e < 7:
            for b in range(1, 4):
                if e == 0: pre(b + 1)
                qk(e, 2 * b); qk(e, 2 * b + 1); pv(e, b - 1)
            qk(e, 8); pv(e, 3)
        else:
            prv = int(o.prev)
            for u in (8, 2, 3, 4, 5, 6, 7):
                qk(e, u)
                if u == 3 and prv: pv(e, 4, [-1])
            p7 = sc.n
            for b in ((0, 1, 2, 3) if prv else (4, 0, 1, 2)): pv(e, b, [-1])
            pv(e, 4, range(8))
            if not prv: pv(e, 3, [-1])
            for b in range(4): pv(e, b, range(8))
    attn_end = sc.n - 1
    odone = dict(lastwr)
    ou0 = {}; ouh = {}
    OU = [(p, qb) for p in range(4) for qb in QB]
    mg = int(o.merge)
    if mg:
        OU[:18] = [(int(z[0]), int(z[1])) for z in o.ouseq.split(",")]
    for n, (p, qb) in enumerate(OU):
        if True:
            ou0[n] = sc.n
            for u in range(2):
                for ks in range(8):
                    ouh[(n, u)] = M(SB(n & 1).sub(4 * u, 4), f"r{n}", (Ao(p, ks, u), f"wo{p}"), (Bo(qb, ks), f"of{qb}"), 0 if ks == 0 else "acc")
    last = sc.n - 1
    ou0[36] = ou0[37] = last + 1
    def rdA(j, fp):
        u = WQU[j % 6]; win = 0 if u <= 4 else 1
        return [dsr(TR, (Aq(fp, kk).sub(2 * h, 2), f"w{j}"), qWr(win, fp >> 1), (u - 1 - 4 * win) * US + kk * GRP + 512 * h + 32 * (fp & 1))
                for kk in range(2) for h in range(2)]
    def rdB(I_):
        u = XU[I_ % 3]; win = 1 if u == 7 else 0
        l = [dsr(B128, (Bq(I_, kk, b), f"x{I_}"), qXr(win), (u - 7 * win) * US + (b >> 1) * GRP + (b & 1) * 512 + kk * 64)
             for b in range(4) for kk in range(2)]
        return l + [dsr(B128, (B9(I_, kk), f"x{I_}"), qX9r, ((I_ >> 1) & 1) * GRP + (I_ & 1) * 512 + kk * 64) for kk in range(2)]
    bpre = F(barrier(vm=("x0", "xn0", "wq0")), -1, -1, q="dma")
    stamp(-1, [bpre])
    l = rdB(0)
    prev = [F(x, -1, -1, q="lds", after=[bpre]) for x in rdA(0, 0) + l[:6]]
    prev += [F(x, -1, 7, q="lds", after=[bpre]) for x in l[6:] + rdA(0, 1) + rdA(0, 2) + rdA(0, 3)]
    BQ = {}
    for j in range(16):
        g = k0[j] + (14 if j == 0 else 9)
        nI = SEQ[j + 1][0] if j < 15 and SEQ[j + 1][1] == 0 else None
        vm = []
        if j < 15: vm.append(f"wq{j+1}")
        if nI is not None: vm += [f"x{nI}", f"xn{nI//2}"]
        if j == 10: vm = ["wq15", "all0"] if int(o.all0) else vm + ["mbz"]
        bq = BQ[j] = F(barrier(vm=vm), g, g, after=prev)
        if o.qst and j in eval(o.qst): stamp(g, [bq])
        prev = []
        if j < 15:
            for fp in range(4):
                for x, kk in zip(rdA(j + 1, fp), (0, 0, 1, 1)):
                    lo = max(lr(Aq(fp, kk), f"w{j}"), g)
                    prev.append(F(x, lo, max(min(fr_(Aq(fp, kk), f"w{j+1}") - 6, k0[j + 1] + 3), lo), q="ldsA", after=[bq]))
        if nI is not None:
            for n, x in enumerate(rdB(nI)): prev.append(F(x, g, min(k0[j + 1] - 7 + n, k0[j + 1] + 2), q="ldsB", after=[bq]))
    step = 3.0; seen = set(o.qseq.split("|")[0].split(","))
    for tok in o.qseq.split("|")[1].split(","):
        if tok[0] == "@": nextvm[0] = max(nextvm[0], int(float(tok[1:]) * 36)); continue
        if tok[0] == "+": nextvm[0] += int(tok[1:]); continue
        if tok[0] == "p": step = float(tok[1:]); continue
        seen.add(tok)
        ops, dep = qtok(tok, o)
        spread(ops, BQ[dep].lo if dep >= 0 else 0, step, after=[BQ[dep]] if dep >= 0 else [])
    assert len([t for t in seen if t[0] not in "ctu"]) == 16 + 8 + 4 + 4 + 4, sorted(seen)
    stamp(k0[15])
    if o.xst:
        for g_ in eval(o.xst): stamp(g_)
    def pack_q(src, dst, tdst, hi):
        lo = min(max(qdone[str(src.sub(0, 4))], qdone[str(src.sub(4, 4))]) + 3, hi)
        ops = [valu("v_mul_f32", (src[m], "t"), sC, (src[m], "Qacc")) for m in range(8)]
        ops += [valu("v_cvt_pk_bf16_f32", (dst[m], "t2"), (src[2 * m], "t"), (src[2 * m + 1], "t")) for m in (0, 2, 1, 3)]
        ops += [swap("v_permlane32_swap_b32", (dst[m], "t2"), (dst[m + 2], "t2"), tdst, tdst) for m in range(2)]
        return [F(x, lo, hi, q="qe") for x in ops]
    q9w = []
    for hf in range(2):
        l = pack_q(SB(hf), PB(hf), "q9p", pre0[0] - 2)
        q9w.append(F(dsw("ds_write_b128", qA8, (PB(hf), "q9p"), 1024 * hf), BQ[15].lo, min(U[(0, 0)]["q0"] - 1, pre0[2] - 3 + int(o.ba0)), q="q9w", after=[l[-1], BQ[15]]))
        for t, b in ([(t, b) for t in (0, 1) for b in range(4)] if hf == 0 else [(t, b) for b in range(4) for t in (2, 3)]):
            pack_q(V(32 * b + 8 * t, 8), QF(b, t), f"Q{b}", pre0[b] - 1 + t)
    for b in range(5):
        n = NM(b); pm = f"pm{b}"; nm = f"nm{b}"; hi = fr_(n, nm) - 1
        ops = [valu("v_accvgpr_read_b32", vT1, SAV(b)),
               valu("v_max3_f32", n[0], (n[0], pm), (n[1], pm), vT1), valu("v_max3_f32", n[0], n[0], (n[2], pm), (n[3], pm)),
               valu("v_mov_b32", n[1], n[0]), swap("v_permlane32_swap_b32", n[0], n[1]), valu("v_max_f32", n[0], n[0], n[1]),
               valu("v_mov_b32", n[1], n[0]), swap("v_permlane16_swap_b32", n[0], n[1]),
               I(f"v_min_f32_e64 {n[0]}, -{n[0]}, -{n[1]}", "valu", rd=[n[0], n[1]], wr=[(n[0], nm)]),
               valu("v_mov_b32", (n[1], nm), (n[0], nm)), valu("v_mov_b64", (n.sub(2, 2), nm), (n.sub(0, 2), nm))]
        for x in ops: x = F(x, min(preL[b] + 3, hi), hi, q="nm")
        nmd = [x]
    def rdK(e, y, lo, after, hi=10**9):
        out = []
        for h in range(2):
            for t in range(4):
                r = KF(y, h, t); l_ = max(lo, lr(r, f"k{e-1}")) if e else lo
                x = dsr(B128, (r, f"k{e}"), Kr(y, t & 1), (e & 1) * 2 * US + 512 * h + 128 * (t >> 1))
                out.append(F(x, l_, max(l_, min(fr_(r, f"k{e}") - 6, hi)), q=f"ldsK{y}", after=after))
        return out
    def rdV(e, y, lo, after, hi):
        out = []
        for d in range(8):
            r = VF(e, y, d); l_ = max(lo, lr(r, f"v{e-1}")) if e and y else lo
            for h in range(2):
                x = dsr(TR, (r.sub(2 * h, 2), f"v{e}"), Vr(y, d >> 2), (e & 1) * 2 * US + 512 * h + 32 * (d & 3))
                out.append(F(x, l_, max(l_, min(fr_(r, f"v{e}") - 6, hi)), q=f"ldsV{y}", after=after))
        return out
    BB = {}; rkw = []
    vset = lambda src: [valu("v_accvgpr_read_b32", vKV(0), src)] + (kvset(o) if src is aKv0 else [valu("v_subrev_u32", vKV(pp), 32 * pp, vKV(0)) for pp in (1, 2, 3)])
    for e in range(8):
        if e == 0:
            g = k0[16] - int(o.bk0)
            bk = F(barrier(vm=["k0"], lgkm=False), g, g, after=[BQ[15]])
            gv = pre0[2] - 1 + int(o.ba0)
            bv = F(barrier(vm=["v0"]), gv, gv, after=q9w + [bk])
            for t in range(4):
                F(dsr(B128, (QF(4, t), "Q4"), qB8 if t & 1 else qA8, 1024 * (t >> 1)), gv, pre0[4] - 6, q="ldsQ9", after=[bv])
        else:
            g = U[(e - 1, 8)]["q0"] - 1 - int(o.bao)
            sep = e == 7 or e >= int(o.sepv)
            bk = F(barrier(vm=[f"k{e}"] + ([] if sep else [f"v{e}"]), lgkm=bool(rkw)), g, g, after=[BB[e - 1]] + rkw)
            if rkw:
                for x in (valu("v_mov_b32", vT0, sT1), dsr("ds_read_b32", vT1, vT0, 0)): x = F(x, g, g + 6, q="rk", after=[bk])
                F(raw(f"v_cmp_gt_u32 vcc, {int(o.rkth)}, {vT1}", rd=[vT1], kind="valu"), g + 12, g + 16, q="rk")
            rkw = []
            bv, gv = bk, g
            if sep and e < 7:
                gv = st0[e] + int(o.bvo)
                bv = F(barrier(vm=[f"v{e}"], lgkm=False), gv, gv, after=[bk])
            if e == 7:
                gv = p7 - 1 - int(o.bv7)
                gx = st0[7] + int(o.bxo)
                bx = F(barrier(vm=["wo0a"]), gx, gx, after=[bk])
                gz = U[(7, 7)]["q0"] - 1
                bz = F(barrier(vm=["wo0b"]), gz, gz, after=[bx]) if prv else bx
                bv = F(barrier(vm=["v7"]), gv, gv, after=[bz])
                stamp(gv, [bv])
        gb = G[(e, 0)]["p0"] + int(o.bbo if e >= int(o.sepv) else o.bbo1) if e < 7 else p7 + int(o.bb7)
        if e == 0 and int(o.bb0): gb = gv + int(o.bb0)
        rk = rdK(e, 0, g, [bk]) + rdK(e, 1, g, [bk], gx - 4 if e == 7 else 10**9)
        rv = rdV(e, 0, gv, [bv], gb - 5) + rdV(e, 1, gv, [bv], gb - 5)
        bb = BB[e] = F(barrier(vm=["wo0b" if int(o.wsp) else "wo1a"] if e == 7 else []), gb, gb, after=rk + rv)
        if e in (0, 3, 6): stamp(gb, [bb])
        ops = []
        if e < 6:
            for part in range(4 if e < 5 else 2): ops += g_kv(e + 2, part, o)
        if e in eval(o.rank):
            k_ = eval(o.rank).index(e); gn_ = U[(e, 8)]["q0"] - 1 - int(o.bao)
            l_ = [salu("s_and_b32", sT1, sJ, 3), salu("s_lshl_b32", sT1, sT1, 6), salu("s_add_u32", sT1, sT1, 16 * k_ + 4),
                  salu("s_and_b32", sT0, sAt, "0xf00"), salu("s_lshl3_add_u32", sT0, sT0, sT1), salu("s_add_u32", sT1, sT1, FLAG + 1024),
                  valu("v_lshl_add_u32", vT0, vL16, 7, sT0), valu("v_mov_b32", vT1, 1),
                  I(f"buffer_atomic_add {vT1}, {vT0}, {Sdbg}, 0 offen sc0", "vml", rd=[vT0, vT1], wr=[vT1], tag="at", cost=2),
                  valu("v_min_u32", vT0, 2048, vT0), valu("v_add_u32", vT0, FLAG + 1024, vT0)]
            for x in l_[:8]: F(x, gb - 12, gb, q="rk", after=nmd)
            for x in l_[8:]: F(x, gb, gb + 5, q="rk", after=[bb])
            rkw = [F(dsw("ds_write_b32", vT0, vT1, 0), gn_ - 7, gn_ - 4, q="rk")]
        sites = eval(str(o.ate)); sites = sites if isinstance(sites, list) else [sites]
        for k_, site in enumerate(sites):
            if int(site) != e: continue
            at = [salu("s_add_u32", sT0, sJ, k_), salu("s_and_b32", sT0, sT0, len(sites) - 1), salu("s_lshl_b32", sT0, sT0, 8), salu("s_add_u32", sT0, sT0, sAt),
                  valu("v_lshl_add_u32", vT0, vL16, 4, sT0), valu("v_mov_b32", vT1, 1),
                  vstore(vT1, vT0, Sdbg, 0, 0, "", tag="at", op="buffer_atomic_add")]
            pos = len(ops) if site == e else [z for z, x in enumerate(ops) if x.kind == "dma"][7] + 1
            ops[pos:pos] = at
        if e in eval(f'[{o.cte}]') and int(o.cpf): ops += code_touch(V(254, 2), vTs, vL16, shift=3)
        if ops: spread(ops, gb, float({0: o.astep0, 4: o.astep4, 5: o.astep5}.get(e, o.astep)), after=[bb])
    bx.after += rk
    wts = [1.0] * 8; win = int(o.win)
    def allowed(limit):
        m = 0; c = 0.0
        while m < len(wts) and c + wts[-1 - m] <= limit + 1e-9: c += wts[-1 - m]; m += 1
        return m
    def capped(ops, w):
        for x in ops:
            if x.kind == "dma": x.text = f"s_waitcnt vmcnt({allowed(win - w)})\n" + x.text; wts.append(w)
        return ops
    es = float(o.estep); wsp = int(o.wsp)
    if int(o.wmix):
        for hf in range(2):
            spread(capped(vset(aWo0) + g_wo(0, hf), float(o.wow)), BB[6].lo, es * float(o.wpace), after=[BB[6]])
            spread(capped(vset(aKv0) + g_kv(7, 2 + hf, o, False), 1.0), BB[6].lo, es, after=[BB[5]])
    else:
        spread(capped(vset(aWo0) + g_wo(0, 0) + ([] if wsp else g_wo(0, 1)), float(o.wow)), BB[6].lo, es * float(o.wpace), after=[BB[6]])
        spread(capped(vset(aKv0) + g_kv(7, 2, o, False) + g_kv(7, 3, o, False), 1.0), BB[6].lo, es, after=[BB[5]])
    early = vset(aWo0) + (g_wo(0, 1) if wsp else []) + g_wo(1, 0)
    for n in range(win - 1, 0, -1):
        g_ = min(int(nextvm[0]), gv - 3)
        if n >= int(o.dmin): F(raw(f"s_waitcnt vmcnt({allowed(n)})"), g_, g_ + 2, q="dma")
        idx = [k for k, x in enumerate(early) if x.kind == "dma"][:2]
        if idx:
            spread(early[:idx[-1] + 1], max(g_ + 1, gx), (es - 2) / 2, after=[bx]); early = early[idx[-1] + 1:]; wts += [0.0] * len(idx)
        nextvm[0] = max(nextvm[0], g_ + es)
    assert wsp or not early
    nextvm[0] = 0
    if str(o.ate) == "8":
        for x in (valu("v_lshl_add_u32", NM(3)[0], vL16, 4, sAt), valu("v_mov_b32", NM(3)[3], 1),
                  vstore(NM(3)[3], NM(3)[0], Sdbg, 0, 0, "", tag="at", op="buffer_atomic_add")): at8 = F(x, gv, gv + 3, q="dma", after=[bv])
    spread(early + g_wo(1, 1), gv + int(o.w1bo), float(o.ostep0), after=[bv])
    if prv: spread(g_wo(2, 0), gv + 1, float(o.ostep1), after=[bv])
    elif not wsp: spread(g_wo(2, 0), BB[7].lo + 1, float(o.ostep1), after=[BB[7]])
    vA8, vLMw, vW, vOw, vB8, vLMr = Kr(0, 0), Kr(0, 1), (Kr(1, 0), Kr(1, 1)), (Vr(0, 0), Vr(0, 1)), Vr(1, 0), Vr(1, 1)
    vBr, vFl, vSt, vO9 = (PB(2)[0], PB(2)[1]), vLMw, vLMr, vB8
    g = U[(7, 8)]["q0"]
    adr = [valu("v_bfe_u32", vLMw, vL16, 1, 7), valu("v_add_u32", vLMw, sA8, vLMw), dsw("ds_write_b32", vLMw, (NM(4)[0], "nm4"), 4096 + 4),
           valu("v_accvgpr_read_b32", vW[0], aWpat), valu("v_add_u32", vW[1], 4 * US, vW[0]), valu("v_add_u32", vA8, sA8, vL16)]
    adr = [F(x, gx, g + 4, q="adr", after=rk) for x in adr]
    bl = bz if prv else BB[7]
    bl.after.append(F(dsw("ds_write_b32", vLMw, (LS(4)[0], "o7"), 4096), G[(7, 4)]["p0"] + 4, bl.lo - 2, q="adr"))
    if prv: vLMr = vT0
    adrl = [F(x, gx if prv else p7, bl.lo + 3, q="adr", after=[] if prv else rv) for x in (valu("v_bfe_u32", vLMr, vL16, 1, 7), valu("v_add_u32", vLMr, sB8, vLMr))]
    adr2 = [valu("v_add_u32", vOw[0], sOw0, vL16), valu("v_add_u32", vOw[1], sOw1, vL16), valu("v_add_u32", vB8, sB8, vL16)]
    adr2 = [F(x, p7, BB[7].lo + 3, q="adr", after=rv) for x in adr2]
    lastP = {}
    for un in units:
        n, s_, p_ = un["n"], un["S"], un["P"]
        nx = units[n + 2]["q0"] if n + 2 < len(units) else 10**9
        pfree = -1; aft = []
        if str(p_) in lastP: pfree = lastP[str(p_)]["g"]["pL"]
        for b in range(5):
            if str(p_) == str(NM(b)): pfree = lr(p_, f"nm{b}") + 1
        if str(p_) == str(NM(4)): aft = [adr[2]]
        if n < 2: aft = q9w
        lastP[str(p_)] = un
        ex = []
        for j in range(8):
            hi = min(nx - 1 + 4 * (j >> 2), un["g"]["p0"] - 1, gv if prv else 10**9); lo = min(un["hl"][j >> 2] + 3, hi)
            ex.append(F(trans("v_exp_f32", (s_[j], f"e{n}"), (s_[j], f"s{n}")), lo, max(lo, hi - 1), q="exp"))
        for m in range(4):
            hi = min(nx - 1 + 4 * (m >> 1), un["g"]["p0"] - 1, gv if prv else 10**9)
            x = F(valu("v_cvt_pk_bf16_f32", (p_[m], f"p{n}"), (s_[2 * m], f"e{n}"), (s_[2 * m + 1], f"e{n}")),
                  max(ex[2 * m + 1].lo, pfree), hi, q="cvt", after=[ex[2 * m + 1]] + aft)
    if prv: bv.after.append(x)
    def rdAo(p, kss=range(8)):
        return [dsr(TR, (Ao(p, ks, u).sub(2 * h, 2), f"wo{p}"), vW[WOU[p][ks >> 1] >> 2],
                    (WOU[p][ks >> 1] & 3) * US + (ks & 1) * 2 * GRP + 512 * h + 32 * u)
                for u in range(2) for ks in kss for h in range(2)]
    fu = [OU.index((0, qb)) for qb in (0, 1, 2, 3, 8)]
    gB = [attn_end - int(o.b1o)] + [ou0[fu[k]] - int(o.bko1 if k == 1 and mg else o.bko) for k in range(1, 5)]
    pub = [[] for _ in range(5)]
    lm = NM(3)
    mr = [dsr("ds_read_b64", lm.sub(0, 2), vLMw, 4096), dsr("ds_read_b64", lm.sub(2, 2), vLMr, 4096)]
    g = max(bl.lo, lr(lm, "nm3") + 1)
    mr = [F(x, g, min(g + 10, gv) if prv else g + 10, q="lm", after=[bl, adrl[1]]) for x in mr]
    op1 = [valu("v_sub_f32", lm[1], lm[1], lm[3]), trans("v_exp_f32", lm[1], lm[1]), salu("s_lshl_b32", sT0, sW, 2),
           valu("v_fma_f32", vTs, lm[2], lm[1], lm[0]), trans("v_rcp_f32", lm[2], vTs), salu("s_add_u32", sT0, sT0, 6 * US),
           valu("v_add_u32", vFl, sT0, vL16), valu("v_mul_f32", lm[1], lm[1], lm[2])]
    op2 = []
    for b in range(4): op2 += [valu("v_accvgpr_read_b32", lm[3], (LS(b)[0], "o7")), valu("v_add_f32", vTs, vTs, lm[3])]
    op2.append(dsw("ds_write_b32", vFl, vTs, FLAG - 6 * US))
    op3 = [valu("v_add_u32", vBr[1], 6 * US, vL16), salu("s_lshl_b32", sT0, sW, 10), valu("v_add_u32", vSt, sT0, vL16)]
    lsum = [F(x, gv if prv else BB[7].lo + 4, gv if prv else gB[0] - 4, q="lm") for x in op1]
    if prv: bv.after.append(lsum[-1])
    lsum += [F(x, odone[str(LS(3))] + 4, gB[0] - 4, q="lm", after=[at8] if str(o.ate) == "8" else []) for x in op2]
    lsum += [F(x, G[(7, 4)]["pL"], gB[0] - 2, q="lm", after=rv) for x in op3]
    pub[0] += lsum
    rp = int(o.rawp)
    raww = [F(x, gB[rp - 1] + 12 if rp else G[(7, 4)]["pL"] + 4, gB[rp] - 36 + 5 * d if rp else gB[rp] - 4, q="raw" if rp else "ow", after=[adr[-1]])
            for d in range(4) for x in w128(o, vA8, (O9(4 + d), "o7"), 1024 * d)]
    pub[rp] += raww
    def norm_block(b):
        a32 = V(32 * b, 32); hi = gB[b] - 4
        ops = [valu("v_accvgpr_read_b32", vT1, (LS(b)[0], "o7")), trans("v_rcp_f32", vT0, vT1)]
        for x in ops: F(x, odone[str(LS(b))] + 4, hi, q="ep", after=mr)
        for k in range(4):
            ops = [valu("v_mul_f32", (a32[8 * k + m], "n"), (a32[8 * k + m], "o7"), vT0) for m in range(8)]
            ops += [valu("v_cvt_pk_bf16_f32", (a32[8 * k + m], "of"), (a32[8 * k + 2 * m], "n"), (a32[8 * k + 2 * m + 1], "n")) for m in range(4)]
            lo = odone[str(ACC(b, 2 * k + 1))] + 3; hk = max(lo, hi - 4 * (3 - k))
            for x in ops: x = F(x, lo, hk, q="ep")
            for y in w128(o, vOw[k >> 1], (a32.sub(8 * k, 4), "of"), (b & 1) * US + (k & 1) * 1024):
                pub[b].append(F(y, max(lo, gB[b - 1]) if b >= 2 else lo, hk, q="ow", after=[x, adr2[-1], BP[b - 1] if b >= 2 else BB[7]]))
    BP = [barrier(vm=v_) for v_ in (["wo1a" if wsp else "wo1b"], [], [], [], ["wo2a", "wo2b"])]
    bv.after += [F(x, max(gx, G[(6, 4)]["pL"]), gv - (14 if prv else 5), q="ldsK0", after=[adr[-1], bx]) for x in rdAo(0, range(4))]
    if wsp: pub[0] += [F(x, BB[7].lo, gB[0] - 4, q="ldsK0", after=[BB[7]]) for x in rdAo(0, range(4, 8))]
    else:
        if prv: bv.after += [F(x, gz, gv - 1, q="ldsK0", after=[bz]) for x in rdAo(0, range(4, 8))]
        else: BB[7].after += [F(x, gv, BB[7].lo - 4, q="ldsK0", after=[bv]) for x in rdAo(0, range(4, 8))]
        pub[0] += [F(x, BB[7].lo, gB[0] - 4, q="ldsK0", after=[BB[7]]) for x in rdAo(1, range(4))]
    for b in range(4): norm_block(b)
    F(BP[0], gB[0], gB[0], after=pub[0])
    stamp(attn_end)
    rdA0 = []; bn, gn = BP[0], gB[0]
    if wsp:
        gn = ou0[0] + int(o.bno)
        bn = F(barrier(vm=["wo1b"]), gn, gn, after=[BP[0]] + [F(x, gB[0], gn - 4, q="ldsK0", after=[BP[0]]) for x in rdAo(1, range(4))])
    for x in rdAo(1, range(4, 8)):
        r = next(iter(x.wr)); lo = max(gn, lastrd[(r, "v7")])
        rdA0.append(F(x, lo, max(lo, min(firstrd[(r, "wo1")] - int(o.lead), gB[1] - 3)), q="ldsK0", after=[bn]))
    fl = NM(0)
    fr = F(dsr(B128, fl, vBr[1], FLAG - 6 * US), gB[0], gB[0] + 1, q="ldsB", after=[BP[0]])
    chk = [valu("v_add_f32", fl[0], fl[0], fl[1]), valu("v_add_f32", fl[2], fl[2], fl[3]), valu("v_add_f32", fl[0], fl[0], fl[2]),
           raw(f"v_cmp_nge_f32 vcc, {hex(THR)}, {fl[0]}", rd=[fl[0]], kind="valu"),
           raw(f"s_cmp_eq_u32 s54, {77 if o.abl else 0}\ns_cselect_b64 vcc, vcc, 0\ns_cbranch_vccnz Lslow", cost=2, kind="br")]
    chk = [F(x, gB[0] + 7, gB[0] + 14, q="fl", after=[fr]) for x in chk]
    rcv = [V(168 + 4 * d, 4) for d in range(4)]
    mr = [F(dsr(B128, (rcv[d], "rcv"), vB8, 1024 * d), gB[2 + mg], gB[3] + (20 if mg else -6), q="lm", after=[chk[-1], BP[rp]]) for d in range(4)]
    for x in (salu("s_lshl_b32", sT0, sW, 11), valu("v_add_u32", vO9, sT0, vBr[1])): a9 = F(x, gB[2], gB[4] - 12, q="fl", after=mr)
    for k in range(2):
        ops = []
        for d in (2 * k, 2 * k + 1):
            for m in range(4):
                t = (vT1, lm[3])[m & 1]
                ops += [valu("v_accvgpr_read_b32", t, (O9(d)[m], "o7")), valu("v_mul_f32", (rcv[d][m], "rs"), (rcv[d][m], "rcv"), lm[1]),
                        valu("v_fma_f32", (rcv[d][m], "n"), t, lm[2], (rcv[d][m], "rs"))]
        for m in range(4):
            src = rcv[2 * k + (m >> 1)]
            ops.append(valu("v_cvt_pk_bf16_f32", (rcv[2 * k][m], "of"), (src[2 * (m & 1)], "n"), (src[2 * (m & 1) + 1], "n")))
        for x in ops: x = F(x, gB[2], gB[4] - 8 + 4 * k, q="ep", after=mr + [lsum[-1]])
        for y in w128(o, vO9, (rcv[2 * k], "of"), 3 * US + 1024 * k): pub[4].append(F(y, gB[2], gB[4] - 8 + 4 * k, q="ow", after=[x, a9]))
    def rdBo(qb, ks):
        if qb < 8: return dsr(B128, (Bo(qb, ks), f"of{qb}"), vBr[1], (qb & 1) * US + (qb >> 2) * 8192 + 1024 * ks)
        return dsr(B128, (Bo(qb, ks), f"of{qb}"), vBr[1], 3 * US + 1024 * ks)
    rdp = rdA0; prevb = BP[0]
    for k in range(5):
        if k: prevb = F(BP[k], gB[k], gB[k], after=pub[k] + [prevb] + rdp); rdp = []
        for n in (fu[k], fu[k] + 1)[:2 if k < 4 else 1]:
            qb = OU[n][1]
            for ks in range(8):
                late = qb >= 5 or (qb == 4 and ks >= 6)
                hi = max(gB[k] + ks // 2, ou0[n] - int(o.lead) + ks)
                if k < 4: hi = min(hi, gB[k + 1] - 3)
                rdp.append(F(rdBo(qb, ks), gB[k], hi, q="ldsB", after=[BP[k]] + ([chk[-1]] if late else [])))
    gd = {p: ou0[9 * p] + int(o.bdo) for p in range(4)}
    if str(o.ate) == "9":
        for x in (valu("v_lshl_add_u32", V(184), vL16, 4, sAt), valu("v_mov_b32", V(185), 1),
                  vstore(V(185), V(184), Sdbg, 0, 0, "", tag="at", op="buffer_atomic_add")): F(x, ou0[1] + 8, ou0[2], q="at", after=[chk[-1]])
    if wsp: spread(g_wo(2, 0), gB[0] + 1, float(o.ostep1), after=[BP[0]])
    w1b = spread(g_wo(2, 1), gn + 1, float(o.ostep2), after=[bn])
    spread(g_wo(3, 0), gB[1] + 1, float(o.ostep3), after=[BP[1]])
    spread(g_wo(3, 1), gB[4] + 1, float(o.ostep4), after=[BP[4]])
    for n, x in enumerate(rdAo(2)):
        r = next(iter(x.wr)); F(x, lastrd[(r, "wo0")], ou0[18] - 8 + n // 2, q="ldsK0", after=[BP[4]])
    bd = F(barrier(vm=["wo3a", "wo3b"], lgkm=False), gd[2], gd[2], after=[BP[4]])
    for n, x in enumerate(rdAo(3)): F(x, gd[2], ou0[27] - 8 + n // 2, q="ldsK0", after=[bd])
    ts = int(o.ts); assert ts >= 2
    for n in range(36):
        s_, p_ = SB(n & 1), PB(n & 1)
        for m in range(4):
            lo = min(ouh[(n, m >> 1)] + (8 if n > 8 + 6 * mg else 4), last)
            x = F(valu("v_cvt_pk_bf16_f32", (p_[m], f"rp{n}"), (s_[2 * m], f"r{n}"), (s_[2 * m + 1], f"r{n}")), lo, min(lo + (16 if n == 1 else 6), last), q="st")
        pp_, qb = OU[n]
        ops = ([salu("s_mul_i32", sT3, sP(pp_), 144)] if n == 0 or OU[n - 1][0] != pp_ else []) + [salu("s_add_u32", sSt, sT3, 4096 * qb),
               vstore((p_, f"rp{n}"), vSt3 if pp_ == ts else vSt, Sws, sSt, 0, o.stflag, tag=f"st{pp_}")]
        if n == 9 * ts:
            pre_ = [salu("s_xor_b32", sG, sJ, sW), raw(f"s_and_b32 {sG}, {sG}, 3\ns_cselect_b32 {sG}, 0, 0x10000000", wr=[sG], cost=2, kind="br"),
                    valu("v_add_u32", vSt3, sG, vSt), salu("s_lshr_b32", sG, sG, 12), salu("s_xor_b32", sG, sG, 0x10000), salu("s_add_u32", sG, sG, 8 * US),
                    valu("v_add_u32", vOwn, sG, vL16), valu("v_add_u32", vOwr, 8 * US, vSt)]
            for y in pre_: y = F(y, ou0[n - 2], ou0[n], q="own")
            own_rdy = y
        sw = int(str(o.swin).split(",")[n // 9 % len(str(o.swin).split(","))])
        if sw and n >= sw:
            ops.insert(len(ops) - 1, waitvm(f"su{n - sw}"))
        ops[-1].utag = f"su{n}"
        for x in ops: F(x, lo, min(lo + (20 if n < 2 else 8), last), q="st", after=[chk[-1]] + (w1b[-1:] if n == 0 and int(o.hold) else []) + ([own_rdy] if n == 9 * ts else []))
        if pp_ == ts: F(dsw("ds_write_b128", vOwn, (p_, f"rp{n}"), 1024 * qb), min(lo + 2, last), min(lo + 10, last), q="st", after=[BP[4]])
    t = V(168, 4)
    ops = [salu("s_lshl_b32", sT1, sB, 4), valu("v_mov_b32", vRdA, sT1),
           salu("s_lshl4_add_u32", sT0, sW, sJ), salu("s_lshl_b32", sT0, sT0, 7),
           valu("v_lshrrev_b32", vF, 9, vL16), valu("v_lshl_add_u32", vF, vF, 15, sT0), valu("v_lshrrev_b32", vOne, 2, vL16),
           valu("v_add_u32", vF, vF, vOne), valu("v_mov_b32", vOne, 1)]
    gf = {p: ou0[max(n for n in range(36) if OU[n][0] == p) + 1] + int(str(o.flo).split(',')[p % len(str(o.flo).split(','))]) for p in range(3)}
    for x in ops: rset = F(x, gB[4], gB[4] + 40, q="fl")
    g = max(gB[4] + 41, gf[0] - int(o.rdyo)); F(vload(vRdy, vRdA, Sdbg, 0, 0, "sc1", tag="rdy", op="buffer_load_dword"), g, g + 4, q="fl")
    ops = [raw(f"v_cmp_gt_u32 vcc, 16, {vRdy}", rd=[vRdy], kind="valu"), raw("s_cbranch_vccnz Lrdy_spin\nLrdy_back:", kind="br")]
    for p in range(3):
        ops = [waitvm(f"st{p}")] + ops + [salu("s_lshl_b32", sAt, sP(p), 5), vstore(vOne, vF, Smb, sAt, 0, "sc1", tag="fl", op="buffer_store_dword")]
        for x in ops: flag0 = F(x, gf[p], gf[p] + 2, q="fl")
        if p == 0: flagop0 = flag0
        ops = []
        if p == 0:
            su = [
               salu("s_lshr_b32", sCc, sP(int(o.ts)), 6), salu("s_and_b32", sT0, sJ, 3), salu("s_add_u32", sCc, sCc, sT0),
               valu("v_bfe_u32", vPo, vL16, 4, 2), valu("v_lshrrev_b32", t[0], 8, vL16),
               salu("s_lshl_b32", sT0, sCc, 11), valu("v_lshl_add_u32", vPo, vPo, 7, sT0),
               salu("s_add_u32", sGo, sJ, 4 * int(o.ts)), salu("s_and_b32", sGo, sGo, 12), salu("s_lshl_b32", sGo, sGo, 7),
               salu("s_lshr_b32", sT0, sCc, 2), salu("s_mul_i32", sT0, sT0, 9), salu("s_add_u32", sT0, sT0, sW),
               salu("s_and_b32", sT1, sJ, 3), salu("s_lshl2_add_u32", sT0, sT0, sT1), salu("s_lshl_b32", sT0, sT0, 10),
               valu("v_add_u32", vR[0], sT0, vL16), valu("v_add_u32", vR[1], 16384, vR[0]),
               salu("s_lshl_b32", sT1, sW, 28), salu("s_add_u32", sT0, sT1, 32768), valu("v_add_u32", vR[2], sT0, vR[0]),
               valu("v_bfe_u32", t[1], vL16, 4, 4), valu("v_lshlrev_b32", vO[0], 10, t[1]), valu("v_lshl_add_u32", vO[0], t[0], 4, vO[0]),
               salu("s_lshl_b32", sT0, sW, 14), salu("s_lshl_b32", sT2, sCc, 6), salu("s_add_u32", sT0, sT0, sT2),
               valu("v_add_u32", vO[0], sT0, vO[0]), valu("v_add_u32", vO[1], 65536, vO[0]),
               salu("s_add_u32", sT0, sT1, 131072), valu("v_add_u32", vO[2], sT0, vO[0]),
               valu("v_and_b32", t[2], 1, t[1]), valu("v_lshlrev_b32", t[2], 4, t[2]), valu("v_mov_b32", t[3], "0x3f80"),
               valu("v_lshlrev_b32", t[2], t[2], t[3]),
               valu("v_bfe_u32", t[3], t[1], 2, 1), valu("v_xor_b32", t[3], t[3], t[0]),
               valu("v_and_b32", t[0], 1, t[3]), valu("v_lshlrev_b32", t[0], 3, t[0]),
               valu("v_lshrrev_b32", t[3], 1, t[3]), valu("v_lshl_add_u32", t[0], t[3], 2, t[0]),
               valu("v_lshrrev_b32", t[3], 3, t[1]), valu("v_lshl_add_u32", t[0], t[3], 1, t[0]),
               valu("v_bfe_u32", t[3], t[1], 1, 1), valu("v_add_u32", t[0], t[0], t[3]),
               valu("v_lshlrev_b32_e64", t[0], t[0], 1)]
            for m in range(8): su += [valu("v_bfe_i32", SEL[m], t[0], m, 1), valu("v_and_b32", SEL[m], SEL[m], t[2])]
            for x in su: F(x, ou0[18], ou0[26], q="su", after=[rset])
    if int(o.r0in):
        g = ou0[27] + int(o.r0o) - int(o.r0p)
        p0 = F(vload(vRdy, vPo, Smb, sGo, 0, "sc1", tag="poll0", op="buffer_load_dword"), g, g + 2, q="r0", after=[su[-1], flagop0])
        g = ou0[27] + int(o.r0o)
        for x in (raw(f"v_cmp_eq_u32 vcc, 0, {vRdy}", rd=[vRdy], kind="valu"), raw("s_cbranch_vccnz Lp0_spin\nLp0_back:", kind="br")): F(x, g, g + 1, q="r0")
        ops = [salu("s_mul_i32", sOff, sGo, PART // 128), salu("s_sub_u32", sGo, sGo, 512), salu("s_and_b32", sGo, sGo, "0x600")]
        for i in range(4):
            if i: ops.append(salu("s_add_u32", sOff, sOff, PART))
            for f in range(3):
                n_ = 3 * i + f
                if n_ >= int(o.r0w): ops.append(waitvm(("ld", (0, (n_ - int(o.r0w)) // 3, (n_ - int(o.r0w)) % 3))))
                ops.append(vload(rbuf(0, i, f), vR[f], Sred, sOff, 0, o.rflag, tag="r0")); ops[-1].utag = ("ld", (0, i, f))
        nextvm[0] = 0
        r0 = spread(ops, g + 2, float(o.r0step), q="r0")
    g = last - int(o.pollo)
    F(vload(vRdy, vPo, Smb, sGo, 0, "sc1", tag="poll", op="buffer_load_dword"), g, g + 2, q="fl", after=[r0[2]] if int(o.r0in) else [su[-1]])
    if int(o.tt):
        for x in code_touch(V(254, 2), vTs, vL16, shift=int(o.tt), tid=True): F(x, g - 30, g - 4, q="su")
    if int(o.adw):
        for x in (salu("s_and_b32", sG, sJ, 12), salu("s_lshl_b32", sG, sG, 7), vload(vRdA, vPo, Smb, sG, 0, "sc1", tag="poll", op="buffer_load_dword")):
            F(x, g, g + 6, q="fl", after=[own_rdy])
    F(waitvm("poll"), last, last, q="st")
    seq = sc.run()
    if "a" in o.abl: seq = [x for x in seq if not (x.gap > 100 and x.kind in ("dma", "vml"))]
    if "s" in o.abl: seq = [x for x in seq if not (x.kind == "vms" and x.tag.startswith("st"))]
    if "w" in o.abl: seq = [x for x in seq if not (x.kind == "dma" and x.tag[:3] == "wo0")]
    if "d" in o.abl: seq = [x for x in seq if not (x.kind == "dsw" and x.gap > 1700)]
    if "o" in o.abl: seq = [x for x in seq if not (x.kind == "dma" and x.tag[:3] in ("wo1", "wo2", "wo3"))]
    notes = {0: "Q projection: Q^T = Wq^T x^T, 16 half-stages of 64 channels x 64 head dims", k0[16]: "row offsets from the first 16 keys, then attention step 0",
             p7: "last P.V products, normalisation and hand-over of O through LDS", ou0[0]: "O projection, passes 0 and 1 interleaved",
             ou0[18]: "O projection, pass 2", ou0[27]: "O projection, pass 3 (the chunk this workgroup reduces stays in LDS)"}
    notes.update({st0[e]: f"attention step {e} (64 keys)" for e in range(1, 8)})
    for n, txt in notes.items(): sc.bb[n].text = f"; ---- {txt}\n" + sc.bb[n].text
    seq = P + seq
    if not o.abl: check_tags(seq)
    seq, nops = pad_hazards(seq)
    sys.stderr.write(f"mfma {len(sc.bb)} instrs {len(seq)} over {sc.stats['over']} idle {sc.stats['idle']} waits {sc.stats['waits']} nop-states {nops}\n")
    reduce_tail.left = sc.vm_left
    return seq, nstamp[0]

def reduce_tail(o, a, nst):
    acc = lambda f, u: V(8 * f + 4 * u, 4)
    buf = rbuf
    poll = f"buffer_load_dword {vRdy}, {vPo}, {Smb}, {sGo} offen sc1"
    a(f"s_lshl_b32 s61, {sP(3)}, 5"); a("s_mov_b32 s63, 0")
    if int(o.stamps): a(f"s_memrealtime s[{64+2*nst}:{65+2*nst}]")
    ts = int(o.ts); rws = [int(z) for z in str(o.rwin).split(',')]; pa = int(o.polli); started = set()
    nl = lambda t: 9 if t == ts else 12
    t0 = int(o.r0in); left = reduce_tail.left
    lst = max(k for k, x in enumerate(left) if x.tag == "st3")
    q = [x.utag if x.tag == "r0" else ("st",) if k == lst else ("x",) for k, x in enumerate(left)]
    def add(fr):
        for u in range(2):
            a(f"v_mfma_f32_16x16x32_bf16 {acc(fr[2],u)}, {SEL.sub(4*u,4)}, {buf(*fr)}, {acc(fr[2],u) if fr[2] in started else 0}")
        started.add(fr[2])
    def wait(n):
        if len(q) <= n: return []
        a(f"s_waitcnt vmcnt({n})"); done = q[:len(q) - n]; del q[:len(q) - n]
        return done
    def retire(done):
        for x in done:
            if x[0] == "st":
                a(f"buffer_store_dword {vOne}, {vF}, {Smb}, s61 offen sc1"); q.append(("fl",))
        for x in done:
            if x[0] == "ld": add(x[1])
    first = [("ld", (0, i, f)) for i in range(4) for f in range(3) if t0 and ("ld", (0, i, f)) not in q]
    for t in range(t0, 4):
        a(f"s_mul_i32 s45, {sGo}, {PART // 128}")
        if t == ts: a("s_mov_b32 s62, s45")
        late = []
        if ("po",) in q: late = wait(len(q) - 1 - q.index(("po",)))
        a(f"Lpoll{t}:"); a(f"v_cmp_eq_u32 vcc, 0, {vRdy}"); a(f"s_cbranch_vccz Lgo{t}")
        a(poll); a("s_add_u32 s63, s63, 1"); a("s_waitcnt vmcnt(0)"); a("s_cmp_lt_u32 s63, 0x40000"); a(f"s_cbranch_scc1 Lpoll{t}")
        a(f"Lgo{t}:")
        if int(o.rst): a(f"s_memrealtime s[{66+2*nst+2*t}:{67+2*nst+2*t}]")
        a(f"s_sub_u32 {sGo}, {sGo}, 512"); a(f"s_and_b32 {sGo}, {sGo}, 0x600")
        for i in range(nl(t) // 3):
            if t == ts: a(f"s_add_u32 s52, s51, {i+1}"); a("s_and_b32 s52, s52, 3"); a(f"s_mul_i32 s52, s52, {PART}"); a("s_add_u32 s45, s62, s52")
            if i == pa and t < 3: a(poll); q.append(("po",))
            for f in range(3):
                done = late + wait(rws[t % len(rws)] - 1); late = []
                a(f"buffer_load_dwordx4 {buf(t,i,f)}, {vR[f]}, {Sred}, s45 offen {o.rflag}"); q.append(("ld", (t, i, f)))
                retire(done + first[:3]); del first[:3]
            if i < 3 and t != ts: a(f"s_add_u32 s45, s45, {PART}")
            if (t, i) == (1 + t0, 1):
                a("s_waitcnt lgkmcnt(0)"); a("s_barrier")
                for f in range(3): a(f"ds_read_b128 {buf(ts,3,f)}, {vOwr} offset:{4096*f}")
            if (t, i) == (1 + t0, 3):
                a("s_waitcnt lgkmcnt(0)")
                for f in range(3): add((ts, 3, f))
        assert t > t0 or ("st",) not in q
    while q: retire(wait(len(q) - 1))
    a("s_nop 3")
    for f in range(3):
        if f: a("s_nop 1")
        for m in range(4): a(f"v_cvt_pk_bf16_f32 v{32+4*f+m}, v{8*f+2*m}, v{8*f+2*m+1}")
        a(f"buffer_store_dwordx4 v[{32+4*f}:{35+4*f}], {vO[f]}, {Sout}, 0 offen {o.outflag}".rstrip())

def tail_and_slow(o, nst):
    T = []; a = T.append
    a("; ---- reduce this workgroup's output chunk over the 16 head pairs of its batch")
    reduce_tail(o, a, nst); nst += 1 + 4 * int(o.rst)
    if int(o.stamps):
        a(f"s_memrealtime s[{64+2*nst}:{65+2*nst}]"); a("s_waitcnt vmcnt(0)")
        a(f"s_memrealtime s[{66+2*nst}:{67+2*nst}]"); a("s_waitcnt lgkmcnt(0)")
        a("s_cmp_lg_u32 s3, 0"); a("s_cbranch_scc1 Lend")
        if o.enc:
            ea, eb = [int(z) for z in o.enc.split(",")]
            a("s_cmp_lg_u32 s2, 100"); a("s_cbranch_scc1 Lnoenc")
            a(f"s_sub_u32 s52, s{64+2*eb}, s{64+2*ea}"); a("s_mul_i32 s52, s52, 10"); a("s_min_u32 s52, s52, 200000"); a("s_add_u32 s52, s52, 500")
            a("Lspin:"); a("s_memrealtime s[46:47]"); a("s_waitcnt lgkmcnt(0)"); a(f"s_sub_u32 s46, s46, s{66+2*nst}")
            a("s_cmp_lt_u32 s46, s52"); a("s_cbranch_scc1 Lspin"); a("Lnoenc:")
        a("s_load_dwordx2 s[40:41], s[0:1], 56"); a("s_mov_b32 s42, 0x10000000"); a("s_mov_b32 s43, 0x20000"); a("s_waitcnt lgkmcnt(0)")
        a(f"s_lshl_b32 s52, s2, 6"); a(f"s_add_u32 s52, s52, {STAMP_OFF}"); a("v_mov_b32 v1, s52")
        a("s_mov_b64 exec, 1")
        if int(o.rst): a("s_mul_i32 s63, s63, 100"); a("s_add_u32 s66, s64, s63")
        assert nst + 2 <= 16
        for n in range(nst + 2):
            a(f"v_mov_b32 v2, s{64+2*n}"); a(f"buffer_store_dword v2, v1, s[40:43], 0 offen offset:{4*n} sc1")
        if o.encx:
            col, fn = o.encx.split(",")
            a("s_cmp_lg_u32 s2, 100"); a("s_cbranch_scc1 Lend"); a("s_mov_b64 exec, -1"); a("s_waitcnt vmcnt(0)")
            a("Lsp1:"); a("s_memrealtime s[46:47]"); a("s_waitcnt lgkmcnt(0)"); a(f"s_sub_u32 s46, s46, s{66+2*nst}"); a("s_cmp_lt_u32 s46, 500"); a("s_cbranch_scc1 Lsp1")
            a(f"v_lshlrev_b32 v1, 4, {vL16}"); a(f"s_mov_b32 s52, {STAMP_OFF}")
            for z in range(4):
                a(f"buffer_load_dword v{4+z}, v1, s[40:43], s52 offen offset:{64*z} sc1"); a(f"buffer_load_dword v{8+z}, v1, s[40:43], s52 offen offset:{64*z+4*int(col)} sc1")
            a("s_waitcnt vmcnt(0)")
            for z in range(8): a(f"v_subrev_u32 v{4+z}, s64, v{4+z}")
            a("v_min_i32 v4, v4, v5"); a("v_min3_i32 v4, v4, v6, v7"); a(f"v_{fn}_i32 v8, v8, v9"); a(f"v_{fn}3_i32 v8, v8, v10, v11"); a("s_nop 1")
            a("v_readlane_b32 s52, v4, 0"); a("v_readlane_b32 s53, v8, 0")
            for z in range(1, 64):
                a(f"v_readlane_b32 s46, v4, {z}"); a(f"v_readlane_b32 s47, v8, {z}"); a("s_min_i32 s52, s52, s46"); a(f"s_{fn}_i32 s53, s53, s47")
            a("s_sub_u32 s52, s53, s52"); a("s_mul_i32 s52, s52, 10"); a("s_min_u32 s52, s52, 200000"); a("s_add_u32 s52, s52, 5000")
            a("Lsp2:"); a("s_memrealtime s[46:47]"); a("s_waitcnt lgkmcnt(0)"); a("s_sub_u32 s46, s46, s64"); a("s_cmp_lt_u32 s46, s52"); a("s_cbranch_scc1 Lsp2")
    a("Lend:"); a("s_endpgm")
    if int(o.r0in):
        a("Lp0_spin:"); a("s_mov_b32 s62, 0"); a("Lp0_loop:")
        a(f"buffer_load_dword {vRdy}, {vPo}, {Smb}, {sGo} offen sc1"); a("s_add_u32 s62, s62, 1"); a("s_waitcnt vmcnt(0)")
        a(f"v_cmp_eq_u32 vcc, 0, {vRdy}"); a("s_cmp_lt_u32 s62, 0x40000"); a("s_cselect_b64 vcc, vcc, 0")
        a("s_cbranch_vccnz Lp0_loop"); a("s_branch Lp0_back")
    a("; ---- wait until all 16 workgroups of the batch have cleared their mailboxes"); a("Lrdy_spin:"); a("s_mov_b32 s63, 0"); a("Lrdy_loop:")
    a(f"buffer_load_dword {vRdy}, {vRdA}, {Sdbg}, 0 offen sc1"); a("s_add_u32 s63, s63, 1"); a("s_waitcnt vmcnt(0)")
    a(f"v_cmp_gt_u32 vcc, 16, {vRdy}"); a("s_cmp_lt_u32 s63, 0x40000"); a("s_cselect_b64 vcc, vcc, 0")
    a("s_cbranch_vccnz Lrdy_loop"); a("s_branch Lrdy_back")
    a("; ---- fallback: a row sum left the safe range, so take the exact row maxima over all keys and redo the workgroup with them"); a("Lslow:"); a("s_waitcnt vmcnt(0) lgkmcnt(0)"); a("s_nop 7"); a("s_barrier")
    a("v_mbcnt_lo_u32_b32 v0, -1, 0"); a("v_mbcnt_hi_u32_b32 v0, -1, v0")
    a("v_and_b32 v1, 15, v0"); a("v_lshlrev_b32 v1, 8, v1"); a("v_lshrrev_b32 v2, 4, v0"); a("v_lshl_add_u32 v1, v2, 4, v1")
    a("s_lshl_b32 s52, s48, 17"); a(f"s_add_u32 s52, s52, {KSH(o)}"); a("s_lshl_b32 s53, s49, 6"); a("s_add_u32 s62, s52, s53")
    a("v_add_u32 v2, s62, v1"); a("s_xor_b32 s53, s53, 64"); a("s_add_u32 s62, s52, s53"); a("v_add_u32 v3, s62, v1")
    for b in range(5): a(f"v_mov_b32 v{8+b}, 0xff800000")
    a("s_mov_b32 s45, 0"); a("Lslow_loop:")
    for t in range(4): a(f"buffer_load_dwordx4 v[{16+4*t}:{19+4*t}], v{2+(t&1)}, {Sk}, s45 offen offset:{128*(t>>1)}")
    a("s_waitcnt vmcnt(0)")
    for b in range(5):
        for t in range(4):
            a(f"v_mfma_f32_16x16x32_bf16 {NM(b)}, v[{16+4*t}:{19+4*t}], {QF(b,t)}, {0 if t == 0 else NM(b)}")
    a("s_nop 7"); a("s_nop 1")
    for b in range(5):
        n = NM(b); a(f"v_max3_f32 v{8+b}, v{8+b}, {n[0]}, {n[1]}"); a(f"v_max3_f32 v{8+b}, v{8+b}, {n[2]}, {n[3]}")
    a("s_add_u32 s45, s45, 4096"); a("s_cmp_lt_u32 s45, 131072"); a("s_cbranch_scc1 Lslow_loop")
    for b in range(5): a(f"v_accvgpr_write_b32 {SAV(b)}, v{8+b}")
    a("s_load_dwordx16 s[4:19], s[0:1], 0"); a("s_mov_b32 s54, 1"); a("s_branch Lrestart"); a("Lcode_end:")
    return T

KD = """.amdhsa_kernel {name}
  .amdhsa_next_free_vgpr {vg}
  .amdhsa_next_free_sgpr {sg}
  .amdhsa_accum_offset {acc}
  .amdhsa_group_segment_fixed_size 0
  .amdhsa_kernarg_size 64
  .amdhsa_user_sgpr_count 2
  .amdhsa_user_sgpr_kernarg_segment_ptr 1
  .amdhsa_system_sgpr_workgroup_id_x 1
  .amdhsa_float_denorm_mode_32 3
.end_amdhsa_kernel"""

DESC = """
;
; One workgroup per CU, 4 waves, workgroup = (batch b, head pair j).  wave = (head, query half): 4 own blocks of 16
; queries plus the ninth block on every second key tile.  All products are 16x16x32 bf16 MFMAs in transposed form, so
; Q^T, P^T and O^T go from accumulator to operand without leaving registers; x, Wq, K, V and Wo stream through LDS by DMA.
; Softmax: log2(e)/sqrt(128) is folded into Q; each row is shifted by the maximum of its first 16 scores (accumulator
; initial value).  The row sums are checked before anything is stored: if one is above 2^40 (or NaN) the workgroup
; computes the exact maxima over all keys and runs again with them (Lslow).
; Head reduction: bf16 partial outputs go to d_ws with write-through stores; a wave flags a chunk in the consumer's
; mailbox once its stores have completed, and every workgroup sums one 144x32 chunk of its batch in fp32.  Mailboxes are
; cleared by their owner at the start of the launch; d_debug counts the cleared mailboxes of each batch.
; The counted waits in front of the stream loads cap the loads in flight, which keeps the CUs level with each other.
;
"""

def generate(o):
    hdr = [l.rstrip("\n") for l in open(f"cdna_kernels/{NAME}.s.ref") if l.startswith(";") and "@launch" not in l and "grid=" not in l and "Override" not in l]
    seq, nst = build_main(o)
    hdr += DESC.strip("\n").split("\n")
    L = hdr + [f"; @launch grid=(256,1,1) block=(256,1,1) lds={LDSB}", '.amdgcn_target "amdgcn-amd-amdhsa--gfx950"', ".text",
               f".globl {NAME}_kernel", ".p2align 8", f".type {NAME}_kernel,@function", f"{NAME}_kernel:"]
    L += [i.text for i in seq] + tail_and_slow(o, nst)
    L += ['.section .rodata,"a"', ".p2align 6", KD.format(name=f"{NAME}_kernel", vg=512, sg=102, acc=256)]
    txt = "\n".join(L) + "\n"
    if int(o.clk): txt = txt.replace("s_memrealtime", "s_memtime")
    return txt

if __name__ == "__main__":
    o = Opt()
    for kv in sys.argv[2:]:
        k, v_ = kv.split("=", 1)
        assert hasattr(Opt, k), k
        setattr(o, k, v_)
    open(sys.argv[1], "w").write(generate(o))
```

```python
import sys, math, struct
from dsl import *

NAME = "standalone__mha_block_cached__near_ridge"
US, GRP, PS = 17024, 4224, 1056
X9 = 9 * US
FLAG = X9 + 8448
LDSB = 163840
PART = 147456
STAMP_OFF = 0x4000000
MBOFF = 256 * PART
def fbits(x): return struct.unpack("<I", struct.pack("<f", x))[0]
CSC = fbits(math.log2(math.e) / math.sqrt(128.0))
THR = fbits(2.0 ** 40)

Smb, Sred, Sout, Sdbg = S(4, 4), S(8, 4), S(12, 4), S(16, 4)
Sx, Swq, Sk, Sv, Swo, Sws = S(20, 4), S(24, 4), S(28, 4), S(32, 4), S(36, 4), S(40, 4)
sW, sGrp, sOff, sC, sGrP, sHH, sQH, sB, sJ = S(3), S(44), S(45), S(46), S(47), S(48), S(49), S(50), S(51)
sT0, sT1, sMode, sX9, sT3, sOw0, sOw1, sA8, sB8, sSt, sT2, sAt = [S(n) for n in range(52, 64)]
sRx, sRw = S(96), S(97)
sCc = S(55)
sRk = S(47)
sP = lambda p: S(98 + p)
ACC = lambda b, f: V(32 * b + 4 * f, 4)
QF = lambda b, t: (V(128 + 16 * b + 4 * t, 4) if b < 4 else A(180 + 4 * t, 4))
SB = lambda k: V(192 + 8 * k, 8)
PB = lambda k: V((208, 212, 248)[k], 4)
NM = lambda b: V(216 + 4 * b, 4)
Kr = lambda y, p: V(236 + 2 * y + p)
Vr = lambda y, hf: V(240 + 2 * y + hf)
vKV = lambda pp: V(244 + pp)
vL16, vTs, vT0, vT1 = V(252), V(253), V(254), V(255)
qWr = lambda win, p: V(216 + 2 * win + p)
qXr = lambda win: V(220 + win)
qX9r = V(222)
qWd = lambda pp: V(225 + pp)
qXd = lambda pp: V(229 + pp)
qX9d, qA8, qB8 = V(233), V(234), V(235)
KF = lambda y, h, t: A(32 * y + 16 * h + 4 * t, 4)
VF = lambda e, y, d: A((96 if y else (64, 200)[e & 1]) + 4 * d, 4)
O9 = lambda d: A(128 + 4 * d, 4)
LS = lambda b: A(160 + 4 * b, 4)
ONES = A(196, 4)
SAV = lambda b: A(248 + b)
aWpat, aWo0, aKv0 = A(253), A(254), A(255)
Aq = lambda fp, kk: A(96 + 8 * fp + 4 * kk, 4)
Bq = lambda I_, kk, b: A((128, 200)[I_ & 1] + 16 * kk + 4 * b, 4)
B9 = lambda I_, kk: A(232 + 8 * (I_ & 1) + 4 * kk, 4)
SEQ = [(I_, h) for I_ in range(6) for h in range(2)] + [(6, 0), (7, 0), (6, 1), (7, 1)]
WQU = {4: 1, 5: 4, 0: 5, 1: 3, 2: 6, 3: 8}
XU = {2: 0, 0: 2, 1: 7}
KVU = lambda slot: (2 * slot, 2 * slot + 1, 4 + 2 * slot, 5 + 2 * slot)
WOU = {0: (0, 1, 4, 5), 1: (2, 3, 0, 1), 2: (4, 5, 2, 3), 3: (0, 1, 6, 7)}
Ao = lambda p, ks, u: A(((64, 0), (32, 96))[p & 1][ks >> 2] + 16 * u + 4 * (ks & 3), 4)
QB = [0, 4, 1, 5, 2, 6, 3, 7, 8]
def Bo(qb, ks):
    if qb < 4: return V(32 * qb + 4 * ks, 4)
    if qb == 4: return A(232 + 4 * ks if ks < 6 else 192 + 4 * (ks - 6), 4)
    if qb == 6: return V(128 + 4 * ks, 4)
    return A({5: 200, 7: 160, 8: 128}[qb] + 4 * ks, 4)
TR, B128 = "ds_read_b64_tr_b16", "ds_read_b128"
sG, sGo = S(96), S(97)
def rbuf(t, i, f):
    n = 12 * t + 3 * i + f
    return A((0, 64, 32)[n >> 3] + 4 * (n & 7) if n < 24 else 4 * n, 4)
vSt3, vOwn, vOwr = V(232), V(233), V(234)
vF, vOne, vRdy, vPo, vR, vRdA, vO, SEL = V(220), V(221), V(222), V(223), V(224, 3), V(227), V(228, 3), V(160, 8)

class Opt:
    stamps = 0; clk = 0; enc = None; encx = None; encc = None; xst = ""; qst = ""; abl = ""
    kvflag = "nt"; stflag = "sc1"; outflag = "sc1"
    qseq = ("x0,n0,w0,w1|p1,x1,w2,p2,w3,p5.3,x2,n1,w4,w5,x3,t2,w6,w7,x4,n2,w8,p4.2,w9,x5,w10,w11,x6,n3,w12,x7,w13,w14,w15,"
            "p2,s0,s1,s2,p3,s3,k0,p5,k1,p9,k2,k3")
    bal = '(12,17)'; winlo = 5; winhi = 7; hx = 'h'; asym = 0; lpf = 0; tflag = ''; rot = 2; rsh = 1; cpf = 2
    ashift = 0; win = 6; winfrom = 2; astep0 = 11.3; astep = 10.65; astep4 = 10.65; astep5 = 10.65; estep = 8.4; wow = 0.6; bxo = 10; w1bo = 4
    ouseq = '00,04,10,14,01,05,11,02,06,15,12,03,07,16,08,13,17,18'
    vmgap = 2; dswgap = 4; maxmem = 1; wiso = 1; hor = 40; lead = 8; w64 = 0
    sepv = 3; bvo = 14; bv7 = 0; bk0 = 20; ba0 = -22; bb0 = 30; bao = 0; bbo = 20; bb7 = 32; ate = 9; merge = 1; ts = 3; ppw = 0; stag = 0; rdyo = 90; rank = '[]'; rkth = 32; dmin = 1; prev = 1; map4 = 0; wmix = 0; wsp = 0; bno = 14; bbo1 = 8; rst = 0; wpace = 0.5; thin = 1; call = 1; cte = '0,3'; tt = 0; win0 = '11,11,11,11,11,10,9,9'; rox = ''; kvm = 1; all0 = 0; cpl = 0; rawp = 1; winp = ''; adw = 0; fb = 0; bko1 = 11; byo = 12; hold = 0; lflag = 'sc1'; l3flag = 'sc1'; rflag = 'sc1'; r0in = 0; r0o = 12; r0step = 10; r0w = 5; r0p = 44; swin = 0; rwin = 6; polli = 2; b1o = 18; bko = 11; bdo = 100; flo = '190,160,104'; pollo = 36; ostep0 = 4; ostep1 = 4; ostep2 = 4; ostep3 = 16; ostep4 = 12
    def __getattr__(s, k): raise AttributeError(k)

def setoff(soff):
    if isinstance(soff, tuple):
        r, add, mask = soff
        if mask == "x": return [salu("s_xor_b32", sOff, r, add)]
        return [salu("s_add_u32", sOff, r, add)] + ([salu("s_and_b32", sOff, sOff, mask)] if mask else [])
    return [salu("s_mov_b32", sOff, soff)]
def group(unit_off, base, voff, srd, soff, flags, tag):
    return [salu("s_add_u32", "m0", base, unit_off)] + setoff(soff) + [dma(voff(pp), srd, sOff, PS * pp, flags, tag) for pp in range(4)]
def g_wq(j): return group(WQU[j % 6] * US, sGrp, qWd, Swq, (sRw, SEQ[j][0] * 524288 + SEQ[j][1] * 128, 0x3fffff), "", f"wq{j}")
def g_x(I_): return group(XU[I_ % 3] * US, sGrp, qXd, Sx, (sRx, I_ * 128, 1023), "", f"x{I_}")
def g_x9(n): return [salu("s_add_u32", "m0", sX9, X9 + (n & 1) * GRP)] + setoff((sRx, n * 256, 1023)) + [dma(qX9d, Sx, sOff, 0, "", f"xn{n}")]
def g_kv(e, part, o, cap=True):
    kv, half = part >> 1, part & 1
    ops = group(KVU(e & 1)[part] * US, sGrp, vKV, (Sk, Sv)[kv], (sRk, e * 16384 + half * (4096 << int(o.kvm)), "x"), o.kvflag, f"{'kv'[kv]}{e}")
    if e < int(o.winfrom) and o.win0:
        for x in ops:
            if x.kind == "dma": x.text = f"s_waitcnt vmcnt({int(o.win0.split(',')[4 * e + part])-1})\n" + x.text
    if cap and int(o.win) and e >= int(o.winfrom):
        for x in ops:
            if x.kind != "dma": continue
            if any(4 * e + part in range(*z) for z in (eval(o.bal) if o.bal[0] == "[" else [eval(o.bal)])):
                g_kv.n = getattr(g_kv, "n", 0) + 1
                x.text = f"s_cbranch_vccz Lw{g_kv.n}\ns_waitcnt vmcnt({int(o.winlo)-1})\nLw{g_kv.n}:\ns_waitcnt vmcnt({int(o.winhi)-1})\n" + x.text
            else:
                g_kv.m = getattr(g_kv, "m", 0) + 1
                x.text = f"s_waitcnt vmcnt({int(o.winp[g_kv.m % len(o.winp)] if o.winp else o.win)-1})\n" + x.text
    return ops
def g_wo(p, hf): return sum((group(WOU[p][part] * US, sGrp, vKV, Swo, (sP(p), part * 65536, 0), "", f"wo{p}{'ab'[hf]}") for part in (2 * hf, 2 * hf + 1)), [])
def w128(o, addr, data, off):
    if not int(o.w64): return [dsw("ds_write_b128", addr, data, off)]
    return [dsw("ds_write_b64", addr, (data[0].sub(2 * z, 2), data[1]), off + 8 * z) for z in range(2)]

def qtok(tok, o):
    c, n = tok[0], int(tok[1:])
    if c == "w": return g_wq(n), n - 6
    if c == "x": return g_x(n), 2 * (n - 3)
    if c == "n": return g_x9(n), (4 * (n - 2) + 2 if n >= 2 else -1)
    if c == "c": return code_touch(V(254, 2), vTs, vL16, shift=3), -1
    if c == "t":
        ops = [salu("s_bfe_u32", sT0, sB, (1 << 16) | 1), salu("s_lshl_b32", sT0, sT0, 24)] + (
               [salu("s_lshl_b32", sT1, sQH, 12), salu("s_add_u32", sT0, sT0, sT1)] if int(o.kvm) else []) + [
               valu("v_mul_u32_u24", vT0, 7, vL16), valu("v_accvgpr_read_b32", vT1, aKv0), valu("v_add3_u32", vT0, vT0, vT1, sT0)] + (setoff(16384) if 2 < n < 10 else [])
        return ops + [I(f"buffer_load_dword {vTs}, {vT0}, {(Sk, Sv)[z & 1]}, {sOff if z >> 1 else 0} offen", "vml", rd=[vT0, sOff], tag="ct") for z in (range(n) if n < 10 else [n - 10])], -1
    if c == "u":
        ops = [salu("s_bfe_u32", sT0, sB, (1 << 16) | 1), salu("s_xor_b32", sT0, sT0, 1), salu("s_lshl_b32", sT0, sT0, 24),
               salu("s_bfe_u32", sT1, sB, (1 << 16) | 2), salu("s_lshl_b32", sT1, sT1, 17), salu("s_add_u32", sT0, sT0, sT1),
               salu("s_and_b32", sT1, sB, 1), salu("s_lshl2_add_u32", sT1, sT1, sW), salu("s_lshl_b32", sT1, sT1, 14), salu("s_add_u32", sT0, sT0, sT1),
               valu("v_lshl_add_u32", vT0, vL16, 3, sT0)] + setoff(8192)
        return ops + [I(f"buffer_load_dword {vTs}, {vT0}, {Swo}, {sOff if z else 0} offen offset:128", "vml", rd=[vT0, sOff], tag="ct") for z in range(2)], -1
    if c == "s": return g_kv(0, n, o), (10, 10, 11, 12)[n]
    if c == "k": return g_kv(1, n, o), (12, 13, 14, 14)[n]
    raise ValueError(tok)

def code_touch(va, vd, lane, shift, tid=False):
    n = code_touch.n = getattr(code_touch, "n", 0) + 1
    return [valu("v_lshlrev_b32", va[0], shift, lane)] + ([] if tid else
            [salu("s_and_b32", sT0, sB, 7), salu("s_lshl_b32", sT1, sW, 6), salu("s_add_u32", sT0, sT0, sT1), salu("s_lshl_b32", sT0, sT0, 7),
             valu("v_and_b32", va[0], "0x1c00", va[0]), valu("v_add_u32", va[0], sT0, va[0])] if code_touch.thin else
            [salu("s_lshl_b32", sT0, sW, 13), valu("v_add_u32", va[0], sT0, va[0])]) + [
            raw(f"s_getpc_b64 s[52:53]\nLpc{n}:", wr=[sT0, sT1], kind="salu"),
            raw(f"v_min_u32 {va[0]}, Lcode_end-Lpc{n}-4, {va[0]}", rd=[va[0]], wr=[va[0]], kind="valu"),
            valu("v_mov_b32", va[1], 0),
            raw(f"v_lshl_add_u64 {va}, {va}, 0, s[52:53]", rd=[va, sT0, sT1], wr=[va], kind="valu"),
            I(f"global_load_dword {vd}, {va}, off", "vml", rd=[va], wr=[], tag="ct")]

def KSH(o): return 4096 if int(o.ppw) else 128
def kvset(o):
    if not int(o.ppw): return [valu("v_subrev_u32", vKV(pp), 32 * pp, vKV(0)) for pp in (1, 2, 3)]
    ops = []
    for pp in (3, 2, 1, 0):
        ops += [salu("s_xor_b32", sT2, sW, pp), salu("s_lshl_b32", sT2, sT2, 10), salu("s_sub_u32", sT2, sT2, PS * pp), valu("v_add_u32", vKV(pp), sT2, vKV(0))]
    return ops

def prologue(o):
    P = []; a = P.append
    v = lambda n: V(n)
    a(raw("s_cmp_ge_u32 s2, 256")); a(raw("s_cbranch_scc1 Lend"))
    a(raw("s_load_dwordx16 s[4:19], s[0:1], 0"))
    if int(o.stamps): a(raw("s_memrealtime s[64:65]"))
    if int(o.stag):
        assert int(o.stamps)
        a(raw("s_bfe_u32 s52, s2, 0x20001\nLstag:\ns_cmp_eq_u32 s52, 0\ns_cbranch_scc1 Lstag_done\ns_sleep %d\ns_sub_u32 s52, s52, 1\ns_branch Lstag\nLstag_done:" % int(o.stag)))
    a(valu("v_lshrrev_b32", v(1), 6, v(0)))
    if int(o.call):
        a(salu("s_bfe_u32", sT2, S(2), (3 << 16) | 3)); a(valu("v_lshrrev_b32", v(3), 2, v(0))); a(valu("v_lshl_add_u32", v(3), v(3), 3, sT2))
        P += code_touch(V(8, 2), vTs, v(3), shift=7, tid=True)
    elif int(o.cpf) and not int(o.cpl): P += code_touch(V(8, 2), vTs, v(0), shift=int(o.cpf) + 3, tid=True)
    a(valu("v_readfirstlane_b32", sW, v(1)))
    a(valu("v_mov_b32", v(2), "0xff800000")); a(salu("s_mov_b32", sMode, 0))
    for b in range(5): a(valu("v_accvgpr_write_b32", SAV(b), v(2)))
    a(raw("Lrestart:", kind="label"))
    L, t1, t2, t3, t4, t5, t6 = v(0), v(1), v(2), v(3), v(4), v(5), v(6)
    a(valu("v_mbcnt_lo_u32_b32", L, -1, 0)); a(valu("v_mbcnt_hi_u32_b32", L, -1, L))
    if int(o.map4):
        a(salu("s_bfe_u32", sB, S(2), (4 << 16) | 3))
        a(salu("s_and_b32", sT0, S(2), 7)); a(salu("s_lshr_b32", sT1, S(2), 7)); a(salu("s_lshl1_add_u32", sJ, sT0, sT1))
    else:
        a(salu("s_and_b32", sT0, S(2), 1)); a(salu("s_bfe_u32", sT1, S(2), (3 << 16) | 3)); a(salu("s_lshl3_add_u32", sB, sT0, sT1))
        a(salu("s_bfe_u32", sT0, S(2), (2 << 16) | 1)); a(salu("s_lshr_b32", sT1, S(2), 6)); a(salu("s_lshl2_add_u32", sJ, sT0, sT1))
    a(salu("s_lshr_b32", sHH, sW, 1)); a(salu("s_and_b32", sQH, sW, 1))
    a(salu("s_mul_i32", sGrp, sW, GRP)); a(salu("s_mul_i32", sX9, sW, PS))
    a(salu("s_add_u32", sT3, sB, sJ)); a(salu("s_lshl_b32", sT0, sT3, 0 if int(o.asym) else int(o.rsh))); a(salu("s_and_b32", sT0, sT0, int(o.rot)))
    if o.rox:
        a(salu("s_lshr_b32", sT1, S(2), 1))
        a({"b": salu("s_and_b32", sT1, S(2), 1), "h": salu("s_and_b32", sT1, sT1, 1), "x": salu("s_xor_b32", sT1, sT1, S(2))}[o.rox])
        a(salu("s_and_b32", sT1, sT1, 1)); a(salu("s_add_u32", sT0, sT0, sT1))
    a(salu("s_lshl_b32", sRx, sT0, 8)); a(salu("s_lshl_b32", sRw, sT0, 20))
    a(valu("v_and_b32", t1, 7, L)); a(valu("v_lshlrev_b32", t1, 4, t1))
    a(valu("v_lshrrev_b32", t2, 3, L)); a(valu("v_lshl_add_u32", t3, t2, 12, t1))
    a(salu("s_lshl_b32", sT0, sW, 15)); a(salu("s_add_u32", sT0, sT0, 128))
    a(valu("v_add_u32", qXd(0), sT0, t3))
    for pp in range(1, 4): a(valu("v_subrev_u32", qXd(pp), 32 * pp, qXd(0)))
    a(valu("v_and_b32", t4, 3, t2)); a(valu("v_lshl_add_u32", t3, t4, 12, t1))
    a(valu("v_lshrrev_b32", t2, 5, L)); a(valu("v_lshl_add_u32", t3, t2, 7, t3))
    a(salu("s_lshl_b32", sT0, sW, 10)); a(salu("s_add_u32", sT0, sT0, 128 * 1024 + 128))
    a(valu("v_add_u32", qX9d, sT0, t3))
    a(valu("v_lshl_add_u32", t3, t4, 16, t1)); a(valu("v_lshl_add_u32", t3, t2, 15, t3))
    a(salu("s_lshl_b32", sT0, sQH, 18)); a(salu("s_lshl_b32", sT1, sHH, 8)); a(salu("s_add_u32", sT0, sT0, sT1))
    a(valu("v_add_u32", qWd(0), sT0, t3))
    for pp in range(1, 4): a(valu("v_add_u32", qWd(pp), (8192 - PS) * pp, qWd(0)))
    a(salu("s_mov_b32", Sx[2], PART + 128)); a(salu("s_mov_b32", Sx[3], "0x20000")); a(salu("s_mov_b32", Swq[3], "0x20000"))
    a(salu("s_mul_i32", sT2, sB, PART)); a(salu("s_lshl_b32", sT1, sJ, 9)); a(salu("s_sub_u32", Swq[2], 4194304, sT1))
    a(raw("s_waitcnt lgkmcnt(0)"))
    def base(srd, ptr, off, shift=0, size=None):
        a(salu("s_add_u32", srd[0], S(ptr), off)); a(salu("s_addc_u32", srd[1], S(ptr + 1), 0))
        if shift:
            a(salu("s_sub_u32", srd[0], srd[0], shift)); a(salu("s_subb_u32", srd[1], srd[1], 0))
        if size: a(salu("s_mov_b32", srd[2], size + shift)); a(salu("s_mov_b32", srd[3], "0x20000"))
    base(Sx, 4, sT2, 128); base(Swq, 10, sT1)
    if int(o.asym):
        a(raw("s_bitcmp1_b32 s56, 0")); a(raw("s_cbranch_scc0 Lnotouch"))
        a(salu("s_and_b32", sT0, sB, 14)); a(salu("s_lshl4_add_u32", sT0, sT0, sJ)); a(salu("s_lshl_b32", sT0, sT0, 18))
        base(Sk, 6, sT0, 0, 4194304 + 262144)
        if int(o.asym) > 2: base(Sv, 8, sT0, 0, 4194304 + 262144)
        a(salu("s_lshl4_add_u32", sT0, sHH, sQH)); a(salu("s_lshl_b32", sT0, sT0, 13)); a(valu("v_lshl_add_u32", t3, L, 7, sT0))
        a(salu("s_mov_b32", sOff, 4194304))
        for n in range(int(o.asym)):
            if int(o.asym) == 3 and n == 2:
                a(valu("v_lshrrev_b32", t1, 5, L)); a(valu("v_mul_u32_u24", t1, 4194304 - 4096, t1)); a(valu("v_add_u32", t3, t3, t1))
            a(raw(f"buffer_load_dword {vTs}, {t3}, {(Sk, Sv)[n >> 1]}, {sOff if n & 1 else 0} offen {o.tflag}".rstrip(), rd=[t3], kind="vml"))
        a(raw("Lnotouch:", kind="label"))
    lin = []
    if int(o.lpf):
        a = lin.append
        base(Sk, 4, 0, 0, 16 * PART); base(Sv, 10, 0, 0, 4194304)
        a(salu("s_lshl2_add_u32", sT0, S(2), sW)); a(salu("s_mul_i32", sT1, sT0, 2304)); a(salu("s_lshl_b32", sT0, sT0, 12))
        a(valu("v_min_u32", t1, 17, L)); a(valu("v_lshl_add_u32", t1, t1, 7, sT1)); a(valu("v_lshl_add_u32", t3, L, 6, sT0))
        a(I(f"buffer_load_dword {vTs}, {t3}, {Sv}, 0 offen", "vml", rd=[t3], tag="ct"))
        a(I(f"buffer_load_dword {vTs}, {t1}, {Sk}, 0 offen", "vml", rd=[t1], tag="ct"))
    first = []
    for n, tok in enumerate(o.qseq.split("|")[0].split(",")):
        if n == int(o.lpf) - 1: first += lin
        first += qtok(tok, o)[0]
    Q = []; a = Q.append
    if int(o.cpl): a(valu("v_lshl_add_u32", t1, sW, 6, L)); Q += code_touch(V(8, 2), vTs, t1, shift=int(o.cpf) + 3, tid=True)
    a(salu("s_lshl4_add_u32", sT1, sB, sJ))
    a(salu("s_lshl_b32", sT0, sT1, 18)); base(Sk, 6, sT0, KSH(o), 262144); base(Sv, 8, sT0, KSH(o), 262144)
    a(salu("s_mul_i32", sT0, sT1, PART)); base(Sws, 18, sT0, 0, PART)
    a(salu("s_lshl_b32", sT0, sJ, 18)); base(Swo, 12, sT0, 128, 262144)
    base(Sout, 14, sT2, 0, PART)
    a(salu("s_lshl_b32", sT0, sT2, 4)); base(Sred, 18, sT0, 0, 16 * PART)
    a(salu("s_lshl_b32", sT0, sB, 15)); a(salu("s_add_u32", sT0, sT0, MBOFF)); base(Smb, 18, sT0, 0, 32768)
    a(salu("s_mov_b32", Sdbg[2], 256)); a(salu("s_mov_b32", Sdbg[3], "0x20000"))
    a(salu("s_mov_b32", sC, hex(CSC))); a(raw("s_bitcmp1_b32 s50, 1")); a(raw("s_cselect_b64 vcc, -1, 0"))
    a(salu("s_lshr_b32", sT3, sJ, 2)); a(salu("s_lshl_b32", sT0, sB, int(o.fb))); a(salu("s_sub_u32", sT3, sT3, sT0))
    for p in range(4): a(salu("s_add_u32", sT0, sT3, (p - int(o.ts)) & 3)); a(salu("s_and_b32", sT0, sT0, 3)); a(salu("s_lshl_b32", sP(p), sT0, 8))
    a(salu("s_and_b32", sT0, sT3, 3)); a(salu("s_and_b32", sT1, sJ, 3)); a(salu("s_lshl2_add_u32", sT3, sT0, sT1))
    a(valu("v_and_b32", t1, 15, L)); a(valu("v_lshlrev_b32", t1, 4, t1))
    a(valu("v_lshrrev_b32", t5, 4, L))
    a(salu("s_add_u32", sT0, sW, 0 if str(o.ate) == "9" else sMode)); a(salu("s_lshl4_add_u32", sAt, sT0, sB)); a(salu("s_lshl_b32", sAt, sAt, 4))
    a(salu("s_lshl_b32", sT0, sMode, 6)); a(salu("s_add_u32", sT0, sT0, sW)); a(salu("s_lshl_b32", sT0, sT0, 9))
    a(valu("v_lshl_add_u32", t6, L, 3, sT0)); a(salu("s_lshl_b32", sOff, sT3, 11)); a(valu("v_mov_b64", V(8, 2), 0))
    a(vstore(V(8, 2), t6, Smb, sOff, 0, "sc1", tag="mbz", op="buffer_store_dwordx2"))
    a(valu("v_lshl_add_u32", t3, t5, 13, t1))
    a(salu("s_lshl_b32", sT0, sHH, 15)); a(salu("s_lshl_b32", sT1, sQH, 12)); a(salu("s_add_u32", sT0, sT0, sT1))
    a(salu("s_add_u32", sT0, sT0, 128)); a(valu("v_add_u32", t3, sT0, t3)); a(valu("v_accvgpr_write_b32", aWo0, t3))
    a(valu("v_lshlrev_b32", vL16, 4, L))
    a(salu("s_lshl_b32", sT0, sHH, 17)); a(salu("s_lshl_b32", sT1, sQH, 13 - int(o.kvm))); a(salu("s_add_u32", sT0, sT0, sT1))
    a(salu("s_add_u32", sT0, sT0, KSH(o))); a(valu("v_add_u32", vKV(0), sT0, vL16)); a(valu("v_accvgpr_write_b32", aKv0, vKV(0)))
    Q += kvset(o)
    a(salu("s_xor_b32", sT0, sW, 1)); a(salu("s_mul_i32", sGrP, sT0, GRP))
    a(salu("s_add_u32", sA8, sGrp, 8 * US)); a(salu("s_add_u32", sB8, sGrP, 8 * US))
    a(valu("v_add_u32", qA8, sA8, vL16)); a(valu("v_add_u32", qB8, sB8, vL16))
    a(valu("v_and_b32", t1, 3, L)); a(valu("v_mul_u32_u24", t1, PS, t1)); a(valu("v_lshl_add_u32", t1, t5, 4, t1))
    a(valu("v_bfe_u32", t3, L, 2, 2)); a(valu("v_lshl_add_u32", t3, t3, 7, t1))
    a(valu("v_add_u32", qX9r, X9, t3))
    a(salu("s_mul_i32", sT0, sQH, 2 * GRP)); a(valu("v_add_u32", qXr(0), sT0, t3))
    a(valu("v_add_u32", qXr(1), 7 * US, qXr(0)))
    a(valu("v_bfe_u32", t3, L, 2, 1)); a(valu("v_mul_u32_u24", t3, US, t3)); a(valu("v_add_u32", t1, t1, t3))
    a(valu("v_bfe_u32", t3, L, 3, 1)); a(valu("v_lshl_add_u32", t1, t3, 8, t1))
    a(salu("s_lshl_b32", sT0, sQH, 6)); a(salu("s_xor_b32", sT1, sT0, 64))
    a(valu("v_add_u32", t3, sT0, t1)); a(valu("v_add_u32", t6, sT1, t1))
    a(valu("v_add_u32", Kr(0, 0), sGrp, t3)); a(valu("v_add_u32", Kr(0, 1), sGrp, t6))
    a(valu("v_add_u32", Kr(1, 0), sGrP, t3)); a(valu("v_add_u32", Kr(1, 1), sGrP, t6))
    a(valu("v_bfe_u32", t1, L, 2, 2)); a(valu("v_mul_u32_u24", t1, PS, t1))
    a(valu("v_and_b32", t3, 1, L)); a(valu("v_lshl_add_u32", t6, t3, 4, t1))
    a(valu("v_bfe_u32", t3, L, 1, 1)); a(valu("v_lshl_add_u32", t6, t3, 3, t6))
    a(valu("v_lshl_add_u32", t3, t5, 7, t6))
    a(salu("s_mul_i32", sT2, sHH, 2 * GRP)); a(salu("s_add_u32", sT2, sT2, US)); a(valu("v_add_u32", t3, sT2, t3))
    a(valu("v_add_u32", qWr(0, 0), sT0, t3)); a(valu("v_add_u32", qWr(0, 1), sT1, t3))
    a(valu("v_add_u32", qWr(1, 0), 4 * US, qWr(0, 0))); a(valu("v_add_u32", qWr(1, 1), 4 * US, qWr(0, 1)))
    a(valu("v_and_b32", t4, 1, t5))
    a(valu("v_lshl_add_u32", t6, t2, 8, t6)); a(valu("v_mul_u32_u24", t3, GRP, t4)); a(valu("v_add_u32", t6, t6, t3))
    a(salu("s_lshl_b32", sT2, sW, 6)); a(valu("v_add_u32", t6, sT2, t6)); a(valu("v_accvgpr_write_b32", aWpat, t6))
    a(valu("v_lshl_add_u32", t1, t2, 8, t1)); a(valu("v_and_b32", t3, 3, L)); a(valu("v_lshl_add_u32", t1, t3, 3, t1))
    a(valu("v_mul_u32_u24", t3, US, t4)); a(valu("v_add_u32", t1, t1, t3)); a(valu("v_add_u32", t1, 4 * US, t1))
    a(salu("s_lshl_b32", sT0, sT0, 1)); a(salu("s_lshl_b32", sT1, sT1, 1))
    a(valu("v_add_u32", t3, sT0, t1)); a(valu("v_add_u32", t6, sT1, t1))
    a(valu("v_add_u32", Vr(0, 0), sGrp, t3)); a(valu("v_add_u32", Vr(0, 1), sGrp, t6))
    a(valu("v_add_u32", Vr(1, 0), sGrP, t3)); a(valu("v_add_u32", Vr(1, 1), sGrP, t6))
    a(salu("s_and_b32", sRk, {"h": sHH, "b": sB, "0": 0}[o.hx], 1)); a(salu("s_lshl_b32", sRk, sRk, 12 + int(o.kvm)))
    a(salu("s_lshl1_add_u32", sT2, sQH, sHH)); a(salu("s_lshl_b32", sT2, sT2, 12)); a(salu("s_add_u32", sT2, sT2, 6 * US))
    a(salu("s_lshl4_add_u32", sOw0, sT0, sT2)); a(salu("s_lshl4_add_u32", sOw1, sT1, sT2))
    a(valu("v_mov_b32", t1, "0x3f803f80"))
    for r in range(4): a(valu("v_accvgpr_write_b32", (ONES[r], "ones"), t1))
    return P, first, Q

def build_main(o):
    code_touch.thin = int(o.thin)
    P, first, Q = prologue(o)
    sc = Sched(vmgap=int(o.vmgap), dswgap=int(o.dswgap), maxmem=int(o.maxmem), wiso=int(o.wiso), horizon=int(o.hor))
    F = sc.f
    nstamp = [1]
    def stamp(g, after=()):
        if int(o.stamps):
            n = nstamp[0]; nstamp[0] += 1
            F(raw(f"s_memrealtime s[{64+2*n}:{65+2*n}]"), g, g, after=after)
    nextvm = [0]
    def spread(ops, lo, step, q="dma", after=(), cap=None):
        out = []; pos = max(lo, nextvm[0]); pend = []
        for x in ops:
            pend.append(x)
            if x.kind in ("dma", "vml", "vms"):
                a_, b_ = int(pos), int(pos + step)
                if cap is not None: a_, b_ = min(a_, cap), min(b_, cap)
                for y in pend[:-1]: out.append(F(y, max(min(lo, b_), min(a_ - 3, b_)), b_, q=q, after=after))
                out.append(F(x, a_, b_, q=q, after=after)); pend = []
                if x.tag not in ('at', 'ct'): pos += step
        assert not pend
        nextvm[0] = pos
        return out
    cur = {}; lastrd = {}; firstrd = {}; lastwr = {}
    def M(d, dtag, a_, b_, c):
        cc = (d, cur[str(d)]) if c == "acc" else c
        i = mfma((d, dtag), a_, b_, cc); n = sc.m(i); cur[str(d)] = dtag
        for r, t in i.rd.items():
            lastrd[(r, t)] = n; firstrd.setdefault((r, t), n)
        lastwr[str(d)] = n
        return n
    lr = lambda reg, tag: max(lastrd[(r, tag)] for r in reg.regs())
    fr_ = lambda reg, tag: min(firstrd[(r, tag)] for r in reg.regs())
    for i in first + Q: F(i, -1, -1, q="dma")
    k0 = {}; qdone = {}
    for j, (I_, hf) in enumerate(SEQ):
        k0[j] = sc.n
        if j < 15: order = [(fp, b) for fp in range(4) for b in range(5) if b < 4 or fp < 2]
        else: order = [(fp, 4) for fp in range(2)] + [(fp, b) for b in range(4) for fp in range(4)]
        for fp, b in order:
            d = ACC(b, 4 * hf + fp) if b < 4 else SB(hf).sub(4 * fp, 4)
            for kk in range(2):
                bb = (Bq(I_, kk, b) if b < 4 else B9(I_, kk), f"x{I_}")
                n = M(d, "Qacc" if (I_, kk) == (7, 1) else f"q{I_}.{kk}", (Aq(fp, kk), f"w{j}"), bb, 0 if (I_, kk) == (0, 0) else "acc")
            qdone[str(d)] = n
    k0[16] = sc.n
    units = []; U = {}; G = {}; pre0 = {}; preL = {}
    P7 = {0: PB(0), 1: PB(1), 8: PB(2), 2: NM(0), 3: NM(4), 4: NM(1), 5: NM(2)}
    def pre(b):
        pre0[b] = sc.n
        for t in range(4): preL[b] = M(NM(b), f"pm{b}", (KF(0, 0, t), "k0"), (QF(b, t), f"Q{b}"), 0 if t == 0 else "acc")
    def qk(e, u):
        n = len(units); b, y = (u >> 1, u & 1) if u < 8 else (4, 0)
        s_ = SB(n & 1); p_ = PB(u % 3) if e < 7 else P7.get(u, s_.sub(0, 4))
        un = dict(e=e, u=u, b=b, y=y, S=s_, P=p_, n=n, q0=sc.n, hl=[0, 0])
        for h in range(2):
            for t in range(4):
                un["hl"][h] = M(s_.sub(4 * h, 4), f"s{n}", (KF(y, h, t), f"k{e}"), (QF(b, t), f"Q{b}"), (NM(b), f"nm{b}") if t == 0 else "acc")
        units.append(un); U[(e, u)] = un
    def pv(e, b, ds=range(-1, 8)):
        us = [U[(e, 2 * b)], U[(e, 2 * b + 1)]] if b < 4 else [U[(e, 8)]]
        g = G.setdefault((e, b), dict(p0=sc.n))
        for d in ds:
            acc = LS(b) if d < 0 else (ACC(b, d) if b < 4 else O9(d))
            for k, un in enumerate(us):
                a_ = (ONES, "ones") if d < 0 else (VF(e, un["y"], d), f"v{e}")
                g["pL"] = M(acc, f"o{e}.{k}" if k + 1 < len(us) else f"o{e}", a_, (un["P"], f"p{un['n']}"), 0 if e == 0 and k == 0 else "acc")
        for un in us: un["g"] = g
    st0 = {}
    for e in range(8):
        st0[e] = sc.n
        if e == 0: pre(0); pre(1)
        qk(e, 0); qk(e, 1)
        if e: pv(e - 1, 4)
        if e < 7:
            for b in range(1, 4):
                if e == 0: pre(b + 1)
                qk(e, 2 * b); qk(e, 2 * b + 1); pv(e, b - 1)
            qk(e, 8); pv(e, 3)
        else:
            prv = int(o.prev)
            for u in (8, 2, 3, 4, 5, 6, 7):
                qk(e, u)
                if u == 3 and prv: pv(e, 4, [-1])
            p7 = sc.n
            for b in ((0, 1, 2, 3) if prv else (4, 0, 1, 2)): pv(e, b, [-1])
            pv(e, 4, range(8))
            if not prv: pv(e, 3, [-1])
            for b in range(4): pv(e, b, range(8))
    attn_end = sc.n - 1
    odone = dict(lastwr)
    ou0 = {}; ouh = {}
    OU = [(p, qb) for p in range(4) for qb in QB]
    mg = int(o.merge)
    if mg:
        OU[:18] = [(int(z[0]), int(z[1])) for z in o.ouseq.split(",")]
    for n, (p, qb) in enumerate(OU):
        if True:
            ou0[n] = sc.n
            for u in range(2):
                for ks in range(8):
                    ouh[(n, u)] = M(SB(n & 1).sub(4 * u, 4), f"r{n}", (Ao(p, ks, u), f"wo{p}"), (Bo(qb, ks), f"of{qb}"), 0 if ks == 0 else "acc")
    last = sc.n - 1
    ou0[36] = ou0[37] = last + 1
    def rdA(j, fp):
        u = WQU[j % 6]; win = 0 if u <= 4 else 1
        return [dsr(TR, (Aq(fp, kk).sub(2 * h, 2), f"w{j}"), qWr(win, fp >> 1), (u - 1 - 4 * win) * US + kk * GRP + 512 * h + 32 * (fp & 1))
                for kk in range(2) for h in range(2)]
    def rdB(I_):
        u = XU[I_ % 3]; win = 1 if u == 7 else 0
        l = [dsr(B128, (Bq(I_, kk, b), f"x{I_}"), qXr(win), (u - 7 * win) * US + (b >> 1) * GRP + (b & 1) * 512 + kk * 64)
             for b in range(4) for kk in range(2)]
        return l + [dsr(B128, (B9(I_, kk), f"x{I_}"), qX9r, ((I_ >> 1) & 1) * GRP + (I_ & 1) * 512 + kk * 64) for kk in range(2)]
    bpre = F(barrier(vm=("x0", "xn0", "wq0")), -1, -1, q="dma")
    stamp(-1, [bpre])
    l = rdB(0)
    prev = [F(x, -1, -1, q="lds", after=[bpre]) for x in rdA(0, 0) + l[:6]]
    prev += [F(x, -1, 7, q="lds", after=[bpre]) for x in l[6:] + rdA(0, 1) + rdA(0, 2) + rdA(0, 3)]
    BQ = {}
    for j in range(16):
        g = k0[j] + (14 if j == 0 else 9)
        nI = SEQ[j + 1][0] if j < 15 and SEQ[j + 1][1] == 0 else None
        vm = []
        if j < 15: vm.append(f"wq{j+1}")
        if nI is not None: vm += [f"x{nI}", f"xn{nI//2}"]
        if j == 10: vm = ["wq15", "all0"] if int(o.all0) else vm + ["mbz"]
        bq = BQ[j] = F(barrier(vm=vm), g, g, after=prev)
        if o.qst and j in eval(o.qst): stamp(g, [bq])
        prev = []
        if j < 15:
            for fp in range(4):
                for x, kk in zip(rdA(j + 1, fp), (0, 0, 1, 1)):
                    lo = max(lr(Aq(fp, kk), f"w{j}"), g)
                    prev.append(F(x, lo, max(min(fr_(Aq(fp, kk), f"w{j+1}") - 6, k0[j + 1] + 3), lo), q="ldsA", after=[bq]))
        if nI is not None:
            for n, x in enumerate(rdB(nI)): prev.append(F(x, g, min(k0[j + 1] - 7 + n, k0[j + 1] + 2), q="ldsB", after=[bq]))
    step = 3.0; seen = set(o.qseq.split("|")[0].split(","))
    for tok in o.qseq.split("|")[1].split(","):
        if tok[0] == "@": nextvm[0] = max(nextvm[0], int(float(tok[1:]) * 36)); continue
        if tok[0] == "+": nextvm[0] += int(tok[1:]); continue
        if tok[0] == "p": step = float(tok[1:]); continue
        seen.add(tok)
        ops, dep = qtok(tok, o)
        spread(ops, BQ[dep].lo if dep >= 0 else 0, step, after=[BQ[dep]] if dep >= 0 else [])
    assert len([t for t in seen if t[0] not in "ctu"]) == 16 + 8 + 4 + 4 + 4, sorted(seen)
    stamp(k0[15])
    if o.xst:
        for g_ in eval(o.xst): stamp(g_)
    def pack_q(src, dst, tdst, hi):
        lo = min(max(qdone[str(src.sub(0, 4))], qdone[str(src.sub(4, 4))]) + 3, hi)
        ops = [valu("v_mul_f32", (src[m], "t"), sC, (src[m], "Qacc")) for m in range(8)]
        ops += [valu("v_cvt_pk_bf16_f32", (dst[m], "t2"), (src[2 * m], "t"), (src[2 * m + 1], "t")) for m in (0, 2, 1, 3)]
        ops += [swap("v_permlane32_swap_b32", (dst[m], "t2"), (dst[m + 2], "t2"), tdst, tdst) for m in range(2)]
        return [F(x, lo, hi, q="qe") for x in ops]
    q9w = []
    for hf in range(2):
        l = pack_q(SB(hf), PB(hf), "q9p", pre0[0] - 2)
        q9w.append(F(dsw("ds_write_b128", qA8, (PB(hf), "q9p"), 1024 * hf), BQ[15].lo, min(U[(0, 0)]["q0"] - 1, pre0[2] - 3 + int(o.ba0)), q="q9w", after=[l[-1], BQ[15]]))
        for t, b in ([(t, b) for t in (0, 1) for b in range(4)] if hf == 0 else [(t, b) for b in range(4) for t in (2, 3)]):
            pack_q(V(32 * b + 8 * t, 8), QF(b, t), f"Q{b}", pre0[b] - 1 + t)
    for b in range(5):
        n = NM(b); pm = f"pm{b}"; nm = f"nm{b}"; hi = fr_(n, nm) - 1
        ops = [valu("v_accvgpr_read_b32", vT1, SAV(b)),
               valu("v_max3_f32", n[0], (n[0], pm), (n[1], pm), vT1), valu("v_max3_f32", n[0], n[0], (n[2], pm), (n[3], pm)),
               valu("v_mov_b32", n[1], n[0]), swap("v_permlane32_swap_b32", n[0], n[1]), valu("v_max_f32", n[0], n[0], n[1]),
               valu("v_mov_b32", n[1], n[0]), swap("v_permlane16_swap_b32", n[0], n[1]),
               I(f"v_min_f32_e64 {n[0]}, -{n[0]}, -{n[1]}", "valu", rd=[n[0], n[1]], wr=[(n[0], nm)]),
               valu("v_mov_b32", (n[1], nm), (n[0], nm)), valu("v_mov_b64", (n.sub(2, 2), nm), (n.sub(0, 2), nm))]
        for x in ops: x = F(x, min(preL[b] + 3, hi), hi, q="nm")
        nmd = [x]
    def rdK(e, y, lo, after, hi=10**9):
        out = []
        for h in range(2):
            for t in range(4):
                r = KF(y, h, t); l_ = max(lo, lr(r, f"k{e-1}")) if e else lo
                x = dsr(B128, (r, f"k{e}"), Kr(y, t & 1), (e & 1) * 2 * US + 512 * h + 128 * (t >> 1))
                out.append(F(x, l_, max(l_, min(fr_(r, f"k{e}") - 6, hi)), q=f"ldsK{y}", after=after))
        return out
    def rdV(e, y, lo, after, hi):
        out = []
        for d in range(8):
            r = VF(e, y, d); l_ = max(lo, lr(r, f"v{e-1}")) if e and y else lo
            for h in range(2):
                x = dsr(TR, (r.sub(2 * h, 2), f"v{e}"), Vr(y, d >> 2), (e & 1) * 2 * US + 512 * h + 32 * (d & 3))
                out.append(F(x, l_, max(l_, min(fr_(r, f"v{e}") - 6, hi)), q=f"ldsV{y}", after=after))
        return out
    BB = {}; rkw = []
    vset = lambda src: [valu("v_accvgpr_read_b32", vKV(0), src)] + (kvset(o) if src is aKv0 else [valu("v_subrev_u32", vKV(pp), 32 * pp, vKV(0)) for pp in (1, 2, 3)])
    for e in range(8):
        if e == 0:
            g = k0[16] - int(o.bk0)
            bk = F(barrier(vm=["k0"], lgkm=False), g, g, after=[BQ[15]])
            gv = pre0[2] - 1 + int(o.ba0)
            bv = F(barrier(vm=["v0"]), gv, gv, after=q9w + [bk])
            for t in range(4):
                F(dsr(B128, (QF(4, t), "Q4"), qB8 if t & 1 else qA8, 1024 * (t >> 1)), gv, pre0[4] - 6, q="ldsQ9", after=[bv])
        else:
            g = U[(e - 1, 8)]["q0"] - 1 - int(o.bao)
            sep = e == 7 or e >= int(o.sepv)
            bk = F(barrier(vm=[f"k{e}"] + ([] if sep else [f"v{e}"]), lgkm=bool(rkw)), g, g, after=[BB[e - 1]] + rkw)
            if rkw:
                for x in (valu("v_mov_b32", vT0, sT1), dsr("ds_read_b32", vT1, vT0, 0)): x = F(x, g, g + 6, q="rk", after=[bk])
                F(raw(f"v_cmp_gt_u32 vcc, {int(o.rkth)}, {vT1}", rd=[vT1], kind="valu"), g + 12, g + 16, q="rk")
            rkw = []
            bv, gv = bk, g
            if sep and e < 7:
                gv = st0[e] + int(o.bvo)
                bv = F(barrier(vm=[f"v{e}"], lgkm=False), gv, gv, after=[bk])
            if e == 7:
                gv = p7 - 1 - int(o.bv7)
                gx = st0[7] + int(o.bxo)
                bx = F(barrier(vm=["wo0a"]), gx, gx, after=[bk])
                gz = U[(7, 7)]["q0"] - 1
                bz = F(barrier(vm=["wo0b"]), gz, gz, after=[bx]) if prv else bx
                bv = F(barrier(vm=["v7"]), gv, gv, after=[bz])
                stamp(gv, [bv])
        gb = G[(e, 0)]["p0"] + int(o.bbo if e >= int(o.sepv) else o.bbo1) if e < 7 else p7 + int(o.bb7)
        if e == 0 and int(o.bb0): gb = gv + int(o.bb0)
        rk = rdK(e, 0, g, [bk]) + rdK(e, 1, g, [bk], gx - 4 if e == 7 else 10**9)
        rv = rdV(e, 0, gv, [bv], gb - 5) + rdV(e, 1, gv, [bv], gb - 5)
        bb = BB[e] = F(barrier(vm=["wo0b" if int(o.wsp) else "wo1a"] if e == 7 else []), gb, gb, after=rk + rv)
        if e in (0, 3, 6): stamp(gb, [bb])
        ops = []
        if e < 6:
            for part in range(4 if e < 5 else 2): ops += g_kv(e + 2, part, o)
        if e in eval(o.rank):
            k_ = eval(o.rank).index(e); gn_ = U[(e, 8)]["q0"] - 1 - int(o.bao)
            l_ = [salu("s_and_b32", sT1, sJ, 3), salu("s_lshl_b32", sT1, sT1, 6), salu("s_add_u32", sT1, sT1, 16 * k_ + 4),
                  salu("s_and_b32", sT0, sAt, "0xf00"), salu("s_lshl3_add_u32", sT0, sT0, sT1), salu("s_add_u32", sT1, sT1, FLAG + 1024),
                  valu("v_lshl_add_u32", vT0, vL16, 7, sT0), valu("v_mov_b32", vT1, 1),
                  I(f"buffer_atomic_add {vT1}, {vT0}, {Sdbg}, 0 offen sc0", "vml", rd=[vT0, vT1], wr=[vT1], tag="at", cost=2),
                  valu("v_min_u32", vT0, 2048, vT0), valu("v_add_u32", vT0, FLAG + 1024, vT0)]
            for x in l_[:8]: F(x, gb - 12, gb, q="rk", after=nmd)
            for x in l_[8:]: F(x, gb, gb + 5, q="rk", after=[bb])
            rkw = [F(dsw("ds_write_b32", vT0, vT1, 0), gn_ - 7, gn_ - 4, q="rk")]
        sites = eval(str(o.ate)); sites = sites if isinstance(sites, list) else [sites]
        for k_, site in enumerate(sites):
            if int(site) != e: continue
            at = [salu("s_add_u32", sT0, sJ, k_), salu("s_and_b32", sT0, sT0, len(sites) - 1), salu("s_lshl_b32", sT0, sT0, 8), salu("s_add_u32", sT0, sT0, sAt),
                  valu("v_lshl_add_u32", vT0, vL16, 4, sT0), valu("v_mov_b32", vT1, 1),
                  vstore(vT1, vT0, Sdbg, 0, 0, "", tag="at", op="buffer_atomic_add")]
            pos = len(ops) if site == e else [z for z, x in enumerate(ops) if x.kind == "dma"][7] + 1
            ops[pos:pos] = at
        if e in eval(f'[{o.cte}]') and int(o.cpf): ops += code_touch(V(254, 2), vTs, vL16, shift=3)
        if ops: spread(ops, gb, float({0: o.astep0, 4: o.astep4, 5: o.astep5}.get(e, o.astep)), after=[bb])
    bx.after += rk
    wts = [1.0] * 8; win = int(o.win)
    def allowed(limit):
        m = 0; c = 0.0
        while m < len(wts) and c + wts[-1 - m] <= limit + 1e-9: c += wts[-1 - m]; m += 1
        return m
    def capped(ops, w):
        for x in ops:
            if x.kind == "dma": x.text = f"s_waitcnt vmcnt({allowed(win - w)})\n" + x.text; wts.append(w)
        return ops
    es = float(o.estep); wsp = int(o.wsp)
    if int(o.wmix):
        for hf in range(2):
            spread(capped(vset(aWo0) + g_wo(0, hf), float(o.wow)), BB[6].lo, es * float(o.wpace), after=[BB[6]])
            spread(capped(vset(aKv0) + g_kv(7, 2 + hf, o, False), 1.0), BB[6].lo, es, after=[BB[5]])
    else:
        spread(capped(vset(aWo0) + g_wo(0, 0) + ([] if wsp else g_wo(0, 1)), float(o.wow)), BB[6].lo, es * float(o.wpace), after=[BB[6]])
        spread(capped(vset(aKv0) + g_kv(7, 2, o, False) + g_kv(7, 3, o, False), 1.0), BB[6].lo, es, after=[BB[5]])
    early = vset(aWo0) + (g_wo(0, 1) if wsp else []) + g_wo(1, 0)
    for n in range(win - 1, 0, -1):
        g_ = min(int(nextvm[0]), gv - 3)
        if n >= int(o.dmin): F(raw(f"s_waitcnt vmcnt({allowed(n)})"), g_, g_ + 2, q="dma")
        idx = [k for k, x in enumerate(early) if x.kind == "dma"][:2]
        if idx:
            spread(early[:idx[-1] + 1], max(g_ + 1, gx), (es - 2) / 2, after=[bx]); early = early[idx[-1] + 1:]; wts += [0.0] * len(idx)
        nextvm[0] = max(nextvm[0], g_ + es)
    assert wsp or not early
    nextvm[0] = 0
    if str(o.ate) == "8":
        for x in (valu("v_lshl_add_u32", NM(3)[0], vL16, 4, sAt), valu("v_mov_b32", NM(3)[3], 1),
                  vstore(NM(3)[3], NM(3)[0], Sdbg, 0, 0, "", tag="at", op="buffer_atomic_add")): at8 = F(x, gv, gv + 3, q="dma", after=[bv])
    spread(early + g_wo(1, 1), gv + int(o.w1bo), float(o.ostep0), after=[bv])
    if prv: spread(g_wo(2, 0), gv + 1, float(o.ostep1), after=[bv])
    elif not wsp: spread(g_wo(2, 0), BB[7].lo + 1, float(o.ostep1), after=[BB[7]])
    vA8, vLMw, vW, vOw, vB8, vLMr = Kr(0, 0), Kr(0, 1), (Kr(1, 0), Kr(1, 1)), (Vr(0, 0), Vr(0, 1)), Vr(1, 0), Vr(1, 1)
    vBr, vFl, vSt, vO9 = (PB(2)[0], PB(2)[1]), vLMw, vLMr, vB8
    g = U[(7, 8)]["q0"]
    adr = [valu("v_bfe_u32", vLMw, vL16, 1, 7), valu("v_add_u32", vLMw, sA8, vLMw), dsw("ds_write_b32", vLMw, (NM(4)[0], "nm4"), 4096 + 4),
           valu("v_accvgpr_read_b32", vW[0], aWpat), valu("v_add_u32", vW[1], 4 * US, vW[0]), valu("v_add_u32", vA8, sA8, vL16)]
    adr = [F(x, gx, g + 4, q="adr", after=rk) for x in adr]
    bl = bz if prv else BB[7]
    bl.after.append(F(dsw("ds_write_b32", vLMw, (LS(4)[0], "o7"), 4096), G[(7, 4)]["p0"] + 4, bl.lo - 2, q="adr"))
    if prv: vLMr = vT0
    adrl = [F(x, gx if prv else p7, bl.lo + 3, q="adr", after=[] if prv else rv) for x in (valu("v_bfe_u32", vLMr, vL16, 1, 7), valu("v_add_u32", vLMr, sB8, vLMr))]
    adr2 = [valu("v_add_u32", vOw[0], sOw0, vL16), valu("v_add_u32", vOw[1], sOw1, vL16), valu("v_add_u32", vB8, sB8, vL16)]
    adr2 = [F(x, p7, BB[7].lo + 3, q="adr", after=rv) for x in adr2]
    lastP = {}
    for un in units:
        n, s_, p_ = un["n"], un["S"], un["P"]
        nx = units[n + 2]["q0"] if n + 2 < len(units) else 10**9
        pfree = -1; aft = []
        if str(p_) in lastP: pfree = lastP[str(p_)]["g"]["pL"]
        for b in range(5):
            if str(p_) == str(NM(b)): pfree = lr(p_, f"nm{b}") + 1
        if str(p_) == str(NM(4)): aft = [adr[2]]
        if n < 2: aft = q9w
        lastP[str(p_)] = un
        ex = []
        for j in range(8):
            hi = min(nx - 1 + 4 * (j >> 2), un["g"]["p0"] - 1, gv if prv else 10**9); lo = min(un["hl"][j >> 2] + 3, hi)
            ex.append(F(trans("v_exp_f32", (s_[j], f"e{n}"), (s_[j], f"s{n}")), lo, max(lo, hi - 1), q="exp"))
        for m in range(4):
            hi = min(nx - 1 + 4 * (m >> 1), un["g"]["p0"] - 1, gv if prv else 10**9)
            x = F(valu("v_cvt_pk_bf16_f32", (p_[m], f"p{n}"), (s_[2 * m], f"e{n}"), (s_[2 * m + 1], f"e{n}")),
                  max(ex[2 * m + 1].lo, pfree), hi, q="cvt", after=[ex[2 * m + 1]] + aft)
    if prv: bv.after.append(x)
    def rdAo(p, kss=range(8)):
        return [dsr(TR, (Ao(p, ks, u).sub(2 * h, 2), f"wo{p}"), vW[WOU[p][ks >> 1] >> 2],
                    (WOU[p][ks >> 1] & 3) * US + (ks & 1) * 2 * GRP + 512 * h + 32 * u)
                for u in range(2) for ks in kss for h in range(2)]
    fu = [OU.index((0, qb)) for qb in (0, 1, 2, 3, 8)]
    gB = [attn_end - int(o.b1o)] + [ou0[fu[k]] - int(o.bko1 if k == 1 and mg else o.bko) for k in range(1, 5)]
    pub = [[] for _ in range(5)]
    lm = NM(3)
    mr = [dsr("ds_read_b64", lm.sub(0, 2), vLMw, 4096), dsr("ds_read_b64", lm.sub(2, 2), vLMr, 4096)]
    g = max(bl.lo, lr(lm, "nm3") + 1)
    mr = [F(x, g, min(g + 10, gv) if prv else g + 10, q="lm", after=[bl, adrl[1]]) for x in mr]
    op1 = [valu("v_sub_f32", lm[1], lm[1], lm[3]), trans("v_exp_f32", lm[1], lm[1]), salu("s_lshl_b32", sT0, sW, 2),
           valu("v_fma_f32", vTs, lm[2], lm[1], lm[0]), trans("v_rcp_f32", lm[2], vTs), salu("s_add_u32", sT0, sT0, 6 * US),
           valu("v_add_u32", vFl, sT0, vL16), valu("v_mul_f32", lm[1], lm[1], lm[2])]
    op2 = []
    for b in range(4): op2 += [valu("v_accvgpr_read_b32", lm[3], (LS(b)[0], "o7")), valu("v_add_f32", vTs, vTs, lm[3])]
    op2.append(dsw("ds_write_b32", vFl, vTs, FLAG - 6 * US))
    op3 = [valu("v_add_u32", vBr[1], 6 * US, vL16), salu("s_lshl_b32", sT0, sW, 10), valu("v_add_u32", vSt, sT0, vL16)]
    lsum = [F(x, gv if prv else BB[7].lo + 4, gv if prv else gB[0] - 4, q="lm") for x in op1]
    if prv: bv.after.append(lsum[-1])
    lsum += [F(x, odone[str(LS(3))] + 4, gB[0] - 4, q="lm", after=[at8] if str(o.ate) == "8" else []) for x in op2]
    lsum += [F(x, G[(7, 4)]["pL"], gB[0] - 2, q="lm", after=rv) for x in op3]
    pub[0] += lsum
    rp = int(o.rawp)
    raww = [F(x, gB[rp - 1] + 12 if rp else G[(7, 4)]["pL"] + 4, gB[rp] - 36 + 5 * d if rp else gB[rp] - 4, q="raw" if rp else "ow", after=[adr[-1]])
            for d in range(4) for x in w128(o, vA8, (O9(4 + d), "o7"), 1024 * d)]
    pub[rp] += raww
    def norm_block(b):
        a32 = V(32 * b, 32); hi = gB[b] - 4
        ops = [valu("v_accvgpr_read_b32", vT1, (LS(b)[0], "o7")), trans("v_rcp_f32", vT0, vT1)]
        for x in ops: F(x, odone[str(LS(b))] + 4, hi, q="ep", after=mr)
        for k in range(4):
            ops = [valu("v_mul_f32", (a32[8 * k + m], "n"), (a32[8 * k + m], "o7"), vT0) for m in range(8)]
            ops += [valu("v_cvt_pk_bf16_f32", (a32[8 * k + m], "of"), (a32[8 * k + 2 * m], "n"), (a32[8 * k + 2 * m + 1], "n")) for m in range(4)]
            lo = odone[str(ACC(b, 2 * k + 1))] + 3; hk = max(lo, hi - 4 * (3 - k))
            for x in ops: x = F(x, lo, hk, q="ep")
            for y in w128(o, vOw[k >> 1], (a32.sub(8 * k, 4), "of"), (b & 1) * US + (k & 1) * 1024):
                pub[b].append(F(y, max(lo, gB[b - 1]) if b >= 2 else lo, hk, q="ow", after=[x, adr2[-1], BP[b - 1] if b >= 2 else BB[7]]))
    BP = [barrier(vm=v_) for v_ in (["wo1a" if wsp else "wo1b"], [], [], [], ["wo2a", "wo2b"])]
    bv.after += [F(x, max(gx, G[(6, 4)]["pL"]), gv - (14 if prv else 5), q="ldsK0", after=[adr[-1], bx]) for x in rdAo(0, range(4))]
    if wsp: pub[0] += [F(x, BB[7].lo, gB[0] - 4, q="ldsK0", after=[BB[7]]) for x in rdAo(0, range(4, 8))]
    else:
        if prv: bv.after += [F(x, gz, gv - 1, q="ldsK0", after=[bz]) for x in rdAo(0, range(4, 8))]
        else: BB[7].after += [F(x, gv, BB[7].lo - 4, q="ldsK0", after=[bv]) for x in rdAo(0, range(4, 8))]
        pub[0] += [F(x, BB[7].lo, gB[0] - 4, q="ldsK0", after=[BB[7]]) for x in rdAo(1, range(4))]
    for b in range(4): norm_block(b)
    F(BP[0], gB[0], gB[0], after=pub[0])
    stamp(attn_end)
    rdA0 = []; bn, gn = BP[0], gB[0]
    if wsp:
        gn = ou0[0] + int(o.bno)
        bn = F(barrier(vm=["wo1b"]), gn, gn, after=[BP[0]] + [F(x, gB[0], gn - 4, q="ldsK0", after=[BP[0]]) for x in rdAo(1, range(4))])
    for x in rdAo(1, range(4, 8)):
        r = next(iter(x.wr)); lo = max(gn, lastrd[(r, "v7")])
        rdA0.append(F(x, lo, max(lo, min(firstrd[(r, "wo1")] - int(o.lead), gB[1] - 3)), q="ldsK0", after=[bn]))
    fl = NM(0)
    fr = F(dsr(B128, fl, vBr[1], FLAG - 6 * US), gB[0], gB[0] + 1, q="ldsB", after=[BP[0]])
    chk = [valu("v_add_f32", fl[0], fl[0], fl[1]), valu("v_add_f32", fl[2], fl[2], fl[3]), valu("v_add_f32", fl[0], fl[0], fl[2]),
           raw(f"v_cmp_nge_f32 vcc, {hex(THR)}, {fl[0]}", rd=[fl[0]], kind="valu"),
           raw(f"s_cmp_eq_u32 s54, {77 if o.abl else 0}\ns_cselect_b64 vcc, vcc, 0\ns_cbranch_vccnz Lslow", cost=2, kind="br")]
    chk = [F(x, gB[0] + 7, gB[0] + 14, q="fl", after=[fr]) for x in chk]
    rcv = [V(168 + 4 * d, 4) for d in range(4)]
    mr = [F(dsr(B128, (rcv[d], "rcv"), vB8, 1024 * d), gB[2 + mg], gB[3] + (20 if mg else -6), q="lm", after=[chk[-1], BP[rp]]) for d in range(4)]
    for x in (salu("s_lshl_b32", sT0, sW, 11), valu("v_add_u32", vO9, sT0, vBr[1])): a9 = F(x, gB[2], gB[4] - 12, q="fl", after=mr)
    for k in range(2):
        ops = []
        for d in (2 * k, 2 * k + 1):
            for m in range(4):
                t = (vT1, lm[3])[m & 1]
                ops += [valu("v_accvgpr_read_b32", t, (O9(d)[m], "o7")), valu("v_mul_f32", (rcv[d][m], "rs"), (rcv[d][m], "rcv"), lm[1]),
                        valu("v_fma_f32", (rcv[d][m], "n"), t, lm[2], (rcv[d][m], "rs"))]
        for m in range(4):
            src = rcv[2 * k + (m >> 1)]
            ops.append(valu("v_cvt_pk_bf16_f32", (rcv[2 * k][m], "of"), (src[2 * (m & 1)], "n"), (src[2 * (m & 1) + 1], "n")))
        for x in ops: x = F(x, gB[2], gB[4] - 8 + 4 * k, q="ep", after=mr + [lsum[-1]])
        for y in w128(o, vO9, (rcv[2 * k], "of"), 3 * US + 1024 * k): pub[4].append(F(y, gB[2], gB[4] - 8 + 4 * k, q="ow", after=[x, a9]))
    def rdBo(qb, ks):
        if qb < 8: return dsr(B128, (Bo(qb, ks), f"of{qb}"), vBr[1], (qb & 1) * US + (qb >> 2) * 8192 + 1024 * ks)
        return dsr(B128, (Bo(qb, ks), f"of{qb}"), vBr[1], 3 * US + 1024 * ks)
    rdp = rdA0; prevb = BP[0]
    for k in range(5):
        if k: prevb = F(BP[k], gB[k], gB[k], after=pub[k] + [prevb] + rdp); rdp = []
        for n in (fu[k], fu[k] + 1)[:2 if k < 4 else 1]:
            qb = OU[n][1]
            for ks in range(8):
                late = qb >= 5 or (qb == 4 and ks >= 6)
                hi = max(gB[k] + ks // 2, ou0[n] - int(o.lead) + ks)
                if k < 4: hi = min(hi, gB[k + 1] - 3)
                rdp.append(F(rdBo(qb, ks), gB[k], hi, q="ldsB", after=[BP[k]] + ([chk[-1]] if late else [])))
    gd = {p: ou0[9 * p] + int(o.bdo) for p in range(4)}
    if str(o.ate) == "9":
        for x in (valu("v_lshl_add_u32", V(184), vL16, 4, sAt), valu("v_mov_b32", V(185), 1),
                  vstore(V(185), V(184), Sdbg, 0, 0, "", tag="at", op="buffer_atomic_add")): F(x, ou0[1] + 8, ou0[2], q="at", after=[chk[-1]])
    if wsp: spread(g_wo(2, 0), gB[0] + 1, float(o.ostep1), after=[BP[0]])
    w1b = spread(g_wo(2, 1), gn + 1, float(o.ostep2), after=[bn])
    spread(g_wo(3, 0), gB[1] + 1, float(o.ostep3), after=[BP[1]])
    spread(g_wo(3, 1), gB[4] + 1, float(o.ostep4), after=[BP[4]])
    for n, x in enumerate(rdAo(2)):
        r = next(iter(x.wr)); F(x, lastrd[(r, "wo0")], ou0[18] - 8 + n // 2, q="ldsK0", after=[BP[4]])
    bd = F(barrier(vm=["wo3a", "wo3b"], lgkm=False), gd[2], gd[2], after=[BP[4]])
    for n, x in enumerate(rdAo(3)): F(x, gd[2], ou0[27] - 8 + n // 2, q="ldsK0", after=[bd])
    ts = int(o.ts); assert ts >= 2
    for n in range(36):
        s_, p_ = SB(n & 1), PB(n & 1)
        for m in range(4):
            lo = min(ouh[(n, m >> 1)] + (8 if n > 8 + 6 * mg else 4), last)
            x = F(valu("v_cvt_pk_bf16_f32", (p_[m], f"rp{n}"), (s_[2 * m], f"r{n}"), (s_[2 * m + 1], f"r{n}")), lo, min(lo + (16 if n == 1 else 6), last), q="st")
        pp_, qb = OU[n]
        ops = ([salu("s_mul_i32", sT3, sP(pp_), 144)] if n == 0 or OU[n - 1][0] != pp_ else []) + [salu("s_add_u32", sSt, sT3, 4096 * qb),
               vstore((p_, f"rp{n}"), vSt3 if pp_ == ts else vSt, Sws, sSt, 0, o.stflag, tag=f"st{pp_}")]
        if n == 9 * ts:
            pre_ = [salu("s_xor_b32", sG, sJ, sW), raw(f"s_and_b32 {sG}, {sG}, 3\ns_cselect_b32 {sG}, 0, 0x10000000", wr=[sG], cost=2, kind="br"),
                    valu("v_add_u32", vSt3, sG, vSt), salu("s_lshr_b32", sG, sG, 12), salu("s_xor_b32", sG, sG, 0x10000), salu("s_add_u32", sG, sG, 8 * US),
                    valu("v_add_u32", vOwn, sG, vL16), valu("v_add_u32", vOwr, 8 * US, vSt)]
            for y in pre_: y = F(y, ou0[n - 2], ou0[n], q="own")
            own_rdy = y
        sw = int(str(o.swin).split(",")[n // 9 % len(str(o.swin).split(","))])
        if sw and n >= sw:
            ops.insert(len(ops) - 1, waitvm(f"su{n - sw}"))
        ops[-1].utag = f"su{n}"
        for x in ops: F(x, lo, min(lo + (20 if n < 2 else 8), last), q="st", after=[chk[-1]] + (w1b[-1:] if n == 0 and int(o.hold) else []) + ([own_rdy] if n == 9 * ts else []))
        if pp_ == ts: F(dsw("ds_write_b128", vOwn, (p_, f"rp{n}"), 1024 * qb), min(lo + 2, last), min(lo + 10, last), q="st", after=[BP[4]])
    t = V(168, 4)
    ops = [salu("s_lshl_b32", sT1, sB, 4), valu("v_mov_b32", vRdA, sT1),
           salu("s_lshl4_add_u32", sT0, sW, sJ), salu("s_lshl_b32", sT0, sT0, 7),
           valu("v_lshrrev_b32", vF, 9, vL16), valu("v_lshl_add_u32", vF, vF, 15, sT0), valu("v_lshrrev_b32", vOne, 2, vL16),
           valu("v_add_u32", vF, vF, vOne), valu("v_mov_b32", vOne, 1)]
    gf = {p: ou0[max(n for n in range(36) if OU[n][0] == p) + 1] + int(str(o.flo).split(',')[p % len(str(o.flo).split(','))]) for p in range(3)}
    for x in ops: rset = F(x, gB[4], gB[4] + 40, q="fl")
    g = max(gB[4] + 41, gf[0] - int(o.rdyo)); F(vload(vRdy, vRdA, Sdbg, 0, 0, "sc1", tag="rdy", op="buffer_load_dword"), g, g + 4, q="fl")
    ops = [raw(f"v_cmp_gt_u32 vcc, 16, {vRdy}", rd=[vRdy], kind="valu"), raw("s_cbranch_vccnz Lrdy_spin\nLrdy_back:", kind="br")]
    for p in range(3):
        ops = [waitvm(f"st{p}")] + ops + [salu("s_lshl_b32", sAt, sP(p), 5), vstore(vOne, vF, Smb, sAt, 0, "sc1", tag="fl", op="buffer_store_dword")]
        for x in ops: flag0 = F(x, gf[p], gf[p] + 2, q="fl")
        if p == 0: flagop0 = flag0
        ops = []
        if p == 0:
            su = [
               salu("s_lshr_b32", sCc, sP(int(o.ts)), 6), salu("s_and_b32", sT0, sJ, 3), salu("s_add_u32", sCc, sCc, sT0),
               valu("v_bfe_u32", vPo, vL16, 4, 2), valu("v_lshrrev_b32", t[0], 8, vL16),
               salu("s_lshl_b32", sT0, sCc, 11), valu("v_lshl_add_u32", vPo, vPo, 7, sT0),
               salu("s_add_u32", sGo, sJ, 4 * int(o.ts)), salu("s_and_b32", sGo, sGo, 12), salu("s_lshl_b32", sGo, sGo, 7),
               salu("s_lshr_b32", sT0, sCc, 2), salu("s_mul_i32", sT0, sT0, 9), salu("s_add_u32", sT0, sT0, sW),
               salu("s_and_b32", sT1, sJ, 3), salu("s_lshl2_add_u32", sT0, sT0, sT1), salu("s_lshl_b32", sT0, sT0, 10),
               valu("v_add_u32", vR[0], sT0, vL16), valu("v_add_u32", vR[1], 16384, vR[0]),
               salu("s_lshl_b32", sT1, sW, 28), salu("s_add_u32", sT0, sT1, 32768), valu("v_add_u32", vR[2], sT0, vR[0]),
               valu("v_bfe_u32", t[1], vL16, 4, 4), valu("v_lshlrev_b32", vO[0], 10, t[1]), valu("v_lshl_add_u32", vO[0], t[0], 4, vO[0]),
               salu("s_lshl_b32", sT0, sW, 14), salu("s_lshl_b32", sT2, sCc, 6), salu("s_add_u32", sT0, sT0, sT2),
               valu("v_add_u32", vO[0], sT0, vO[0]), valu("v_add_u32", vO[1], 65536, vO[0]),
               salu("s_add_u32", sT0, sT1, 131072), valu("v_add_u32", vO[2], sT0, vO[0]),
               valu("v_and_b32", t[2], 1, t[1]), valu("v_lshlrev_b32", t[2], 4, t[2]), valu("v_mov_b32", t[3], "0x3f80"),
               valu("v_lshlrev_b32", t[2], t[2], t[3]),
               valu("v_bfe_u32", t[3], t[1], 2, 1), valu("v_xor_b32", t[3], t[3], t[0]),
               valu("v_and_b32", t[0], 1, t[3]), valu("v_lshlrev_b32", t[0], 3, t[0]),
               valu("v_lshrrev_b32", t[3], 1, t[3]), valu("v_lshl_add_u32", t[0], t[3], 2, t[0]),
               valu("v_lshrrev_b32", t[3], 3, t[1]), valu("v_lshl_add_u32", t[0], t[3], 1, t[0]),
               valu("v_bfe_u32", t[3], t[1], 1, 1), valu("v_add_u32", t[0], t[0], t[3]),
               valu("v_lshlrev_b32_e64", t[0], t[0], 1)]
            for m in range(8): su += [valu("v_bfe_i32", SEL[m], t[0], m, 1), valu("v_and_b32", SEL[m], SEL[m], t[2])]
            for x in su: F(x, ou0[18], ou0[26], q="su", after=[rset])
    if int(o.r0in):
        g = ou0[27] + int(o.r0o) - int(o.r0p)
        p0 = F(vload(vRdy, vPo, Smb, sGo, 0, "sc1", tag="poll0", op="buffer_load_dword"), g, g + 2, q="r0", after=[su[-1], flagop0])
        g = ou0[27] + int(o.r0o)
        for x in (raw(f"v_cmp_eq_u32 vcc, 0, {vRdy}", rd=[vRdy], kind="valu"), raw("s_cbranch_vccnz Lp0_spin\nLp0_back:", kind="br")): F(x, g, g + 1, q="r0")
        ops = [salu("s_mul_i32", sOff, sGo, PART // 128), salu("s_sub_u32", sGo, sGo, 512), salu("s_and_b32", sGo, sGo, "0x600")]
        for i in range(4):
            if i: ops.append(salu("s_add_u32", sOff, sOff, PART))
            for f in range(3):
                n_ = 3 * i + f
                if n_ >= int(o.r0w): ops.append(waitvm(("ld", (0, (n_ - int(o.r0w)) // 3, (n_ - int(o.r0w)) % 3))))
                ops.append(vload(rbuf(0, i, f), vR[f], Sred, sOff, 0, o.rflag, tag="r0")); ops[-1].utag = ("ld", (0, i, f))
        nextvm[0] = 0
        r0 = spread(ops, g + 2, float(o.r0step), q="r0")
    g = last - int(o.pollo)
    F(vload(vRdy, vPo, Smb, sGo, 0, "sc1", tag="poll", op="buffer_load_dword"), g, g + 2, q="fl", after=[r0[2]] if int(o.r0in) else [su[-1]])
    if int(o.tt):
        for x in code_touch(V(254, 2), vTs, vL16, shift=int(o.tt), tid=True): F(x, g - 30, g - 4, q="su")
    if int(o.adw):
        for x in (salu("s_and_b32", sG, sJ, 12), salu("s_lshl_b32", sG, sG, 7), vload(vRdA, vPo, Smb, sG, 0, "sc1", tag="poll", op="buffer_load_dword")):
            F(x, g, g + 6, q="fl", after=[own_rdy])
    F(waitvm("poll"), last, last, q="st")
    seq = sc.run()
    if "a" in o.abl: seq = [x for x in seq if not (x.gap > 100 and x.kind in ("dma", "vml"))]
    if "s" in o.abl: seq = [x for x in seq if not (x.kind == "vms" and x.tag.startswith("st"))]
    if "w" in o.abl: seq = [x for x in seq if not (x.kind == "dma" and x.tag[:3] == "wo0")]
    if "d" in o.abl: seq = [x for x in seq if not (x.kind == "dsw" and x.gap > 1700)]
    if "o" in o.abl: seq = [x for x in seq if not (x.kind == "dma" and x.tag[:3] in ("wo1", "wo2", "wo3"))]
    notes = {0: "Q projection: Q^T = Wq^T x^T, 16 half-stages of 64 channels x 64 head dims", k0[16]: "row offsets from the first 16 keys, then attention step 0",
             p7: "last P.V products, normalisation and hand-over of O through LDS", ou0[0]: "O projection, passes 0 and 1 interleaved",
             ou0[18]: "O projection, pass 2", ou0[27]: "O projection, pass 3 (the chunk this workgroup reduces stays in LDS)"}
    notes.update({st0[e]: f"attention step {e} (64 keys)" for e in range(1, 8)})
    for n, txt in notes.items(): sc.bb[n].text = f"; ---- {txt}\n" + sc.bb[n].text
    seq = P + seq
    if not o.abl: check_tags(seq)
    seq, nops = pad_hazards(seq)
    sys.stderr.write(f"mfma {len(sc.bb)} instrs {len(seq)} over {sc.stats['over']} idle {sc.stats['idle']} waits {sc.stats['waits']} nop-states {nops}\n")
    reduce_tail.left = sc.vm_left
    return seq, nstamp[0]

def reduce_tail(o, a, nst):
    acc = lambda f, u: V(8 * f + 4 * u, 4)
    buf = rbuf
    poll = f"buffer_load_dword {vRdy}, {vPo}, {Smb}, {sGo} offen sc1"
    a(f"s_lshl_b32 s61, {sP(3)}, 5"); a("s_mov_b32 s63, 0")
    if int(o.stamps): a(f"s_memrealtime s[{64+2*nst}:{65+2*nst}]")
    ts = int(o.ts); rws = [int(z) for z in str(o.rwin).split(',')]; pa = int(o.polli); started = set()
    nl = lambda t: 9 if t == ts else 12
    t0 = int(o.r0in); left = reduce_tail.left
    lst = max(k for k, x in enumerate(left) if x.tag == "st3")
    q = [x.utag if x.tag == "r0" else ("st",) if k == lst else ("x",) for k, x in enumerate(left)]
    def add(fr):
        for u in range(2):
            a(f"v_mfma_f32_16x16x32_bf16 {acc(fr[2],u)}, {SEL.sub(4*u,4)}, {buf(*fr)}, {acc(fr[2],u) if fr[2] in started else 0}")
        started.add(fr[2])
    def wait(n):
        if len(q) <= n: return []
        a(f"s_waitcnt vmcnt({n})"); done = q[:len(q) - n]; del q[:len(q) - n]
        return done
    def retire(done):
        for x in done:
            if x[0] == "st":
                a(f"buffer_store_dword {vOne}, {vF}, {Smb}, s61 offen sc1"); q.append(("fl",))
        for x in done:
            if x[0] == "ld": add(x[1])
    first = [("ld", (0, i, f)) for i in range(4) for f in range(3) if t0 and ("ld", (0, i, f)) not in q]
    for t in range(t0, 4):
        a(f"s_mul_i32 s45, {sGo}, {PART // 128}")
        if t == ts: a("s_mov_b32 s62, s45")
        late = []
        if ("po",) in q: late = wait(len(q) - 1 - q.index(("po",)))
        a(f"Lpoll{t}:"); a(f"v_cmp_eq_u32 vcc, 0, {vRdy}"); a(f"s_cbranch_vccz Lgo{t}")
        a(poll); a("s_add_u32 s63, s63, 1"); a("s_waitcnt vmcnt(0)"); a("s_cmp_lt_u32 s63, 0x40000"); a(f"s_cbranch_scc1 Lpoll{t}")
        a(f"Lgo{t}:")
        if int(o.rst): a(f"s_memrealtime s[{66+2*nst+2*t}:{67+2*nst+2*t}]")
        a(f"s_sub_u32 {sGo}, {sGo}, 512"); a(f"s_and_b32 {sGo}, {sGo}, 0x600")
        for i in range(nl(t) // 3):
            if t == ts: a(f"s_add_u32 s52, s51, {i+1}"); a("s_and_b32 s52, s52, 3"); a(f"s_mul_i32 s52, s52, {PART}"); a("s_add_u32 s45, s62, s52")
            if i == pa and t < 3: a(poll); q.append(("po",))
            for f in range(3):
                done = late + wait(rws[t % len(rws)] - 1); late = []
                a(f"buffer_load_dwordx4 {buf(t,i,f)}, {vR[f]}, {Sred}, s45 offen {o.rflag}"); q.append(("ld", (t, i, f)))
                retire(done + first[:3]); del first[:3]
            if i < 3 and t != ts: a(f"s_add_u32 s45, s45, {PART}")
            if (t, i) == (1 + t0, 1):
                a("s_waitcnt lgkmcnt(0)"); a("s_barrier")
                for f in range(3): a(f"ds_read_b128 {buf(ts,3,f)}, {vOwr} offset:{4096*f}")
            if (t, i) == (1 + t0, 3):
                a("s_waitcnt lgkmcnt(0)")
                for f in range(3): add((ts, 3, f))
        assert t > t0 or ("st",) not in q
    while q: retire(wait(len(q) - 1))
    a("s_nop 3")
    for f in range(3):
        if f: a("s_nop 1")
        for m in range(4): a(f"v_cvt_pk_bf16_f32 v{32+4*f+m}, v{8*f+2*m}, v{8*f+2*m+1}")
        a(f"buffer_store_dwordx4 v[{32+4*f}:{35+4*f}], {vO[f]}, {Sout}, 0 offen {o.outflag}".rstrip())

def tail_and_slow(o, nst):
    T = []; a = T.append
    a("; ---- reduce this workgroup's output chunk over the 16 head pairs of its batch")
    reduce_tail(o, a, nst); nst += 1 + 4 * int(o.rst)
    if int(o.stamps):
        a(f"s_memrealtime s[{64+2*nst}:{65+2*nst}]"); a("s_waitcnt vmcnt(0)")
        a(f"s_memrealtime s[{66+2*nst}:{67+2*nst}]"); a("s_waitcnt lgkmcnt(0)")
        a("s_cmp_lg_u32 s3, 0"); a("s_cbranch_scc1 Lend")
        if o.enc:
            ea, eb = [int(z) for z in o.enc.split(",")]
            a("s_cmp_lg_u32 s2, 100"); a("s_cbranch_scc1 Lnoenc")
            a(f"s_sub_u32 s52, s{64+2*eb}, s{64+2*ea}"); a("s_mul_i32 s52, s52, 10"); a("s_min_u32 s52, s52, 200000"); a("s_add_u32 s52, s52, 5000")
            a("Lspin:"); a("s_memrealtime s[46:47]"); a("s_waitcnt lgkmcnt(0)"); a("s_sub_u32 s46, s46, s64")
            a("s_cmp_lt_u32 s46, s52"); a("s_cbranch_scc1 Lspin"); a("Lnoenc:")
        a("s_load_dwordx2 s[40:41], s[0:1], 56"); a("s_mov_b32 s42, 0x10000000"); a("s_mov_b32 s43, 0x20000"); a("s_waitcnt lgkmcnt(0)")
        a(f"s_lshl_b32 s52, s2, 6"); a(f"s_add_u32 s52, s52, {STAMP_OFF}"); a("v_mov_b32 v1, s52")
        a("s_mov_b64 exec, 1")
        if int(o.rst): a("s_mul_i32 s63, s63, 100"); a("s_add_u32 s66, s64, s63")
        assert nst + 2 <= 16
        for n in range(nst + 2):
            a(f"v_mov_b32 v2, s{64+2*n}"); a(f"buffer_store_dword v2, v1, s[40:43], 0 offen offset:{4*n} sc1")
        if o.encx:
            col, fn = o.encx.split(",")
            a("s_cmp_lg_u32 s2, 100"); a("s_cbranch_scc1 Lend"); a("s_mov_b64 exec, -1"); a("s_waitcnt vmcnt(0)")
            a("Lsp1:"); a("s_memrealtime s[46:47]"); a("s_waitcnt lgkmcnt(0)"); a(f"s_sub_u32 s46, s46, s{66+2*nst}"); a("s_cmp_lt_u32 s46, 500"); a("s_cbranch_scc1 Lsp1")
            a(f"v_lshlrev_b32 v1, 4, {vL16}"); a(f"s_mov_b32 s52, {STAMP_OFF}")
            for z in range(4):
                a(f"buffer_load_dword v{4+z}, v1, s[40:43], s52 offen offset:{64*z} sc1"); a(f"buffer_load_dword v{8+z}, v1, s[40:43], s52 offen offset:{64*z+4*int(col)} sc1")
            a("s_waitcnt vmcnt(0)")
            for z in range(8): a(f"v_subrev_u32 v{4+z}, s64, v{4+z}")
            a("v_min_i32 v4, v4, v5"); a("v_min3_i32 v4, v4, v6, v7"); a(f"v_{fn}_i32 v8, v8, v9"); a(f"v_{fn}3_i32 v8, v8, v10, v11"); a("s_nop 1")
            a("v_readlane_b32 s52, v4, 0"); a("v_readlane_b32 s53, v8, 0")
            for z in range(1, 64):
                a(f"v_readlane_b32 s46, v4, {z}"); a(f"v_readlane_b32 s47, v8, {z}"); a("s_min_i32 s52, s52, s46"); a(f"s_{fn}_i32 s53, s53, s47")
            a("s_sub_u32 s52, s53, s52"); a("s_mul_i32 s52, s52, 10"); a("s_min_u32 s52, s52, 200000"); a("s_add_u32 s52, s52, 5000")
            a("Lsp2:"); a("s_memrealtime s[46:47]"); a("s_waitcnt lgkmcnt(0)"); a("s_sub_u32 s46, s46, s64"); a("s_cmp_lt_u32 s46, s52"); a("s_cbranch_scc1 Lsp2")
    a("Lend:"); a("s_endpgm")
    if int(o.r0in):
        a("Lp0_spin:"); a("s_mov_b32 s62, 0"); a("Lp0_loop:")
        a(f"buffer_load_dword {vRdy}, {vPo}, {Smb}, {sGo} offen sc1"); a("s_add_u32 s62, s62, 1"); a("s_waitcnt vmcnt(0)")
        a(f"v_cmp_eq_u32 vcc, 0, {vRdy}"); a("s_cmp_lt_u32 s62, 0x40000"); a("s_cselect_b64 vcc, vcc, 0")
        a("s_cbranch_vccnz Lp0_loop"); a("s_branch Lp0_back")
    a("; ---- wait until all 16 workgroups of the batch have cleared their mailboxes"); a("Lrdy_spin:"); a("s_mov_b32 s63, 0"); a("Lrdy_loop:")
    a(f"buffer_load_dword {vRdy}, {vRdA}, {Sdbg}, 0 offen sc1"); a("s_add_u32 s63, s63, 1"); a("s_waitcnt vmcnt(0)")
    a(f"v_cmp_gt_u32 vcc, 16, {vRdy}"); a("s_cmp_lt_u32 s63, 0x40000"); a("s_cselect_b64 vcc, vcc, 0")
    a("s_cbranch_vccnz Lrdy_loop"); a("s_branch Lrdy_back")
    a("; ---- fallback: a row sum left the safe range, so take the exact row maxima over all keys and redo the workgroup with them"); a("Lslow:"); a("s_waitcnt vmcnt(0) lgkmcnt(0)"); a("s_nop 7"); a("s_barrier")
    a("v_mbcnt_lo_u32_b32 v0, -1, 0"); a("v_mbcnt_hi_u32_b32 v0, -1, v0")
    a("v_and_b32 v1, 15, v0"); a("v_lshlrev_b32 v1, 8, v1"); a("v_lshrrev_b32 v2, 4, v0"); a("v_lshl_add_u32 v1, v2, 4, v1")
    a("s_lshl_b32 s52, s48, 17"); a(f"s_add_u32 s52, s52, {KSH(o)}"); a("s_lshl_b32 s53, s49, 6"); a("s_add_u32 s62, s52, s53")
    a("v_add_u32 v2, s62, v1"); a("s_xor_b32 s53, s53, 64"); a("s_add_u32 s62, s52, s53"); a("v_add_u32 v3, s62, v1")
    for b in range(5): a(f"v_mov_b32 v{8+b}, 0xff800000")
    a("s_mov_b32 s45, 0"); a("Lslow_loop:")
    for t in range(4): a(f"buffer_load_dwordx4 v[{16+4*t}:{19+4*t}], v{2+(t&1)}, {Sk}, s45 offen offset:{128*(t>>1)}")
    a("s_waitcnt vmcnt(0)")
    for b in range(5):
        for t in range(4):
            a(f"v_mfma_f32_16x16x32_bf16 {NM(b)}, v[{16+4*t}:{19+4*t}], {QF(b,t)}, {0 if t == 0 else NM(b)}")
    a("s_nop 7"); a("s_nop 1")
    for b in range(5):
        n = NM(b); a(f"v_max3_f32 v{8+b}, v{8+b}, {n[0]}, {n[1]}"); a(f"v_max3_f32 v{8+b}, v{8+b}, {n[2]}, {n[3]}")
    a("s_add_u32 s45, s45, 4096"); a("s_cmp_lt_u32 s45, 131072"); a("s_cbranch_scc1 Lslow_loop")
    for b in range(5): a(f"v_accvgpr_write_b32 {SAV(b)}, v{8+b}")
    a("s_load_dwordx16 s[4:19], s[0:1], 0"); a("s_mov_b32 s54, 1"); a("s_branch Lrestart"); a("Lcode_end:")
    return T

KD = """.amdhsa_kernel {name}
  .amdhsa_next_free_vgpr {vg}
  .amdhsa_next_free_sgpr {sg}
  .amdhsa_accum_offset {acc}
  .amdhsa_group_segment_fixed_size 0
  .amdhsa_kernarg_size 64
  .amdhsa_user_sgpr_count 2
  .amdhsa_user_sgpr_kernarg_segment_ptr 1
  .amdhsa_system_sgpr_workgroup_id_x 1
  .amdhsa_float_denorm_mode_32 3
.end_amdhsa_kernel"""

DESC = """
;
; One workgroup per CU, 4 waves, workgroup = (batch b, head pair j).  wave = (head, query half): 4 own blocks of 16
; queries plus the ninth block on every second key tile.  All products are 16x16x32 bf16 MFMAs in transposed form, so
; Q^T, P^T and O^T go from accumulator to operand without leaving registers; x, Wq, K, V and Wo stream through LDS by DMA.
; Softmax: log2(e)/sqrt(128) is folded into Q; each row is shifted by the maximum of its first 16 scores (accumulator
; initial value).  The row sums are checked before anything is stored: if one is above 2^40 (or NaN) the workgroup
; computes the exact maxima over all keys and runs again with them (Lslow).
; Head reduction: bf16 partial outputs go to d_ws with write-through stores; a wave flags a chunk in the consumer's
; mailbox once its stores have completed, and every workgroup sums one 144x32 chunk of its batch in fp32.  Mailboxes are
; cleared by their owner at the start of the launch; d_debug counts the cleared mailboxes of each batch.
; The counted waits in front of the stream loads cap the loads in flight, which keeps the CUs level with each other.
;
"""

def generate(o):
    hdr = [l.rstrip("\n") for l in open(f"cdna_kernels/{NAME}.s.ref") if l.startswith(";") and "@launch" not in l and "grid=" not in l and "Override" not in l]
    seq, nst = build_main(o)
    hdr += DESC.strip("\n").split("\n")
    L = hdr + [f"; @launch grid=(256,1,1) block=(256,1,1) lds={LDSB}", '.amdgcn_target "amdgcn-amd-amdhsa--gfx950"', ".text",
               f".globl {NAME}_kernel", ".p2align 8", f".type {NAME}_kernel,@function", f"{NAME}_kernel:"]
    L += [i.text for i in seq] + tail_and_slow(o, nst)
    L += ['.section .rodata,"a"', ".p2align 6", KD.format(name=f"{NAME}_kernel", vg=512, sg=102, acc=256)]
    txt = "\n".join(L) + "\n"
    if int(o.clk): txt = txt.replace("s_memrealtime", "s_memtime")
    if o.encc:
        for z in o.enc.split(","): txt = txt.replace(f"s_memrealtime s[{64+2*int(z)}:", f"s_memtime s[{64+2*int(z)}:")
        txt = txt.replace("s_mul_i32 s52, s52, 10", "s_mul_i32 s52, s52, 1")
    return txt

if __name__ == "__main__":
    o = Opt()
    for kv in sys.argv[2:]:
        k, v_ = kv.split("=", 1)
        assert hasattr(Opt, k), k
        setattr(o, k, v_)
    open(sys.argv[1], "w").write(generate(o))
```
